```python
import torch

def _softmax(x, axis=-1):
    return torch.softmax(x, dim=axis)
def _gelu(x):
    return torch.nn.functional.gelu(x, approximate="tanh")
def _silu(x):
    return torch.nn.functional.silu(x)
def _sigmoid(x):
    return torch.sigmoid(x)
def _layernorm(x, axis=-1, eps=1e-5):
    m = x.mean(dim=axis, keepdim=True)
    v = x.var(dim=axis, keepdim=True, unbiased=False)
    return (x - m) / torch.sqrt(v + eps)
def _scatter_add(tgt, idx, src, axis=0):
    return tgt.clone().index_add_(axis, idx, src)
def _segment_sum(src, seg, n):
    out = torch.zeros((n,) + src.shape[1:], dtype=src.dtype)
    return out.index_add_(0, seg, src)
def _pad(x, pw):
    flat = tuple(v for pair in reversed(pw) for v in pair)
    return torch.nn.functional.pad(x, flat)

kernel_name = 'concat_heads__gqa_block_cached__gqa_block_cached__near_ridge'

def setup_inputs():

    _w = (lambda a: (lambda t: t.to(torch.bfloat16) if t.is_floating_point() else t)(torch.as_tensor(a)))
    def _A_setup():
        B, Sq, D = 8, 48, 1024
        Hq, Hkv, Sk, Dh = 32, 4, 1024, 128
        assert Hq % Hkv == 0, (Hq, Hkv)
        return {
            "x": _w((lambda *s: torch.randn(*s, dtype=torch.bfloat16) * 0.8)(B, Sq, D)),
            "k_cache": _w((lambda *s: torch.randn(*s, dtype=torch.bfloat16) * 0.8)(B, Hkv, Sk, Dh)),
            "v_cache": _w((lambda *s: torch.randn(*s, dtype=torch.bfloat16) * 0.05)(B, Hkv, Sk, Dh)),
            "wq": _w((lambda *s: torch.randn(*s, dtype=torch.bfloat16) * 0.8)(D, Hq * Dh) * (D ** -0.5)),
            "wo": _w((lambda *s: torch.randn(*s, dtype=torch.bfloat16) * 0.05)(Hq * Dh, D) * ((Hq * Dh) ** -0.5)),
        }
    _A_in = _A_setup()

    def _B_setup():
        B, Sq, D = 8, 48, 1024
        Hq, Hkv, Sk, Dh = 32, 4, 1024, 128
        assert Hq % Hkv == 0, (Hq, Hkv)
        return {
            "x": _w((lambda *s: torch.randn(*s, dtype=torch.bfloat16) * 0.8)(B, Sq, D)),
            "k_cache": _w((lambda *s: torch.randn(*s, dtype=torch.bfloat16) * 0.8)(B, Hkv, Sk, Dh)),
            "v_cache": _w((lambda *s: torch.randn(*s, dtype=torch.bfloat16) * 0.05)(B, Hkv, Sk, Dh)),
            "wq": _w((lambda *s: torch.randn(*s, dtype=torch.bfloat16) * 0.8)(D, Hq * Dh) * (D ** -0.5)),
            "wo": _w((lambda *s: torch.randn(*s, dtype=torch.bfloat16) * 0.05)(Hq * Dh, D) * ((Hq * Dh) ** -0.5)),
        }
    _B_in = _B_setup()

    return {
        "A_x": _A_in["x"],
        "A_k_cache": _A_in["k_cache"],
        "A_v_cache": _A_in["v_cache"],
        "A_wq": _A_in["wq"],
        "A_wo": _A_in["wo"],
        "B_x": _B_in["x"],
        "B_k_cache": _B_in["k_cache"],
        "B_v_cache": _B_in["v_cache"],
        "B_wq": _B_in["wq"],
        "B_wo": _B_in["wo"],
    }

def reference(A_x, A_k_cache, A_v_cache, A_wq, A_wo, B_x, B_k_cache, B_v_cache, B_wq, B_wo):
    def _A_ref(x, k_cache, v_cache, wq, wo):
        B, Sq, D = x.shape
        Hq, Dh = 32, 128
        Hkv = k_cache.shape[1]
        rep = Hq // Hkv
        q = (lambda x, *d: x.permute(*d))((x @ wq).reshape(B, Sq, Hq, Dh), 0, 2, 1, 3)
        k = (lambda x, n, axis: torch.repeat_interleave(x, n, dim=axis))(k_cache, rep, axis=1)
        v = (lambda x, n, axis: torch.repeat_interleave(x, n, dim=axis))(v_cache, rep, axis=1)
        scores = torch.einsum("bhqd,bhkd->bhqk", q, k) * (Dh ** -0.5)
        p = _softmax(scores, axis=-1)
        o = torch.einsum("bhqk,bhkd->bhqd", p, v)
        return (lambda x, *d: x.permute(*d))(o, 0, 2, 1, 3).reshape(B, Sq, Hq * Dh) @ wo

    def _B_ref(x, k_cache, v_cache, wq, wo):
        B, Sq, D = x.shape
        Hq, Dh = 32, 128
        Hkv = k_cache.shape[1]
        rep = Hq // Hkv
        q = (lambda x, *d: x.permute(*d))((x @ wq).reshape(B, Sq, Hq, Dh), 0, 2, 1, 3)
        k = (lambda x, n, axis: torch.repeat_interleave(x, n, dim=axis))(k_cache, rep, axis=1)
        v = (lambda x, n, axis: torch.repeat_interleave(x, n, dim=axis))(v_cache, rep, axis=1)
        scores = torch.einsum("bhqd,bhkd->bhqk", q, k) * (Dh ** -0.5)
        p = _softmax(scores, axis=-1)
        o = torch.einsum("bhqk,bhkd->bhqd", p, v)
        return (lambda x, *d: x.permute(*d))(o, 0, 2, 1, 3).reshape(B, Sq, Hq * Dh) @ wo

    a = _A_ref(A_x, A_k_cache, A_v_cache, A_wq, A_wo)
    b = _B_ref(B_x, B_k_cache, B_v_cache, B_wq, B_wo)
    return torch.concatenate([a, b], axis=-1)
```

```python
import sys, struct, math

NAME = "concat_heads__gqa_block_cached__gqa_block_cached__near_ridge"

def f2u(x):
    return struct.unpack("<I", struct.pack("<f", x))[0]

class Asm:
    def __init__(self):
        self.L = []
    def __call__(self, s):
        for line in s.split("\n"):
            self.L.append("    " + line.strip() if not line.strip().endswith(":") else line.strip())
    def label(self, s):
        self.L.append(s + ":")
    def c(self, s):
        self.L.append("    ; " + s)
    def text(self):
        return "\n".join(self.L) + "\n"

def vr(base, n=1):
    return f"v{base}" if n == 1 else f"v[{base}:{base+n-1}]"
def sr(base, n=1):
    return f"s{base}" if n == 1 else f"s[{base}:{base+n-1}]"

MF32 = "v_mfma_f32_32x32x16_bf16"
MF16 = "v_mfma_f32_16x16x32_bf16"

DEBUG_Q = False

def kernel1(a, opt):
    sW = 4
    SX, SWQ, SK, SV, SO = 8, 12, 16, 20, 24
    sC, sT = 54, 55
    sG = [56, 57, 58]
    sL = [59, 60, 61]
    sStep = 62
    sVn, sKn = 63, 64
    sGstep = 65
    sKc, sVc = 66, 67
    sLimV2, sLimK2 = 68, 69
    sQt, sKq = 70, 71
    sA, sB, sD = 72, 73, 74
    sLam = 75
    sWs, sWg, sXs, sXg = 76, 77, 78, 79
    sP = 80
    vLane = 0
    vT = [1, 2, 3, 4, 5, 6]
    vMC, vL0, vL1 = 7, 8, 9
    vKoff, vVoff = 10, 11
    KA = 12
    VA = 20
    O = 24
    Q = 88
    S = 120
    F = 136
    NV = 168
    Wf = 88
    Xf = 104
    ACC = 128
    WA = 152
    XA = 154
    QW = 158
    vWo, vXo = 152, 153

    XBASE = 131072
    a.label("k1_kernel")
    a("s_cmp_ge_u32 s2, 256")
    a("s_cbranch_scc1 K1_END")
    a("s_load_dwordx16 s[32:47], s[0:1], 0")
    a("s_load_dwordx4 s[48:51], s[0:1], 64")
    a("s_load_dwordx2 s[52:53], s[0:1], 96")
    a("v_lshrrev_b32 v1, 6, v0")
    a("v_and_b32 v0, 63, v0")
    a(f"v_readfirstlane_b32 s{sW}, v1")
    a("s_and_b32 s5, s2, 3")
    a("s_bfe_u32 s6, s2, 0x10002")
    a("s_lshr_b32 s7, s2, 5")
    a("s_bfe_u32 s3, s2, 0x20003")
    a(f"s_mov_b32 s{sC}, {f2u(128 ** -0.5 * math.log2(math.e)):#x}")
    a(f"s_mov_b32 s{sT}, {f2u(8.0):#x}")
    for r in range(64):
        a(f"v_mov_b32 v{O+r}, 0")
    a("s_waitcnt lgkmcnt(0)")
    a("s_cmp_eq_u32 s6, 0")
    a(f"s_cselect_b64 s[{SX}:{SX+1}], s[32:33], s[42:43]")
    a(f"s_cselect_b64 s[{SK}:{SK+1}], s[34:35], s[44:45]")
    a(f"s_cselect_b64 s[{SV}:{SV+1}], s[36:37], s[46:47]")
    a(f"s_cselect_b64 s[{SWQ}:{SWQ+1}], s[38:39], s[48:49]")
    a(f"s_mul_i32 s{sA}, s7, 98304")
    a(f"s_add_u32 s{SX}, s{SX}, s{sA}")
    a(f"s_addc_u32 s{SX+1}, s{SX+1}, 0")
    a(f"s_mov_b32 s{SX+2}, 98304")
    a(f"s_mov_b32 s{SX+3}, 0x20000")
    a(f"s_lshl_b32 s{sA}, s5, 11")
    a(f"s_lshl_b32 s{sB}, s3, 9")
    a(f"s_add_u32 s{sA}, s{sA}, s{sB}")
    a(f"s_add_u32 s{SWQ}, s{SWQ}, s{sA}")
    a(f"s_addc_u32 s{SWQ+1}, s{SWQ+1}, 0")
    a(f"s_sub_u32 s{SWQ+2}, 8388608, s{sA}")
    a(f"s_mov_b32 s{SWQ+3}, 0x20000")
    a(f"s_lshl_b32 s{sB}, s6, 3")
    a(f"s_add_u32 s{sB}, s{sB}, s7")
    a(f"s_mul_i32 s{sB}, s{sB}, {48*8192}")
    a(f"s_add_u32 s{sB}, s{sB}, s{sA}")
    a(f"s_add_u32 s{SO}, s52, s{sB}")
    a(f"s_addc_u32 s{SO+1}, s53, 0")
    a(f"s_sub_u32 s{SO+2}, {48*8192}, s{sA}")
    a(f"s_mov_b32 s{SO+3}, 0x20000")
    a(f"s_lshl_b32 s{sB}, s7, 2")
    a(f"s_add_u32 s{sB}, s{sB}, s5")
    a(f"s_lshl_b32 s{sB}, s{sB}, 18")
    a(f"s_add_u32 s{SK}, s{SK}, s{sB}")
    a(f"s_addc_u32 s{SK+1}, s{SK+1}, 0")
    a(f"s_mov_b32 s{SK+2}, 262144")
    a(f"s_mov_b32 s{SK+3}, 0x20000")
    a(f"s_add_u32 s{SV}, s{SV}, s{sB}")
    a(f"s_addc_u32 s{SV+1}, s{SV+1}, 0")
    a(f"s_mov_b32 s{SV+2}, 262144")
    a(f"s_mov_b32 s{SV+3}, 0x20000")
    a(f"s_and_b32 s{sKq}, s{sW}, 3")
    a(f"s_lshr_b32 s{sQt}, s{sW}, 2")
    t0, t1, t2, t3, t4, t5 = vT
    a(f"v_lshrrev_b32 v{t0}, 4, v0")
    a(f"v_and_b32 v{t1}, 15, v0")
    a(f"v_lshlrev_b32 v{t2}, 2, v{t0}")
    a(f"v_xor_b32 v{t3}, v{t1}, v{t2}")
    a(f"v_lshlrev_b32 v{t4}, 8, v{t0}")
    a(f"v_lshl_add_u32 v{vVoff}, v{t3}, 4, v{t4}")
    a(f"v_xor_b32 v{t3}, s{sKq}, v{t3}")
    a(f"v_lshl_add_u32 v{vKoff}, v{t3}, 4, v{t4}")
    a(f"s_cmp_ge_u32 s{sW}, 8")
    a("s_cbranch_scc1 K1_LOADER")

    a.c("phase 1 compute")
    a(f"v_bfe_u32 v{t0}, v0, 2, 2")
    a(f"v_lshrrev_b32 v{t1}, 4, v0")
    a(f"v_and_b32 v{t2}, 1, v{t1}")
    a(f"v_lshl_or_b32 v{t2}, v{t2}, 2, v{t0}")
    a(f"s_lshl_b32 s{sA}, s{sW}, 1")
    a(f"v_xor_b32 v{t2}, s{sA}, v{t2}")
    a(f"v_lshl_add_u32 v{t3}, v{t1}, 3, v{t0}")
    a(f"v_lshlrev_b32 v{t3}, 9, v{t3}")
    a(f"v_lshl_add_u32 v{t3}, v{t2}, 5, v{t3}")
    a(f"v_and_b32 v{t4}, 3, v0")
    a(f"v_lshl_add_u32 v{WA}, v{t4}, 3, v{t3}")
    a(f"v_xor_b32 v{WA+1}, 32, v{WA}")
    a(f"v_and_b32 v{t0}, 15, v0")
    a(f"v_xor_b32 v{t2}, v{t1}, v{t0}")
    a(f"v_lshlrev_b32 v{t2}, 4, v{t2}")
    a(f"v_lshl_add_u32 v{t2}, v{t0}, 8, v{t2}")
    a(f"v_add_u32 v{XA}, {XBASE:#x}, v{t2}")
    a(f"v_xor_b32 v{XA+1}, 64, v{XA}")
    a(f"v_xor_b32 v{XA+2}, 0x80, v{XA}")
    a(f"v_xor_b32 v{XA+3}, 0xc0, v{XA}")
    a(f"s_lshl_b32 s{sA}, s{sKq}, 2")
    a(f"v_lshrrev_b32 v{t2}, 1, v{t1}")
    a(f"v_add_u32 v{t2}, s{sA}, v{t2}")
    a(f"v_xor_b32 v{t2}, v{t2}, v{t0}")
    a(f"v_lshlrev_b32 v{t2}, 4, v{t2}")
    a(f"v_lshl_add_u32 v{t2}, v{t0}, 8, v{t2}")
    a(f"v_and_b32 v{t3}, 1, v{t1}")
    a(f"v_lshl_add_u32 v{t2}, v{t3}, 3, v{t2}")
    a(f"s_mul_i32 s{sA}, s{sQt}, {48*256}")
    a(f"s_add_u32 s{sA}, s{sA}, {XBASE}")
    a(f"v_add_u32 v{QW}, s{sA}, v{t2}")
    a(f"v_xor_b32 v{QW+1}, 32, v{QW}")
    for r in range(24):
        a(f"v_mov_b32 v{ACC+r}, 0")
    a(f"s_mov_b32 s{sP}, 0")
    a.label("K1_P1_LOOP")
    for sp in range(2):
        a("s_barrier")
        for ks in range(2):
            for tt in range(2):
                for e in range(2):
                    off = sp * 32768 + ks * 16384 + e * 2048
                    a(f"ds_read_b64_tr_b16 {vr(Wf + (tt*2+ks)*4 + e*2, 2)}, v{WA+tt} offset:{off}")
            for rt in range(3):
                a(f"ds_read_b128 {vr(Xf + (rt*2+ks)*4, 4)}, v{XA + sp*2 + ks} offset:{rt*4096}")
        for ks in range(2):
            a(f"s_waitcnt lgkmcnt({7 if ks == 0 else 0})")
            for rt in range(3):
                for tt in range(2):
                    acc = ACC + (tt*3+rt)*4
                    a(f"{MF16} {vr(acc,4)}, {vr(Wf+(tt*2+ks)*4,4)}, {vr(Xf+(rt*2+ks)*4,4)}, {vr(acc,4)}")
    a(f"v_xor_b32 v{WA}, 0x10000, v{WA}")
    a(f"v_xor_b32 v{WA+1}, 0x10000, v{WA+1}")
    for v in range(4):
        a(f"v_xor_b32 v{XA+v}, 0x4000, v{XA+v}")
    a(f"s_add_u32 s{sP}, s{sP}, 1")
    a(f"s_cmp_lt_u32 s{sP}, 8")
    a("s_cbranch_scc1 K1_P1_LOOP")
    a("s_barrier")
    a("s_nop 7")
    for tt in range(2):
        for rt in range(3):
            acc = ACC + (tt*3+rt)*4
            a(f"v_cvt_pk_bf16_f32 v{acc}, v{acc}, v{acc+1}")
            a(f"v_cvt_pk_bf16_f32 v{acc+1}, v{acc+2}, v{acc+3}")
            a(f"ds_write_b64 v{QW+tt}, {vr(acc,2)} offset:{rt*4096}")
    a("s_waitcnt lgkmcnt(0)")
    a("s_branch K1_JOIN")

    a.label("K1_LOADER")
    a(f"s_sub_u32 s{sLam}, s{sW}, 8")
    a(f"v_lshrrev_b32 v{t0}, 5, v0")
    a(f"v_and_b32 v{t1}, 31, v0")
    a(f"s_and_b32 s{sA}, s{sLam}, 1")
    a(f"s_lshl_b32 s{sA}, s{sA}, 1")
    a(f"s_lshr_b32 s{sB}, s{sLam}, 1")
    a(f"s_lshl_b32 s{sB}, s{sB}, 2")
    a(f"s_or_b32 s{sA}, s{sA}, s{sB}")
    a(f"v_or_b32 v{t2}, s{sA}, v{t0}")
    a(f"v_lshlrev_b32 v{t2}, 1, v{t2}")
    a(f"v_xor_b32 v{t2}, v{t1}, v{t2}")
    a(f"v_lshlrev_b32 v{t2}, 4, v{t2}")
    a(f"v_lshl_add_u32 v{vWo}, v{t0}, 13, v{t2}")
    a(f"s_and_b32 s{sA}, s{sLam}, 1")
    a(f"s_or_b32 s{sA}, s{sA}, s{sB}")
    a(f"s_lshl_b32 s{sB}, s{sA}, 14")
    a(f"v_add_u32 v{vWo}, s{sB}, v{vWo}")
    a(f"s_lshl_b32 s{sWs}, s{sA}, 10")
    a(f"s_mov_b32 s{sD}, s{sWs}")
    a(f"v_lshrrev_b32 v{t0}, 4, v0")
    a(f"v_and_b32 v{t1}, 15, v0")
    a(f"s_lshl_b32 s{sA}, s{sLam}, 2")
    a(f"v_or_b32 v{t2}, s{sA}, v{t0}")
    a(f"v_xor_b32 v{t3}, v{t1}, v{t2}")
    a(f"v_lshlrev_b32 v{t3}, 4, v{t3}")
    a(f"v_lshl_add_u32 v{vXo}, v{t2}, 11, v{t3}")
    def issueW(slot_expr_sgpr, goff_sgpr):
        for j in range(8):
            m1, m3, m4 = j & 1, (j >> 1) & 1, (j >> 2) & 1
            dm = 2*m1 + 8*m3 + 16*m4
            a(f"s_add_u32 m0, s{slot_expr_sgpr}, {dm*1024}")
            a(f"s_add_u32 s{sA}, s{goff_sgpr}, {dm*16384}")
            a(f"buffer_load_dwordx4 v{vWo}, s[{SWQ}:{SWQ+3}], s{sA} offen lds")
    def issueX(slot_sgpr, goff_sgpr):
        for j in range(3):
            a(f"s_add_u32 m0, s{slot_sgpr}, {j*4096}")
            a(f"s_add_u32 s{sA}, s{goff_sgpr}, {j*16*2048}")
            a(f"buffer_load_dwordx4 v{vXo}, s[{SX}:{SX+3}], s{sA} offen lds")
    def issueKV_loader(srd, voff, slot, step):
        a(f"s_lshl_b32 s{sB}, s{sLam}, 10")
        for e in range(8):
            lo = slot*32768 + (e >> 1)*8192 + (e & 1)*4096
            go = (e >> 1)*65536 + step*8192 + (e & 1)*4096
            a(f"s_add_u32 m0, s{sB}, {lo}")
            a(f"s_add_u32 s{sA}, s{sB}, {go}")
            a(f"buffer_load_dwordx4 v{voff}, s[{srd}:{srd+3}], s{sA} offen lds")
    a(f"s_lshl_b32 s{sXs}, s{sLam}, 10")
    a(f"s_add_u32 s{sXs}, s{sXs}, {XBASE}")
    a(f"s_mov_b32 s{sXg}, 0")
    issueX(sXs, sXg)
    a(f"s_mov_b32 s{sWg}, 0")
    a(f"s_mov_b32 s{sWs}, s{sD}")
    for st in range(3):
        issueW(sWs, sWg)
        a(f"s_add_u32 s{sWs}, s{sWs}, 32768")
        a(f"s_add_u32 s{sWg}, s{sWg}, 524288")
    a(f"s_mov_b32 s{sP}, 0")
    def nextW():
        a(f"s_add_u32 s{sWs}, s{sWs}, 32768")
        a(f"s_and_b32 s{sWs}, s{sWs}, 0x1ffff")
        a(f"s_add_u32 s{sWg}, s{sWg}, 524288")
    def nextX():
        a(f"s_xor_b32 s{sXs}, s{sXs}, 0x4000")
        a(f"s_add_u32 s{sXg}, s{sXg}, 256")
    a.label("K1_LD_LOOP")
    a("s_waitcnt vmcnt(16)")
    a("s_barrier")
    nextX(); issueX(sXs, sXg)
    issueW(sWs, sWg); nextW()
    a("s_waitcnt vmcnt(19)")
    a("s_barrier")
    issueW(sWs, sWg); nextW()
    a(f"s_add_u32 s{sP}, s{sP}, 1")
    a(f"s_cmp_lt_u32 s{sP}, 6")
    a("s_cbranch_scc1 K1_LD_LOOP")
    a("s_waitcnt vmcnt(16)")
    a("s_barrier")
    nextX(); issueX(sXs, sXg)
    issueW(sWs, sWg)
    a("s_waitcnt vmcnt(19)")
    a("s_barrier")
    issueKV_loader(SK, vKoff, 0, 0)
    a("s_waitcnt vmcnt(16)")
    a("s_barrier")
    issueKV_loader(SV, vVoff, 1, 0)
    a("s_waitcnt vmcnt(16)")
    a("s_barrier")
    issueKV_loader(SK, vKoff, 2, 1)
    a("s_barrier")
    a("s_waitcnt vmcnt(8)")

    a.label("K1_JOIN")
    a("s_barrier")
    a(f"v_and_b32 v{t0}, 31, v0")
    a(f"v_lshrrev_b32 v{t1}, 5, v0")
    a(f"v_and_b32 v{t2}, 15, v0")
    a(f"v_xor_b32 v{t2}, v{t1}, v{t2}")
    a(f"v_lshlrev_b32 v{t2}, 4, v{t2}")
    a(f"v_lshl_add_u32 v{t2}, v{t0}, 8, v{t2}")
    a(f"s_lshl_b32 s{sA}, s{sQt}, 13")
    a(f"s_add_u32 s{sA}, s{sA}, {XBASE}")
    a(f"v_add_u32 v{t2}, s{sA}, v{t2}")
    for ks in range(8):
        a(f"v_xor_b32 v{t3}, {ks << 5:#x}, v{t2}")
        a(f"ds_read_b128 {vr(Q+4*ks,4)}, v{t3}")
    if DEBUG_Q:
        pass
    a(f"v_and_b32 v{t2}, 3, v0")
    a(f"v_lshlrev_b32 v{t2}, 2, v{t2}")
    a(f"v_bfe_u32 v{t3}, v0, 2, 2")
    a(f"v_or_b32 v{t2}, v{t2}, v{t3}")
    a(f"v_xor_b32 v{t2}, v{t1}, v{t2}")
    a(f"v_lshlrev_b32 v{t2}, 4, v{t2}")
    a(f"v_lshl_add_u32 v{t2}, v{t0}, 8, v{t2}")
    a(f"s_lshl_b32 s{sA}, s{sKq}, 13")
    a(f"v_add_u32 v{KA}, s{sA}, v{t2}")
    for ks in range(1, 8):
        a(f"v_xor_b32 v{KA+ks}, {ks << 5:#x}, v{KA}")
    a(f"v_bfe_u32 v{t2}, v0, 2, 2")
    a(f"v_lshl_add_u32 v{t3}, v{t1}, 2, v{t2}")
    a(f"v_bfe_u32 v{t4}, v0, 4, 1")
    a(f"v_bfe_u32 v{t5}, v0, 1, 1")
    a(f"v_lshl_or_b32 v{t4}, v{t4}, 1, v{t5}")
    a(f"v_lshlrev_b32 v{t2}, 2, v{t2}")
    a(f"v_xor_b32 v{t4}, v{t4}, v{t2}")
    a(f"v_lshlrev_b32 v{t4}, 4, v{t4}")
    a(f"v_lshl_add_u32 v{t4}, v{t3}, 8, v{t4}")
    a(f"v_and_b32 v{t5}, 1, v0")
    a(f"v_lshl_add_u32 v{t4}, v{t5}, 3, v{t4}")
    a(f"s_add_u32 s{sA}, s{sA}, 32768")
    a(f"v_add_u32 v{VA}, s{sA}, v{t4}")
    for dt in range(1, 4):
        a(f"v_xor_b32 v{VA+dt}, {dt << 6:#x}, v{VA}")
    for j in range(3):
        a(f"s_mul_i32 s{sA}, s{sQt}, 3")
        a(f"s_add_u32 s{sA}, s{sA}, {j}")
        a(f"s_and_b32 s{sB}, s{sA}, 1")
        a(f"s_lshl_b32 s{sB}, s{sB}, 2")
        a(f"s_add_u32 s{sB}, s{sB}, s{sKq}")
        a(f"s_lshl_b32 s{sB}, s{sB}, 10")
        a(f"s_lshr_b32 s{sA}, s{sA}, 1")
        a(f"s_lshl_b32 s{sD}, s{sA}, 16")
        a(f"s_add_u32 s{sG[j]}, s{sD}, s{sB}")
        a(f"s_lshl_b32 s{sD}, s{sA}, 13")
        a(f"s_add_u32 s{sL[j]}, s{sD}, s{sB}")
    a(f"s_cmp_lt_u32 s{sQt}, 2")
    a(f"s_cselect_b32 s{sLimV2}, 7, 0")
    a(f"s_cselect_b32 s{sLimK2}, 6, 0")
    a(f"s_mov_b32 s{sStep}, 0")
    a(f"s_mov_b32 s{sVn}, {3*32768}")
    a(f"s_mov_b32 s{sKn}, {4*32768}")
    a(f"s_mov_b32 s{sGstep}, 8192")
    a(f"s_mov_b32 s{sKc}, 0")
    a(f"s_mov_b32 s{sVc}, 32768")
    a(f"v_mov_b32 v{vMC}, {f2u(-1e30):#x}")
    a(f"v_mov_b32 v{vL0}, 0")
    a(f"v_mov_b32 v{vL1}, 0")
    a("s_waitcnt lgkmcnt(0)")
    if DEBUG_Q:
        pass
    a.label("K1_P2_TOP")
    a("s_barrier")
    for ks in range(8):
        a(f"ds_read_b128 {vr(F+4*ks,4)}, v{KA+ks}")
    def dma(kind, j, uid):
        lim = {('V',0): "7", ('V',1): "7", ('V',2): f"s{sLimV2}", ('K',0): "6", ('K',1): "6", ('K',2): f"s{sLimK2}"}[(kind, j)]
        a(f"s_cmp_lt_u32 s{sStep}, {lim}")
        a(f"s_cbranch_scc0 K1_SKIP_{kind}{j}")
        if kind == 'V':
            a(f"s_add_u32 m0, s{sVn}, s{sL[j]}")
            a(f"s_add_u32 s{sA}, s{sGstep}, s{sG[j]}")
            a(f"buffer_load_dwordx4 v{vVoff}, s[{SV}:{SV+3}], s{sA} offen lds")
        else:
            a(f"s_add_u32 m0, s{sKn}, s{sL[j]}")
            a(f"s_add_u32 s{sA}, s{sGstep}, s{sG[j]}")
            a(f"s_add_u32 s{sA}, s{sA}, 8192")
            a(f"buffer_load_dwordx4 v{vKoff}, s[{SK}:{SK+3}], s{sA} offen lds")
        a.label(f"K1_SKIP_{kind}{j}")
    for ks in range(8):
        a(f"s_waitcnt lgkmcnt({7-ks})")
        cin = "0" if ks == 0 else vr(S,16)
        a(f"{MF32} {vr(S,16)}, {vr(F+4*ks,4)}, {vr(Q+4*ks,4)}, {cin}")
        if ks in (1, 3, 5):
            dma('V', ks // 2, 0)
    def vreads(kk):
        for dt in range(4):
            for e in range(2):
                a(f"ds_read_b64_tr_b16 {vr(F+(kk*4+dt)*4+2*e,2)}, v{VA+dt} offset:{kk*4096+e*2048}")
    vreads(0)
    a("s_nop 4")
    mx, tb = vT[0], vT[1]
    a(f"v_max3_f32 v{mx}, v{S+0}, v{S+1}, v{S+2}")
    a(f"v_max3_f32 v{tb}, v{S+3}, v{S+4}, v{S+5}")
    a(f"v_max3_f32 v{mx}, v{mx}, v{S+6}, v{S+7}")
    a(f"v_max3_f32 v{tb}, v{tb}, v{S+8}, v{S+9}")
    a(f"v_max3_f32 v{mx}, v{mx}, v{S+10}, v{S+11}")
    a(f"v_max3_f32 v{tb}, v{tb}, v{S+12}, v{S+13}")
    a(f"v_max3_f32 v{mx}, v{mx}, v{S+14}, v{S+15}")
    a(f"v_max_f32 v{mx}, v{mx}, v{tb}")
    a(f"v_mov_b32 v{tb}, v{mx}")
    a("s_nop 1")
    a(f"v_permlane32_swap_b32 v{mx}, v{tb}")
    a(f"v_max_f32 v{mx}, v{mx}, v{tb}")
    a(f"v_mul_f32 v{mx}, s{sC}, v{mx}")
    a(f"v_sub_f32 v{tb}, v{mx}, v{vMC}")
    a(f"v_cmp_lt_f32 vcc, s{sT}, v{tb}")
    a("s_cbranch_vccnz K1_RARE")
    a.label("K1_CONT")
    for r in range(16):
        a(f"v_fma_f32 v{S+r}, v{S+r}, s{sC}, -v{vMC}")
    for r in range(16):
        a(f"v_exp_f32 v{S+r}, v{S+r}")
        if r == 7:
            vreads(1)
    for r in range(0, 16, 2):
        a(f"v_add_f32 v{vL0}, v{vL0}, v{S+r}")
        a(f"v_add_f32 v{vL1}, v{vL1}, v{S+r+1}")
    for k in range(8):
        a(f"v_cvt_pk_bf16_f32 v{S+k}, v{S+2*k}, v{S+2*k+1}")
    a("s_nop 1")
    for kk in range(2):
        a(f"s_waitcnt lgkmcnt({8 if kk == 0 else 0})")
        for dt in range(4):
            a(f"{MF32} {vr(O+16*dt,16)}, {vr(F+(kk*4+dt)*4,4)}, {vr(S+4*kk,4)}, {vr(O+16*dt,16)}")
            n = kk*4 + dt
            if n in (1, 3, 5):
                dma('K', n // 2, 0)
    def rot(sreg):
        a(f"s_add_u32 s{sreg}, s{sreg}, 65536")
        a(f"s_cmp_ge_u32 s{sreg}, 163840")
        a(f"s_cselect_b32 s{sA}, 163840, 0")
        a(f"s_sub_u32 s{sreg}, s{sreg}, s{sA}")
    a(f"s_mov_b32 s{sD}, s{sKc}")
    rot(sKc)
    a(f"s_sub_u32 s{sD}, s{sKc}, s{sD}")
    for ks in range(8):
        a(f"v_add_u32 v{KA+ks}, s{sD}, v{KA+ks}")
    a(f"s_mov_b32 s{sD}, s{sVc}")
    rot(sVc)
    a(f"s_sub_u32 s{sD}, s{sVc}, s{sD}")
    for dt in range(4):
        a(f"v_add_u32 v{VA+dt}, s{sD}, v{VA+dt}")
    rot(sVn); rot(sKn)
    a(f"s_add_u32 s{sGstep}, s{sGstep}, 8192")
    a(f"s_add_u32 s{sStep}, s{sStep}, 1")
    a(f"s_cmp_eq_u32 s{sStep}, 8")
    a("s_cbranch_scc1 K1_P2_END")
    a(f"s_cmp_le_u32 s{sStep}, 6")
    a("s_cbranch_scc1 K1_W2")
    a("s_waitcnt vmcnt(0)")
    a("s_branch K1_P2_TOP")
    a.label("K1_W2")
    a("s_waitcnt vmcnt(2)")
    a("s_branch K1_P2_TOP")

    a.label("K1_RARE")
    a(f"v_max_f32 v{mx}, v{mx}, v{vMC}")
    a(f"v_sub_f32 v{tb}, v{vMC}, v{mx}")
    a(f"v_exp_f32 v{tb}, v{tb}")
    a(f"v_mov_b32 v{vMC}, v{mx}")
    a(f"v_mul_f32 v{vL0}, v{vL0}, v{tb}")
    a(f"v_mul_f32 v{vL1}, v{vL1}, v{tb}")
    for r in range(64):
        a(f"v_mul_f32 v{O+r}, v{O+r}, v{tb}")
    a("s_branch K1_CONT")

    a.label("K1_P2_END")
    a(f"v_add_f32 v{vL0}, v{vL0}, v{vL1}")
    a(f"v_mov_b32 v{t1}, v{vL0}")
    a("s_nop 1")
    a(f"v_permlane32_swap_b32 v{vL0}, v{t1}")
    a(f"v_add_f32 v{vL0}, v{vL0}, v{t1}")
    a(f"v_mov_b32 v{S}, v{vMC}")
    a(f"v_mov_b32 v{S+1}, v{vL0}")
    a(f"v_and_b32 v{t0}, 31, v0")
    a(f"v_lshlrev_b32 v{t0}, 3, v{t0}")
    a(f"s_lshl_b32 s{sA}, s{sQt}, 10")
    a(f"v_add_u32 v{t0}, s{sA}, v{t0}")
    a(f"s_lshl_b32 s{sB}, s{sKq}, 8")
    a(f"v_add_u32 v{t1}, s{sB}, v{t0}")
    a("s_barrier")
    a(f"ds_write_b64 v{t1}, {vr(S,2)}")
    a("s_waitcnt lgkmcnt(0)")
    a("s_barrier")
    for j in range(4):
        a(f"ds_read_b64 {vr(S+2+2*j,2)}, v{t0} offset:{j*256}")
    a("s_waitcnt lgkmcnt(0)")
    mf = t2
    a(f"v_max3_f32 v{mf}, v{S+2}, v{S+4}, v{S+6}")
    a(f"v_max_f32 v{mf}, v{mf}, v{S+8}")
    for j in range(4):
        a(f"v_sub_f32 v{S+2+2*j}, v{S+2+2*j}, v{mf}")
    a(f"v_sub_f32 v{t3}, v{vMC}, v{mf}")
    for j in range(4):
        a(f"v_exp_f32 v{S+2+2*j}, v{S+2+2*j}")
    a(f"v_exp_f32 v{t3}, v{t3}")
    a(f"v_mul_f32 v{t4}, v{S+2}, v{S+3}")
    for j in range(1, 4):
        a(f"v_fma_f32 v{t4}, v{S+2+2*j}, v{S+3+2*j}, v{t4}")
    a(f"v_rcp_f32 v{t4}, v{t4}")
    a("s_nop 0")
    a(f"v_mul_f32 v{t4}, v{t4}, v{t3}")
    for r in range(64):
        a(f"v_mul_f32 v{O+r}, v{O+r}, v{t4}")
    EX = 4096
    R = Q
    a(f"v_lshlrev_b32 v{t0}, 4, v0")
    a(f"s_mul_i32 s{sB}, s{sQt}, {4*3*4096}")
    a(f"s_add_u32 s{sB}, s{sB}, {EX}")
    for dt in range(4):
        a(f"s_cmp_eq_u32 s{sKq}, {dt}")
        a(f"s_cbranch_scc1 K1_OWN{dt}")
        a(f"s_sub_u32 s{sA}, s{sKq}, {dt+1}")
        a(f"s_and_b32 s{sA}, s{sA}, 3")
        a(f"s_lshl_b32 s{sA}, s{sA}, 12")
        a(f"s_add_u32 s{sA}, s{sA}, s{sB}")
        a(f"v_add_u32 v{t1}, s{sA}, v{t0}")
        for g in range(4):
            a(f"ds_write_b128 v{t1}, {vr(O+16*dt+4*g,4)} offset:{dt*3*4096 + g*1024}")
        a(f"s_branch K1_NXT{dt}")
        a.label(f"K1_OWN{dt}")
        for r in range(16):
            a(f"v_mov_b32 v{R+r}, v{O+16*dt+r}")
        a.label(f"K1_NXT{dt}")
    a("s_waitcnt lgkmcnt(0)")
    a("s_barrier")
    a(f"s_mul_i32 s{sA}, s{sKq}, {3*4096}")
    a(f"s_add_u32 s{sA}, s{sA}, s{sB}")
    a(f"v_add_u32 v{t1}, s{sA}, v{t0}")
    TT = O
    for rk in range(3):
        for g in range(4):
            a(f"ds_read_b128 {vr(TT+16*rk+4*g,4)}, v{t1} offset:{rk*4096+g*1024}")
    for rk in range(3):
        a(f"s_waitcnt lgkmcnt({8-4*rk})")
        for r in range(16):
            a(f"v_add_f32 v{R+r}, v{R+r}, v{TT+16*rk+r}")
    for g in range(4):
        a(f"v_cvt_pk_bf16_f32 v{S+2*g}, v{R+4*g}, v{R+4*g+1}")
        a(f"v_cvt_pk_bf16_f32 v{S+2*g+1}, v{R+4*g+2}, v{R+4*g+3}")
    a(f"v_and_b32 v{t0}, 31, v0")
    a(f"s_lshl_b32 s{sA}, s{sQt}, 5")
    a(f"v_add_u32 v{t0}, s{sA}, v{t0}")
    a(f"v_cmp_le_u32 vcc, 48, v{t0}")
    a(f"v_subrev_u32 v{t1}, 48, v{t0}")
    a(f"v_lshlrev_b32 v{t2}, 13, v{t0}")
    a(f"v_lshlrev_b32 v{t3}, 13, v{t1}")
    a(f"v_add_u32 v{t3}, 256, v{t3}")
    a(f"v_cndmask_b32 v{t2}, v{t2}, v{t3}, vcc")
    a(f"v_lshrrev_b32 v{t1}, 5, v0")
    a(f"v_lshl_add_u32 v{t2}, v{t1}, 4, v{t2}")
    a(f"s_lshl_b32 s{sA}, s{sKq}, 6")
    a(f"v_add_u32 v{t2}, s{sA}, v{t2}")
    a(f"v_permlane32_swap_b32 v{S+0}, v{S+2}")
    a(f"v_permlane32_swap_b32 v{S+1}, v{S+3}")
    a(f"v_permlane32_swap_b32 v{S+4}, v{S+6}")
    a(f"v_permlane32_swap_b32 v{S+5}, v{S+7}")
    a(f"buffer_store_dwordx4 {vr(S,4)}, v{t2}, s[{SO}:{SO+3}], 0 offen")
    a(f"buffer_store_dwordx4 {vr(S+4,4)}, v{t2}, s[{SO}:{SO+3}], 0 offen offset:32")
    a.label("K1_END")
    a("s_endpgm")
    return NV

def kernel2(a, opt):
    sW = 4
    SX, SWO, SO = 8, 12, 16
    sA, sB, sD, sLam, sP = 20, 21, 22, 23, 24
    sSl, sWg, sXg = 25, 26, 27
    NS = 5
    STG = 28672
    t0, t1, t2, t3, t4 = 1, 2, 3, 4, 5
    WA = 6
    XA = 10
    vWo, vXo = 6, 7
    ACC = 12
    FR = 60
    NV = 116
    a.label("k2_kernel")
    a("s_cmp_ge_u32 s2, 256")
    a("s_cbranch_scc1 K2_END")
    a("s_load_dwordx2 s[32:33], s[0:1], 32")
    a("s_load_dwordx2 s[34:35], s[0:1], 72")
    a("s_load_dwordx2 s[36:37], s[0:1], 80")
    a("s_load_dwordx2 s[38:39], s[0:1], 96")
    a("v_lshrrev_b32 v1, 6, v0")
    a("v_and_b32 v0, 63, v0")
    a(f"v_readfirstlane_b32 s{sW}, v1")
    a("s_and_b32 s5, s2, 3")
    a("s_bfe_u32 s6, s2, 0x10002")
    a("s_lshr_b32 s7, s2, 5")
    a("s_bfe_u32 s3, s2, 0x20003")
    a("s_waitcnt lgkmcnt(0)")
    a("s_cmp_eq_u32 s6, 0")
    a(f"s_cselect_b64 s[{SWO}:{SWO+1}], s[32:33], s[34:35]")
    a(f"s_lshl_b32 s{sA}, s5, 9")
    a(f"s_lshl_b32 s{sB}, s3, 7")
    a(f"s_add_u32 s{sA}, s{sA}, s{sB}")
    a(f"s_add_u32 s{SWO}, s{SWO}, s{sA}")
    a(f"s_addc_u32 s{SWO+1}, s{SWO+1}, 0")
    a(f"s_sub_u32 s{SWO+2}, 8388608, s{sA}")
    a(f"s_mov_b32 s{SWO+3}, 0x20000")
    a(f"s_lshl_b32 s{sB}, s6, 3")
    a(f"s_add_u32 s{sB}, s{sB}, s7")
    a(f"s_mul_i32 s{sD}, s{sB}, {48*8192}")
    a(f"s_add_u32 s{SX}, s38, s{sD}")
    a(f"s_addc_u32 s{SX+1}, s39, 0")
    a(f"s_mov_b32 s{SX+2}, {48*8192}")
    a(f"s_mov_b32 s{SX+3}, 0x20000")
    a(f"s_mul_i32 s{sD}, s7, {48*4096}")
    a(f"s_lshl_b32 s{sB}, s6, 11")
    a(f"s_add_u32 s{sB}, s{sB}, s{sA}")
    a(f"s_add_u32 s{sD}, s{sD}, s{sB}")
    a(f"s_add_u32 s{SO}, s36, s{sD}")
    a(f"s_addc_u32 s{SO+1}, s37, 0")
    a(f"s_sub_u32 s{SO+2}, {48*4096}, s{sB}")
    a(f"s_mov_b32 s{SO+3}, 0x20000")
    a(f"s_cmp_ge_u32 s{sW}, 4")
    a("s_cbranch_scc1 K2_LOADER")
    a(f"v_bfe_u32 v{t0}, v0, 2, 2")
    a(f"v_lshrrev_b32 v{t1}, 4, v0")
    a(f"v_lshl_add_u32 v{t2}, v{t1}, 3, v{t0}")
    a(f"s_lshl_b32 s{sA}, s{sW}, 5")
    a(f"v_add_u32 v{t2}, s{sA}, v{t2}")
    a(f"v_lshlrev_b32 v{t2}, 7, v{t2}")
    a(f"v_bfe_u32 v{t3}, v0, 3, 1")
    a(f"v_bfe_u32 v{t4}, v0, 4, 1")
    a(f"v_lshl_or_b32 v{t3}, v{t4}, 1, v{t3}")
    a(f"v_lshl_add_u32 v{t2}, v{t3}, 5, v{t2}")
    a(f"v_and_b32 v{t3}, 3, v0")
    a(f"v_lshl_add_u32 v{WA}, v{t3}, 3, v{t2}")
    for t in range(1, 4):
        a(f"v_xor_b32 v{WA+t}, {t << 5}, v{WA}")
    a(f"v_and_b32 v{t0}, 15, v0")
    a(f"s_lshl_b32 s{sA}, s{sW}, 2")
    a(f"v_add_u32 v{t2}, s{sA}, v{t1}")
    a(f"v_xor_b32 v{t2}, v{t2}, v{t0}")
    a(f"v_lshlrev_b32 v{t2}, 4, v{t2}")
    a(f"v_lshl_add_u32 v{t2}, v{t0}, 8, v{t2}")
    a(f"v_add_u32 v{XA}, 16384, v{t2}")
    for r in range(48):
        a(f"v_mov_b32 v{ACC+r}, 0")
    def reads(buf):
        fb = FR + buf*28
        for t in range(4):
            for e in range(2):
                a(f"ds_read_b64_tr_b16 {vr(fb+4*t+2*e,2)}, v{WA+t} offset:{e*512}")
        for rt in range(3):
            a(f"ds_read_b128 {vr(fb+16+4*rt,4)}, v{XA} offset:{rt*4096}")
    def adv():
        a(f"s_add_u32 s{sA}, s{sSl}, {STG}")
        a(f"s_cmp_ge_u32 s{sA}, {NS*STG}")
        a(f"s_cselect_b32 s{sB}, {NS*STG}, 0")
        a(f"s_sub_u32 s{sA}, s{sA}, s{sB}")
        a(f"s_sub_u32 s{sD}, s{sA}, s{sSl}")
        a(f"s_mov_b32 s{sSl}, s{sA}")
        for t in range(4):
            a(f"v_add_u32 v{WA+t}, s{sD}, v{WA+t}")
        a(f"v_add_u32 v{XA}, s{sD}, v{XA}")
    def mfmas(buf):
        fb = FR + buf*28
        for rt in range(3):
            for t in range(4):
                acc = ACC + (t*3+rt)*4
                a(f"{MF16} {vr(acc,4)}, {vr(fb+4*t,4)}, {vr(fb+16+4*rt,4)}, {vr(acc,4)}")
    a(f"s_mov_b32 s{sSl}, 0")
    a("s_barrier")
    reads(0); adv()
    a("s_waitcnt lgkmcnt(0)")
    a(f"s_mov_b32 s{sP}, 0")
    a.label("K2_C_LOOP")
    for half in range(2):
        a("s_barrier")
        reads(1-half); adv()
        mfmas(half)
        a("s_waitcnt lgkmcnt(0)")
        if half == 0:
            a(f"s_cmp_eq_u32 s{sP}, 15")
            a("s_cbranch_scc1 K2_C_DONE")
    a(f"s_add_u32 s{sP}, s{sP}, 1")
    a("s_branch K2_C_LOOP")
    a.label("K2_C_DONE")
    mfmas(1)
    a("s_barrier")
    a("s_nop 7")
    a(f"v_lshlrev_b32 v{t0}, 4, v0")
    a(f"s_mul_i32 s{sA}, s{sW}, 12288")
    a(f"v_add_u32 v{t1}, s{sA}, v{t0}")
    for tile in range(12):
        a(f"ds_write_b128 v{t1}, {vr(ACC+4*tile,4)} offset:{tile*1024}")
    a("s_waitcnt lgkmcnt(0)")
    a("s_barrier")
    a(f"s_mul_i32 s{sA}, s{sW}, 3072")
    a(f"v_add_u32 v{t1}, s{sA}, v{t0}")
    for src in range(4):
        for rt in range(3):
            a(f"ds_read_b128 {vr(ACC+(src*3+rt)*4,4)}, v{t1} offset:{src*12288+rt*1024}")
    a("s_waitcnt lgkmcnt(0)")
    for rt in range(3):
        for r in range(4):
            d = ACC + rt*4 + r
            a(f"v_add_f32 v{d}, v{d}, v{d+12}")
            a(f"v_add_f32 v{d+24}, v{d+24}, v{d+36}")
        for r in range(4):
            d = ACC + rt*4 + r
            a(f"v_add_f32 v{d}, v{d}, v{d+24}")
        d = ACC + rt*4
        a(f"v_cvt_pk_bf16_f32 v{d}, v{d}, v{d+1}")
        a(f"v_cvt_pk_bf16_f32 v{d+1}, v{d+2}, v{d+3}")
    a(f"v_and_b32 v{t0}, 15, v0")
    a(f"v_lshrrev_b32 v{t1}, 4, v0")
    a(f"v_lshlrev_b32 v{t0}, 12, v{t0}")
    a(f"v_lshl_add_u32 v{t0}, v{t1}, 3, v{t0}")
    a(f"s_lshl_b32 s{sA}, s{sW}, 5")
    a(f"v_add_u32 v{t0}, s{sA}, v{t0}")
    for rt in range(3):
        a(f"s_mov_b32 s{sA}, {rt*16*4096}")
        a(f"buffer_store_dwordx2 {vr(ACC+rt*4,2)}, v{t0}, s[{SO}:{SO+3}], s{sA} offen")
    a("s_endpgm")

    a.label("K2_LOADER")
    a(f"s_sub_u32 s{sLam}, s{sW}, 4")
    a(f"v_lshrrev_b32 v{t0}, 3, v0")
    a(f"v_and_b32 v{t1}, 7, v0")
    a(f"v_bfe_u32 v{t2}, v0, 4, 1")
    a(f"s_and_b32 s{sA}, s{sLam}, 1")
    a(f"s_lshl_b32 s{sA}, s{sA}, 1")
    a(f"v_or_b32 v{t2}, s{sA}, v{t2}")
    a(f"v_lshlrev_b32 v{t2}, 1, v{t2}")
    a(f"v_xor_b32 v{t1}, v{t1}, v{t2}")
    a(f"v_lshlrev_b32 v{t1}, 4, v{t1}")
    a(f"s_lshl_b32 s{sA}, s{sLam}, 3")
    a(f"v_add_u32 v{t0}, s{sA}, v{t0}")
    a(f"v_lshl_add_u32 v{vWo}, v{t0}, 11, v{t1}")
    a(f"v_lshrrev_b32 v{t0}, 4, v0")
    a(f"v_and_b32 v{t1}, 15, v0")
    a(f"s_lshl_b32 s{sA}, s{sLam}, 2")
    a(f"v_or_b32 v{t2}, s{sA}, v{t0}")
    a(f"v_xor_b32 v{t1}, v{t1}, v{t2}")
    a(f"v_lshlrev_b32 v{t1}, 4, v{t1}")
    a(f"v_lshl_add_u32 v{vXo}, v{t2}, 13, v{t1}")
    def issue():
        for j in range(4):
            a(f"s_add_u32 m0, s{sSl}, {j*4096}")
            a(f"s_add_u32 s{sA}, s{sWg}, {j*32*2048}")
            a(f"buffer_load_dwordx4 v{vWo}, s[{SWO}:{SWO+3}], s{sA} offen lds")
        for j in range(3):
            a(f"s_add_u32 m0, s{sSl}, {16384 + j*4096}")
            a(f"s_add_u32 s{sA}, s{sXg}, {j*16*8192}")
            a(f"buffer_load_dwordx4 v{vXo}, s[{SX}:{SX+3}], s{sA} offen lds")
        a(f"s_add_u32 s{sSl}, s{sSl}, {STG}")
        a(f"s_cmp_ge_u32 s{sSl}, s{sD}")
        a(f"s_cselect_b32 s{sB}, {NS*STG}, 0")
        a(f"s_sub_u32 s{sSl}, s{sSl}, s{sB}")
        a(f"s_add_u32 s{sWg}, s{sWg}, {128*2048}")
        a(f"s_add_u32 s{sXg}, s{sXg}, 256")
    a(f"s_lshl_b32 s{sSl}, s{sLam}, 10")
    a(f"s_add_u32 s{sD}, s{sSl}, {NS*STG}")
    a(f"s_mov_b32 s{sWg}, 0")
    a(f"s_mov_b32 s{sXg}, 0")
    for st in range(5):
        issue()
    a("s_waitcnt vmcnt(28)")
    a("s_barrier")
    a(f"s_mov_b32 s{sP}, 0")
    a.label("K2_L_LOOP")
    a("s_waitcnt vmcnt(21)")
    a("s_barrier")
    issue()
    a(f"s_add_u32 s{sP}, s{sP}, 1")
    a(f"s_cmp_lt_u32 s{sP}, 27")
    a("s_cbranch_scc1 K2_L_LOOP")
    for s in range(27, 31):
        a(f"s_waitcnt vmcnt({7*(31-(s+1))})")
        a("s_barrier")
    a("s_barrier")
    a("s_barrier")
    a.label("K2_END")
    a("s_endpgm")
    return NV

HEADER = open("cdna_kernels/" + NAME + ".s.ref").read().split("; Override launch")[0]

def kd(name, nv, ns):
    acc = (nv + 3)//4*4
    return f"""
.amdhsa_kernel {name}
  .amdhsa_next_free_vgpr {nv}
  .amdhsa_next_free_sgpr {ns}
  .amdhsa_accum_offset {acc}
  .amdhsa_group_segment_fixed_size 0
  .amdhsa_kernarg_size 104
  .amdhsa_user_sgpr_count 2
  .amdhsa_user_sgpr_kernarg_segment_ptr 1
  .amdhsa_system_sgpr_workgroup_id_x 1
.end_amdhsa_kernel
"""

def main(out):
    opt = {}
    a1 = Asm(); nv1 = kernel1(a1, opt)
    a2 = Asm(); nv2 = kernel2(a2, opt)
    s = HEADER
    s += "; @launch kernel=k1_kernel grid=(256,1,1) block=(768,1,1) lds=163840\n"
    s += "; @launch kernel=k2_kernel grid=(256,1,1) block=(512,1,1) lds=143360\n"
    s += '.amdgcn_target "amdgcn-amd-amdhsa--gfx950"\n.text\n'
    for nm, body in (("k1_kernel", a1), ("k2_kernel", a2)):
        s += f".globl {nm}\n.p2align 8\n.type {nm},@function\n" + body.text()
    s += '.section .rodata,"a"\n'
    s += ".p2align 6" + kd("k1_kernel", nv1, 96) + ".p2align 6" + kd("k2_kernel", nv2, 48)
    open(out, "w").write(s)

if __name__ == "__main__":
    main(sys.argv[1] if len(sys.argv) > 1 else "cdna_kernels/" + NAME + ".s")
```

```python
import sys, struct, math

NAME = "concat_heads__gqa_block_cached__gqa_block_cached__near_ridge"

def f2u(x):
    return struct.unpack("<I", struct.pack("<f", x))[0]

class Asm:
    def __init__(self):
        self.L = []
    def __call__(self, s):
        for line in s.split("\n"):
            self.L.append("    " + line.strip() if not line.strip().endswith(":") else line.strip())
    def label(self, s):
        self.L.append(s + ":")
    def c(self, s):
        self.L.append("    ; " + s)
    def text(self):
        return "\n".join(self.L) + "\n"

def vr(base, n=1):
    return f"v{base}" if n == 1 else f"v[{base}:{base+n-1}]"
def sr(base, n=1):
    return f"s{base}" if n == 1 else f"s[{base}:{base+n-1}]"

MF32 = "v_mfma_f32_32x32x16_bf16"
MF16 = "v_mfma_f32_16x16x32_bf16"

DEBUG_Q = False
PROF = False
FINE = False
class Prof:
    def __init__(self, a, base, tmp, srd):
        self.a, self.base, self.tmp, self.srd = a, base, tmp, srd
    def init(self, n):
        if not PROF: return
        for i in range(n):
            self.a(f"s_mov_b32 s{self.base+i}, 0")
    def fine(self, slot, cond_sgpr, val, uid):
        if not FINE: return
        a = self.a
        a(f"s_cmp_lg_u32 s{cond_sgpr}, {val}")
        a(f"s_cbranch_scc1 FINE_{uid}")
        a(f"s_memtime s[{self.tmp}:{self.tmp+1}]")
        a("s_waitcnt lgkmcnt(0)")
        a(f"s_mov_b32 s{self.base+slot}, s{self.tmp}")
        a.label(f"FINE_{uid}")
    def stamp(self, slot, real=False):
        if not PROF: return
        if FINE and slot in (2, 3, 4, 5, 6, 7) : return
        a = self.a
        a(f"{'s_memrealtime' if real else 's_memtime'} s[{self.tmp}:{self.tmp+1}]")
        a("s_waitcnt lgkmcnt(0)")
        a(f"s_mov_b32 s{self.base+slot}, s{self.tmp}")
    def dump(self, ws_lo, swave, region, nmax):
        if not PROF: return
        a = self.a
        b = self.srd
        a(f"s_add_u32 s{b}, s{ws_lo}, {region}")
        a(f"s_addc_u32 s{b+1}, s{ws_lo+1}, 0")
        a(f"s_mov_b32 s{b+2}, {256*16*64}")
        a(f"s_mov_b32 s{b+3}, 0x20000")
        a(f"s_lshl_b32 s{self.tmp}, s2, 4")
        a(f"s_add_u32 s{self.tmp}, s{self.tmp}, s{swave}")
        a(f"s_lshl_b32 s{self.tmp}, s{self.tmp}, 6")
        a("s_mov_b64 exec, 1")
        a(f"v_mov_b32 v1, s{self.tmp}")
        for i in range(nmax):
            a(f"v_mov_b32 v2, s{self.base+i}")
            a(f"buffer_store_dword v2, v1, s[{b}:{b+3}], 0 offen offset:{4*i}")
            a("s_nop 0")

def kernel1(a, opt):
    T2_START = opt.get("t2_start", 8)
    TOUCH = opt.get("touch", 0)
    PRIO = opt.get("prio", 1)
    PQ, PS, PP = opt.get("pq", 2), opt.get("ps", 1), opt.get("pp", 0)
    DMAQ = opt.get("dmaq", 1)
    NTD = " nt" if opt.get("ntd", 1) else ""
    NTT = " nt" if opt.get("ntt", 1) else ""
    ROT = opt.get("rot", 1)
    TPS = opt.get("tps", 2)
    NS2 = opt.get("p2steps", 8)
    AB = opt.get("ablate", 0)
    CSCALE = 128 ** -0.5 * math.log2(math.e)
    WOT = opt.get("wot", 1)
    NTW = " nt" if opt.get("ntw", 0) else ""
    SWOP = 36
    sW = 4
    sKvh, sBr, sBt, sPair = 5, 6, 7, 3
    SX, SWQ, SK, SV, SO = 8, 12, 16, 20, 24
    STCH = 40
    sThr, sFloor = 54, 55
    sG = [56, 57, 58, 59]
    sL = [60, 61, 62, 63]
    sStep = 64
    sVn, sKn = 65, 66
    sGstep = 67
    sKc, sVc = 68, 69
    sQt, sKq = 70, 71
    sA, sB, sD = 72, 73, 74
    sLam = 75
    sWs, sWg, sXs, sXg = 76, 77, 78, 79
    sP = 80
    sE = 81
    sDk, sDv, sTl = 76, 77, 78
    vMx = 0
    vL = 1
    KA0, KA1, VA = 2, 3, 4
    vKoff, vVoff = 5, 6
    vTb = 7
    NM = 8
    O = 24
    Q = 88
    S = 120
    F = 136
    NV = 168
    t0, t1, t2, t3, t4 = 8, 9, 10, 11, 12
    Wf = 88
    Xf = 104
    ACC = 128
    WA = 152
    XA = 154
    QW = 158
    vTch = 160
    vCs = 161
    vWo, vXo = 152, 153

    XBASE = 131072
    a.label("k1_kernel")
    a("s_cmp_ge_u32 s2, 256")
    a("s_cbranch_scc1 K1_END")
    P = Prof(a, 84, 82, 28)
    P.init(12)
    P.stamp(0, real=True)
    P.stamp(1)
    a("s_load_dwordx16 s[32:47], s[0:1], 0")
    a("s_load_dwordx4 s[48:51], s[0:1], 64")
    a("s_load_dwordx2 s[52:53], s[0:1], 96")
    a("v_lshrrev_b32 v1, 6, v0")
    a("v_and_b32 v0, 63, v0")
    a(f"v_readfirstlane_b32 s{sW}, v1")
    a(f"s_and_b32 s{sKvh}, s2, 3")
    a(f"s_bfe_u32 s{sBr}, s2, 0x10002")
    a(f"s_lshr_b32 s{sBt}, s2, 5")
    a(f"s_bfe_u32 s{sPair}, s2, 0x20003")
    a(f"s_and_b32 s{sKq}, s{sW}, 3")
    a(f"s_lshr_b32 s{sQt}, s{sW}, 2")
    a(f"s_lshl_b32 s{sD}, s{sKvh}, 11")
    a(f"s_lshl_b32 s{sB}, s{sPair}, 9")
    a(f"s_add_u32 s{sD}, s{sD}, s{sB}")
    a(f"s_mul_i32 s{sA}, s{sBt}, 98304")

    def srd1():
        a("s_waitcnt lgkmcnt(0)")
        a(f"s_cmp_eq_u32 s{sBr}, 0")
        a(f"s_cselect_b64 s[{SX}:{SX+1}], s[32:33], s[42:43]")
        a(f"s_cselect_b64 s[{SWQ}:{SWQ+1}], s[38:39], s[48:49]")
        a(f"s_add_u32 s{SX}, s{SX}, s{sA}")
        a(f"s_addc_u32 s{SX+1}, s{SX+1}, 0")
        a(f"s_mov_b32 s{SX+2}, 98304")
        a(f"s_mov_b32 s{SX+3}, 0x20000")
        a(f"s_add_u32 s{SWQ}, s{SWQ}, s{sD}")
        a(f"s_addc_u32 s{SWQ+1}, s{SWQ+1}, 0")
        a(f"s_sub_u32 s{SWQ+2}, 8388608, s{sD}")
        a(f"s_mov_b32 s{SWQ+3}, 0x20000")
    def srd2():
        a(f"s_cmp_eq_u32 s{sBr}, 0")
        a(f"s_cselect_b64 s[{SK}:{SK+1}], s[34:35], s[44:45]")
        a(f"s_cselect_b64 s[{SV}:{SV+1}], s[36:37], s[46:47]")
        a(f"s_mov_b64 s[36:37], s[40:41]")
        a(f"s_lshl_b32 s{sB}, s{sBr}, 3")
        a(f"s_add_u32 s{sB}, s{sB}, s{sBt}")
        a(f"s_mul_i32 s{sB}, s{sB}, {48*8192}")
        a(f"s_add_u32 s{sB}, s{sB}, s{sD}")
        a(f"s_add_u32 s{SO}, s52, s{sB}")
        a(f"s_addc_u32 s{SO+1}, s53, 0")
        a(f"s_sub_u32 s{SO+2}, {48*8192}, s{sD}")
        a(f"s_mov_b32 s{SO+3}, 0x20000")
        a(f"s_lshl_b32 s{sB}, s{sBt}, 2")
        a(f"s_add_u32 s{sB}, s{sB}, s{sKvh}")
        a(f"s_lshl_b32 s{sB}, s{sB}, 18")
        a(f"s_add_u32 s{SK}, s{SK}, s{sB}")
        a(f"s_addc_u32 s{SK+1}, s{SK+1}, 0")
        a(f"s_mov_b32 s{SK+2}, 262144")
        a(f"s_mov_b32 s{SK+3}, 0x20000")
        a(f"s_add_u32 s{SV}, s{SV}, s{sB}")
        a(f"s_addc_u32 s{SV+1}, s{SV+1}, 0")
        a(f"s_mov_b32 s{SV+2}, 262144")
        a(f"s_mov_b32 s{SV+3}, 0x20000")
        a(f"s_mov_b32 s{STCH+2}, 262144")
        a(f"s_mov_b32 s{STCH+3}, 0x20000")
        for r in range(64):
            a(f"v_mov_b32 v{O+r}, 0")
        a(f"v_bfe_u32 v{t0}, v0, 2, 2")
        a(f"v_lshlrev_b32 v{t0}, 8, v{t0}")
        a(f"v_lshrrev_b32 v{t1}, 4, v0")
        a(f"v_lshl_add_u32 v{t0}, v{t1}, 6, v{t0}")
        a(f"v_and_b32 v{t1}, 3, v0")
        a(f"v_lshl_add_u32 v{vVoff}, v{t1}, 4, v{t0}")
        a(f"s_lshl_b32 s{sB}, s{sKq}, 4")
        a(f"v_xor_b32 v{vKoff}, s{sB}, v{vVoff}")

    def kread(n):
        a(f"ds_read_b128 {vr(F+4*n,4)}, v{KA0 + (n & 1)} offset:{(n >> 1)*256}")
    def setup2():
        a(f"v_and_b32 v{t0}, 31, v0")
        a(f"v_lshrrev_b32 v{t1}, 5, v0")
        a(f"v_and_b32 v{t2}, 15, v0")
        a(f"v_xor_b32 v{t2}, v{t1}, v{t2}")
        a(f"v_lshlrev_b32 v{t2}, 4, v{t2}")
        a(f"v_lshl_add_u32 v{t2}, v{t0}, 8, v{t2}")
        a(f"s_lshl_b32 s{sA}, s{sQt}, 13")
        a(f"s_add_u32 s{sA}, s{sA}, {XBASE}")
        a(f"v_add_u32 v{vTb}, s{sA}, v{t2}")
        a(f"v_lshrrev_b32 v{t2}, 2, v{t0}")
        a(f"v_and_b32 v{t3}, 3, v{t2}")
        a(f"v_xor_b32 v{t3}, v{t1}, v{t3}")
        a(f"v_lshlrev_b32 v{t3}, 4, v{t3}")
        a(f"v_lshl_add_u32 v{t3}, v{t2}, 10, v{t3}")
        a(f"v_and_b32 v{t2}, 3, v0")
        a(f"v_lshl_add_u32 v{t3}, v{t2}, 6, v{t3}")
        a(f"s_lshl_b32 s{sA}, s{sKq}, 13")
        a(f"v_add_u32 v{KA0}, s{sA}, v{t3}")
        a(f"v_xor_b32 v{KA1}, 32, v{KA0}")
        a(f"v_bfe_u32 v{t2}, v0, 2, 2")
        a(f"v_lshlrev_b32 v{t2}, 6, v{t2}")
        a(f"v_lshl_add_u32 v{t2}, v{t1}, 10, v{t2}")
        a(f"v_bfe_u32 v{t3}, v0, 4, 1")
        a(f"v_lshl_add_u32 v{t2}, v{t3}, 5, v{t2}")
        a(f"v_bfe_u32 v{t3}, v0, 1, 1")
        a(f"v_lshl_add_u32 v{t2}, v{t3}, 4, v{t2}")
        a(f"v_and_b32 v{t3}, 1, v0")
        a(f"v_lshl_add_u32 v{t2}, v{t3}, 3, v{t2}")
        a(f"s_add_u32 s{sA}, s{sA}, 32768")
        a(f"v_add_u32 v{VA}, s{sA}, v{t2}")
        for j in range(4):
            a(f"s_sub_u32 s{sA}, s{sQt}, 1")
            a(f"s_lshl_b32 s{sA}, s{sA}, 1")
            a(f"s_add_u32 s{sA}, s{sA}, {j >> 1}")
            a(f"s_add_u32 s{sB}, s{sKq}, {4*(j & 1)}")
            a(f"s_lshl_b32 s{sB}, s{sB}, 10")
            a(f"s_lshl_b32 s{sD}, s{sA}, 16")
            a(f"s_add_u32 s{sG[j]}, s{sD}, s{sB}")
            a(f"s_lshl_b32 s{sD}, s{sA}, 13")
            a(f"s_add_u32 s{sL[j]}, s{sD}, s{sB}")
        a(f"s_mov_b32 s{sStep}, 0")
        a(f"s_mov_b32 s{sKn}, {4*32768}")
        a(f"s_mov_b32 s{sVn}, 0")
        a(f"s_mov_b32 s{sGstep}, 16384")
        a(f"s_mov_b32 s{sKc}, 65536")
        a(f"s_mov_b32 s{sVc}, 32768")
        a(f"s_mov_b32 s{sThr}, 0xff800000")
        a(f"s_mov_b32 s{sFloor}, 0xff800000")
        for r in range(16):
            a(f"v_mov_b32 v{NM+r}, 0")
        a(f"v_mov_b32 v{vL}, 0")

    a(f"s_cmp_ge_u32 s{sW}, 8")
    a("s_cbranch_scc1 K1_LOADER")

    a.c("phase 1 compute")
    if opt.get("cpf", 1):
        a(f"s_cmp_lg_u32 s{sW}, 0")
        a("s_cbranch_scc1 K1_NOCPF")
        a("s_getpc_b64 s[82:83]")
        a("s_and_b32 s82, s82, 0xffffff00")
        a(f"v_lshlrev_b32 v{t0}, 7, v0")
        a(f"global_load_dword v{F+31}, v{t0}, s[82:83]")
        a(f"v_add_u32 v{t0}, 0x2000, v{t0}")
        a(f"v_min_u32 v{t0}, K2_END-k1_kernel-4, v{t0}")
        a(f"global_load_dword v{F+31}, v{t0}, s[82:83]")
        a.label("K1_NOCPF")
    a(f"v_lshlrev_b32 v{vTch}, 7, v0")
    a(f"v_mov_b32 v{vCs}, {f2u(CSCALE):#x}")
    a(f"v_bfe_u32 v{t0}, v0, 2, 2")
    a(f"v_lshrrev_b32 v{t1}, 4, v0")
    a(f"v_and_b32 v{t2}, 1, v{t1}")
    a(f"v_lshl_or_b32 v{t2}, v{t2}, 2, v{t0}")
    a(f"s_lshl_b32 s{sE}, s{sW}, 1")
    a(f"v_xor_b32 v{t2}, s{sE}, v{t2}")
    a(f"v_lshl_add_u32 v{t3}, v{t1}, 3, v{t0}")
    a(f"v_lshlrev_b32 v{t3}, 9, v{t3}")
    a(f"v_lshl_add_u32 v{t3}, v{t2}, 5, v{t3}")
    a(f"v_and_b32 v{t4}, 3, v0")
    a(f"v_lshl_add_u32 v{WA}, v{t4}, 3, v{t3}")
    a(f"v_xor_b32 v{WA+1}, 32, v{WA}")
    a(f"v_and_b32 v{t0}, 15, v0")
    a(f"v_xor_b32 v{t2}, v{t1}, v{t0}")
    a(f"v_lshlrev_b32 v{t2}, 4, v{t2}")
    a(f"v_lshl_add_u32 v{t2}, v{t0}, 8, v{t2}")
    a(f"v_add_u32 v{XA}, {XBASE:#x}, v{t2}")
    a(f"v_xor_b32 v{XA+1}, 64, v{XA}")
    a(f"v_xor_b32 v{XA+2}, 0x80, v{XA}")
    a(f"v_xor_b32 v{XA+3}, 0xc0, v{XA}")
    a(f"s_lshl_b32 s{sE}, s{sKq}, 2")
    a(f"v_lshrrev_b32 v{t2}, 1, v{t1}")
    a(f"v_add_u32 v{t2}, s{sE}, v{t2}")
    a(f"v_xor_b32 v{t2}, v{t2}, v{t0}")
    a(f"v_lshlrev_b32 v{t2}, 4, v{t2}")
    a(f"v_lshl_add_u32 v{t2}, v{t0}, 8, v{t2}")
    a(f"v_and_b32 v{t3}, 1, v{t1}")
    a(f"v_lshl_add_u32 v{t2}, v{t3}, 3, v{t2}")
    a(f"s_mul_i32 s{sE}, s{sQt}, {48*256}")
    a(f"s_add_u32 s{sE}, s{sE}, {XBASE}")
    a(f"v_add_u32 v{QW}, s{sE}, v{t2}")
    a(f"v_xor_b32 v{QW+1}, 32, v{QW}")
    for r in range(24):
        a(f"v_mov_b32 v{ACC+r}, 0")
    srd1()
    srd2()
    setup2()
    a(f"s_mov_b32 s{sP}, 0")
    a.label("K1_P1_LOOP")
    for sp in range(2):
        a("s_barrier")
        if sp == 0 and PROF and not FINE:
            a(f"s_cmp_lg_u32 s{sP}, 0")
            a("s_cbranch_scc1 K1_PS0")
            P.stamp(2)
            a.label("K1_PS0")
        for ks in range(2):
            for tt in range(2):
                for e in range(2):
                    off = sp * 32768 + ks * 16384 + e * 2048
                    a(f"ds_read_b64_tr_b16 {vr(Wf + (tt*2+ks)*4 + e*2, 2)}, v{WA+tt} offset:{off}")
            for rt in range(3):
                a(f"ds_read_b128 {vr(Xf + (rt*2+ks)*4, 4)}, v{XA + sp*2 + ks} offset:{rt*4096}")
        if TOUCH:
            a(f"s_lshl_b32 s{sA}, s{sP}, 1")
            a(f"s_add_u32 s{sA}, s{sA}, {sp}")
            a(f"s_and_b32 s{sA}, s{sA}, 3")
            a(f"s_cmp_eq_u32 s{sA}, s{sW}")
            a(f"s_cbranch_scc1 K1_T1_{sp}")
            a.label(f"K1_T1R_{sp}")
        for ks in range(2):
            a(f"s_waitcnt lgkmcnt({7 if ks == 0 else 0})")
            for rt in range(3):
                for tt in range(2):
                    acc = ACC + (tt*3+rt)*4
                    a(f"{MF16} {vr(acc,4)}, {vr(Wf+(tt*2+ks)*4,4)}, {vr(Xf+(rt*2+ks)*4,4)}, {vr(acc,4)}")
    a(f"v_xor_b32 v{WA}, 0x10000, v{WA}")
    a(f"v_xor_b32 v{WA+1}, 0x10000, v{WA+1}")
    for v in range(4):
        a(f"v_xor_b32 v{XA+v}, 0x4000, v{XA+v}")
    a(f"s_add_u32 s{sP}, s{sP}, 1")
    a(f"s_cmp_lt_u32 s{sP}, 8")
    a("s_cbranch_scc1 K1_P1_LOOP")
    a("s_barrier")
    P.stamp(3)
    a("s_nop 7")
    for tt in range(2):
        for rt in range(3):
            acc = ACC + (tt*3+rt)*4
            for r in range(4):
                a(f"v_mul_f32 v{acc+r}, v{vCs}, v{acc+r}")
            a(f"v_cvt_pk_bf16_f32 v{acc}, v{acc}, v{acc+1}")
            a(f"v_cvt_pk_bf16_f32 v{acc+1}, v{acc+2}, v{acc+3}")
            a(f"ds_write_b64 v{QW+tt}, {vr(acc,2)} offset:{rt*4096}")
    a("s_waitcnt vmcnt(0) lgkmcnt(0)")
    a("s_branch K1_JOIN")
    if TOUCH:
        for sp in range(2):
            a.label(f"K1_T1_{sp}")
            a(f"s_cmp_lt_u32 s{sP}, {T2_START//2}")
            a(f"s_cbranch_scc1 K1_T1R_{sp}")
            a(f"s_sub_u32 s{sA}, s{sP}, {T2_START//2}")
            a(f"s_lshl_b32 s{sA}, s{sA}, 13")
            a(f"s_lshl_b32 s{sB}, s{sPair}, 16")
            a(f"s_add_u32 s{sA}, s{sA}, s{sB}")
            srd = SK if sp == 0 else SV
            a(f"buffer_load_dword v{vVoff}, v{vTch}, s[{srd}:{srd+3}], s{sA} offen{NTT}")
            a(f"s_branch K1_T1R_{sp}")

    a.label("K1_LOADER")
    a(f"s_sub_u32 s{sLam}, s{sW}, 8")
    a(f"v_lshrrev_b32 v{t0}, 5, v0")
    a(f"v_and_b32 v{t1}, 31, v0")
    a(f"s_and_b32 s{sE}, s{sLam}, 1")
    a(f"s_lshl_b32 s{sE}, s{sE}, 1")
    a(f"s_lshr_b32 s{sB}, s{sLam}, 1")
    a(f"s_lshl_b32 s{sB}, s{sB}, 2")
    a(f"s_or_b32 s{sE}, s{sE}, s{sB}")
    a(f"v_or_b32 v{t2}, s{sE}, v{t0}")
    a(f"v_lshlrev_b32 v{t2}, 1, v{t2}")
    a(f"v_xor_b32 v{t2}, v{t1}, v{t2}")
    a(f"v_lshlrev_b32 v{t2}, 4, v{t2}")
    a(f"v_lshl_add_u32 v{vWo}, v{t0}, 13, v{t2}")
    a(f"s_and_b32 s{sE}, s{sLam}, 1")
    a(f"s_or_b32 s{sE}, s{sE}, s{sB}")
    a(f"s_lshl_b32 s{sB}, s{sE}, 14")
    a(f"v_add_u32 v{vWo}, s{sB}, v{vWo}")
    a(f"s_lshl_b32 s{sWs}, s{sE}, 10")
    a(f"v_lshrrev_b32 v{t0}, 4, v0")
    a(f"v_and_b32 v{t1}, 15, v0")
    a(f"s_lshl_b32 s{sE}, s{sLam}, 2")
    a(f"v_or_b32 v{t2}, s{sE}, v{t0}")
    a(f"v_xor_b32 v{t3}, v{t1}, v{t2}")
    a(f"v_lshlrev_b32 v{t3}, 4, v{t3}")
    a(f"v_lshl_add_u32 v{vXo}, v{t2}, 11, v{t3}")
    def issueW(slot_expr_sgpr, goff_sgpr):
        for j in range(8):
            m1, m3, m4 = j & 1, (j >> 1) & 1, (j >> 2) & 1
            dm = 2*m1 + 8*m3 + 16*m4
            a(f"s_add_u32 m0, s{slot_expr_sgpr}, {dm*1024}")
            a(f"s_add_u32 s{sA}, s{goff_sgpr}, {dm*16384}")
            a(f"buffer_load_dwordx4 v{vWo}, s[{SWQ}:{SWQ+3}], s{sA} offen{NTD} lds")
    def issueX(slot_sgpr, goff_sgpr):
        for j in range(3):
            a(f"s_add_u32 m0, s{slot_sgpr}, {j*4096}")
            a(f"s_add_u32 s{sA}, s{goff_sgpr}, {j*16*2048}")
            a(f"buffer_load_dwordx4 v{vXo}, s[{SX}:{SX+3}], s{sA} offen{NTD} lds")
    def issueKV_loader(srd, voff, slot, step):
        a(f"s_lshl_b32 s{sB}, s{sLam}, 10")
        for e in range(8):
            lo = slot*32768 + (e >> 1)*8192 + (e & 1)*4096
            go = (e >> 1)*65536 + step*8192 + (e & 1)*4096
            a(f"s_add_u32 m0, s{sB}, {lo}")
            a(f"s_add_u32 s{sA}, s{sB}, {go}")
            a(f"buffer_load_dwordx4 v{voff}, s[{srd}:{srd+3}], s{sA} offen{NTD} lds")
    a(f"s_lshl_b32 s{sXs}, s{sLam}, 10")
    a(f"s_add_u32 s{sXs}, s{sXs}, {XBASE}")
    if ROT:
        a(f"s_lshl_b32 s{sXg}, s{sPair}, 1")
        a(f"s_add_u32 s{sXg}, s{sXg}, s{sBt}")
        a(f"s_and_b32 s{sXg}, s{sXg}, 7")
        a(f"s_lshl_b32 s{sWg}, s{sXg}, 20")
        a(f"s_lshl_b32 s{sXg}, s{sXg}, 8")
    else:
        a(f"s_mov_b32 s{sXg}, 0")
        a(f"s_mov_b32 s{sWg}, 0")
    srd1()
    P.stamp(9)
    def nextW():
        a(f"s_add_u32 s{sWs}, s{sWs}, 32768")
        a(f"s_and_b32 s{sWs}, s{sWs}, 0x1ffff")
        a(f"s_add_u32 s{sWg}, s{sWg}, 524288")
        a(f"s_and_b32 s{sWg}, s{sWg}, 0x7fffff")
    def nextX():
        a(f"s_xor_b32 s{sXs}, s{sXs}, 0x4000")
        a(f"s_add_u32 s{sXg}, s{sXg}, 256")
        a(f"s_and_b32 s{sXg}, s{sXg}, 0x7ff")
    issueX(sXs, sXg)
    issueW(sWs, sWg); nextW()
    issueW(sWs, sWg); nextW()
    P.stamp(10)
    srd2()
    setup2()
    a(f"s_mov_b32 s{sP}, 0")
    a("s_waitcnt vmcnt(8)")
    P.stamp(11)
    a("s_barrier")
    issueW(sWs, sWg); nextW()
    a("s_branch K1_LD_MID")
    a.label("K1_LD_LOOP")
    a("s_waitcnt vmcnt(16)")
    a("s_barrier")
    a.label("K1_LD_MID")
    nextX(); issueX(sXs, sXg)
    issueW(sWs, sWg); nextW()
    a("s_waitcnt vmcnt(19)")
    a("s_barrier")
    issueW(sWs, sWg); nextW()
    a(f"s_add_u32 s{sP}, s{sP}, 1")
    a(f"s_cmp_lt_u32 s{sP}, 6")
    a("s_cbranch_scc1 K1_LD_LOOP")
    a("s_waitcnt vmcnt(16)")
    a("s_barrier")
    nextX(); issueX(sXs, sXg)
    issueW(sWs, sWg)
    a("s_waitcnt vmcnt(19)")
    a("s_barrier")
    issueKV_loader(SK, vKoff, 0, 0)
    a("s_waitcnt vmcnt(16)")
    a("s_barrier")
    issueKV_loader(SV, vVoff, 1, 0)
    a("s_waitcnt vmcnt(16)")
    a("s_barrier")
    issueKV_loader(SK, vKoff, 2, 1)
    a("s_barrier")
    issueKV_loader(SV, vVoff, 3, 1)
    a("s_waitcnt vmcnt(8)")

    a.label("K1_JOIN")
    if TOUCH:
        a(f"s_cmp_ge_u32 s{sW}, 4")
        a("s_cbranch_scc1 K1_NOTCH")
        a(f"v_lshlrev_b32 v{vKoff}, 7, v0")
        a.label("K1_NOTCH")
    a("s_barrier")
    for ks in range(8):
        a(f"v_xor_b32 v{vMx}, {ks << 5:#x}, v{vTb}")
        a(f"ds_read_b128 {vr(Q+4*ks,4)}, v{vMx}")
    for ks in range(8):
        kread(ks)
    a(f"s_mov_b32 s{sDk}, 65536")
    ntouch2 = T2_START if TOUCH else 0
    a(f"s_cmp_lt_u32 s{sW}, {TPS}")
    a(f"s_cselect_b32 s{sTl}, {(ntouch2 + TPS - 1)//TPS}, 0")
    a("s_waitcnt lgkmcnt(0)")
    P.stamp(4)
    a(f"s_cmp_ge_u32 s{sW}, 4")
    a("s_cbranch_scc1 K1_B_BAR")
    a("s_branch K1_A_BAR")

    def rot(sreg):
        a(f"s_add_u32 s{sreg}, s{sreg}, 65536")
        a(f"s_cmp_ge_u32 s{sreg}, 163840")
        a(f"s_cselect_b32 s{sA}, 163840, 0")
        a(f"s_sub_u32 s{sreg}, s{sreg}, s{sA}")

    LIGHT = opt.get("light", 0)
    def ls(k):
        if LIGHT: a(f"s_memtime s[{84+2*k}:{85+2*k}]")
    def step_body(v):
        isB = (v == "B")
        dodma = isB and not (AB & 1)
        def dma(kind, j):
            if not dodma: return
            if kind == 'V':
                a(f"s_add_u32 m0, s{sVn}, s{sL[j]}")
                a(f"s_add_u32 s{sA}, s{sGstep}, s{sG[j]}")
                a(f"buffer_load_dwordx4 v{vVoff}, s[{SV}:{SV+3}], s{sA} offen{NTD} lds")
            else:
                a(f"s_add_u32 m0, s{sKn}, s{sL[j]}")
                a(f"s_add_u32 s{sA}, s{sGstep}, s{sG[j]}")
                a(f"buffer_load_dwordx4 v{vKoff}, s[{SK}:{SK+3}], s{sA} offen{NTD} lds")
        def vreads(kk):
            if AB & 2:
                for _ in range(8): a("s_nop 0")
                return
            for dt in range(4):
                for e in range(2):
                    a(f"ds_read_b64_tr_b16 {vr(F+(kk*4+dt)*4+2*e,2)}, v{VA} offset:{kk*4096+e*2048+dt*256}")
        a.label(f"K1_{v}_TOP")
        a(f"s_waitcnt {'vmcnt(4) ' if isB else ''}lgkmcnt(0)")
        a.label(f"K1_{v}_BAR")
        if PRIO: a(f"s_setprio {PQ}")
        if v == "B" or True: ls(0)
        a("s_barrier")
        ls(1)
        def vread1(n):
            if AB & 2: return
            kk, dt = n >> 2, n & 3
            for e in range(2):
                a(f"ds_read_b64_tr_b16 {vr(F+n*4+2*e,2)}, v{VA} offset:{kk*4096+e*2048+dt*256}")
        for ks in range(8):
            cin = vr(NM,16) if ks == 0 else vr(S,16)
            a(f"{MF32} {vr(S,16)}, {vr(F+4*ks,4)}, {vr(Q+4*ks,4)}, {cin}")
            if ks < 7: vread1(ks)
            if ks == 0:
                a(f"v_add_u32 v{KA0}, s{sDk}, v{KA0}")
                a(f"v_add_u32 v{KA1}, s{sDk}, v{KA1}")
                a(f"s_mov_b32 s{sDk}, s{sKc}")
            if ks == 2:
                rot(sKc)
            if ks == 4:
                a(f"s_sub_u32 s{sDk}, s{sKc}, s{sDk}")
                a(f"s_mov_b32 s{sDv}, s{sVc}")
                a(f"s_add_u32 s{sVc}, s{sVc}, 65536")
                a(f"s_cmp_ge_u32 s{sVc}, 163840")
            if ks == 4:
                a(f"s_cselect_b32 s{sA}, 163840, 0")
                a(f"s_sub_u32 s{sVc}, s{sVc}, s{sA}")
            if ks in (1, 3, 5, 6):
                dma('K', {1: 0, 3: 1, 5: 2, 6: 3}[ks])
        ls(2)
        if PRIO and PS != PQ: a(f"s_setprio {PS}")
        vread1(7)
        a(f"s_sub_u32 s{sDv}, s{sVc}, s{sDv}")
        a(f"v_add_u32 v{VA}, s{sDv}, v{VA}")
        a("s_nop 7")
        a("s_nop 0")
        a(f"v_max3_f32 v{vMx}, v{S+0}, v{S+1}, v{S+2}")
        a(f"v_max3_f32 v{vTb}, v{S+3}, v{S+4}, v{S+5}")
        a(f"v_max3_f32 v{vMx}, v{vMx}, v{S+6}, v{S+7}")
        a(f"v_max3_f32 v{vTb}, v{vTb}, v{S+8}, v{S+9}")
        a(f"v_max3_f32 v{vMx}, v{vMx}, v{S+10}, v{S+11}")
        a(f"v_max3_f32 v{vTb}, v{vTb}, v{S+12}, v{S+13}")
        a(f"v_max3_f32 v{vMx}, v{vMx}, v{S+14}, v{S+15}")
        a(f"v_max_f32 v{vMx}, v{vMx}, v{vTb}")
        a(f"v_cmp_lt_f32 vcc, s{sThr}, v{vMx}")
        a(f"s_cbranch_vccnz K1_{v}_RARE")
        a.label(f"K1_{v}_CONT")
        ls(3)
        for k in range(8):
            if not AB & 8:
                a(f"v_exp_f32 v{S+2*k}, v{S+2*k}")
                a(f"v_exp_f32 v{S+2*k+1}, v{S+2*k+1}")
            if k >= 1 and not AB & 8:
                kk = k - 1
                a(f"v_add_f32 v{vL}, v{vL}, v{S+2*kk}")
                a(f"v_add_f32 v{vL}, v{vL}, v{S+2*kk+1}")
                a(f"v_cvt_pk_bf16_f32 v{S+kk}, v{S+2*kk}, v{S+2*kk+1}")
        a(f"v_add_f32 v{vL}, v{vL}, v{S+14}")
        a(f"v_add_f32 v{vL}, v{vL}, v{S+15}")
        a(f"v_cvt_pk_bf16_f32 v{S+7}, v{S+14}, v{S+15}")
        ls(4)
        if PRIO and PP != PS: a(f"s_setprio {PP}")
        if not LIGHT: a("s_waitcnt lgkmcnt(0)")
        else: a("s_waitcnt lgkmcnt(1)")
        for kk in range(2):
            for dt in range(4):
                n = kk*4 + dt
                a(f"{MF32} {vr(O+16*dt,16)}, {vr(F+(kk*4+dt)*4,4)}, {vr(S+4*kk,4)}, {vr(O+16*dt,16)}")
                if not AB & 4: kread(n)
                if n in (0, 1, 2, 3):
                    dma('V', n)
                if n == 2 and not isB and TOUCH:
                    a(f"s_cmp_lt_u32 s{sStep}, s{sTl}")
                    a("s_cbranch_scc1 K1_A_TOUCH")
                    a.label("K1_A_TOUCHR")
                if n == 4:
                    a(f"s_add_u32 s{sStep}, s{sStep}, 1")
                if n == 2 and isB:
                    pass
                if n == 4 and isB:
                    rot(sVn)
                if n == 5 and isB:
                    rot(sKn)
                if n == 6 and isB:
                    a(f"s_add_u32 s{sGstep}, s{sGstep}, 8192")
                    if NS2 != 8: a(f"s_and_b32 s{sGstep}, s{sGstep}, 0xffff")
        ls(5)
        if LIGHT:
            a(f"s_cmp_lg_u32 s{sStep}, 41")
            a(f"s_cbranch_scc1 K1_{v}_NOCOPY")
            a("s_waitcnt lgkmcnt(0)")
            for k in range(6):
                a(f"s_mov_b32 s{96+k}, s{84+2*k}")
            a.label(f"K1_{v}_NOCOPY")
        if isB:
            a(f"s_cmp_lt_u32 s{sStep}, {NS2-2}")
            a("s_cbranch_scc1 K1_B_TOP")
            a("s_waitcnt vmcnt(0)")
            a("s_branch K1_A_TOP")
        else:
            a(f"s_cmp_lt_u32 s{sStep}, {NS2}")
            a("s_cbranch_scc1 K1_A_TOP")
            a("s_branch K1_P2_END")
        a.label(f"K1_{v}_RARE")
        a(f"v_mov_b32 v{vTb}, v{vMx}")
        a("s_nop 1")
        a(f"v_permlane32_swap_b32 v{vMx}, v{vTb}")
        a(f"v_max_f32 v{vMx}, v{vMx}, v{vTb}")
        a(f"v_max_f32 v{vMx}, s{sFloor}, v{vMx}")
        a(f"v_max_f32 v{vTb}, 0, v{vMx}")
        a(f"v_sub_f32 v{vTb}, 0, v{vTb}")
        a(f"v_exp_f32 v{vTb}, v{vTb}")
        a(f"s_mov_b32 s{sThr}, {f2u(8.0):#x}")
        a(f"s_mov_b32 s{sFloor}, 0")
        for r in range(16):
            a(f"v_sub_f32 v{S+r}, v{S+r}, v{vMx}")
        a(f"v_sub_f32 v{NM}, v{NM}, v{vMx}")
        for r in range(1, 16):
            a(f"v_mov_b32 v{NM+r}, v{NM}")
        a(f"v_mul_f32 v{vL}, v{vL}, v{vTb}")
        for r in range(64):
            a(f"v_mul_f32 v{O+r}, v{O+r}, v{vTb}")
        a(f"s_branch K1_{v}_CONT")

    step_body("B")
    step_body("A")
    if TOUCH:
        a.label("K1_A_TOUCH")
        nkv1 = 16 - T2_START
        a(f"s_mul_i32 s{sA}, s{sStep}, {TPS}")
        a(f"s_add_u32 s{sA}, s{sA}, s{sW}")
        a(f"s_add_u32 s{sB}, s{sA}, {nkv1}")
        a(f"s_cmp_ge_u32 s{sB}, 16")
        a("s_cbranch_scc1 K1_A_TOUCHR")
        a(f"s_bitcmp1_b32 s{sB}, 0")
        a(f"s_cselect_b64 s[{STCH}:{STCH+1}], s[{SV}:{SV+1}], s[{SK}:{SK+1}]")
        a(f"s_lshr_b32 s{sB}, s{sB}, 1")
        a(f"s_lshl_b32 s{sB}, s{sB}, 13")
        a(f"s_lshl_b32 s{sA}, s{sPair}, 16")
        a(f"s_add_u32 s{sB}, s{sB}, s{sA}")
        a(f"buffer_load_dword v{vVoff}, v{vKoff}, s[{STCH}:{STCH+3}], s{sB} offen{NTT}")
        a("s_branch K1_A_TOUCHR")

    a.label("K1_P2_END")
    P.stamp(5)
    t0, t1, t2, t3, t4 = F+16, F+17, F+18, F+19, F+20
    vLane = F+21
    a("s_waitcnt lgkmcnt(0)")
    a(f"v_mbcnt_lo_u32_b32 v{vLane}, -1, 0")
    a(f"v_mbcnt_hi_u32_b32 v{vLane}, -1, v{vLane}")
    if WOT:
        a(f"s_cmp_ge_u32 s{sW}, 8")
        a("s_cbranch_scc1 K1_NOWOT")
        a(f"s_cmp_eq_u32 s{sBr}, 0")
        a(f"s_cselect_b64 s[{STCH}:{STCH+1}], s[{SWOP}:{SWOP+1}], s[50:51]")
        a(f"s_mov_b32 s{STCH+2}, 8388608")
        a(f"v_lshrrev_b32 v{t0}, 2, v{vLane}")
        a(f"v_lshlrev_b32 v{t0}, 11, v{t0}")
        a(f"v_and_b32 v{t1}, 3, v{vLane}")
        a(f"v_lshl_add_u32 v{t0}, v{t1}, 7, v{t0}")
        a(f"s_lshr_b32 s{sA}, s2, 3")
        a(f"s_lshl_b32 s{sA}, s{sA}, 3")
        a(f"s_add_u32 s{sA}, s{sA}, s{sW}")
        a(f"s_lshl_b32 s{sA}, s{sA}, 15")
        a(f"s_lshl_b32 s{sB}, s{sKvh}, 9")
        a(f"s_add_u32 s{sA}, s{sA}, s{sB}")
        a(f"buffer_load_dword v{NM+8}, v{t0}, s[{STCH}:{STCH+3}], s{sA} offen{NTW}")
        a.label("K1_NOWOT")
    a(f"v_mov_b32 v{t1}, v{vL}")
    a(f"v_sub_f32 v{S}, 0, v{NM}")
    a("s_nop 0")
    a(f"v_permlane32_swap_b32 v{vL}, v{t1}")
    a(f"v_add_f32 v{S+1}, v{vL}, v{t1}")
    a(f"v_and_b32 v{t0}, 31, v{vLane}")
    a(f"v_lshlrev_b32 v{t0}, 3, v{t0}")
    a(f"s_lshl_b32 s{sA}, s{sQt}, 10")
    a(f"v_add_u32 v{t0}, s{sA}, v{t0}")
    a(f"s_lshl_b32 s{sB}, s{sKq}, 8")
    a(f"v_add_u32 v{t1}, s{sB}, v{t0}")
    EX = 4096
    R = Q
    a(f"v_lshlrev_b32 v{t2}, 4, v{vLane}")
    a(f"s_mul_i32 s{sB}, s{sQt}, {4*3*4096}")
    a(f"s_add_u32 s{sB}, s{sB}, {EX}")
    a("s_barrier")
    a(f"ds_write_b64 v{t1}, {vr(S,2)}")
    for dt in range(4):
        a(f"s_cmp_eq_u32 s{sKq}, {dt}")
        a(f"s_cbranch_scc1 K1_OWN{dt}")
        a(f"s_sub_u32 s{sA}, s{sKq}, {dt+1}")
        a(f"s_and_b32 s{sA}, s{sA}, 3")
        a(f"s_lshl_b32 s{sA}, s{sA}, 12")
        a(f"s_add_u32 s{sA}, s{sA}, s{sB}")
        a(f"v_add_u32 v{t1}, s{sA}, v{t2}")
        for g in range(4):
            a(f"ds_write_b128 v{t1}, {vr(O+16*dt+4*g,4)} offset:{dt*3*4096 + g*1024}")
        a(f"s_branch K1_NXT{dt}")
        a.label(f"K1_OWN{dt}")
        for r in range(16):
            a(f"v_mov_b32 v{R+r}, v{O+16*dt+r}")
        a.label(f"K1_NXT{dt}")
    a("s_waitcnt lgkmcnt(0)")
    a("s_barrier")
    ST = S
    for rk in range(3):
        a(f"s_add_u32 s{sA}, s{sKq}, {rk+1}")
        a(f"s_and_b32 s{sA}, s{sA}, 3")
        a(f"s_lshl_b32 s{sA}, s{sA}, 8")
        a(f"v_add_u32 v{t1}, s{sA}, v{t0}")
        a(f"ds_read_b64 {vr(ST+2+2*rk,2)}, v{t1}")
    a(f"s_mul_i32 s{sA}, s{sKq}, {3*4096}")
    a(f"s_add_u32 s{sA}, s{sA}, s{sB}")
    a(f"v_add_u32 v{t1}, s{sA}, v{t2}")
    TT = O
    for rk in range(3):
        for g in range(4):
            a(f"ds_read_b128 {vr(TT+16*rk+4*g,4)}, v{t1} offset:{rk*4096+g*1024}")
    a("s_waitcnt lgkmcnt(12)")
    mf = t3
    a(f"v_max3_f32 v{mf}, v{ST}, v{ST+2}, v{ST+4}")
    a(f"v_max_f32 v{mf}, v{mf}, v{ST+6}")
    for j in range(4):
        a(f"v_sub_f32 v{ST+2*j}, v{ST+2*j}, v{mf}")
    for j in range(4):
        a(f"v_exp_f32 v{ST+2*j}, v{ST+2*j}")
    a("s_nop 0")
    a(f"v_mul_f32 v{t4}, v{ST}, v{ST+1}")
    for j in range(1, 4):
        a(f"v_fma_f32 v{t4}, v{ST+2*j}, v{ST+2*j+1}, v{t4}")
    a(f"v_rcp_f32 v{t4}, v{t4}")
    a("s_nop 0")
    for j in range(4):
        a(f"v_mul_f32 v{ST+2*j}, v{ST+2*j}, v{t4}")
    for r in range(16):
        a(f"v_mul_f32 v{R+r}, v{R+r}, v{ST}")
    for rk in range(3):
        a(f"s_waitcnt lgkmcnt({8-4*rk})")
        for r in range(16):
            a(f"v_fma_f32 v{R+r}, v{TT+16*rk+r}, v{ST+2+2*rk}, v{R+r}")
    PK = F
    for g in range(4):
        a(f"v_cvt_pk_bf16_f32 v{PK+2*g}, v{R+4*g}, v{R+4*g+1}")
        a(f"v_cvt_pk_bf16_f32 v{PK+2*g+1}, v{R+4*g+2}, v{R+4*g+3}")
    a(f"v_and_b32 v{t0}, 31, v{vLane}")
    a(f"s_lshl_b32 s{sA}, s{sQt}, 5")
    a(f"v_add_u32 v{t0}, s{sA}, v{t0}")
    a(f"v_cmp_le_u32 vcc, 48, v{t0}")
    a(f"v_subrev_u32 v{t1}, 48, v{t0}")
    a(f"v_lshlrev_b32 v{t2}, 13, v{t0}")
    a(f"v_lshlrev_b32 v{t3}, 13, v{t1}")
    a(f"v_add_u32 v{t3}, 256, v{t3}")
    a(f"v_cndmask_b32 v{t2}, v{t2}, v{t3}, vcc")
    a(f"v_lshrrev_b32 v{t1}, 5, v{vLane}")
    a(f"v_lshl_add_u32 v{t2}, v{t1}, 4, v{t2}")
    a(f"s_lshl_b32 s{sA}, s{sKq}, 6")
    a(f"v_add_u32 v{t2}, s{sA}, v{t2}")
    a(f"v_permlane32_swap_b32 v{PK+0}, v{PK+2}")
    a(f"v_permlane32_swap_b32 v{PK+1}, v{PK+3}")
    a(f"v_permlane32_swap_b32 v{PK+4}, v{PK+6}")
    a(f"v_permlane32_swap_b32 v{PK+5}, v{PK+7}")
    a(f"buffer_store_dwordx4 {vr(PK,4)}, v{t2}, s[{SO}:{SO+3}], 0 offen")
    a(f"buffer_store_dwordx4 {vr(PK+4,4)}, v{t2}, s[{SO}:{SO+3}], 0 offen offset:32")
    P.stamp(6)
    if PROF: a("s_waitcnt vmcnt(0)")
    P.stamp(7)
    P.stamp(8, real=True)
    if LIGHT:
        for k in range(6):
            a(f"s_mov_b32 s{84+2+k}, s{96+k}")
    P.dump(52, sW, 64 << 20, 12)
    a.label("K1_END")
    a("s_endpgm")
    return NV

def kernel2(a, opt):
    sW = 4
    NTW2 = " nt" if opt.get("ntw2", 0) else ""
    NTO2 = " nt" if opt.get("nto2", 0) else ""
    SX, SWO, SO = 8, 12, 16
    sA, sB, sD, sLam, sP = 20, 21, 22, 23, 24
    sSl, sWg, sXg = 25, 26, 27
    NS = 5
    STG = 28672
    t0, t1, t2, t3, t4 = 1, 2, 3, 4, 5
    WA = 6
    XA = 10
    vWo, vXo = 6, 7
    ACC = 12
    FR = 60
    NV = 116
    a.label("k2_kernel")
    a("s_cmp_ge_u32 s2, 256")
    a("s_cbranch_scc1 K2_END")
    P = Prof(a, 48, 46, 40)
    P.init(12)
    P.stamp(0, real=True)
    P.stamp(1)
    a("s_load_dwordx2 s[32:33], s[0:1], 32")
    a("s_load_dwordx2 s[34:35], s[0:1], 72")
    a("s_load_dwordx2 s[36:37], s[0:1], 80")
    a("s_load_dwordx2 s[38:39], s[0:1], 96")
    a("v_lshrrev_b32 v1, 6, v0")
    a("v_and_b32 v0, 63, v0")
    a(f"v_readfirstlane_b32 s{sW}, v1")
    a("s_and_b32 s5, s2, 3")
    a("s_bfe_u32 s6, s2, 0x10002")
    a("s_lshr_b32 s7, s2, 5")
    a("s_bfe_u32 s3, s2, 0x20003")
    a("s_waitcnt lgkmcnt(0)")
    a("s_cmp_eq_u32 s6, 0")
    a(f"s_cselect_b64 s[{SWO}:{SWO+1}], s[32:33], s[34:35]")
    a(f"s_lshl_b32 s{sA}, s5, 9")
    a(f"s_lshl_b32 s{sB}, s3, 7")
    a(f"s_add_u32 s{sA}, s{sA}, s{sB}")
    a(f"s_add_u32 s{SWO}, s{SWO}, s{sA}")
    a(f"s_addc_u32 s{SWO+1}, s{SWO+1}, 0")
    a(f"s_sub_u32 s{SWO+2}, 8388608, s{sA}")
    a(f"s_mov_b32 s{SWO+3}, 0x20000")
    a(f"s_lshl_b32 s{sB}, s6, 3")
    a(f"s_add_u32 s{sB}, s{sB}, s7")
    a(f"s_mul_i32 s{sD}, s{sB}, {48*8192}")
    a(f"s_add_u32 s{SX}, s38, s{sD}")
    a(f"s_addc_u32 s{SX+1}, s39, 0")
    a(f"s_mov_b32 s{SX+2}, {48*8192}")
    a(f"s_mov_b32 s{SX+3}, 0x20000")
    a(f"s_mul_i32 s{sD}, s7, {48*4096}")
    a(f"s_lshl_b32 s{sB}, s6, 11")
    a(f"s_add_u32 s{sB}, s{sB}, s{sA}")
    a(f"s_add_u32 s{sD}, s{sD}, s{sB}")
    a(f"s_add_u32 s{SO}, s36, s{sD}")
    a(f"s_addc_u32 s{SO+1}, s37, 0")
    a(f"s_sub_u32 s{SO+2}, {48*4096}, s{sB}")
    a(f"s_mov_b32 s{SO+3}, 0x20000")
    a(f"s_cmp_ge_u32 s{sW}, 4")
    a("s_cbranch_scc1 K2_LOADER")
    a(f"v_bfe_u32 v{t0}, v0, 2, 2")
    a(f"v_lshrrev_b32 v{t1}, 4, v0")
    a(f"v_lshl_add_u32 v{t2}, v{t1}, 3, v{t0}")
    a(f"s_lshl_b32 s{sA}, s{sW}, 5")
    a(f"v_add_u32 v{t2}, s{sA}, v{t2}")
    a(f"v_lshlrev_b32 v{t2}, 7, v{t2}")
    a(f"v_bfe_u32 v{t3}, v0, 3, 1")
    a(f"v_bfe_u32 v{t4}, v0, 4, 1")
    a(f"v_lshl_or_b32 v{t3}, v{t4}, 1, v{t3}")
    a(f"v_lshl_add_u32 v{t2}, v{t3}, 5, v{t2}")
    a(f"v_and_b32 v{t3}, 3, v0")
    a(f"v_lshl_add_u32 v{WA}, v{t3}, 3, v{t2}")
    for t in range(1, 4):
        a(f"v_xor_b32 v{WA+t}, {t << 5}, v{WA}")
    a(f"v_and_b32 v{t0}, 15, v0")
    a(f"s_lshl_b32 s{sA}, s{sW}, 2")
    a(f"v_add_u32 v{t2}, s{sA}, v{t1}")
    a(f"v_xor_b32 v{t2}, v{t2}, v{t0}")
    a(f"v_lshlrev_b32 v{t2}, 4, v{t2}")
    a(f"v_lshl_add_u32 v{t2}, v{t0}, 8, v{t2}")
    a(f"v_add_u32 v{XA}, 16384, v{t2}")
    for r in range(48):
        a(f"v_mov_b32 v{ACC+r}, 0")
    def reads(buf):
        fb = FR + buf*28
        for t in range(4):
            for e in range(2):
                a(f"ds_read_b64_tr_b16 {vr(fb+4*t+2*e,2)}, v{WA+t} offset:{e*512}")
        for rt in range(3):
            a(f"ds_read_b128 {vr(fb+16+4*rt,4)}, v{XA} offset:{rt*4096}")
    def adv():
        a(f"s_add_u32 s{sA}, s{sSl}, {STG}")
        a(f"s_cmp_ge_u32 s{sA}, {NS*STG}")
        a(f"s_cselect_b32 s{sB}, {NS*STG}, 0")
        a(f"s_sub_u32 s{sA}, s{sA}, s{sB}")
        a(f"s_sub_u32 s{sD}, s{sA}, s{sSl}")
        a(f"s_mov_b32 s{sSl}, s{sA}")
        for t in range(4):
            a(f"v_add_u32 v{WA+t}, s{sD}, v{WA+t}")
        a(f"v_add_u32 v{XA}, s{sD}, v{XA}")
    def mfmas(buf):
        fb = FR + buf*28
        for rt in range(3):
            for t in range(4):
                acc = ACC + (t*3+rt)*4
                a(f"{MF16} {vr(acc,4)}, {vr(fb+4*t,4)}, {vr(fb+16+4*rt,4)}, {vr(acc,4)}")
    a(f"s_mov_b32 s{sSl}, 0")
    a("s_barrier")
    P.stamp(2)
    reads(0); adv()
    a("s_waitcnt lgkmcnt(0)")
    a(f"s_mov_b32 s{sP}, 0")
    a.label("K2_C_LOOP")
    for half in range(2):
        a("s_barrier")
        reads(1-half); adv()
        mfmas(half)
        a("s_waitcnt lgkmcnt(0)")
        if half == 0:
            a(f"s_cmp_eq_u32 s{sP}, 15")
            a("s_cbranch_scc1 K2_C_DONE")
    a(f"s_add_u32 s{sP}, s{sP}, 1")
    a("s_branch K2_C_LOOP")
    a.label("K2_C_DONE")
    mfmas(1)
    P.stamp(3)
    a("s_barrier")
    a("s_nop 7")
    a(f"v_lshlrev_b32 v{t0}, 4, v0")
    a(f"s_mul_i32 s{sA}, s{sW}, 12288")
    a(f"v_add_u32 v{t1}, s{sA}, v{t0}")
    for tile in range(12):
        a(f"ds_write_b128 v{t1}, {vr(ACC+4*tile,4)} offset:{tile*1024}")
    a("s_waitcnt lgkmcnt(0)")
    a("s_barrier")
    a(f"s_mul_i32 s{sA}, s{sW}, 3072")
    a(f"v_add_u32 v{t1}, s{sA}, v{t0}")
    for src in range(4):
        for rt in range(3):
            a(f"ds_read_b128 {vr(ACC+(src*3+rt)*4,4)}, v{t1} offset:{src*12288+rt*1024}")
    a("s_waitcnt lgkmcnt(0)")
    for rt in range(3):
        for r in range(4):
            d = ACC + rt*4 + r
            a(f"v_add_f32 v{d}, v{d}, v{d+12}")
            a(f"v_add_f32 v{d+24}, v{d+24}, v{d+36}")
        for r in range(4):
            d = ACC + rt*4 + r
            a(f"v_add_f32 v{d}, v{d}, v{d+24}")
        d = ACC + rt*4
        a(f"v_cvt_pk_bf16_f32 v{d}, v{d}, v{d+1}")
        a(f"v_cvt_pk_bf16_f32 v{d+1}, v{d+2}, v{d+3}")
    a(f"v_and_b32 v{t0}, 15, v0")
    a(f"v_lshrrev_b32 v{t1}, 4, v0")
    a(f"v_lshlrev_b32 v{t0}, 12, v{t0}")
    a(f"v_lshl_add_u32 v{t0}, v{t1}, 3, v{t0}")
    a(f"s_lshl_b32 s{sA}, s{sW}, 5")
    a(f"v_add_u32 v{t0}, s{sA}, v{t0}")
    for rt in range(3):
        a(f"s_mov_b32 s{sA}, {rt*16*4096}")
        a(f"buffer_store_dwordx2 {vr(ACC+rt*4,2)}, v{t0}, s[{SO}:{SO+3}], s{sA} offen")
    P.stamp(4)
    if PROF: a("s_waitcnt vmcnt(0)")
    P.stamp(5)
    P.stamp(6, real=True)
    P.dump(38, sW, 65 << 20, 12)
    a("s_endpgm")

    a.label("K2_LOADER")
    a(f"s_sub_u32 s{sLam}, s{sW}, 4")
    a(f"v_lshrrev_b32 v{t0}, 3, v0")
    a(f"v_and_b32 v{t1}, 7, v0")
    a(f"v_bfe_u32 v{t2}, v0, 4, 1")
    a(f"s_and_b32 s{sA}, s{sLam}, 1")
    a(f"s_lshl_b32 s{sA}, s{sA}, 1")
    a(f"v_or_b32 v{t2}, s{sA}, v{t2}")
    a(f"v_lshlrev_b32 v{t2}, 1, v{t2}")
    a(f"v_xor_b32 v{t1}, v{t1}, v{t2}")
    a(f"v_lshlrev_b32 v{t1}, 4, v{t1}")
    a(f"s_lshl_b32 s{sA}, s{sLam}, 3")
    a(f"v_add_u32 v{t0}, s{sA}, v{t0}")
    a(f"v_lshl_add_u32 v{vWo}, v{t0}, 11, v{t1}")
    a(f"v_lshrrev_b32 v{t0}, 4, v0")
    a(f"v_and_b32 v{t1}, 15, v0")
    a(f"s_lshl_b32 s{sA}, s{sLam}, 2")
    a(f"v_or_b32 v{t2}, s{sA}, v{t0}")
    a(f"v_xor_b32 v{t1}, v{t1}, v{t2}")
    a(f"v_lshlrev_b32 v{t1}, 4, v{t1}")
    a(f"v_lshl_add_u32 v{vXo}, v{t2}, 13, v{t1}")
    def issue():
        for j in range(4):
            a(f"s_add_u32 m0, s{sSl}, {j*4096}")
            a(f"s_add_u32 s{sA}, s{sWg}, {j*32*2048}")
            a(f"buffer_load_dwordx4 v{vWo}, s[{SWO}:{SWO+3}], s{sA} offen{NTW2} lds")
        for j in range(3):
            a(f"s_add_u32 m0, s{sSl}, {16384 + j*4096}")
            a(f"s_add_u32 s{sA}, s{sXg}, {j*16*8192}")
            a(f"buffer_load_dwordx4 v{vXo}, s[{SX}:{SX+3}], s{sA} offen{NTO2} lds")
        a(f"s_add_u32 s{sSl}, s{sSl}, {STG}")
        a(f"s_cmp_ge_u32 s{sSl}, s{sD}")
        a(f"s_cselect_b32 s{sB}, {NS*STG}, 0")
        a(f"s_sub_u32 s{sSl}, s{sSl}, s{sB}")
        a(f"s_add_u32 s{sWg}, s{sWg}, {128*2048}")
        a(f"s_and_b32 s{sWg}, s{sWg}, 0x7fffff")
        a(f"s_add_u32 s{sXg}, s{sXg}, 256")
        a(f"s_and_b32 s{sXg}, s{sXg}, 0x1fff")
    a(f"s_lshl_b32 s{sSl}, s{sLam}, 10")
    a(f"s_add_u32 s{sD}, s{sSl}, {NS*STG}")
    R2 = opt.get("rot2", 0)
    if R2:
        mb, mn = {1: (4, 8), 2: (2, 0), 3: (1, 0), 4: (3, 0), 5: (2, 8), 6: (4, 0)}[R2]
        a(f"s_mul_i32 s{sXg}, s7, {mb}")
        a(f"s_mul_i32 s{sWg}, s3, {mn}")
        a(f"s_add_u32 s{sXg}, s{sXg}, s{sWg}")
        a(f"s_and_b32 s{sXg}, s{sXg}, 31")
        a(f"s_lshl_b32 s{sWg}, s{sXg}, 18")
        a(f"s_lshl_b32 s{sXg}, s{sXg}, 8")
    else:
        a(f"s_mov_b32 s{sWg}, 0")
        a(f"s_mov_b32 s{sXg}, 0")
    for st in range(5):
        issue()
    a("s_waitcnt vmcnt(28)")
    a("s_barrier")
    a(f"s_mov_b32 s{sP}, 0")
    a.label("K2_L_LOOP")
    a("s_waitcnt vmcnt(21)")
    a("s_barrier")
    issue()
    a(f"s_add_u32 s{sP}, s{sP}, 1")
    a(f"s_cmp_lt_u32 s{sP}, 27")
    a("s_cbranch_scc1 K2_L_LOOP")
    for s in range(27, 31):
        a(f"s_waitcnt vmcnt({7*(31-(s+1))})")
        a("s_barrier")
    a("s_barrier")
    a("s_barrier")
    a.label("K2_END")
    a("s_endpgm")
    return NV

HEADER = open("cdna_kernels/" + NAME + ".s.ref").read().split("; Override launch")[0]

def kd(name, nv, ns):
    acc = (nv + 3)//4*4
    return f"""
.amdhsa_kernel {name}
  .amdhsa_next_free_vgpr {nv}
  .amdhsa_next_free_sgpr {ns}
  .amdhsa_accum_offset {acc}
  .amdhsa_group_segment_fixed_size 0
  .amdhsa_kernarg_size 104
  .amdhsa_user_sgpr_count 2
  .amdhsa_user_sgpr_kernarg_segment_ptr 1
  .amdhsa_system_sgpr_workgroup_id_x 1
.end_amdhsa_kernel
"""

def main(out, opt):
    a1 = Asm(); nv1 = kernel1(a1, opt)
    a2 = Asm(); nv2 = kernel2(a2, opt)
    s = HEADER
    s += "; @launch kernel=k1_kernel grid=(256,1,1) block=(768,1,1) lds=163840\n"
    s += "; @launch kernel=k2_kernel grid=(256,1,1) block=(512,1,1) lds=143360\n"
    s += '.amdgcn_target "amdgcn-amd-amdhsa--gfx950"\n.text\n'
    for nm, body in (("k1_kernel", a1), ("k2_kernel", a2)):
        s += f".globl {nm}\n.p2align 8\n.type {nm},@function\n" + body.text()
    s += '.section .rodata,"a"\n'
    s += ".p2align 6" + kd("k1_kernel", nv1, 102) + ".p2align 6" + kd("k2_kernel", nv2, 64)
    open(out, "w").write(s)

if __name__ == "__main__":
    if "--prof" in sys.argv:
        PROF = True
        sys.argv.remove("--prof")
    if "--fine" in sys.argv:
        PROF = True
        FINE = True
        sys.argv.remove("--fine")
    opt = {}
    for x in list(sys.argv):
        if x.startswith("--o:"):
            k, v = x[4:].split("=")
            opt[k] = int(v)
            sys.argv.remove(x)
    main(sys.argv[1] if len(sys.argv) > 1 else "cdna_kernels/" + NAME + ".s", opt)
```

```python
import sys, struct, math

NAME = "concat_heads__gqa_block_cached__gqa_block_cached__near_ridge"

def f2u(x):
    return struct.unpack("<I", struct.pack("<f", x))[0]

class Asm:
    def __init__(self):
        self.L = []
    def __call__(self, s):
        for line in s.split("\n"):
            self.L.append("    " + line.strip() if not line.strip().endswith(":") else line.strip())
    def label(self, s):
        self.L.append(s + ":")
    def c(self, s):
        self.L.append("    ; " + s)
    def text(self):
        return "\n".join(self.L) + "\n"

def vr(base, n=1):
    return f"v{base}" if n == 1 else f"v[{base}:{base+n-1}]"
def sr(base, n=1):
    return f"s{base}" if n == 1 else f"s[{base}:{base+n-1}]"

MF32 = "v_mfma_f32_32x32x16_bf16"
MF16 = "v_mfma_f32_16x16x32_bf16"

DEBUG_Q = False
PROF = False
FINE = False
class Prof:
    def __init__(self, a, base, tmp, srd):
        self.a, self.base, self.tmp, self.srd = a, base, tmp, srd
    def init(self, n):
        if not PROF: return
        for i in range(n):
            self.a(f"s_mov_b32 s{self.base+i}, 0")
    def fine(self, slot, cond_sgpr, val, uid):
        if not FINE: return
        a = self.a
        a(f"s_cmp_lg_u32 s{cond_sgpr}, {val}")
        a(f"s_cbranch_scc1 FINE_{uid}")
        a(f"s_memtime s[{self.tmp}:{self.tmp+1}]")
        a("s_waitcnt lgkmcnt(0)")
        a(f"s_mov_b32 s{self.base+slot}, s{self.tmp}")
        a.label(f"FINE_{uid}")
    def stamp(self, slot, real=False):
        if not PROF: return
        if FINE and slot in (2, 3, 4, 5, 6, 7) : return
        a = self.a
        a(f"{'s_memrealtime' if real else 's_memtime'} s[{self.tmp}:{self.tmp+1}]")
        a("s_waitcnt lgkmcnt(0)")
        a(f"s_mov_b32 s{self.base+slot}, s{self.tmp}")
    def dump(self, ws_lo, swave, region, nmax):
        if not PROF: return
        a = self.a
        b = self.srd
        a(f"s_add_u32 s{b}, s{ws_lo}, {region}")
        a(f"s_addc_u32 s{b+1}, s{ws_lo+1}, 0")
        a(f"s_mov_b32 s{b+2}, {256*16*64}")
        a(f"s_mov_b32 s{b+3}, 0x20000")
        a(f"s_lshl_b32 s{self.tmp}, s2, 4")
        a(f"s_add_u32 s{self.tmp}, s{self.tmp}, s{swave}")
        a(f"s_lshl_b32 s{self.tmp}, s{self.tmp}, 6")
        a("s_mov_b64 exec, 1")
        a(f"v_mov_b32 v1, s{self.tmp}")
        for i in range(nmax):
            a(f"v_mov_b32 v2, s{self.base+i}")
            a(f"buffer_store_dword v2, v1, s[{b}:{b+3}], 0 offen offset:{4*i}")
            a("s_nop 0")

def kernel1(a, opt):
    T2_START = opt.get("t2_start", 8)
    TOUCH = opt.get("touch", 0)
    PRIO = opt.get("prio", 1)
    PQ, PS, PP = opt.get("pq", 2), opt.get("ps", 1), opt.get("pp", 0)
    DMAQ = opt.get("dmaq", 1)
    NTD = " nt" if opt.get("ntd", 0) else ""
    NTQ = " nt" if opt.get("ntq", opt.get("ntd", 0)) else ""
    NTX = " nt" if opt.get("ntx", opt.get("ntd", 0)) else ""
    NTT = " nt" if opt.get("ntt", 1) else ""
    ROT = opt.get("rot", 1)
    TPS = opt.get("tps", 2)
    NS2 = opt.get("p2steps", 8)
    AB = opt.get("ablate", 0)
    CSCALE = 128 ** -0.5 * math.log2(math.e)
    WOT = opt.get("wot", 1)
    NTW = " nt" if opt.get("ntw", 0) else ""
    SWOP = 36
    sW = 4
    sKvh, sBr, sBt, sPair = 5, 6, 7, 3
    SX, SWQ, SK, SV, SO = 8, 12, 16, 20, 24
    STCH = 40
    sThr, sFloor = 54, 55
    sG = [56, 57, 58, 59]
    sL = [60, 61, 62, 63]
    sStep = 64
    sVn, sKn = 65, 66
    sGstep = 67
    sKc, sVc = 68, 69
    sQt, sKq = 70, 71
    sA, sB, sD = 72, 73, 74
    sLam = 75
    sWs, sWg, sXs, sXg = 76, 77, 78, 79
    sP = 80
    sE = 81
    sDk, sDv, sTl = 76, 77, 78
    vMx = 0
    vL = 1
    KA0, KA1, VA = 2, 3, 4
    vKoff, vVoff = 5, 6
    vTb = 7
    NM = 8
    O = 24
    Q = 88
    S = 120
    F = 136
    NV = 168
    t0, t1, t2, t3, t4 = 8, 9, 10, 11, 12
    Wf = 88
    Xf = 104
    ACC = 128
    WA = 152
    XA = 154
    QW = 158
    vTch = 160
    vCs = 161
    vWo, vXo = 152, 153

    XBASE = 131072
    a.label("k1_kernel")
    a("s_cmp_ge_u32 s2, 256")
    a("s_cbranch_scc1 K1_END")
    P = Prof(a, 84, 82, 28)
    P.init(12)
    P.stamp(0, real=True)
    P.stamp(1)
    a("s_load_dwordx16 s[32:47], s[0:1], 0")
    a("s_load_dwordx4 s[48:51], s[0:1], 64")
    a("s_load_dwordx2 s[52:53], s[0:1], 96")
    a("v_lshrrev_b32 v1, 6, v0")
    a("v_and_b32 v0, 63, v0")
    a(f"v_readfirstlane_b32 s{sW}, v1")
    a(f"s_and_b32 s{sKvh}, s2, 3")
    a(f"s_bfe_u32 s{sBr}, s2, 0x10002")
    a(f"s_lshr_b32 s{sBt}, s2, 5")
    a(f"s_bfe_u32 s{sPair}, s2, 0x20003")
    a(f"s_and_b32 s{sKq}, s{sW}, 3")
    a(f"s_lshr_b32 s{sQt}, s{sW}, 2")
    a(f"s_lshl_b32 s{sD}, s{sKvh}, 11")
    a(f"s_lshl_b32 s{sB}, s{sPair}, 9")
    a(f"s_add_u32 s{sD}, s{sD}, s{sB}")
    a(f"s_mul_i32 s{sA}, s{sBt}, 98304")

    def srd1():
        a("s_waitcnt lgkmcnt(0)")
        a(f"s_cmp_eq_u32 s{sBr}, 0")
        a(f"s_cselect_b64 s[{SX}:{SX+1}], s[32:33], s[42:43]")
        a(f"s_cselect_b64 s[{SWQ}:{SWQ+1}], s[38:39], s[48:49]")
        a(f"s_add_u32 s{SX}, s{SX}, s{sA}")
        a(f"s_addc_u32 s{SX+1}, s{SX+1}, 0")
        a(f"s_mov_b32 s{SX+2}, 98304")
        a(f"s_mov_b32 s{SX+3}, 0x20000")
        a(f"s_add_u32 s{SWQ}, s{SWQ}, s{sD}")
        a(f"s_addc_u32 s{SWQ+1}, s{SWQ+1}, 0")
        a(f"s_sub_u32 s{SWQ+2}, 8388608, s{sD}")
        a(f"s_mov_b32 s{SWQ+3}, 0x20000")
    def srd2():
        a(f"s_cmp_eq_u32 s{sBr}, 0")
        a(f"s_cselect_b64 s[{SK}:{SK+1}], s[34:35], s[44:45]")
        a(f"s_cselect_b64 s[{SV}:{SV+1}], s[36:37], s[46:47]")
        a(f"s_mov_b64 s[36:37], s[40:41]")
        a(f"s_lshl_b32 s{sB}, s{sBr}, 3")
        a(f"s_add_u32 s{sB}, s{sB}, s{sBt}")
        a(f"s_mul_i32 s{sB}, s{sB}, {48*8192}")
        a(f"s_add_u32 s{sB}, s{sB}, s{sD}")
        a(f"s_add_u32 s{SO}, s52, s{sB}")
        a(f"s_addc_u32 s{SO+1}, s53, 0")
        a(f"s_sub_u32 s{SO+2}, {48*8192}, s{sD}")
        a(f"s_mov_b32 s{SO+3}, 0x20000")
        a(f"s_lshl_b32 s{sB}, s{sBt}, 2")
        a(f"s_add_u32 s{sB}, s{sB}, s{sKvh}")
        a(f"s_lshl_b32 s{sB}, s{sB}, 18")
        a(f"s_add_u32 s{SK}, s{SK}, s{sB}")
        a(f"s_addc_u32 s{SK+1}, s{SK+1}, 0")
        a(f"s_mov_b32 s{SK+2}, 262144")
        a(f"s_mov_b32 s{SK+3}, 0x20000")
        a(f"s_add_u32 s{SV}, s{SV}, s{sB}")
        a(f"s_addc_u32 s{SV+1}, s{SV+1}, 0")
        a(f"s_mov_b32 s{SV+2}, 262144")
        a(f"s_mov_b32 s{SV+3}, 0x20000")
        a(f"s_mov_b32 s{STCH+2}, 262144")
        a(f"s_mov_b32 s{STCH+3}, 0x20000")
        for r in range(64):
            a(f"v_mov_b32 v{O+r}, 0")
        a(f"v_bfe_u32 v{t0}, v0, 2, 2")
        a(f"v_lshlrev_b32 v{t0}, 8, v{t0}")
        a(f"v_lshrrev_b32 v{t1}, 4, v0")
        a(f"v_lshl_add_u32 v{t0}, v{t1}, 6, v{t0}")
        a(f"v_and_b32 v{t1}, 3, v0")
        a(f"v_lshl_add_u32 v{vVoff}, v{t1}, 4, v{t0}")
        a(f"s_lshl_b32 s{sB}, s{sKq}, 4")
        a(f"v_xor_b32 v{vKoff}, s{sB}, v{vVoff}")

    def kread(n):
        a(f"ds_read_b128 {vr(F+4*n,4)}, v{KA0 + (n & 1)} offset:{(n >> 1)*256}")
    def setup2():
        a(f"v_and_b32 v{t0}, 31, v0")
        a(f"v_lshrrev_b32 v{t1}, 5, v0")
        a(f"v_and_b32 v{t2}, 15, v0")
        a(f"v_xor_b32 v{t2}, v{t1}, v{t2}")
        a(f"v_lshlrev_b32 v{t2}, 4, v{t2}")
        a(f"v_lshl_add_u32 v{t2}, v{t0}, 8, v{t2}")
        a(f"s_lshl_b32 s{sA}, s{sQt}, 13")
        a(f"s_add_u32 s{sA}, s{sA}, {XBASE}")
        a(f"v_add_u32 v{vTb}, s{sA}, v{t2}")
        a(f"v_lshrrev_b32 v{t2}, 2, v{t0}")
        a(f"v_and_b32 v{t3}, 3, v{t2}")
        a(f"v_xor_b32 v{t3}, v{t1}, v{t3}")
        a(f"v_lshlrev_b32 v{t3}, 4, v{t3}")
        a(f"v_lshl_add_u32 v{t3}, v{t2}, 10, v{t3}")
        a(f"v_and_b32 v{t2}, 3, v0")
        a(f"v_lshl_add_u32 v{t3}, v{t2}, 6, v{t3}")
        a(f"s_lshl_b32 s{sA}, s{sKq}, 13")
        a(f"v_add_u32 v{KA0}, s{sA}, v{t3}")
        a(f"v_xor_b32 v{KA1}, 32, v{KA0}")
        a(f"v_bfe_u32 v{t2}, v0, 2, 2")
        a(f"v_lshlrev_b32 v{t2}, 6, v{t2}")
        a(f"v_lshl_add_u32 v{t2}, v{t1}, 10, v{t2}")
        a(f"v_bfe_u32 v{t3}, v0, 4, 1")
        a(f"v_lshl_add_u32 v{t2}, v{t3}, 5, v{t2}")
        a(f"v_bfe_u32 v{t3}, v0, 1, 1")
        a(f"v_lshl_add_u32 v{t2}, v{t3}, 4, v{t2}")
        a(f"v_and_b32 v{t3}, 1, v0")
        a(f"v_lshl_add_u32 v{t2}, v{t3}, 3, v{t2}")
        a(f"s_add_u32 s{sA}, s{sA}, 32768")
        a(f"v_add_u32 v{VA}, s{sA}, v{t2}")
        for j in range(4):
            a(f"s_sub_u32 s{sA}, s{sQt}, 1")
            a(f"s_lshl_b32 s{sA}, s{sA}, 1")
            a(f"s_add_u32 s{sA}, s{sA}, {j >> 1}")
            a(f"s_add_u32 s{sB}, s{sKq}, {4*(j & 1)}")
            a(f"s_lshl_b32 s{sB}, s{sB}, 10")
            a(f"s_lshl_b32 s{sD}, s{sA}, 16")
            a(f"s_add_u32 s{sG[j]}, s{sD}, s{sB}")
            a(f"s_lshl_b32 s{sD}, s{sA}, 13")
            a(f"s_add_u32 s{sL[j]}, s{sD}, s{sB}")
        a(f"s_mov_b32 s{sStep}, 0")
        a(f"s_mov_b32 s{sKn}, {4*32768}")
        a(f"s_mov_b32 s{sVn}, 0")
        a(f"s_mov_b32 s{sGstep}, 16384")
        a(f"s_mov_b32 s{sKc}, 65536")
        a(f"s_mov_b32 s{sVc}, 32768")
        a(f"s_mov_b32 s{sThr}, 0xff800000")
        a(f"s_mov_b32 s{sFloor}, 0xff800000")
        for r in range(16):
            a(f"v_mov_b32 v{NM+r}, 0")
        a(f"v_mov_b32 v{vL}, 0")

    a(f"s_cmp_ge_u32 s{sW}, 8")
    a("s_cbranch_scc1 K1_LOADER")

    a.c("phase 1 compute")
    if opt.get("cpf", 1):
        a(f"s_cmp_lg_u32 s{sW}, 0")
        a("s_cbranch_scc1 K1_NOCPF")
        a("s_getpc_b64 s[82:83]")
        a("s_and_b32 s82, s82, 0xffffff00")
        a(f"v_lshlrev_b32 v{t0}, 7, v0")
        a(f"global_load_dword v{F+31}, v{t0}, s[82:83]")
        a(f"v_add_u32 v{t0}, 0x2000, v{t0}")
        a(f"v_min_u32 v{t0}, K2_END-k1_kernel-4, v{t0}")
        a(f"global_load_dword v{F+31}, v{t0}, s[82:83]")
        a.label("K1_NOCPF")
    a(f"v_lshlrev_b32 v{vTch}, 7, v0")
    a(f"v_mov_b32 v{vCs}, {f2u(CSCALE):#x}")
    a(f"v_bfe_u32 v{t0}, v0, 2, 2")
    a(f"v_lshrrev_b32 v{t1}, 4, v0")
    a(f"v_and_b32 v{t2}, 1, v{t1}")
    a(f"v_lshl_or_b32 v{t2}, v{t2}, 2, v{t0}")
    a(f"s_lshl_b32 s{sE}, s{sW}, 1")
    a(f"v_xor_b32 v{t2}, s{sE}, v{t2}")
    a(f"v_lshl_add_u32 v{t3}, v{t1}, 3, v{t0}")
    a(f"v_lshlrev_b32 v{t3}, 9, v{t3}")
    a(f"v_lshl_add_u32 v{t3}, v{t2}, 5, v{t3}")
    a(f"v_and_b32 v{t4}, 3, v0")
    a(f"v_lshl_add_u32 v{WA}, v{t4}, 3, v{t3}")
    a(f"v_xor_b32 v{WA+1}, 32, v{WA}")
    a(f"v_and_b32 v{t0}, 15, v0")
    a(f"v_xor_b32 v{t2}, v{t1}, v{t0}")
    a(f"v_lshlrev_b32 v{t2}, 4, v{t2}")
    a(f"v_lshl_add_u32 v{t2}, v{t0}, 8, v{t2}")
    a(f"v_add_u32 v{XA}, {XBASE:#x}, v{t2}")
    a(f"v_xor_b32 v{XA+1}, 64, v{XA}")
    a(f"v_xor_b32 v{XA+2}, 0x80, v{XA}")
    a(f"v_xor_b32 v{XA+3}, 0xc0, v{XA}")
    a(f"s_lshl_b32 s{sE}, s{sKq}, 2")
    a(f"v_lshrrev_b32 v{t2}, 1, v{t1}")
    a(f"v_add_u32 v{t2}, s{sE}, v{t2}")
    a(f"v_xor_b32 v{t2}, v{t2}, v{t0}")
    a(f"v_lshlrev_b32 v{t2}, 4, v{t2}")
    a(f"v_lshl_add_u32 v{t2}, v{t0}, 8, v{t2}")
    a(f"v_and_b32 v{t3}, 1, v{t1}")
    a(f"v_lshl_add_u32 v{t2}, v{t3}, 3, v{t2}")
    a(f"s_mul_i32 s{sE}, s{sQt}, {48*256}")
    a(f"s_add_u32 s{sE}, s{sE}, {XBASE}")
    a(f"v_add_u32 v{QW}, s{sE}, v{t2}")
    a(f"v_xor_b32 v{QW+1}, 32, v{QW}")
    for r in range(24):
        a(f"v_mov_b32 v{ACC+r}, 0")
    srd1()
    srd2()
    setup2()
    a(f"s_mov_b32 s{sP}, 0")
    a.label("K1_P1_LOOP")
    for sp in range(2):
        a("s_barrier")
        if sp == 0 and PROF and not FINE:
            a(f"s_cmp_lg_u32 s{sP}, 0")
            a("s_cbranch_scc1 K1_PS0")
            P.stamp(2)
            a.label("K1_PS0")
        for ks in range(2):
            for tt in range(2):
                for e in range(2):
                    off = sp * 32768 + ks * 16384 + e * 2048
                    a(f"ds_read_b64_tr_b16 {vr(Wf + (tt*2+ks)*4 + e*2, 2)}, v{WA+tt} offset:{off}")
            for rt in range(3):
                a(f"ds_read_b128 {vr(Xf + (rt*2+ks)*4, 4)}, v{XA + sp*2 + ks} offset:{rt*4096}")
        if TOUCH:
            a(f"s_lshl_b32 s{sA}, s{sP}, 1")
            a(f"s_add_u32 s{sA}, s{sA}, {sp}")
            a(f"s_and_b32 s{sA}, s{sA}, 3")
            a(f"s_cmp_eq_u32 s{sA}, s{sW}")
            a(f"s_cbranch_scc1 K1_T1_{sp}")
            a.label(f"K1_T1R_{sp}")
        for ks in range(2):
            a(f"s_waitcnt lgkmcnt({7 if ks == 0 else 0})")
            for rt in range(3):
                for tt in range(2):
                    acc = ACC + (tt*3+rt)*4
                    a(f"{MF16} {vr(acc,4)}, {vr(Wf+(tt*2+ks)*4,4)}, {vr(Xf+(rt*2+ks)*4,4)}, {vr(acc,4)}")
    a(f"v_xor_b32 v{WA}, 0x10000, v{WA}")
    a(f"v_xor_b32 v{WA+1}, 0x10000, v{WA+1}")
    for v in range(4):
        a(f"v_xor_b32 v{XA+v}, 0x4000, v{XA+v}")
    a(f"s_add_u32 s{sP}, s{sP}, 1")
    a(f"s_cmp_lt_u32 s{sP}, 8")
    a("s_cbranch_scc1 K1_P1_LOOP")
    a("s_barrier")
    P.stamp(3)
    a("s_nop 7")
    for tt in range(2):
        for rt in range(3):
            acc = ACC + (tt*3+rt)*4
            for r in range(4):
                a(f"v_mul_f32 v{acc+r}, v{vCs}, v{acc+r}")
            a(f"v_cvt_pk_bf16_f32 v{acc}, v{acc}, v{acc+1}")
            a(f"v_cvt_pk_bf16_f32 v{acc+1}, v{acc+2}, v{acc+3}")
            a(f"ds_write_b64 v{QW+tt}, {vr(acc,2)} offset:{rt*4096}")
    a("s_waitcnt vmcnt(0) lgkmcnt(0)")
    a("s_branch K1_JOIN")
    if TOUCH:
        for sp in range(2):
            a.label(f"K1_T1_{sp}")
            a(f"s_cmp_lt_u32 s{sP}, {T2_START//2}")
            a(f"s_cbranch_scc1 K1_T1R_{sp}")
            a(f"s_sub_u32 s{sA}, s{sP}, {T2_START//2}")
            a(f"s_lshl_b32 s{sA}, s{sA}, 13")
            a(f"s_lshl_b32 s{sB}, s{sPair}, 16")
            a(f"s_add_u32 s{sA}, s{sA}, s{sB}")
            srd = SK if sp == 0 else SV
            a(f"buffer_load_dword v{vVoff}, v{vTch}, s[{srd}:{srd+3}], s{sA} offen{NTT}")
            a(f"s_branch K1_T1R_{sp}")

    a.label("K1_LOADER")
    a(f"s_sub_u32 s{sLam}, s{sW}, 8")
    a(f"v_lshrrev_b32 v{t0}, 5, v0")
    a(f"v_and_b32 v{t1}, 31, v0")
    a(f"s_and_b32 s{sE}, s{sLam}, 1")
    a(f"s_lshl_b32 s{sE}, s{sE}, 1")
    a(f"s_lshr_b32 s{sB}, s{sLam}, 1")
    a(f"s_lshl_b32 s{sB}, s{sB}, 2")
    a(f"s_or_b32 s{sE}, s{sE}, s{sB}")
    a(f"v_or_b32 v{t2}, s{sE}, v{t0}")
    a(f"v_lshlrev_b32 v{t2}, 1, v{t2}")
    a(f"v_xor_b32 v{t2}, v{t1}, v{t2}")
    a(f"v_lshlrev_b32 v{t2}, 4, v{t2}")
    a(f"v_lshl_add_u32 v{vWo}, v{t0}, 13, v{t2}")
    a(f"s_and_b32 s{sE}, s{sLam}, 1")
    a(f"s_or_b32 s{sE}, s{sE}, s{sB}")
    a(f"s_lshl_b32 s{sB}, s{sE}, 14")
    a(f"v_add_u32 v{vWo}, s{sB}, v{vWo}")
    a(f"s_lshl_b32 s{sWs}, s{sE}, 10")
    a(f"v_lshrrev_b32 v{t0}, 4, v0")
    a(f"v_and_b32 v{t1}, 15, v0")
    a(f"s_lshl_b32 s{sE}, s{sLam}, 2")
    a(f"v_or_b32 v{t2}, s{sE}, v{t0}")
    a(f"v_xor_b32 v{t3}, v{t1}, v{t2}")
    a(f"v_lshlrev_b32 v{t3}, 4, v{t3}")
    a(f"v_lshl_add_u32 v{vXo}, v{t2}, 11, v{t3}")
    def issueW(slot_expr_sgpr, goff_sgpr):
        for j in range(8):
            m1, m3, m4 = j & 1, (j >> 1) & 1, (j >> 2) & 1
            dm = 2*m1 + 8*m3 + 16*m4
            a(f"s_add_u32 m0, s{slot_expr_sgpr}, {dm*1024}")
            a(f"s_add_u32 s{sA}, s{goff_sgpr}, {dm*16384}")
            a(f"buffer_load_dwordx4 v{vWo}, s[{SWQ}:{SWQ+3}], s{sA} offen{NTQ} lds")
    def issueX(slot_sgpr, goff_sgpr):
        for j in range(3):
            a(f"s_add_u32 m0, s{slot_sgpr}, {j*4096}")
            a(f"s_add_u32 s{sA}, s{goff_sgpr}, {j*16*2048}")
            a(f"buffer_load_dwordx4 v{vXo}, s[{SX}:{SX+3}], s{sA} offen{NTX} lds")
    def issueKV_loader(srd, voff, slot, step):
        a(f"s_lshl_b32 s{sB}, s{sLam}, 10")
        for e in range(8):
            lo = slot*32768 + (e >> 1)*8192 + (e & 1)*4096
            go = (e >> 1)*65536 + step*8192 + (e & 1)*4096
            a(f"s_add_u32 m0, s{sB}, {lo}")
            a(f"s_add_u32 s{sA}, s{sB}, {go}")
            a(f"buffer_load_dwordx4 v{voff}, s[{srd}:{srd+3}], s{sA} offen{NTD} lds")
    a(f"s_lshl_b32 s{sXs}, s{sLam}, 10")
    a(f"s_add_u32 s{sXs}, s{sXs}, {XBASE}")
    if ROT:
        a(f"s_lshl_b32 s{sXg}, s{sPair}, 1")
        a(f"s_add_u32 s{sXg}, s{sXg}, s{sBt}")
        a(f"s_and_b32 s{sXg}, s{sXg}, 7")
        a(f"s_lshl_b32 s{sWg}, s{sXg}, 20")
        a(f"s_lshl_b32 s{sXg}, s{sXg}, 8")
    else:
        a(f"s_mov_b32 s{sXg}, 0")
        a(f"s_mov_b32 s{sWg}, 0")
    srd1()
    P.stamp(9)
    def nextW():
        a(f"s_add_u32 s{sWs}, s{sWs}, 32768")
        a(f"s_and_b32 s{sWs}, s{sWs}, 0x1ffff")
        a(f"s_add_u32 s{sWg}, s{sWg}, 524288")
        a(f"s_and_b32 s{sWg}, s{sWg}, 0x7fffff")
    def nextX():
        a(f"s_xor_b32 s{sXs}, s{sXs}, 0x4000")
        a(f"s_add_u32 s{sXg}, s{sXg}, 256")
        a(f"s_and_b32 s{sXg}, s{sXg}, 0x7ff")
    issueX(sXs, sXg)
    issueW(sWs, sWg); nextW()
    issueW(sWs, sWg); nextW()
    P.stamp(10)
    srd2()
    setup2()
    a(f"s_mov_b32 s{sP}, 0")
    a("s_waitcnt vmcnt(8)")
    P.stamp(11)
    a("s_barrier")
    issueW(sWs, sWg); nextW()
    a("s_branch K1_LD_MID")
    a.label("K1_LD_LOOP")
    a("s_waitcnt vmcnt(16)")
    a("s_barrier")
    a.label("K1_LD_MID")
    nextX(); issueX(sXs, sXg)
    issueW(sWs, sWg); nextW()
    a("s_waitcnt vmcnt(19)")
    a("s_barrier")
    issueW(sWs, sWg); nextW()
    a(f"s_add_u32 s{sP}, s{sP}, 1")
    a(f"s_cmp_lt_u32 s{sP}, 6")
    a("s_cbranch_scc1 K1_LD_LOOP")
    a("s_waitcnt vmcnt(16)")
    a("s_barrier")
    nextX(); issueX(sXs, sXg)
    issueW(sWs, sWg)
    a("s_waitcnt vmcnt(19)")
    a("s_barrier")
    issueKV_loader(SK, vKoff, 0, 0)
    a("s_waitcnt vmcnt(16)")
    a("s_barrier")
    issueKV_loader(SV, vVoff, 1, 0)
    a("s_waitcnt vmcnt(16)")
    a("s_barrier")
    issueKV_loader(SK, vKoff, 2, 1)
    a("s_barrier")
    issueKV_loader(SV, vVoff, 3, 1)
    a("s_waitcnt vmcnt(8)")

    a.label("K1_JOIN")
    if TOUCH:
        a(f"s_cmp_ge_u32 s{sW}, 4")
        a("s_cbranch_scc1 K1_NOTCH")
        a(f"v_lshlrev_b32 v{vKoff}, 7, v0")
        a.label("K1_NOTCH")
    a("s_barrier")
    for ks in range(8):
        a(f"v_xor_b32 v{vMx}, {ks << 5:#x}, v{vTb}")
        a(f"ds_read_b128 {vr(Q+4*ks,4)}, v{vMx}")
    for ks in range(8):
        kread(ks)
    a(f"s_mov_b32 s{sDk}, 65536")
    ntouch2 = T2_START if TOUCH else 0
    a(f"s_cmp_lt_u32 s{sW}, {TPS}")
    a(f"s_cselect_b32 s{sTl}, {(ntouch2 + TPS - 1)//TPS}, 0")
    a("s_waitcnt lgkmcnt(0)")
    P.stamp(4)
    a(f"s_cmp_ge_u32 s{sW}, 4")
    a("s_cbranch_scc1 K1_B_BAR")
    a("s_branch K1_A_BAR")

    def rot(sreg):
        a(f"s_add_u32 s{sreg}, s{sreg}, 65536")
        a(f"s_cmp_ge_u32 s{sreg}, 163840")
        a(f"s_cselect_b32 s{sA}, 163840, 0")
        a(f"s_sub_u32 s{sreg}, s{sreg}, s{sA}")

    LIGHT = opt.get("light", 0)
    def ls(k):
        if LIGHT: a(f"s_memtime s[{84+2*k}:{85+2*k}]")
    def step_body(v):
        isB = (v == "B")
        dodma = isB and not (AB & 1)
        def dma(kind, j):
            if not dodma: return
            if kind == 'V':
                a(f"s_add_u32 m0, s{sVn}, s{sL[j]}")
                a(f"s_add_u32 s{sA}, s{sGstep}, s{sG[j]}")
                a(f"buffer_load_dwordx4 v{vVoff}, s[{SV}:{SV+3}], s{sA} offen{NTD} lds")
            else:
                a(f"s_add_u32 m0, s{sKn}, s{sL[j]}")
                a(f"s_add_u32 s{sA}, s{sGstep}, s{sG[j]}")
                a(f"buffer_load_dwordx4 v{vKoff}, s[{SK}:{SK+3}], s{sA} offen{NTD} lds")
        def vreads(kk):
            if AB & 2:
                for _ in range(8): a("s_nop 0")
                return
            for dt in range(4):
                for e in range(2):
                    a(f"ds_read_b64_tr_b16 {vr(F+(kk*4+dt)*4+2*e,2)}, v{VA} offset:{kk*4096+e*2048+dt*256}")
        a.label(f"K1_{v}_TOP")
        a(f"s_waitcnt {'vmcnt(4) ' if isB else ''}lgkmcnt(0)")
        a.label(f"K1_{v}_BAR")
        if PRIO: a(f"s_setprio {PQ}")
        if v == "B" or True: ls(0)
        a("s_barrier")
        ls(1)
        def vread1(n):
            if AB & 2: return
            kk, dt = n >> 2, n & 3
            for e in range(2):
                a(f"ds_read_b64_tr_b16 {vr(F+n*4+2*e,2)}, v{VA} offset:{kk*4096+e*2048+dt*256}")
        for ks in range(8):
            cin = vr(NM,16) if ks == 0 else vr(S,16)
            a(f"{MF32} {vr(S,16)}, {vr(F+4*ks,4)}, {vr(Q+4*ks,4)}, {cin}")
            if ks < 7: vread1(ks)
            if ks == 0:
                a(f"v_add_u32 v{KA0}, s{sDk}, v{KA0}")
                a(f"v_add_u32 v{KA1}, s{sDk}, v{KA1}")
                a(f"s_mov_b32 s{sDk}, s{sKc}")
            if ks == 2:
                rot(sKc)
            if ks == 4:
                a(f"s_sub_u32 s{sDk}, s{sKc}, s{sDk}")
                a(f"s_mov_b32 s{sDv}, s{sVc}")
                a(f"s_add_u32 s{sVc}, s{sVc}, 65536")
                a(f"s_cmp_ge_u32 s{sVc}, 163840")
            if ks == 4:
                a(f"s_cselect_b32 s{sA}, 163840, 0")
                a(f"s_sub_u32 s{sVc}, s{sVc}, s{sA}")
            if ks in (1, 3, 5, 6):
                dma('K', {1: 0, 3: 1, 5: 2, 6: 3}[ks])
        ls(2)
        if PRIO and PS != PQ: a(f"s_setprio {PS}")
        vread1(7)
        a(f"s_sub_u32 s{sDv}, s{sVc}, s{sDv}")
        a(f"v_add_u32 v{VA}, s{sDv}, v{VA}")
        a("s_nop 7")
        a("s_nop 0")
        a(f"v_max3_f32 v{vMx}, v{S+0}, v{S+1}, v{S+2}")
        a(f"v_max3_f32 v{vTb}, v{S+3}, v{S+4}, v{S+5}")
        a(f"v_max3_f32 v{vMx}, v{vMx}, v{S+6}, v{S+7}")
        a(f"v_max3_f32 v{vTb}, v{vTb}, v{S+8}, v{S+9}")
        a(f"v_max3_f32 v{vMx}, v{vMx}, v{S+10}, v{S+11}")
        a(f"v_max3_f32 v{vTb}, v{vTb}, v{S+12}, v{S+13}")
        a(f"v_max3_f32 v{vMx}, v{vMx}, v{S+14}, v{S+15}")
        a(f"v_max_f32 v{vMx}, v{vMx}, v{vTb}")
        a(f"v_cmp_lt_f32 vcc, s{sThr}, v{vMx}")
        a(f"s_cbranch_vccnz K1_{v}_RARE")
        a.label(f"K1_{v}_CONT")
        ls(3)
        for k in range(8):
            if not AB & 8:
                a(f"v_exp_f32 v{S+2*k}, v{S+2*k}")
                a(f"v_exp_f32 v{S+2*k+1}, v{S+2*k+1}")
            if k >= 1 and not AB & 8:
                kk = k - 1
                a(f"v_add_f32 v{vL}, v{vL}, v{S+2*kk}")
                a(f"v_add_f32 v{vL}, v{vL}, v{S+2*kk+1}")
                a(f"v_cvt_pk_bf16_f32 v{S+kk}, v{S+2*kk}, v{S+2*kk+1}")
        a(f"v_add_f32 v{vL}, v{vL}, v{S+14}")
        a(f"v_add_f32 v{vL}, v{vL}, v{S+15}")
        a(f"v_cvt_pk_bf16_f32 v{S+7}, v{S+14}, v{S+15}")
        ls(4)
        if PRIO and PP != PS: a(f"s_setprio {PP}")
        if not LIGHT: a("s_waitcnt lgkmcnt(0)")
        else: a("s_waitcnt lgkmcnt(1)")
        for kk in range(2):
            for dt in range(4):
                n = kk*4 + dt
                a(f"{MF32} {vr(O+16*dt,16)}, {vr(F+(kk*4+dt)*4,4)}, {vr(S+4*kk,4)}, {vr(O+16*dt,16)}")
                if not AB & 4: kread(n)
                if n in (0, 1, 2, 3):
                    dma('V', n)
                if n == 2 and not isB and TOUCH:
                    a(f"s_cmp_lt_u32 s{sStep}, s{sTl}")
                    a("s_cbranch_scc1 K1_A_TOUCH")
                    a.label("K1_A_TOUCHR")
                if n == 4:
                    a(f"s_add_u32 s{sStep}, s{sStep}, 1")
                if n == 2 and isB:
                    pass
                if n == 4 and isB:
                    rot(sVn)
                if n == 5 and isB:
                    rot(sKn)
                if n == 6 and isB:
                    a(f"s_add_u32 s{sGstep}, s{sGstep}, 8192")
                    if NS2 != 8: a(f"s_and_b32 s{sGstep}, s{sGstep}, 0xffff")
        ls(5)
        if LIGHT:
            a(f"s_cmp_lg_u32 s{sStep}, 41")
            a(f"s_cbranch_scc1 K1_{v}_NOCOPY")
            a("s_waitcnt lgkmcnt(0)")
            for k in range(6):
                a(f"s_mov_b32 s{96+k}, s{84+2*k}")
            a.label(f"K1_{v}_NOCOPY")
        if isB:
            a(f"s_cmp_lt_u32 s{sStep}, {NS2-2}")
            a("s_cbranch_scc1 K1_B_TOP")
            a("s_waitcnt vmcnt(0)")
            a("s_branch K1_A_TOP")
        else:
            a(f"s_cmp_lt_u32 s{sStep}, {NS2}")
            a("s_cbranch_scc1 K1_A_TOP")
            a("s_branch K1_P2_END")
        a.label(f"K1_{v}_RARE")
        a(f"v_mov_b32 v{vTb}, v{vMx}")
        a("s_nop 1")
        a(f"v_permlane32_swap_b32 v{vMx}, v{vTb}")
        a(f"v_max_f32 v{vMx}, v{vMx}, v{vTb}")
        a(f"v_max_f32 v{vMx}, s{sFloor}, v{vMx}")
        a(f"v_max_f32 v{vTb}, 0, v{vMx}")
        a(f"v_sub_f32 v{vTb}, 0, v{vTb}")
        a(f"v_exp_f32 v{vTb}, v{vTb}")
        a(f"s_mov_b32 s{sThr}, {f2u(8.0):#x}")
        a(f"s_mov_b32 s{sFloor}, 0")
        for r in range(16):
            a(f"v_sub_f32 v{S+r}, v{S+r}, v{vMx}")
        a(f"v_sub_f32 v{NM}, v{NM}, v{vMx}")
        for r in range(1, 16):
            a(f"v_mov_b32 v{NM+r}, v{NM}")
        a(f"v_mul_f32 v{vL}, v{vL}, v{vTb}")
        for r in range(64):
            a(f"v_mul_f32 v{O+r}, v{O+r}, v{vTb}")
        a(f"s_branch K1_{v}_CONT")

    step_body("B")
    step_body("A")
    if TOUCH:
        a.label("K1_A_TOUCH")
        nkv1 = 16 - T2_START
        a(f"s_mul_i32 s{sA}, s{sStep}, {TPS}")
        a(f"s_add_u32 s{sA}, s{sA}, s{sW}")
        a(f"s_add_u32 s{sB}, s{sA}, {nkv1}")
        a(f"s_cmp_ge_u32 s{sB}, 16")
        a("s_cbranch_scc1 K1_A_TOUCHR")
        a(f"s_bitcmp1_b32 s{sB}, 0")
        a(f"s_cselect_b64 s[{STCH}:{STCH+1}], s[{SV}:{SV+1}], s[{SK}:{SK+1}]")
        a(f"s_lshr_b32 s{sB}, s{sB}, 1")
        a(f"s_lshl_b32 s{sB}, s{sB}, 13")
        a(f"s_lshl_b32 s{sA}, s{sPair}, 16")
        a(f"s_add_u32 s{sB}, s{sB}, s{sA}")
        a(f"buffer_load_dword v{vVoff}, v{vKoff}, s[{STCH}:{STCH+3}], s{sB} offen{NTT}")
        a("s_branch K1_A_TOUCHR")

    a.label("K1_P2_END")
    P.stamp(5)
    t0, t1, t2, t3, t4 = F+16, F+17, F+18, F+19, F+20
    vLane = F+21
    a("s_waitcnt lgkmcnt(0)")
    a(f"v_mbcnt_lo_u32_b32 v{vLane}, -1, 0")
    a(f"v_mbcnt_hi_u32_b32 v{vLane}, -1, v{vLane}")
    if WOT:
        a(f"s_cmp_ge_u32 s{sW}, 8")
        a("s_cbranch_scc1 K1_NOWOT")
        a(f"s_cmp_eq_u32 s{sBr}, 0")
        a(f"s_cselect_b64 s[{STCH}:{STCH+1}], s[{SWOP}:{SWOP+1}], s[50:51]")
        a(f"s_mov_b32 s{STCH+2}, 8388608")
        a(f"v_lshrrev_b32 v{t0}, 2, v{vLane}")
        a(f"v_lshlrev_b32 v{t0}, 11, v{t0}")
        a(f"v_and_b32 v{t1}, 3, v{vLane}")
        a(f"v_lshl_add_u32 v{t0}, v{t1}, 7, v{t0}")
        a(f"s_lshr_b32 s{sA}, s2, 3")
        a(f"s_lshl_b32 s{sA}, s{sA}, 3")
        a(f"s_add_u32 s{sA}, s{sA}, s{sW}")
        a(f"s_lshl_b32 s{sA}, s{sA}, 15")
        a(f"s_lshl_b32 s{sB}, s{sKvh}, 9")
        a(f"s_add_u32 s{sA}, s{sA}, s{sB}")
        a(f"buffer_load_dword v{NM+8}, v{t0}, s[{STCH}:{STCH+3}], s{sA} offen{NTW}")
        a.label("K1_NOWOT")
    a(f"v_mov_b32 v{t1}, v{vL}")
    a(f"v_sub_f32 v{S}, 0, v{NM}")
    a("s_nop 0")
    a(f"v_permlane32_swap_b32 v{vL}, v{t1}")
    a(f"v_add_f32 v{S+1}, v{vL}, v{t1}")
    a(f"v_and_b32 v{t0}, 31, v{vLane}")
    a(f"v_lshlrev_b32 v{t0}, 3, v{t0}")
    a(f"s_lshl_b32 s{sA}, s{sQt}, 10")
    a(f"v_add_u32 v{t0}, s{sA}, v{t0}")
    a(f"s_lshl_b32 s{sB}, s{sKq}, 8")
    a(f"v_add_u32 v{t1}, s{sB}, v{t0}")
    EX = 4096
    R = Q
    a(f"v_lshlrev_b32 v{t2}, 4, v{vLane}")
    a(f"s_mul_i32 s{sB}, s{sQt}, {4*3*4096}")
    a(f"s_add_u32 s{sB}, s{sB}, {EX}")
    a("s_barrier")
    a(f"ds_write_b64 v{t1}, {vr(S,2)}")
    for dt in range(4):
        a(f"s_cmp_eq_u32 s{sKq}, {dt}")
        a(f"s_cbranch_scc1 K1_OWN{dt}")
        a(f"s_sub_u32 s{sA}, s{sKq}, {dt+1}")
        a(f"s_and_b32 s{sA}, s{sA}, 3")
        a(f"s_lshl_b32 s{sA}, s{sA}, 12")
        a(f"s_add_u32 s{sA}, s{sA}, s{sB}")
        a(f"v_add_u32 v{t1}, s{sA}, v{t2}")
        for g in range(4):
            a(f"ds_write_b128 v{t1}, {vr(O+16*dt+4*g,4)} offset:{dt*3*4096 + g*1024}")
        a(f"s_branch K1_NXT{dt}")
        a.label(f"K1_OWN{dt}")
        for r in range(16):
            a(f"v_mov_b32 v{R+r}, v{O+16*dt+r}")
        a.label(f"K1_NXT{dt}")
    a("s_waitcnt lgkmcnt(0)")
    a("s_barrier")
    ST = S
    for rk in range(3):
        a(f"s_add_u32 s{sA}, s{sKq}, {rk+1}")
        a(f"s_and_b32 s{sA}, s{sA}, 3")
        a(f"s_lshl_b32 s{sA}, s{sA}, 8")
        a(f"v_add_u32 v{t1}, s{sA}, v{t0}")
        a(f"ds_read_b64 {vr(ST+2+2*rk,2)}, v{t1}")
    a(f"s_mul_i32 s{sA}, s{sKq}, {3*4096}")
    a(f"s_add_u32 s{sA}, s{sA}, s{sB}")
    a(f"v_add_u32 v{t1}, s{sA}, v{t2}")
    TT = O
    for rk in range(3):
        for g in range(4):
            a(f"ds_read_b128 {vr(TT+16*rk+4*g,4)}, v{t1} offset:{rk*4096+g*1024}")
    a("s_waitcnt lgkmcnt(12)")
    mf = t3
    a(f"v_max3_f32 v{mf}, v{ST}, v{ST+2}, v{ST+4}")
    a(f"v_max_f32 v{mf}, v{mf}, v{ST+6}")
    for j in range(4):
        a(f"v_sub_f32 v{ST+2*j}, v{ST+2*j}, v{mf}")
    for j in range(4):
        a(f"v_exp_f32 v{ST+2*j}, v{ST+2*j}")
    a("s_nop 0")
    a(f"v_mul_f32 v{t4}, v{ST}, v{ST+1}")
    for j in range(1, 4):
        a(f"v_fma_f32 v{t4}, v{ST+2*j}, v{ST+2*j+1}, v{t4}")
    a(f"v_rcp_f32 v{t4}, v{t4}")
    a("s_nop 0")
    for j in range(4):
        a(f"v_mul_f32 v{ST+2*j}, v{ST+2*j}, v{t4}")
    for r in range(16):
        a(f"v_mul_f32 v{R+r}, v{R+r}, v{ST}")
    for rk in range(3):
        a(f"s_waitcnt lgkmcnt({8-4*rk})")
        for r in range(16):
            a(f"v_fma_f32 v{R+r}, v{TT+16*rk+r}, v{ST+2+2*rk}, v{R+r}")
    PK = F
    for g in range(4):
        a(f"v_cvt_pk_bf16_f32 v{PK+2*g}, v{R+4*g}, v{R+4*g+1}")
        a(f"v_cvt_pk_bf16_f32 v{PK+2*g+1}, v{R+4*g+2}, v{R+4*g+3}")
    a(f"v_and_b32 v{t0}, 31, v{vLane}")
    a(f"s_lshl_b32 s{sA}, s{sQt}, 5")
    a(f"v_add_u32 v{t0}, s{sA}, v{t0}")
    a(f"v_cmp_le_u32 vcc, 48, v{t0}")
    a(f"v_subrev_u32 v{t1}, 48, v{t0}")
    a(f"v_lshlrev_b32 v{t2}, 13, v{t0}")
    a(f"v_lshlrev_b32 v{t3}, 13, v{t1}")
    a(f"v_add_u32 v{t3}, 256, v{t3}")
    a(f"v_cndmask_b32 v{t2}, v{t2}, v{t3}, vcc")
    a(f"v_lshrrev_b32 v{t1}, 5, v{vLane}")
    a(f"v_lshl_add_u32 v{t2}, v{t1}, 4, v{t2}")
    a(f"s_lshl_b32 s{sA}, s{sKq}, 6")
    a(f"v_add_u32 v{t2}, s{sA}, v{t2}")
    a(f"v_permlane32_swap_b32 v{PK+0}, v{PK+2}")
    a(f"v_permlane32_swap_b32 v{PK+1}, v{PK+3}")
    a(f"v_permlane32_swap_b32 v{PK+4}, v{PK+6}")
    a(f"v_permlane32_swap_b32 v{PK+5}, v{PK+7}")
    a(f"buffer_store_dwordx4 {vr(PK,4)}, v{t2}, s[{SO}:{SO+3}], 0 offen")
    a(f"buffer_store_dwordx4 {vr(PK+4,4)}, v{t2}, s[{SO}:{SO+3}], 0 offen offset:32")
    P.stamp(6)
    if PROF: a("s_waitcnt vmcnt(0)")
    P.stamp(7)
    P.stamp(8, real=True)
    if LIGHT:
        for k in range(6):
            a(f"s_mov_b32 s{84+2+k}, s{96+k}")
    P.dump(52, sW, 64 << 20, 12)
    a.label("K1_END")
    a("s_endpgm")
    return NV

def kernel2(a, opt):
    sW = 4
    NTW2 = " nt" if opt.get("ntw2", 0) else ""
    NTO2 = " nt" if opt.get("nto2", 0) else ""
    SX, SWO, SO = 8, 12, 16
    sA, sB, sD, sLam, sP = 20, 21, 22, 23, 24
    sSl, sWg, sXg = 25, 26, 27
    NS = 5
    STG = 28672
    t0, t1, t2, t3, t4 = 1, 2, 3, 4, 5
    WA = 6
    XA = 10
    vWo, vXo = 6, 7
    ACC = 12
    FR = 60
    NV = 116
    a.label("k2_kernel")
    a("s_cmp_ge_u32 s2, 256")
    a("s_cbranch_scc1 K2_END")
    P = Prof(a, 48, 46, 40)
    P.init(12)
    P.stamp(0, real=True)
    P.stamp(1)
    a("s_load_dwordx2 s[32:33], s[0:1], 32")
    a("s_load_dwordx2 s[34:35], s[0:1], 72")
    a("s_load_dwordx2 s[36:37], s[0:1], 80")
    a("s_load_dwordx2 s[38:39], s[0:1], 96")
    a("v_lshrrev_b32 v1, 6, v0")
    a("v_and_b32 v0, 63, v0")
    a(f"v_readfirstlane_b32 s{sW}, v1")
    a("s_and_b32 s5, s2, 3")
    a("s_bfe_u32 s6, s2, 0x10002")
    a("s_lshr_b32 s7, s2, 5")
    a("s_bfe_u32 s3, s2, 0x20003")
    a("s_waitcnt lgkmcnt(0)")
    a("s_cmp_eq_u32 s6, 0")
    a(f"s_cselect_b64 s[{SWO}:{SWO+1}], s[32:33], s[34:35]")
    a(f"s_lshl_b32 s{sA}, s5, 9")
    a(f"s_lshl_b32 s{sB}, s3, 7")
    a(f"s_add_u32 s{sA}, s{sA}, s{sB}")
    a(f"s_add_u32 s{SWO}, s{SWO}, s{sA}")
    a(f"s_addc_u32 s{SWO+1}, s{SWO+1}, 0")
    a(f"s_sub_u32 s{SWO+2}, 8388608, s{sA}")
    a(f"s_mov_b32 s{SWO+3}, 0x20000")
    a(f"s_lshl_b32 s{sB}, s6, 3")
    a(f"s_add_u32 s{sB}, s{sB}, s7")
    a(f"s_mul_i32 s{sD}, s{sB}, {48*8192}")
    a(f"s_add_u32 s{SX}, s38, s{sD}")
    a(f"s_addc_u32 s{SX+1}, s39, 0")
    a(f"s_mov_b32 s{SX+2}, {48*8192}")
    a(f"s_mov_b32 s{SX+3}, 0x20000")
    a(f"s_mul_i32 s{sD}, s7, {48*4096}")
    a(f"s_lshl_b32 s{sB}, s6, 11")
    a(f"s_add_u32 s{sB}, s{sB}, s{sA}")
    a(f"s_add_u32 s{sD}, s{sD}, s{sB}")
    a(f"s_add_u32 s{SO}, s36, s{sD}")
    a(f"s_addc_u32 s{SO+1}, s37, 0")
    a(f"s_sub_u32 s{SO+2}, {48*4096}, s{sB}")
    a(f"s_mov_b32 s{SO+3}, 0x20000")
    a(f"s_cmp_ge_u32 s{sW}, 4")
    a("s_cbranch_scc1 K2_LOADER")
    a(f"v_bfe_u32 v{t0}, v0, 2, 2")
    a(f"v_lshrrev_b32 v{t1}, 4, v0")
    a(f"v_lshl_add_u32 v{t2}, v{t1}, 3, v{t0}")
    a(f"s_lshl_b32 s{sA}, s{sW}, 5")
    a(f"v_add_u32 v{t2}, s{sA}, v{t2}")
    a(f"v_lshlrev_b32 v{t2}, 7, v{t2}")
    a(f"v_bfe_u32 v{t3}, v0, 3, 1")
    a(f"v_bfe_u32 v{t4}, v0, 4, 1")
    a(f"v_lshl_or_b32 v{t3}, v{t4}, 1, v{t3}")
    a(f"v_lshl_add_u32 v{t2}, v{t3}, 5, v{t2}")
    a(f"v_and_b32 v{t3}, 3, v0")
    a(f"v_lshl_add_u32 v{WA}, v{t3}, 3, v{t2}")
    for t in range(1, 4):
        a(f"v_xor_b32 v{WA+t}, {t << 5}, v{WA}")
    a(f"v_and_b32 v{t0}, 15, v0")
    a(f"s_lshl_b32 s{sA}, s{sW}, 2")
    a(f"v_add_u32 v{t2}, s{sA}, v{t1}")
    a(f"v_xor_b32 v{t2}, v{t2}, v{t0}")
    a(f"v_lshlrev_b32 v{t2}, 4, v{t2}")
    a(f"v_lshl_add_u32 v{t2}, v{t0}, 8, v{t2}")
    a(f"v_add_u32 v{XA}, 16384, v{t2}")
    for r in range(48):
        a(f"v_mov_b32 v{ACC+r}, 0")
    def reads(buf):
        fb = FR + buf*28
        for t in range(4):
            for e in range(2):
                a(f"ds_read_b64_tr_b16 {vr(fb+4*t+2*e,2)}, v{WA+t} offset:{e*512}")
        for rt in range(3):
            a(f"ds_read_b128 {vr(fb+16+4*rt,4)}, v{XA} offset:{rt*4096}")
    def adv():
        a(f"s_add_u32 s{sA}, s{sSl}, {STG}")
        a(f"s_cmp_ge_u32 s{sA}, {NS*STG}")
        a(f"s_cselect_b32 s{sB}, {NS*STG}, 0")
        a(f"s_sub_u32 s{sA}, s{sA}, s{sB}")
        a(f"s_sub_u32 s{sD}, s{sA}, s{sSl}")
        a(f"s_mov_b32 s{sSl}, s{sA}")
        for t in range(4):
            a(f"v_add_u32 v{WA+t}, s{sD}, v{WA+t}")
        a(f"v_add_u32 v{XA}, s{sD}, v{XA}")
    def mfmas(buf):
        fb = FR + buf*28
        for rt in range(3):
            for t in range(4):
                acc = ACC + (t*3+rt)*4
                a(f"{MF16} {vr(acc,4)}, {vr(fb+4*t,4)}, {vr(fb+16+4*rt,4)}, {vr(acc,4)}")
    a(f"s_mov_b32 s{sSl}, 0")
    a("s_barrier")
    P.stamp(2)
    reads(0); adv()
    a("s_waitcnt lgkmcnt(0)")
    a(f"s_mov_b32 s{sP}, 0")
    a.label("K2_C_LOOP")
    for half in range(2):
        a("s_barrier")
        reads(1-half); adv()
        mfmas(half)
        a("s_waitcnt lgkmcnt(0)")
        if half == 0:
            a(f"s_cmp_eq_u32 s{sP}, 15")
            a("s_cbranch_scc1 K2_C_DONE")
    a(f"s_add_u32 s{sP}, s{sP}, 1")
    a("s_branch K2_C_LOOP")
    a.label("K2_C_DONE")
    mfmas(1)
    P.stamp(3)
    a("s_barrier")
    a("s_nop 7")
    a(f"v_lshlrev_b32 v{t0}, 4, v0")
    a(f"s_mul_i32 s{sA}, s{sW}, 12288")
    a(f"v_add_u32 v{t1}, s{sA}, v{t0}")
    for tile in range(12):
        a(f"ds_write_b128 v{t1}, {vr(ACC+4*tile,4)} offset:{tile*1024}")
    a("s_waitcnt lgkmcnt(0)")
    a("s_barrier")
    a(f"s_mul_i32 s{sA}, s{sW}, 3072")
    a(f"v_add_u32 v{t1}, s{sA}, v{t0}")
    for src in range(4):
        for rt in range(3):
            a(f"ds_read_b128 {vr(ACC+(src*3+rt)*4,4)}, v{t1} offset:{src*12288+rt*1024}")
    a("s_waitcnt lgkmcnt(0)")
    for rt in range(3):
        for r in range(4):
            d = ACC + rt*4 + r
            a(f"v_add_f32 v{d}, v{d}, v{d+12}")
            a(f"v_add_f32 v{d+24}, v{d+24}, v{d+36}")
        for r in range(4):
            d = ACC + rt*4 + r
            a(f"v_add_f32 v{d}, v{d}, v{d+24}")
        d = ACC + rt*4
        a(f"v_cvt_pk_bf16_f32 v{d}, v{d}, v{d+1}")
        a(f"v_cvt_pk_bf16_f32 v{d+1}, v{d+2}, v{d+3}")
    a(f"v_and_b32 v{t0}, 15, v0")
    a(f"v_lshrrev_b32 v{t1}, 4, v0")
    a(f"v_lshlrev_b32 v{t0}, 12, v{t0}")
    a(f"v_lshl_add_u32 v{t0}, v{t1}, 3, v{t0}")
    a(f"s_lshl_b32 s{sA}, s{sW}, 5")
    a(f"v_add_u32 v{t0}, s{sA}, v{t0}")
    for rt in range(3):
        a(f"s_mov_b32 s{sA}, {rt*16*4096}")
        a(f"buffer_store_dwordx2 {vr(ACC+rt*4,2)}, v{t0}, s[{SO}:{SO+3}], s{sA} offen")
    P.stamp(4)
    if PROF: a("s_waitcnt vmcnt(0)")
    P.stamp(5)
    P.stamp(6, real=True)
    P.dump(38, sW, 65 << 20, 12)
    a("s_endpgm")

    a.label("K2_LOADER")
    a(f"s_sub_u32 s{sLam}, s{sW}, 4")
    a(f"v_lshrrev_b32 v{t0}, 3, v0")
    a(f"v_and_b32 v{t1}, 7, v0")
    a(f"v_bfe_u32 v{t2}, v0, 4, 1")
    a(f"s_and_b32 s{sA}, s{sLam}, 1")
    a(f"s_lshl_b32 s{sA}, s{sA}, 1")
    a(f"v_or_b32 v{t2}, s{sA}, v{t2}")
    a(f"v_lshlrev_b32 v{t2}, 1, v{t2}")
    a(f"v_xor_b32 v{t1}, v{t1}, v{t2}")
    a(f"v_lshlrev_b32 v{t1}, 4, v{t1}")
    a(f"s_lshl_b32 s{sA}, s{sLam}, 3")
    a(f"v_add_u32 v{t0}, s{sA}, v{t0}")
    a(f"v_lshl_add_u32 v{vWo}, v{t0}, 11, v{t1}")
    a(f"v_lshrrev_b32 v{t0}, 4, v0")
    a(f"v_and_b32 v{t1}, 15, v0")
    a(f"s_lshl_b32 s{sA}, s{sLam}, 2")
    a(f"v_or_b32 v{t2}, s{sA}, v{t0}")
    a(f"v_xor_b32 v{t1}, v{t1}, v{t2}")
    a(f"v_lshlrev_b32 v{t1}, 4, v{t1}")
    a(f"v_lshl_add_u32 v{vXo}, v{t2}, 13, v{t1}")
    def issue():
        for j in range(4):
            a(f"s_add_u32 m0, s{sSl}, {j*4096}")
            a(f"s_add_u32 s{sA}, s{sWg}, {j*32*2048}")
            a(f"buffer_load_dwordx4 v{vWo}, s[{SWO}:{SWO+3}], s{sA} offen{NTW2} lds")
        for j in range(3):
            a(f"s_add_u32 m0, s{sSl}, {16384 + j*4096}")
            a(f"s_add_u32 s{sA}, s{sXg}, {j*16*8192}")
            a(f"buffer_load_dwordx4 v{vXo}, s[{SX}:{SX+3}], s{sA} offen{NTO2} lds")
        a(f"s_add_u32 s{sSl}, s{sSl}, {STG}")
        a(f"s_cmp_ge_u32 s{sSl}, s{sD}")
        a(f"s_cselect_b32 s{sB}, {NS*STG}, 0")
        a(f"s_sub_u32 s{sSl}, s{sSl}, s{sB}")
        a(f"s_add_u32 s{sWg}, s{sWg}, {128*2048}")
        a(f"s_and_b32 s{sWg}, s{sWg}, 0x7fffff")
        a(f"s_add_u32 s{sXg}, s{sXg}, 256")
        a(f"s_and_b32 s{sXg}, s{sXg}, 0x1fff")
    a(f"s_lshl_b32 s{sSl}, s{sLam}, 10")
    a(f"s_add_u32 s{sD}, s{sSl}, {NS*STG}")
    R2 = opt.get("rot2", 0)
    if R2:
        mb, mn = {1: (4, 8), 2: (2, 0), 3: (1, 0), 4: (3, 0), 5: (2, 8), 6: (4, 0)}[R2]
        a(f"s_mul_i32 s{sXg}, s7, {mb}")
        a(f"s_mul_i32 s{sWg}, s3, {mn}")
        a(f"s_add_u32 s{sXg}, s{sXg}, s{sWg}")
        a(f"s_and_b32 s{sXg}, s{sXg}, 31")
        a(f"s_lshl_b32 s{sWg}, s{sXg}, 18")
        a(f"s_lshl_b32 s{sXg}, s{sXg}, 8")
    else:
        a(f"s_mov_b32 s{sWg}, 0")
        a(f"s_mov_b32 s{sXg}, 0")
    for st in range(5):
        issue()
    a("s_waitcnt vmcnt(28)")
    a("s_barrier")
    a(f"s_mov_b32 s{sP}, 0")
    a.label("K2_L_LOOP")
    a("s_waitcnt vmcnt(21)")
    a("s_barrier")
    issue()
    a(f"s_add_u32 s{sP}, s{sP}, 1")
    a(f"s_cmp_lt_u32 s{sP}, 27")
    a("s_cbranch_scc1 K2_L_LOOP")
    for s in range(27, 31):
        a(f"s_waitcnt vmcnt({7*(31-(s+1))})")
        a("s_barrier")
    a("s_barrier")
    a("s_barrier")
    a.label("K2_END")
    a("s_endpgm")
    return NV

HEADER = open("cdna_kernels/" + NAME + ".s.ref").read().split("; Override launch")[0]

def kd(name, nv, ns):
    acc = (nv + 3)//4*4
    return f"""
.amdhsa_kernel {name}
  .amdhsa_next_free_vgpr {nv}
  .amdhsa_next_free_sgpr {ns}
  .amdhsa_accum_offset {acc}
  .amdhsa_group_segment_fixed_size 0
  .amdhsa_kernarg_size 104
  .amdhsa_user_sgpr_count 2
  .amdhsa_user_sgpr_kernarg_segment_ptr 1
  .amdhsa_system_sgpr_workgroup_id_x 1
.end_amdhsa_kernel
"""

def main(out, opt):
    a1 = Asm(); nv1 = kernel1(a1, opt)
    a2 = Asm(); nv2 = kernel2(a2, opt)
    s = HEADER
    s += "; @launch kernel=k1_kernel grid=(256,1,1) block=(768,1,1) lds=163840\n"
    s += "; @launch kernel=k2_kernel grid=(256,1,1) block=(512,1,1) lds=143360\n"
    s += '.amdgcn_target "amdgcn-amd-amdhsa--gfx950"\n.text\n'
    for nm, body in (("k1_kernel", a1), ("k2_kernel", a2)):
        s += f".globl {nm}\n.p2align 8\n.type {nm},@function\n" + body.text()
    s += '.section .rodata,"a"\n'
    s += ".p2align 6" + kd("k1_kernel", nv1, 102) + ".p2align 6" + kd("k2_kernel", nv2, 64)
    open(out, "w").write(s)

if __name__ == "__main__":
    if "--prof" in sys.argv:
        PROF = True
        sys.argv.remove("--prof")
    if "--fine" in sys.argv:
        PROF = True
        FINE = True
        sys.argv.remove("--fine")
    opt = {}
    for x in list(sys.argv):
        if x.startswith("--o:"):
            k, v = x[4:].split("=")
            opt[k] = int(v)
            sys.argv.remove(x)
    main(sys.argv[1] if len(sys.argv) > 1 else "cdna_kernels/" + NAME + ".s", opt)
```

```python
import sys, struct, math

NAME = "concat_heads__gqa_block_cached__gqa_block_cached__near_ridge"

def f2u(x):
    return struct.unpack("<I", struct.pack("<f", x))[0]

class Asm:
    def __init__(self):
        self.L = []
    def __call__(self, s):
        for line in s.split("\n"):
            self.L.append("    " + line.strip() if not line.strip().endswith(":") else line.strip())
    def label(self, s):
        self.L.append(s + ":")
    def c(self, s):
        self.L.append("    ; " + s)
    def text(self):
        return "\n".join(self.L) + "\n"

def vr(base, n=1):
    return f"v{base}" if n == 1 else f"v[{base}:{base+n-1}]"
def sr(base, n=1):
    return f"s{base}" if n == 1 else f"s[{base}:{base+n-1}]"

MF32 = "v_mfma_f32_32x32x16_bf16"
MF16 = "v_mfma_f32_16x16x32_bf16"

DEBUG_Q = False
PROF = False
FINE = False
class Prof:
    def __init__(self, a, base, tmp, srd):
        self.a, self.base, self.tmp, self.srd = a, base, tmp, srd
    def init(self, n):
        if not PROF: return
        for i in range(n):
            self.a(f"s_mov_b32 s{self.base+i}, 0")
    def fine(self, slot, cond_sgpr, val, uid):
        if not FINE: return
        a = self.a
        a(f"s_cmp_lg_u32 s{cond_sgpr}, {val}")
        a(f"s_cbranch_scc1 FINE_{uid}")
        a(f"s_memtime s[{self.tmp}:{self.tmp+1}]")
        a("s_waitcnt lgkmcnt(0)")
        a(f"s_mov_b32 s{self.base+slot}, s{self.tmp}")
        a.label(f"FINE_{uid}")
    def stamp(self, slot, real=False):
        if not PROF: return
        if FINE and slot in (2, 3, 4, 5, 6, 7) : return
        a = self.a
        a(f"{'s_memrealtime' if real else 's_memtime'} s[{self.tmp}:{self.tmp+1}]")
        a("s_waitcnt lgkmcnt(0)")
        a(f"s_mov_b32 s{self.base+slot}, s{self.tmp}")
    def dump(self, ws_lo, swave, region, nmax):
        if not PROF: return
        a = self.a
        b = self.srd
        a(f"s_add_u32 s{b}, s{ws_lo}, {region}")
        a(f"s_addc_u32 s{b+1}, s{ws_lo+1}, 0")
        a(f"s_mov_b32 s{b+2}, {256*16*64}")
        a(f"s_mov_b32 s{b+3}, 0x20000")
        a(f"s_lshl_b32 s{self.tmp}, s2, 4")
        a(f"s_add_u32 s{self.tmp}, s{self.tmp}, s{swave}")
        a(f"s_lshl_b32 s{self.tmp}, s{self.tmp}, 6")
        a("s_mov_b64 exec, 1")
        a(f"v_mov_b32 v1, s{self.tmp}")
        for i in range(nmax):
            a(f"v_mov_b32 v2, s{self.base+i}")
            a(f"buffer_store_dword v2, v1, s[{b}:{b+3}], 0 offen offset:{4*i}")
            a("s_nop 0")

def kernel1(a, opt):
    T2_START = opt.get("t2_start", 8)
    TOUCH = opt.get("touch", 0)
    PRIO = opt.get("prio", 1)
    PQ, PS, PP = opt.get("pq", 2), opt.get("ps", 1), opt.get("pp", 0)
    DMAQ = opt.get("dmaq", 1)
    NTD = " nt" if opt.get("ntd", 0) else ""
    NTQ = " nt" if opt.get("ntq", opt.get("ntd", 0)) else ""
    NTX = " nt" if opt.get("ntx", opt.get("ntd", 0)) else ""
    NTT = " nt" if opt.get("ntt", 1) else ""
    ROT = opt.get("rot", 4)
    TPS = opt.get("tps", 2)
    NS2 = opt.get("p2steps", 8)
    AB = opt.get("ablate", 0)
    CSCALE = 128 ** -0.5 * math.log2(math.e)
    WOT = opt.get("wot", 1)
    NTW = " nt" if opt.get("ntw", 0) else ""
    SWOP = 36
    sW = 4
    sKvh, sBr, sBt, sPair = 5, 6, 7, 3
    SX, SWQ, SK, SV, SO = 8, 12, 16, 20, 24
    STCH = 40
    sThr, sFloor = 54, 55
    sG = [56, 57, 58, 59]
    sL = [60, 61, 62, 63]
    sStep = 64
    sVn, sKn = 65, 66
    sGstep = 67
    sKc, sVc = 68, 69
    sQt, sKq = 70, 71
    sA, sB, sD = 72, 73, 74
    sLam = 75
    sWs, sWg, sXs, sXg = 76, 77, 78, 79
    sP = 80
    sE = 81
    sChk = 100
    SFL, sTok = 28, 96
    FLAGOFF = 8 << 20
    sGrp, sIdx, sRdy = 45, 46, 47
    sOne = 44
    sDk, sDv, sTl = 76, 77, 78
    vMx = 0
    vL = 1
    KA0, KA1, VA = 2, 3, 4
    vKoff, vVoff = 5, 6
    vTb = 7
    NM = 8
    O = 24
    Q = 88
    S = 120
    F = 136
    NV = 168
    t0, t1, t2, t3, t4 = 8, 9, 10, 11, 12
    Wf = 88
    Xf = 104
    ACC = 128
    WA = 152
    XA = 154
    QW = 158
    vCs = 161
    vWo, vXo = 160, 153

    XBASE = 131072
    a.label("k1_kernel")
    a("s_cmp_ge_u32 s2, 256")
    a("s_cbranch_scc1 K1_END")
    P = Prof(a, 84, 82, 28)
    P.init(12)
    P.stamp(0, real=True)
    P.stamp(1)
    a("s_load_dwordx16 s[32:47], s[0:1], 0")
    a("s_load_dwordx4 s[48:51], s[0:1], 64")
    a("s_load_dwordx2 s[52:53], s[0:1], 96")
    a("v_lshrrev_b32 v1, 6, v0")
    a("v_and_b32 v0, 63, v0")
    a(f"v_readfirstlane_b32 s{sW}, v1")
    a(f"s_and_b32 s{sKvh}, s2, 3")
    a(f"s_bfe_u32 s{sBr}, s2, 0x10002")
    a(f"s_lshr_b32 s{sBt}, s2, 5")
    a(f"s_bfe_u32 s{sPair}, s2, 0x20003")
    a(f"s_and_b32 s{sKq}, s{sW}, 3")
    a(f"s_lshr_b32 s{sQt}, s{sW}, 2")
    a(f"s_lshl_b32 s{sD}, s{sKvh}, 11")
    a(f"s_lshl_b32 s{sB}, s{sPair}, 9")
    a(f"s_add_u32 s{sD}, s{sD}, s{sB}")
    a(f"s_mul_i32 s{sA}, s{sBt}, 98304")

    def srd1():
        a("s_waitcnt lgkmcnt(0)")
        a(f"s_cmp_eq_u32 s{sBr}, 0")
        a(f"s_cselect_b64 s[{SX}:{SX+1}], s[32:33], s[42:43]")
        a(f"s_cselect_b64 s[{SWQ}:{SWQ+1}], s[38:39], s[48:49]")
        a(f"s_add_u32 s{SX}, s{SX}, s{sA}")
        a(f"s_addc_u32 s{SX+1}, s{SX+1}, 0")
        a(f"s_mov_b32 s{SX+2}, 98304")
        a(f"s_mov_b32 s{SX+3}, 0x20000")
        a(f"s_add_u32 s{SWQ}, s{SWQ}, s{sD}")
        a(f"s_addc_u32 s{SWQ+1}, s{SWQ+1}, 0")
        a(f"s_sub_u32 s{SWQ+2}, 8388608, s{sD}")
        a(f"s_mov_b32 s{SWQ+3}, 0x20000")
    def srd2():
        a(f"s_cmp_eq_u32 s{sBr}, 0")
        a(f"s_cselect_b64 s[{SK}:{SK+1}], s[34:35], s[44:45]")
        a(f"s_cselect_b64 s[{SV}:{SV+1}], s[36:37], s[46:47]")
        a(f"s_mov_b64 s[36:37], s[40:41]")
        a(f"s_lshl_b32 s{sB}, s{sBr}, 3")
        a(f"s_add_u32 s{sB}, s{sB}, s{sBt}")
        a(f"s_mul_i32 s{sB}, s{sB}, {48*8192}")
        a(f"s_add_u32 s{sB}, s{sB}, s{sD}")
        a(f"s_add_u32 s{SO}, s52, s{sB}")
        a(f"s_addc_u32 s{SO+1}, s53, 0")
        a(f"s_sub_u32 s{SO+2}, {48*8192}, s{sD}")
        a(f"s_mov_b32 s{SO+3}, 0x20000")
        a(f"s_lshl_b32 s{sB}, s{sBt}, 2")
        a(f"s_add_u32 s{sB}, s{sB}, s{sKvh}")
        a(f"s_lshl_b32 s{sB}, s{sB}, 18")
        a(f"s_add_u32 s{SK}, s{SK}, s{sB}")
        a(f"s_addc_u32 s{SK+1}, s{SK+1}, 0")
        a(f"s_mov_b32 s{SK+2}, 262144")
        a(f"s_mov_b32 s{SK+3}, 0x20000")
        a(f"s_add_u32 s{SV}, s{SV}, s{sB}")
        a(f"s_addc_u32 s{SV+1}, s{SV+1}, 0")
        a(f"s_mov_b32 s{SV+2}, 262144")
        a(f"s_mov_b32 s{SV+3}, 0x20000")
        a(f"s_mov_b32 s{STCH+2}, 262144")
        a(f"s_mov_b32 s{STCH+3}, 0x20000")
        a(f"s_lshl_b32 s{sB}, s{sBr}, 3")
        a(f"s_add_u32 s{sB}, s{sB}, s{sBt}")
        a(f"s_lshl_b32 s{sGrp}, s{sB}, 4")
        a(f"s_lshl_b32 s{sB}, s{sB}, 8")
        a(f"s_add_u32 s{sB}, s{sB}, {FLAGOFF}")
        a(f"s_add_u32 s{SFL}, s52, s{sB}")
        a(f"s_addc_u32 s{SFL+1}, s53, 0")
        a(f"s_mov_b32 s{SFL+2}, 64")
        a(f"s_mov_b32 s{SFL+3}, 0x20000")
        a(f"s_load_dwordx2 s[{sTok}:{sTok+1}], s[{SX}:{SX+1}], 0")
        a(f"s_lshl_b32 s{sIdx}, s{sKvh}, 2")
        a(f"s_add_u32 s{sIdx}, s{sIdx}, s{sPair}")

        a(f"v_bfe_u32 v{t0}, v0, 2, 2")
        a(f"v_lshlrev_b32 v{t0}, 8, v{t0}")
        a(f"v_lshrrev_b32 v{t1}, 4, v0")
        a(f"v_lshl_add_u32 v{t0}, v{t1}, 6, v{t0}")
        a(f"v_and_b32 v{t1}, 3, v0")
        a(f"v_lshl_add_u32 v{vVoff}, v{t1}, 4, v{t0}")
        a(f"s_lshl_b32 s{sB}, s{sKq}, 4")
        a(f"v_xor_b32 v{vKoff}, s{sB}, v{vVoff}")

    def kread(n):
        a(f"ds_read_b128 {vr(F+4*n,4)}, v{KA0 + (n & 1)} offset:{(n >> 1)*256}")
    def setup2():
        a(f"v_and_b32 v{t0}, 31, v0")
        a(f"v_lshrrev_b32 v{t1}, 5, v0")
        a(f"v_and_b32 v{t2}, 15, v0")
        a(f"v_xor_b32 v{t2}, v{t1}, v{t2}")
        a(f"v_lshlrev_b32 v{t2}, 4, v{t2}")
        a(f"v_lshl_add_u32 v{t2}, v{t0}, 8, v{t2}")
        a(f"s_lshl_b32 s{sA}, s{sQt}, 13")
        a(f"s_add_u32 s{sA}, s{sA}, {XBASE}")
        a(f"v_add_u32 v{vTb}, s{sA}, v{t2}")
        a(f"v_lshrrev_b32 v{t2}, 2, v{t0}")
        a(f"v_and_b32 v{t3}, 3, v{t2}")
        a(f"v_xor_b32 v{t3}, v{t1}, v{t3}")
        a(f"v_lshlrev_b32 v{t3}, 4, v{t3}")
        a(f"v_lshl_add_u32 v{t3}, v{t2}, 10, v{t3}")
        a(f"v_and_b32 v{t2}, 3, v0")
        a(f"v_lshl_add_u32 v{t3}, v{t2}, 6, v{t3}")
        a(f"s_lshl_b32 s{sA}, s{sKq}, 13")
        a(f"v_add_u32 v{KA0}, s{sA}, v{t3}")
        a(f"v_xor_b32 v{KA1}, 32, v{KA0}")
        a(f"v_bfe_u32 v{t2}, v0, 2, 2")
        a(f"v_lshlrev_b32 v{t2}, 6, v{t2}")
        a(f"v_lshl_add_u32 v{t2}, v{t1}, 10, v{t2}")
        a(f"v_bfe_u32 v{t3}, v0, 4, 1")
        a(f"v_lshl_add_u32 v{t2}, v{t3}, 5, v{t2}")
        a(f"v_bfe_u32 v{t3}, v0, 1, 1")
        a(f"v_lshl_add_u32 v{t2}, v{t3}, 4, v{t2}")
        a(f"v_and_b32 v{t3}, 1, v0")
        a(f"v_lshl_add_u32 v{t2}, v{t3}, 3, v{t2}")
        a(f"s_add_u32 s{sA}, s{sA}, 32768")
        a(f"v_add_u32 v{VA}, s{sA}, v{t2}")
        for j in range(4):
            a(f"s_sub_u32 s{sA}, s{sQt}, 1")
            a(f"s_lshl_b32 s{sA}, s{sA}, 1")
            a(f"s_add_u32 s{sA}, s{sA}, {j >> 1}")
            a(f"s_add_u32 s{sB}, s{sKq}, {4*(j & 1)}")
            a(f"s_lshl_b32 s{sB}, s{sB}, 10")
            a(f"s_lshl_b32 s{sD}, s{sA}, 16")
            a(f"s_add_u32 s{sG[j]}, s{sD}, s{sB}")
            a(f"s_lshl_b32 s{sD}, s{sA}, 13")
            a(f"s_add_u32 s{sL[j]}, s{sD}, s{sB}")
        a(f"s_mov_b32 s{sStep}, 0")
        a(f"s_mov_b32 s{sKn}, {4*32768}")
        a(f"s_mov_b32 s{sVn}, 0")
        a(f"s_mov_b32 s{sGstep}, 16384")
        a(f"s_mov_b32 s{sKc}, 65536")
        a(f"s_mov_b32 s{sVc}, 32768")
        a(f"s_mov_b32 s{sThr}, 0xff800000")
        a(f"s_mov_b32 s{sFloor}, 0xff800000")
        a(f"s_mov_b32 s{sOne}, 0")
        for r in range(0, 16, 2):
            a(f"v_mov_b64 {vr(NM+r,2)}, 0")

    def issueW(slot_expr_sgpr, goff_sgpr, vreg):
        for j in range(8):
            m1, m3, m4 = j & 1, (j >> 1) & 1, (j >> 2) & 1
            dm = 2*m1 + 8*m3 + 16*m4
            a(f"s_add_u32 m0, s{slot_expr_sgpr}, {dm*1024}")
            a(f"s_add_u32 s{sA}, s{goff_sgpr}, {dm*16384}")
            a(f"buffer_load_dwordx4 v{vreg}, s[{SWQ}:{SWQ+3}], s{sA} offen{NTQ} lds")
    def issueX(slot_sgpr, goff_sgpr):
        for j in range(3):
            a(f"s_add_u32 m0, s{slot_sgpr}, {j*4096}")
            a(f"s_add_u32 s{sA}, s{goff_sgpr}, {j*16*2048}")
            a(f"buffer_load_dwordx4 v{vXo}, s[{SX}:{SX+3}], s{sA} offen{NTX} lds")
    a(f"v_lshrrev_b32 v{t0}, 5, v0")
    a(f"v_and_b32 v{t1}, 31, v0")
    a(f"s_and_b32 s{sE}, s{sKq}, 1")
    a(f"s_lshl_b32 s{sE}, s{sE}, 1")
    a(f"s_lshr_b32 s{sB}, s{sKq}, 1")
    a(f"s_lshl_b32 s{sB}, s{sB}, 2")
    a(f"s_or_b32 s{sE}, s{sE}, s{sB}")
    a(f"v_or_b32 v{t2}, s{sE}, v{t0}")
    a(f"v_lshlrev_b32 v{t2}, 1, v{t2}")
    a(f"v_xor_b32 v{t2}, v{t1}, v{t2}")
    a(f"v_lshlrev_b32 v{t2}, 4, v{t2}")
    a(f"v_lshl_add_u32 v{vWo}, v{t0}, 13, v{t2}")
    a(f"s_and_b32 s{sE}, s{sKq}, 1")
    a(f"s_or_b32 s{sE}, s{sE}, s{sB}")
    a(f"s_lshl_b32 s{sB}, s{sE}, 14")
    a(f"v_add_u32 v{vWo}, s{sB}, v{vWo}")
    a(f"s_lshl_b32 s{sWs}, s{sE}, 10")
    if ROT == 1:
        a(f"s_lshl_b32 s{sXg}, s{sPair}, 1")
        a(f"s_add_u32 s{sXg}, s{sXg}, s{sBt}")
        a(f"s_and_b32 s{sXg}, s{sXg}, 7")
        a(f"s_lshl_b32 s{sWg}, s{sXg}, 20")
        a(f"s_lshl_b32 s{sXg}, s{sXg}, 8")
    elif ROT == 4:
        a(f"s_add_u32 s{sXg}, s{sPair}, s{sBt}")
        a(f"s_and_b32 s{sXg}, s{sXg}, 3")
        a(f"s_lshl_b32 s{sXg}, s{sXg}, 1")
        a(f"s_lshl_b32 s{sWg}, s{sXg}, 20")
        a(f"s_lshl_b32 s{sXg}, s{sXg}, 8")
    elif ROT == 2:
        a(f"s_add_u32 s{sXg}, s{sPair}, s{sBt}")
        a(f"s_and_b32 s{sXg}, s{sXg}, 1")
        a(f"s_lshl_b32 s{sXg}, s{sXg}, 2")
        a(f"s_lshl_b32 s{sWg}, s{sXg}, 20")
        a(f"s_lshl_b32 s{sXg}, s{sXg}, 8")
    else:
        a(f"s_mov_b32 s{sXg}, 0")
        a(f"s_mov_b32 s{sWg}, 0")
    a(f"s_cmp_ge_u32 s{sW}, 8")
    a("s_cbranch_scc1 K1_LOADER")
    a(f"s_add_u32 s{sB}, s{sQt}, 1")
    a(f"s_lshl_b32 s{sE}, s{sB}, 15")
    a(f"s_add_u32 s{sWs}, s{sWs}, s{sE}")
    a(f"s_lshl_b32 s{sE}, s{sB}, 19")
    a(f"s_add_u32 s{sWg}, s{sWg}, s{sE}")
    a(f"s_and_b32 s{sWg}, s{sWg}, 0x7fffff")
    srd1()
    if not opt.get("latew", 1):
        issueW(sWs, sWg, vWo)

    a.c("phase 1 compute")
    a(f"v_bfe_u32 v{t0}, v0, 2, 2")
    a(f"v_lshrrev_b32 v{t1}, 4, v0")
    a(f"v_and_b32 v{t2}, 1, v{t1}")
    a(f"v_lshl_or_b32 v{t2}, v{t2}, 2, v{t0}")
    a(f"s_lshl_b32 s{sE}, s{sW}, 1")
    a(f"v_xor_b32 v{t2}, s{sE}, v{t2}")
    a(f"v_lshl_add_u32 v{t3}, v{t1}, 3, v{t0}")
    a(f"v_lshlrev_b32 v{t3}, 9, v{t3}")
    a(f"v_lshl_add_u32 v{t3}, v{t2}, 5, v{t3}")
    a(f"v_and_b32 v{t4}, 3, v0")
    a(f"v_lshl_add_u32 v{WA}, v{t4}, 3, v{t3}")
    a(f"v_xor_b32 v{WA+1}, 32, v{WA}")
    a(f"v_and_b32 v{t0}, 15, v0")
    a(f"v_xor_b32 v{t2}, v{t1}, v{t0}")
    a(f"v_lshlrev_b32 v{t2}, 4, v{t2}")
    a(f"v_lshl_add_u32 v{t2}, v{t0}, 8, v{t2}")
    a(f"v_add_u32 v{XA}, {XBASE:#x}, v{t2}")
    a(f"v_xor_b32 v{XA+1}, 64, v{XA}")
    a(f"v_xor_b32 v{XA+2}, 0x80, v{XA}")
    a(f"v_xor_b32 v{XA+3}, 0xc0, v{XA}")
    for r in range(24):
        a(f"v_mov_b32 v{ACC+r}, 0")
    srd2()
    if opt.get("fused", 1):
        a(f"s_cmp_lg_u32 s{sW}, 1")
        a("s_cbranch_scc1 K1_NOZ")
        a(f"s_lshl_b32 s{sE}, s{sIdx}, 2")
        a(f"v_mov_b32 v{t0}, 0")
        a(f"v_mov_b32 v{t1}, s{sE}")
        a("s_mov_b64 exec, 1")
        a(f"buffer_store_dword v{t0}, v{t1}, s[{SFL}:{SFL+3}], 0 offen sc1")
        a("s_mov_b64 exec, -1")
        a.label("K1_NOZ")
    a(f"v_mov_b32 v{vCs}, {f2u(CSCALE):#x}")
    a(f"v_and_b32 v{t0}, 15, v0")
    a(f"v_lshrrev_b32 v{t1}, 4, v0")
    a(f"s_lshl_b32 s{sE}, s{sKq}, 2")
    a(f"v_lshrrev_b32 v{t2}, 1, v{t1}")
    a(f"v_add_u32 v{t2}, s{sE}, v{t2}")
    a(f"v_xor_b32 v{t2}, v{t2}, v{t0}")
    a(f"v_lshlrev_b32 v{t2}, 4, v{t2}")
    a(f"v_lshl_add_u32 v{t2}, v{t0}, 8, v{t2}")
    a(f"v_and_b32 v{t3}, 1, v{t1}")
    a(f"v_lshl_add_u32 v{t2}, v{t3}, 3, v{t2}")
    a(f"s_mul_i32 s{sE}, s{sQt}, {48*256}")
    a(f"s_add_u32 s{sE}, s{sE}, {XBASE}")
    a(f"v_add_u32 v{QW}, s{sE}, v{t2}")
    a(f"v_xor_b32 v{QW+1}, 32, v{QW}")
    setup2()
    if opt.get("dbgtouch", 0):
        a("s_load_dwordx2 s[82:83], s[0:1], 88")
        a("s_waitcnt lgkmcnt(0)")
        a("v_mov_b32 v162, 0")
        a("global_load_dword v163, v162, s[82:83] sc1")
    if opt.get("latew", 1):
        issueW(sWs, sWg, vWo)
    a(f"s_mov_b32 s{sP}, 0")
    FB = [88, 24]
    def p1_reads(sp):
        fb = FB[sp]
        for ks in range(2):
            for tt in range(2):
                for e in range(2):
                    off = sp * 32768 + ks * 16384 + e * 2048
                    a(f"ds_read_b64_tr_b16 {vr(fb + (tt*2+ks)*4 + e*2, 2)}, v{WA+tt} offset:{off}")
            for rt in range(3):
                a(f"ds_read_b128 {vr(fb + 16 + (rt*2+ks)*4, 4)}, v{XA + sp*2 + ks} offset:{rt*4096}")
    def p1_mfma(sp):
        fb = FB[sp]
        for ks in range(2):
            for rt in range(3):
                for tt in range(2):
                    acc = ACC + (tt*3+rt)*4
                    a(f"{MF16} {vr(acc,4)}, {vr(fb+(tt*2+ks)*4,4)}, {vr(fb+16+(rt*2+ks)*4,4)}, {vr(acc,4)}")
    a("s_barrier")
    P.stamp(2)
    p1_reads(0)
    a("s_waitcnt vmcnt(0) lgkmcnt(0)")
    a("s_branch K1_P1_MID")
    a.label("K1_P1_LOOP")
    a("s_barrier")
    p1_reads(0)
    p1_mfma(1)
    a("s_waitcnt lgkmcnt(0)")
    a.label("K1_P1_MID")
    a("s_barrier")
    p1_reads(1)
    a(f"v_xor_b32 v{WA}, 0x10000, v{WA}")
    a(f"v_xor_b32 v{WA+1}, 0x10000, v{WA+1}")
    for v in range(4):
        a(f"v_xor_b32 v{XA+v}, 0x4000, v{XA+v}")
    p1_mfma(0)
    a(f"s_add_u32 s{sP}, s{sP}, 1")
    a("s_waitcnt lgkmcnt(0)")
    a(f"s_cmp_lt_u32 s{sP}, 8")
    a("s_cbranch_scc1 K1_P1_LOOP")
    a("s_barrier")
    P.stamp(3)
    p1_mfma(1)
    a("s_nop 7")
    for tt in range(2):
        for rt in range(3):
            acc = ACC + (tt*3+rt)*4
            for r in range(4):
                a(f"v_mul_f32 v{acc+r}, v{vCs}, v{acc+r}")
            a(f"v_cvt_pk_bf16_f32 v{acc}, v{acc}, v{acc+1}")
            a(f"v_cvt_pk_bf16_f32 v{acc+1}, v{acc+2}, v{acc+3}")
            a(f"ds_write_b64 v{QW+tt}, {vr(acc,2)} offset:{rt*4096}")
    a("s_waitcnt lgkmcnt(0)")
    a("s_branch K1_JOIN")
    if TOUCH:
        for sp in range(2):
            a.label(f"K1_T1_{sp}")
            a(f"s_cmp_lt_u32 s{sP}, {T2_START//2}")
            a(f"s_cbranch_scc1 K1_T1R_{sp}")
            a(f"s_sub_u32 s{sA}, s{sP}, {T2_START//2}")
            a(f"s_lshl_b32 s{sA}, s{sA}, 13")
            a(f"s_lshl_b32 s{sB}, s{sPair}, 16")
            a(f"s_add_u32 s{sA}, s{sA}, s{sB}")
            srd = SK if sp == 0 else SV
            a(f"buffer_load_dword v{vVoff}, v{vTch}, s[{srd}:{srd+3}], s{sA} offen{NTT}")
            a(f"s_branch K1_T1R_{sp}")

    a.label("K1_LOADER")
    a("s_setprio 3")
    a(f"s_sub_u32 s{sLam}, s{sW}, 8")
    a(f"v_lshrrev_b32 v{t0}, 4, v0")
    a(f"v_and_b32 v{t1}, 15, v0")
    a(f"s_lshl_b32 s{sE}, s{sLam}, 2")
    a(f"v_or_b32 v{t2}, s{sE}, v{t0}")
    a(f"v_xor_b32 v{t3}, v{t1}, v{t2}")
    a(f"v_lshlrev_b32 v{t3}, 4, v{t3}")
    a(f"v_lshl_add_u32 v{vXo}, v{t2}, 11, v{t3}")
    def issueKV_loader(srd, voff, slot, step):
        a(f"s_lshl_b32 s{sB}, s{sLam}, 10")
        for e in range(8):
            lo = slot*32768 + (e >> 1)*8192 + (e & 1)*4096
            go = (e >> 1)*65536 + step*8192 + (e & 1)*4096
            a(f"s_add_u32 m0, s{sB}, {lo}")
            a(f"s_add_u32 s{sA}, s{sB}, {go}")
            a(f"buffer_load_dwordx4 v{voff}, s[{srd}:{srd+3}], s{sA} offen{NTD} lds")
    a(f"s_lshl_b32 s{sXs}, s{sLam}, 10")
    a(f"s_add_u32 s{sXs}, s{sXs}, {XBASE}")
    srd1()
    P.stamp(9)
    def nextW():
        a(f"s_add_u32 s{sWs}, s{sWs}, 32768")
        a(f"s_and_b32 s{sWs}, s{sWs}, 0x1ffff")
        a(f"s_add_u32 s{sWg}, s{sWg}, 524288")
        a(f"s_and_b32 s{sWg}, s{sWg}, 0x7fffff")
    def nextX():
        a(f"s_xor_b32 s{sXs}, s{sXs}, 0x4000")
        a(f"s_add_u32 s{sXg}, s{sXg}, 256")
        a(f"s_and_b32 s{sXg}, s{sXg}, 0x7ff")
    issueX(sXs, sXg)
    issueW(sWs, sWg, vWo)
    P.stamp(10)
    a(f"s_add_u32 s{sWs}, s{sWs}, {3*32768}")
    a(f"s_add_u32 s{sWg}, s{sWg}, {3*524288}")
    a(f"s_and_b32 s{sWg}, s{sWg}, 0x7fffff")
    srd2()
    setup2()
    a(f"s_mov_b32 s{sP}, 0")
    a("s_waitcnt vmcnt(0)")
    P.stamp(11)
    a("s_setprio 0")
    a("s_barrier")
    a("s_branch K1_LD_MID")
    a.label("K1_LD_LOOP")
    a("s_waitcnt vmcnt(16)")
    a("s_barrier")
    a.label("K1_LD_MID")
    nextX(); issueX(sXs, sXg)
    issueW(sWs, sWg, vWo); nextW()
    a("s_waitcnt vmcnt(19)")
    a("s_barrier")
    issueW(sWs, sWg, vWo); nextW()
    a(f"s_add_u32 s{sP}, s{sP}, 1")
    a(f"s_cmp_lt_u32 s{sP}, 6")
    a("s_cbranch_scc1 K1_LD_LOOP")
    a("s_waitcnt vmcnt(16)")
    a("s_barrier")
    nextX(); issueX(sXs, sXg)
    issueW(sWs, sWg, vWo)
    a("s_waitcnt vmcnt(19)")
    a("s_barrier")
    issueKV_loader(SK, vKoff, 0, 0)
    a("s_waitcnt vmcnt(16)")
    a("s_barrier")
    issueKV_loader(SV, vVoff, 1, 0)
    a("s_waitcnt vmcnt(16)")
    a("s_barrier")
    issueKV_loader(SK, vKoff, 2, 1)
    a("s_barrier")
    issueKV_loader(SV, vVoff, 3, 1)
    a("s_waitcnt vmcnt(8)")

    a.label("K1_JOIN")
    if TOUCH:
        a(f"s_cmp_ge_u32 s{sW}, 4")
        a("s_cbranch_scc1 K1_NOTCH")
        a(f"v_lshlrev_b32 v{vKoff}, 7, v0")
        a.label("K1_NOTCH")
    a("s_barrier")
    for ks in range(8):
        a(f"v_xor_b32 v{vMx}, {ks << 5:#x}, v{vTb}")
        a(f"ds_read_b128 {vr(Q+4*ks,4)}, v{vMx}")
    for ks in range(8):
        kread(ks)
    a(f"s_mov_b32 s{sDk}, 65536")
    a(f"s_cmp_lt_u32 s{sW}, 8")
    a(f"s_cselect_b32 s{sTl}, {opt.get('wotstep', 6)}, 99")
    a("s_waitcnt lgkmcnt(0)")
    a(f"s_lshl_b32 s{sA}, s{sTok+1}, 7")
    a(f"s_xor_b32 s{sTok}, s{sTok}, s{sA}")
    a(f"s_or_b32 s{sTok}, s{sTok}, 1")
    P.stamp(4)
    a(f"s_cmp_ge_u32 s{sW}, 4")
    a("s_cbranch_scc1 K1_B_BAR")
    a("s_branch K1_A_BAR")

    def rot(sreg):
        a(f"s_add_u32 s{sreg}, s{sreg}, 65536")
        a(f"s_cmp_ge_u32 s{sreg}, 163840")
        a(f"s_cselect_b32 s{sA}, 163840, 0")
        a(f"s_sub_u32 s{sreg}, s{sreg}, s{sA}")

    LIGHT = opt.get("light", 0)
    def ls(k):
        if LIGHT: a(f"s_memtime s[{84+2*k}:{85+2*k}]")
    def step_body(v):
        isB = (v == "B")
        dodma = isB and not (AB & 1)
        def dma(kind, j):
            if not dodma: return
            if kind == 'V':
                a(f"s_add_u32 m0, s{sVn}, s{sL[j]}")
                a(f"s_add_u32 s{sA}, s{sGstep}, s{sG[j]}")
                a(f"buffer_load_dwordx4 v{vVoff}, s[{SV}:{SV+3}], s{sA} offen{NTD} lds")
            else:
                a(f"s_add_u32 m0, s{sKn}, s{sL[j]}")
                a(f"s_add_u32 s{sA}, s{sGstep}, s{sG[j]}")
                a(f"buffer_load_dwordx4 v{vKoff}, s[{SK}:{SK+3}], s{sA} offen{NTD} lds")
        def vreads(kk):
            if AB & 2:
                for _ in range(8): a("s_nop 0")
                return
            for dt in range(4):
                for e in range(2):
                    a(f"ds_read_b64_tr_b16 {vr(F+(kk*4+dt)*4+2*e,2)}, v{VA} offset:{kk*4096+e*2048+dt*256}")
        a.label(f"K1_{v}_TOP")
        a(f"s_waitcnt {'vmcnt(4) ' if isB else ''}lgkmcnt(0)")
        a.label(f"K1_{v}_BAR")
        if PRIO: a(f"s_setprio {PQ}")
        if v == "B" or True: ls(0)
        a("s_barrier")
        ls(1)
        def vread1(n):
            if AB & 2: return
            kk, dt = n >> 2, n & 3
            for e in range(2):
                a(f"ds_read_b64_tr_b16 {vr(F+n*4+2*e,2)}, v{VA} offset:{kk*4096+e*2048+dt*256}")
        for ks in range(8):
            cin = vr(NM,16) if ks == 0 else vr(S,16)
            a(f"{MF32} {vr(S,16)}, {vr(F+4*ks,4)}, {vr(Q+4*ks,4)}, {cin}")
            if ks < 7: vread1(ks)
            if ks == 0:
                a(f"v_add_u32 v{KA0}, s{sDk}, v{KA0}")
                a(f"v_add_u32 v{KA1}, s{sDk}, v{KA1}")
                a(f"s_mov_b32 s{sDk}, s{sKc}")
            if ks == 2:
                rot(sKc)
            if ks == 4:
                a(f"s_sub_u32 s{sDk}, s{sKc}, s{sDk}")
                a(f"s_mov_b32 s{sDv}, s{sVc}")
                a(f"s_add_u32 s{sVc}, s{sVc}, 65536")
                a(f"s_cmp_ge_u32 s{sVc}, 163840")
            if ks == 4:
                a(f"s_cselect_b32 s{sA}, 163840, 0")
                a(f"s_sub_u32 s{sVc}, s{sVc}, s{sA}")
            if ks in (1, 3, 5, 6):
                dma('K', {1: 0, 3: 1, 5: 2, 6: 3}[ks])
        ls(2)
        if PRIO and PS != PQ: a(f"s_setprio {PS}")
        vread1(7)
        a(f"s_sub_u32 s{sDv}, s{sVc}, s{sDv}")
        a(f"v_add_u32 v{VA}, s{sDv}, v{VA}")
        a("s_nop 7")
        a("s_nop 0")
        a(f"v_max3_f32 v{vMx}, v{S+0}, v{S+1}, v{S+2}")
        a(f"v_max3_f32 v{vTb}, v{S+3}, v{S+4}, v{S+5}")
        a(f"v_max3_f32 v{vMx}, v{vMx}, v{S+6}, v{S+7}")
        a(f"v_max3_f32 v{vTb}, v{vTb}, v{S+8}, v{S+9}")
        a(f"v_max3_f32 v{vMx}, v{vMx}, v{S+10}, v{S+11}")
        a(f"v_max3_f32 v{vTb}, v{vTb}, v{S+12}, v{S+13}")
        a(f"v_max3_f32 v{vMx}, v{vMx}, v{S+14}, v{S+15}")
        a(f"v_max_f32 v{vMx}, v{vMx}, v{vTb}")
        a(f"v_cmp_lt_f32 vcc, s{sThr}, v{vMx}")
        a(f"s_cbranch_vccnz K1_{v}_RARE")
        a.label(f"K1_{v}_CONT")
        ls(3)
        for k in range(8):
            if not AB & 8:
                a(f"v_exp_f32 v{S+2*k}, v{S+2*k}")
                a(f"v_exp_f32 v{S+2*k+1}, v{S+2*k+1}")
            if k >= 1 and not AB & 8:
                kk = k - 1
                a(f"v_add_f32 v{vL}, v{vL}, v{S+2*kk}")
                a(f"v_add_f32 v{vL}, v{vL}, v{S+2*kk+1}")
                a(f"v_cvt_pk_bf16_f32 v{S+kk}, v{S+2*kk}, v{S+2*kk+1}")
        a(f"v_add_f32 v{vL}, v{vL}, v{S+14}")
        a(f"v_add_f32 v{vL}, v{vL}, v{S+15}")
        a(f"v_cvt_pk_bf16_f32 v{S+7}, v{S+14}, v{S+15}")
        ls(4)
        if PRIO and PP != PS: a(f"s_setprio {PP}")
        if not LIGHT: a("s_waitcnt lgkmcnt(0)")
        else: a("s_waitcnt lgkmcnt(1)")
        for kk in range(2):
            for dt in range(4):
                n = kk*4 + dt
                a(f"{MF32} {vr(O+16*dt,16)}, {vr(F+(kk*4+dt)*4,4)}, {vr(S+4*kk,4)}, {vr(O+16*dt,16)}")
                if not AB & 4: kread(n)
                if n in (0, 1, 2, 3):
                    dma('V', n)
                if n == 2 and not isB and WOT:
                    a(f"s_cmp_eq_u32 s{sStep}, s{sTl}")
                    a("s_cbranch_scc1 K1_A_TOUCH")
                    a.label("K1_A_TOUCHR")
                if n == 4:
                    a(f"s_add_u32 s{sStep}, s{sStep}, 1")
                if n == 2 and isB:
                    pass
                if n == 4 and isB:
                    rot(sVn)
                if n == 5 and isB:
                    rot(sKn)
                if n == 6 and isB:
                    a(f"s_add_u32 s{sGstep}, s{sGstep}, 8192")
                    if NS2 != 8: a(f"s_and_b32 s{sGstep}, s{sGstep}, 0xffff")
        ls(5)
        if LIGHT:
            a(f"s_cmp_lg_u32 s{sStep}, 41")
            a(f"s_cbranch_scc1 K1_{v}_NOCOPY")
            a("s_waitcnt lgkmcnt(0)")
            for k in range(6):
                a(f"s_mov_b32 s{96+k}, s{84+2*k}")
            a.label(f"K1_{v}_NOCOPY")
        if isB:
            a(f"s_cmp_lt_u32 s{sStep}, {NS2-2}")
            a("s_cbranch_scc1 K1_B_TOP")
            a("s_waitcnt vmcnt(0)")
            a("s_branch K1_A_TOP")
        else:
            a(f"s_cmp_lt_u32 s{sStep}, {NS2}")
            a("s_cbranch_scc1 K1_A_TOP")
            a("s_branch K1_P2_END")
        a.label(f"K1_{v}_RARE")
        a(f"v_mov_b32 v{vTb}, v{vMx}")
        a("s_nop 1")
        a(f"v_permlane32_swap_b32 v{vMx}, v{vTb}")
        a(f"v_max_f32 v{vMx}, v{vMx}, v{vTb}")
        a(f"v_max_f32 v{vMx}, s{sFloor}, v{vMx}")
        a(f"v_max_f32 v{vTb}, 0, v{vMx}")
        a(f"v_sub_f32 v{vTb}, 0, v{vTb}")
        a(f"v_exp_f32 v{vTb}, v{vTb}")
        a(f"s_mov_b32 s{sThr}, {f2u(8.0):#x}")
        a(f"s_mov_b32 s{sFloor}, 0")
        a(f"v_mul_f32 v{vTb}, s{sOne}, v{vTb}")
        a(f"s_mov_b32 s{sOne}, 1.0")
        for r in range(16):
            a(f"v_sub_f32 v{S+r}, v{S+r}, v{vMx}")
        a(f"v_sub_f32 v{NM}, v{NM}, v{vMx}")
        for r in range(1, 16):
            a(f"v_mov_b32 v{NM+r}, v{NM}")
        a(f"v_mul_legacy_f32 v{vL}, v{vL}, v{vTb}")
        for r in range(64):
            a(f"v_mul_legacy_f32 v{O+r}, v{O+r}, v{vTb}")
        a(f"s_branch K1_{v}_CONT")

    step_body("B")
    step_body("A")
    if WOT:
        a.label("K1_A_TOUCH")
        a(f"s_cmp_eq_u32 s{sBr}, 0")
        a(f"s_cselect_b64 s[{STCH}:{STCH+1}], s[{SWOP}:{SWOP+1}], s[50:51]")
        a(f"s_mov_b32 s{STCH+2}, 8388608")
        a(f"v_mbcnt_lo_u32_b32 v{vKoff}, -1, 0")
        a(f"v_mbcnt_hi_u32_b32 v{vKoff}, -1, v{vKoff}")
        a(f"v_and_b32 v{vVoff}, 3, v{vKoff}")
        a(f"v_lshrrev_b32 v{vKoff}, 2, v{vKoff}")
        a(f"v_lshlrev_b32 v{vKoff}, 11, v{vKoff}")
        a(f"v_lshl_add_u32 v{vKoff}, v{vVoff}, 7, v{vKoff}")
        a(f"s_lshr_b32 s{sA}, s2, 3")
        a(f"s_lshl_b32 s{sA}, s{sA}, 3")
        a(f"s_add_u32 s{sA}, s{sA}, s{sW}")
        a(f"s_lshl_b32 s{sA}, s{sA}, 15")
        a(f"s_lshl_b32 s{sB}, s{sKvh}, 9")
        a(f"s_add_u32 s{sA}, s{sA}, s{sB}")
        a(f"buffer_load_dword v{vVoff}, v{vKoff}, s[{STCH}:{STCH+3}], s{sA} offen{NTW}")
        a("s_branch K1_A_TOUCHR")

    a.label("K1_P2_END")
    P.stamp(5)
    FUSED = opt.get("fused", 1)
    SC1 = " sc1" if FUSED else ""
    t0, t1, t2, t3, t4 = NM+2, NM+3, NM+4, NM+5, NM+6
    vLane = NM+7
    STAT, EX, STG = 32768, 36864, 114688
    if FUSED:
        a("s_load_dwordx2 s[48:49], s[0:1], 80")
    a(f"v_mbcnt_lo_u32_b32 v{vLane}, -1, 0")
    a(f"v_mbcnt_hi_u32_b32 v{vLane}, -1, v{vLane}")
    a(f"v_mov_b32 v{t1}, v{vL}")
    a(f"v_sub_f32 v{S}, 0, v{NM}")
    a(f"v_and_b32 v{t0}, 31, v{vLane}")
    a(f"v_permlane32_swap_b32 v{vL}, v{t1}")
    a(f"v_add_f32 v{S+1}, v{vL}, v{t1}")
    a(f"v_lshlrev_b32 v{t0}, 3, v{t0}")
    a(f"s_lshl_b32 s{sA}, s{sQt}, 10")
    a(f"s_add_u32 s{sA}, s{sA}, {STAT}")
    a(f"v_add_u32 v{t0}, s{sA}, v{t0}")
    a(f"s_lshl_b32 s{sB}, s{sKq}, 8")
    a(f"v_add_u32 v{t1}, s{sB}, v{t0}")
    R = Q
    a(f"v_lshlrev_b32 v{t2}, 4, v{vLane}")
    a(f"s_mul_i32 s{sB}, s{sQt}, {4*3*2048}")
    a(f"s_add_u32 s{sB}, s{sB}, {EX}")
    a(f"ds_write_b64 v{t1}, {vr(S,2)}")
    a("s_waitcnt lgkmcnt(1)" if not FUSED else "s_waitcnt lgkmcnt(0)")
    for dt in range(4):
        a(f"s_cmp_eq_u32 s{sKq}, {dt}")
        a(f"s_cbranch_scc1 K1_OWN{dt}")
        a(f"s_sub_u32 s{sA}, s{sKq}, {dt+1}")
        a(f"s_and_b32 s{sA}, s{sA}, 3")
        a(f"s_lshl_b32 s{sA}, s{sA}, 11")
        a(f"s_add_u32 s{sA}, s{sA}, s{sB}")
        a(f"v_add_u32 v{t1}, s{sA}, v{t2}")
        pk = F + 8*dt
        for j in range(8):
            a(f"v_cvt_pk_bf16_f32 v{pk+j}, v{O+16*dt+2*j}, v{O+16*dt+2*j+1}")
        for g2 in range(2):
            a(f"ds_write_b128 v{t1}, {vr(pk+4*g2,4)} offset:{dt*3*2048 + g2*1024}")
        a(f"s_branch K1_NXT{dt}")
        a.label(f"K1_OWN{dt}")
        for r in range(0, 16, 2):
            a(f"v_mov_b64 {vr(R+r,2)}, {vr(O+16*dt+r,2)}")
        a.label(f"K1_NXT{dt}")
    a("s_waitcnt lgkmcnt(0)")
    a("s_barrier")
    ST = S
    for rk in range(3):
        a(f"s_add_u32 s{sA}, s{sKq}, {rk+1}")
        a(f"s_and_b32 s{sA}, s{sA}, 3")
        a(f"s_lshl_b32 s{sA}, s{sA}, 8")
        a(f"v_add_u32 v{t1}, s{sA}, v{t0}")
        a(f"ds_read_b64 {vr(ST+2+2*rk,2)}, v{t1}")
    a(f"s_mul_i32 s{sA}, s{sKq}, {3*2048}")
    a(f"s_add_u32 s{sA}, s{sA}, s{sB}")
    a(f"v_add_u32 v{t1}, s{sA}, v{t2}")
    TT = O
    for rk in range(3):
        for g2 in range(2):
            a(f"ds_read_b128 {vr(TT+8*rk+4*g2,4)}, v{t1} offset:{rk*2048+g2*1024}")
    a(f"v_and_b32 v{t2}, 15, v{vLane}")
    a(f"s_lshl_b32 s{sA}, s{sKq}, 2")
    a(f"v_xor_b32 v{t2}, s{sA}, v{t2}")
    a(f"v_lshlrev_b32 v{t2}, 4, v{t2}")
    a(f"v_and_b32 v{t0}, 31, v{vLane}")
    a(f"v_lshl_add_u32 v{t2}, v{t0}, 8, v{t2}")
    a(f"v_lshrrev_b32 v{t0}, 5, v{vLane}")
    a(f"v_lshl_add_u32 v{t2}, v{t0}, 3, v{t2}")
    a(f"s_lshl_b32 s{sA}, s{sQt}, 13")
    a(f"s_add_u32 s{sA}, s{sA}, {STG}")
    a(f"v_add_u32 v{t2}, s{sA}, v{t2}")
    a("s_waitcnt lgkmcnt(6)")
    mf = t3
    a(f"v_max3_f32 v{mf}, v{ST}, v{ST+2}, v{ST+4}")
    a(f"v_max_f32 v{mf}, v{mf}, v{ST+6}")
    for j in range(4):
        a(f"v_sub_f32 v{ST+2*j}, v{ST+2*j}, v{mf}")
    for j in range(4):
        a(f"v_exp_f32 v{ST+2*j}, v{ST+2*j}")
    a("s_nop 0")
    a(f"v_mul_f32 v{t4}, v{ST}, v{ST+1}")
    for j in range(1, 4):
        a(f"v_fma_f32 v{t4}, v{ST+2*j}, v{ST+2*j+1}, v{t4}")
    a(f"v_rcp_f32 v{t4}, v{t4}")
    a("s_nop 0")
    for j in range(4):
        a(f"v_mul_f32 v{ST+2*j}, v{ST+2*j}, v{t4}")
    for r in range(16):
        a(f"v_mul_f32 v{R+r}, v{R+r}, v{ST}")
    UL, UH = O+32, O+33
    for rk in range(3):
        a(f"s_waitcnt lgkmcnt({4-2*rk})")
        for j in range(8):
            p = TT + 8*rk + j
            a(f"v_lshlrev_b32 v{UL+2*(j&1)}, 16, v{p}")
            a(f"v_and_b32 v{UH+2*(j&1)}, 0xffff0000, v{p}")
            a(f"v_fma_f32 v{R+2*j}, v{UL+2*(j&1)}, v{ST+2+2*rk}, v{R+2*j}")
            a(f"v_fma_f32 v{R+2*j+1}, v{UH+2*(j&1)}, v{ST+2+2*rk}, v{R+2*j+1}")
    PK = F
    for g in range(4):
        a(f"v_cvt_pk_bf16_f32 v{PK+2*g}, v{R+4*g}, v{R+4*g+1}")
        a(f"v_cvt_pk_bf16_f32 v{PK+2*g+1}, v{R+4*g+2}, v{R+4*g+3}")
        a(f"v_xor_b32 v{t0}, {g << 4}, v{t2}")
        a(f"ds_write_b64 v{t0}, {vr(PK+2*g,2)}")
    a(f"v_lshrrev_b32 v{t0}, 4, v{vLane}")
    a(f"s_lshl_b32 s{sA}, s{sW}, 3")
    a(f"v_add_u32 v{t0}, s{sA}, v{t0}")
    a(f"v_and_b32 v{t1}, 15, v{vLane}")
    a(f"v_lshlrev_b32 v{t3}, 8, v{t0}")
    a(f"v_lshl_add_u32 v{t3}, v{t1}, 4, v{t3}")
    a(f"v_add_u32 v{t3}, {STG}, v{t3}")
    a(f"v_and_b32 v{t4}, 15, v{t0}")
    a(f"v_xor_b32 v{t1}, v{t1}, v{t4}")
    a(f"s_cmp_ge_u32 s{sW}, 6")
    a(f"s_cselect_b32 s{sA}, {256 - 48*8192}, 0")
    a(f"v_lshlrev_b32 v{t0}, 13, v{t0}")
    a(f"v_add_u32 v{t0}, s{sA}, v{t0}")
    a(f"v_lshl_add_u32 v{t4}, v{t1}, 4, v{t0}")
    a(f"v_xor_b32 v{t1}, 4, v{t1}")
    a(f"v_lshl_add_u32 v{t0}, v{t1}, 4, v{t0}")
    a(f"v_add_u32 v{t0}, {4*8192}, v{t0}")
    a("s_waitcnt lgkmcnt(0)")
    a("s_barrier")
    a(f"ds_read_b128 {vr(PK,4)}, v{t3}")
    a(f"ds_read_b128 {vr(PK+4,4)}, v{t3} offset:1024")
    a("s_waitcnt lgkmcnt(1)")
    a(f"buffer_store_dwordx4 {vr(PK,4)}, v{t4}, s[{SO}:{SO+3}], 0 offen{SC1}")
    a("s_waitcnt lgkmcnt(0)")
    a(f"buffer_store_dwordx4 {vr(PK+4,4)}, v{t0}, s[{SO}:{SO+3}], 0 offen{SC1}")
    P.stamp(6)
    if not FUSED:
        if PROF: a("s_waitcnt vmcnt(0)")
        P.stamp(7)
        P.stamp(8, real=True)
        if LIGHT:
            for k in range(6):
                a(f"s_mov_b32 s{84+2+k}, s{96+k}")
        P.dump(52, sW, 64 << 20, 12)
        a.label("K1_END")
        a("s_endpgm")
        return NV
    a(f"v_mov_b32 v0, v{vLane}")
    a("s_waitcnt vmcnt(0)")
    a("s_barrier")
    P.stamp(7)
    outproj(a, opt, P, fused=True)
    a.label("K1_END")
    a("s_endpgm")
    return NV

def kernel2(a, opt):
    a.label("k2_kernel")
    a("s_cmp_ge_u32 s2, 256")
    a("s_cbranch_scc1 K2_END")
    P = Prof(a, 64, 62, 40)
    P.init(12)
    P.stamp(0, real=True)
    P.stamp(1)
    a("s_load_dwordx2 s[36:37], s[0:1], 32")
    a("s_load_dwordx2 s[50:51], s[0:1], 72")
    a("s_load_dwordx2 s[48:49], s[0:1], 80")
    a("s_load_dwordx2 s[52:53], s[0:1], 96")
    a("v_lshrrev_b32 v1, 6, v0")
    a("v_and_b32 v0, 63, v0")
    a("v_readfirstlane_b32 s4, v1")
    a("s_and_b32 s5, s2, 3")
    a("s_bfe_u32 s6, s2, 0x10002")
    a("s_lshr_b32 s7, s2, 5")
    a("s_bfe_u32 s3, s2, 0x20003")
    a("s_waitcnt lgkmcnt(0)")
    nv = outproj(a, opt, P, fused=False)
    a.label("K2_END")
    a("s_endpgm")
    return nv

def outproj(a, opt, P, fused):
    sW = 4
    NTW2 = " nt" if opt.get("ntw2", 0) else ""
    XFL = " sc1" if (fused and opt.get("xsc1", 1)) else ""
    SX, SWO, SO, SFL = 8, 12, 16, 28
    sA, sB, sD, sLam, sP = 20, 21, 22, 23, 24
    sSl, sWg, sXg = 25, 26, 27
    NS = 5
    STG = 28672
    t0, t1, t2, t3, t4 = 1, 2, 3, 4, 5
    WA = 6
    XA = 10
    vWo, vXo = 6, 7
    ACC = 12
    FR = 60
    NV = 116
    END = "K1_END" if fused else "K2_END"
    if fused:
        a(f"s_cmp_lg_u32 s{sW}, 0")
        a("s_cbranch_scc1 OP_NOFLAG")
        a(f"s_lshl_b32 s{sA}, s46, 2")
        a(f"v_mov_b32 v{t0}, s96")
        a(f"v_mov_b32 v{t1}, s{sA}")
        a("s_mov_b64 exec, 1")
        a(f"buffer_store_dword v{t0}, v{t1}, s[{SFL}:{SFL+3}], 0 offen sc1")
        a("s_mov_b64 exec, -1")
        a.label("OP_NOFLAG")
        a(f"s_cmp_gt_u32 s{sW}, 8")
        a(f"s_cbranch_scc1 {END}")
        a(f"s_cmp_eq_u32 s{sW}, 8")
        a("s_cbranch_scc1 OP_POLL")
    a("s_cmp_eq_u32 s6, 0")
    a(f"s_cselect_b64 s[{SWO}:{SWO+1}], s[36:37], s[50:51]")
    a(f"s_lshl_b32 s{sA}, s5, 9")
    a(f"s_lshl_b32 s{sB}, s3, 7")
    a(f"s_add_u32 s{sA}, s{sA}, s{sB}")
    a(f"s_add_u32 s{SWO}, s{SWO}, s{sA}")
    a(f"s_addc_u32 s{SWO+1}, s{SWO+1}, 0")
    a(f"s_sub_u32 s{SWO+2}, 8388608, s{sA}")
    a(f"s_mov_b32 s{SWO+3}, 0x20000")
    a(f"s_lshl_b32 s{sB}, s6, 3")
    a(f"s_add_u32 s{sB}, s{sB}, s7")
    a(f"s_mul_i32 s{sD}, s{sB}, {48*8192}")
    a(f"s_add_u32 s{SX}, s52, s{sD}")
    a(f"s_addc_u32 s{SX+1}, s53, 0")
    a(f"s_mov_b32 s{SX+2}, {48*8192}")
    a(f"s_mov_b32 s{SX+3}, 0x20000")
    a(f"s_mul_i32 s{sD}, s7, {48*4096}")
    a(f"s_lshl_b32 s{sB}, s6, 11")
    a(f"s_add_u32 s{sB}, s{sB}, s{sA}")
    a(f"s_add_u32 s{sD}, s{sD}, s{sB}")
    a(f"s_add_u32 s{SO}, s48, s{sD}")
    a(f"s_addc_u32 s{SO+1}, s49, 0")
    a(f"s_sub_u32 s{SO+2}, {48*4096}, s{sB}")
    a(f"s_mov_b32 s{SO+3}, 0x20000")
    a(f"s_cmp_ge_u32 s{sW}, 4")
    a("s_cbranch_scc1 OP_LOADER")
    a(f"v_bfe_u32 v{t0}, v0, 2, 2")
    a(f"v_lshrrev_b32 v{t1}, 4, v0")
    a(f"v_lshl_add_u32 v{t2}, v{t1}, 3, v{t0}")
    a(f"s_lshl_b32 s{sA}, s{sW}, 5")
    a(f"v_add_u32 v{t2}, s{sA}, v{t2}")
    a(f"v_lshlrev_b32 v{t2}, 7, v{t2}")
    a(f"v_bfe_u32 v{t3}, v0, 3, 1")
    a(f"v_bfe_u32 v{t4}, v0, 4, 1")
    a(f"v_lshl_or_b32 v{t3}, v{t4}, 1, v{t3}")
    a(f"v_lshl_add_u32 v{t2}, v{t3}, 5, v{t2}")
    a(f"v_and_b32 v{t3}, 3, v0")
    a(f"v_lshl_add_u32 v{WA}, v{t3}, 3, v{t2}")
    for t in range(1, 4):
        a(f"v_xor_b32 v{WA+t}, {t << 5}, v{WA}")
    a(f"v_and_b32 v{t0}, 15, v0")
    a(f"s_lshl_b32 s{sA}, s{sW}, 2")
    a(f"v_add_u32 v{t2}, s{sA}, v{t1}")
    a(f"v_xor_b32 v{t2}, v{t2}, v{t0}")
    a(f"v_lshlrev_b32 v{t2}, 4, v{t2}")
    a(f"v_lshl_add_u32 v{t2}, v{t0}, 8, v{t2}")
    a(f"v_add_u32 v{XA}, 16384, v{t2}")
    for r in range(0, 48, 2):
        a(f"v_mov_b64 {vr(ACC+r,2)}, 0")
    def reads(buf):
        fb = FR + buf*28
        for t in range(4):
            for e in range(2):
                a(f"ds_read_b64_tr_b16 {vr(fb+4*t+2*e,2)}, v{WA+t} offset:{e*512}")
        for rt in range(3):
            a(f"ds_read_b128 {vr(fb+16+4*rt,4)}, v{XA} offset:{rt*4096}")
    def adv():
        a(f"s_add_u32 s{sA}, s{sSl}, {STG}")
        a(f"s_cmp_ge_u32 s{sA}, {NS*STG}")
        a(f"s_cselect_b32 s{sB}, {NS*STG}, 0")
        a(f"s_sub_u32 s{sA}, s{sA}, s{sB}")
        a(f"s_sub_u32 s{sD}, s{sA}, s{sSl}")
        a(f"s_mov_b32 s{sSl}, s{sA}")
        for t in range(4):
            a(f"v_add_u32 v{WA+t}, s{sD}, v{WA+t}")
        a(f"v_add_u32 v{XA}, s{sD}, v{XA}")
    def mfmas(buf):
        fb = FR + buf*28
        for rt in range(3):
            for t in range(4):
                acc = ACC + (t*3+rt)*4
                a(f"{MF16} {vr(acc,4)}, {vr(fb+4*t,4)}, {vr(fb+16+4*rt,4)}, {vr(acc,4)}")
    a(f"s_mov_b32 s{sSl}, 0")
    if fused: a("s_barrier")
    a("s_barrier")
    P.stamp(9 if fused else 2)
    reads(0); adv()
    a("s_waitcnt lgkmcnt(0)")
    a(f"s_mov_b32 s{sP}, 0")
    a.label("OP_C_LOOP")
    for half in range(2):
        a("s_barrier")
        reads(1-half); adv()
        mfmas(half)
        a("s_waitcnt lgkmcnt(0)")
        if half == 0:
            a(f"s_cmp_eq_u32 s{sP}, 15")
            a("s_cbranch_scc1 OP_C_DONE")
    a(f"s_add_u32 s{sP}, s{sP}, 1")
    a("s_branch OP_C_LOOP")
    a.label("OP_C_DONE")
    mfmas(1)
    P.stamp(10 if fused else 3)
    a("s_barrier")
    a("s_nop 7")
    a(f"v_lshlrev_b32 v{t0}, 4, v0")
    a(f"s_mul_i32 s{sA}, s{sW}, 12288")
    a(f"v_add_u32 v{t1}, s{sA}, v{t0}")
    for tile in range(12):
        a(f"ds_write_b128 v{t1}, {vr(ACC+4*tile,4)} offset:{tile*1024}")
    a("s_waitcnt lgkmcnt(0)")
    a("s_barrier")
    a(f"s_mul_i32 s{sA}, s{sW}, 3072")
    a(f"v_add_u32 v{t1}, s{sA}, v{t0}")
    for src in range(4):
        for rt in range(3):
            a(f"ds_read_b128 {vr(ACC+(src*3+rt)*4,4)}, v{t1} offset:{src*12288+rt*1024}")
    a("s_waitcnt lgkmcnt(0)")
    for rt in range(3):
        for r in range(4):
            d = ACC + rt*4 + r
            a(f"v_add_f32 v{d}, v{d}, v{d+12}")
            a(f"v_add_f32 v{d+24}, v{d+24}, v{d+36}")
        for r in range(4):
            d = ACC + rt*4 + r
            a(f"v_add_f32 v{d}, v{d}, v{d+24}")
        d = ACC + rt*4
        a(f"v_cvt_pk_bf16_f32 v{d}, v{d}, v{d+1}")
        a(f"v_cvt_pk_bf16_f32 v{d+1}, v{d+2}, v{d+3}")
    a(f"v_and_b32 v{t0}, 15, v0")
    a(f"v_lshrrev_b32 v{t1}, 4, v0")
    a(f"v_lshlrev_b32 v{t0}, 12, v{t0}")
    a(f"v_lshl_add_u32 v{t0}, v{t1}, 3, v{t0}")
    a(f"s_lshl_b32 s{sA}, s{sW}, 5")
    a(f"v_add_u32 v{t0}, s{sA}, v{t0}")
    for rt in range(3):
        a(f"s_mov_b32 s{sA}, {rt*16*4096}")
        a(f"buffer_store_dwordx2 {vr(ACC+rt*4,2)}, v{t0}, s[{SO}:{SO+3}], s{sA} offen")
    if fused:
        P.stamp(11)
        P.stamp(8, real=True)
        P.dump(52, sW, 64 << 20, 12)
    else:
        P.stamp(4)
        if PROF: a("s_waitcnt vmcnt(0)")
        P.stamp(5)
        P.stamp(6, real=True)
        P.dump(52, sW, 65 << 20, 12)
    a("s_endpgm")

    if fused:
        a.label("OP_POLL")
        a(f"v_lshlrev_b32 v{t0}, 2, v0")
        a("s_mov_b64 exec, 0xffff")
        a(f"s_mov_b32 s{sP}, 0")
        a.label("OP_POLL_LOOP")
        a(f"buffer_load_dword v4, v{t0}, s[{SFL}:{SFL+3}], 0 offen sc1")
        a("s_waitcnt vmcnt(0)")
        a("v_cmp_eq_u32 vcc, s96, v4")
        a("s_nop 1")
        a("s_cmp_eq_u32 vcc_lo, 0xffff")
        a("s_cbranch_scc1 OP_POLL_DONE")
        a(f"s_sleep {opt.get('psleep', 2)}")
        a(f"s_add_u32 s{sP}, s{sP}, 1")
        a(f"s_cmp_lt_u32 s{sP}, 400000")
        a("s_cbranch_scc1 OP_POLL_LOOP")
        a.label("OP_POLL_DONE")
        P.stamp(9)
        if PROF: a(f"s_mov_b32 s{P.base+10}, s{sP}")
        a("s_barrier")
        P.dump(52, sW, 64 << 20, 12)
        a("s_endpgm")

    a.label("OP_LOADER")
    a(f"s_sub_u32 s{sLam}, s{sW}, 4")
    a(f"v_lshrrev_b32 v{t0}, 3, v0")
    a(f"v_and_b32 v{t1}, 7, v0")
    a(f"v_bfe_u32 v{t2}, v0, 4, 1")
    a(f"s_and_b32 s{sA}, s{sLam}, 1")
    a(f"s_lshl_b32 s{sA}, s{sA}, 1")
    a(f"v_or_b32 v{t2}, s{sA}, v{t2}")
    a(f"v_lshlrev_b32 v{t2}, 1, v{t2}")
    a(f"v_xor_b32 v{t1}, v{t1}, v{t2}")
    a(f"v_lshlrev_b32 v{t1}, 4, v{t1}")
    a(f"s_lshl_b32 s{sA}, s{sLam}, 3")
    a(f"v_add_u32 v{t0}, s{sA}, v{t0}")
    a(f"v_lshl_add_u32 v{vWo}, v{t0}, 11, v{t1}")
    a(f"v_lshrrev_b32 v{t0}, 4, v0")
    a(f"v_and_b32 v{t1}, 15, v0")
    a(f"s_lshl_b32 s{sA}, s{sLam}, 2")
    a(f"v_or_b32 v{t2}, s{sA}, v{t0}")
    a(f"v_xor_b32 v{t1}, v{t1}, v{t2}")
    a(f"v_lshlrev_b32 v{t1}, 4, v{t1}")
    a(f"v_lshl_add_u32 v{vXo}, v{t2}, 13, v{t1}")
    def issueW(slot_s, goff_s):
        for j in range(4):
            a(f"s_add_u32 m0, s{slot_s}, {j*4096}")
            a(f"s_add_u32 s{sA}, s{goff_s}, {j*32*2048}")
            a(f"buffer_load_dwordx4 v{vWo}, s[{SWO}:{SWO+3}], s{sA} offen{NTW2} lds")
    def issueX(slot_s, goff_s):
        for j in range(3):
            a(f"s_add_u32 m0, s{slot_s}, {16384 + j*4096}")
            a(f"s_add_u32 s{sA}, s{goff_s}, {j*16*8192}")
            a(f"buffer_load_dwordx4 v{vXo}, s[{SX}:{SX+3}], s{sA} offen{XFL} lds")
    def advance():
        a(f"s_add_u32 s{sSl}, s{sSl}, {STG}")
        a(f"s_cmp_ge_u32 s{sSl}, s{sD}")
        a(f"s_cselect_b32 s{sB}, {NS*STG}, 0")
        a(f"s_sub_u32 s{sSl}, s{sSl}, s{sB}")
        a(f"s_add_u32 s{sWg}, s{sWg}, {128*2048}")
        a(f"s_add_u32 s{sXg}, s{sXg}, 256")
    def issue():
        issueW(sSl, sWg); issueX(sSl, sXg); advance()
    a(f"s_lshl_b32 s{sSl}, s{sLam}, 10")
    a(f"s_add_u32 s{sD}, s{sSl}, {NS*STG}")
    a(f"s_mov_b32 s{sWg}, 0")
    a(f"s_mov_b32 s{sXg}, 0")
    if fused:
        a(f"s_mov_b32 s{sP}, 0")
        a.label("OP_LW")
        issueW(sSl, sWg)
        a(f"s_add_u32 s{sSl}, s{sSl}, {STG}")
        a(f"s_add_u32 s{sWg}, s{sWg}, {128*2048}")
        a(f"s_add_u32 s{sP}, s{sP}, 1")
        a(f"s_cmp_lt_u32 s{sP}, 5")
        a("s_cbranch_scc1 OP_LW")
        a(f"s_lshl_b32 s{sSl}, s{sLam}, 10")
        P.stamp(9)
        a("s_barrier")
        P.stamp(10)
        a(f"s_mov_b32 s{sP}, 0")
        a.label("OP_LX")
        issueX(sSl, sXg)
        a(f"s_add_u32 s{sSl}, s{sSl}, {STG}")
        a(f"s_add_u32 s{sXg}, s{sXg}, 256")
        a(f"s_add_u32 s{sP}, s{sP}, 1")
        a(f"s_cmp_lt_u32 s{sP}, 5")
        a("s_cbranch_scc1 OP_LX")
        a(f"s_lshl_b32 s{sSl}, s{sLam}, 10")
        a("s_waitcnt vmcnt(12)")
        P.stamp(11)
        a("s_barrier")
        for sidx, cnt in ((0, 9), (1, 13), (2, 17)):
            a(f"s_waitcnt vmcnt({cnt})")
            a("s_barrier")
            issue()
        a(f"s_mov_b32 s{sP}, 3")
    else:
        for st in range(5):
            issue()
        a("s_waitcnt vmcnt(28)")
        a("s_barrier")
        a(f"s_mov_b32 s{sP}, 0")
    a.label("OP_L_LOOP")
    a("s_waitcnt vmcnt(21)")
    a("s_barrier")
    issue()
    a(f"s_add_u32 s{sP}, s{sP}, 1")
    a(f"s_cmp_lt_u32 s{sP}, 27")
    a("s_cbranch_scc1 OP_L_LOOP")
    for s_ in range(27, 31):
        a(f"s_waitcnt vmcnt({7*(31-(s_+1))})")
        a("s_barrier")
    a("s_barrier")
    a("s_barrier")
    if fused:
        P.dump(52, sW, 64 << 20, 12)
    return NV

HEADER = open("cdna_kernels/" + NAME + ".s.ref").read().split("; Override launch")[0]

def kd(name, nv, ns):
    acc = (nv + 3)//4*4
    return f"""
.amdhsa_kernel {name}
  .amdhsa_next_free_vgpr {nv}
  .amdhsa_next_free_sgpr {ns}
  .amdhsa_accum_offset {acc}
  .amdhsa_group_segment_fixed_size 0
  .amdhsa_kernarg_size 104
  .amdhsa_user_sgpr_count 2
  .amdhsa_user_sgpr_kernarg_segment_ptr 1
  .amdhsa_system_sgpr_workgroup_id_x 1
.end_amdhsa_kernel
"""

def main(out, opt):
    fused = opt.get("fused", 1)
    a1 = Asm(); nv1 = kernel1(a1, opt)
    s = HEADER
    if fused:
        body = a1.text().replace("k1_kernel", NAME + "_kernel")
        s += "; @launch grid=(256,1,1) block=(768,1,1) lds=163840\n"
        s += '.amdgcn_target "amdgcn-amd-amdhsa--gfx950"\n.text\n'
        nm = NAME + "_kernel"
        s += f".globl {nm}\n.p2align 8\n.type {nm},@function\n" + body
        s += '.section .rodata,"a"\n'
        s += ".p2align 6" + kd(nm, nv1, 102)
    else:
        a2 = Asm(); nv2 = kernel2(a2, opt)
        s += "; @launch kernel=k1_kernel grid=(256,1,1) block=(768,1,1) lds=163840\n"
        s += "; @launch kernel=k2_kernel grid=(256,1,1) block=(512,1,1) lds=143360\n"
        s += '.amdgcn_target "amdgcn-amd-amdhsa--gfx950"\n.text\n'
        for nm, body in (("k1_kernel", a1), ("k2_kernel", a2)):
            s += f".globl {nm}\n.p2align 8\n.type {nm},@function\n" + body.text()
        s += '.section .rodata,"a"\n'
        s += ".p2align 6" + kd("k1_kernel", nv1, 102) + ".p2align 6" + kd("k2_kernel", nv2, 96)
    open(out, "w").write(s)

if __name__ == "__main__":
    if "--prof" in sys.argv:
        PROF = True
        sys.argv.remove("--prof")
    if "--fine" in sys.argv:
        PROF = True
        FINE = True
        sys.argv.remove("--fine")
    opt = {}
    for x in list(sys.argv):
        if x.startswith("--o:"):
            k, v = x[4:].split("=")
            opt[k] = int(v)
            sys.argv.remove(x)
    main(sys.argv[1] if len(sys.argv) > 1 else "cdna_kernels/" + NAME + ".s", opt)
```

```python
import sys, struct, math

NAME = "concat_heads__gqa_block_cached__gqa_block_cached__near_ridge"

def f2u(x):
    return struct.unpack("<I", struct.pack("<f", x))[0]

class Asm:
    def __init__(self):
        self.L = []
    def __call__(self, s):
        for line in s.split("\n"):
            self.L.append("    " + line.strip() if not line.strip().endswith(":") else line.strip())
    def label(self, s):
        self.L.append(s + ":")
    def c(self, s):
        self.L.append("    ; " + s)
    def text(self):
        return "\n".join(self.L) + "\n"

def vr(base, n=1):
    return f"v{base}" if n == 1 else f"v[{base}:{base+n-1}]"
def sr(base, n=1):
    return f"s{base}" if n == 1 else f"s[{base}:{base+n-1}]"

MF32 = "v_mfma_f32_32x32x16_bf16"
MF16 = "v_mfma_f32_16x16x32_bf16"

DEBUG_Q = False
PROF = False
FINE = False
DBGPROF = False
class Prof:
    uid = 0
    def __init__(self, a, base, tmp, srd):
        self.a, self.base, self.tmp, self.srd = a, base, tmp, srd
    def init(self, n):
        if not PROF: return
        for i in range(n):
            self.a(f"s_mov_b32 s{self.base+i}, 0")
    def fine(self, slot, cond_sgpr, val, uid):
        if not FINE: return
        a = self.a
        a(f"s_cmp_lg_u32 s{cond_sgpr}, {val}")
        a(f"s_cbranch_scc1 FINE_{uid}")
        a(f"s_memtime s[{self.tmp}:{self.tmp+1}]")
        a("s_waitcnt lgkmcnt(0)")
        a(f"s_mov_b32 s{self.base+slot}, s{self.tmp}")
        a.label(f"FINE_{uid}")
    def stamp(self, slot, real=False):
        if not PROF: return
        if FINE and slot in (2, 3, 4, 5, 6, 7) : return
        a = self.a
        a(f"{'s_memrealtime' if real else 's_memtime'} s[{self.tmp}:{self.tmp+1}]")
        a("s_waitcnt lgkmcnt(0)")
        a(f"s_mov_b32 s{self.base+slot}, s{self.tmp}")
    def dump(self, ws_lo, swave, region, nmax):
        if not PROF: return
        a = self.a
        b = self.srd
        if DBGPROF:
            Prof.uid += 1
            a(f"s_or_b32 s{self.tmp}, s2, s{swave}")
            a(f"s_cmp_lg_u32 s{self.tmp}, 0")
            a(f"s_cbranch_scc1 DBGP_SKIP{Prof.uid}")
            a(f"s_load_dwordx2 s[{b}:{b+1}], s[0:1], 88")
            a("s_waitcnt lgkmcnt(0)")
            a(f"s_mov_b32 s{b+2}, 256")
            a(f"s_mov_b32 s{b+3}, 0x20000")
            a("s_mov_b64 exec, 1")
            a("v_mov_b32 v1, 0")
            for i in range(nmax):
                if i in (0, 1): continue
                ref = 0 if i == 8 else 1
                a(f"s_sub_u32 s{self.tmp}, s{self.base+i}, s{self.base+ref}")
                a(f"v_mov_b32 v2, s{self.tmp}")
                a(f"buffer_store_dword v2, v1, s[{b}:{b+3}], 0 offen offset:{4*i}")
                a("s_nop 0")
            a.label(f"DBGP_SKIP{Prof.uid}")
            return
        a(f"s_add_u32 s{b}, s{ws_lo}, {region}")
        a(f"s_addc_u32 s{b+1}, s{ws_lo+1}, 0")
        a(f"s_mov_b32 s{b+2}, {256*16*64}")
        a(f"s_mov_b32 s{b+3}, 0x20000")
        a(f"s_lshl_b32 s{self.tmp}, s2, 4")
        a(f"s_add_u32 s{self.tmp}, s{self.tmp}, s{swave}")
        a(f"s_lshl_b32 s{self.tmp}, s{self.tmp}, 6")
        a("s_mov_b64 exec, 1")
        a(f"v_mov_b32 v1, s{self.tmp}")
        for i in range(nmax):
            a(f"v_mov_b32 v2, s{self.base+i}")
            a(f"buffer_store_dword v2, v1, s[{b}:{b+3}], 0 offen offset:{4*i}")
            a("s_nop 0")

def kernel1(a, opt):
    T2_START = opt.get("t2_start", 8)
    TOUCH = opt.get("touch", 0)
    PRIO = opt.get("prio", 1)
    PQ, PS, PP = opt.get("pq", 2), opt.get("ps", 1), opt.get("pp", 0)
    DMAQ = opt.get("dmaq", 1)
    NTD = " nt" if opt.get("ntd", 0) else ""
    NTQ = " nt" if opt.get("ntq", opt.get("ntd", 0)) else ""
    NTX = " nt" if opt.get("ntx", opt.get("ntd", 0)) else ""
    NTT = " nt" if opt.get("ntt", 1) else ""
    ROT = opt.get("rot", 4)
    TPS = opt.get("tps", 2)
    NS2 = opt.get("p2steps", 8)
    AB = opt.get("ablate", 0)
    CSCALE = 128 ** -0.5 * math.log2(math.e)
    WOT = opt.get("wot", 1)
    NTW = " nt" if opt.get("ntw", 0) else ""
    SWOP = 36
    sW = 4
    sKvh, sBr, sBt, sPair = 5, 6, 7, 3
    SX, SWQ, SK, SV, SO = 8, 12, 16, 20, 24
    STCH = 40
    sThr, sFloor = 54, 55
    sG = [56, 57, 58, 59]
    sL = [60, 61, 62, 63]
    sStep = 64
    sVn, sKn = 65, 66
    sGstep = 67
    sKc, sVc = 68, 69
    sQt, sKq = 70, 71
    sA, sB, sD = 72, 73, 74
    sLam = 75
    sWs, sWg, sXs, sXg = 76, 77, 78, 79
    sP = 80
    sE = 81
    sChk = 100
    SFL, sTok = 28, 96
    FLAGOFF = 8 << 20
    sGrp, sIdx, sRdy = 45, 46, 47
    sOne = 44
    sDk, sDv, sTl = 76, 77, 78
    vMx = 0
    vL = 1
    KA0, KA1, VA = 2, 3, 4
    vKoff, vVoff = 5, 6
    vTb = 7
    NM = 8
    O = 24
    Q = 88
    S = 120
    F = 136
    NV = 168
    t0, t1, t2, t3, t4 = 8, 9, 10, 11, 12
    Wf = 88
    Xf = 104
    ACC = 128
    WA = 152
    XA = 154
    QW = 158
    vCs = 161
    vWo, vXo = 160, 153

    XBASE = 131072
    a.label("k1_kernel")
    a("s_cmp_ge_u32 s2, 256")
    a("s_cbranch_scc1 K1_END")
    P = Prof(a, 84, 82, 28)
    P.init(12)
    P.stamp(0, real=True)
    P.stamp(1)
    a("s_load_dwordx16 s[32:47], s[0:1], 0")
    a("s_load_dwordx4 s[48:51], s[0:1], 64")
    a("s_load_dwordx2 s[52:53], s[0:1], 96")
    a("v_lshrrev_b32 v1, 6, v0")
    a("v_and_b32 v0, 63, v0")
    a(f"v_readfirstlane_b32 s{sW}, v1")
    a(f"s_and_b32 s{sKvh}, s2, 3")
    a(f"s_bfe_u32 s{sBr}, s2, 0x10002")
    a(f"s_lshr_b32 s{sBt}, s2, 5")
    a(f"s_bfe_u32 s{sPair}, s2, 0x20003")
    a(f"s_and_b32 s{sKq}, s{sW}, 3")
    a(f"s_lshr_b32 s{sQt}, s{sW}, 2")
    a(f"s_lshl_b32 s{sD}, s{sKvh}, 11")
    a(f"s_lshl_b32 s{sB}, s{sPair}, 9")
    a(f"s_add_u32 s{sD}, s{sD}, s{sB}")
    a(f"s_mul_i32 s{sA}, s{sBt}, 98304")

    def srd1():
        a("s_waitcnt lgkmcnt(0)")
        a(f"s_cmp_eq_u32 s{sBr}, 0")
        a(f"s_cselect_b64 s[{SX}:{SX+1}], s[32:33], s[42:43]")
        a(f"s_cselect_b64 s[{SWQ}:{SWQ+1}], s[38:39], s[48:49]")
        a(f"s_add_u32 s{SX}, s{SX}, s{sA}")
        a(f"s_addc_u32 s{SX+1}, s{SX+1}, 0")
        a(f"s_mov_b32 s{SX+2}, 98304")
        a(f"s_mov_b32 s{SX+3}, 0x20000")
        a(f"s_add_u32 s{SWQ}, s{SWQ}, s{sD}")
        a(f"s_addc_u32 s{SWQ+1}, s{SWQ+1}, 0")
        a(f"s_sub_u32 s{SWQ+2}, 8388608, s{sD}")
        a(f"s_mov_b32 s{SWQ+3}, 0x20000")
    def srd2():
        a(f"s_cmp_eq_u32 s{sBr}, 0")
        a(f"s_cselect_b64 s[{SK}:{SK+1}], s[34:35], s[44:45]")
        a(f"s_cselect_b64 s[{SV}:{SV+1}], s[36:37], s[46:47]")
        a(f"s_mov_b64 s[36:37], s[40:41]")
        a(f"s_lshl_b32 s{sB}, s{sBr}, 3")
        a(f"s_add_u32 s{sB}, s{sB}, s{sBt}")
        a(f"s_mul_i32 s{sB}, s{sB}, {48*8192}")
        a(f"s_add_u32 s{sB}, s{sB}, s{sD}")
        a(f"s_add_u32 s{SO}, s52, s{sB}")
        a(f"s_addc_u32 s{SO+1}, s53, 0")
        a(f"s_sub_u32 s{SO+2}, {48*8192}, s{sD}")
        a(f"s_mov_b32 s{SO+3}, 0x20000")
        a(f"s_lshl_b32 s{sB}, s{sBt}, 2")
        a(f"s_add_u32 s{sB}, s{sB}, s{sKvh}")
        a(f"s_lshl_b32 s{sB}, s{sB}, 18")
        a(f"s_add_u32 s{SK}, s{SK}, s{sB}")
        a(f"s_addc_u32 s{SK+1}, s{SK+1}, 0")
        a(f"s_mov_b32 s{SK+2}, 262144")
        a(f"s_mov_b32 s{SK+3}, 0x20000")
        a(f"s_add_u32 s{SV}, s{SV}, s{sB}")
        a(f"s_addc_u32 s{SV+1}, s{SV+1}, 0")
        a(f"s_mov_b32 s{SV+2}, 262144")
        a(f"s_mov_b32 s{SV+3}, 0x20000")
        a(f"s_mov_b32 s{STCH+2}, 262144")
        a(f"s_mov_b32 s{STCH+3}, 0x20000")
        a(f"s_lshl_b32 s{sB}, s{sBr}, 3")
        a(f"s_add_u32 s{sB}, s{sB}, s{sBt}")
        a(f"s_lshl_b32 s{sGrp}, s{sB}, 4")
        a(f"s_lshl_b32 s{sB}, s{sB}, 8")
        a(f"s_add_u32 s{sB}, s{sB}, {FLAGOFF}")
        a(f"s_add_u32 s{SFL}, s52, s{sB}")
        a(f"s_addc_u32 s{SFL+1}, s53, 0")
        a(f"s_mov_b32 s{SFL+2}, 64")
        a(f"s_mov_b32 s{SFL+3}, 0x20000")
        a(f"s_load_dwordx2 s[{sTok}:{sTok+1}], s[{SX}:{SX+1}], 0")
        a(f"s_lshl_b32 s{sIdx}, s{sKvh}, 2")
        a(f"s_add_u32 s{sIdx}, s{sIdx}, s{sPair}")

        a(f"v_bfe_u32 v{t0}, v0, 2, 2")
        a(f"v_lshlrev_b32 v{t0}, 8, v{t0}")
        a(f"v_lshrrev_b32 v{t1}, 4, v0")
        a(f"v_lshl_add_u32 v{t0}, v{t1}, 6, v{t0}")
        a(f"v_and_b32 v{t1}, 3, v0")
        a(f"v_lshl_add_u32 v{vVoff}, v{t1}, 4, v{t0}")
        a(f"s_lshl_b32 s{sB}, s{sKq}, 4")
        a(f"v_xor_b32 v{vKoff}, s{sB}, v{vVoff}")

    def kread(n):
        a(f"ds_read_b128 {vr(F+4*n,4)}, v{KA0 + (n & 1)} offset:{(n >> 1)*256}")
    def setup2():
        a(f"v_and_b32 v{t0}, 31, v0")
        a(f"v_lshrrev_b32 v{t1}, 5, v0")
        a(f"v_and_b32 v{t2}, 15, v0")
        a(f"v_xor_b32 v{t2}, v{t1}, v{t2}")
        a(f"v_lshlrev_b32 v{t2}, 4, v{t2}")
        a(f"v_lshl_add_u32 v{t2}, v{t0}, 8, v{t2}")
        a(f"s_lshl_b32 s{sA}, s{sQt}, 13")
        a(f"s_add_u32 s{sA}, s{sA}, {XBASE}")
        a(f"v_add_u32 v{vTb}, s{sA}, v{t2}")
        a(f"v_lshrrev_b32 v{t2}, 2, v{t0}")
        a(f"v_and_b32 v{t3}, 3, v{t2}")
        a(f"v_xor_b32 v{t3}, v{t1}, v{t3}")
        a(f"v_lshlrev_b32 v{t3}, 4, v{t3}")
        a(f"v_lshl_add_u32 v{t3}, v{t2}, 10, v{t3}")
        a(f"v_and_b32 v{t2}, 3, v0")
        a(f"v_lshl_add_u32 v{t3}, v{t2}, 6, v{t3}")
        a(f"s_lshl_b32 s{sA}, s{sKq}, 13")
        a(f"v_add_u32 v{KA0}, s{sA}, v{t3}")
        a(f"v_xor_b32 v{KA1}, 32, v{KA0}")
        a(f"v_bfe_u32 v{t2}, v0, 2, 2")
        a(f"v_lshlrev_b32 v{t2}, 6, v{t2}")
        a(f"v_lshl_add_u32 v{t2}, v{t1}, 10, v{t2}")
        a(f"v_bfe_u32 v{t3}, v0, 4, 1")
        a(f"v_lshl_add_u32 v{t2}, v{t3}, 5, v{t2}")
        a(f"v_bfe_u32 v{t3}, v0, 1, 1")
        a(f"v_lshl_add_u32 v{t2}, v{t3}, 4, v{t2}")
        a(f"v_and_b32 v{t3}, 1, v0")
        a(f"v_lshl_add_u32 v{t2}, v{t3}, 3, v{t2}")
        a(f"s_add_u32 s{sA}, s{sA}, 32768")
        a(f"v_add_u32 v{VA}, s{sA}, v{t2}")
        for j in range(4):
            a(f"s_sub_u32 s{sA}, s{sQt}, 1")
            a(f"s_lshl_b32 s{sA}, s{sA}, 1")
            a(f"s_add_u32 s{sA}, s{sA}, {j >> 1}")
            a(f"s_add_u32 s{sB}, s{sKq}, {4*(j & 1)}")
            a(f"s_lshl_b32 s{sB}, s{sB}, 10")
            a(f"s_lshl_b32 s{sD}, s{sA}, 16")
            a(f"s_add_u32 s{sG[j]}, s{sD}, s{sB}")
            a(f"s_lshl_b32 s{sD}, s{sA}, 13")
            a(f"s_add_u32 s{sL[j]}, s{sD}, s{sB}")
        a(f"s_mov_b32 s{sStep}, 0")
        a(f"s_mov_b32 s{sKn}, {4*32768}")
        a(f"s_mov_b32 s{sVn}, 0")
        a(f"s_mov_b32 s{sGstep}, 16384")
        a(f"s_mov_b32 s{sKc}, 65536")
        a(f"s_mov_b32 s{sVc}, 32768")
        a(f"s_mov_b32 s{sThr}, 0xff800000")
        a(f"s_mov_b32 s{sFloor}, 0xff800000")
        a(f"s_mov_b32 s{sOne}, 0")
        for r in range(0, 16, 2):
            a(f"v_mov_b64 {vr(NM+r,2)}, 0")

    def issueW(slot_expr_sgpr, goff_sgpr, vreg):
        for j in range(8):
            m1, m3, m4 = j & 1, (j >> 1) & 1, (j >> 2) & 1
            dm = 2*m1 + 8*m3 + 16*m4
            a(f"s_add_u32 m0, s{slot_expr_sgpr}, {dm*1024}")
            a(f"s_add_u32 s{sA}, s{goff_sgpr}, {dm*16384}")
            a(f"buffer_load_dwordx4 v{vreg}, s[{SWQ}:{SWQ+3}], s{sA} offen{NTQ} lds")
    def issueX(slot_sgpr, goff_sgpr):
        for j in range(3):
            a(f"s_add_u32 m0, s{slot_sgpr}, {j*4096}")
            a(f"s_add_u32 s{sA}, s{goff_sgpr}, {j*16*2048}")
            a(f"buffer_load_dwordx4 v{vXo}, s[{SX}:{SX+3}], s{sA} offen{NTX} lds")
    a(f"v_lshrrev_b32 v{t0}, 5, v0")
    a(f"v_and_b32 v{t1}, 31, v0")
    a(f"s_and_b32 s{sE}, s{sKq}, 1")
    a(f"s_lshl_b32 s{sE}, s{sE}, 1")
    a(f"s_lshr_b32 s{sB}, s{sKq}, 1")
    a(f"s_lshl_b32 s{sB}, s{sB}, 2")
    a(f"s_or_b32 s{sE}, s{sE}, s{sB}")
    a(f"v_or_b32 v{t2}, s{sE}, v{t0}")
    a(f"v_lshlrev_b32 v{t2}, 1, v{t2}")
    a(f"v_xor_b32 v{t2}, v{t1}, v{t2}")
    a(f"v_lshlrev_b32 v{t2}, 4, v{t2}")
    a(f"v_lshl_add_u32 v{vWo}, v{t0}, 13, v{t2}")
    a(f"s_and_b32 s{sE}, s{sKq}, 1")
    a(f"s_or_b32 s{sE}, s{sE}, s{sB}")
    a(f"s_lshl_b32 s{sB}, s{sE}, 14")
    a(f"v_add_u32 v{vWo}, s{sB}, v{vWo}")
    a(f"s_lshl_b32 s{sWs}, s{sE}, 10")
    if ROT == 1:
        a(f"s_lshl_b32 s{sXg}, s{sPair}, 1")
        a(f"s_add_u32 s{sXg}, s{sXg}, s{sBt}")
        a(f"s_and_b32 s{sXg}, s{sXg}, 7")
        a(f"s_lshl_b32 s{sWg}, s{sXg}, 20")
        a(f"s_lshl_b32 s{sXg}, s{sXg}, 8")
    elif ROT == 4:
        a(f"s_add_u32 s{sXg}, s{sPair}, s{sBt}")
        a(f"s_and_b32 s{sXg}, s{sXg}, 3")
        a(f"s_lshl_b32 s{sXg}, s{sXg}, 1")
        a(f"s_lshl_b32 s{sWg}, s{sXg}, 20")
        a(f"s_lshl_b32 s{sXg}, s{sXg}, 8")
    elif ROT == 2:
        a(f"s_add_u32 s{sXg}, s{sPair}, s{sBt}")
        a(f"s_and_b32 s{sXg}, s{sXg}, 1")
        a(f"s_lshl_b32 s{sXg}, s{sXg}, 2")
        a(f"s_lshl_b32 s{sWg}, s{sXg}, 20")
        a(f"s_lshl_b32 s{sXg}, s{sXg}, 8")
    else:
        a(f"s_mov_b32 s{sXg}, 0")
        a(f"s_mov_b32 s{sWg}, 0")
    a(f"s_cmp_ge_u32 s{sW}, 8")
    a("s_cbranch_scc1 K1_LOADER")
    a(f"s_add_u32 s{sB}, s{sQt}, 1")
    a(f"s_lshl_b32 s{sE}, s{sB}, 15")
    a(f"s_add_u32 s{sWs}, s{sWs}, s{sE}")
    a(f"s_lshl_b32 s{sE}, s{sB}, 19")
    a(f"s_add_u32 s{sWg}, s{sWg}, s{sE}")
    a(f"s_and_b32 s{sWg}, s{sWg}, 0x7fffff")
    srd1()
    if not opt.get("latew", 1):
        issueW(sWs, sWg, vWo)

    a.c("phase 1 compute")
    a(f"v_bfe_u32 v{t0}, v0, 2, 2")
    a(f"v_lshrrev_b32 v{t1}, 4, v0")
    a(f"v_and_b32 v{t2}, 1, v{t1}")
    a(f"v_lshl_or_b32 v{t2}, v{t2}, 2, v{t0}")
    a(f"s_lshl_b32 s{sE}, s{sW}, 1")
    a(f"v_xor_b32 v{t2}, s{sE}, v{t2}")
    a(f"v_lshl_add_u32 v{t3}, v{t1}, 3, v{t0}")
    a(f"v_lshlrev_b32 v{t3}, 9, v{t3}")
    a(f"v_lshl_add_u32 v{t3}, v{t2}, 5, v{t3}")
    a(f"v_and_b32 v{t4}, 3, v0")
    a(f"v_lshl_add_u32 v{WA}, v{t4}, 3, v{t3}")
    a(f"v_xor_b32 v{WA+1}, 32, v{WA}")
    a(f"v_and_b32 v{t0}, 15, v0")
    a(f"v_xor_b32 v{t2}, v{t1}, v{t0}")
    a(f"v_lshlrev_b32 v{t2}, 4, v{t2}")
    a(f"v_lshl_add_u32 v{t2}, v{t0}, 8, v{t2}")
    a(f"v_add_u32 v{XA}, {XBASE:#x}, v{t2}")
    a(f"v_xor_b32 v{XA+1}, 64, v{XA}")
    a(f"v_xor_b32 v{XA+2}, 0x80, v{XA}")
    a(f"v_xor_b32 v{XA+3}, 0xc0, v{XA}")
    for r in range(24):
        a(f"v_mov_b32 v{ACC+r}, 0")
    srd2()
    if opt.get("fused", 1):
        a(f"s_cmp_lg_u32 s{sW}, 1")
        a("s_cbranch_scc1 K1_NOZ")
        a(f"s_lshl_b32 s{sE}, s{sIdx}, 2")
        a(f"v_mov_b32 v{t0}, 0")
        a(f"v_mov_b32 v{t1}, s{sE}")
        a("s_mov_b64 exec, 1")
        a(f"buffer_store_dword v{t0}, v{t1}, s[{SFL}:{SFL+3}], 0 offen sc1")
        a("s_mov_b64 exec, -1")
        a.label("K1_NOZ")
    a(f"v_mov_b32 v{vCs}, {f2u(CSCALE):#x}")
    a(f"v_and_b32 v{t0}, 15, v0")
    a(f"v_lshrrev_b32 v{t1}, 4, v0")
    a(f"s_lshl_b32 s{sE}, s{sKq}, 2")
    a(f"v_lshrrev_b32 v{t2}, 1, v{t1}")
    a(f"v_add_u32 v{t2}, s{sE}, v{t2}")
    a(f"v_xor_b32 v{t2}, v{t2}, v{t0}")
    a(f"v_lshlrev_b32 v{t2}, 4, v{t2}")
    a(f"v_lshl_add_u32 v{t2}, v{t0}, 8, v{t2}")
    a(f"v_and_b32 v{t3}, 1, v{t1}")
    a(f"v_lshl_add_u32 v{t2}, v{t3}, 3, v{t2}")
    a(f"s_mul_i32 s{sE}, s{sQt}, {48*256}")
    a(f"s_add_u32 s{sE}, s{sE}, {XBASE}")
    a(f"v_add_u32 v{QW}, s{sE}, v{t2}")
    a(f"v_xor_b32 v{QW+1}, 32, v{QW}")
    setup2()
    if opt.get("dbgtouch", 0):
        a("s_load_dwordx2 s[82:83], s[0:1], 88")
        a("s_waitcnt lgkmcnt(0)")
        a("v_mov_b32 v162, 0")
        a("global_load_dword v163, v162, s[82:83] sc1")
    if opt.get("latew", 1):
        issueW(sWs, sWg, vWo)
    a(f"s_mov_b32 s{sP}, 0")
    FB = [88, 24]
    def p1_reads(sp):
        fb = FB[sp]
        for ks in range(2):
            for tt in range(2):
                for e in range(2):
                    off = sp * 32768 + ks * 16384 + e * 2048
                    a(f"ds_read_b64_tr_b16 {vr(fb + (tt*2+ks)*4 + e*2, 2)}, v{WA+tt} offset:{off}")
            for rt in range(3):
                a(f"ds_read_b128 {vr(fb + 16 + (rt*2+ks)*4, 4)}, v{XA + sp*2 + ks} offset:{rt*4096}")
    def p1_mfma(sp):
        fb = FB[sp]
        for ks in range(2):
            for rt in range(3):
                for tt in range(2):
                    acc = ACC + (tt*3+rt)*4
                    a(f"{MF16} {vr(acc,4)}, {vr(fb+(tt*2+ks)*4,4)}, {vr(fb+16+(rt*2+ks)*4,4)}, {vr(acc,4)}")
    a("s_barrier")
    P.stamp(2)
    p1_reads(0)
    a("s_waitcnt vmcnt(0) lgkmcnt(0)")
    a("s_branch K1_P1_MID")
    a.label("K1_P1_LOOP")
    a("s_barrier")
    p1_reads(0)
    p1_mfma(1)
    a("s_waitcnt lgkmcnt(0)")
    a.label("K1_P1_MID")
    a("s_barrier")
    p1_reads(1)
    a(f"v_xor_b32 v{WA}, 0x10000, v{WA}")
    a(f"v_xor_b32 v{WA+1}, 0x10000, v{WA+1}")
    for v in range(4):
        a(f"v_xor_b32 v{XA+v}, 0x4000, v{XA+v}")
    p1_mfma(0)
    a(f"s_add_u32 s{sP}, s{sP}, 1")
    a("s_waitcnt lgkmcnt(0)")
    a(f"s_cmp_lt_u32 s{sP}, 8")
    a("s_cbranch_scc1 K1_P1_LOOP")
    a("s_barrier")
    P.stamp(3)
    p1_mfma(1)
    a("s_nop 7")
    for tt in range(2):
        for rt in range(3):
            acc = ACC + (tt*3+rt)*4
            for r in range(4):
                a(f"v_mul_f32 v{acc+r}, v{vCs}, v{acc+r}")
            a(f"v_cvt_pk_bf16_f32 v{acc}, v{acc}, v{acc+1}")
            a(f"v_cvt_pk_bf16_f32 v{acc+1}, v{acc+2}, v{acc+3}")
            a(f"ds_write_b64 v{QW+tt}, {vr(acc,2)} offset:{rt*4096}")
    a("s_waitcnt lgkmcnt(0)")
    a("s_branch K1_JOIN")
    if TOUCH:
        for sp in range(2):
            a.label(f"K1_T1_{sp}")
            a(f"s_cmp_lt_u32 s{sP}, {T2_START//2}")
            a(f"s_cbranch_scc1 K1_T1R_{sp}")
            a(f"s_sub_u32 s{sA}, s{sP}, {T2_START//2}")
            a(f"s_lshl_b32 s{sA}, s{sA}, 13")
            a(f"s_lshl_b32 s{sB}, s{sPair}, 16")
            a(f"s_add_u32 s{sA}, s{sA}, s{sB}")
            srd = SK if sp == 0 else SV
            a(f"buffer_load_dword v{vVoff}, v{vTch}, s[{srd}:{srd+3}], s{sA} offen{NTT}")
            a(f"s_branch K1_T1R_{sp}")

    a.label("K1_LOADER")
    a("s_setprio 3")
    a(f"s_sub_u32 s{sLam}, s{sW}, 8")
    a(f"v_lshrrev_b32 v{t0}, 4, v0")
    a(f"v_and_b32 v{t1}, 15, v0")
    a(f"s_lshl_b32 s{sE}, s{sLam}, 2")
    a(f"v_or_b32 v{t2}, s{sE}, v{t0}")
    a(f"v_xor_b32 v{t3}, v{t1}, v{t2}")
    a(f"v_lshlrev_b32 v{t3}, 4, v{t3}")
    a(f"v_lshl_add_u32 v{vXo}, v{t2}, 11, v{t3}")
    def issueKV_loader(srd, voff, slot, step):
        a(f"s_lshl_b32 s{sB}, s{sLam}, 10")
        for e in range(8):
            lo = slot*32768 + (e >> 1)*8192 + (e & 1)*4096
            go = (e >> 1)*65536 + step*8192 + (e & 1)*4096
            a(f"s_add_u32 m0, s{sB}, {lo}")
            a(f"s_add_u32 s{sA}, s{sB}, {go}")
            a(f"buffer_load_dwordx4 v{voff}, s[{srd}:{srd+3}], s{sA} offen{NTD} lds")
    a(f"s_lshl_b32 s{sXs}, s{sLam}, 10")
    a(f"s_add_u32 s{sXs}, s{sXs}, {XBASE}")
    srd1()
    P.stamp(9)
    def nextW():
        a(f"s_add_u32 s{sWs}, s{sWs}, 32768")
        a(f"s_and_b32 s{sWs}, s{sWs}, 0x1ffff")
        a(f"s_add_u32 s{sWg}, s{sWg}, 524288")
        a(f"s_and_b32 s{sWg}, s{sWg}, 0x7fffff")
    def nextX():
        a(f"s_xor_b32 s{sXs}, s{sXs}, 0x4000")
        a(f"s_add_u32 s{sXg}, s{sXg}, 256")
        a(f"s_and_b32 s{sXg}, s{sXg}, 0x7ff")
    issueX(sXs, sXg)
    issueW(sWs, sWg, vWo)
    P.stamp(10)
    a(f"s_add_u32 s{sWs}, s{sWs}, {3*32768}")
    a(f"s_add_u32 s{sWg}, s{sWg}, {3*524288}")
    a(f"s_and_b32 s{sWg}, s{sWg}, 0x7fffff")
    srd2()
    setup2()
    a(f"s_mov_b32 s{sP}, 0")
    a("s_waitcnt vmcnt(0)")
    P.stamp(11)
    a("s_setprio 0")
    a("s_barrier")
    a("s_branch K1_LD_MID")
    a.label("K1_LD_LOOP")
    a("s_waitcnt vmcnt(16)")
    a("s_barrier")
    a.label("K1_LD_MID")
    nextX(); issueX(sXs, sXg)
    issueW(sWs, sWg, vWo); nextW()
    a("s_waitcnt vmcnt(19)")
    a("s_barrier")
    issueW(sWs, sWg, vWo); nextW()
    a(f"s_add_u32 s{sP}, s{sP}, 1")
    a(f"s_cmp_lt_u32 s{sP}, 6")
    a("s_cbranch_scc1 K1_LD_LOOP")
    a("s_waitcnt vmcnt(16)")
    a("s_barrier")
    nextX(); issueX(sXs, sXg)
    issueW(sWs, sWg, vWo)
    a("s_waitcnt vmcnt(19)")
    a("s_barrier")
    issueKV_loader(SK, vKoff, 0, 0)
    a("s_waitcnt vmcnt(16)")
    a("s_barrier")
    issueKV_loader(SV, vVoff, 1, 0)
    a("s_waitcnt vmcnt(16)")
    a("s_barrier")
    issueKV_loader(SK, vKoff, 2, 1)
    a("s_barrier")
    issueKV_loader(SV, vVoff, 3, 1)
    a("s_waitcnt vmcnt(8)")

    a.label("K1_JOIN")
    if TOUCH:
        a(f"s_cmp_ge_u32 s{sW}, 4")
        a("s_cbranch_scc1 K1_NOTCH")
        a(f"v_lshlrev_b32 v{vKoff}, 7, v0")
        a.label("K1_NOTCH")
    a("s_barrier")
    for ks in range(8):
        a(f"v_xor_b32 v{vMx}, {ks << 5:#x}, v{vTb}")
        a(f"ds_read_b128 {vr(Q+4*ks,4)}, v{vMx}")
    for ks in range(8):
        kread(ks)
    a(f"s_mov_b32 s{sDk}, 65536")
    a(f"s_cmp_lt_u32 s{sW}, 8")
    a(f"s_cselect_b32 s{sTl}, {opt.get('wotstep', 6)}, 99")
    a("s_waitcnt lgkmcnt(0)")
    a(f"s_lshl_b32 s{sA}, s{sTok+1}, 7")
    a(f"s_xor_b32 s{sTok}, s{sTok}, s{sA}")
    a(f"s_or_b32 s{sTok}, s{sTok}, 1")
    P.stamp(4)
    a(f"s_cmp_ge_u32 s{sW}, 4")
    a("s_cbranch_scc1 K1_B_BAR")
    a("s_branch K1_A_BAR")

    def rot(sreg):
        a(f"s_add_u32 s{sreg}, s{sreg}, 65536")
        a(f"s_cmp_ge_u32 s{sreg}, 163840")
        a(f"s_cselect_b32 s{sA}, 163840, 0")
        a(f"s_sub_u32 s{sreg}, s{sreg}, s{sA}")

    LIGHT = opt.get("light", 0)
    def ls(k):
        if LIGHT: a(f"s_memtime s[{84+2*k}:{85+2*k}]")
    def step_body(v):
        isB = (v == "B")
        dodma = isB and not (AB & 1)
        def dma(kind, j):
            if not dodma: return
            if kind == 'V':
                a(f"s_add_u32 m0, s{sVn}, s{sL[j]}")
                a(f"s_add_u32 s{sA}, s{sGstep}, s{sG[j]}")
                a(f"buffer_load_dwordx4 v{vVoff}, s[{SV}:{SV+3}], s{sA} offen{NTD} lds")
            else:
                a(f"s_add_u32 m0, s{sKn}, s{sL[j]}")
                a(f"s_add_u32 s{sA}, s{sGstep}, s{sG[j]}")
                a(f"buffer_load_dwordx4 v{vKoff}, s[{SK}:{SK+3}], s{sA} offen{NTD} lds")
        def vreads(kk):
            if AB & 2:
                for _ in range(8): a("s_nop 0")
                return
            for dt in range(4):
                for e in range(2):
                    a(f"ds_read_b64_tr_b16 {vr(F+(kk*4+dt)*4+2*e,2)}, v{VA} offset:{kk*4096+e*2048+dt*256}")
        a.label(f"K1_{v}_TOP")
        a(f"s_waitcnt {'vmcnt(4) ' if isB else ''}lgkmcnt(0)")
        a.label(f"K1_{v}_BAR")
        if PRIO: a(f"s_setprio {PQ}")
        if v == "B" or True: ls(0)
        a("s_barrier")
        ls(1)
        def vread1(n):
            if AB & 2: return
            kk, dt = n >> 2, n & 3
            for e in range(2):
                a(f"ds_read_b64_tr_b16 {vr(F+n*4+2*e,2)}, v{VA} offset:{kk*4096+e*2048+dt*256}")
        for ks in range(8):
            cin = vr(NM,16) if ks == 0 else vr(S,16)
            a(f"{MF32} {vr(S,16)}, {vr(F+4*ks,4)}, {vr(Q+4*ks,4)}, {cin}")
            if ks < 7: vread1(ks)
            if ks == 0:
                a(f"v_add_u32 v{KA0}, s{sDk}, v{KA0}")
                a(f"v_add_u32 v{KA1}, s{sDk}, v{KA1}")
                a(f"s_mov_b32 s{sDk}, s{sKc}")
            if ks == 2:
                rot(sKc)
            if ks == 4:
                a(f"s_sub_u32 s{sDk}, s{sKc}, s{sDk}")
                a(f"s_mov_b32 s{sDv}, s{sVc}")
                a(f"s_add_u32 s{sVc}, s{sVc}, 65536")
                a(f"s_cmp_ge_u32 s{sVc}, 163840")
            if ks == 4:
                a(f"s_cselect_b32 s{sA}, 163840, 0")
                a(f"s_sub_u32 s{sVc}, s{sVc}, s{sA}")
            if ks in (1, 3, 5, 6):
                dma('K', {1: 0, 3: 1, 5: 2, 6: 3}[ks])
        ls(2)
        if PRIO and PS != PQ: a(f"s_setprio {PS}")
        vread1(7)
        a(f"s_sub_u32 s{sDv}, s{sVc}, s{sDv}")
        a(f"v_add_u32 v{VA}, s{sDv}, v{VA}")
        a("s_nop 7")
        a("s_nop 0")
        a(f"v_max3_f32 v{vMx}, v{S+0}, v{S+1}, v{S+2}")
        a(f"v_max3_f32 v{vTb}, v{S+3}, v{S+4}, v{S+5}")
        a(f"v_max3_f32 v{vMx}, v{vMx}, v{S+6}, v{S+7}")
        a(f"v_max3_f32 v{vTb}, v{vTb}, v{S+8}, v{S+9}")
        a(f"v_max3_f32 v{vMx}, v{vMx}, v{S+10}, v{S+11}")
        a(f"v_max3_f32 v{vTb}, v{vTb}, v{S+12}, v{S+13}")
        a(f"v_max3_f32 v{vMx}, v{vMx}, v{S+14}, v{S+15}")
        a(f"v_max_f32 v{vMx}, v{vMx}, v{vTb}")
        a(f"v_cmp_lt_f32 vcc, s{sThr}, v{vMx}")
        a(f"s_cbranch_vccnz K1_{v}_RARE")
        a.label(f"K1_{v}_CONT")
        ls(3)
        for k in range(8):
            if not AB & 8:
                a(f"v_exp_f32 v{S+2*k}, v{S+2*k}")
                a(f"v_exp_f32 v{S+2*k+1}, v{S+2*k+1}")
            if k >= 1 and not AB & 8:
                kk = k - 1
                a(f"v_add_f32 v{vL}, v{vL}, v{S+2*kk}")
                a(f"v_add_f32 v{vL}, v{vL}, v{S+2*kk+1}")
                a(f"v_cvt_pk_bf16_f32 v{S+kk}, v{S+2*kk}, v{S+2*kk+1}")
        a(f"v_add_f32 v{vL}, v{vL}, v{S+14}")
        a(f"v_add_f32 v{vL}, v{vL}, v{S+15}")
        a(f"v_cvt_pk_bf16_f32 v{S+7}, v{S+14}, v{S+15}")
        ls(4)
        if PRIO and PP != PS: a(f"s_setprio {PP}")
        if not LIGHT: a("s_waitcnt lgkmcnt(0)")
        else: a("s_waitcnt lgkmcnt(1)")
        for kk in range(2):
            for dt in range(4):
                n = kk*4 + dt
                a(f"{MF32} {vr(O+16*dt,16)}, {vr(F+(kk*4+dt)*4,4)}, {vr(S+4*kk,4)}, {vr(O+16*dt,16)}")
                if not AB & 4: kread(n)
                if n in (0, 1, 2, 3):
                    dma('V', n)
                if n == 2 and not isB and WOT:
                    a(f"s_cmp_eq_u32 s{sStep}, s{sTl}")
                    a("s_cbranch_scc1 K1_A_TOUCH")
                    a.label("K1_A_TOUCHR")
                if n == 4:
                    a(f"s_add_u32 s{sStep}, s{sStep}, 1")
                if n == 2 and isB:
                    pass
                if n == 4 and isB:
                    rot(sVn)
                if n == 5 and isB:
                    rot(sKn)
                if n == 6 and isB:
                    a(f"s_add_u32 s{sGstep}, s{sGstep}, 8192")
                    if NS2 != 8: a(f"s_and_b32 s{sGstep}, s{sGstep}, 0xffff")
        ls(5)
        if LIGHT:
            a(f"s_cmp_lg_u32 s{sStep}, 41")
            a(f"s_cbranch_scc1 K1_{v}_NOCOPY")
            a("s_waitcnt lgkmcnt(0)")
            for k in range(6):
                a(f"s_mov_b32 s{96+k}, s{84+2*k}")
            a.label(f"K1_{v}_NOCOPY")
        if isB:
            a(f"s_cmp_lt_u32 s{sStep}, {NS2-2}")
            a("s_cbranch_scc1 K1_B_TOP")
            a("s_waitcnt vmcnt(0)")
            a("s_branch K1_A_TOP")
        else:
            a(f"s_cmp_lt_u32 s{sStep}, {NS2}")
            a("s_cbranch_scc1 K1_A_TOP")
            a("s_branch K1_P2_END")
        a.label(f"K1_{v}_RARE")
        a(f"v_mov_b32 v{vTb}, v{vMx}")
        a("s_nop 1")
        a(f"v_permlane32_swap_b32 v{vMx}, v{vTb}")
        a(f"v_max_f32 v{vMx}, v{vMx}, v{vTb}")
        a(f"v_max_f32 v{vMx}, s{sFloor}, v{vMx}")
        a(f"v_max_f32 v{vTb}, 0, v{vMx}")
        a(f"v_sub_f32 v{vTb}, 0, v{vTb}")
        a(f"v_exp_f32 v{vTb}, v{vTb}")
        a(f"s_mov_b32 s{sThr}, {f2u(8.0):#x}")
        a(f"s_mov_b32 s{sFloor}, 0")
        a(f"v_mul_f32 v{vTb}, s{sOne}, v{vTb}")
        a(f"s_mov_b32 s{sOne}, 1.0")
        for r in range(16):
            a(f"v_sub_f32 v{S+r}, v{S+r}, v{vMx}")
        a(f"v_sub_f32 v{NM}, v{NM}, v{vMx}")
        for r in range(1, 16):
            a(f"v_mov_b32 v{NM+r}, v{NM}")
        a(f"v_mul_legacy_f32 v{vL}, v{vL}, v{vTb}")
        for r in range(64):
            a(f"v_mul_legacy_f32 v{O+r}, v{O+r}, v{vTb}")
        a(f"s_branch K1_{v}_CONT")

    step_body("B")
    step_body("A")
    if WOT:
        a.label("K1_A_TOUCH")
        a(f"s_cmp_eq_u32 s{sBr}, 0")
        a(f"s_cselect_b64 s[{STCH}:{STCH+1}], s[{SWOP}:{SWOP+1}], s[50:51]")
        a(f"s_mov_b32 s{STCH+2}, 8388608")
        a(f"v_mbcnt_lo_u32_b32 v{vKoff}, -1, 0")
        a(f"v_mbcnt_hi_u32_b32 v{vKoff}, -1, v{vKoff}")
        a(f"v_and_b32 v{vVoff}, 3, v{vKoff}")
        a(f"v_lshrrev_b32 v{vKoff}, 2, v{vKoff}")
        a(f"v_lshlrev_b32 v{vKoff}, 11, v{vKoff}")
        a(f"v_lshl_add_u32 v{vKoff}, v{vVoff}, 7, v{vKoff}")
        a(f"s_lshr_b32 s{sA}, s2, 3")
        a(f"s_lshl_b32 s{sA}, s{sA}, 3")
        a(f"s_add_u32 s{sA}, s{sA}, s{sW}")
        a(f"s_lshl_b32 s{sA}, s{sA}, 15")
        a(f"s_lshl_b32 s{sB}, s{sKvh}, 9")
        a(f"s_add_u32 s{sA}, s{sA}, s{sB}")
        a(f"buffer_load_dword v{vVoff}, v{vKoff}, s[{STCH}:{STCH+3}], s{sA} offen{NTW}")
        a("s_branch K1_A_TOUCHR")

    a.label("K1_P2_END")
    P.stamp(5)
    FUSED = opt.get("fused", 1)
    SC1 = " sc1" if FUSED else ""
    t0, t1, t2, t3, t4 = NM+2, NM+3, NM+4, NM+5, NM+6
    vLane = NM+7
    STAT, EX, STG = 32768, 36864, 114688
    if FUSED:
        a("s_load_dwordx2 s[48:49], s[0:1], 80")
    a(f"v_mbcnt_lo_u32_b32 v{vLane}, -1, 0")
    a(f"v_mbcnt_hi_u32_b32 v{vLane}, -1, v{vLane}")
    a(f"v_mov_b32 v{t1}, v{vL}")
    a(f"v_sub_f32 v{S}, 0, v{NM}")
    a(f"v_and_b32 v{t0}, 31, v{vLane}")
    a(f"v_permlane32_swap_b32 v{vL}, v{t1}")
    a(f"v_add_f32 v{S+1}, v{vL}, v{t1}")
    a(f"v_lshlrev_b32 v{t0}, 3, v{t0}")
    a(f"s_lshl_b32 s{sA}, s{sQt}, 10")
    a(f"s_add_u32 s{sA}, s{sA}, {STAT}")
    a(f"v_add_u32 v{t0}, s{sA}, v{t0}")
    a(f"s_lshl_b32 s{sB}, s{sKq}, 8")
    a(f"v_add_u32 v{t1}, s{sB}, v{t0}")
    R = Q
    a(f"v_lshlrev_b32 v{t2}, 4, v{vLane}")
    a(f"s_mul_i32 s{sB}, s{sQt}, {4*3*2048}")
    a(f"s_add_u32 s{sB}, s{sB}, {EX}")
    a(f"ds_write_b64 v{t1}, {vr(S,2)}")
    a("s_waitcnt lgkmcnt(1)" if not FUSED else "s_waitcnt lgkmcnt(0)")
    for dt in range(4):
        a(f"s_cmp_eq_u32 s{sKq}, {dt}")
        a(f"s_cbranch_scc1 K1_OWN{dt}")
        a(f"s_sub_u32 s{sA}, s{sKq}, {dt+1}")
        a(f"s_and_b32 s{sA}, s{sA}, 3")
        a(f"s_lshl_b32 s{sA}, s{sA}, 11")
        a(f"s_add_u32 s{sA}, s{sA}, s{sB}")
        a(f"v_add_u32 v{t1}, s{sA}, v{t2}")
        pk = F + 8*dt
        for j in range(8):
            a(f"v_cvt_pk_bf16_f32 v{pk+j}, v{O+16*dt+2*j}, v{O+16*dt+2*j+1}")
        for g2 in range(2):
            a(f"ds_write_b128 v{t1}, {vr(pk+4*g2,4)} offset:{dt*3*2048 + g2*1024}")
        a(f"s_branch K1_NXT{dt}")
        a.label(f"K1_OWN{dt}")
        for r in range(0, 16, 2):
            a(f"v_mov_b64 {vr(R+r,2)}, {vr(O+16*dt+r,2)}")
        a.label(f"K1_NXT{dt}")
    a("s_waitcnt lgkmcnt(0)")
    a("s_barrier")
    ST = S
    for rk in range(3):
        a(f"s_add_u32 s{sA}, s{sKq}, {rk+1}")
        a(f"s_and_b32 s{sA}, s{sA}, 3")
        a(f"s_lshl_b32 s{sA}, s{sA}, 8")
        a(f"v_add_u32 v{t1}, s{sA}, v{t0}")
        a(f"ds_read_b64 {vr(ST+2+2*rk,2)}, v{t1}")
    a(f"s_mul_i32 s{sA}, s{sKq}, {3*2048}")
    a(f"s_add_u32 s{sA}, s{sA}, s{sB}")
    a(f"v_add_u32 v{t1}, s{sA}, v{t2}")
    TT = O
    for rk in range(3):
        for g2 in range(2):
            a(f"ds_read_b128 {vr(TT+8*rk+4*g2,4)}, v{t1} offset:{rk*2048+g2*1024}")
    a(f"v_and_b32 v{t2}, 15, v{vLane}")
    a(f"s_lshl_b32 s{sA}, s{sKq}, 2")
    a(f"v_xor_b32 v{t2}, s{sA}, v{t2}")
    a(f"v_lshlrev_b32 v{t2}, 4, v{t2}")
    a(f"v_and_b32 v{t0}, 31, v{vLane}")
    a(f"v_lshl_add_u32 v{t2}, v{t0}, 8, v{t2}")
    a(f"v_lshrrev_b32 v{t0}, 5, v{vLane}")
    a(f"v_lshl_add_u32 v{t2}, v{t0}, 3, v{t2}")
    a(f"s_lshl_b32 s{sA}, s{sQt}, 13")
    a(f"s_add_u32 s{sA}, s{sA}, {STG}")
    a(f"v_add_u32 v{t2}, s{sA}, v{t2}")
    a("s_waitcnt lgkmcnt(6)")
    mf = t3
    a(f"v_max3_f32 v{mf}, v{ST}, v{ST+2}, v{ST+4}")
    a(f"v_max_f32 v{mf}, v{mf}, v{ST+6}")
    for j in range(4):
        a(f"v_sub_f32 v{ST+2*j}, v{ST+2*j}, v{mf}")
    for j in range(4):
        a(f"v_exp_f32 v{ST+2*j}, v{ST+2*j}")
    a("s_nop 0")
    a(f"v_mul_f32 v{t4}, v{ST}, v{ST+1}")
    for j in range(1, 4):
        a(f"v_fma_f32 v{t4}, v{ST+2*j}, v{ST+2*j+1}, v{t4}")
    a(f"v_rcp_f32 v{t4}, v{t4}")
    a("s_nop 0")
    for j in range(4):
        a(f"v_mul_f32 v{ST+2*j}, v{ST+2*j}, v{t4}")
    for r in range(16):
        a(f"v_mul_f32 v{R+r}, v{R+r}, v{ST}")
    UL, UH = O+32, O+33
    for rk in range(3):
        a(f"s_waitcnt lgkmcnt({4-2*rk})")
        for j in range(8):
            p = TT + 8*rk + j
            a(f"v_lshlrev_b32 v{UL+2*(j&1)}, 16, v{p}")
            a(f"v_and_b32 v{UH+2*(j&1)}, 0xffff0000, v{p}")
            a(f"v_fma_f32 v{R+2*j}, v{UL+2*(j&1)}, v{ST+2+2*rk}, v{R+2*j}")
            a(f"v_fma_f32 v{R+2*j+1}, v{UH+2*(j&1)}, v{ST+2+2*rk}, v{R+2*j+1}")
    PK = F
    for g in range(4):
        a(f"v_cvt_pk_bf16_f32 v{PK+2*g}, v{R+4*g}, v{R+4*g+1}")
        a(f"v_cvt_pk_bf16_f32 v{PK+2*g+1}, v{R+4*g+2}, v{R+4*g+3}")
        a(f"v_xor_b32 v{t0}, {g << 4}, v{t2}")
        a(f"ds_write_b64 v{t0}, {vr(PK+2*g,2)}")
    a(f"v_lshrrev_b32 v{t0}, 4, v{vLane}")
    a(f"s_lshl_b32 s{sA}, s{sW}, 3")
    a(f"v_add_u32 v{t0}, s{sA}, v{t0}")
    a(f"v_and_b32 v{t1}, 15, v{vLane}")
    a(f"v_lshlrev_b32 v{t3}, 8, v{t0}")
    a(f"v_lshl_add_u32 v{t3}, v{t1}, 4, v{t3}")
    a(f"v_add_u32 v{t3}, {STG}, v{t3}")
    a(f"v_and_b32 v{t4}, 15, v{t0}")
    a(f"v_xor_b32 v{t1}, v{t1}, v{t4}")
    a(f"s_cmp_ge_u32 s{sW}, 6")
    a(f"s_cselect_b32 s{sA}, {256 - 48*8192}, 0")
    a(f"v_lshlrev_b32 v{t0}, 13, v{t0}")
    a(f"v_add_u32 v{t0}, s{sA}, v{t0}")
    a(f"v_lshl_add_u32 v{t4}, v{t1}, 4, v{t0}")
    a(f"v_xor_b32 v{t1}, 4, v{t1}")
    a(f"v_lshl_add_u32 v{t0}, v{t1}, 4, v{t0}")
    a(f"v_add_u32 v{t0}, {4*8192}, v{t0}")
    a("s_waitcnt lgkmcnt(0)")
    a("s_barrier")
    a(f"ds_read_b128 {vr(PK,4)}, v{t3}")
    a(f"ds_read_b128 {vr(PK+4,4)}, v{t3} offset:1024")
    a("s_waitcnt lgkmcnt(1)")
    a(f"buffer_store_dwordx4 {vr(PK,4)}, v{t4}, s[{SO}:{SO+3}], 0 offen{SC1}")
    a("s_waitcnt lgkmcnt(0)")
    a(f"buffer_store_dwordx4 {vr(PK+4,4)}, v{t0}, s[{SO}:{SO+3}], 0 offen{SC1}")
    P.stamp(6)
    if not FUSED:
        if PROF: a("s_waitcnt vmcnt(0)")
        P.stamp(7)
        P.stamp(8, real=True)
        if LIGHT:
            for k in range(6):
                a(f"s_mov_b32 s{84+2+k}, s{96+k}")
        P.dump(52, sW, 64 << 20, 12)
        a.label("K1_END")
        a("s_endpgm")
        return NV
    a(f"v_mov_b32 v0, v{vLane}")
    a("s_waitcnt vmcnt(0)")
    a("s_barrier")
    P.stamp(7)
    outproj(a, opt, P, fused=True)
    a.label("K1_END")
    a("s_endpgm")
    return NV

def kernel2(a, opt):
    a.label("k2_kernel")
    a("s_cmp_ge_u32 s2, 256")
    a("s_cbranch_scc1 K2_END")
    P = Prof(a, 64, 62, 40)
    P.init(12)
    P.stamp(0, real=True)
    P.stamp(1)
    a("s_load_dwordx2 s[36:37], s[0:1], 32")
    a("s_load_dwordx2 s[50:51], s[0:1], 72")
    a("s_load_dwordx2 s[48:49], s[0:1], 80")
    a("s_load_dwordx2 s[52:53], s[0:1], 96")
    a("v_lshrrev_b32 v1, 6, v0")
    a("v_and_b32 v0, 63, v0")
    a("v_readfirstlane_b32 s4, v1")
    a("s_and_b32 s5, s2, 3")
    a("s_bfe_u32 s6, s2, 0x10002")
    a("s_lshr_b32 s7, s2, 5")
    a("s_bfe_u32 s3, s2, 0x20003")
    a("s_waitcnt lgkmcnt(0)")
    nv = outproj(a, opt, P, fused=False)
    a.label("K2_END")
    a("s_endpgm")
    return nv

def outproj(a, opt, P, fused):
    sW = 4
    NTW2 = " nt" if opt.get("ntw2", 0) else ""
    XFL = " sc1" if (fused and opt.get("xsc1", 1)) else ""
    SX, SWO, SO, SFL = 8, 12, 16, 28
    sA, sB, sD, sLam, sP = 20, 21, 22, 23, 24
    sSl, sWg, sXg = 25, 26, 27
    NS = 5
    STG = 28672
    t0, t1, t2, t3, t4 = 1, 2, 3, 4, 5
    WA = 6
    XA = 10
    vWo, vXo = 6, 7
    ACC = 12
    FR = 60
    NV = 116
    END = "K1_END" if fused else "K2_END"
    if fused:
        a(f"s_cmp_lg_u32 s{sW}, 0")
        a("s_cbranch_scc1 OP_NOFLAG")
        a(f"s_lshl_b32 s{sA}, s46, 2")
        a(f"v_mov_b32 v{t0}, s96")
        a(f"v_mov_b32 v{t1}, s{sA}")
        a("s_mov_b64 exec, 1")
        a(f"buffer_store_dword v{t0}, v{t1}, s[{SFL}:{SFL+3}], 0 offen sc1")
        a("s_mov_b64 exec, -1")
        a.label("OP_NOFLAG")
        a(f"s_cmp_gt_u32 s{sW}, 8")
        a(f"s_cbranch_scc1 {END}")
        a(f"s_cmp_eq_u32 s{sW}, 8")
        a("s_cbranch_scc1 OP_POLL")
    a("s_cmp_eq_u32 s6, 0")
    a(f"s_cselect_b64 s[{SWO}:{SWO+1}], s[36:37], s[50:51]")
    a(f"s_lshl_b32 s{sA}, s5, 9")
    a(f"s_lshl_b32 s{sB}, s3, 7")
    a(f"s_add_u32 s{sA}, s{sA}, s{sB}")
    a(f"s_add_u32 s{SWO}, s{SWO}, s{sA}")
    a(f"s_addc_u32 s{SWO+1}, s{SWO+1}, 0")
    a(f"s_sub_u32 s{SWO+2}, 8388608, s{sA}")
    a(f"s_mov_b32 s{SWO+3}, 0x20000")
    a(f"s_lshl_b32 s{sB}, s6, 3")
    a(f"s_add_u32 s{sB}, s{sB}, s7")
    a(f"s_mul_i32 s{sD}, s{sB}, {48*8192}")
    a(f"s_add_u32 s{SX}, s52, s{sD}")
    a(f"s_addc_u32 s{SX+1}, s53, 0")
    a(f"s_mov_b32 s{SX+2}, {48*8192}")
    a(f"s_mov_b32 s{SX+3}, 0x20000")
    a(f"s_mul_i32 s{sD}, s7, {48*4096}")
    a(f"s_lshl_b32 s{sB}, s6, 11")
    a(f"s_add_u32 s{sB}, s{sB}, s{sA}")
    a(f"s_add_u32 s{sD}, s{sD}, s{sB}")
    a(f"s_add_u32 s{SO}, s48, s{sD}")
    a(f"s_addc_u32 s{SO+1}, s49, 0")
    a(f"s_sub_u32 s{SO+2}, {48*4096}, s{sB}")
    a(f"s_mov_b32 s{SO+3}, 0x20000")
    a(f"s_cmp_ge_u32 s{sW}, 4")
    a("s_cbranch_scc1 OP_LOADER")
    a(f"v_bfe_u32 v{t0}, v0, 2, 2")
    a(f"v_lshrrev_b32 v{t1}, 4, v0")
    a(f"v_lshl_add_u32 v{t2}, v{t1}, 3, v{t0}")
    a(f"s_lshl_b32 s{sA}, s{sW}, 5")
    a(f"v_add_u32 v{t2}, s{sA}, v{t2}")
    a(f"v_lshlrev_b32 v{t2}, 7, v{t2}")
    a(f"v_bfe_u32 v{t3}, v0, 3, 1")
    a(f"v_bfe_u32 v{t4}, v0, 4, 1")
    a(f"v_lshl_or_b32 v{t3}, v{t4}, 1, v{t3}")
    a(f"v_lshl_add_u32 v{t2}, v{t3}, 5, v{t2}")
    a(f"v_and_b32 v{t3}, 3, v0")
    a(f"v_lshl_add_u32 v{WA}, v{t3}, 3, v{t2}")
    for t in range(1, 4):
        a(f"v_xor_b32 v{WA+t}, {t << 5}, v{WA}")
    a(f"v_and_b32 v{t0}, 15, v0")
    a(f"s_lshl_b32 s{sA}, s{sW}, 2")
    a(f"v_add_u32 v{t2}, s{sA}, v{t1}")
    a(f"v_xor_b32 v{t2}, v{t2}, v{t0}")
    a(f"v_lshlrev_b32 v{t2}, 4, v{t2}")
    a(f"v_lshl_add_u32 v{t2}, v{t0}, 8, v{t2}")
    a(f"v_add_u32 v{XA}, 16384, v{t2}")
    for r in range(0, 48, 2):
        a(f"v_mov_b64 {vr(ACC+r,2)}, 0")
    def reads(buf):
        fb = FR + buf*28
        for t in range(4):
            for e in range(2):
                a(f"ds_read_b64_tr_b16 {vr(fb+4*t+2*e,2)}, v{WA+t} offset:{e*512}")
        for rt in range(3):
            a(f"ds_read_b128 {vr(fb+16+4*rt,4)}, v{XA} offset:{rt*4096}")
    def adv():
        a(f"s_add_u32 s{sA}, s{sSl}, {STG}")
        a(f"s_cmp_ge_u32 s{sA}, {NS*STG}")
        a(f"s_cselect_b32 s{sB}, {NS*STG}, 0")
        a(f"s_sub_u32 s{sA}, s{sA}, s{sB}")
        a(f"s_sub_u32 s{sD}, s{sA}, s{sSl}")
        a(f"s_mov_b32 s{sSl}, s{sA}")
        for t in range(4):
            a(f"v_add_u32 v{WA+t}, s{sD}, v{WA+t}")
        a(f"v_add_u32 v{XA}, s{sD}, v{XA}")
    def mfmas(buf):
        fb = FR + buf*28
        for rt in range(3):
            for t in range(4):
                acc = ACC + (t*3+rt)*4
                a(f"{MF16} {vr(acc,4)}, {vr(fb+4*t,4)}, {vr(fb+16+4*rt,4)}, {vr(acc,4)}")
    a(f"s_mov_b32 s{sSl}, 0")
    if fused: a("s_barrier")
    a("s_barrier")
    P.stamp(9 if fused else 2)
    reads(0); adv()
    a("s_waitcnt lgkmcnt(0)")
    a(f"s_mov_b32 s{sP}, 0")
    a.label("OP_C_LOOP")
    for half in range(2):
        a("s_barrier")
        reads(1-half); adv()
        mfmas(half)
        a("s_waitcnt lgkmcnt(0)")
        if half == 0:
            a(f"s_cmp_eq_u32 s{sP}, 15")
            a("s_cbranch_scc1 OP_C_DONE")
    a(f"s_add_u32 s{sP}, s{sP}, 1")
    a("s_branch OP_C_LOOP")
    a.label("OP_C_DONE")
    mfmas(1)
    P.stamp(10 if fused else 3)
    a("s_barrier")
    a("s_nop 7")
    a(f"v_lshlrev_b32 v{t0}, 4, v0")
    a(f"s_mul_i32 s{sA}, s{sW}, 12288")
    a(f"v_add_u32 v{t1}, s{sA}, v{t0}")
    for tile in range(12):
        a(f"ds_write_b128 v{t1}, {vr(ACC+4*tile,4)} offset:{tile*1024}")
    a("s_waitcnt lgkmcnt(0)")
    a("s_barrier")
    a(f"s_mul_i32 s{sA}, s{sW}, 3072")
    a(f"v_add_u32 v{t1}, s{sA}, v{t0}")
    for src in range(4):
        for rt in range(3):
            a(f"ds_read_b128 {vr(ACC+(src*3+rt)*4,4)}, v{t1} offset:{src*12288+rt*1024}")
    a("s_waitcnt lgkmcnt(0)")
    for rt in range(3):
        for r in range(4):
            d = ACC + rt*4 + r
            a(f"v_add_f32 v{d}, v{d}, v{d+12}")
            a(f"v_add_f32 v{d+24}, v{d+24}, v{d+36}")
        for r in range(4):
            d = ACC + rt*4 + r
            a(f"v_add_f32 v{d}, v{d}, v{d+24}")
        d = ACC + rt*4
        a(f"v_cvt_pk_bf16_f32 v{d}, v{d}, v{d+1}")
        a(f"v_cvt_pk_bf16_f32 v{d+1}, v{d+2}, v{d+3}")
    a(f"v_and_b32 v{t0}, 15, v0")
    a(f"v_lshrrev_b32 v{t1}, 4, v0")
    a(f"v_lshlrev_b32 v{t0}, 12, v{t0}")
    a(f"v_lshl_add_u32 v{t0}, v{t1}, 3, v{t0}")
    a(f"s_lshl_b32 s{sA}, s{sW}, 5")
    a(f"v_add_u32 v{t0}, s{sA}, v{t0}")
    for rt in range(3):
        a(f"s_mov_b32 s{sA}, {rt*16*4096}")
        a(f"buffer_store_dwordx2 {vr(ACC+rt*4,2)}, v{t0}, s[{SO}:{SO+3}], s{sA} offen")
    if fused:
        P.stamp(11)
        P.stamp(8, real=True)
        P.dump(52, sW, 64 << 20, 12)
    else:
        P.stamp(4)
        if PROF: a("s_waitcnt vmcnt(0)")
        P.stamp(5)
        P.stamp(6, real=True)
        P.dump(52, sW, 65 << 20, 12)
    a("s_endpgm")

    if fused:
        a.label("OP_POLL")
        a(f"v_lshlrev_b32 v{t0}, 2, v0")
        a("s_mov_b64 exec, 0xffff")
        a(f"s_mov_b32 s{sP}, 0")
        a.label("OP_POLL_LOOP")
        a(f"buffer_load_dword v4, v{t0}, s[{SFL}:{SFL+3}], 0 offen sc1")
        a("s_waitcnt vmcnt(0)")
        a("v_cmp_eq_u32 vcc, s96, v4")
        a("s_nop 1")
        a("s_cmp_eq_u32 vcc_lo, 0xffff")
        a("s_cbranch_scc1 OP_POLL_DONE")
        a(f"s_sleep {opt.get('psleep', 2)}")
        a(f"s_add_u32 s{sP}, s{sP}, 1")
        a(f"s_cmp_lt_u32 s{sP}, 400000")
        a("s_cbranch_scc1 OP_POLL_LOOP")
        a.label("OP_POLL_DONE")
        P.stamp(9)
        if PROF: a(f"s_mov_b32 s{P.base+10}, s{sP}")
        a("s_barrier")
        P.dump(52, sW, 64 << 20, 12)
        a("s_endpgm")

    a.label("OP_LOADER")
    a(f"s_sub_u32 s{sLam}, s{sW}, 4")
    a(f"v_lshrrev_b32 v{t0}, 3, v0")
    a(f"v_and_b32 v{t1}, 7, v0")
    a(f"v_bfe_u32 v{t2}, v0, 4, 1")
    a(f"s_and_b32 s{sA}, s{sLam}, 1")
    a(f"s_lshl_b32 s{sA}, s{sA}, 1")
    a(f"v_or_b32 v{t2}, s{sA}, v{t2}")
    a(f"v_lshlrev_b32 v{t2}, 1, v{t2}")
    a(f"v_xor_b32 v{t1}, v{t1}, v{t2}")
    a(f"v_lshlrev_b32 v{t1}, 4, v{t1}")
    a(f"s_lshl_b32 s{sA}, s{sLam}, 3")
    a(f"v_add_u32 v{t0}, s{sA}, v{t0}")
    a(f"v_lshl_add_u32 v{vWo}, v{t0}, 11, v{t1}")
    a(f"v_lshrrev_b32 v{t0}, 4, v0")
    a(f"v_and_b32 v{t1}, 15, v0")
    a(f"s_lshl_b32 s{sA}, s{sLam}, 2")
    a(f"v_or_b32 v{t2}, s{sA}, v{t0}")
    a(f"v_xor_b32 v{t1}, v{t1}, v{t2}")
    a(f"v_lshlrev_b32 v{t1}, 4, v{t1}")
    a(f"v_lshl_add_u32 v{vXo}, v{t2}, 13, v{t1}")
    def issueW(slot_s, goff_s):
        for j in range(4):
            a(f"s_add_u32 m0, s{slot_s}, {j*4096}")
            a(f"s_add_u32 s{sA}, s{goff_s}, {j*32*2048}")
            a(f"buffer_load_dwordx4 v{vWo}, s[{SWO}:{SWO+3}], s{sA} offen{NTW2} lds")
    def issueX(slot_s, goff_s):
        for j in range(3):
            a(f"s_add_u32 m0, s{slot_s}, {16384 + j*4096}")
            a(f"s_add_u32 s{sA}, s{goff_s}, {j*16*8192}")
            a(f"buffer_load_dwordx4 v{vXo}, s[{SX}:{SX+3}], s{sA} offen{XFL} lds")
    def advance():
        a(f"s_add_u32 s{sSl}, s{sSl}, {STG}")
        a(f"s_cmp_ge_u32 s{sSl}, s{sD}")
        a(f"s_cselect_b32 s{sB}, {NS*STG}, 0")
        a(f"s_sub_u32 s{sSl}, s{sSl}, s{sB}")
        a(f"s_add_u32 s{sWg}, s{sWg}, {128*2048}")
        a(f"s_add_u32 s{sXg}, s{sXg}, 256")
    def issue():
        issueW(sSl, sWg); issueX(sSl, sXg); advance()
    a(f"s_lshl_b32 s{sSl}, s{sLam}, 10")
    a(f"s_add_u32 s{sD}, s{sSl}, {NS*STG}")
    a(f"s_mov_b32 s{sWg}, 0")
    a(f"s_mov_b32 s{sXg}, 0")
    if fused:
        a(f"s_mov_b32 s{sP}, 0")
        a.label("OP_LW")
        issueW(sSl, sWg)
        a(f"s_add_u32 s{sSl}, s{sSl}, {STG}")
        a(f"s_add_u32 s{sWg}, s{sWg}, {128*2048}")
        a(f"s_add_u32 s{sP}, s{sP}, 1")
        a(f"s_cmp_lt_u32 s{sP}, 5")
        a("s_cbranch_scc1 OP_LW")
        a(f"s_lshl_b32 s{sSl}, s{sLam}, 10")
        P.stamp(9)
        a("s_barrier")
        P.stamp(10)
        a(f"s_mov_b32 s{sP}, 0")
        a.label("OP_LX")
        issueX(sSl, sXg)
        a(f"s_add_u32 s{sSl}, s{sSl}, {STG}")
        a(f"s_add_u32 s{sXg}, s{sXg}, 256")
        a(f"s_add_u32 s{sP}, s{sP}, 1")
        a(f"s_cmp_lt_u32 s{sP}, 5")
        a("s_cbranch_scc1 OP_LX")
        a(f"s_lshl_b32 s{sSl}, s{sLam}, 10")
        a("s_waitcnt vmcnt(12)")
        P.stamp(11)
        a("s_barrier")
        for sidx, cnt in ((0, 9), (1, 13), (2, 17)):
            a(f"s_waitcnt vmcnt({cnt})")
            a("s_barrier")
            issue()
        a(f"s_mov_b32 s{sP}, 3")
    else:
        for st in range(5):
            issue()
        a("s_waitcnt vmcnt(28)")
        a("s_barrier")
        a(f"s_mov_b32 s{sP}, 0")
    a.label("OP_L_LOOP")
    a("s_waitcnt vmcnt(21)")
    a("s_barrier")
    issue()
    a(f"s_add_u32 s{sP}, s{sP}, 1")
    a(f"s_cmp_lt_u32 s{sP}, 27")
    a("s_cbranch_scc1 OP_L_LOOP")
    for s_ in range(27, 31):
        a(f"s_waitcnt vmcnt({7*(31-(s_+1))})")
        a("s_barrier")
    a("s_barrier")
    a("s_barrier")
    if fused:
        P.dump(52, sW, 64 << 20, 12)
    return NV

HEADER = open("cdna_kernels/" + NAME + ".s.ref").read().split("; Override launch")[0]

def kd(name, nv, ns):
    acc = (nv + 3)//4*4
    return f"""
.amdhsa_kernel {name}
  .amdhsa_next_free_vgpr {nv}
  .amdhsa_next_free_sgpr {ns}
  .amdhsa_accum_offset {acc}
  .amdhsa_group_segment_fixed_size 0
  .amdhsa_kernarg_size 104
  .amdhsa_user_sgpr_count 2
  .amdhsa_user_sgpr_kernarg_segment_ptr 1
  .amdhsa_system_sgpr_workgroup_id_x 1
.end_amdhsa_kernel
"""

def main(out, opt):
    fused = opt.get("fused", 1)
    a1 = Asm(); nv1 = kernel1(a1, opt)
    s = HEADER
    if fused:
        body = a1.text().replace("k1_kernel", NAME + "_kernel")
        s += "; @launch grid=(256,1,1) block=(768,1,1) lds=163840\n"
        s += '.amdgcn_target "amdgcn-amd-amdhsa--gfx950"\n.text\n'
        nm = NAME + "_kernel"
        s += f".globl {nm}\n.p2align 8\n.type {nm},@function\n" + body
        s += '.section .rodata,"a"\n'
        s += ".p2align 6" + kd(nm, nv1, 102)
    else:
        a2 = Asm(); nv2 = kernel2(a2, opt)
        s += "; @launch kernel=k1_kernel grid=(256,1,1) block=(768,1,1) lds=163840\n"
        s += "; @launch kernel=k2_kernel grid=(256,1,1) block=(512,1,1) lds=143360\n"
        s += '.amdgcn_target "amdgcn-amd-amdhsa--gfx950"\n.text\n'
        for nm, body in (("k1_kernel", a1), ("k2_kernel", a2)):
            s += f".globl {nm}\n.p2align 8\n.type {nm},@function\n" + body.text()
        s += '.section .rodata,"a"\n'
        s += ".p2align 6" + kd("k1_kernel", nv1, 102) + ".p2align 6" + kd("k2_kernel", nv2, 96)
    open(out, "w").write(s)

if __name__ == "__main__":
    if "--prof" in sys.argv:
        PROF = True
        sys.argv.remove("--prof")
    if "--dbgprof" in sys.argv:
        PROF = True
        DBGPROF = True
        sys.argv.remove("--dbgprof")
    if "--fine" in sys.argv:
        PROF = True
        FINE = True
        sys.argv.remove("--fine")
    opt = {}
    for x in list(sys.argv):
        if x.startswith("--o:"):
            k, v = x[4:].split("=")
            opt[k] = int(v)
            sys.argv.remove(x)
    main(sys.argv[1] if len(sys.argv) > 1 else "cdna_kernels/" + NAME + ".s", opt)
```

```python
import sys, struct, math

NAME = "concat_heads__gqa_block_cached__gqa_block_cached__near_ridge"

def f2u(x):
    return struct.unpack("<I", struct.pack("<f", x))[0]

class Asm:
    def __init__(self):
        self.L = []
    def __call__(self, s):
        for line in s.split("\n"):
            self.L.append("    " + line.strip() if not line.strip().endswith(":") else line.strip())
    def label(self, s):
        self.L.append(s + ":")
    def c(self, s):
        self.L.append("    ; " + s)
    def text(self):
        return "\n".join(self.L) + "\n"

def vr(base, n=1):
    return f"v{base}" if n == 1 else f"v[{base}:{base+n-1}]"
def sr(base, n=1):
    return f"s{base}" if n == 1 else f"s[{base}:{base+n-1}]"

MF32 = "v_mfma_f32_32x32x16_bf16"
MF16 = "v_mfma_f32_16x16x32_bf16"

DEBUG_Q = False
PROF = False
FINE = False
DBGPROF = False
class Prof:
    uid = 0
    def __init__(self, a, base, tmp, srd):
        self.a, self.base, self.tmp, self.srd = a, base, tmp, srd
    def init(self, n):
        if not PROF: return
        for i in range(n):
            self.a(f"s_mov_b32 s{self.base+i}, 0")
    def fine(self, slot, cond_sgpr, val, uid):
        if not FINE: return
        a = self.a
        a(f"s_cmp_lg_u32 s{cond_sgpr}, {val}")
        a(f"s_cbranch_scc1 FINE_{uid}")
        a(f"s_memtime s[{self.tmp}:{self.tmp+1}]")
        a("s_waitcnt lgkmcnt(0)")
        a(f"s_mov_b32 s{self.base+slot}, s{self.tmp}")
        a.label(f"FINE_{uid}")
    def stamp(self, slot, real=False):
        if not PROF: return
        if FINE and slot in (2, 3, 4, 5, 6, 7) : return
        a = self.a
        a(f"{'s_memrealtime' if real else 's_memtime'} s[{self.tmp}:{self.tmp+1}]")
        a("s_waitcnt lgkmcnt(0)")
        a(f"s_mov_b32 s{self.base+slot}, s{self.tmp}")
    def dump(self, ws_lo, swave, region, nmax):
        if not PROF: return
        a = self.a
        b = self.srd
        if DBGPROF:
            Prof.uid += 1
            a(f"s_or_b32 s{self.tmp}, s2, s{swave}")
            a(f"s_cmp_lg_u32 s{self.tmp}, 0")
            a(f"s_cbranch_scc1 DBGP_SKIP{Prof.uid}")
            a(f"s_load_dwordx2 s[{b}:{b+1}], s[0:1], 88")
            a("s_waitcnt lgkmcnt(0)")
            a(f"s_mov_b32 s{b+2}, 256")
            a(f"s_mov_b32 s{b+3}, 0x20000")
            a("s_mov_b64 exec, 1")
            a("v_mov_b32 v1, 0")
            for i in range(nmax):
                if i in (0, 1): continue
                ref = 0 if i == 8 else 1
                a(f"s_sub_u32 s{self.tmp}, s{self.base+i}, s{self.base+ref}")
                a(f"v_mov_b32 v2, s{self.tmp}")
                a(f"buffer_store_dword v2, v1, s[{b}:{b+3}], 0 offen offset:{4*i}")
                a("s_nop 0")
            a.label(f"DBGP_SKIP{Prof.uid}")
            return
        a(f"s_add_u32 s{b}, s{ws_lo}, {region}")
        a(f"s_addc_u32 s{b+1}, s{ws_lo+1}, 0")
        a(f"s_mov_b32 s{b+2}, {256*16*64}")
        a(f"s_mov_b32 s{b+3}, 0x20000")
        a(f"s_lshl_b32 s{self.tmp}, s2, 4")
        a(f"s_add_u32 s{self.tmp}, s{self.tmp}, s{swave}")
        a(f"s_lshl_b32 s{self.tmp}, s{self.tmp}, 6")
        a("s_mov_b64 exec, 1")
        a(f"v_mov_b32 v1, s{self.tmp}")
        for i in range(nmax):
            a(f"v_mov_b32 v2, s{self.base+i}")
            a(f"buffer_store_dword v2, v1, s[{b}:{b+3}], 0 offen offset:{4*i}")
            a("s_nop 0")

def kernel1(a, opt):
    T2_START = opt.get("t2_start", 8)
    TOUCH = opt.get("touch", 0)
    PRIO = opt.get("prio", 1)
    PQ, PS, PP = opt.get("pq", 2), opt.get("ps", 1), opt.get("pp", 0)
    DMAQ = opt.get("dmaq", 1)
    NTD = " nt" if opt.get("ntd", 0) else ""
    NTQ = " nt" if opt.get("ntq", opt.get("ntd", 0)) else ""
    NTX = " nt" if opt.get("ntx", opt.get("ntd", 0)) else ""
    NTT = " nt" if opt.get("ntt", 1) else ""
    ROT = opt.get("rot", 4)
    TPS = opt.get("tps", 2)
    NS2 = opt.get("p2steps", 8)
    AB = opt.get("ablate", 0)
    CSCALE = 128 ** -0.5 * math.log2(math.e)
    WOT = opt.get("wot", 1)
    NTW = " nt" if opt.get("ntw", 0) else ""
    SWOP = 36
    sW = 4
    sKvh, sBr, sBt, sPair = 5, 6, 7, 3
    SX, SWQ, SK, SV, SO = 8, 12, 16, 20, 24
    STCH = 40
    sThr, sFloor = 54, 55
    sG = [56, 57, 58, 59]
    sL = [60, 61, 62, 63]
    sStep = 64
    sVn, sKn = 65, 66
    sGstep = 67
    sKc, sVc = 68, 69
    sQt, sKq = 70, 71
    sA, sB, sD = 72, 73, 74
    sLam = 75
    sWs, sWg, sXs, sXg = 76, 77, 78, 79
    sP = 80
    sE = 81
    sChk = 100
    SFL, sTok = 28, 96
    FLAGOFF = 8 << 20
    sGrp, sIdx, sRdy = 45, 46, 47
    sSafe = 44
    sDk, sDv, sTl = 76, 77, 78
    vMx = 0
    vL = 1
    KA0, KA1, VA = 2, 3, 4
    vKoff, vVoff = 5, 6
    vTb = 7
    NM = 8
    O = 24
    Q = 88
    S = 120
    F = 136
    NV = 168
    t0, t1, t2, t3, t4 = 8, 9, 10, 11, 12
    Wf = 88
    Xf = 104
    ACC = 128
    WA = 152
    XA = 154
    QW = 158
    vCs = 161
    vWo, vXo = 160, 153

    XBASE = 131072
    a.label("k1_kernel")
    a("s_cmp_ge_u32 s2, 256")
    a("s_cbranch_scc1 K1_END")
    P = Prof(a, 84, 82, 28)
    P.init(12)
    P.stamp(0, real=True)
    P.stamp(1)
    a("s_load_dwordx16 s[32:47], s[0:1], 0")
    a("s_load_dwordx4 s[48:51], s[0:1], 64")
    a("s_load_dwordx2 s[52:53], s[0:1], 96")
    a("v_lshrrev_b32 v1, 6, v0")
    a("v_and_b32 v0, 63, v0")
    a(f"v_readfirstlane_b32 s{sW}, v1")
    a(f"s_and_b32 s{sKvh}, s2, 3")
    a(f"s_bfe_u32 s{sBr}, s2, 0x10002")
    a(f"s_lshr_b32 s{sBt}, s2, 5")
    a(f"s_bfe_u32 s{sPair}, s2, 0x20003")
    a(f"s_and_b32 s{sKq}, s{sW}, 3")
    a(f"s_lshr_b32 s{sQt}, s{sW}, 2")
    a(f"s_lshl_b32 s{sD}, s{sKvh}, 11")
    a(f"s_lshl_b32 s{sB}, s{sPair}, 9")
    a(f"s_add_u32 s{sD}, s{sD}, s{sB}")
    a(f"s_mul_i32 s{sA}, s{sBt}, 98304")

    def srd1():
        a("s_waitcnt lgkmcnt(0)")
        a(f"s_cmp_eq_u32 s{sBr}, 0")
        a(f"s_cselect_b64 s[{SX}:{SX+1}], s[32:33], s[42:43]")
        a(f"s_cselect_b64 s[{SWQ}:{SWQ+1}], s[38:39], s[48:49]")
        a(f"s_add_u32 s{SX}, s{SX}, s{sA}")
        a(f"s_addc_u32 s{SX+1}, s{SX+1}, 0")
        a(f"s_mov_b32 s{SX+2}, 98304")
        a(f"s_mov_b32 s{SX+3}, 0x20000")
        a(f"s_add_u32 s{SWQ}, s{SWQ}, s{sD}")
        a(f"s_addc_u32 s{SWQ+1}, s{SWQ+1}, 0")
        a(f"s_sub_u32 s{SWQ+2}, 8388608, s{sD}")
        a(f"s_mov_b32 s{SWQ+3}, 0x20000")
    def patterns():
        a(f"v_bfe_u32 v{t0}, v0, 2, 2")
        a(f"v_lshlrev_b32 v{t0}, 8, v{t0}")
        a(f"v_lshrrev_b32 v{t1}, 4, v0")
        a(f"v_lshl_add_u32 v{t0}, v{t1}, 6, v{t0}")
        a(f"v_and_b32 v{t1}, 3, v0")
        a(f"v_lshl_add_u32 v{vVoff}, v{t1}, 4, v{t0}")
        a(f"s_lshl_b32 s{sB}, s{sKq}, 4")
        a(f"v_xor_b32 v{vKoff}, s{sB}, v{vVoff}")

    def srd2():
        a(f"s_cmp_eq_u32 s{sBr}, 0")
        a(f"s_cselect_b64 s[{SK}:{SK+1}], s[34:35], s[44:45]")
        a(f"s_cselect_b64 s[{SV}:{SV+1}], s[36:37], s[46:47]")
        a(f"s_mov_b64 s[36:37], s[40:41]")
        a(f"s_lshl_b32 s{sB}, s{sBr}, 3")
        a(f"s_add_u32 s{sB}, s{sB}, s{sBt}")
        a(f"s_mul_i32 s{sB}, s{sB}, {48*8192}")
        a(f"s_add_u32 s{sB}, s{sB}, s{sD}")
        a(f"s_add_u32 s{SO}, s52, s{sB}")
        a(f"s_addc_u32 s{SO+1}, s53, 0")
        a(f"s_sub_u32 s{SO+2}, {48*8192}, s{sD}")
        a(f"s_mov_b32 s{SO+3}, 0x20000")
        a(f"s_lshl_b32 s{sB}, s{sBt}, 2")
        a(f"s_add_u32 s{sB}, s{sB}, s{sKvh}")
        a(f"s_lshl_b32 s{sB}, s{sB}, 18")
        a(f"s_add_u32 s{SK}, s{SK}, s{sB}")
        a(f"s_addc_u32 s{SK+1}, s{SK+1}, 0")
        a(f"s_mov_b32 s{SK+2}, 262144")
        a(f"s_mov_b32 s{SK+3}, 0x20000")
        a(f"s_add_u32 s{SV}, s{SV}, s{sB}")
        a(f"s_addc_u32 s{SV+1}, s{SV+1}, 0")
        a(f"s_mov_b32 s{SV+2}, 262144")
        a(f"s_mov_b32 s{SV+3}, 0x20000")
        a(f"s_mov_b32 s{STCH+2}, 262144")
        a(f"s_mov_b32 s{STCH+3}, 0x20000")
        a(f"s_lshl_b32 s{sB}, s{sBr}, 3")
        a(f"s_add_u32 s{sB}, s{sB}, s{sBt}")
        a(f"s_lshl_b32 s{sGrp}, s{sB}, 4")
        a(f"s_lshl_b32 s{sB}, s{sB}, 8")
        a(f"s_add_u32 s{sB}, s{sB}, {FLAGOFF}")
        a(f"s_add_u32 s{SFL}, s52, s{sB}")
        a(f"s_addc_u32 s{SFL+1}, s53, 0")
        a(f"s_mov_b32 s{SFL+2}, 64")
        a(f"s_mov_b32 s{SFL+3}, 0x20000")
        a(f"s_load_dwordx2 s[{sTok}:{sTok+1}], s[{SX}:{SX+1}], 0")
        a(f"s_lshl_b32 s{sIdx}, s{sKvh}, 2")
        a(f"s_add_u32 s{sIdx}, s{sIdx}, s{sPair}")

        patterns()

    def kread(n):
        a(f"ds_read_b128 {vr(F+4*n,4)}, v{KA0 + (n & 1)} offset:{(n >> 1)*256}")
    def setup2():
        a(f"v_and_b32 v{t0}, 31, v0")
        a(f"v_lshrrev_b32 v{t1}, 5, v0")
        a(f"v_and_b32 v{t2}, 15, v0")
        a(f"v_xor_b32 v{t2}, v{t1}, v{t2}")
        a(f"v_lshlrev_b32 v{t2}, 4, v{t2}")
        a(f"v_lshl_add_u32 v{t2}, v{t0}, 8, v{t2}")
        a(f"s_lshl_b32 s{sA}, s{sQt}, 13")
        a(f"s_add_u32 s{sA}, s{sA}, {XBASE}")
        a(f"v_add_u32 v{vTb}, s{sA}, v{t2}")
        a(f"v_lshrrev_b32 v{t2}, 2, v{t0}")
        a(f"v_and_b32 v{t3}, 3, v{t2}")
        a(f"v_xor_b32 v{t3}, v{t1}, v{t3}")
        a(f"v_lshlrev_b32 v{t3}, 4, v{t3}")
        a(f"v_lshl_add_u32 v{t3}, v{t2}, 10, v{t3}")
        a(f"v_and_b32 v{t2}, 3, v0")
        a(f"v_lshl_add_u32 v{t3}, v{t2}, 6, v{t3}")
        a(f"s_lshl_b32 s{sA}, s{sKq}, 13")
        a(f"v_add_u32 v{KA0}, s{sA}, v{t3}")
        a(f"v_xor_b32 v{KA1}, 32, v{KA0}")
        a(f"v_bfe_u32 v{t2}, v0, 2, 2")
        a(f"v_lshlrev_b32 v{t2}, 6, v{t2}")
        a(f"v_lshl_add_u32 v{t2}, v{t1}, 10, v{t2}")
        a(f"v_bfe_u32 v{t3}, v0, 4, 1")
        a(f"v_lshl_add_u32 v{t2}, v{t3}, 5, v{t2}")
        a(f"v_bfe_u32 v{t3}, v0, 1, 1")
        a(f"v_lshl_add_u32 v{t2}, v{t3}, 4, v{t2}")
        a(f"v_and_b32 v{t3}, 1, v0")
        a(f"v_lshl_add_u32 v{t2}, v{t3}, 3, v{t2}")
        a(f"s_add_u32 s{sA}, s{sA}, 32768")
        a(f"v_add_u32 v{VA}, s{sA}, v{t2}")
        for j in range(4):
            a(f"s_sub_u32 s{sA}, s{sQt}, 1")
            a(f"s_lshl_b32 s{sA}, s{sA}, 1")
            a(f"s_add_u32 s{sA}, s{sA}, {j >> 1}")
            a(f"s_add_u32 s{sB}, s{sKq}, {4*(j & 1)}")
            a(f"s_lshl_b32 s{sB}, s{sB}, 10")
            a(f"s_lshl_b32 s{sD}, s{sA}, 16")
            a(f"s_add_u32 s{sG[j]}, s{sD}, s{sB}")
            a(f"s_lshl_b32 s{sD}, s{sA}, 13")
            a(f"s_add_u32 s{sL[j]}, s{sD}, s{sB}")
        a(f"s_mov_b32 s{sStep}, 0")
        a(f"s_mov_b32 s{sKn}, {4*32768}")
        a(f"s_mov_b32 s{sVn}, 0")
        a(f"s_mov_b32 s{sGstep}, 16384")
        a(f"s_mov_b32 s{sKc}, 65536")
        a(f"s_mov_b32 s{sVc}, 32768")
        a(f"s_mov_b32 s{sThr}, 0xff800000")
        a(f"s_mov_b32 s{sFloor}, 0xff800000")
        a(f"s_mov_b32 s{sSafe}, {opt.get('safe', 1)}")
        for r in range(0, 16, 2):
            a(f"v_mov_b64 {vr(NM+r,2)}, 0")

    def issueW(slot_expr_sgpr, goff_sgpr, vreg):
        for j in range(8):
            m1, m3, m4 = j & 1, (j >> 1) & 1, (j >> 2) & 1
            dm = 2*m1 + 8*m3 + 16*m4
            a(f"s_add_u32 m0, s{slot_expr_sgpr}, {dm*1024}")
            a(f"s_add_u32 s{sA}, s{goff_sgpr}, {dm*16384}")
            a(f"buffer_load_dwordx4 v{vreg}, s[{SWQ}:{SWQ+3}], s{sA} offen{NTQ} lds")
    def issueX(slot_sgpr, goff_sgpr):
        for j in range(3):
            a(f"s_add_u32 m0, s{slot_sgpr}, {j*4096}")
            a(f"s_add_u32 s{sA}, s{goff_sgpr}, {j*16*2048}")
            a(f"buffer_load_dwordx4 v{vXo}, s[{SX}:{SX+3}], s{sA} offen{NTX} lds")
    a(f"v_lshrrev_b32 v{t0}, 5, v0")
    a(f"v_and_b32 v{t1}, 31, v0")
    a(f"s_and_b32 s{sE}, s{sKq}, 1")
    a(f"s_lshl_b32 s{sE}, s{sE}, 1")
    a(f"s_lshr_b32 s{sB}, s{sKq}, 1")
    a(f"s_lshl_b32 s{sB}, s{sB}, 2")
    a(f"s_or_b32 s{sE}, s{sE}, s{sB}")
    a(f"v_or_b32 v{t2}, s{sE}, v{t0}")
    a(f"v_lshlrev_b32 v{t2}, 1, v{t2}")
    a(f"v_xor_b32 v{t2}, v{t1}, v{t2}")
    a(f"v_lshlrev_b32 v{t2}, 4, v{t2}")
    a(f"v_lshl_add_u32 v{vWo}, v{t0}, 13, v{t2}")
    a(f"s_and_b32 s{sE}, s{sKq}, 1")
    a(f"s_or_b32 s{sE}, s{sE}, s{sB}")
    a(f"s_lshl_b32 s{sB}, s{sE}, 14")
    a(f"v_add_u32 v{vWo}, s{sB}, v{vWo}")
    a(f"s_lshl_b32 s{sWs}, s{sE}, 10")
    if ROT == 1:
        a(f"s_lshl_b32 s{sXg}, s{sPair}, 1")
        a(f"s_add_u32 s{sXg}, s{sXg}, s{sBt}")
        a(f"s_and_b32 s{sXg}, s{sXg}, 7")
        a(f"s_lshl_b32 s{sWg}, s{sXg}, 20")
        a(f"s_lshl_b32 s{sXg}, s{sXg}, 8")
    elif ROT == 4:
        a(f"s_add_u32 s{sXg}, s{sPair}, s{sBt}")
        a(f"s_and_b32 s{sXg}, s{sXg}, 3")
        a(f"s_lshl_b32 s{sXg}, s{sXg}, 1")
        a(f"s_lshl_b32 s{sWg}, s{sXg}, 20")
        a(f"s_lshl_b32 s{sXg}, s{sXg}, 8")
    elif ROT == 2:
        a(f"s_add_u32 s{sXg}, s{sPair}, s{sBt}")
        a(f"s_and_b32 s{sXg}, s{sXg}, 1")
        a(f"s_lshl_b32 s{sXg}, s{sXg}, 2")
        a(f"s_lshl_b32 s{sWg}, s{sXg}, 20")
        a(f"s_lshl_b32 s{sXg}, s{sXg}, 8")
    else:
        a(f"s_mov_b32 s{sXg}, 0")
        a(f"s_mov_b32 s{sWg}, 0")
    a(f"s_cmp_ge_u32 s{sW}, 8")
    a("s_cbranch_scc1 K1_LOADER")
    a(f"s_add_u32 s{sB}, s{sQt}, 1")
    a(f"s_lshl_b32 s{sE}, s{sB}, 15")
    a(f"s_add_u32 s{sWs}, s{sWs}, s{sE}")
    a(f"s_lshl_b32 s{sE}, s{sB}, 19")
    a(f"s_add_u32 s{sWg}, s{sWg}, s{sE}")
    a(f"s_and_b32 s{sWg}, s{sWg}, 0x7fffff")
    srd1()
    if opt.get("t1", 0):
        a(f"v_lshrrev_b32 v{t0}, 4, v0")
        a(f"v_lshlrev_b32 v{t0}, 13, v{t0}")
        a(f"v_and_b32 v{t1}, 15, v0")
        a(f"v_lshl_add_u32 v{t0}, v{t1}, 7, v{t0}")
        a(f"s_lshr_b32 s{sB}, s2, 3")
        a(f"s_lshl_b32 s{sB}, s{sB}, 15")
        a(f"s_lshl_b32 s{sE}, s{sW}, 20")
        a(f"s_add_u32 s{sB}, s{sB}, s{sE}")
        a(f"s_lshl_b32 s{sE}, s{sPair}, 9")
        a(f"s_sub_u32 s82, s{SWQ}, s{sE}")
        a(f"s_subb_u32 s83, s{SWQ+1}, 0")
        a(f"v_add_u32 v{t0}, s{sB}, v{t0}")
        a(f"s_cmp_lt_u32 s{sW}, {opt.get('t1first', 1)}")
        a("s_cbranch_scc1 K1_NOT1")
        a(f"global_load_dword v{F+31}, v{t0}, s[82:83]")
        a.label("K1_NOT1")
        a(f"s_cmp_ge_u32 s{sW}, 3")
        a("s_cbranch_scc1 K1_NOT2")
        a(f"v_lshrrev_b32 v{t0}, 4, v0")
        a(f"s_mul_i32 s{sB}, s{sPair}, 12")
        a(f"s_lshl_b32 s{sE}, s{sW}, 2")
        a(f"s_add_u32 s{sB}, s{sB}, s{sE}")
        a(f"v_add_u32 v{t0}, s{sB}, v{t0}")
        a(f"v_lshlrev_b32 v{t0}, 11, v{t0}")
        a(f"v_lshl_add_u32 v{t0}, v{t1}, 7, v{t0}")
        a(f"buffer_load_dword v{F+30}, v{t0}, s[{SX}:{SX+3}], 0 offen")
        a.label("K1_NOT2")
    if not opt.get("latew", 1):
        issueW(sWs, sWg, vWo)

    a.c("phase 1 compute")
    a(f"v_bfe_u32 v{t0}, v0, 2, 2")
    a(f"v_lshrrev_b32 v{t1}, 4, v0")
    a(f"v_and_b32 v{t2}, 1, v{t1}")
    a(f"v_lshl_or_b32 v{t2}, v{t2}, 2, v{t0}")
    a(f"s_lshl_b32 s{sE}, s{sW}, 1")
    a(f"v_xor_b32 v{t2}, s{sE}, v{t2}")
    a(f"v_lshl_add_u32 v{t3}, v{t1}, 3, v{t0}")
    a(f"v_lshlrev_b32 v{t3}, 9, v{t3}")
    a(f"v_lshl_add_u32 v{t3}, v{t2}, 5, v{t3}")
    a(f"v_and_b32 v{t4}, 3, v0")
    a(f"v_lshl_add_u32 v{WA}, v{t4}, 3, v{t3}")
    a(f"v_xor_b32 v{WA+1}, 32, v{WA}")
    a(f"v_and_b32 v{t0}, 15, v0")
    a(f"v_xor_b32 v{t2}, v{t1}, v{t0}")
    a(f"v_lshlrev_b32 v{t2}, 4, v{t2}")
    a(f"v_lshl_add_u32 v{t2}, v{t0}, 8, v{t2}")
    a(f"v_add_u32 v{XA}, {XBASE:#x}, v{t2}")
    a(f"v_xor_b32 v{XA+1}, 64, v{XA}")
    a(f"v_xor_b32 v{XA+2}, 0x80, v{XA}")
    a(f"v_xor_b32 v{XA+3}, 0xc0, v{XA}")
    for r in range(24):
        a(f"v_mov_b32 v{ACC+r}, 0")
    srd2()
    if opt.get("fused", 1):
        a(f"s_cmp_lg_u32 s{sW}, 1")
        a("s_cbranch_scc1 K1_NOZ")
        a(f"s_lshl_b32 s{sE}, s{sIdx}, 2")
        a(f"v_mov_b32 v{t0}, 0")
        a(f"v_mov_b32 v{t1}, s{sE}")
        a("s_mov_b64 exec, 1")
        a(f"buffer_store_dword v{t0}, v{t1}, s[{SFL}:{SFL+3}], 0 offen sc1")
        a("s_mov_b64 exec, -1")
        a.label("K1_NOZ")
    a(f"v_mov_b32 v{vCs}, {f2u(CSCALE):#x}")
    a(f"v_and_b32 v{t0}, 15, v0")
    a(f"v_lshrrev_b32 v{t1}, 4, v0")
    a(f"s_lshl_b32 s{sE}, s{sKq}, 2")
    a(f"v_lshrrev_b32 v{t2}, 1, v{t1}")
    a(f"v_add_u32 v{t2}, s{sE}, v{t2}")
    a(f"v_xor_b32 v{t2}, v{t2}, v{t0}")
    a(f"v_lshlrev_b32 v{t2}, 4, v{t2}")
    a(f"v_lshl_add_u32 v{t2}, v{t0}, 8, v{t2}")
    a(f"v_and_b32 v{t3}, 1, v{t1}")
    a(f"v_lshl_add_u32 v{t2}, v{t3}, 3, v{t2}")
    a(f"s_mul_i32 s{sE}, s{sQt}, {48*256}")
    a(f"s_add_u32 s{sE}, s{sE}, {XBASE}")
    a(f"v_add_u32 v{QW}, s{sE}, v{t2}")
    a(f"v_xor_b32 v{QW+1}, 32, v{QW}")
    setup2()
    if opt.get("dbgtouch", 0):
        a("s_load_dwordx2 s[82:83], s[0:1], 88")
        a("s_waitcnt lgkmcnt(0)")
        a("v_mov_b32 v162, 0")
        a("global_load_dword v163, v162, s[82:83] sc1")
    if opt.get("latew", 1):
        issueW(sWs, sWg, vWo)
    a(f"s_mov_b32 s{sP}, 0")
    FB = [88, 24]
    def p1_reads(sp):
        fb = FB[sp]
        for ks in range(2):
            for tt in range(2):
                for e in range(2):
                    off = sp * 32768 + ks * 16384 + e * 2048
                    a(f"ds_read_b64_tr_b16 {vr(fb + (tt*2+ks)*4 + e*2, 2)}, v{WA+tt} offset:{off}")
            for rt in range(3):
                a(f"ds_read_b128 {vr(fb + 16 + (rt*2+ks)*4, 4)}, v{XA + sp*2 + ks} offset:{rt*4096}")
    def p1_mfma(sp):
        fb = FB[sp]
        for ks in range(2):
            for rt in range(3):
                for tt in range(2):
                    acc = ACC + (tt*3+rt)*4
                    a(f"{MF16} {vr(acc,4)}, {vr(fb+(tt*2+ks)*4,4)}, {vr(fb+16+(rt*2+ks)*4,4)}, {vr(acc,4)}")
    a("s_barrier")
    P.stamp(2)
    p1_reads(0)
    a("s_waitcnt vmcnt(0) lgkmcnt(0)")
    a("s_branch K1_P1_MID")
    a.label("K1_P1_LOOP")
    a("s_barrier")
    p1_reads(0)
    p1_mfma(1)
    a("s_waitcnt lgkmcnt(0)")
    a.label("K1_P1_MID")
    a("s_barrier")
    p1_reads(1)
    a(f"v_xor_b32 v{WA}, 0x10000, v{WA}")
    a(f"v_xor_b32 v{WA+1}, 0x10000, v{WA+1}")
    for v in range(4):
        a(f"v_xor_b32 v{XA+v}, 0x4000, v{XA+v}")
    p1_mfma(0)
    a(f"s_add_u32 s{sP}, s{sP}, 1")
    a("s_waitcnt lgkmcnt(0)")
    a(f"s_cmp_lt_u32 s{sP}, 8")
    a("s_cbranch_scc1 K1_P1_LOOP")
    a("s_barrier")
    P.stamp(3)
    p1_mfma(1)
    a("s_nop 7")
    for tt in range(2):
        for rt in range(3):
            acc = ACC + (tt*3+rt)*4
            for r in range(4):
                a(f"v_mul_f32 v{acc+r}, v{vCs}, v{acc+r}")
            a(f"v_cvt_pk_bf16_f32 v{acc}, v{acc}, v{acc+1}")
            a(f"v_cvt_pk_bf16_f32 v{acc+1}, v{acc+2}, v{acc+3}")
            a(f"ds_write_b64 v{QW+tt}, {vr(acc,2)} offset:{rt*4096}")
    a("s_waitcnt lgkmcnt(0)")
    a("s_branch K1_JOIN")
    if TOUCH:
        for sp in range(2):
            a.label(f"K1_T1_{sp}")
            a(f"s_cmp_lt_u32 s{sP}, {T2_START//2}")
            a(f"s_cbranch_scc1 K1_T1R_{sp}")
            a(f"s_sub_u32 s{sA}, s{sP}, {T2_START//2}")
            a(f"s_lshl_b32 s{sA}, s{sA}, 13")
            a(f"s_lshl_b32 s{sB}, s{sPair}, 16")
            a(f"s_add_u32 s{sA}, s{sA}, s{sB}")
            srd = SK if sp == 0 else SV
            a(f"buffer_load_dword v{vVoff}, v{vTch}, s[{srd}:{srd+3}], s{sA} offen{NTT}")
            a(f"s_branch K1_T1R_{sp}")

    a.label("K1_LOADER")
    a("s_setprio 3")
    a(f"s_sub_u32 s{sLam}, s{sW}, 8")
    a(f"v_lshrrev_b32 v{t0}, 4, v0")
    a(f"v_and_b32 v{t1}, 15, v0")
    a(f"s_lshl_b32 s{sE}, s{sLam}, 2")
    a(f"v_or_b32 v{t2}, s{sE}, v{t0}")
    a(f"v_xor_b32 v{t3}, v{t1}, v{t2}")
    a(f"v_lshlrev_b32 v{t3}, 4, v{t3}")
    a(f"v_lshl_add_u32 v{vXo}, v{t2}, 11, v{t3}")
    def issueKV_loader(srd, voff, slot, step, uid=None):
        a(f"s_lshl_b32 s{sB}, s{sLam}, 10")
        for e in range(8):
            lo = slot*32768 + (e >> 1)*8192 + (e & 1)*4096
            go = (e >> 1)*65536 + step*8192 + (e & 1)*4096
            a(f"s_add_u32 m0, s{sB}, {lo}")
            a(f"s_add_u32 s{sA}, s{sB}, {go}")
            a(f"buffer_load_dwordx4 v{voff}, s[{srd}:{srd+3}], s{sA} offen{NTD} lds")
    a(f"s_lshl_b32 s{sXs}, s{sLam}, 10")
    a(f"s_add_u32 s{sXs}, s{sXs}, {XBASE}")
    srd1()
    P.stamp(9)
    def nextW():
        a(f"s_add_u32 s{sWs}, s{sWs}, 32768")
        a(f"s_and_b32 s{sWs}, s{sWs}, 0x1ffff")
        a(f"s_add_u32 s{sWg}, s{sWg}, 524288")
        a(f"s_and_b32 s{sWg}, s{sWg}, 0x7fffff")
    def nextX():
        a(f"s_xor_b32 s{sXs}, s{sXs}, 0x4000")
        a(f"s_add_u32 s{sXg}, s{sXg}, 256")
        a(f"s_and_b32 s{sXg}, s{sXg}, 0x7ff")
    issueX(sXs, sXg)
    issueW(sWs, sWg, vWo)
    P.stamp(10)
    a(f"s_add_u32 s{sWs}, s{sWs}, {3*32768}")
    a(f"s_add_u32 s{sWg}, s{sWg}, {3*524288}")
    a(f"s_and_b32 s{sWg}, s{sWg}, 0x7fffff")
    srd2()
    setup2()
    a(f"s_mov_b32 s{sP}, 0")
    a("s_waitcnt vmcnt(0)")
    P.stamp(11)
    a("s_setprio 0")
    a("s_barrier")
    a("s_branch K1_LD_MID")
    a.label("K1_LD_LOOP")
    a("s_waitcnt vmcnt(16)")
    a("s_barrier")
    a.label("K1_LD_MID")
    nextX(); issueX(sXs, sXg)
    issueW(sWs, sWg, vWo); nextW()
    a("s_waitcnt vmcnt(19)")
    a("s_barrier")
    issueW(sWs, sWg, vWo); nextW()
    a(f"s_add_u32 s{sP}, s{sP}, 1")
    a(f"s_cmp_lt_u32 s{sP}, 6")
    a("s_cbranch_scc1 K1_LD_LOOP")
    a("s_waitcnt vmcnt(16)")
    a("s_barrier")
    nextX(); issueX(sXs, sXg)
    issueW(sWs, sWg, vWo)
    a("s_waitcnt vmcnt(19)")
    a("s_barrier")
    issueKV_loader(SK, vKoff, 0, 0)
    a("s_waitcnt vmcnt(16)")
    a("s_barrier")
    issueKV_loader(SV, vVoff, 1, 0)
    a("s_waitcnt vmcnt(16)")
    a("s_barrier")
    issueKV_loader(SK, vKoff, 2, 1)
    a("s_barrier")
    issueKV_loader(SV, vVoff, 3, 1)
    a("s_waitcnt vmcnt(8)")

    a.label("K1_JOIN")
    a("s_waitcnt lgkmcnt(0)")
    a(f"s_lshl_b32 s{sA}, s{sTok+1}, 7")
    a(f"s_xor_b32 s{sTok}, s{sTok}, s{sA}")
    a(f"s_or_b32 s{sTok}, s{sTok}, 1")
    if TOUCH:
        a(f"s_cmp_ge_u32 s{sW}, 4")
        a("s_cbranch_scc1 K1_NOTCH")
        a(f"v_lshlrev_b32 v{vKoff}, 7, v0")
        a.label("K1_NOTCH")
    a("s_barrier")
    for ks in range(8):
        a(f"v_xor_b32 v{vMx}, {ks << 5:#x}, v{vTb}")
        a(f"ds_read_b128 {vr(Q+4*ks,4)}, v{vMx}")
    for ks in range(8):
        kread(ks)
    a.label("K1_JOIN2")
    for r in range(0, 64, 2):
        a(f"v_mov_b64 {vr(O+r,2)}, 0")
    a(f"v_mov_b32 v{vL}, 0")
    a(f"s_mov_b32 s{sDk}, 65536")
    a(f"s_cmp_eq_u32 s{sQt}, 1")
    a(f"s_cselect_b32 s{sTl}, {opt.get('wotstep', 6)}, 99")
    a("s_waitcnt lgkmcnt(0)")
    P.stamp(4)
    a(f"s_cmp_ge_u32 s{sW}, 4")
    a("s_cbranch_scc1 K1_B_BAR")
    a("s_branch K1_A_BAR")

    def rot(sreg):
        a(f"s_add_u32 s{sreg}, s{sreg}, 65536")
        a(f"s_cmp_ge_u32 s{sreg}, 163840")
        a(f"s_cselect_b32 s{sA}, 163840, 0")
        a(f"s_sub_u32 s{sreg}, s{sreg}, s{sA}")

    LIGHT = opt.get("light", 0)
    def ls(k):
        if LIGHT: a(f"s_memtime s[{84+2*k}:{85+2*k}]")
    def step_body(v):
        isB = (v == "B")
        dodma = isB and not (AB & 1)
        def dma(kind, j):
            if not dodma: return
            if kind == 'V':
                a(f"s_add_u32 m0, s{sVn}, s{sL[j]}")
                a(f"s_add_u32 s{sA}, s{sGstep}, s{sG[j]}")
                a(f"buffer_load_dwordx4 v{vVoff}, s[{SV}:{SV+3}], s{sA} offen{NTD} lds")
            else:
                a(f"s_add_u32 m0, s{sKn}, s{sL[j]}")
                a(f"s_add_u32 s{sA}, s{sGstep}, s{sG[j]}")
                a(f"buffer_load_dwordx4 v{vKoff}, s[{SK}:{SK+3}], s{sA} offen{NTD} lds")
        def vreads(kk):
            if AB & 2:
                for _ in range(8): a("s_nop 0")
                return
            for dt in range(4):
                for e in range(2):
                    a(f"ds_read_b64_tr_b16 {vr(F+(kk*4+dt)*4+2*e,2)}, v{VA} offset:{kk*4096+e*2048+dt*256}")
        a.label(f"K1_{v}_TOP")
        a(f"s_waitcnt {'vmcnt(4) ' if isB else ''}lgkmcnt(0)")
        a.label(f"K1_{v}_BAR")
        if PRIO: a(f"s_setprio {PQ}")
        if v == "B" or True: ls(0)
        a("s_barrier")
        ls(1)
        def vread1(n):
            if AB & 2: return
            kk, dt = n >> 2, n & 3
            for e in range(2):
                a(f"ds_read_b64_tr_b16 {vr(F+n*4+2*e,2)}, v{VA} offset:{kk*4096+e*2048+dt*256}")
        for ks in range(8):
            cin = vr(NM,16) if ks == 0 else vr(S,16)
            a(f"{MF32} {vr(S,16)}, {vr(F+4*ks,4)}, {vr(Q+4*ks,4)}, {cin}")
            if ks < 7: vread1(ks)
            if ks == 0:
                a(f"v_add_u32 v{KA0}, s{sDk}, v{KA0}")
                a(f"v_add_u32 v{KA1}, s{sDk}, v{KA1}")
                a(f"s_mov_b32 s{sDk}, s{sKc}")
            if ks == 2:
                rot(sKc)
            if ks == 4:
                a(f"s_sub_u32 s{sDk}, s{sKc}, s{sDk}")
                a(f"s_mov_b32 s{sDv}, s{sVc}")
                a(f"s_add_u32 s{sVc}, s{sVc}, 65536")
                a(f"s_cmp_ge_u32 s{sVc}, 163840")
            if ks == 4:
                a(f"s_cselect_b32 s{sA}, 163840, 0")
                a(f"s_sub_u32 s{sVc}, s{sVc}, s{sA}")
            if ks in (1, 3, 5, 6):
                dma('K', {1: 0, 3: 1, 5: 2, 6: 3}[ks])
        ls(2)
        if PRIO and PS != PQ: a(f"s_setprio {PS}")
        vread1(7)
        a(f"s_sub_u32 s{sDv}, s{sVc}, s{sDv}")
        a(f"v_add_u32 v{VA}, s{sDv}, v{VA}")
        if not isB and WOT:
            a(f"s_cmp_eq_u32 s{sStep}, s{sTl}")
            a("s_cbranch_scc1 K1_A_TOUCH")
            a.label("K1_A_TOUCHR")
            a("s_nop 4")
        else:
            a("s_nop 6")
        a(f"s_cmp_lt_u32 s{sStep}, s{sSafe}")
        a(f"s_cbranch_scc1 K1_{v}_MAX")
        a.label(f"K1_{v}_CONT")
        ls(3)
        for k in range(8):
            if not AB & 8:
                a(f"v_exp_f32 v{S+2*k}, v{S+2*k}")
                a(f"v_exp_f32 v{S+2*k+1}, v{S+2*k+1}")
            if k >= 1 and not AB & 8:
                kk = k - 1
                a(f"v_add_f32 v{vL}, v{vL}, v{S+2*kk}")
                a(f"v_add_f32 v{vL}, v{vL}, v{S+2*kk+1}")
                a(f"v_cvt_pk_bf16_f32 v{S+kk}, v{S+2*kk}, v{S+2*kk+1}")
        a(f"v_add_f32 v{vL}, v{vL}, v{S+14}")
        a(f"v_add_f32 v{vL}, v{vL}, v{S+15}")
        a(f"v_cvt_pk_bf16_f32 v{S+7}, v{S+14}, v{S+15}")
        ls(4)
        if PRIO and PP != PS: a(f"s_setprio {PP}")
        if not LIGHT: a("s_waitcnt lgkmcnt(0)")
        else: a("s_waitcnt lgkmcnt(1)")
        for kk in range(2):
            for dt in range(4):
                n = kk*4 + dt
                a(f"{MF32} {vr(O+16*dt,16)}, {vr(F+(kk*4+dt)*4,4)}, {vr(S+4*kk,4)}, {vr(O+16*dt,16)}")
                if not AB & 4: kread(n)
                if n in (0, 1, 2, 3):
                    dma('V', n)
                if n == 4:
                    a(f"s_add_u32 s{sStep}, s{sStep}, 1")
                if n == 2 and isB:
                    pass
                if n == 4 and isB:
                    rot(sVn)
                if n == 5 and isB:
                    rot(sKn)
                if n == 6 and isB:
                    a(f"s_add_u32 s{sGstep}, s{sGstep}, 8192")
                    if NS2 != 8: a(f"s_and_b32 s{sGstep}, s{sGstep}, 0xffff")
        ls(5)
        if LIGHT:
            a(f"s_cmp_lg_u32 s{sStep}, 41")
            a(f"s_cbranch_scc1 K1_{v}_NOCOPY")
            a("s_waitcnt lgkmcnt(0)")
            for k in range(6):
                a(f"s_mov_b32 s{96+k}, s{84+2*k}")
            a.label(f"K1_{v}_NOCOPY")
        if isB:
            a(f"s_cmp_lt_u32 s{sStep}, {NS2-2}")
            a("s_cbranch_scc1 K1_B_TOP")
            a("s_waitcnt vmcnt(0)")
            a("s_branch K1_A_TOP")
        else:
            a(f"s_cmp_lt_u32 s{sStep}, {NS2}")
            a("s_cbranch_scc1 K1_A_TOP")
            a("s_branch K1_P2_END")
        a.label(f"K1_{v}_MAX")
        a(f"v_max3_f32 v{vMx}, v{S+0}, v{S+1}, v{S+2}")
        a(f"v_max3_f32 v{vTb}, v{S+3}, v{S+4}, v{S+5}")
        a(f"v_max3_f32 v{vMx}, v{vMx}, v{S+6}, v{S+7}")
        a(f"v_max3_f32 v{vTb}, v{vTb}, v{S+8}, v{S+9}")
        a(f"v_max3_f32 v{vMx}, v{vMx}, v{S+10}, v{S+11}")
        a(f"v_max3_f32 v{vTb}, v{vTb}, v{S+12}, v{S+13}")
        a(f"v_max3_f32 v{vMx}, v{vMx}, v{S+14}, v{S+15}")
        a(f"v_max_f32 v{vMx}, v{vMx}, v{vTb}")
        a(f"v_cmp_lt_f32 vcc, s{sThr}, v{vMx}")
        a(f"s_cbranch_vccz K1_{v}_CONT")
        a.label(f"K1_{v}_RARE")
        a(f"v_mov_b32 v{vTb}, v{vMx}")
        a("s_nop 1")
        a(f"v_permlane32_swap_b32 v{vMx}, v{vTb}")
        a(f"v_max_f32 v{vMx}, v{vMx}, v{vTb}")
        a(f"v_max_f32 v{vMx}, s{sFloor}, v{vMx}")
        a(f"v_max_f32 v{vTb}, 0, v{vMx}")
        a(f"v_sub_f32 v{vTb}, 0, v{vTb}")
        a(f"v_exp_f32 v{vTb}, v{vTb}")
        a(f"s_mov_b32 s{sThr}, {f2u(8.0):#x}")
        a(f"s_mov_b32 s{sFloor}, 0")
        for r in range(16):
            a(f"v_sub_f32 v{S+r}, v{S+r}, v{vMx}")
        a(f"v_sub_f32 v{NM}, v{NM}, v{vMx}")
        for r in range(1, 16):
            a(f"v_mov_b32 v{NM+r}, v{NM}")
        a(f"s_cmp_eq_u32 s{sStep}, 0")
        a(f"s_cbranch_scc1 K1_{v}_CONT")
        a(f"v_mul_f32 v{vL}, v{vL}, v{vTb}")
        for r in range(64):
            a(f"v_mul_f32 v{O+r}, v{O+r}, v{vTb}")
        a(f"s_branch K1_{v}_CONT")

    step_body("B")
    step_body("A")
    if WOT:
        a.label("K1_A_TOUCH")
        a(f"s_cmp_eq_u32 s{sBr}, 0")
        a(f"s_cselect_b64 s[{STCH}:{STCH+1}], s[{SWOP}:{SWOP+1}], s[50:51]")
        a(f"s_mov_b32 s{STCH+2}, 8388608")
        a(f"v_mbcnt_lo_u32_b32 v{vKoff}, -1, 0")
        a(f"v_mbcnt_hi_u32_b32 v{vKoff}, -1, v{vKoff}")
        a(f"v_and_b32 v{vVoff}, 3, v{vKoff}")
        a(f"v_lshrrev_b32 v{vKoff}, 2, v{vKoff}")
        a(f"v_lshlrev_b32 v{vKoff}, 11, v{vKoff}")
        a(f"v_lshl_add_u32 v{vKoff}, v{vVoff}, 7, v{vKoff}")
        a(f"s_lshr_b32 s{sA}, s2, 3")
        a(f"s_lshl_b32 s{sA}, s{sA}, 2")
        a(f"s_add_u32 s{sA}, s{sA}, s{sKq}")
        a(f"s_lshl_b32 s{sA}, s{sA}, 16")
        a(f"s_lshl_b32 s{sB}, s{sKvh}, 9")
        a(f"s_add_u32 s{sA}, s{sA}, s{sB}")
        a(f"buffer_load_dword v{vVoff}, v{vKoff}, s[{STCH}:{STCH+3}], s{sA} offen{NTW}")
        a(f"s_add_u32 s{sA}, s{sA}, 32768")
        a(f"buffer_load_dword v{vVoff}, v{vKoff}, s[{STCH}:{STCH+3}], s{sA} offen{NTW}")
        a("s_branch K1_A_TOUCHR")

    a.label("K1_REDO")
    a("s_waitcnt vmcnt(0) lgkmcnt(0)")
    a(f"v_mbcnt_lo_u32_b32 v0, -1, 0")
    a(f"v_mbcnt_hi_u32_b32 v0, -1, v0")
    a("s_barrier")
    patterns()
    _t = (8, 9, 10, 11, 12)
    setup2()
    a(f"s_mov_b32 s{sSafe}, 8")
    a(f"s_cmp_lt_u32 s{sW}, 8")
    a("s_cbranch_scc1 K1_REDO2")
    issueKV_loader(SK, vKoff, 0, 0, "r0")
    issueKV_loader(SV, vVoff, 1, 0, "r1")
    issueKV_loader(SK, vKoff, 2, 1, "r2")
    issueKV_loader(SV, vVoff, 3, 1, "r3")
    a("s_waitcnt vmcnt(8)")
    a.label("K1_REDO2")
    a("s_barrier")
    for ks in range(8):
        kread(ks)
    a("s_branch K1_JOIN2")

    a.label("K1_P2_END")
    P.stamp(5)
    FUSED = opt.get("fused", 1)
    SC1 = " sc1" if FUSED else ""
    t0, t1, t2, t3, t4 = NM+2, NM+3, NM+4, NM+5, NM+6
    vLane = NM+7
    STAT, EX, STG = 32768, 36864, 114688
    if FUSED:
        a("s_load_dwordx2 s[48:49], s[0:1], 80")
    a(f"v_mbcnt_lo_u32_b32 v{vLane}, -1, 0")
    a(f"v_mbcnt_hi_u32_b32 v{vLane}, -1, v{vLane}")
    a(f"v_mov_b32 v{t1}, v{vL}")
    ST = NM + 8
    a(f"v_sub_f32 v{ST}, 0, v{NM}")
    a(f"v_and_b32 v{t0}, 31, v{vLane}")
    a(f"v_permlane32_swap_b32 v{vL}, v{t1}")
    a(f"v_add_f32 v{ST+1}, v{vL}, v{t1}")
    BADF = STAT + 3072
    a(f"v_cmp_ngt_f32 vcc, {f2u(2.0**20):#x}, v{ST+1}")
    a(f"s_lshl_b32 s{sA}, s{sW}, 2")
    a(f"s_add_u32 s{sA}, s{sA}, {BADF}")
    a(f"v_mov_b32 v{t3}, s{sA}")
    a(f"s_cmp_lg_u64 vcc, 0")
    a(f"s_cselect_b32 s{sA}, 1, 0")
    a(f"s_cmp_eq_u32 s{sSafe}, 1")
    a(f"s_cselect_b32 s{sA}, s{sA}, 0")
    a(f"v_mov_b32 v{t4}, s{sA}")
    a(f"ds_write_b32 v{t3}, v{t4}")
    a(f"v_lshlrev_b32 v{t0}, 3, v{t0}")
    a(f"s_lshl_b32 s{sA}, s{sQt}, 10")
    a(f"s_add_u32 s{sA}, s{sA}, {STAT}")
    a(f"v_add_u32 v{t0}, s{sA}, v{t0}")
    a(f"s_lshl_b32 s{sB}, s{sKq}, 8")
    a(f"v_add_u32 v{t1}, s{sB}, v{t0}")
    R = S
    a(f"v_lshlrev_b32 v{t2}, 4, v{vLane}")
    a(f"s_mul_i32 s{sB}, s{sQt}, {4*3*2048}")
    a(f"s_add_u32 s{sB}, s{sB}, {EX}")
    a(f"ds_write_b64 v{t1}, {vr(ST,2)}")
    a("s_waitcnt lgkmcnt(0)")
    for dt in range(4):
        a(f"s_cmp_eq_u32 s{sKq}, {dt}")
        a(f"s_cbranch_scc1 K1_OWN{dt}")
        a(f"s_sub_u32 s{sA}, s{sKq}, {dt+1}")
        a(f"s_and_b32 s{sA}, s{sA}, 3")
        a(f"s_lshl_b32 s{sA}, s{sA}, 11")
        a(f"s_add_u32 s{sA}, s{sA}, s{sB}")
        a(f"v_add_u32 v{t1}, s{sA}, v{t2}")
        pk = F + 8*dt
        for j in range(8):
            a(f"v_cvt_pk_bf16_f32 v{pk+j}, v{O+16*dt+2*j}, v{O+16*dt+2*j+1}")
        for g2 in range(2):
            a(f"ds_write_b128 v{t1}, {vr(pk+4*g2,4)} offset:{dt*3*2048 + g2*1024}")
        a(f"s_branch K1_NXT{dt}")
        a.label(f"K1_OWN{dt}")
        for r in range(0, 16, 2):
            a(f"v_mov_b64 {vr(R+r,2)}, {vr(O+16*dt+r,2)}")
        a.label(f"K1_NXT{dt}")
    a("s_waitcnt lgkmcnt(0)")
    a("s_barrier")
    a(f"v_mov_b32 v{t1}, {BADF}")
    for j in range(3):
        a(f"ds_read_b128 {vr(F+4*j,4)}, v{t1} offset:{16*j}")
    for rk in range(3):
        a(f"s_add_u32 s{sA}, s{sKq}, {rk+1}")
        a(f"s_and_b32 s{sA}, s{sA}, 3")
        a(f"s_lshl_b32 s{sA}, s{sA}, 8")
        a(f"v_add_u32 v{t1}, s{sA}, v{t0}")
        a(f"ds_read_b64 {vr(ST+2+2*rk,2)}, v{t1}")
    a(f"s_mul_i32 s{sA}, s{sKq}, {3*2048}")
    a(f"s_add_u32 s{sA}, s{sA}, s{sB}")
    a(f"v_add_u32 v{t1}, s{sA}, v{t2}")
    TT = O
    for rk in range(3):
        for g2 in range(2):
            a(f"ds_read_b128 {vr(TT+8*rk+4*g2,4)}, v{t1} offset:{rk*2048+g2*1024}")
    a(f"v_and_b32 v{t2}, 15, v{vLane}")
    a(f"s_lshl_b32 s{sA}, s{sKq}, 2")
    a(f"v_xor_b32 v{t2}, s{sA}, v{t2}")
    a(f"v_lshlrev_b32 v{t2}, 4, v{t2}")
    a(f"v_and_b32 v{t0}, 31, v{vLane}")
    a(f"v_lshl_add_u32 v{t2}, v{t0}, 8, v{t2}")
    a(f"v_lshrrev_b32 v{t0}, 5, v{vLane}")
    a(f"v_lshl_add_u32 v{t2}, v{t0}, 3, v{t2}")
    a(f"s_lshl_b32 s{sA}, s{sQt}, 13")
    a(f"s_add_u32 s{sA}, s{sA}, {STG}")
    a(f"v_add_u32 v{t2}, s{sA}, v{t2}")
    a("s_waitcnt lgkmcnt(6)")
    for j in range(0, 12, 3):
        a(f"v_or3_b32 v{F+j}, v{F+j}, v{F+j+1}, v{F+j+2}")
    a(f"v_or3_b32 v{F}, v{F}, v{F+3}, v{F+6}")
    a(f"v_or_b32 v{F}, v{F}, v{F+9}")
    a(f"v_cmp_ne_u32 vcc, 0, v{F}")
    a("s_cbranch_vccnz K1_REDO")
    mf = t3
    a(f"v_max3_f32 v{mf}, v{ST}, v{ST+2}, v{ST+4}")
    a(f"v_max_f32 v{mf}, v{mf}, v{ST+6}")
    for j in range(4):
        a(f"v_sub_f32 v{ST+2*j}, v{ST+2*j}, v{mf}")
    for j in range(4):
        a(f"v_exp_f32 v{ST+2*j}, v{ST+2*j}")
    a("s_nop 0")
    a(f"v_mul_f32 v{t4}, v{ST}, v{ST+1}")
    for j in range(1, 4):
        a(f"v_fma_f32 v{t4}, v{ST+2*j}, v{ST+2*j+1}, v{t4}")
    a(f"v_rcp_f32 v{t4}, v{t4}")
    a("s_nop 0")
    for j in range(4):
        a(f"v_mul_f32 v{ST+2*j}, v{ST+2*j}, v{t4}")
    for r in range(0, 16, 2):
        a(f"v_pk_mul_f32 {vr(R+r,2)}, {vr(R+r,2)}, {vr(ST,2)} op_sel_hi:[1,0]")
    U = O+32
    for rk in range(3):
        a(f"s_waitcnt lgkmcnt({4-2*rk})")
        for j in range(8):
            p = TT + 8*rk + j
            u = U + 2*(j & 3)
            a(f"v_lshlrev_b32 v{u}, 16, v{p}")
            a(f"v_and_b32 v{u+1}, 0xffff0000, v{p}")
            a(f"v_pk_fma_f32 {vr(R+2*j,2)}, {vr(u,2)}, {vr(ST+2+2*rk,2)}, {vr(R+2*j,2)} op_sel_hi:[1,0,1]")
    PK = F
    for g in range(4):
        a(f"v_cvt_pk_bf16_f32 v{PK+2*g}, v{R+4*g}, v{R+4*g+1}")
        a(f"v_cvt_pk_bf16_f32 v{PK+2*g+1}, v{R+4*g+2}, v{R+4*g+3}")
        a(f"v_xor_b32 v{t0}, {g << 4}, v{t2}")
        a(f"ds_write_b64 v{t0}, {vr(PK+2*g,2)}")
    if not FUSED:
        a(f"v_lshrrev_b32 v{t0}, 4, v{vLane}")
        a(f"s_lshl_b32 s{sA}, s{sW}, 3")
        a(f"v_add_u32 v{t0}, s{sA}, v{t0}")
        a(f"v_and_b32 v{t1}, 15, v{vLane}")
        a(f"v_lshlrev_b32 v{t3}, 8, v{t0}")
        a(f"v_lshl_add_u32 v{t3}, v{t1}, 4, v{t3}")
        a(f"v_add_u32 v{t3}, {STG}, v{t3}")
        a(f"v_and_b32 v{t4}, 15, v{t0}")
        a(f"v_xor_b32 v{t1}, v{t1}, v{t4}")
        a(f"s_cmp_ge_u32 s{sW}, 6")
        a(f"s_cselect_b32 s{sA}, {256 - 48*8192}, 0")
        a(f"v_lshlrev_b32 v{t0}, 13, v{t0}")
        a(f"v_add_u32 v{t0}, s{sA}, v{t0}")
        a(f"v_lshl_add_u32 v{t4}, v{t1}, 4, v{t0}")
        a(f"v_xor_b32 v{t1}, 4, v{t1}")
        a(f"v_lshl_add_u32 v{t0}, v{t1}, 4, v{t0}")
        a(f"v_add_u32 v{t0}, {4*8192}, v{t0}")
        a("s_waitcnt lgkmcnt(0)")
        a("s_barrier")
        a(f"ds_read_b128 {vr(PK,4)}, v{t3}")
        a(f"ds_read_b128 {vr(PK+4,4)}, v{t3} offset:1024")
        a("s_waitcnt lgkmcnt(1)")
        a(f"buffer_store_dwordx4 {vr(PK,4)}, v{t4}, s[{SO}:{SO+3}], 0 offen")
        a("s_waitcnt lgkmcnt(0)")
        a(f"buffer_store_dwordx4 {vr(PK+4,4)}, v{t0}, s[{SO}:{SO+3}], 0 offen")
        P.stamp(6)
        if PROF: a("s_waitcnt vmcnt(0)")
        P.stamp(7)
        P.stamp(8, real=True)
        if LIGHT:
            for k in range(6):
                a(f"s_mov_b32 s{84+2+k}, s{96+k}")
        P.dump(52, sW, 64 << 20, 12)
        a.label("K1_END")
        a("s_endpgm")
        return NV
    a(f"v_mov_b32 v0, v{vLane}")
    a(f"s_cmp_ge_u32 s{sW}, 8")
    a(f"s_cselect_b32 s{sA}, 4, 0")
    a(f"s_sub_u32 s{sE}, s{sW}, s{sA}")
    a(f"s_mul_i32 s{sE}, s{sE}, 12")
    a(f"v_lshrrev_b32 v{t0}, 4, v0")
    a(f"v_and_b32 v{t1}, 15, v0")
    a(f"v_lshlrev_b32 v{t3}, 8, v{t0}")
    a(f"v_lshl_add_u32 v{t3}, v{t1}, 4, v{t3}")
    a(f"s_lshl_b32 s{sA}, s{sE}, 8")
    a(f"s_add_u32 s{sA}, s{sA}, {STG}")
    a(f"v_add_u32 v{t3}, s{sA}, v{t3}")
    a(f"v_xor_b32 v{t1}, v{t1}, v{t0}")
    a(f"v_lshlrev_b32 v{t0}, 13, v{t0}")
    a("s_waitcnt lgkmcnt(0)")
    a("s_barrier")
    a(f"s_cmp_lt_u32 s{sQt}, 1")
    a("s_cbranch_scc1 K1_STORE")
    a(f"s_cmp_lt_u32 s{sQt}, 2")
    a("s_cbranch_scc1 OP_LOADER0")
    a.label("K1_STORE")
    for j in range(3):
        a(f"ds_read_b128 {vr(PK+4*j,4)}, v{t3} offset:{j*1024}")
    a(f"s_cmp_ge_u32 s{sE}, 48")
    a(f"s_cselect_b32 s{sB}, {256 - 48*8192}, 0")
    for j in range(3):
        a(f"s_add_u32 s{sA}, s{sE}, {4*j}")
        a(f"s_and_b32 s{sD}, s{sA}, 12")
        a(f"v_xor_b32 v{t4}, s{sD}, v{t1}")
        a(f"v_lshl_add_u32 v{t4}, v{t4}, 4, v{t0}")
        a(f"s_lshl_b32 s{sA}, s{sA}, 13")
        a(f"s_add_u32 s{sA}, s{sA}, s{sB}")
        a(f"s_waitcnt lgkmcnt({2-j})")
        a(f"buffer_store_dwordx4 {vr(PK+4*j,4)}, v{t4}, s[{SO}:{SO+3}], s{sA} offen sc1")
    P.stamp(6)
    a("s_waitcnt vmcnt(0)")
    a("s_barrier")
    P.stamp(7)
    outproj(a, opt, P, fused=True)
    a.label("K1_END")
    a("s_endpgm")
    return NV

def kernel2(a, opt):
    a.label("k2_kernel")
    a("s_cmp_ge_u32 s2, 256")
    a("s_cbranch_scc1 K2_END")
    P = Prof(a, 64, 62, 40)
    P.init(12)
    P.stamp(0, real=True)
    P.stamp(1)
    a("s_load_dwordx2 s[36:37], s[0:1], 32")
    a("s_load_dwordx2 s[50:51], s[0:1], 72")
    a("s_load_dwordx2 s[48:49], s[0:1], 80")
    a("s_load_dwordx2 s[52:53], s[0:1], 96")
    a("v_lshrrev_b32 v1, 6, v0")
    a("v_and_b32 v0, 63, v0")
    a("v_readfirstlane_b32 s4, v1")
    a("s_and_b32 s5, s2, 3")
    a("s_bfe_u32 s6, s2, 0x10002")
    a("s_lshr_b32 s7, s2, 5")
    a("s_bfe_u32 s3, s2, 0x20003")
    a("s_waitcnt lgkmcnt(0)")
    nv = outproj(a, opt, P, fused=False)
    a.label("K2_END")
    a("s_endpgm")
    return nv

def outproj(a, opt, P, fused):
    sW = 4
    NTW2 = " nt" if opt.get("ntw2", 0) else ""
    XFL = " sc1" if (fused and opt.get("xsc1", 1)) else ""
    SX, SWO, SO, SFL = 8, 12, 16, 28
    sA, sB, sD, sLam, sP = 20, 21, 22, 23, 24
    sSl, sWg, sXg = 25, 26, 27
    NS = 5
    STG = 28672
    t0, t1, t2, t3, t4 = 1, 2, 3, 4, 5
    WA = 6
    XA = 10
    vWo, vXo, vPoll = 20, 21, 22
    ACC = 12
    FR = 60
    NV = 116
    END = "K1_END" if fused else "K2_END"
    if fused:
        a(f"s_cmp_lg_u32 s{sW}, 0")
        a("s_cbranch_scc1 OP_NOFLAG")
        a(f"s_lshl_b32 s{sA}, s46, 2")
        a(f"v_mov_b32 v{t0}, s96")
        a(f"v_mov_b32 v{t1}, s{sA}")
        a("s_mov_b64 exec, 1")
        a(f"buffer_store_dword v{t0}, v{t1}, s[{SFL}:{SFL+3}], 0 offen sc1")
        a("s_mov_b64 exec, -1")
        a.label("OP_NOFLAG")
        a(f"s_cmp_ge_u32 s{sW}, 8")
        a(f"s_cbranch_scc1 {END}")
    def srd_w():
        a("s_cmp_eq_u32 s6, 0")
        a(f"s_cselect_b64 s[{SWO}:{SWO+1}], s[36:37], s[50:51]")
        a(f"s_lshl_b32 s{sA}, s5, 9")
        a(f"s_lshl_b32 s{sB}, s3, 7")
        a(f"s_add_u32 s{sA}, s{sA}, s{sB}")
        a(f"s_add_u32 s{SWO}, s{SWO}, s{sA}")
        a(f"s_addc_u32 s{SWO+1}, s{SWO+1}, 0")
        a(f"s_sub_u32 s{SWO+2}, 8388608, s{sA}")
        a(f"s_mov_b32 s{SWO+3}, 0x20000")
    def srd_x():
        a(f"s_lshl_b32 s{sB}, s6, 3")
        a(f"s_add_u32 s{sB}, s{sB}, s7")
        a(f"s_mul_i32 s{sD}, s{sB}, {48*8192}")
        a(f"s_add_u32 s{SX}, s52, s{sD}")
        a(f"s_addc_u32 s{SX+1}, s53, 0")
        a(f"s_mov_b32 s{SX+2}, {48*8192}")
        a(f"s_mov_b32 s{SX+3}, 0x20000")
    def srd_o():
        a(f"s_lshl_b32 s{sA}, s5, 9")
        a(f"s_lshl_b32 s{sB}, s3, 7")
        a(f"s_add_u32 s{sA}, s{sA}, s{sB}")
        a(f"s_mul_i32 s{sD}, s7, {48*4096}")
        a(f"s_lshl_b32 s{sB}, s6, 11")
        a(f"s_add_u32 s{sB}, s{sB}, s{sA}")
        a(f"s_add_u32 s{sD}, s{sD}, s{sB}")
        a(f"s_add_u32 s{SO}, s48, s{sD}")
        a(f"s_addc_u32 s{SO+1}, s49, 0")
        a(f"s_sub_u32 s{SO+2}, {48*4096}, s{sB}")
        a(f"s_mov_b32 s{SO+3}, 0x20000")
    if not fused:
        srd_w(); srd_x()
        a(f"s_cmp_ge_u32 s{sW}, 4")
        a("s_cbranch_scc1 OP_LOADER")
    srd_o()
    a(f"v_bfe_u32 v{t0}, v0, 2, 2")
    a(f"v_lshrrev_b32 v{t1}, 4, v0")
    a(f"v_lshl_add_u32 v{t2}, v{t1}, 3, v{t0}")
    a(f"s_lshl_b32 s{sA}, s{sW}, 5")
    a(f"v_add_u32 v{t2}, s{sA}, v{t2}")
    a(f"v_lshlrev_b32 v{t2}, 7, v{t2}")
    a(f"v_bfe_u32 v{t3}, v0, 3, 1")
    a(f"v_bfe_u32 v{t4}, v0, 4, 1")
    a(f"v_lshl_or_b32 v{t3}, v{t4}, 1, v{t3}")
    a(f"v_lshl_add_u32 v{t2}, v{t3}, 5, v{t2}")
    a(f"v_and_b32 v{t3}, 3, v0")
    a(f"v_lshl_add_u32 v{WA}, v{t3}, 3, v{t2}")
    for t in range(1, 4):
        a(f"v_xor_b32 v{WA+t}, {t << 5}, v{WA}")
    a(f"v_and_b32 v{t0}, 15, v0")
    a(f"s_lshl_b32 s{sA}, s{sW}, 2")
    a(f"v_add_u32 v{t2}, s{sA}, v{t1}")
    a(f"v_xor_b32 v{t2}, v{t2}, v{t0}")
    a(f"v_lshlrev_b32 v{t2}, 4, v{t2}")
    a(f"v_lshl_add_u32 v{t2}, v{t0}, 8, v{t2}")
    a(f"v_add_u32 v{XA}, 16384, v{t2}")
    for r in range(0, 48, 2):
        a(f"v_mov_b64 {vr(ACC+r,2)}, 0")
    def reads(buf):
        fb = FR + buf*28
        for t in range(4):
            for e in range(2):
                a(f"ds_read_b64_tr_b16 {vr(fb+4*t+2*e,2)}, v{WA+t} offset:{e*512}")
        for rt in range(3):
            a(f"ds_read_b128 {vr(fb+16+4*rt,4)}, v{XA} offset:{rt*4096}")
    def adv():
        a(f"s_add_u32 s{sA}, s{sSl}, {STG}")
        a(f"s_cmp_ge_u32 s{sA}, {NS*STG}")
        a(f"s_cselect_b32 s{sB}, {NS*STG}, 0")
        a(f"s_sub_u32 s{sA}, s{sA}, s{sB}")
        a(f"s_sub_u32 s{sD}, s{sA}, s{sSl}")
        a(f"s_mov_b32 s{sSl}, s{sA}")
        for t in range(4):
            a(f"v_add_u32 v{WA+t}, s{sD}, v{WA+t}")
        a(f"v_add_u32 v{XA}, s{sD}, v{XA}")
    def mfmas(buf):
        fb = FR + buf*28
        for rt in range(3):
            for t in range(4):
                acc = ACC + (t*3+rt)*4
                a(f"{MF16} {vr(acc,4)}, {vr(fb+4*t,4)}, {vr(fb+16+4*rt,4)}, {vr(acc,4)}")
    a(f"s_mov_b32 s{sSl}, 0")
    a("s_barrier")
    P.stamp(9 if fused else 2)
    reads(0); adv()
    a("s_waitcnt lgkmcnt(0)")
    a(f"s_mov_b32 s{sP}, 0")
    if fused:
        a("s_barrier")
        reads(1); adv()
        mfmas(0)
        a("s_waitcnt lgkmcnt(0)")
        a("s_barrier")
        for half in (1, 0):
            a("s_barrier")
            reads(1-half); adv()
            mfmas(half)
            a("s_waitcnt lgkmcnt(0)")
        a("s_barrier")
        a(f"s_mov_b32 s{sP}, 1")
        a("s_branch OP_C_MID")
    a.label("OP_C_LOOP")
    for half in range(2):
        if half == 1: a.label("OP_C_MID")
        a("s_barrier")
        reads(1-half); adv()
        mfmas(half)
        a("s_waitcnt lgkmcnt(0)")
        if half == 0:
            a(f"s_cmp_eq_u32 s{sP}, 15")
            a("s_cbranch_scc1 OP_C_DONE")
    a(f"s_add_u32 s{sP}, s{sP}, 1")
    a("s_branch OP_C_LOOP")
    a.label("OP_C_DONE")
    mfmas(1)
    P.stamp(10 if fused else 3)
    a("s_barrier")
    a("s_nop 7")
    a(f"v_lshlrev_b32 v{t0}, 4, v0")
    a(f"s_mul_i32 s{sA}, s{sW}, 12288")
    a(f"v_add_u32 v{t1}, s{sA}, v{t0}")
    for tile in range(12):
        a(f"ds_write_b128 v{t1}, {vr(ACC+4*tile,4)} offset:{tile*1024}")
    a("s_waitcnt lgkmcnt(0)")
    a("s_barrier")
    a(f"s_mul_i32 s{sA}, s{sW}, 3072")
    a(f"v_add_u32 v{t1}, s{sA}, v{t0}")
    for src in range(4):
        for rt in range(3):
            a(f"ds_read_b128 {vr(ACC+(src*3+rt)*4,4)}, v{t1} offset:{src*12288+rt*1024}")
    a("s_waitcnt lgkmcnt(0)")
    for rt in range(3):
        for r in range(4):
            d = ACC + rt*4 + r
            a(f"v_add_f32 v{d}, v{d}, v{d+12}")
            a(f"v_add_f32 v{d+24}, v{d+24}, v{d+36}")
        for r in range(4):
            d = ACC + rt*4 + r
            a(f"v_add_f32 v{d}, v{d}, v{d+24}")
        d = ACC + rt*4
        a(f"v_cvt_pk_bf16_f32 v{d}, v{d}, v{d+1}")
        a(f"v_cvt_pk_bf16_f32 v{d+1}, v{d+2}, v{d+3}")
    a(f"v_and_b32 v{t0}, 15, v0")
    a(f"v_lshrrev_b32 v{t1}, 4, v0")
    a(f"v_lshlrev_b32 v{t0}, 12, v{t0}")
    a(f"v_lshl_add_u32 v{t0}, v{t1}, 3, v{t0}")
    a(f"s_lshl_b32 s{sA}, s{sW}, 5")
    a(f"v_add_u32 v{t0}, s{sA}, v{t0}")
    for rt in range(3):
        a(f"s_mov_b32 s{sA}, {rt*16*4096}")
        a(f"buffer_store_dwordx2 {vr(ACC+rt*4,2)}, v{t0}, s[{SO}:{SO+3}], s{sA} offen")
    if fused:
        P.stamp(11)
        P.stamp(8, real=True)
        P.dump(52, sW, 64 << 20, 12)
    else:
        P.stamp(4)
        if PROF: a("s_waitcnt vmcnt(0)")
        P.stamp(5)
        P.stamp(6, real=True)
        P.dump(52, sW, 65 << 20, 12)
    a("s_endpgm")

    a.label("OP_LOADER0" if fused else "OP_LOADER")
    if fused:
        srd_w(); srd_x()
    a(f"s_sub_u32 s{sLam}, s{sW}, 4")
    a(f"v_lshrrev_b32 v{t0}, 3, v0")
    a(f"v_and_b32 v{t1}, 7, v0")
    a(f"v_bfe_u32 v{t2}, v0, 4, 1")
    a(f"s_and_b32 s{sA}, s{sLam}, 1")
    a(f"s_lshl_b32 s{sA}, s{sA}, 1")
    a(f"v_or_b32 v{t2}, s{sA}, v{t2}")
    a(f"v_lshlrev_b32 v{t2}, 1, v{t2}")
    a(f"v_xor_b32 v{t1}, v{t1}, v{t2}")
    a(f"v_lshlrev_b32 v{t1}, 4, v{t1}")
    a(f"s_lshl_b32 s{sA}, s{sLam}, 3")
    a(f"v_add_u32 v{t0}, s{sA}, v{t0}")
    a(f"v_lshl_add_u32 v{vWo}, v{t0}, 11, v{t1}")
    a(f"v_lshrrev_b32 v{t0}, 4, v0")
    a(f"v_and_b32 v{t1}, 15, v0")
    a(f"s_lshl_b32 s{sA}, s{sLam}, 2")
    a(f"v_or_b32 v{t2}, s{sA}, v{t0}")
    a(f"v_xor_b32 v{t1}, v{t1}, v{t2}")
    a(f"v_lshlrev_b32 v{t1}, 4, v{t1}")
    a(f"v_lshl_add_u32 v{vXo}, v{t2}, 13, v{t1}")
    def issueW(slot_s, goff_s):
        for j in range(4):
            a(f"s_add_u32 m0, s{slot_s}, {j*4096}")
            a(f"s_add_u32 s{sA}, s{goff_s}, {j*32*2048}")
            a(f"buffer_load_dwordx4 v{vWo}, s[{SWO}:{SWO+3}], s{sA} offen{NTW2} lds")
    def issueX(slot_s, goff_s):
        for j in range(3):
            a(f"s_add_u32 m0, s{slot_s}, {16384 + j*4096}")
            a(f"s_add_u32 s{sA}, s{goff_s}, {j*16*8192}")
            a(f"buffer_load_dwordx4 v{vXo}, s[{SX}:{SX+3}], s{sA} offen{XFL} lds")
    def adv_slot(r):
        a(f"s_add_u32 s{r}, s{r}, {STG}")
        a(f"s_cmp_ge_u32 s{r}, s{sD}")
        a(f"s_cselect_b32 s{sB}, {NS*STG}, 0")
        a(f"s_sub_u32 s{r}, s{r}, s{sB}")
    sTW, sTX, sTb, sTp = 33, 38, 34, 40
    def sigma(t):
        a(f"s_lshr_b32 s{sA}, s{t}, 1")
        a(f"s_lshl_b32 s{sA}, s{sA}, 2")
        a(f"s_lshr_b64 s[{sTp}:{sTp+1}], s[{sTb}:{sTb+1}], s{sA}")
        a(f"s_and_b32 s{sTp}, s{sTp}, 15")
        a(f"s_lshl_b32 s{sTp}, s{sTp}, 1")
        a(f"s_and_b32 s{sA}, s{t}, 1")
        a(f"s_or_b32 s{sTp}, s{sTp}, s{sA}")
    def advW():
        adv_slot(sSl)
        if fused:
            a(f"s_add_u32 s{sTW}, s{sTW}, 1")
            sigma(sTW)
            a(f"s_lshl_b32 s{sWg}, s{sTp}, 18")
        else:
            a(f"s_add_u32 s{sWg}, s{sWg}, {128*2048}")
    def advX():
        adv_slot(sSlX)
        if fused:
            a(f"s_add_u32 s{sTX}, s{sTX}, 1")
            sigma(sTX)
            a(f"s_lshl_b32 s{sXg}, s{sTp}, 8")
        else:
            a(f"s_add_u32 s{sXg}, s{sXg}, 256")
    def issue():
        issueW(sSl, sWg); advW(); issueX(sSlX, sXg); advX()
    sSlX = 32
    a(f"s_lshl_b32 s{sSl}, s{sLam}, 10")
    a(f"s_mov_b32 s{sSlX}, s{sSl}")
    a(f"s_add_u32 s{sD}, s{sSl}, {NS*STG}")
    if fused:
        a(f"s_mul_i32 s{sA}, s3, 0x11111111")
        a(f"s_mul_i32 s{sB}, s5, 0x11111111")
        for half, hi in ((0, 0x11110000), (1, 0x33332222)):
            a(f"s_add_u32 s{sTp}, s{sA}, 0x32103210")
            a(f"s_and_b32 s{sTp}, s{sTp}, 0x33333333")
            a(f"s_add_u32 s{sTp+1}, s{sB}, {hi:#x}")
            a(f"s_and_b32 s{sTp+1}, s{sTp+1}, 0x33333333")
            a(f"s_lshl_b32 s{sTp+1}, s{sTp+1}, 2")
            a(f"s_or_b32 s{sTb+half}, s{sTp}, s{sTp+1}")
        a(f"s_mov_b32 s{sTW}, 0")
        a(f"s_mov_b32 s{sTX}, 0")
        a(f"s_lshl_b32 s{sWg}, s46, 19")
        a(f"s_lshl_b32 s{sXg}, s46, 9")
        a(f"s_lshl_b32 s{sA}, s5, 2")
        a(f"s_lshl_b32 s39, 15, s{sA}")
        a(f"s_mov_b32 s{sP}, 0")
        a.label("OP_LW")
        issueW(sSl, sWg); advW()
        a(f"s_add_u32 s{sP}, s{sP}, 1")
        a(f"s_cmp_lt_u32 s{sP}, 2")
        a("s_cbranch_scc1 OP_LW")
        P.stamp(6)
        a("s_barrier")
        P.stamp(7)
        a(f"v_lshlrev_b32 v{t3}, 2, v0")
        if opt.get("xdelay", 0): a(f"s_sleep {opt['xdelay']}")
        issueX(sSlX, sXg); advX()
        issueX(sSlX, sXg); advX()
        a("s_waitcnt vmcnt(3)")
        a("s_barrier")
        def look(uid):
            a(f"s_cmp_lg_u32 s{sW}, 4")
            a(f"s_cbranch_scc1 OP_NOLOOK{uid}")
            a("s_mov_b64 exec, 0xffff")
            a(f"buffer_load_dword v{vPoll}, v{t3}, s[{SFL}:{SFL+3}], 0 offen sc1")
            a("s_mov_b64 exec, -1")
            a.label(f"OP_NOLOOK{uid}")
        look(1)
        issueW(sSl, sWg); advW()
        issueW(sSl, sWg); advW()
        a("s_waitcnt vmcnt(8)")
        a("s_barrier")
        issueW(sSl, sWg); advW()
        issueW(sSl, sWg); advW()
        def poll(mask, uid):
            a(f"s_cmp_lg_u32 s{sW}, 4")
            a(f"s_cbranch_scc1 OP_POLL_DONE{uid}")
            a("s_mov_b64 exec, 0xffff")
            a(f"s_mov_b32 s{sP}, 0")
            a.label(f"OP_POLL_LOOP{uid}")
            a(f"v_cmp_eq_u32 vcc, s96, v{vPoll}")
            a("s_nop 1")
            a(f"s_and_b32 s{sA}, vcc_lo, {mask}")
            a(f"s_cmp_eq_u32 s{sA}, {mask}")
            a(f"s_cbranch_scc1 OP_POLL_OK{uid}")
            a(f"s_sleep {opt.get('psleep', 2)}")
            a(f"buffer_load_dword v{vPoll}, v{t3}, s[{SFL}:{SFL+3}], 0 offen sc1")
            a("s_waitcnt vmcnt(0)")
            a(f"s_add_u32 s{sP}, s{sP}, 1")
            a(f"s_cmp_lt_u32 s{sP}, 400000")
            a(f"s_cbranch_scc1 OP_POLL_LOOP{uid}")
            a.label(f"OP_POLL_OK{uid}")
            if uid == 1:
                a(f"buffer_load_dword v{vPoll}, v{t3}, s[{SFL}:{SFL+3}], 0 offen sc1")
            a("s_mov_b64 exec, -1")
            a.label(f"OP_POLL_DONE{uid}")
        poll("s39", 1)
        P.stamp(9)
        a("s_barrier")
        P.stamp(10)
        for _ in range(4):
            issueX(sSlX, sXg); advX()
        for k, cnt in enumerate((9, 13, 17)):
            a(f"s_waitcnt vmcnt({cnt})")
            a("s_barrier")
            if k == 2 or True:
                pass
            if k < 2:
                issue()
                if k == 1:
                    poll("0xffff", 2)
                    a("s_barrier")
            else:
                issue()
        a(f"s_mov_b32 s{sP}, 4")
    else:
        a(f"s_mov_b32 s{sWg}, 0")
        a(f"s_mov_b32 s{sXg}, 0")
        for st in range(5):
            issue()
        a("s_waitcnt vmcnt(28)")
        a("s_barrier")
        a(f"s_mov_b32 s{sP}, 0")
    a.label("OP_L_LOOP")
    a("s_waitcnt vmcnt(21)")
    a("s_barrier")
    issue()
    a(f"s_add_u32 s{sP}, s{sP}, 1")
    a(f"s_cmp_lt_u32 s{sP}, 27")
    a("s_cbranch_scc1 OP_L_LOOP")
    for s_ in range(27, 31):
        a(f"s_waitcnt vmcnt({7*(31-(s_+1))})")
        a("s_barrier")
    a("s_barrier")
    a("s_barrier")
    if fused:
        P.dump(52, sW, 64 << 20, 12)
    return NV

HEADER = open("cdna_kernels/" + NAME + ".s.ref").read().split("; Override launch")[0]

def kd(name, nv, ns):
    acc = (nv + 3)//4*4
    return f"""
.amdhsa_kernel {name}
  .amdhsa_next_free_vgpr {nv}
  .amdhsa_next_free_sgpr {ns}
  .amdhsa_accum_offset {acc}
  .amdhsa_group_segment_fixed_size 0
  .amdhsa_kernarg_size 104
  .amdhsa_user_sgpr_count 2
  .amdhsa_user_sgpr_kernarg_segment_ptr 1
  .amdhsa_system_sgpr_workgroup_id_x 1
.end_amdhsa_kernel
"""

def main(out, opt):
    fused = opt.get("fused", 1)
    a1 = Asm(); nv1 = kernel1(a1, opt)
    s = HEADER
    if fused:
        body = a1.text().replace("k1_kernel", NAME + "_kernel")
        s += "; @launch grid=(256,1,1) block=(768,1,1) lds=163840\n"
        s += '.amdgcn_target "amdgcn-amd-amdhsa--gfx950"\n.text\n'
        nm = NAME + "_kernel"
        s += f".globl {nm}\n.p2align 8\n.type {nm},@function\n" + body
        s += '.section .rodata,"a"\n'
        s += ".p2align 6" + kd(nm, nv1, 102)
    else:
        a2 = Asm(); nv2 = kernel2(a2, opt)
        s += "; @launch kernel=k1_kernel grid=(256,1,1) block=(768,1,1) lds=163840\n"
        s += "; @launch kernel=k2_kernel grid=(256,1,1) block=(512,1,1) lds=143360\n"
        s += '.amdgcn_target "amdgcn-amd-amdhsa--gfx950"\n.text\n'
        for nm, body in (("k1_kernel", a1), ("k2_kernel", a2)):
            s += f".globl {nm}\n.p2align 8\n.type {nm},@function\n" + body.text()
        s += '.section .rodata,"a"\n'
        s += ".p2align 6" + kd("k1_kernel", nv1, 102) + ".p2align 6" + kd("k2_kernel", nv2, 96)
    open(out, "w").write(s)

if __name__ == "__main__":
    if "--prof" in sys.argv:
        PROF = True
        sys.argv.remove("--prof")
    if "--dbgprof" in sys.argv:
        PROF = True
        DBGPROF = True
        sys.argv.remove("--dbgprof")
    if "--fine" in sys.argv:
        PROF = True
        FINE = True
        sys.argv.remove("--fine")
    opt = {}
    for x in list(sys.argv):
        if x.startswith("--o:"):
            k, v = x[4:].split("=")
            opt[k] = int(v)
            sys.argv.remove(x)
    main(sys.argv[1] if len(sys.argv) > 1 else "cdna_kernels/" + NAME + ".s", opt)
```

```python
import sys, struct, math

NAME = "concat_heads__gqa_block_cached__gqa_block_cached__near_ridge"

def f2u(x):
    return struct.unpack("<I", struct.pack("<f", x))[0]

class Asm:
    def __init__(self):
        self.L = []
    def __call__(self, s):
        for line in s.split("\n"):
            self.L.append("    " + line.strip() if not line.strip().endswith(":") else line.strip())
    def label(self, s):
        self.L.append(s + ":")
    def c(self, s):
        self.L.append("    ; " + s)
    def text(self):
        return "\n".join(self.L) + "\n"

def vr(base, n=1):
    return f"v{base}" if n == 1 else f"v[{base}:{base+n-1}]"
def sr(base, n=1):
    return f"s{base}" if n == 1 else f"s[{base}:{base+n-1}]"

MF32 = "v_mfma_f32_32x32x16_bf16"
MF16 = "v_mfma_f32_16x16x32_bf16"

DEBUG_Q = False
PROF = False
FINE = False
DBGPROF = False
class Prof:
    uid = 0
    def __init__(self, a, base, tmp, srd):
        self.a, self.base, self.tmp, self.srd = a, base, tmp, srd
    def init(self, n):
        if not PROF: return
        for i in range(n):
            self.a(f"s_mov_b32 s{self.base+i}, 0")
    def fine(self, slot, cond_sgpr, val, uid):
        if not FINE: return
        a = self.a
        a(f"s_cmp_lg_u32 s{cond_sgpr}, {val}")
        a(f"s_cbranch_scc1 FINE_{uid}")
        a(f"s_memtime s[{self.tmp}:{self.tmp+1}]")
        a("s_waitcnt lgkmcnt(0)")
        a(f"s_mov_b32 s{self.base+slot}, s{self.tmp}")
        a.label(f"FINE_{uid}")
    def stamp(self, slot, real=False):
        if not PROF: return
        if FINE and slot in (2, 3, 4, 5, 6, 7) : return
        a = self.a
        a(f"{'s_memrealtime' if real else 's_memtime'} s[{self.tmp}:{self.tmp+1}]")
        a("s_waitcnt lgkmcnt(0)")
        a(f"s_mov_b32 s{self.base+slot}, s{self.tmp}")
    def dump(self, ws_lo, swave, region, nmax):
        if not PROF: return
        a = self.a
        b = self.srd
        if DBGPROF:
            Prof.uid += 1
            a(f"s_or_b32 s{self.tmp}, s2, s{swave}")
            a(f"s_cmp_lg_u32 s{self.tmp}, 0")
            a(f"s_cbranch_scc1 DBGP_SKIP{Prof.uid}")
            a(f"s_load_dwordx2 s[{b}:{b+1}], s[0:1], 88")
            a("s_waitcnt lgkmcnt(0)")
            a(f"s_mov_b32 s{b+2}, 256")
            a(f"s_mov_b32 s{b+3}, 0x20000")
            a("s_mov_b64 exec, 1")
            a("v_mov_b32 v1, 0")
            for i in range(nmax):
                if i in (0, 1): continue
                ref = 0 if i == 8 else 1
                a(f"s_sub_u32 s{self.tmp}, s{self.base+i}, s{self.base+ref}")
                a(f"v_mov_b32 v2, s{self.tmp}")
                a(f"buffer_store_dword v2, v1, s[{b}:{b+3}], 0 offen offset:{4*i}")
                a("s_nop 0")
            a.label(f"DBGP_SKIP{Prof.uid}")
            return
        a(f"s_add_u32 s{b}, s{ws_lo}, {region}")
        a(f"s_addc_u32 s{b+1}, s{ws_lo+1}, 0")
        a(f"s_mov_b32 s{b+2}, {256*16*64}")
        a(f"s_mov_b32 s{b+3}, 0x20000")
        a(f"s_lshl_b32 s{self.tmp}, s2, 4")
        a(f"s_add_u32 s{self.tmp}, s{self.tmp}, s{swave}")
        a(f"s_lshl_b32 s{self.tmp}, s{self.tmp}, 6")
        a("s_mov_b64 exec, 1")
        a(f"v_mov_b32 v1, s{self.tmp}")
        for i in range(nmax):
            a(f"v_mov_b32 v2, s{self.base+i}")
            a(f"buffer_store_dword v2, v1, s[{b}:{b+3}], 0 offen offset:{4*i}")
            a("s_nop 0")

def kernel1(a, opt):
    T2_START = opt.get("t2_start", 8)
    TOUCH = opt.get("touch", 0)
    PRIO = opt.get("prio", 1)
    PQ, PS, PP = opt.get("pq", 2), opt.get("ps", 1), opt.get("pp", 0)
    DMAQ = opt.get("dmaq", 1)
    NTD = " nt" if opt.get("ntd", 0) else ""
    NTQ = " nt" if opt.get("ntq", opt.get("ntd", 0)) else ""
    NTX = " nt" if opt.get("ntx", opt.get("ntd", 0)) else ""
    NTT = " nt" if opt.get("ntt", 1) else ""
    ROT = opt.get("rot", 4)
    TPS = opt.get("tps", 2)
    NS2 = opt.get("p2steps", 8)
    AB = opt.get("ablate", 0)
    CSCALE = 128 ** -0.5 * math.log2(math.e)
    WOT = opt.get("wot", 1)
    NTW = " nt" if opt.get("ntw", 0) else ""
    SWOP = 36
    sW = 4
    sKvh, sBr, sBt, sPair = 5, 6, 7, 3
    SX, SWQ, SK, SV, SO = 8, 12, 16, 20, 24
    STCH = 40
    sThr, sFloor = 54, 55
    sG = [56, 57, 58, 59]
    sL = [60, 61, 62, 63]
    sStep = 64
    sVn, sKn = 65, 66
    sGstep = 67
    sKc, sVc = 68, 69
    sQt, sKq = 70, 71
    sA, sB, sD = 72, 73, 74
    sLam = 75
    sWs, sWg, sXs, sXg = 76, 77, 78, 79
    sP = 80
    sE = 81
    sChk = 100
    SFL, sTok = 28, 96
    FLAGOFF = 8 << 20
    sGrp, sIdx, sRdy = 45, 46, 47
    sSafe = 44
    sDk, sDv, sTl = 76, 77, 78
    vMx = 0
    vL = 1
    KA0, KA1, VA = 2, 3, 4
    vKoff, vVoff = 5, 6
    vTb = 7
    NM = 8
    O = 24
    Q = 88
    S = 120
    F = 136
    NV = 168
    t0, t1, t2, t3, t4 = 8, 9, 10, 11, 12
    Wf = 88
    Xf = 104
    ACC = 128
    WA = 152
    XA = 154
    QW = 158
    vCs = 161
    vWo, vXo = 160, 153

    XBASE = 131072
    a.label("k1_kernel")
    a("s_cmp_ge_u32 s2, 256")
    a("s_cbranch_scc1 K1_END")
    P = Prof(a, 84, 82, 28)
    P.init(12)
    P.stamp(0, real=True)
    P.stamp(1)
    if opt.get("padto", 0): a("s_memrealtime s[100:101]")
    a("s_load_dwordx16 s[32:47], s[0:1], 0")
    a("s_load_dwordx4 s[48:51], s[0:1], 64")
    a("s_load_dwordx2 s[52:53], s[0:1], 96")
    a("v_lshrrev_b32 v1, 6, v0")
    a("v_and_b32 v0, 63, v0")
    a(f"v_readfirstlane_b32 s{sW}, v1")
    a(f"s_and_b32 s{sKvh}, s2, 3")
    a(f"s_bfe_u32 s{sBr}, s2, 0x10002")
    a(f"s_lshr_b32 s{sBt}, s2, 5")
    a(f"s_bfe_u32 s{sPair}, s2, 0x20003")
    a(f"s_and_b32 s{sKq}, s{sW}, 3")
    a(f"s_lshr_b32 s{sQt}, s{sW}, 2")
    a(f"s_lshl_b32 s{sD}, s{sKvh}, 11")
    a(f"s_lshl_b32 s{sB}, s{sPair}, 9")
    a(f"s_add_u32 s{sD}, s{sD}, s{sB}")
    a(f"s_mul_i32 s{sA}, s{sBt}, 98304")

    def srd1():
        a("s_waitcnt lgkmcnt(0)")
        a(f"s_cmp_eq_u32 s{sBr}, 0")
        a(f"s_cselect_b64 s[{SX}:{SX+1}], s[32:33], s[42:43]")
        a(f"s_cselect_b64 s[{SWQ}:{SWQ+1}], s[38:39], s[48:49]")
        a(f"s_add_u32 s{SX}, s{SX}, s{sA}")
        a(f"s_addc_u32 s{SX+1}, s{SX+1}, 0")
        a(f"s_mov_b32 s{SX+2}, 98304")
        a(f"s_mov_b32 s{SX+3}, 0x20000")
        a(f"s_add_u32 s{SWQ}, s{SWQ}, s{sD}")
        a(f"s_addc_u32 s{SWQ+1}, s{SWQ+1}, 0")
        a(f"s_sub_u32 s{SWQ+2}, 8388608, s{sD}")
        a(f"s_mov_b32 s{SWQ+3}, 0x20000")
    def patterns():
        a(f"v_bfe_u32 v{t0}, v0, 2, 2")
        a(f"v_lshlrev_b32 v{t0}, 8, v{t0}")
        a(f"v_lshrrev_b32 v{t1}, 4, v0")
        a(f"v_lshl_add_u32 v{t0}, v{t1}, 6, v{t0}")
        a(f"v_and_b32 v{t1}, 3, v0")
        a(f"v_lshl_add_u32 v{vVoff}, v{t1}, 4, v{t0}")
        a(f"s_lshl_b32 s{sB}, s{sKq}, 4")
        a(f"v_xor_b32 v{vKoff}, s{sB}, v{vVoff}")

    def srd2():
        a(f"s_cmp_eq_u32 s{sBr}, 0")
        a(f"s_cselect_b64 s[{SK}:{SK+1}], s[34:35], s[44:45]")
        a(f"s_cselect_b64 s[{SV}:{SV+1}], s[36:37], s[46:47]")
        a(f"s_mov_b64 s[36:37], s[40:41]")
        a(f"s_lshl_b32 s{sB}, s{sBr}, 3")
        a(f"s_add_u32 s{sB}, s{sB}, s{sBt}")
        a(f"s_mul_i32 s{sB}, s{sB}, {48*8192}")
        a(f"s_add_u32 s{sB}, s{sB}, s{sD}")
        a(f"s_add_u32 s{SO}, s52, s{sB}")
        a(f"s_addc_u32 s{SO+1}, s53, 0")
        a(f"s_sub_u32 s{SO+2}, {48*8192}, s{sD}")
        a(f"s_mov_b32 s{SO+3}, 0x20000")
        a(f"s_lshl_b32 s{sB}, s{sBt}, 2")
        a(f"s_add_u32 s{sB}, s{sB}, s{sKvh}")
        a(f"s_lshl_b32 s{sB}, s{sB}, 18")
        a(f"s_add_u32 s{SK}, s{SK}, s{sB}")
        a(f"s_addc_u32 s{SK+1}, s{SK+1}, 0")
        a(f"s_mov_b32 s{SK+2}, 262144")
        a(f"s_mov_b32 s{SK+3}, 0x20000")
        a(f"s_add_u32 s{SV}, s{SV}, s{sB}")
        a(f"s_addc_u32 s{SV+1}, s{SV+1}, 0")
        a(f"s_mov_b32 s{SV+2}, 262144")
        a(f"s_mov_b32 s{SV+3}, 0x20000")
        a(f"s_mov_b32 s{STCH+2}, 262144")
        a(f"s_mov_b32 s{STCH+3}, 0x20000")
        a(f"s_lshl_b32 s{sB}, s{sBr}, 3")
        a(f"s_add_u32 s{sB}, s{sB}, s{sBt}")
        a(f"s_lshl_b32 s{sGrp}, s{sB}, 4")
        a(f"s_lshl_b32 s{sB}, s{sB}, 8")
        a(f"s_add_u32 s{sB}, s{sB}, {FLAGOFF}")
        a(f"s_add_u32 s{SFL}, s52, s{sB}")
        a(f"s_addc_u32 s{SFL+1}, s53, 0")
        a(f"s_mov_b32 s{SFL+2}, 64")
        a(f"s_mov_b32 s{SFL+3}, 0x20000")
        a(f"s_load_dwordx2 s[{sTok}:{sTok+1}], s[{SX}:{SX+1}], 0")
        a(f"s_lshl_b32 s{sIdx}, s{sKvh}, 2")
        a(f"s_add_u32 s{sIdx}, s{sIdx}, s{sPair}")

        patterns()

    def kread(n):
        a(f"ds_read_b128 {vr(F+4*n,4)}, v{KA0 + (n & 1)} offset:{(n >> 1)*256}")
    def setup2():
        a(f"v_and_b32 v{t0}, 31, v0")
        a(f"v_lshrrev_b32 v{t1}, 5, v0")
        a(f"v_and_b32 v{t2}, 15, v0")
        a(f"v_xor_b32 v{t2}, v{t1}, v{t2}")
        a(f"v_lshlrev_b32 v{t2}, 4, v{t2}")
        a(f"v_lshl_add_u32 v{t2}, v{t0}, 8, v{t2}")
        a(f"s_lshl_b32 s{sA}, s{sQt}, 13")
        a(f"s_add_u32 s{sA}, s{sA}, {XBASE}")
        a(f"v_add_u32 v{vTb}, s{sA}, v{t2}")
        a(f"v_lshrrev_b32 v{t2}, 2, v{t0}")
        a(f"v_and_b32 v{t3}, 3, v{t2}")
        a(f"v_xor_b32 v{t3}, v{t1}, v{t3}")
        a(f"v_lshlrev_b32 v{t3}, 4, v{t3}")
        a(f"v_lshl_add_u32 v{t3}, v{t2}, 10, v{t3}")
        a(f"v_and_b32 v{t2}, 3, v0")
        a(f"v_lshl_add_u32 v{t3}, v{t2}, 6, v{t3}")
        a(f"s_lshl_b32 s{sA}, s{sKq}, 13")
        a(f"v_add_u32 v{KA0}, s{sA}, v{t3}")
        a(f"v_xor_b32 v{KA1}, 32, v{KA0}")
        a(f"v_bfe_u32 v{t2}, v0, 2, 2")
        a(f"v_lshlrev_b32 v{t2}, 6, v{t2}")
        a(f"v_lshl_add_u32 v{t2}, v{t1}, 10, v{t2}")
        a(f"v_bfe_u32 v{t3}, v0, 4, 1")
        a(f"v_lshl_add_u32 v{t2}, v{t3}, 5, v{t2}")
        a(f"v_bfe_u32 v{t3}, v0, 1, 1")
        a(f"v_lshl_add_u32 v{t2}, v{t3}, 4, v{t2}")
        a(f"v_and_b32 v{t3}, 1, v0")
        a(f"v_lshl_add_u32 v{t2}, v{t3}, 3, v{t2}")
        a(f"s_add_u32 s{sA}, s{sA}, 32768")
        a(f"v_add_u32 v{VA}, s{sA}, v{t2}")
        for j in range(4):
            a(f"s_sub_u32 s{sA}, s{sQt}, 1")
            a(f"s_lshl_b32 s{sA}, s{sA}, 1")
            a(f"s_add_u32 s{sA}, s{sA}, {j >> 1}")
            a(f"s_add_u32 s{sB}, s{sKq}, {4*(j & 1)}")
            a(f"s_lshl_b32 s{sB}, s{sB}, 10")
            a(f"s_lshl_b32 s{sD}, s{sA}, 16")
            a(f"s_add_u32 s{sG[j]}, s{sD}, s{sB}")
            a(f"s_lshl_b32 s{sD}, s{sA}, 13")
            a(f"s_add_u32 s{sL[j]}, s{sD}, s{sB}")
        a(f"s_mov_b32 s{sStep}, 0")
        a(f"s_mov_b32 s{sKn}, {4*32768}")
        a(f"s_mov_b32 s{sVn}, 0")
        a(f"s_mov_b32 s{sGstep}, 16384")
        a(f"s_mov_b32 s{sKc}, 65536")
        a(f"s_mov_b32 s{sVc}, 32768")
        a(f"s_mov_b32 s{sThr}, 0xff800000")
        a(f"s_mov_b32 s{sFloor}, 0xff800000")
        a(f"s_mov_b32 s{sSafe}, {opt.get('safe', 1)}")
        for r in range(0, 16, 2):
            a(f"v_mov_b64 {vr(NM+r,2)}, 0")

    def issueW(slot_expr_sgpr, goff_sgpr, vreg):
        for j in range(8):
            m1, m3, m4 = j & 1, (j >> 1) & 1, (j >> 2) & 1
            dm = 2*m1 + 8*m3 + 16*m4
            a(f"s_add_u32 m0, s{slot_expr_sgpr}, {dm*1024}")
            a(f"s_add_u32 s{sA}, s{goff_sgpr}, {dm*16384}")
            a(f"buffer_load_dwordx4 v{vreg}, s[{SWQ}:{SWQ+3}], s{sA} offen{NTQ} lds")
    def issueX(slot_sgpr, goff_sgpr):
        for j in range(3):
            a(f"s_add_u32 m0, s{slot_sgpr}, {j*4096}")
            a(f"s_add_u32 s{sA}, s{goff_sgpr}, {j*16*2048}")
            a(f"buffer_load_dwordx4 v{vXo}, s[{SX}:{SX+3}], s{sA} offen{NTX} lds")
    a(f"v_lshrrev_b32 v{t0}, 5, v0")
    a(f"v_and_b32 v{t1}, 31, v0")
    a(f"s_and_b32 s{sE}, s{sKq}, 1")
    a(f"s_lshl_b32 s{sE}, s{sE}, 1")
    a(f"s_lshr_b32 s{sB}, s{sKq}, 1")
    a(f"s_lshl_b32 s{sB}, s{sB}, 2")
    a(f"s_or_b32 s{sE}, s{sE}, s{sB}")
    a(f"v_or_b32 v{t2}, s{sE}, v{t0}")
    a(f"v_lshlrev_b32 v{t2}, 1, v{t2}")
    a(f"v_xor_b32 v{t2}, v{t1}, v{t2}")
    a(f"v_lshlrev_b32 v{t2}, 4, v{t2}")
    a(f"v_lshl_add_u32 v{vWo}, v{t0}, 13, v{t2}")
    a(f"s_and_b32 s{sE}, s{sKq}, 1")
    a(f"s_or_b32 s{sE}, s{sE}, s{sB}")
    a(f"s_lshl_b32 s{sB}, s{sE}, 14")
    a(f"v_add_u32 v{vWo}, s{sB}, v{vWo}")
    a(f"s_lshl_b32 s{sWs}, s{sE}, 10")
    if ROT == 1:
        a(f"s_lshl_b32 s{sXg}, s{sPair}, 1")
        a(f"s_add_u32 s{sXg}, s{sXg}, s{sBt}")
        a(f"s_and_b32 s{sXg}, s{sXg}, 7")
        a(f"s_lshl_b32 s{sWg}, s{sXg}, 20")
        a(f"s_lshl_b32 s{sXg}, s{sXg}, 8")
    elif ROT == 4:
        a(f"s_add_u32 s{sXg}, s{sPair}, s{sBt}")
        a(f"s_and_b32 s{sXg}, s{sXg}, 3")
        a(f"s_lshl_b32 s{sXg}, s{sXg}, 1")
        a(f"s_lshl_b32 s{sWg}, s{sXg}, 20")
        a(f"s_lshl_b32 s{sXg}, s{sXg}, 8")
    elif ROT == 2:
        a(f"s_add_u32 s{sXg}, s{sPair}, s{sBt}")
        a(f"s_and_b32 s{sXg}, s{sXg}, 1")
        a(f"s_lshl_b32 s{sXg}, s{sXg}, 2")
        a(f"s_lshl_b32 s{sWg}, s{sXg}, 20")
        a(f"s_lshl_b32 s{sXg}, s{sXg}, 8")
    else:
        a(f"s_mov_b32 s{sXg}, 0")
        a(f"s_mov_b32 s{sWg}, 0")
    a(f"s_cmp_ge_u32 s{sW}, 8")
    a("s_cbranch_scc1 K1_LOADER")
    a(f"s_add_u32 s{sB}, s{sQt}, 1")
    a(f"s_lshl_b32 s{sE}, s{sB}, 15")
    a(f"s_add_u32 s{sWs}, s{sWs}, s{sE}")
    a(f"s_lshl_b32 s{sE}, s{sB}, 19")
    a(f"s_add_u32 s{sWg}, s{sWg}, s{sE}")
    a(f"s_and_b32 s{sWg}, s{sWg}, 0x7fffff")
    srd1()
    if opt.get("t1", 0):
        a(f"v_lshrrev_b32 v{t0}, 4, v0")
        a(f"v_lshlrev_b32 v{t0}, 13, v{t0}")
        a(f"v_and_b32 v{t1}, 15, v0")
        a(f"v_lshl_add_u32 v{t0}, v{t1}, 7, v{t0}")
        a(f"s_lshr_b32 s{sB}, s2, 3")
        a(f"s_lshl_b32 s{sB}, s{sB}, 15")
        a(f"s_lshl_b32 s{sE}, s{sW}, 20")
        a(f"s_add_u32 s{sB}, s{sB}, s{sE}")
        a(f"s_lshl_b32 s{sE}, s{sPair}, 9")
        a(f"s_sub_u32 s82, s{SWQ}, s{sE}")
        a(f"s_subb_u32 s83, s{SWQ+1}, 0")
        a(f"v_add_u32 v{t0}, s{sB}, v{t0}")
        a(f"s_cmp_lt_u32 s{sW}, {opt.get('t1first', 1)}")
        a("s_cbranch_scc1 K1_NOT1")
        a(f"global_load_dword v{F+31}, v{t0}, s[82:83]")
        a.label("K1_NOT1")
        a(f"s_cmp_ge_u32 s{sW}, 3")
        a("s_cbranch_scc1 K1_NOT2")
        a(f"v_lshrrev_b32 v{t0}, 4, v0")
        a(f"s_mul_i32 s{sB}, s{sPair}, 12")
        a(f"s_lshl_b32 s{sE}, s{sW}, 2")
        a(f"s_add_u32 s{sB}, s{sB}, s{sE}")
        a(f"v_add_u32 v{t0}, s{sB}, v{t0}")
        a(f"v_lshlrev_b32 v{t0}, 11, v{t0}")
        a(f"v_lshl_add_u32 v{t0}, v{t1}, 7, v{t0}")
        a(f"buffer_load_dword v{F+30}, v{t0}, s[{SX}:{SX+3}], 0 offen")
        a.label("K1_NOT2")
    if not opt.get("latew", 1):
        issueW(sWs, sWg, vWo)

    a.c("phase 1 compute")
    a(f"v_bfe_u32 v{t0}, v0, 2, 2")
    a(f"v_lshrrev_b32 v{t1}, 4, v0")
    a(f"v_and_b32 v{t2}, 1, v{t1}")
    a(f"v_lshl_or_b32 v{t2}, v{t2}, 2, v{t0}")
    a(f"s_lshl_b32 s{sE}, s{sW}, 1")
    a(f"v_xor_b32 v{t2}, s{sE}, v{t2}")
    a(f"v_lshl_add_u32 v{t3}, v{t1}, 3, v{t0}")
    a(f"v_lshlrev_b32 v{t3}, 9, v{t3}")
    a(f"v_lshl_add_u32 v{t3}, v{t2}, 5, v{t3}")
    a(f"v_and_b32 v{t4}, 3, v0")
    a(f"v_lshl_add_u32 v{WA}, v{t4}, 3, v{t3}")
    a(f"v_xor_b32 v{WA+1}, 32, v{WA}")
    a(f"v_and_b32 v{t0}, 15, v0")
    a(f"v_xor_b32 v{t2}, v{t1}, v{t0}")
    a(f"v_lshlrev_b32 v{t2}, 4, v{t2}")
    a(f"v_lshl_add_u32 v{t2}, v{t0}, 8, v{t2}")
    a(f"v_add_u32 v{XA}, {XBASE:#x}, v{t2}")
    a(f"v_xor_b32 v{XA+1}, 64, v{XA}")
    a(f"v_xor_b32 v{XA+2}, 0x80, v{XA}")
    a(f"v_xor_b32 v{XA+3}, 0xc0, v{XA}")
    for r in range(24):
        a(f"v_mov_b32 v{ACC+r}, 0")
    srd2()
    if opt.get("fused", 1):
        a(f"s_cmp_lg_u32 s{sW}, 1")
        a("s_cbranch_scc1 K1_NOZ")
        a(f"s_lshl_b32 s{sE}, s{sIdx}, 2")
        a(f"v_mov_b32 v{t0}, 0")
        a(f"v_mov_b32 v{t1}, s{sE}")
        a("s_mov_b64 exec, 1")
        a(f"buffer_store_dword v{t0}, v{t1}, s[{SFL}:{SFL+3}], 0 offen sc1")
        a("s_mov_b64 exec, -1")
        a.label("K1_NOZ")
    a(f"v_mov_b32 v{vCs}, {f2u(CSCALE):#x}")
    a(f"v_and_b32 v{t0}, 15, v0")
    a(f"v_lshrrev_b32 v{t1}, 4, v0")
    a(f"s_lshl_b32 s{sE}, s{sKq}, 2")
    a(f"v_lshrrev_b32 v{t2}, 1, v{t1}")
    a(f"v_add_u32 v{t2}, s{sE}, v{t2}")
    a(f"v_xor_b32 v{t2}, v{t2}, v{t0}")
    a(f"v_lshlrev_b32 v{t2}, 4, v{t2}")
    a(f"v_lshl_add_u32 v{t2}, v{t0}, 8, v{t2}")
    a(f"v_and_b32 v{t3}, 1, v{t1}")
    a(f"v_lshl_add_u32 v{t2}, v{t3}, 3, v{t2}")
    a(f"s_mul_i32 s{sE}, s{sQt}, {48*256}")
    a(f"s_add_u32 s{sE}, s{sE}, {XBASE}")
    a(f"v_add_u32 v{QW}, s{sE}, v{t2}")
    a(f"v_xor_b32 v{QW+1}, 32, v{QW}")
    setup2()
    if opt.get("dbgtouch", 0):
        a("s_load_dwordx2 s[82:83], s[0:1], 88")
        a("s_waitcnt lgkmcnt(0)")
        a("v_mov_b32 v162, 0")
        a("global_load_dword v163, v162, s[82:83] sc1")
    if opt.get("latew", 1):
        issueW(sWs, sWg, vWo)
    a(f"s_mov_b32 s{sP}, 0")
    FB = [88, 24]
    def p1_reads(sp):
        fb = FB[sp]
        for ks in range(2):
            for tt in range(2):
                for e in range(2):
                    off = sp * 32768 + ks * 16384 + e * 2048
                    a(f"ds_read_b64_tr_b16 {vr(fb + (tt*2+ks)*4 + e*2, 2)}, v{WA+tt} offset:{off}")
            for rt in range(3):
                a(f"ds_read_b128 {vr(fb + 16 + (rt*2+ks)*4, 4)}, v{XA + sp*2 + ks} offset:{rt*4096}")
    def p1_mfma(sp):
        fb = FB[sp]
        for ks in range(2):
            for rt in range(3):
                for tt in range(2):
                    acc = ACC + (tt*3+rt)*4
                    a(f"{MF16} {vr(acc,4)}, {vr(fb+(tt*2+ks)*4,4)}, {vr(fb+16+(rt*2+ks)*4,4)}, {vr(acc,4)}")
    a("s_barrier")
    P.stamp(2)
    p1_reads(0)
    a("s_waitcnt vmcnt(0) lgkmcnt(0)")
    a("s_branch K1_P1_MID")
    a.label("K1_P1_LOOP")
    a("s_barrier")
    p1_reads(0)
    p1_mfma(1)
    a("s_waitcnt lgkmcnt(0)")
    a.label("K1_P1_MID")
    a("s_barrier")
    p1_reads(1)
    a(f"v_xor_b32 v{WA}, 0x10000, v{WA}")
    a(f"v_xor_b32 v{WA+1}, 0x10000, v{WA+1}")
    for v in range(4):
        a(f"v_xor_b32 v{XA+v}, 0x4000, v{XA+v}")
    p1_mfma(0)
    a(f"s_add_u32 s{sP}, s{sP}, 1")
    a("s_waitcnt lgkmcnt(0)")
    a(f"s_cmp_lt_u32 s{sP}, 8")
    a("s_cbranch_scc1 K1_P1_LOOP")
    a("s_barrier")
    P.stamp(3)
    p1_mfma(1)
    a("s_nop 7")
    for tt in range(2):
        for rt in range(3):
            acc = ACC + (tt*3+rt)*4
            for r in range(4):
                a(f"v_mul_f32 v{acc+r}, v{vCs}, v{acc+r}")
            a(f"v_cvt_pk_bf16_f32 v{acc}, v{acc}, v{acc+1}")
            a(f"v_cvt_pk_bf16_f32 v{acc+1}, v{acc+2}, v{acc+3}")
            a(f"ds_write_b64 v{QW+tt}, {vr(acc,2)} offset:{rt*4096}")
    a("s_waitcnt lgkmcnt(0)")
    a("s_branch K1_JOIN")
    if TOUCH:
        for sp in range(2):
            a.label(f"K1_T1_{sp}")
            a(f"s_cmp_lt_u32 s{sP}, {T2_START//2}")
            a(f"s_cbranch_scc1 K1_T1R_{sp}")
            a(f"s_sub_u32 s{sA}, s{sP}, {T2_START//2}")
            a(f"s_lshl_b32 s{sA}, s{sA}, 13")
            a(f"s_lshl_b32 s{sB}, s{sPair}, 16")
            a(f"s_add_u32 s{sA}, s{sA}, s{sB}")
            srd = SK if sp == 0 else SV
            a(f"buffer_load_dword v{vVoff}, v{vTch}, s[{srd}:{srd+3}], s{sA} offen{NTT}")
            a(f"s_branch K1_T1R_{sp}")

    a.label("K1_LOADER")
    a("s_setprio 3")
    a(f"s_sub_u32 s{sLam}, s{sW}, 8")
    a(f"v_lshrrev_b32 v{t0}, 4, v0")
    a(f"v_and_b32 v{t1}, 15, v0")
    a(f"s_lshl_b32 s{sE}, s{sLam}, 2")
    a(f"v_or_b32 v{t2}, s{sE}, v{t0}")
    a(f"v_xor_b32 v{t3}, v{t1}, v{t2}")
    a(f"v_lshlrev_b32 v{t3}, 4, v{t3}")
    a(f"v_lshl_add_u32 v{vXo}, v{t2}, 11, v{t3}")
    def issueKV_loader(srd, voff, slot, step, uid=None):
        a(f"s_lshl_b32 s{sB}, s{sLam}, 10")
        for e in range(8):
            lo = slot*32768 + (e >> 1)*8192 + (e & 1)*4096
            go = (e >> 1)*65536 + step*8192 + (e & 1)*4096
            a(f"s_add_u32 m0, s{sB}, {lo}")
            a(f"s_add_u32 s{sA}, s{sB}, {go}")
            a(f"buffer_load_dwordx4 v{voff}, s[{srd}:{srd+3}], s{sA} offen{NTD} lds")
    a(f"s_lshl_b32 s{sXs}, s{sLam}, 10")
    a(f"s_add_u32 s{sXs}, s{sXs}, {XBASE}")
    srd1()
    P.stamp(9)
    def nextW():
        a(f"s_add_u32 s{sWs}, s{sWs}, 32768")
        a(f"s_and_b32 s{sWs}, s{sWs}, 0x1ffff")
        a(f"s_add_u32 s{sWg}, s{sWg}, 524288")
        a(f"s_and_b32 s{sWg}, s{sWg}, 0x7fffff")
    def nextX():
        a(f"s_xor_b32 s{sXs}, s{sXs}, 0x4000")
        a(f"s_add_u32 s{sXg}, s{sXg}, 256")
        a(f"s_and_b32 s{sXg}, s{sXg}, 0x7ff")
    issueX(sXs, sXg)
    issueW(sWs, sWg, vWo)
    P.stamp(10)
    a(f"s_add_u32 s{sWs}, s{sWs}, {3*32768}")
    a(f"s_add_u32 s{sWg}, s{sWg}, {3*524288}")
    a(f"s_and_b32 s{sWg}, s{sWg}, 0x7fffff")
    srd2()
    setup2()
    a(f"s_mov_b32 s{sP}, 0")
    a("s_waitcnt vmcnt(0)")
    P.stamp(11)
    a("s_setprio 0")
    a("s_barrier")
    a("s_branch K1_LD_MID")
    a.label("K1_LD_LOOP")
    a("s_waitcnt vmcnt(16)")
    a("s_barrier")
    a.label("K1_LD_MID")
    nextX(); issueX(sXs, sXg)
    issueW(sWs, sWg, vWo); nextW()
    a("s_waitcnt vmcnt(19)")
    a("s_barrier")
    issueW(sWs, sWg, vWo); nextW()
    a(f"s_add_u32 s{sP}, s{sP}, 1")
    a(f"s_cmp_lt_u32 s{sP}, 6")
    a("s_cbranch_scc1 K1_LD_LOOP")
    a("s_waitcnt vmcnt(16)")
    a("s_barrier")
    nextX(); issueX(sXs, sXg)
    issueW(sWs, sWg, vWo)
    a("s_waitcnt vmcnt(19)")
    a("s_barrier")
    issueKV_loader(SK, vKoff, 0, 0)
    a("s_waitcnt vmcnt(16)")
    a("s_barrier")
    issueKV_loader(SV, vVoff, 1, 0)
    a("s_waitcnt vmcnt(16)")
    a("s_barrier")
    issueKV_loader(SK, vKoff, 2, 1)
    a("s_barrier")
    issueKV_loader(SV, vVoff, 3, 1)
    a("s_waitcnt vmcnt(8)")

    a.label("K1_JOIN")
    a("s_waitcnt lgkmcnt(0)")
    a(f"s_lshl_b32 s{sA}, s{sTok+1}, 7")
    a(f"s_xor_b32 s{sTok}, s{sTok}, s{sA}")
    a(f"s_or_b32 s{sTok}, s{sTok}, 1")
    if TOUCH:
        a(f"s_cmp_ge_u32 s{sW}, 4")
        a("s_cbranch_scc1 K1_NOTCH")
        a(f"v_lshlrev_b32 v{vKoff}, 7, v0")
        a.label("K1_NOTCH")
    a("s_barrier")
    for ks in range(8):
        a(f"v_xor_b32 v{vMx}, {ks << 5:#x}, v{vTb}")
        a(f"ds_read_b128 {vr(Q+4*ks,4)}, v{vMx}")
    for ks in range(8):
        kread(ks)
    a.label("K1_JOIN2")
    for r in range(0, 64, 2):
        a(f"v_mov_b64 {vr(O+r,2)}, 0")
    a(f"v_mov_b32 v{vL}, 0")
    a(f"s_mov_b32 s{sDk}, 65536")
    a(f"s_cmp_eq_u32 s{sQt}, 1")
    a(f"s_cselect_b32 s{sTl}, {opt.get('wotstep', 6)}, 99")
    a("s_waitcnt lgkmcnt(0)")
    P.stamp(4)
    a(f"s_cmp_ge_u32 s{sW}, 4")
    a("s_cbranch_scc1 K1_B_BAR")
    a("s_branch K1_A_BAR")

    def rot(sreg):
        a(f"s_add_u32 s{sreg}, s{sreg}, 65536")
        a(f"s_cmp_ge_u32 s{sreg}, 163840")
        a(f"s_cselect_b32 s{sA}, 163840, 0")
        a(f"s_sub_u32 s{sreg}, s{sreg}, s{sA}")

    LIGHT = opt.get("light", 0)
    def ls(k):
        if LIGHT: a(f"s_memtime s[{84+2*k}:{85+2*k}]")
    def step_body(v):
        isB = (v == "B")
        dodma = isB and not (AB & 1)
        def dma(kind, j):
            if not dodma: return
            if kind == 'V':
                a(f"s_add_u32 m0, s{sVn}, s{sL[j]}")
                a(f"s_add_u32 s{sA}, s{sGstep}, s{sG[j]}")
                a(f"buffer_load_dwordx4 v{vVoff}, s[{SV}:{SV+3}], s{sA} offen{NTD} lds")
            else:
                a(f"s_add_u32 m0, s{sKn}, s{sL[j]}")
                a(f"s_add_u32 s{sA}, s{sGstep}, s{sG[j]}")
                a(f"buffer_load_dwordx4 v{vKoff}, s[{SK}:{SK+3}], s{sA} offen{NTD} lds")
        def vreads(kk):
            if AB & 2:
                for _ in range(8): a("s_nop 0")
                return
            for dt in range(4):
                for e in range(2):
                    a(f"ds_read_b64_tr_b16 {vr(F+(kk*4+dt)*4+2*e,2)}, v{VA} offset:{kk*4096+e*2048+dt*256}")
        a.label(f"K1_{v}_TOP")
        a(f"s_waitcnt {'vmcnt(4) ' if isB else ''}lgkmcnt(0)")
        a.label(f"K1_{v}_BAR")
        if PRIO: a(f"s_setprio {PQ}")
        if v == "B" or True: ls(0)
        a("s_barrier")
        ls(1)
        def vread1(n):
            if AB & 2: return
            kk, dt = n >> 2, n & 3
            for e in range(2):
                a(f"ds_read_b64_tr_b16 {vr(F+n*4+2*e,2)}, v{VA} offset:{kk*4096+e*2048+dt*256}")
        for ks in range(8):
            cin = vr(NM,16) if ks == 0 else vr(S,16)
            a(f"{MF32} {vr(S,16)}, {vr(F+4*ks,4)}, {vr(Q+4*ks,4)}, {cin}")
            if ks < 7: vread1(ks)
            if ks == 0:
                a(f"v_add_u32 v{KA0}, s{sDk}, v{KA0}")
                a(f"v_add_u32 v{KA1}, s{sDk}, v{KA1}")
                a(f"s_mov_b32 s{sDk}, s{sKc}")
            if ks == 2:
                rot(sKc)
            if ks == 4:
                a(f"s_sub_u32 s{sDk}, s{sKc}, s{sDk}")
                a(f"s_mov_b32 s{sDv}, s{sVc}")
                a(f"s_add_u32 s{sVc}, s{sVc}, 65536")
                a(f"s_cmp_ge_u32 s{sVc}, 163840")
            if ks == 4:
                a(f"s_cselect_b32 s{sA}, 163840, 0")
                a(f"s_sub_u32 s{sVc}, s{sVc}, s{sA}")
            if ks in (1, 3, 5, 6):
                dma('K', {1: 0, 3: 1, 5: 2, 6: 3}[ks])
        ls(2)
        if PRIO and PS != PQ: a(f"s_setprio {PS}")
        vread1(7)
        a(f"s_sub_u32 s{sDv}, s{sVc}, s{sDv}")
        a(f"v_add_u32 v{VA}, s{sDv}, v{VA}")
        if not isB and WOT:
            a(f"s_cmp_eq_u32 s{sStep}, s{sTl}")
            a("s_cbranch_scc1 K1_A_TOUCH")
            a.label("K1_A_TOUCHR")
            a("s_nop 4")
        else:
            a("s_nop 6")
        a(f"s_cmp_lt_u32 s{sStep}, s{sSafe}")
        a(f"s_cbranch_scc1 K1_{v}_MAX")
        a.label(f"K1_{v}_CONT")
        ls(3)
        for k in range(8):
            if not AB & 8:
                a(f"v_exp_f32 v{S+2*k}, v{S+2*k}")
                a(f"v_exp_f32 v{S+2*k+1}, v{S+2*k+1}")
            if k >= 1 and not AB & 8:
                kk = k - 1
                a(f"v_add_f32 v{vL}, v{vL}, v{S+2*kk}")
                a(f"v_add_f32 v{vL}, v{vL}, v{S+2*kk+1}")
                a(f"v_cvt_pk_bf16_f32 v{S+kk}, v{S+2*kk}, v{S+2*kk+1}")
        a(f"v_add_f32 v{vL}, v{vL}, v{S+14}")
        a(f"v_add_f32 v{vL}, v{vL}, v{S+15}")
        a(f"v_cvt_pk_bf16_f32 v{S+7}, v{S+14}, v{S+15}")
        ls(4)
        if PRIO and PP != PS: a(f"s_setprio {PP}")
        if not LIGHT: a("s_waitcnt lgkmcnt(0)")
        else: a("s_waitcnt lgkmcnt(1)")
        for kk in range(2):
            for dt in range(4):
                n = kk*4 + dt
                a(f"{MF32} {vr(O+16*dt,16)}, {vr(F+(kk*4+dt)*4,4)}, {vr(S+4*kk,4)}, {vr(O+16*dt,16)}")
                if not AB & 4: kread(n)
                if n in (0, 1, 2, 3):
                    dma('V', n)
                if n == 4:
                    a(f"s_add_u32 s{sStep}, s{sStep}, 1")
                if n == 2 and isB:
                    pass
                if n == 4 and isB:
                    rot(sVn)
                if n == 5 and isB:
                    rot(sKn)
                if n == 6 and isB:
                    a(f"s_add_u32 s{sGstep}, s{sGstep}, 8192")
                    if NS2 != 8: a(f"s_and_b32 s{sGstep}, s{sGstep}, 0xffff")
        ls(5)
        if LIGHT:
            a(f"s_cmp_lg_u32 s{sStep}, 41")
            a(f"s_cbranch_scc1 K1_{v}_NOCOPY")
            a("s_waitcnt lgkmcnt(0)")
            for k in range(6):
                a(f"s_mov_b32 s{96+k}, s{84+2*k}")
            a.label(f"K1_{v}_NOCOPY")
        if isB:
            a(f"s_cmp_lt_u32 s{sStep}, {NS2-2}")
            a("s_cbranch_scc1 K1_B_TOP")
            a("s_waitcnt vmcnt(0)")
            a("s_branch K1_A_TOP")
        else:
            a(f"s_cmp_lt_u32 s{sStep}, {NS2}")
            a("s_cbranch_scc1 K1_A_TOP")
            a("s_branch K1_P2_END")
        a.label(f"K1_{v}_MAX")
        a(f"v_max3_f32 v{vMx}, v{S+0}, v{S+1}, v{S+2}")
        a(f"v_max3_f32 v{vTb}, v{S+3}, v{S+4}, v{S+5}")
        a(f"v_max3_f32 v{vMx}, v{vMx}, v{S+6}, v{S+7}")
        a(f"v_max3_f32 v{vTb}, v{vTb}, v{S+8}, v{S+9}")
        a(f"v_max3_f32 v{vMx}, v{vMx}, v{S+10}, v{S+11}")
        a(f"v_max3_f32 v{vTb}, v{vTb}, v{S+12}, v{S+13}")
        a(f"v_max3_f32 v{vMx}, v{vMx}, v{S+14}, v{S+15}")
        a(f"v_max_f32 v{vMx}, v{vMx}, v{vTb}")
        a(f"v_cmp_lt_f32 vcc, s{sThr}, v{vMx}")
        a(f"s_cbranch_vccz K1_{v}_CONT")
        a.label(f"K1_{v}_RARE")
        a(f"v_mov_b32 v{vTb}, v{vMx}")
        a("s_nop 1")
        a(f"v_permlane32_swap_b32 v{vMx}, v{vTb}")
        a(f"v_max_f32 v{vMx}, v{vMx}, v{vTb}")
        a(f"v_max_f32 v{vMx}, s{sFloor}, v{vMx}")
        a(f"v_max_f32 v{vTb}, 0, v{vMx}")
        a(f"v_sub_f32 v{vTb}, 0, v{vTb}")
        a(f"v_exp_f32 v{vTb}, v{vTb}")
        a(f"s_mov_b32 s{sThr}, {f2u(8.0):#x}")
        a(f"s_mov_b32 s{sFloor}, 0")
        for r in range(16):
            a(f"v_sub_f32 v{S+r}, v{S+r}, v{vMx}")
        a(f"v_sub_f32 v{NM}, v{NM}, v{vMx}")
        for r in range(1, 16):
            a(f"v_mov_b32 v{NM+r}, v{NM}")
        a(f"s_cmp_eq_u32 s{sStep}, 0")
        a(f"s_cbranch_scc1 K1_{v}_CONT")
        a(f"v_mul_f32 v{vL}, v{vL}, v{vTb}")
        for r in range(64):
            a(f"v_mul_f32 v{O+r}, v{O+r}, v{vTb}")
        a(f"s_branch K1_{v}_CONT")

    step_body("B")
    step_body("A")
    if WOT:
        a.label("K1_A_TOUCH")
        a(f"s_cmp_eq_u32 s{sBr}, 0")
        a(f"s_cselect_b64 s[{STCH}:{STCH+1}], s[{SWOP}:{SWOP+1}], s[50:51]")
        a(f"s_mov_b32 s{STCH+2}, 8388608")
        a(f"v_mbcnt_lo_u32_b32 v{vKoff}, -1, 0")
        a(f"v_mbcnt_hi_u32_b32 v{vKoff}, -1, v{vKoff}")
        a(f"v_and_b32 v{vVoff}, 3, v{vKoff}")
        a(f"v_lshrrev_b32 v{vKoff}, 2, v{vKoff}")
        a(f"v_lshlrev_b32 v{vKoff}, 11, v{vKoff}")
        a(f"v_lshl_add_u32 v{vKoff}, v{vVoff}, 7, v{vKoff}")
        a(f"s_lshr_b32 s{sA}, s2, 3")
        a(f"s_lshl_b32 s{sA}, s{sA}, 2")
        a(f"s_add_u32 s{sA}, s{sA}, s{sKq}")
        a(f"s_lshl_b32 s{sA}, s{sA}, 16")
        a(f"s_lshl_b32 s{sB}, s{sKvh}, 9")
        a(f"s_add_u32 s{sA}, s{sA}, s{sB}")
        a(f"buffer_load_dword v{vVoff}, v{vKoff}, s[{STCH}:{STCH+3}], s{sA} offen{NTW}")
        a(f"s_add_u32 s{sA}, s{sA}, 32768")
        a(f"buffer_load_dword v{vVoff}, v{vKoff}, s[{STCH}:{STCH+3}], s{sA} offen{NTW}")
        a("s_branch K1_A_TOUCHR")

    a.label("K1_REDO")
    a("s_waitcnt vmcnt(0) lgkmcnt(0)")
    a(f"v_mbcnt_lo_u32_b32 v0, -1, 0")
    a(f"v_mbcnt_hi_u32_b32 v0, -1, v0")
    a("s_barrier")
    patterns()
    _t = (8, 9, 10, 11, 12)
    setup2()
    a(f"s_mov_b32 s{sSafe}, 8")
    a(f"s_cmp_lt_u32 s{sW}, 8")
    a("s_cbranch_scc1 K1_REDO2")
    issueKV_loader(SK, vKoff, 0, 0, "r0")
    issueKV_loader(SV, vVoff, 1, 0, "r1")
    issueKV_loader(SK, vKoff, 2, 1, "r2")
    issueKV_loader(SV, vVoff, 3, 1, "r3")
    a("s_waitcnt vmcnt(8)")
    a.label("K1_REDO2")
    a("s_barrier")
    for ks in range(8):
        kread(ks)
    a("s_branch K1_JOIN2")

    a.label("K1_P2_END")
    P.stamp(5)
    FUSED = opt.get("fused", 1)
    SC1 = " sc1" if FUSED else ""
    t0, t1, t2, t3, t4 = NM+2, NM+3, NM+4, NM+5, NM+6
    vLane = NM+7
    STAT, EX, STG = 32768, 36864, 114688
    if FUSED:
        a("s_load_dwordx2 s[48:49], s[0:1], 80")
    a(f"v_mbcnt_lo_u32_b32 v{vLane}, -1, 0")
    a(f"v_mbcnt_hi_u32_b32 v{vLane}, -1, v{vLane}")
    a(f"v_mov_b32 v{t1}, v{vL}")
    ST = NM + 8
    a(f"v_sub_f32 v{ST}, 0, v{NM}")
    a(f"v_and_b32 v{t0}, 31, v{vLane}")
    a(f"v_permlane32_swap_b32 v{vL}, v{t1}")
    a(f"v_add_f32 v{ST+1}, v{vL}, v{t1}")
    BADF = STAT + 3072
    a(f"v_cmp_ngt_f32 vcc, {f2u(2.0**20):#x}, v{ST+1}")
    a(f"s_lshl_b32 s{sA}, s{sW}, 2")
    a(f"s_add_u32 s{sA}, s{sA}, {BADF}")
    a(f"v_mov_b32 v{t3}, s{sA}")
    a(f"s_cmp_lg_u64 vcc, 0")
    a(f"s_cselect_b32 s{sA}, 1, 0")
    a(f"s_cmp_eq_u32 s{sSafe}, 1")
    a(f"s_cselect_b32 s{sA}, s{sA}, 0")
    a(f"v_mov_b32 v{t4}, s{sA}")
    a(f"ds_write_b32 v{t3}, v{t4}")
    a(f"v_lshlrev_b32 v{t0}, 3, v{t0}")
    a(f"s_lshl_b32 s{sA}, s{sQt}, 10")
    a(f"s_add_u32 s{sA}, s{sA}, {STAT}")
    a(f"v_add_u32 v{t0}, s{sA}, v{t0}")
    a(f"s_lshl_b32 s{sB}, s{sKq}, 8")
    a(f"v_add_u32 v{t1}, s{sB}, v{t0}")
    R = S
    a(f"v_lshlrev_b32 v{t2}, 4, v{vLane}")
    a(f"s_mul_i32 s{sB}, s{sQt}, {4*3*2048}")
    a(f"s_add_u32 s{sB}, s{sB}, {EX}")
    a(f"ds_write_b64 v{t1}, {vr(ST,2)}")
    a("s_waitcnt lgkmcnt(0)")
    for dt in range(4):
        a(f"s_cmp_eq_u32 s{sKq}, {dt}")
        a(f"s_cbranch_scc1 K1_OWN{dt}")
        a(f"s_sub_u32 s{sA}, s{sKq}, {dt+1}")
        a(f"s_and_b32 s{sA}, s{sA}, 3")
        a(f"s_lshl_b32 s{sA}, s{sA}, 11")
        a(f"s_add_u32 s{sA}, s{sA}, s{sB}")
        a(f"v_add_u32 v{t1}, s{sA}, v{t2}")
        pk = F + 8*dt
        for j in range(8):
            a(f"v_cvt_pk_bf16_f32 v{pk+j}, v{O+16*dt+2*j}, v{O+16*dt+2*j+1}")
        for g2 in range(2):
            a(f"ds_write_b128 v{t1}, {vr(pk+4*g2,4)} offset:{dt*3*2048 + g2*1024}")
        a(f"s_branch K1_NXT{dt}")
        a.label(f"K1_OWN{dt}")
        for r in range(0, 16, 2):
            a(f"v_mov_b64 {vr(R+r,2)}, {vr(O+16*dt+r,2)}")
        a.label(f"K1_NXT{dt}")
    a("s_waitcnt lgkmcnt(0)")
    a("s_barrier")
    a(f"v_mov_b32 v{t1}, {BADF}")
    for j in range(3):
        a(f"ds_read_b128 {vr(F+4*j,4)}, v{t1} offset:{16*j}")
    for rk in range(3):
        a(f"s_add_u32 s{sA}, s{sKq}, {rk+1}")
        a(f"s_and_b32 s{sA}, s{sA}, 3")
        a(f"s_lshl_b32 s{sA}, s{sA}, 8")
        a(f"v_add_u32 v{t1}, s{sA}, v{t0}")
        a(f"ds_read_b64 {vr(ST+2+2*rk,2)}, v{t1}")
    a(f"s_mul_i32 s{sA}, s{sKq}, {3*2048}")
    a(f"s_add_u32 s{sA}, s{sA}, s{sB}")
    a(f"v_add_u32 v{t1}, s{sA}, v{t2}")
    TT = O
    for rk in range(3):
        for g2 in range(2):
            a(f"ds_read_b128 {vr(TT+8*rk+4*g2,4)}, v{t1} offset:{rk*2048+g2*1024}")
    a(f"v_and_b32 v{t2}, 15, v{vLane}")
    a(f"s_lshl_b32 s{sA}, s{sKq}, 2")
    a(f"v_xor_b32 v{t2}, s{sA}, v{t2}")
    a(f"v_lshlrev_b32 v{t2}, 4, v{t2}")
    a(f"v_and_b32 v{t0}, 31, v{vLane}")
    a(f"v_lshl_add_u32 v{t2}, v{t0}, 8, v{t2}")
    a(f"v_lshrrev_b32 v{t0}, 5, v{vLane}")
    a(f"v_lshl_add_u32 v{t2}, v{t0}, 3, v{t2}")
    a(f"s_lshl_b32 s{sA}, s{sQt}, 13")
    a(f"s_add_u32 s{sA}, s{sA}, {STG}")
    a(f"v_add_u32 v{t2}, s{sA}, v{t2}")
    a("s_waitcnt lgkmcnt(6)")
    for j in range(0, 12, 3):
        a(f"v_or3_b32 v{F+j}, v{F+j}, v{F+j+1}, v{F+j+2}")
    a(f"v_or3_b32 v{F}, v{F}, v{F+3}, v{F+6}")
    a(f"v_or_b32 v{F}, v{F}, v{F+9}")
    a(f"v_cmp_ne_u32 vcc, 0, v{F}")
    a("s_cbranch_vccnz K1_REDO")
    mf = t3
    a(f"v_max3_f32 v{mf}, v{ST}, v{ST+2}, v{ST+4}")
    a(f"v_max_f32 v{mf}, v{mf}, v{ST+6}")
    for j in range(4):
        a(f"v_sub_f32 v{ST+2*j}, v{ST+2*j}, v{mf}")
    for j in range(4):
        a(f"v_exp_f32 v{ST+2*j}, v{ST+2*j}")
    a("s_nop 0")
    a(f"v_mul_f32 v{t4}, v{ST}, v{ST+1}")
    for j in range(1, 4):
        a(f"v_fma_f32 v{t4}, v{ST+2*j}, v{ST+2*j+1}, v{t4}")
    a(f"v_rcp_f32 v{t4}, v{t4}")
    a("s_nop 0")
    for j in range(4):
        a(f"v_mul_f32 v{ST+2*j}, v{ST+2*j}, v{t4}")
    for r in range(0, 16, 2):
        a(f"v_pk_mul_f32 {vr(R+r,2)}, {vr(R+r,2)}, {vr(ST,2)} op_sel_hi:[1,0]")
    U = O+32
    for rk in range(3):
        a(f"s_waitcnt lgkmcnt({4-2*rk})")
        for j in range(8):
            p = TT + 8*rk + j
            u = U + 2*(j & 3)
            a(f"v_lshlrev_b32 v{u}, 16, v{p}")
            a(f"v_and_b32 v{u+1}, 0xffff0000, v{p}")
            a(f"v_pk_fma_f32 {vr(R+2*j,2)}, {vr(u,2)}, {vr(ST+2+2*rk,2)}, {vr(R+2*j,2)} op_sel_hi:[1,0,1]")
    PK = F
    for g in range(4):
        a(f"v_cvt_pk_bf16_f32 v{PK+2*g}, v{R+4*g}, v{R+4*g+1}")
        a(f"v_cvt_pk_bf16_f32 v{PK+2*g+1}, v{R+4*g+2}, v{R+4*g+3}")
        a(f"v_xor_b32 v{t0}, {g << 4}, v{t2}")
        a(f"ds_write_b64 v{t0}, {vr(PK+2*g,2)}")
    if not FUSED:
        a(f"v_lshrrev_b32 v{t0}, 4, v{vLane}")
        a(f"s_lshl_b32 s{sA}, s{sW}, 3")
        a(f"v_add_u32 v{t0}, s{sA}, v{t0}")
        a(f"v_and_b32 v{t1}, 15, v{vLane}")
        a(f"v_lshlrev_b32 v{t3}, 8, v{t0}")
        a(f"v_lshl_add_u32 v{t3}, v{t1}, 4, v{t3}")
        a(f"v_add_u32 v{t3}, {STG}, v{t3}")
        a(f"v_and_b32 v{t4}, 15, v{t0}")
        a(f"v_xor_b32 v{t1}, v{t1}, v{t4}")
        a(f"s_cmp_ge_u32 s{sW}, 6")
        a(f"s_cselect_b32 s{sA}, {256 - 48*8192}, 0")
        a(f"v_lshlrev_b32 v{t0}, 13, v{t0}")
        a(f"v_add_u32 v{t0}, s{sA}, v{t0}")
        a(f"v_lshl_add_u32 v{t4}, v{t1}, 4, v{t0}")
        a(f"v_xor_b32 v{t1}, 4, v{t1}")
        a(f"v_lshl_add_u32 v{t0}, v{t1}, 4, v{t0}")
        a(f"v_add_u32 v{t0}, {4*8192}, v{t0}")
        a("s_waitcnt lgkmcnt(0)")
        a("s_barrier")
        a(f"ds_read_b128 {vr(PK,4)}, v{t3}")
        a(f"ds_read_b128 {vr(PK+4,4)}, v{t3} offset:1024")
        a("s_waitcnt lgkmcnt(1)")
        a(f"buffer_store_dwordx4 {vr(PK,4)}, v{t4}, s[{SO}:{SO+3}], 0 offen")
        a("s_waitcnt lgkmcnt(0)")
        a(f"buffer_store_dwordx4 {vr(PK+4,4)}, v{t0}, s[{SO}:{SO+3}], 0 offen")
        P.stamp(6)
        if PROF: a("s_waitcnt vmcnt(0)")
        P.stamp(7)
        P.stamp(8, real=True)
        if LIGHT:
            for k in range(6):
                a(f"s_mov_b32 s{84+2+k}, s{96+k}")
        P.dump(52, sW, 64 << 20, 12)
        if opt.get("padto", 0):
            a.label("K1_PAD")
            a("s_memrealtime s[82:83]")
            a("s_waitcnt lgkmcnt(0)")
            a("s_sub_u32 s82, s82, s100")
            a(f"s_cmp_lt_u32 s82, {opt['padto']}")
            a("s_cbranch_scc1 K1_PAD")
        a.label("K1_END")
        a("s_endpgm")
        return NV
    a(f"v_mov_b32 v0, v{vLane}")
    a(f"s_cmp_ge_u32 s{sW}, 8")
    a(f"s_cselect_b32 s{sA}, 4, 0")
    a(f"s_sub_u32 s{sE}, s{sW}, s{sA}")
    a(f"s_mul_i32 s{sE}, s{sE}, 12")
    a(f"v_lshrrev_b32 v{t0}, 4, v0")
    a(f"v_and_b32 v{t1}, 15, v0")
    a(f"v_lshlrev_b32 v{t3}, 8, v{t0}")
    a(f"v_lshl_add_u32 v{t3}, v{t1}, 4, v{t3}")
    a(f"s_lshl_b32 s{sA}, s{sE}, 8")
    a(f"s_add_u32 s{sA}, s{sA}, {STG}")
    a(f"v_add_u32 v{t3}, s{sA}, v{t3}")
    a(f"v_xor_b32 v{t1}, v{t1}, v{t0}")
    a(f"v_lshlrev_b32 v{t0}, 13, v{t0}")
    a("s_waitcnt lgkmcnt(0)")
    a("s_barrier")
    a(f"s_cmp_lt_u32 s{sQt}, 1")
    a("s_cbranch_scc1 K1_STORE")
    a(f"s_cmp_lt_u32 s{sQt}, 2")
    a("s_cbranch_scc1 OP_LOADER0")
    a.label("K1_STORE")
    for j in range(3):
        a(f"ds_read_b128 {vr(PK+4*j,4)}, v{t3} offset:{j*1024}")
    a(f"s_cmp_ge_u32 s{sE}, 48")
    a(f"s_cselect_b32 s{sB}, {256 - 48*8192}, 0")
    for j in range(3):
        a(f"s_add_u32 s{sA}, s{sE}, {4*j}")
        a(f"s_and_b32 s{sD}, s{sA}, 12")
        a(f"v_xor_b32 v{t4}, s{sD}, v{t1}")
        a(f"v_lshl_add_u32 v{t4}, v{t4}, 4, v{t0}")
        a(f"s_lshl_b32 s{sA}, s{sA}, 13")
        a(f"s_add_u32 s{sA}, s{sA}, s{sB}")
        a(f"s_waitcnt lgkmcnt({2-j})")
        a(f"buffer_store_dwordx4 {vr(PK+4*j,4)}, v{t4}, s[{SO}:{SO+3}], s{sA} offen sc1")
    P.stamp(6)
    a("s_waitcnt vmcnt(0)")
    a("s_barrier")
    P.stamp(7)
    outproj(a, opt, P, fused=True)
    a.label("K1_END")
    a("s_endpgm")
    return NV

def kernel2(a, opt):
    a.label("k2_kernel")
    a("s_cmp_ge_u32 s2, 256")
    a("s_cbranch_scc1 K2_END")
    P = Prof(a, 64, 62, 40)
    P.init(12)
    P.stamp(0, real=True)
    P.stamp(1)
    a("s_load_dwordx2 s[36:37], s[0:1], 32")
    a("s_load_dwordx2 s[50:51], s[0:1], 72")
    a("s_load_dwordx2 s[48:49], s[0:1], 80")
    a("s_load_dwordx2 s[52:53], s[0:1], 96")
    a("v_lshrrev_b32 v1, 6, v0")
    a("v_and_b32 v0, 63, v0")
    a("v_readfirstlane_b32 s4, v1")
    a("s_and_b32 s5, s2, 3")
    a("s_bfe_u32 s6, s2, 0x10002")
    a("s_lshr_b32 s7, s2, 5")
    a("s_bfe_u32 s3, s2, 0x20003")
    a("s_waitcnt lgkmcnt(0)")
    nv = outproj(a, opt, P, fused=False)
    a.label("K2_END")
    a("s_endpgm")
    return nv

def outproj(a, opt, P, fused):
    sW = 4
    NTW2 = " nt" if opt.get("ntw2", 0) else ""
    XFL = " sc1" if (fused and opt.get("xsc1", 1)) else ""
    SX, SWO, SO, SFL = 8, 12, 16, 28
    sA, sB, sD, sLam, sP = 20, 21, 22, 23, 24
    sSl, sWg, sXg = 25, 26, 27
    NS = 5
    STG = 28672
    t0, t1, t2, t3, t4 = 1, 2, 3, 4, 5
    WA = 6
    XA = 10
    vWo, vXo, vPoll = 20, 21, 22
    ACC = 12
    FR = 60
    NV = 116
    END = "K1_END" if fused else "K2_END"
    if fused:
        a(f"s_cmp_lg_u32 s{sW}, 0")
        a("s_cbranch_scc1 OP_NOFLAG")
        a(f"s_lshl_b32 s{sA}, s46, 2")
        a(f"v_mov_b32 v{t0}, s96")
        a(f"v_mov_b32 v{t1}, s{sA}")
        a("s_mov_b64 exec, 1")
        a(f"buffer_store_dword v{t0}, v{t1}, s[{SFL}:{SFL+3}], 0 offen sc1")
        a("s_mov_b64 exec, -1")
        a.label("OP_NOFLAG")
        a(f"s_cmp_ge_u32 s{sW}, 8")
        a(f"s_cbranch_scc1 {END}")
    def srd_w():
        a("s_cmp_eq_u32 s6, 0")
        a(f"s_cselect_b64 s[{SWO}:{SWO+1}], s[36:37], s[50:51]")
        a(f"s_lshl_b32 s{sA}, s5, 9")
        a(f"s_lshl_b32 s{sB}, s3, 7")
        a(f"s_add_u32 s{sA}, s{sA}, s{sB}")
        a(f"s_add_u32 s{SWO}, s{SWO}, s{sA}")
        a(f"s_addc_u32 s{SWO+1}, s{SWO+1}, 0")
        a(f"s_sub_u32 s{SWO+2}, 8388608, s{sA}")
        a(f"s_mov_b32 s{SWO+3}, 0x20000")
    def srd_x():
        a(f"s_lshl_b32 s{sB}, s6, 3")
        a(f"s_add_u32 s{sB}, s{sB}, s7")
        a(f"s_mul_i32 s{sD}, s{sB}, {48*8192}")
        a(f"s_add_u32 s{SX}, s52, s{sD}")
        a(f"s_addc_u32 s{SX+1}, s53, 0")
        a(f"s_mov_b32 s{SX+2}, {48*8192}")
        a(f"s_mov_b32 s{SX+3}, 0x20000")
    def srd_o():
        a(f"s_lshl_b32 s{sA}, s5, 9")
        a(f"s_lshl_b32 s{sB}, s3, 7")
        a(f"s_add_u32 s{sA}, s{sA}, s{sB}")
        a(f"s_mul_i32 s{sD}, s7, {48*4096}")
        a(f"s_lshl_b32 s{sB}, s6, 11")
        a(f"s_add_u32 s{sB}, s{sB}, s{sA}")
        a(f"s_add_u32 s{sD}, s{sD}, s{sB}")
        a(f"s_add_u32 s{SO}, s48, s{sD}")
        a(f"s_addc_u32 s{SO+1}, s49, 0")
        a(f"s_sub_u32 s{SO+2}, {48*4096}, s{sB}")
        a(f"s_mov_b32 s{SO+3}, 0x20000")
    if not fused:
        srd_w(); srd_x()
        a(f"s_cmp_ge_u32 s{sW}, 4")
        a("s_cbranch_scc1 OP_LOADER")
    srd_o()
    a(f"v_bfe_u32 v{t0}, v0, 2, 2")
    a(f"v_lshrrev_b32 v{t1}, 4, v0")
    a(f"v_lshl_add_u32 v{t2}, v{t1}, 3, v{t0}")
    a(f"s_lshl_b32 s{sA}, s{sW}, 5")
    a(f"v_add_u32 v{t2}, s{sA}, v{t2}")
    a(f"v_lshlrev_b32 v{t2}, 7, v{t2}")
    a(f"v_bfe_u32 v{t3}, v0, 3, 1")
    a(f"v_bfe_u32 v{t4}, v0, 4, 1")
    a(f"v_lshl_or_b32 v{t3}, v{t4}, 1, v{t3}")
    a(f"v_lshl_add_u32 v{t2}, v{t3}, 5, v{t2}")
    a(f"v_and_b32 v{t3}, 3, v0")
    a(f"v_lshl_add_u32 v{WA}, v{t3}, 3, v{t2}")
    for t in range(1, 4):
        a(f"v_xor_b32 v{WA+t}, {t << 5}, v{WA}")
    a(f"v_and_b32 v{t0}, 15, v0")
    a(f"s_lshl_b32 s{sA}, s{sW}, 2")
    a(f"v_add_u32 v{t2}, s{sA}, v{t1}")
    a(f"v_xor_b32 v{t2}, v{t2}, v{t0}")
    a(f"v_lshlrev_b32 v{t2}, 4, v{t2}")
    a(f"v_lshl_add_u32 v{t2}, v{t0}, 8, v{t2}")
    a(f"v_add_u32 v{XA}, 16384, v{t2}")
    for r in range(0, 48, 2):
        a(f"v_mov_b64 {vr(ACC+r,2)}, 0")
    def reads(buf):
        fb = FR + buf*28
        for t in range(4):
            for e in range(2):
                a(f"ds_read_b64_tr_b16 {vr(fb+4*t+2*e,2)}, v{WA+t} offset:{e*512}")
        for rt in range(3):
            a(f"ds_read_b128 {vr(fb+16+4*rt,4)}, v{XA} offset:{rt*4096}")
    def adv():
        a(f"s_add_u32 s{sA}, s{sSl}, {STG}")
        a(f"s_cmp_ge_u32 s{sA}, {NS*STG}")
        a(f"s_cselect_b32 s{sB}, {NS*STG}, 0")
        a(f"s_sub_u32 s{sA}, s{sA}, s{sB}")
        a(f"s_sub_u32 s{sD}, s{sA}, s{sSl}")
        a(f"s_mov_b32 s{sSl}, s{sA}")
        for t in range(4):
            a(f"v_add_u32 v{WA+t}, s{sD}, v{WA+t}")
        a(f"v_add_u32 v{XA}, s{sD}, v{XA}")
    def mfmas(buf):
        fb = FR + buf*28
        for rt in range(3):
            for t in range(4):
                acc = ACC + (t*3+rt)*4
                a(f"{MF16} {vr(acc,4)}, {vr(fb+4*t,4)}, {vr(fb+16+4*rt,4)}, {vr(acc,4)}")
    a(f"s_mov_b32 s{sSl}, 0")
    a("s_barrier")
    P.stamp(9 if fused else 2)
    reads(0); adv()
    a("s_waitcnt lgkmcnt(0)")
    a(f"s_mov_b32 s{sP}, 0")
    if fused:
        a("s_barrier")
        reads(1); adv()
        mfmas(0)
        a("s_waitcnt lgkmcnt(0)")
        a("s_barrier")
        for half in (1, 0):
            a("s_barrier")
            reads(1-half); adv()
            mfmas(half)
            a("s_waitcnt lgkmcnt(0)")
        a("s_barrier")
        a(f"s_mov_b32 s{sP}, 1")
        a("s_branch OP_C_MID")
    a.label("OP_C_LOOP")
    for half in range(2):
        if half == 1: a.label("OP_C_MID")
        a("s_barrier")
        reads(1-half); adv()
        mfmas(half)
        a("s_waitcnt lgkmcnt(0)")
        if half == 0:
            a(f"s_cmp_eq_u32 s{sP}, 15")
            a("s_cbranch_scc1 OP_C_DONE")
    a(f"s_add_u32 s{sP}, s{sP}, 1")
    a("s_branch OP_C_LOOP")
    a.label("OP_C_DONE")
    mfmas(1)
    P.stamp(10 if fused else 3)
    a("s_barrier")
    a("s_nop 7")
    a(f"v_lshlrev_b32 v{t0}, 4, v0")
    a(f"s_mul_i32 s{sA}, s{sW}, 12288")
    a(f"v_add_u32 v{t1}, s{sA}, v{t0}")
    for tile in range(12):
        a(f"ds_write_b128 v{t1}, {vr(ACC+4*tile,4)} offset:{tile*1024}")
    a("s_waitcnt lgkmcnt(0)")
    a("s_barrier")
    a(f"s_mul_i32 s{sA}, s{sW}, 3072")
    a(f"v_add_u32 v{t1}, s{sA}, v{t0}")
    for src in range(4):
        for rt in range(3):
            a(f"ds_read_b128 {vr(ACC+(src*3+rt)*4,4)}, v{t1} offset:{src*12288+rt*1024}")
    a("s_waitcnt lgkmcnt(0)")
    for rt in range(3):
        for r in range(4):
            d = ACC + rt*4 + r
            a(f"v_add_f32 v{d}, v{d}, v{d+12}")
            a(f"v_add_f32 v{d+24}, v{d+24}, v{d+36}")
        for r in range(4):
            d = ACC + rt*4 + r
            a(f"v_add_f32 v{d}, v{d}, v{d+24}")
        d = ACC + rt*4
        a(f"v_cvt_pk_bf16_f32 v{d}, v{d}, v{d+1}")
        a(f"v_cvt_pk_bf16_f32 v{d+1}, v{d+2}, v{d+3}")
    a(f"v_and_b32 v{t0}, 15, v0")
    a(f"v_lshrrev_b32 v{t1}, 4, v0")
    a(f"v_lshlrev_b32 v{t0}, 12, v{t0}")
    a(f"v_lshl_add_u32 v{t0}, v{t1}, 3, v{t0}")
    a(f"s_lshl_b32 s{sA}, s{sW}, 5")
    a(f"v_add_u32 v{t0}, s{sA}, v{t0}")
    for rt in range(3):
        a(f"s_mov_b32 s{sA}, {rt*16*4096}")
        a(f"buffer_store_dwordx2 {vr(ACC+rt*4,2)}, v{t0}, s[{SO}:{SO+3}], s{sA} offen")
    if fused:
        P.stamp(11)
        P.stamp(8, real=True)
        P.dump(52, sW, 64 << 20, 12)
    else:
        P.stamp(4)
        if PROF: a("s_waitcnt vmcnt(0)")
        P.stamp(5)
        P.stamp(6, real=True)
        P.dump(52, sW, 65 << 20, 12)
    a("s_endpgm")

    a.label("OP_LOADER0" if fused else "OP_LOADER")
    if fused:
        srd_w(); srd_x()
    a(f"s_sub_u32 s{sLam}, s{sW}, 4")
    a(f"v_lshrrev_b32 v{t0}, 3, v0")
    a(f"v_and_b32 v{t1}, 7, v0")
    a(f"v_bfe_u32 v{t2}, v0, 4, 1")
    a(f"s_and_b32 s{sA}, s{sLam}, 1")
    a(f"s_lshl_b32 s{sA}, s{sA}, 1")
    a(f"v_or_b32 v{t2}, s{sA}, v{t2}")
    a(f"v_lshlrev_b32 v{t2}, 1, v{t2}")
    a(f"v_xor_b32 v{t1}, v{t1}, v{t2}")
    a(f"v_lshlrev_b32 v{t1}, 4, v{t1}")
    a(f"s_lshl_b32 s{sA}, s{sLam}, 3")
    a(f"v_add_u32 v{t0}, s{sA}, v{t0}")
    a(f"v_lshl_add_u32 v{vWo}, v{t0}, 11, v{t1}")
    a(f"v_lshrrev_b32 v{t0}, 4, v0")
    a(f"v_and_b32 v{t1}, 15, v0")
    a(f"s_lshl_b32 s{sA}, s{sLam}, 2")
    a(f"v_or_b32 v{t2}, s{sA}, v{t0}")
    a(f"v_xor_b32 v{t1}, v{t1}, v{t2}")
    a(f"v_lshlrev_b32 v{t1}, 4, v{t1}")
    a(f"v_lshl_add_u32 v{vXo}, v{t2}, 13, v{t1}")
    def issueW(slot_s, goff_s):
        for j in range(4):
            a(f"s_add_u32 m0, s{slot_s}, {j*4096}")
            a(f"s_add_u32 s{sA}, s{goff_s}, {j*32*2048}")
            a(f"buffer_load_dwordx4 v{vWo}, s[{SWO}:{SWO+3}], s{sA} offen{NTW2} lds")
    def issueX(slot_s, goff_s):
        for j in range(3):
            a(f"s_add_u32 m0, s{slot_s}, {16384 + j*4096}")
            a(f"s_add_u32 s{sA}, s{goff_s}, {j*16*8192}")
            a(f"buffer_load_dwordx4 v{vXo}, s[{SX}:{SX+3}], s{sA} offen{XFL} lds")
    def adv_slot(r):
        a(f"s_add_u32 s{r}, s{r}, {STG}")
        a(f"s_cmp_ge_u32 s{r}, s{sD}")
        a(f"s_cselect_b32 s{sB}, {NS*STG}, 0")
        a(f"s_sub_u32 s{r}, s{r}, s{sB}")
    sTW, sTX, sTb, sTp = 33, 38, 34, 40
    def sigma(t):
        a(f"s_lshr_b32 s{sA}, s{t}, 1")
        a(f"s_lshl_b32 s{sA}, s{sA}, 2")
        a(f"s_lshr_b64 s[{sTp}:{sTp+1}], s[{sTb}:{sTb+1}], s{sA}")
        a(f"s_and_b32 s{sTp}, s{sTp}, 15")
        a(f"s_lshl_b32 s{sTp}, s{sTp}, 1")
        a(f"s_and_b32 s{sA}, s{t}, 1")
        a(f"s_or_b32 s{sTp}, s{sTp}, s{sA}")
    def advW():
        adv_slot(sSl)
        if fused:
            a(f"s_add_u32 s{sTW}, s{sTW}, 1")
            sigma(sTW)
            a(f"s_lshl_b32 s{sWg}, s{sTp}, 18")
        else:
            a(f"s_add_u32 s{sWg}, s{sWg}, {128*2048}")
    def advX():
        adv_slot(sSlX)
        if fused:
            a(f"s_add_u32 s{sTX}, s{sTX}, 1")
            sigma(sTX)
            a(f"s_lshl_b32 s{sXg}, s{sTp}, 8")
        else:
            a(f"s_add_u32 s{sXg}, s{sXg}, 256")
    def issue():
        issueW(sSl, sWg); advW(); issueX(sSlX, sXg); advX()
    sSlX = 32
    a(f"s_lshl_b32 s{sSl}, s{sLam}, 10")
    a(f"s_mov_b32 s{sSlX}, s{sSl}")
    a(f"s_add_u32 s{sD}, s{sSl}, {NS*STG}")
    if fused:
        a(f"s_mul_i32 s{sA}, s3, 0x11111111")
        a(f"s_mul_i32 s{sB}, s5, 0x11111111")
        for half, hi in ((0, 0x11110000), (1, 0x33332222)):
            a(f"s_add_u32 s{sTp}, s{sA}, 0x32103210")
            a(f"s_and_b32 s{sTp}, s{sTp}, 0x33333333")
            a(f"s_add_u32 s{sTp+1}, s{sB}, {hi:#x}")
            a(f"s_and_b32 s{sTp+1}, s{sTp+1}, 0x33333333")
            a(f"s_lshl_b32 s{sTp+1}, s{sTp+1}, 2")
            a(f"s_or_b32 s{sTb+half}, s{sTp}, s{sTp+1}")
        a(f"s_mov_b32 s{sTW}, 0")
        a(f"s_mov_b32 s{sTX}, 0")
        a(f"s_lshl_b32 s{sWg}, s46, 19")
        a(f"s_lshl_b32 s{sXg}, s46, 9")
        a(f"s_lshl_b32 s{sA}, s5, 2")
        a(f"s_lshl_b32 s39, 15, s{sA}")
        a(f"s_mov_b32 s{sP}, 0")
        a.label("OP_LW")
        issueW(sSl, sWg); advW()
        a(f"s_add_u32 s{sP}, s{sP}, 1")
        a(f"s_cmp_lt_u32 s{sP}, 2")
        a("s_cbranch_scc1 OP_LW")
        P.stamp(6)
        a("s_barrier")
        P.stamp(7)
        a(f"v_lshlrev_b32 v{t3}, 2, v0")
        if opt.get("xdelay", 0): a(f"s_sleep {opt['xdelay']}")
        issueX(sSlX, sXg); advX()
        issueX(sSlX, sXg); advX()
        a("s_waitcnt vmcnt(3)")
        a("s_barrier")
        def look(uid):
            a(f"s_cmp_lg_u32 s{sW}, 4")
            a(f"s_cbranch_scc1 OP_NOLOOK{uid}")
            a("s_mov_b64 exec, 0xffff")
            a(f"buffer_load_dword v{vPoll}, v{t3}, s[{SFL}:{SFL+3}], 0 offen sc1")
            a("s_mov_b64 exec, -1")
            a.label(f"OP_NOLOOK{uid}")
        look(1)
        issueW(sSl, sWg); advW()
        issueW(sSl, sWg); advW()
        a("s_waitcnt vmcnt(8)")
        a("s_barrier")
        issueW(sSl, sWg); advW()
        issueW(sSl, sWg); advW()
        def poll(mask, uid):
            a(f"s_cmp_lg_u32 s{sW}, 4")
            a(f"s_cbranch_scc1 OP_POLL_DONE{uid}")
            a("s_mov_b64 exec, 0xffff")
            a(f"s_mov_b32 s{sP}, 0")
            a.label(f"OP_POLL_LOOP{uid}")
            a(f"v_cmp_eq_u32 vcc, s96, v{vPoll}")
            a("s_nop 1")
            a(f"s_and_b32 s{sA}, vcc_lo, {mask}")
            a(f"s_cmp_eq_u32 s{sA}, {mask}")
            a(f"s_cbranch_scc1 OP_POLL_OK{uid}")
            a(f"s_sleep {opt.get('psleep', 2)}")
            a(f"buffer_load_dword v{vPoll}, v{t3}, s[{SFL}:{SFL+3}], 0 offen sc1")
            a("s_waitcnt vmcnt(0)")
            a(f"s_add_u32 s{sP}, s{sP}, 1")
            a(f"s_cmp_lt_u32 s{sP}, 400000")
            a(f"s_cbranch_scc1 OP_POLL_LOOP{uid}")
            a.label(f"OP_POLL_OK{uid}")
            if uid == 1:
                a(f"buffer_load_dword v{vPoll}, v{t3}, s[{SFL}:{SFL+3}], 0 offen sc1")
            a("s_mov_b64 exec, -1")
            a.label(f"OP_POLL_DONE{uid}")
        poll("s39", 1)
        P.stamp(9)
        a("s_barrier")
        P.stamp(10)
        for _ in range(4):
            issueX(sSlX, sXg); advX()
        for k, cnt in enumerate((9, 13, 17)):
            a(f"s_waitcnt vmcnt({cnt})")
            a("s_barrier")
            if k == 2 or True:
                pass
            if k < 2:
                issue()
                if k == 1:
                    poll("0xffff", 2)
                    a("s_barrier")
            else:
                issue()
        a(f"s_mov_b32 s{sP}, 4")
    else:
        a(f"s_mov_b32 s{sWg}, 0")
        a(f"s_mov_b32 s{sXg}, 0")
        for st in range(5):
            issue()
        a("s_waitcnt vmcnt(28)")
        a("s_barrier")
        a(f"s_mov_b32 s{sP}, 0")
    a.label("OP_L_LOOP")
    a("s_waitcnt vmcnt(21)")
    a("s_barrier")
    issue()
    a(f"s_add_u32 s{sP}, s{sP}, 1")
    a(f"s_cmp_lt_u32 s{sP}, 27")
    a("s_cbranch_scc1 OP_L_LOOP")
    for s_ in range(27, 31):
        a(f"s_waitcnt vmcnt({7*(31-(s_+1))})")
        a("s_barrier")
    a("s_barrier")
    a("s_barrier")
    if fused:
        P.dump(52, sW, 64 << 20, 12)
    return NV

HEADER = open("cdna_kernels/" + NAME + ".s.ref").read().split("; Override launch")[0]

def kd(name, nv, ns):
    acc = (nv + 3)//4*4
    return f"""
.amdhsa_kernel {name}
  .amdhsa_next_free_vgpr {nv}
  .amdhsa_next_free_sgpr {ns}
  .amdhsa_accum_offset {acc}
  .amdhsa_group_segment_fixed_size 0
  .amdhsa_kernarg_size 104
  .amdhsa_user_sgpr_count 2
  .amdhsa_user_sgpr_kernarg_segment_ptr 1
  .amdhsa_system_sgpr_workgroup_id_x 1
.end_amdhsa_kernel
"""

def main(out, opt):
    fused = opt.get("fused", 1)
    a1 = Asm(); nv1 = kernel1(a1, opt)
    s = HEADER
    if fused:
        body = a1.text().replace("k1_kernel", NAME + "_kernel")
        s += "; @launch grid=(256,1,1) block=(768,1,1) lds=163840\n"
        s += '.amdgcn_target "amdgcn-amd-amdhsa--gfx950"\n.text\n'
        nm = NAME + "_kernel"
        s += f".globl {nm}\n.p2align 8\n.type {nm},@function\n" + body
        s += '.section .rodata,"a"\n'
        s += ".p2align 6" + kd(nm, nv1, 102)
    else:
        a2 = Asm(); nv2 = kernel2(a2, opt)
        s += "; @launch kernel=k1_kernel grid=(256,1,1) block=(768,1,1) lds=163840\n"
        s += "; @launch kernel=k2_kernel grid=(256,1,1) block=(512,1,1) lds=143360\n"
        s += '.amdgcn_target "amdgcn-amd-amdhsa--gfx950"\n.text\n'
        for nm, body in (("k1_kernel", a1), ("k2_kernel", a2)):
            s += f".globl {nm}\n.p2align 8\n.type {nm},@function\n" + body.text()
        s += '.section .rodata,"a"\n'
        s += ".p2align 6" + kd("k1_kernel", nv1, 102) + ".p2align 6" + kd("k2_kernel", nv2, 96)
    open(out, "w").write(s)

if __name__ == "__main__":
    if "--prof" in sys.argv:
        PROF = True
        sys.argv.remove("--prof")
    if "--dbgprof" in sys.argv:
        PROF = True
        DBGPROF = True
        sys.argv.remove("--dbgprof")
    if "--fine" in sys.argv:
        PROF = True
        FINE = True
        sys.argv.remove("--fine")
    opt = {}
    for x in list(sys.argv):
        if x.startswith("--o:"):
            k, v = x[4:].split("=")
            opt[k] = int(v)
            sys.argv.remove(x)
    main(sys.argv[1] if len(sys.argv) > 1 else "cdna_kernels/" + NAME + ".s", opt)
```

```python
import sys, struct, math

NAME = "concat_heads__gqa_block_cached__gqa_block_cached__near_ridge"

def f2u(x):
    return struct.unpack("<I", struct.pack("<f", x))[0]

class Asm:
    def __init__(self):
        self.L = []
    def __call__(self, s):
        import re
        m = re.search(r"offset:(\d+)", s)
        if m:
            lim = 4095 if s.lstrip().startswith(("buffer_", "global_")) else 65535
            assert int(m.group(1)) <= lim, s
        for line in s.split("\n"):
            self.L.append("    " + line.strip() if not line.strip().endswith(":") else line.strip())
    def label(self, s):
        self.L.append(s + ":")
    def c(self, s):
        self.L.append("    ; " + s)
    def text(self):
        return "\n".join(self.L) + "\n"

def vr(base, n=1):
    return f"v{base}" if n == 1 else f"v[{base}:{base+n-1}]"
def sr(base, n=1):
    return f"s{base}" if n == 1 else f"s[{base}:{base+n-1}]"

MF32 = "v_mfma_f32_32x32x16_bf16"
MF16 = "v_mfma_f32_16x16x32_bf16"

DEBUG_Q = False
PROF = False
FINE = False
DBGPROF = False
class Prof:
    uid = 0
    def __init__(self, a, base, tmp, srd):
        self.a, self.base, self.tmp, self.srd = a, base, tmp, srd
    def init(self, n):
        if not PROF: return
        for i in range(n):
            self.a(f"s_mov_b32 s{self.base+i}, 0")
    def fine(self, slot, cond_sgpr, val, uid):
        if not FINE: return
        a = self.a
        a(f"s_cmp_lg_u32 s{cond_sgpr}, {val}")
        a(f"s_cbranch_scc1 FINE_{uid}")
        a(f"s_memtime s[{self.tmp}:{self.tmp+1}]")
        a("s_waitcnt lgkmcnt(0)")
        a(f"s_mov_b32 s{self.base+slot}, s{self.tmp}")
        a.label(f"FINE_{uid}")
    def stamp(self, slot, real=False):
        if not PROF: return
        if FINE and slot in (2, 3, 4, 5, 6, 7) : return
        a = self.a
        a(f"{'s_memrealtime' if real else 's_memtime'} s[{self.tmp}:{self.tmp+1}]")
        a("s_waitcnt lgkmcnt(0)")
        a(f"s_mov_b32 s{self.base+slot}, s{self.tmp}")
    def dump(self, ws_lo, swave, region, nmax):
        if not PROF: return
        a = self.a
        b = self.srd
        if DBGPROF:
            Prof.uid += 1
            a(f"s_or_b32 s{self.tmp}, s2, s{swave}")
            a(f"s_cmp_lg_u32 s{self.tmp}, 0")
            a(f"s_cbranch_scc1 DBGP_SKIP{Prof.uid}")
            a(f"s_load_dwordx2 s[{b}:{b+1}], s[0:1], 88")
            a("s_waitcnt lgkmcnt(0)")
            a(f"s_mov_b32 s{b+2}, 256")
            a(f"s_mov_b32 s{b+3}, 0x20000")
            a("s_mov_b64 exec, 1")
            a("v_mov_b32 v1, 0")
            for i in range(nmax):
                if i in (0, 1): continue
                ref = 0 if i == 8 else 1
                a(f"s_sub_u32 s{self.tmp}, s{self.base+i}, s{self.base+ref}")
                a(f"v_mov_b32 v2, s{self.tmp}")
                a(f"buffer_store_dword v2, v1, s[{b}:{b+3}], 0 offen offset:{4*i}")
                a("s_nop 0")
            a.label(f"DBGP_SKIP{Prof.uid}")
            return
        a(f"s_add_u32 s{b}, s{ws_lo}, {region}")
        a(f"s_addc_u32 s{b+1}, s{ws_lo+1}, 0")
        a(f"s_mov_b32 s{b+2}, {256*16*64}")
        a(f"s_mov_b32 s{b+3}, 0x20000")
        a(f"s_lshl_b32 s{self.tmp}, s2, 4")
        a(f"s_add_u32 s{self.tmp}, s{self.tmp}, s{swave}")
        a(f"s_lshl_b32 s{self.tmp}, s{self.tmp}, 6")
        a("s_mov_b64 exec, 1")
        a(f"v_mov_b32 v1, s{self.tmp}")
        for i in range(nmax):
            a(f"v_mov_b32 v2, s{self.base+i}")
            a(f"buffer_store_dword v2, v1, s[{b}:{b+3}], 0 offen offset:{4*i}")
            a("s_nop 0")

def kernel1(a, opt):
    T2_START = opt.get("t2_start", 8)
    TOUCH = opt.get("touch", 0)
    PRIO = opt.get("prio", 1)
    PQ, PS, PP = opt.get("pq", 2), opt.get("ps", 1), opt.get("pp", 0)
    DMAQ = opt.get("dmaq", 1)
    NTD = " nt" if opt.get("ntd", 0) else ""
    NTQ = " nt" if opt.get("ntq", opt.get("ntd", 0)) else ""
    NTX = " nt" if opt.get("ntx", opt.get("ntd", 0)) else ""
    NTT = " nt" if opt.get("ntt", 1) else ""
    ROT = opt.get("rot", 4)
    TPS = opt.get("tps", 2)
    NS2 = opt.get("p2steps", 8)
    AB = opt.get("ablate", 0)
    CSCALE = 128 ** -0.5 * math.log2(math.e)
    WOT = opt.get("wot", 1)
    OPM = opt.get("op", 3) if opt.get("fused", 1) else 1
    NTW = " nt" if opt.get("ntw", 0) else ""
    SWOP = 36
    sW = 4
    sKvh, sBr, sBt, sPair = 5, 6, 7, 3
    SX, SWQ, SK, SV, SO = 8, 12, 16, 20, 24
    STCH = 40
    sThr, sFloor = 54, 55
    sG = [56, 57, 58, 59]
    sL = [60, 61, 62, 63]
    sStep = 64
    sVn, sKn = 65, 66
    sGstep = 67
    sKc, sVc = 68, 69
    sQt, sKq = 70, 71
    sA, sB, sD = 72, 73, 74
    sLam = 75
    sWs, sWg, sXs, sXg = 76, 77, 78, 79
    sP = 80
    sE = 81
    sChk = 100
    SFL, sTok = 28, 96
    FLAGOFF = 8 << 20
    sGrp, sIdx, sRdy = 45, 46, 47
    sSafe = 44
    sDk, sDv, sTl = 76, 77, 78
    vMx = 0
    vL = 1
    KA0, KA1, VA = 2, 3, 4
    vKoff, vVoff = 5, 6
    vTb = 7
    NM = 8
    O = 24
    Q = 88
    S = 120
    F = 136
    NV = 168
    t0, t1, t2, t3, t4 = 8, 9, 10, 11, 12
    Wf = 88
    Xf = 104
    ACC = 128
    WA = 152
    XA = 154
    QW = 158
    vCs = 161
    vWo, vXo = 160, 153

    XBASE = 131072
    a.label("k1_kernel")
    a("s_cmp_ge_u32 s2, 256")
    a("s_cbranch_scc1 K1_END")
    P = Prof(a, 84, 82, 28)
    P.init(12)
    P.stamp(0, real=True)
    P.stamp(1)
    if opt.get("padto", 0): a("s_memrealtime s[100:101]")
    a("s_load_dwordx16 s[32:47], s[0:1], 0")
    a("s_load_dwordx4 s[48:51], s[0:1], 64")
    a("s_load_dwordx2 s[52:53], s[0:1], 96")
    a("v_lshrrev_b32 v1, 6, v0")
    a("v_and_b32 v0, 63, v0")
    a(f"v_readfirstlane_b32 s{sW}, v1")
    a(f"s_and_b32 s{sKvh}, s2, 3")
    a(f"s_bfe_u32 s{sBr}, s2, 0x10002")
    a(f"s_lshr_b32 s{sBt}, s2, 5")
    a(f"s_bfe_u32 s{sPair}, s2, 0x20003")
    a(f"s_and_b32 s{sKq}, s{sW}, 3")
    a(f"s_lshr_b32 s{sQt}, s{sW}, 2")
    a(f"s_lshl_b32 s{sD}, s{sKvh}, 11")
    a(f"s_lshl_b32 s{sB}, s{sPair}, 9")
    a(f"s_add_u32 s{sD}, s{sD}, s{sB}")
    a(f"s_mul_i32 s{sA}, s{sBt}, 98304")

    def srd1():
        a("s_waitcnt lgkmcnt(0)")
        a(f"s_cmp_eq_u32 s{sBr}, 0")
        a(f"s_cselect_b64 s[{SX}:{SX+1}], s[32:33], s[42:43]")
        a(f"s_cselect_b64 s[{SWQ}:{SWQ+1}], s[38:39], s[48:49]")
        a(f"s_add_u32 s{SX}, s{SX}, s{sA}")
        a(f"s_addc_u32 s{SX+1}, s{SX+1}, 0")
        a(f"s_mov_b32 s{SX+2}, 98304")
        a(f"s_mov_b32 s{SX+3}, 0x20000")
        a(f"s_add_u32 s{SWQ}, s{SWQ}, s{sD}")
        a(f"s_addc_u32 s{SWQ+1}, s{SWQ+1}, 0")
        a(f"s_sub_u32 s{SWQ+2}, 8388608, s{sD}")
        a(f"s_mov_b32 s{SWQ+3}, 0x20000")
    def patterns():
        a(f"v_bfe_u32 v{t0}, v0, 2, 2")
        a(f"v_lshlrev_b32 v{t0}, 8, v{t0}")
        a(f"v_lshrrev_b32 v{t1}, 4, v0")
        a(f"v_lshl_add_u32 v{t0}, v{t1}, 6, v{t0}")
        a(f"v_and_b32 v{t1}, 3, v0")
        a(f"v_lshl_add_u32 v{vVoff}, v{t1}, 4, v{t0}")
        a(f"s_lshl_b32 s{sB}, s{sKq}, 4")
        a(f"v_xor_b32 v{vKoff}, s{sB}, v{vVoff}")

    def srd2():
        a(f"s_cmp_eq_u32 s{sBr}, 0")
        a(f"s_cselect_b64 s[{SK}:{SK+1}], s[34:35], s[44:45]")
        a(f"s_cselect_b64 s[{SV}:{SV+1}], s[36:37], s[46:47]")
        a(f"s_mov_b64 s[36:37], s[40:41]")
        a(f"s_lshl_b32 s{sB}, s{sBr}, 3")
        a(f"s_add_u32 s{sB}, s{sB}, s{sBt}")
        a(f"s_mul_i32 s{sB}, s{sB}, {48*8192}")
        a(f"s_add_u32 s{sB}, s{sB}, s{sD}")
        a(f"s_add_u32 s{SO}, s52, s{sB}")
        a(f"s_addc_u32 s{SO+1}, s53, 0")
        a(f"s_sub_u32 s{SO+2}, {48*8192}, s{sD}")
        a(f"s_mov_b32 s{SO+3}, 0x20000")
        a(f"s_lshl_b32 s{sB}, s{sBt}, 2")
        a(f"s_add_u32 s{sB}, s{sB}, s{sKvh}")
        a(f"s_lshl_b32 s{sB}, s{sB}, 18")
        a(f"s_add_u32 s{SK}, s{SK}, s{sB}")
        a(f"s_addc_u32 s{SK+1}, s{SK+1}, 0")
        a(f"s_mov_b32 s{SK+2}, 262144")
        a(f"s_mov_b32 s{SK+3}, 0x20000")
        a(f"s_add_u32 s{SV}, s{SV}, s{sB}")
        a(f"s_addc_u32 s{SV+1}, s{SV+1}, 0")
        a(f"s_mov_b32 s{SV+2}, 262144")
        a(f"s_mov_b32 s{SV+3}, 0x20000")
        a(f"s_mov_b32 s{STCH+2}, 262144")
        a(f"s_mov_b32 s{STCH+3}, 0x20000")
        if OPM == 1:
            a(f"s_lshl_b32 s{sB}, s{sBr}, 3")
            a(f"s_add_u32 s{sB}, s{sB}, s{sBt}")
            a(f"s_lshl_b32 s{sB}, s{sB}, 8")
            a(f"s_add_u32 s{sB}, s{sB}, {FLAGOFF}")
            a(f"s_add_u32 s{SFL}, s52, s{sB}")
            a(f"s_addc_u32 s{SFL+1}, s53, 0")
            a(f"s_mov_b32 s{SFL+2}, 64")
        else:
            a(f"s_add_u32 s{SFL}, s52, {FLAGOFF}")
            a(f"s_addc_u32 s{SFL+1}, s53, 0")
            a(f"s_mov_b32 s{SFL+2}, 32768")
            a(f"s_lshl_b32 s{sGrp}, s{sBr}, 2")
            a(f"s_add_u32 s{sGrp}, s{sGrp}, s{sKvh}")
            a(f"s_lshl_b32 s{sGrp}, s{sGrp}, 2")
            a(f"s_lshr_b32 s{sB}, s{sBt}, 1")
            a(f"s_add_u32 s{sGrp}, s{sGrp}, s{sB}")
            a(f"s_lshl_b32 s{sGrp}, s{sGrp}, 8")
            a(f"s_lshl_b32 s{sRdy}, s{sBr}, 2")
            a(f"s_add_u32 s{sRdy}, s{sRdy}, s{sB}")
            a(f"s_lshl_b32 s{sRdy}, s{sRdy}, 3")
            a(f"s_and_b32 s{sB}, s{sBt}, 1")
            a(f"s_lshl_b32 s{sB}, s{sB}, 2")
            a(f"s_add_u32 s{sB}, s{sB}, s{sPair}")
            a(f"s_add_u32 s{sRdy}, s{sRdy}, s{sB}")
            a(f"s_lshl_b32 s{sRdy}, s{sRdy}, 8")
            a(f"s_add_u32 s{sRdy}, s{sRdy}, 16384")
        a(f"s_mov_b32 s{SFL+3}, 0x20000")
        if OPM == 1:
            a(f"s_load_dwordx2 s[{sTok}:{sTok+1}], s[{SX}:{SX+1}], 0")
        else:
            a(f"s_and_b32 s82, s{sBt}, 1")
            a(f"s_mul_i32 s82, s82, 98304")
            a(f"s_sub_u32 s82, s{SX}, s82")
            a(f"s_subb_u32 s83, s{SX+1}, 0")
            a(f"s_load_dwordx2 s[{sTok}:{sTok+1}], s[82:83], 0")
        if OPM == 1:
            a(f"s_lshl_b32 s{sIdx}, s{sKvh}, 2")
            a(f"s_add_u32 s{sIdx}, s{sIdx}, s{sPair}")
        else:
            a(f"s_mov_b32 s{sIdx}, s{sB}")

        patterns()

    def kread(n):
        a(f"ds_read_b128 {vr(F+4*n,4)}, v{KA0 + (n & 1)} offset:{(n >> 1)*256}")
    def setup2():
        a(f"v_and_b32 v{t0}, 31, v0")
        a(f"v_lshrrev_b32 v{t1}, 5, v0")
        a(f"v_and_b32 v{t2}, 15, v0")
        a(f"v_xor_b32 v{t2}, v{t1}, v{t2}")
        a(f"v_lshlrev_b32 v{t2}, 4, v{t2}")
        a(f"v_lshl_add_u32 v{t2}, v{t0}, 8, v{t2}")
        a(f"s_lshl_b32 s{sA}, s{sQt}, 13")
        a(f"s_add_u32 s{sA}, s{sA}, {XBASE}")
        a(f"v_add_u32 v{vTb}, s{sA}, v{t2}")
        a(f"v_lshrrev_b32 v{t2}, 2, v{t0}")
        a(f"v_and_b32 v{t3}, 3, v{t2}")
        a(f"v_xor_b32 v{t3}, v{t1}, v{t3}")
        a(f"v_lshlrev_b32 v{t3}, 4, v{t3}")
        a(f"v_lshl_add_u32 v{t3}, v{t2}, 10, v{t3}")
        a(f"v_and_b32 v{t2}, 3, v0")
        a(f"v_lshl_add_u32 v{t3}, v{t2}, 6, v{t3}")
        a(f"s_lshl_b32 s{sA}, s{sKq}, 13")
        a(f"v_add_u32 v{KA0}, s{sA}, v{t3}")
        a(f"v_xor_b32 v{KA1}, 32, v{KA0}")
        a(f"v_bfe_u32 v{t2}, v0, 2, 2")
        a(f"v_lshlrev_b32 v{t2}, 6, v{t2}")
        a(f"v_lshl_add_u32 v{t2}, v{t1}, 10, v{t2}")
        a(f"v_bfe_u32 v{t3}, v0, 4, 1")
        a(f"v_lshl_add_u32 v{t2}, v{t3}, 5, v{t2}")
        a(f"v_bfe_u32 v{t3}, v0, 1, 1")
        a(f"v_lshl_add_u32 v{t2}, v{t3}, 4, v{t2}")
        a(f"v_and_b32 v{t3}, 1, v0")
        a(f"v_lshl_add_u32 v{t2}, v{t3}, 3, v{t2}")
        a(f"s_add_u32 s{sA}, s{sA}, 32768")
        a(f"v_add_u32 v{VA}, s{sA}, v{t2}")
        for j in range(4):
            a(f"s_sub_u32 s{sA}, s{sQt}, 1")
            a(f"s_lshl_b32 s{sA}, s{sA}, 1")
            a(f"s_add_u32 s{sA}, s{sA}, {j >> 1}")
            a(f"s_add_u32 s{sB}, s{sKq}, {4*(j & 1)}")
            a(f"s_lshl_b32 s{sB}, s{sB}, 10")
            a(f"s_lshl_b32 s{sD}, s{sA}, 16")
            a(f"s_add_u32 s{sG[j]}, s{sD}, s{sB}")
            a(f"s_lshl_b32 s{sD}, s{sA}, 13")
            a(f"s_add_u32 s{sL[j]}, s{sD}, s{sB}")
        a(f"s_mov_b32 s{sStep}, 0")
        a(f"s_mov_b32 s{sKn}, {4*32768}")
        a(f"s_mov_b32 s{sVn}, 0")
        a(f"s_mov_b32 s{sGstep}, 16384")
        a(f"s_mov_b32 s{sKc}, 65536")
        a(f"s_mov_b32 s{sVc}, 32768")
        a(f"s_mov_b32 s{sThr}, 0xff800000")
        a(f"s_mov_b32 s{sFloor}, 0xff800000")
        a(f"s_mov_b32 s{sSafe}, {opt.get('safe', 1)}")
        for r in range(0, 16, 2):
            a(f"v_mov_b64 {vr(NM+r,2)}, 0")

    def issueW(slot_expr_sgpr, goff_sgpr, vreg):
        for j in range(8):
            m1, m3, m4 = j & 1, (j >> 1) & 1, (j >> 2) & 1
            dm = 2*m1 + 8*m3 + 16*m4
            a(f"s_add_u32 m0, s{slot_expr_sgpr}, {dm*1024}")
            a(f"s_add_u32 s{sA}, s{goff_sgpr}, {dm*16384}")
            a(f"buffer_load_dwordx4 v{vreg}, s[{SWQ}:{SWQ+3}], s{sA} offen{NTQ} lds")
    def issueX(slot_sgpr, goff_sgpr):
        for j in range(3):
            a(f"s_add_u32 m0, s{slot_sgpr}, {j*4096}")
            a(f"s_add_u32 s{sA}, s{goff_sgpr}, {j*16*2048}")
            a(f"buffer_load_dwordx4 v{vXo}, s[{SX}:{SX+3}], s{sA} offen{NTX} lds")
    a(f"v_lshrrev_b32 v{t0}, 5, v0")
    a(f"v_and_b32 v{t1}, 31, v0")
    a(f"s_and_b32 s{sE}, s{sKq}, 1")
    a(f"s_lshl_b32 s{sE}, s{sE}, 1")
    a(f"s_lshr_b32 s{sB}, s{sKq}, 1")
    a(f"s_lshl_b32 s{sB}, s{sB}, 2")
    a(f"s_or_b32 s{sE}, s{sE}, s{sB}")
    a(f"v_or_b32 v{t2}, s{sE}, v{t0}")
    a(f"v_lshlrev_b32 v{t2}, 1, v{t2}")
    a(f"v_xor_b32 v{t2}, v{t1}, v{t2}")
    a(f"v_lshlrev_b32 v{t2}, 4, v{t2}")
    a(f"v_lshl_add_u32 v{vWo}, v{t0}, 13, v{t2}")
    a(f"s_and_b32 s{sE}, s{sKq}, 1")
    a(f"s_or_b32 s{sE}, s{sE}, s{sB}")
    a(f"s_lshl_b32 s{sB}, s{sE}, 14")
    a(f"v_add_u32 v{vWo}, s{sB}, v{vWo}")
    a(f"s_lshl_b32 s{sWs}, s{sE}, 10")
    if ROT == 1:
        a(f"s_lshl_b32 s{sXg}, s{sPair}, 1")
        a(f"s_add_u32 s{sXg}, s{sXg}, s{sBt}")
        a(f"s_and_b32 s{sXg}, s{sXg}, 7")
        a(f"s_lshl_b32 s{sWg}, s{sXg}, 20")
        a(f"s_lshl_b32 s{sXg}, s{sXg}, 8")
    elif ROT == 4:
        a(f"s_add_u32 s{sXg}, s{sPair}, s{sBt}")
        a(f"s_and_b32 s{sXg}, s{sXg}, 3")
        a(f"s_lshl_b32 s{sXg}, s{sXg}, 1")
        a(f"s_lshl_b32 s{sWg}, s{sXg}, 20")
        a(f"s_lshl_b32 s{sXg}, s{sXg}, 8")
    elif ROT == 2:
        a(f"s_add_u32 s{sXg}, s{sPair}, s{sBt}")
        a(f"s_and_b32 s{sXg}, s{sXg}, 1")
        a(f"s_lshl_b32 s{sXg}, s{sXg}, 2")
        a(f"s_lshl_b32 s{sWg}, s{sXg}, 20")
        a(f"s_lshl_b32 s{sXg}, s{sXg}, 8")
    else:
        a(f"s_mov_b32 s{sXg}, 0")
        a(f"s_mov_b32 s{sWg}, 0")
    a(f"s_cmp_ge_u32 s{sW}, 8")
    a("s_cbranch_scc1 K1_LOADER")
    a(f"s_add_u32 s{sB}, s{sQt}, 1")
    a(f"s_lshl_b32 s{sE}, s{sB}, 15")
    a(f"s_add_u32 s{sWs}, s{sWs}, s{sE}")
    a(f"s_lshl_b32 s{sE}, s{sB}, 19")
    a(f"s_add_u32 s{sWg}, s{sWg}, s{sE}")
    a(f"s_and_b32 s{sWg}, s{sWg}, 0x7fffff")
    srd1()
    if opt.get("t1", 0):
        a(f"v_lshrrev_b32 v{t0}, 4, v0")
        a(f"v_lshlrev_b32 v{t0}, 13, v{t0}")
        a(f"v_and_b32 v{t1}, 15, v0")
        a(f"v_lshl_add_u32 v{t0}, v{t1}, 7, v{t0}")
        a(f"s_lshr_b32 s{sB}, s2, 3")
        a(f"s_lshl_b32 s{sB}, s{sB}, 15")
        a(f"s_lshl_b32 s{sE}, s{sW}, 20")
        a(f"s_add_u32 s{sB}, s{sB}, s{sE}")
        a(f"s_lshl_b32 s{sE}, s{sPair}, 9")
        a(f"s_sub_u32 s82, s{SWQ}, s{sE}")
        a(f"s_subb_u32 s83, s{SWQ+1}, 0")
        a(f"v_add_u32 v{t0}, s{sB}, v{t0}")
        a(f"s_cmp_lt_u32 s{sW}, {opt.get('t1first', 1)}")
        a("s_cbranch_scc1 K1_NOT1")
        a(f"global_load_dword v{F+31}, v{t0}, s[82:83]")
        a.label("K1_NOT1")
        a(f"s_cmp_ge_u32 s{sW}, 3")
        a("s_cbranch_scc1 K1_NOT2")
        a(f"v_lshrrev_b32 v{t0}, 4, v0")
        a(f"s_mul_i32 s{sB}, s{sPair}, 12")
        a(f"s_lshl_b32 s{sE}, s{sW}, 2")
        a(f"s_add_u32 s{sB}, s{sB}, s{sE}")
        a(f"v_add_u32 v{t0}, s{sB}, v{t0}")
        a(f"v_lshlrev_b32 v{t0}, 11, v{t0}")
        a(f"v_lshl_add_u32 v{t0}, v{t1}, 7, v{t0}")
        a(f"buffer_load_dword v{F+30}, v{t0}, s[{SX}:{SX+3}], 0 offen")
        a.label("K1_NOT2")
    if not opt.get("latew", 1):
        issueW(sWs, sWg, vWo)

    a.c("phase 1 compute")
    a(f"v_bfe_u32 v{t0}, v0, 2, 2")
    a(f"v_lshrrev_b32 v{t1}, 4, v0")
    a(f"v_and_b32 v{t2}, 1, v{t1}")
    a(f"v_lshl_or_b32 v{t2}, v{t2}, 2, v{t0}")
    a(f"s_lshl_b32 s{sE}, s{sW}, 1")
    a(f"v_xor_b32 v{t2}, s{sE}, v{t2}")
    a(f"v_lshl_add_u32 v{t3}, v{t1}, 3, v{t0}")
    a(f"v_lshlrev_b32 v{t3}, 9, v{t3}")
    a(f"v_lshl_add_u32 v{t3}, v{t2}, 5, v{t3}")
    a(f"v_and_b32 v{t4}, 3, v0")
    a(f"v_lshl_add_u32 v{WA}, v{t4}, 3, v{t3}")
    a(f"v_xor_b32 v{WA+1}, 32, v{WA}")
    a(f"v_and_b32 v{t0}, 15, v0")
    a(f"v_xor_b32 v{t2}, v{t1}, v{t0}")
    a(f"v_lshlrev_b32 v{t2}, 4, v{t2}")
    a(f"v_lshl_add_u32 v{t2}, v{t0}, 8, v{t2}")
    a(f"v_add_u32 v{XA}, {XBASE:#x}, v{t2}")
    a(f"v_xor_b32 v{XA+1}, 64, v{XA}")
    a(f"v_xor_b32 v{XA+2}, 0x80, v{XA}")
    a(f"v_xor_b32 v{XA+3}, 0xc0, v{XA}")
    for r in range(24):
        a(f"v_mov_b32 v{ACC+r}, 0")
    srd2()
    if opt.get("fused", 1):
        a(f"s_cmp_lg_u32 s{sW}, 1")
        a("s_cbranch_scc1 K1_NOZ")
        a(f"s_lshl_b32 s{sE}, s{sIdx}, 2")
        if OPM == 3:
            a(f"s_add_u32 s{sE}, s{sE}, s{sGrp}")
        a(f"v_mov_b32 v{t0}, 0")
        a(f"v_mov_b32 v{t1}, s{sE}")
        if OPM == 3:
            a(f"s_lshl_b32 s{sE}, s{sKvh}, 2")
            a(f"s_add_u32 s{sE}, s{sE}, s{sRdy}")
            a(f"v_writelane_b32 v{t1}, s{sE}, 1")
        a(f"s_mov_b64 exec, {3 if OPM == 3 else 1}")
        a(f"buffer_store_dword v{t0}, v{t1}, s[{SFL}:{SFL+3}], 0 offen sc1")
        a("s_mov_b64 exec, -1")
        a.label("K1_NOZ")
    a(f"v_mov_b32 v{vCs}, {f2u(CSCALE):#x}")
    a(f"v_and_b32 v{t0}, 15, v0")
    a(f"v_lshrrev_b32 v{t1}, 4, v0")
    a(f"s_lshl_b32 s{sE}, s{sKq}, 2")
    a(f"v_lshrrev_b32 v{t2}, 1, v{t1}")
    a(f"v_add_u32 v{t2}, s{sE}, v{t2}")
    a(f"v_xor_b32 v{t2}, v{t2}, v{t0}")
    a(f"v_lshlrev_b32 v{t2}, 4, v{t2}")
    a(f"v_lshl_add_u32 v{t2}, v{t0}, 8, v{t2}")
    a(f"v_and_b32 v{t3}, 1, v{t1}")
    a(f"v_lshl_add_u32 v{t2}, v{t3}, 3, v{t2}")
    a(f"s_mul_i32 s{sE}, s{sQt}, {48*256}")
    a(f"s_add_u32 s{sE}, s{sE}, {XBASE}")
    a(f"v_add_u32 v{QW}, s{sE}, v{t2}")
    a(f"v_xor_b32 v{QW+1}, 32, v{QW}")
    setup2()
    if opt.get("dbgtouch", 0):
        a("s_load_dwordx2 s[82:83], s[0:1], 88")
        a("s_waitcnt lgkmcnt(0)")
        a("v_mov_b32 v162, 0")
        a("global_load_dword v163, v162, s[82:83] sc1")
    if opt.get("latew", 1):
        issueW(sWs, sWg, vWo)
    a(f"s_mov_b32 s{sP}, 0")
    FB = [88, 24]
    def p1_read_list(sp):
        fb = FB[sp]
        L = []
        for ks in range(2):
            for tt in range(2):
                for e in range(2):
                    off = sp * 32768 + ks * 16384 + e * 2048
                    L.append(f"ds_read_b64_tr_b16 {vr(fb + (tt*2+ks)*4 + e*2, 2)}, v{WA+tt} offset:{off}")
            for rt in range(3):
                L.append(f"ds_read_b128 {vr(fb + 16 + (rt*2+ks)*4, 4)}, v{XA + sp*2 + ks} offset:{rt*4096}")
        return L
    def p1_mfma_list(sp):
        fb = FB[sp]
        L = []
        for ks in range(2):
            for rt in range(3):
                for tt in range(2):
                    acc = ACC + (tt*3+rt)*4
                    L.append(f"{MF16} {vr(acc,4)}, {vr(fb+(tt*2+ks)*4,4)}, {vr(fb+16+(rt*2+ks)*4,4)}, {vr(acc,4)}")
        return L
    def p1_reads(sp):
        for x in p1_read_list(sp): a(x)
    def p1_mfma(sp):
        for x in p1_mfma_list(sp): a(x)
    def p1_both(rsp, msp):
        R, M = p1_read_list(rsp), p1_mfma_list(msp)
        for n in range(12):
            a(M[n])
            a(R[n])
            if n in (5, 11): a(R[12 + (n == 11)])
    a("s_barrier")
    P.stamp(2)
    p1_reads(0)
    a("s_waitcnt vmcnt(0) lgkmcnt(0)")
    a("s_branch K1_P1_MID")
    a.label("K1_P1_LOOP")
    a("s_barrier")
    p1_both(0, 1)
    a("s_waitcnt lgkmcnt(0)")
    a.label("K1_P1_MID")
    a("s_barrier")
    p1_both(1, 0)
    a(f"v_xor_b32 v{WA}, 0x10000, v{WA}")
    a(f"v_xor_b32 v{WA+1}, 0x10000, v{WA+1}")
    for v in range(4):
        a(f"v_xor_b32 v{XA+v}, 0x4000, v{XA+v}")
    a(f"s_add_u32 s{sP}, s{sP}, 1")
    a("s_waitcnt lgkmcnt(0)")
    a(f"s_cmp_lt_u32 s{sP}, 8")
    a("s_cbranch_scc1 K1_P1_LOOP")
    a("s_barrier")
    P.stamp(3)
    p1_mfma(1)
    a("s_nop 7")
    for tt in range(2):
        for rt in range(3):
            acc = ACC + (tt*3+rt)*4
            for r in range(4):
                a(f"v_mul_f32 v{acc+r}, v{vCs}, v{acc+r}")
            a(f"v_cvt_pk_bf16_f32 v{acc}, v{acc}, v{acc+1}")
            a(f"v_cvt_pk_bf16_f32 v{acc+1}, v{acc+2}, v{acc+3}")
            a(f"ds_write_b64 v{QW+tt}, {vr(acc,2)} offset:{rt*4096}")
    a("s_waitcnt lgkmcnt(0)")
    a("s_branch K1_JOIN")
    if TOUCH:
        for sp in range(2):
            a.label(f"K1_T1_{sp}")
            a(f"s_cmp_lt_u32 s{sP}, {T2_START//2}")
            a(f"s_cbranch_scc1 K1_T1R_{sp}")
            a(f"s_sub_u32 s{sA}, s{sP}, {T2_START//2}")
            a(f"s_lshl_b32 s{sA}, s{sA}, 13")
            a(f"s_lshl_b32 s{sB}, s{sPair}, 16")
            a(f"s_add_u32 s{sA}, s{sA}, s{sB}")
            srd = SK if sp == 0 else SV
            a(f"buffer_load_dword v{vVoff}, v{vTch}, s[{srd}:{srd+3}], s{sA} offen{NTT}")
            a(f"s_branch K1_T1R_{sp}")

    a.label("K1_LOADER")
    a("s_setprio 3")
    a(f"s_sub_u32 s{sLam}, s{sW}, 8")
    a(f"v_lshrrev_b32 v{t0}, 4, v0")
    a(f"v_and_b32 v{t1}, 15, v0")
    a(f"s_lshl_b32 s{sE}, s{sLam}, 2")
    a(f"v_or_b32 v{t2}, s{sE}, v{t0}")
    a(f"v_xor_b32 v{t3}, v{t1}, v{t2}")
    a(f"v_lshlrev_b32 v{t3}, 4, v{t3}")
    a(f"v_lshl_add_u32 v{vXo}, v{t2}, 11, v{t3}")
    def issueKV_loader(srd, voff, slot, step, uid=None):
        a(f"s_lshl_b32 s{sB}, s{sLam}, 10")
        for e in range(8):
            lo = slot*32768 + (e >> 1)*8192 + (e & 1)*4096
            go = (e >> 1)*65536 + step*8192 + (e & 1)*4096
            a(f"s_add_u32 m0, s{sB}, {lo}")
            a(f"s_add_u32 s{sA}, s{sB}, {go}")
            a(f"buffer_load_dwordx4 v{voff}, s[{srd}:{srd+3}], s{sA} offen{NTD} lds")
    a(f"s_lshl_b32 s{sXs}, s{sLam}, 10")
    a(f"s_add_u32 s{sXs}, s{sXs}, {XBASE}")
    srd1()
    P.stamp(9)
    def nextW():
        a(f"s_add_u32 s{sWs}, s{sWs}, 32768")
        a(f"s_and_b32 s{sWs}, s{sWs}, 0x1ffff")
        a(f"s_add_u32 s{sWg}, s{sWg}, 524288")
        a(f"s_and_b32 s{sWg}, s{sWg}, 0x7fffff")
    def nextX():
        a(f"s_xor_b32 s{sXs}, s{sXs}, 0x4000")
        a(f"s_add_u32 s{sXg}, s{sXg}, 256")
        a(f"s_and_b32 s{sXg}, s{sXg}, 0x7ff")
    issueX(sXs, sXg)
    issueW(sWs, sWg, vWo)
    P.stamp(10)
    a(f"s_add_u32 s{sWs}, s{sWs}, {3*32768}")
    a(f"s_add_u32 s{sWg}, s{sWg}, {3*524288}")
    a(f"s_and_b32 s{sWg}, s{sWg}, 0x7fffff")
    srd2()
    setup2()
    a(f"s_mov_b32 s{sP}, 0")
    a("s_waitcnt vmcnt(0)")
    P.stamp(11)
    a("s_setprio 0")
    a("s_barrier")
    a("s_branch K1_LD_MID")
    a.label("K1_LD_LOOP")
    a("s_waitcnt vmcnt(16)")
    a("s_barrier")
    a.label("K1_LD_MID")
    nextX(); issueX(sXs, sXg)
    issueW(sWs, sWg, vWo); nextW()
    a("s_waitcnt vmcnt(19)")
    a("s_barrier")
    issueW(sWs, sWg, vWo); nextW()
    a(f"s_add_u32 s{sP}, s{sP}, 1")
    a(f"s_cmp_lt_u32 s{sP}, 6")
    a("s_cbranch_scc1 K1_LD_LOOP")
    a("s_waitcnt vmcnt(16)")
    a("s_barrier")
    nextX(); issueX(sXs, sXg)
    issueW(sWs, sWg, vWo)
    a("s_waitcnt vmcnt(19)")
    a("s_barrier")
    issueKV_loader(SK, vKoff, 0, 0)
    a("s_waitcnt vmcnt(16)")
    a("s_barrier")
    issueKV_loader(SV, vVoff, 1, 0)
    a("s_waitcnt vmcnt(16)")
    a("s_barrier")
    issueKV_loader(SK, vKoff, 2, 1)
    a("s_barrier")
    issueKV_loader(SV, vVoff, 3, 1)
    a("s_waitcnt vmcnt(8)")

    a.label("K1_JOIN")
    a("s_waitcnt lgkmcnt(0)")
    a(f"s_lshl_b32 s{sA}, s{sTok+1}, 7")
    a(f"s_xor_b32 s{sTok}, s{sTok}, s{sA}")
    a(f"s_or_b32 s{sTok}, s{sTok}, 1")
    if TOUCH:
        a(f"s_cmp_ge_u32 s{sW}, 4")
        a("s_cbranch_scc1 K1_NOTCH")
        a(f"v_lshlrev_b32 v{vKoff}, 7, v0")
        a.label("K1_NOTCH")
    a("s_barrier")
    for ks in range(8):
        a(f"v_xor_b32 v{vMx}, {ks << 5:#x}, v{vTb}")
        a(f"ds_read_b128 {vr(Q+4*ks,4)}, v{vMx}")
    for ks in range(8):
        kread(ks)
    a.label("K1_JOIN2")
    for r in range(0, 64, 2):
        a(f"v_mov_b64 {vr(O+r,2)}, 0")
    a(f"v_mov_b32 v{vL}, 0")
    a(f"s_mov_b32 s{sDk}, 65536")
    a(f"s_cmp_eq_u32 s{sQt}, {1 if OPM == 1 else 2}")
    a(f"s_cselect_b32 s{sTl}, {opt.get('wotstep', 6)}, 99")
    a("s_waitcnt lgkmcnt(0)")
    P.stamp(4)
    a(f"s_cmp_ge_u32 s{sW}, 4")
    a("s_cbranch_scc1 K1_B_BAR")
    a("s_branch K1_A_BAR")

    def rot(sreg):
        a(f"s_add_u32 s{sreg}, s{sreg}, 65536")
        a(f"s_cmp_ge_u32 s{sreg}, 163840")
        a(f"s_cselect_b32 s{sA}, 163840, 0")
        a(f"s_sub_u32 s{sreg}, s{sreg}, s{sA}")

    LIGHT = opt.get("light", 0)
    def ls(k):
        if LIGHT: a(f"s_memtime s[{84+2*k}:{85+2*k}]")
    def step_body(v):
        isB = (v == "B")
        dodma = isB and not (AB & 1)
        def dma(kind, j):
            if not dodma: return
            if kind == 'V':
                a(f"s_add_u32 m0, s{sVn}, s{sL[j]}")
                a(f"s_add_u32 s{sA}, s{sGstep}, s{sG[j]}")
                a(f"buffer_load_dwordx4 v{vVoff}, s[{SV}:{SV+3}], s{sA} offen{NTD} lds")
            else:
                a(f"s_add_u32 m0, s{sKn}, s{sL[j]}")
                a(f"s_add_u32 s{sA}, s{sGstep}, s{sG[j]}")
                a(f"buffer_load_dwordx4 v{vKoff}, s[{SK}:{SK+3}], s{sA} offen{NTD} lds")
        def vreads(kk):
            if AB & 2:
                for _ in range(8): a("s_nop 0")
                return
            for dt in range(4):
                for e in range(2):
                    a(f"ds_read_b64_tr_b16 {vr(F+(kk*4+dt)*4+2*e,2)}, v{VA} offset:{kk*4096+e*2048+dt*256}")
        a.label(f"K1_{v}_TOP")
        a(f"s_waitcnt {'vmcnt(4) ' if isB else ''}lgkmcnt(0)")
        a.label(f"K1_{v}_BAR")
        if PRIO: a(f"s_setprio {PQ}")
        if v == "B" or True: ls(0)
        a("s_barrier")
        ls(1)
        def vread1(n):
            if AB & 2: return
            kk, dt = n >> 2, n & 3
            for e in range(2):
                a(f"ds_read_b64_tr_b16 {vr(F+n*4+2*e,2)}, v{VA} offset:{kk*4096+e*2048+dt*256}")
        for ks in range(8):
            cin = vr(NM,16) if ks == 0 else vr(S,16)
            a(f"{MF32} {vr(S,16)}, {vr(F+4*ks,4)}, {vr(Q+4*ks,4)}, {cin}")
            if ks < 7: vread1(ks)
            if ks == 0:
                a(f"v_add_u32 v{KA0}, s{sDk}, v{KA0}")
                a(f"v_add_u32 v{KA1}, s{sDk}, v{KA1}")
                a(f"s_mov_b32 s{sDk}, s{sKc}")
            if ks == 2:
                rot(sKc)
            if ks == 4:
                a(f"s_sub_u32 s{sDk}, s{sKc}, s{sDk}")
                a(f"s_mov_b32 s{sDv}, s{sVc}")
                a(f"s_add_u32 s{sVc}, s{sVc}, 65536")
                a(f"s_cmp_ge_u32 s{sVc}, 163840")
            if ks == 4:
                a(f"s_cselect_b32 s{sA}, 163840, 0")
                a(f"s_sub_u32 s{sVc}, s{sVc}, s{sA}")
            if ks in (1, 3, 5, 6):
                dma('K', {1: 0, 3: 1, 5: 2, 6: 3}[ks])
        ls(2)
        if PRIO and PS != PQ: a(f"s_setprio {PS}")
        vread1(7)
        a(f"s_sub_u32 s{sDv}, s{sVc}, s{sDv}")
        a(f"v_add_u32 v{VA}, s{sDv}, v{VA}")
        if not isB and WOT:
            a(f"s_cmp_eq_u32 s{sStep}, s{sTl}")
            a("s_cbranch_scc1 K1_A_TOUCH")
            a.label("K1_A_TOUCHR")
            a("s_nop 4")
        else:
            a("s_nop 6")
        a(f"s_cmp_lt_u32 s{sStep}, s{sSafe}")
        a(f"s_cbranch_scc1 K1_{v}_MAX")
        a.label(f"K1_{v}_CONT")
        ls(3)
        for k in range(8):
            if not AB & 8:
                a(f"v_exp_f32 v{S+2*k}, v{S+2*k}")
                a(f"v_exp_f32 v{S+2*k+1}, v{S+2*k+1}")
            if k >= 1 and not AB & 8:
                kk = k - 1
                a(f"v_add_f32 v{vL}, v{vL}, v{S+2*kk}")
                a(f"v_add_f32 v{vL}, v{vL}, v{S+2*kk+1}")
                a(f"v_cvt_pk_bf16_f32 v{S+kk}, v{S+2*kk}, v{S+2*kk+1}")
        a(f"v_add_f32 v{vL}, v{vL}, v{S+14}")
        a(f"v_add_f32 v{vL}, v{vL}, v{S+15}")
        a(f"v_cvt_pk_bf16_f32 v{S+7}, v{S+14}, v{S+15}")
        ls(4)
        if PRIO and PP != PS: a(f"s_setprio {PP}")
        if not LIGHT: a("s_waitcnt lgkmcnt(0)")
        else: a("s_waitcnt lgkmcnt(1)")
        for kk in range(2):
            for dt in range(4):
                n = kk*4 + dt
                a(f"{MF32} {vr(O+16*dt,16)}, {vr(F+(kk*4+dt)*4,4)}, {vr(S+4*kk,4)}, {vr(O+16*dt,16)}")
                if not AB & 4: kread(n)
                if n in (0, 1, 2, 3):
                    dma('V', n)
                if n == 4:
                    a(f"s_add_u32 s{sStep}, s{sStep}, 1")
                if n == 2 and isB:
                    pass
                if n == 4 and isB:
                    rot(sVn)
                if n == 5 and isB:
                    rot(sKn)
                if n == 6 and isB:
                    a(f"s_add_u32 s{sGstep}, s{sGstep}, 8192")
                    if NS2 != 8: a(f"s_and_b32 s{sGstep}, s{sGstep}, 0xffff")
        ls(5)
        if LIGHT:
            a(f"s_cmp_lg_u32 s{sStep}, 41")
            a(f"s_cbranch_scc1 K1_{v}_NOCOPY")
            a("s_waitcnt lgkmcnt(0)")
            for k in range(6):
                a(f"s_mov_b32 s{96+k}, s{84+2*k}")
            a.label(f"K1_{v}_NOCOPY")
        if isB:
            a(f"s_cmp_lt_u32 s{sStep}, {NS2-2}")
            a("s_cbranch_scc1 K1_B_TOP")
            a("s_waitcnt vmcnt(0)")
            a("s_branch K1_A_TOP")
        else:
            a(f"s_cmp_lt_u32 s{sStep}, {NS2}")
            a("s_cbranch_scc1 K1_A_TOP")
            a("s_branch K1_P2_END")
        a.label(f"K1_{v}_MAX")
        a(f"v_max3_f32 v{vMx}, v{S+0}, v{S+1}, v{S+2}")
        a(f"v_max3_f32 v{vTb}, v{S+3}, v{S+4}, v{S+5}")
        a(f"v_max3_f32 v{vMx}, v{vMx}, v{S+6}, v{S+7}")
        a(f"v_max3_f32 v{vTb}, v{vTb}, v{S+8}, v{S+9}")
        a(f"v_max3_f32 v{vMx}, v{vMx}, v{S+10}, v{S+11}")
        a(f"v_max3_f32 v{vTb}, v{vTb}, v{S+12}, v{S+13}")
        a(f"v_max3_f32 v{vMx}, v{vMx}, v{S+14}, v{S+15}")
        a(f"v_max_f32 v{vMx}, v{vMx}, v{vTb}")
        a(f"v_cmp_lt_f32 vcc, s{sThr}, v{vMx}")
        a(f"s_cbranch_vccz K1_{v}_CONT")
        a.label(f"K1_{v}_RARE")
        a(f"v_mov_b32 v{vTb}, v{vMx}")
        a("s_nop 1")
        a(f"v_permlane32_swap_b32 v{vMx}, v{vTb}")
        a(f"v_max_f32 v{vMx}, v{vMx}, v{vTb}")
        a(f"v_max_f32 v{vMx}, s{sFloor}, v{vMx}")
        a(f"v_max_f32 v{vTb}, 0, v{vMx}")
        a(f"v_sub_f32 v{vTb}, 0, v{vTb}")
        a(f"v_exp_f32 v{vTb}, v{vTb}")
        a(f"s_mov_b32 s{sThr}, {f2u(8.0):#x}")
        a(f"s_mov_b32 s{sFloor}, 0")
        for r in range(16):
            a(f"v_sub_f32 v{S+r}, v{S+r}, v{vMx}")
        a(f"v_sub_f32 v{NM}, v{NM}, v{vMx}")
        for r in range(1, 16):
            a(f"v_mov_b32 v{NM+r}, v{NM}")
        a(f"s_cmp_eq_u32 s{sStep}, 0")
        a(f"s_cbranch_scc1 K1_{v}_CONT")
        a(f"v_mul_f32 v{vL}, v{vL}, v{vTb}")
        for r in range(64):
            a(f"v_mul_f32 v{O+r}, v{O+r}, v{vTb}")
        a(f"s_branch K1_{v}_CONT")

    step_body("B")
    step_body("A")
    if WOT:
        a.label("K1_A_TOUCH")
        a(f"s_cmp_eq_u32 s{sBr}, 0")
        a(f"s_cselect_b64 s[{STCH}:{STCH+1}], s[{SWOP}:{SWOP+1}], s[50:51]")
        a(f"s_mov_b32 s{STCH+2}, 8388608")
        a(f"v_mbcnt_lo_u32_b32 v{vKoff}, -1, 0")
        a(f"v_mbcnt_hi_u32_b32 v{vKoff}, -1, v{vKoff}")
        if OPM == 1:
            a(f"v_and_b32 v{vVoff}, 3, v{vKoff}")
            a(f"v_lshrrev_b32 v{vKoff}, 2, v{vKoff}")
            a(f"v_lshlrev_b32 v{vKoff}, 11, v{vKoff}")
            a(f"v_lshl_add_u32 v{vKoff}, v{vVoff}, 7, v{vKoff}")
            a(f"s_lshr_b32 s{sA}, s2, 3")
            a(f"s_lshl_b32 s{sA}, s{sA}, 2")
            a(f"s_add_u32 s{sA}, s{sA}, s{sKq}")
            a(f"s_lshl_b32 s{sA}, s{sA}, 16")
            a(f"s_lshl_b32 s{sB}, s{sKvh}, 9")
            a(f"s_add_u32 s{sA}, s{sA}, s{sB}")
            a(f"buffer_load_dword v{vVoff}, v{vKoff}, s[{STCH}:{STCH+3}], s{sA} offen{NTW}")
            a(f"s_add_u32 s{sA}, s{sA}, 32768")
            a(f"buffer_load_dword v{vVoff}, v{vKoff}, s[{STCH}:{STCH+3}], s{sA} offen{NTW}")
        else:
            a(f"v_lshlrev_b32 v{vKoff}, 7, v{vKoff}")
            a(f"s_lshr_b32 s{sA}, s2, 3")
            a(f"s_lshl_b32 s{sA}, s{sA}, 2")
            a(f"s_add_u32 s{sA}, s{sA}, s{sKq}")
            a(f"s_lshl_b32 s{sA}, s{sA}, 14")
            a(f"s_lshl_b32 s{sB}, s{sKvh}, 21")
            a(f"s_add_u32 s{sA}, s{sA}, s{sB}")
            a(f"buffer_load_dword v{vVoff}, v{vKoff}, s[{STCH}:{STCH+3}], s{sA} offen{NTW}")
            a(f"s_add_u32 s{sA}, s{sA}, 8192")
            a(f"buffer_load_dword v{vVoff}, v{vKoff}, s[{STCH}:{STCH+3}], s{sA} offen{NTW}")
        a("s_branch K1_A_TOUCHR")

    a.label("K1_REDO")
    a("s_waitcnt vmcnt(0) lgkmcnt(0)")
    a(f"v_mbcnt_lo_u32_b32 v0, -1, 0")
    a(f"v_mbcnt_hi_u32_b32 v0, -1, v0")
    a("s_barrier")
    patterns()
    _t = (8, 9, 10, 11, 12)
    setup2()
    a(f"s_mov_b32 s{sSafe}, 8")
    a(f"s_cmp_lt_u32 s{sW}, 8")
    a("s_cbranch_scc1 K1_REDO2")
    issueKV_loader(SK, vKoff, 0, 0, "r0")
    issueKV_loader(SV, vVoff, 1, 0, "r1")
    issueKV_loader(SK, vKoff, 2, 1, "r2")
    issueKV_loader(SV, vVoff, 3, 1, "r3")
    a("s_waitcnt vmcnt(8)")
    a.label("K1_REDO2")
    a("s_barrier")
    for ks in range(8):
        kread(ks)
    a("s_branch K1_JOIN2")

    a.label("K1_P2_END")
    P.stamp(5)
    FUSED = opt.get("fused", 1)
    SC1 = " sc1" if FUSED else ""
    t0, t1, t2, t3, t4 = NM+2, NM+3, NM+4, NM+5, NM+6
    vLane = NM+7
    STAT, EX, STG = 32768, 36864, 114688
    if FUSED:
        a("s_load_dwordx2 s[48:49], s[0:1], 80")
    a(f"v_mbcnt_lo_u32_b32 v{vLane}, -1, 0")
    a(f"v_mbcnt_hi_u32_b32 v{vLane}, -1, v{vLane}")
    a(f"v_mov_b32 v{t1}, v{vL}")
    ST = NM + 8
    a(f"v_sub_f32 v{ST}, 0, v{NM}")
    a(f"v_and_b32 v{t0}, 31, v{vLane}")
    a(f"v_permlane32_swap_b32 v{vL}, v{t1}")
    a(f"v_add_f32 v{ST+1}, v{vL}, v{t1}")
    BADF = STAT + 3072
    a(f"v_cmp_ngt_f32 vcc, {f2u(2.0**20):#x}, v{ST+1}")
    a(f"s_lshl_b32 s{sA}, s{sW}, 2")
    a(f"s_add_u32 s{sA}, s{sA}, {BADF}")
    a(f"v_mov_b32 v{t3}, s{sA}")
    a(f"s_cmp_lg_u64 vcc, 0")
    a(f"s_cselect_b32 s{sA}, 1, 0")
    a(f"s_cmp_eq_u32 s{sSafe}, 1")
    a(f"s_cselect_b32 s{sA}, s{sA}, 0")
    a(f"v_mov_b32 v{t4}, s{sA}")
    a(f"ds_write_b32 v{t3}, v{t4}")
    a(f"v_lshlrev_b32 v{t0}, 3, v{t0}")
    a(f"s_lshl_b32 s{sA}, s{sQt}, 10")
    a(f"s_add_u32 s{sA}, s{sA}, {STAT}")
    a(f"v_add_u32 v{t0}, s{sA}, v{t0}")
    a(f"s_lshl_b32 s{sB}, s{sKq}, 8")
    a(f"v_add_u32 v{t1}, s{sB}, v{t0}")
    R = S
    a(f"v_lshlrev_b32 v{t2}, 4, v{vLane}")
    a(f"s_mul_i32 s{sB}, s{sQt}, {4*3*2048}")
    a(f"s_add_u32 s{sB}, s{sB}, {EX}")
    a(f"ds_write_b64 v{t1}, {vr(ST,2)}")
    a("s_waitcnt lgkmcnt(0)")
    for dt in range(4):
        a(f"s_cmp_eq_u32 s{sKq}, {dt}")
        a(f"s_cbranch_scc1 K1_OWN{dt}")
        a(f"s_sub_u32 s{sA}, s{sKq}, {dt+1}")
        a(f"s_and_b32 s{sA}, s{sA}, 3")
        a(f"s_lshl_b32 s{sA}, s{sA}, 11")
        a(f"s_add_u32 s{sA}, s{sA}, s{sB}")
        a(f"v_add_u32 v{t1}, s{sA}, v{t2}")
        pk = F + 8*dt
        for j in range(8):
            a(f"v_cvt_pk_bf16_f32 v{pk+j}, v{O+16*dt+2*j}, v{O+16*dt+2*j+1}")
        for g2 in range(2):
            a(f"ds_write_b128 v{t1}, {vr(pk+4*g2,4)} offset:{dt*3*2048 + g2*1024}")
        a(f"s_branch K1_NXT{dt}")
        a.label(f"K1_OWN{dt}")
        for r in range(0, 16, 2):
            a(f"v_mov_b64 {vr(R+r,2)}, {vr(O+16*dt+r,2)}")
        a.label(f"K1_NXT{dt}")
    a("s_waitcnt lgkmcnt(0)")
    a("s_barrier")
    a(f"v_mov_b32 v{t1}, {BADF}")
    for j in range(3):
        a(f"ds_read_b128 {vr(F+4*j,4)}, v{t1} offset:{16*j}")
    for rk in range(3):
        a(f"s_add_u32 s{sA}, s{sKq}, {rk+1}")
        a(f"s_and_b32 s{sA}, s{sA}, 3")
        a(f"s_lshl_b32 s{sA}, s{sA}, 8")
        a(f"v_add_u32 v{t1}, s{sA}, v{t0}")
        a(f"ds_read_b64 {vr(ST+2+2*rk,2)}, v{t1}")
    a(f"s_mul_i32 s{sA}, s{sKq}, {3*2048}")
    a(f"s_add_u32 s{sA}, s{sA}, s{sB}")
    a(f"v_add_u32 v{t1}, s{sA}, v{t2}")
    TT = O
    for rk in range(3):
        for g2 in range(2):
            a(f"ds_read_b128 {vr(TT+8*rk+4*g2,4)}, v{t1} offset:{rk*2048+g2*1024}")
    a(f"v_and_b32 v{t2}, 15, v{vLane}")
    a(f"s_lshl_b32 s{sA}, s{sKq}, 2")
    a(f"v_xor_b32 v{t2}, s{sA}, v{t2}")
    a(f"v_lshlrev_b32 v{t2}, 4, v{t2}")
    a(f"v_and_b32 v{t0}, 31, v{vLane}")
    a(f"v_lshl_add_u32 v{t2}, v{t0}, 8, v{t2}")
    a(f"v_lshrrev_b32 v{t0}, 5, v{vLane}")
    a(f"v_lshl_add_u32 v{t2}, v{t0}, 3, v{t2}")
    a(f"s_lshl_b32 s{sA}, s{sQt}, 13")
    a(f"s_add_u32 s{sA}, s{sA}, {STG}")
    a(f"v_add_u32 v{t2}, s{sA}, v{t2}")
    a("s_waitcnt lgkmcnt(6)")
    for j in range(0, 12, 3):
        a(f"v_or3_b32 v{F+j}, v{F+j}, v{F+j+1}, v{F+j+2}")
    a(f"v_or3_b32 v{F}, v{F}, v{F+3}, v{F+6}")
    a(f"v_or_b32 v{F}, v{F}, v{F+9}")
    a(f"v_cmp_ne_u32 vcc, 0, v{F}")
    a("s_cbranch_vccnz K1_REDO")
    mf = t3
    a(f"v_max3_f32 v{mf}, v{ST}, v{ST+2}, v{ST+4}")
    a(f"v_max_f32 v{mf}, v{mf}, v{ST+6}")
    for j in range(4):
        a(f"v_sub_f32 v{ST+2*j}, v{ST+2*j}, v{mf}")
    for j in range(4):
        a(f"v_exp_f32 v{ST+2*j}, v{ST+2*j}")
    a("s_nop 0")
    a(f"v_mul_f32 v{t4}, v{ST}, v{ST+1}")
    for j in range(1, 4):
        a(f"v_fma_f32 v{t4}, v{ST+2*j}, v{ST+2*j+1}, v{t4}")
    a(f"v_rcp_f32 v{t4}, v{t4}")
    a("s_nop 0")
    for j in range(4):
        a(f"v_mul_f32 v{ST+2*j}, v{ST+2*j}, v{t4}")
    for r in range(0, 16, 2):
        a(f"v_pk_mul_f32 {vr(R+r,2)}, {vr(R+r,2)}, {vr(ST,2)} op_sel_hi:[1,0]")
    U = O+32
    for rk in range(3):
        a(f"s_waitcnt lgkmcnt({4-2*rk})")
        for j in range(8):
            p = TT + 8*rk + j
            u = U + 2*(j & 3)
            a(f"v_lshlrev_b32 v{u}, 16, v{p}")
            a(f"v_and_b32 v{u+1}, 0xffff0000, v{p}")
            a(f"v_pk_fma_f32 {vr(R+2*j,2)}, {vr(u,2)}, {vr(ST+2+2*rk,2)}, {vr(R+2*j,2)} op_sel_hi:[1,0,1]")
    PK = F
    for g in range(4):
        a(f"v_cvt_pk_bf16_f32 v{PK+2*g}, v{R+4*g}, v{R+4*g+1}")
        a(f"v_cvt_pk_bf16_f32 v{PK+2*g+1}, v{R+4*g+2}, v{R+4*g+3}")
        a(f"v_xor_b32 v{t0}, {g << 4}, v{t2}")
        a(f"ds_write_b64 v{t0}, {vr(PK+2*g,2)}")
    if not FUSED:
        a(f"v_lshrrev_b32 v{t0}, 4, v{vLane}")
        a(f"s_lshl_b32 s{sA}, s{sW}, 3")
        a(f"v_add_u32 v{t0}, s{sA}, v{t0}")
        a(f"v_and_b32 v{t1}, 15, v{vLane}")
        a(f"v_lshlrev_b32 v{t3}, 8, v{t0}")
        a(f"v_lshl_add_u32 v{t3}, v{t1}, 4, v{t3}")
        a(f"v_add_u32 v{t3}, {STG}, v{t3}")
        a(f"v_and_b32 v{t4}, 15, v{t0}")
        a(f"v_xor_b32 v{t1}, v{t1}, v{t4}")
        a(f"s_cmp_ge_u32 s{sW}, 6")
        a(f"s_cselect_b32 s{sA}, {256 - 48*8192}, 0")
        a(f"v_lshlrev_b32 v{t0}, 13, v{t0}")
        a(f"v_add_u32 v{t0}, s{sA}, v{t0}")
        a(f"v_lshl_add_u32 v{t4}, v{t1}, 4, v{t0}")
        a(f"v_xor_b32 v{t1}, 4, v{t1}")
        a(f"v_lshl_add_u32 v{t0}, v{t1}, 4, v{t0}")
        a(f"v_add_u32 v{t0}, {4*8192}, v{t0}")
        a("s_waitcnt lgkmcnt(0)")
        a("s_barrier")
        a(f"ds_read_b128 {vr(PK,4)}, v{t3}")
        a(f"ds_read_b128 {vr(PK+4,4)}, v{t3} offset:1024")
        a("s_waitcnt lgkmcnt(1)")
        a(f"buffer_store_dwordx4 {vr(PK,4)}, v{t4}, s[{SO}:{SO+3}], 0 offen")
        a("s_waitcnt lgkmcnt(0)")
        a(f"buffer_store_dwordx4 {vr(PK+4,4)}, v{t0}, s[{SO}:{SO+3}], 0 offen")
        P.stamp(6)
        if PROF: a("s_waitcnt vmcnt(0)")
        P.stamp(7)
        P.stamp(8, real=True)
        if LIGHT:
            for k in range(6):
                a(f"s_mov_b32 s{84+2+k}, s{96+k}")
        P.dump(52, sW, 64 << 20, 12)
        if opt.get("padto", 0):
            a.label("K1_PAD")
            a("s_memrealtime s[82:83]")
            a("s_waitcnt lgkmcnt(0)")
            a("s_sub_u32 s82, s82, s100")
            a(f"s_cmp_lt_u32 s82, {opt['padto']}")
            a("s_cbranch_scc1 K1_PAD")
        a.label("K1_END")
        a("s_endpgm")
        return NV
    a(f"v_mov_b32 v0, v{vLane}")
    if OPM == 1:
        a(f"s_cmp_ge_u32 s{sW}, 8")
        a(f"s_cselect_b32 s{sA}, 4, 0")
        a(f"s_sub_u32 s{sE}, s{sW}, s{sA}")
        a(f"s_mul_i32 s{sE}, s{sE}, 12")
    else:
        a(f"s_mul_i32 s{sE}, s{sW}, 12")
    a(f"v_lshrrev_b32 v{t0}, 4, v0")
    a(f"v_and_b32 v{t1}, 15, v0")
    a(f"v_lshlrev_b32 v{t3}, 8, v{t0}")
    a(f"v_lshl_add_u32 v{t3}, v{t1}, 4, v{t3}")
    a(f"s_lshl_b32 s{sA}, s{sE}, 8")
    a(f"s_add_u32 s{sA}, s{sA}, {STG}")
    a(f"v_add_u32 v{t3}, s{sA}, v{t3}")
    a(f"v_xor_b32 v{t1}, v{t1}, v{t0}")
    a(f"v_lshlrev_b32 v{t0}, 13, v{t0}")
    a("s_waitcnt lgkmcnt(0)")
    a("s_barrier")
    if OPM == 1:
        a(f"s_cmp_lt_u32 s{sQt}, 1")
        a("s_cbranch_scc1 K1_STORE")
        a(f"s_cmp_lt_u32 s{sQt}, 2")
        a("s_cbranch_scc1 OP_LOADER0")
    else:
        a(f"s_cmp_ge_u32 s{sW}, 8")
        a("s_cbranch_scc1 O3_LOADER")
    a.label("K1_STORE")
    for j in range(3):
        a(f"ds_read_b128 {vr(PK+4*j,4)}, v{t3} offset:{j*1024}")
    a(f"s_cmp_ge_u32 s{sE}, 48")
    a(f"s_cselect_b32 s{sB}, {256 - 48*8192}, 0")
    for j in range(3):
        a(f"s_add_u32 s{sA}, s{sE}, {4*j}")
        a(f"s_and_b32 s{sD}, s{sA}, 12")
        a(f"v_xor_b32 v{t4}, s{sD}, v{t1}")
        a(f"v_lshl_add_u32 v{t4}, v{t4}, 4, v{t0}")
        a(f"s_lshl_b32 s{sA}, s{sA}, 13")
        a(f"s_add_u32 s{sA}, s{sA}, s{sB}")
        a(f"s_waitcnt lgkmcnt({2-j})")
        a(f"buffer_store_dwordx4 {vr(PK+4*j,4)}, v{t4}, s[{SO}:{SO+3}], s{sA} offen sc1")
    P.stamp(6)
    a("s_waitcnt vmcnt(0)")
    a("s_barrier")
    P.stamp(7)
    if OPM == 1:
        outproj(a, opt, P, fused=True)
    else:
        outproj3(a, opt, P)
    a.label("K1_END")
    a("s_endpgm")
    return NV

def kernel2(a, opt):
    a.label("k2_kernel")
    a("s_cmp_ge_u32 s2, 256")
    a("s_cbranch_scc1 K2_END")
    P = Prof(a, 64, 62, 40)
    P.init(12)
    P.stamp(0, real=True)
    P.stamp(1)
    a("s_load_dwordx2 s[36:37], s[0:1], 32")
    a("s_load_dwordx2 s[50:51], s[0:1], 72")
    a("s_load_dwordx2 s[48:49], s[0:1], 80")
    a("s_load_dwordx2 s[52:53], s[0:1], 96")
    a("v_lshrrev_b32 v1, 6, v0")
    a("v_and_b32 v0, 63, v0")
    a("v_readfirstlane_b32 s4, v1")
    a("s_and_b32 s5, s2, 3")
    a("s_bfe_u32 s6, s2, 0x10002")
    a("s_lshr_b32 s7, s2, 5")
    a("s_bfe_u32 s3, s2, 0x20003")
    a("s_waitcnt lgkmcnt(0)")
    nv = outproj(a, opt, P, fused=False)
    a.label("K2_END")
    a("s_endpgm")
    return nv

def outproj3(a, opt, P):
    sW = 4
    SX, SWO, SO, SFL, SPX = 8, 12, 16, 28, 24
    sA, sB, sD, sLam = 20, 21, 22, 23
    sP, sSl, sSlX, sWg, sXg, sT = 32, 33, 34, 35, 38, 39
    NS, STG = 5, 28672
    PXOFF = 16 << 20
    t0, t1, t2, t3, t4 = 8, 9, 10, 11, 12
    WA, XA = 2, 14
    FBUF = [24, 64]
    ACC = 104
    RX = 24
    vWo, vXo, vPoll, vPa = 20, 21, 22, 23
    a(f"s_cmp_lg_u32 s{sW}, 0")
    a("s_cbranch_scc1 O3_NOFLAG")
    a(f"s_lshl_b32 s{sA}, s46, 2")
    a(f"s_add_u32 s{sA}, s{sA}, s45")
    a(f"v_mov_b32 v{t0}, s96")
    a(f"v_mov_b32 v{t1}, s{sA}")
    a("s_mov_b64 exec, 1")
    a(f"buffer_store_dword v{t0}, v{t1}, s[{SFL}:{SFL+3}], 0 offen sc1")
    a("s_mov_b64 exec, -1")
    a.label("O3_NOFLAG")
    a(f"v_bfe_u32 v{t0}, v0, 2, 2")
    a(f"v_lshrrev_b32 v{t1}, 4, v0")
    a(f"v_and_b32 v{t2}, 1, v{t1}")
    a(f"v_lshl_or_b32 v{t2}, v{t2}, 2, v{t0}")
    a(f"s_and_b32 s{sA}, s{sW}, 3")
    a(f"s_lshl_b32 s{sA}, s{sA}, 1")
    a(f"v_xor_b32 v{t2}, s{sA}, v{t2}")
    a(f"v_lshl_add_u32 v{t3}, v{t1}, 3, v{t0}")
    a(f"v_lshlrev_b32 v{t3}, 8, v{t3}")
    a(f"v_lshl_add_u32 v{t3}, v{t2}, 5, v{t3}")
    a(f"v_and_b32 v{t4}, 3, v0")
    a(f"v_lshl_add_u32 v{WA}, v{t4}, 3, v{t3}")
    a(f"v_xor_b32 v{WA+1}, 32, v{WA}")
    a(f"v_and_b32 v{t0}, 15, v0")
    a(f"v_lshrrev_b32 v{t2}, 1, v{t0}")
    a(f"v_xor_b32 v{t2}, v{t1}, v{t2}")
    a(f"v_lshlrev_b32 v{t2}, 4, v{t2}")
    a(f"v_lshl_add_u32 v{t2}, v{t0}, 7, v{t2}")
    a(f"s_lshr_b32 s{sA}, s{sW}, 2")
    a(f"s_mul_i32 s{sA}, s{sA}, 6144")
    a(f"s_add_u32 s{sA}, s{sA}, 16384")
    a(f"v_add_u32 v{XA}, s{sA}, v{t2}")
    a(f"v_xor_b32 v{XA+1}, 64, v{XA}")
    for r in range(0, 24, 2):
        a(f"v_mov_b64 {vr(ACC+r,2)}, 0")
    def read_list(buf):
        fb = FBUF[buf]
        L = []
        for ks in range(2):
            for tt in range(2):
                for e in range(2):
                    L.append(f"ds_read_b64_tr_b16 {vr(fb + (tt*2+ks)*4 + e*2, 2)}, v{WA+tt} offset:{ks*8192 + e*1024}")
            for rt in range(3):
                L.append(f"ds_read_b128 {vr(fb + 16 + (rt*2+ks)*4, 4)}, v{XA+ks} offset:{rt*2048}")
        return L
    def mfma_list(buf):
        fb = FBUF[buf]
        L = []
        for ks in range(2):
            for rt in range(3):
                for tt in range(2):
                    acc = ACC + (tt*3+rt)*4
                    L.append(f"{MF16} {vr(acc,4)}, {vr(fb+(tt*2+ks)*4,4)}, {vr(fb+16+(rt*2+ks)*4,4)}, {vr(acc,4)}")
        return L
    def reads(buf):
        for x in read_list(buf): a(x)
    def mfmas(buf):
        for x in mfma_list(buf): a(x)
    def both(rbuf, mbuf):
        R, M = read_list(rbuf), mfma_list(mbuf)
        for n in range(12):
            a(M[n])
            a(R[n])
            if n in (5, 11): a(R[12 + (n == 11)])
    def adv():
        a(f"s_add_u32 s{sA}, s{sSl}, {STG}")
        a(f"s_cmp_ge_u32 s{sA}, {NS*STG}")
        a(f"s_cselect_b32 s{sB}, {NS*STG}, 0")
        a(f"s_sub_u32 s{sA}, s{sA}, s{sB}")
        a(f"s_sub_u32 s{sD}, s{sA}, s{sSl}")
        a(f"s_mov_b32 s{sSl}, s{sA}")
        for v in (WA, WA+1, XA, XA+1):
            a(f"v_add_u32 v{v}, s{sD}, v{v}")
    a(f"s_mov_b32 s{sSl}, 0")
    a("s_barrier")
    a("s_barrier")
    P.stamp(9)
    reads(0); adv()
    a("s_waitcnt lgkmcnt(0)")
    a(f"s_mov_b32 s{sP}, 0")
    a.label("O3_C_LOOP")
    for half in range(2):
        a("s_barrier")
        both(1-half, half); adv()
        a("s_waitcnt lgkmcnt(0)")
        if half == 0:
            a(f"s_cmp_eq_u32 s{sP}, 7")
            a("s_cbranch_scc1 O3_C_DONE")
    a(f"s_add_u32 s{sP}, s{sP}, 1")
    a("s_branch O3_C_LOOP")
    a.label("O3_C_DONE")
    mfmas(1)
    P.stamp(10)
    a(f"s_sub_u32 s{sA}, s47, 16384")
    a(f"s_lshr_b32 s{sA}, s{sA}, 8")
    a(f"s_mul_i32 s{sA}, s{sA}, {16*12288}")
    a(f"s_add_u32 s{sA}, s{sA}, {PXOFF}")
    a(f"s_add_u32 s{SPX}, s52, s{sA}")
    a(f"s_addc_u32 s{SPX+1}, s53, 0")
    a(f"s_mov_b32 s{SPX+2}, {16*12288}")
    a(f"s_mov_b32 s{SPX+3}, 0x20000")
    a(f"v_lshlrev_b32 v{t0}, 4, v0")
    a(f"v_add_u32 v{t3}, 4096, v{t0}")
    a(f"s_and_b32 s{sD}, s{sW}, 3")
    a(f"s_lshr_b32 s{sB}, s{sW}, 2")
    a(f"s_mul_i32 s{sB}, s{sB}, 6144")
    a(f"s_cmp_eq_u32 s{sD}, s5")
    a("s_cbranch_scc1 O3_OWNER")
    a(f"s_lshl_b32 s{sA}, s{sD}, 2")
    a(f"s_add_u32 s{sA}, s{sA}, s5")
    a(f"s_mul_i32 s{sA}, s{sA}, 12288")
    a(f"s_add_u32 s{sA}, s{sA}, s{sB}")
    a("s_nop 4")
    for tile in range(6):
        a(f"buffer_store_dwordx4 {vr(ACC+4*tile,4)}, v{t0 if tile < 4 else t3}, s[{SPX}:{SPX+3}], s{sA} offen offset:{(tile & 3)*1024} sc1")
    a("s_waitcnt vmcnt(0)")
    a("s_barrier")
    a(f"s_cmp_lg_u32 s{sW}, 0")
    a("s_cbranch_scc1 O3_FIN")
    a.label("O3_FLAG2")
    a(f"s_lshl_b32 s{sA}, s5, 2")
    a(f"s_add_u32 s{sA}, s{sA}, s47")
    a(f"v_mov_b32 v{t1}, s96")
    a(f"v_mov_b32 v{t2}, s{sA}")
    a("s_mov_b64 exec, 1")
    a(f"buffer_store_dword v{t1}, v{t2}, s[{SFL}:{SFL+3}], 0 offen sc1")
    a("s_mov_b64 exec, -1")
    a(f"s_cmp_eq_u32 s5, 0")
    a("s_cbranch_scc1 O3_OWN2")
    a.label("O3_FIN")
    P.stamp(11)
    P.stamp(8, real=True)
    P.dump(52, sW, 64 << 20, 12)
    a("s_endpgm")
    a.label("O3_OWNER")
    a("s_barrier")
    a(f"s_cmp_eq_u32 s{sW}, 0")
    a("s_cbranch_scc1 O3_FLAG2")
    a.label("O3_OWN2")
    P.stamp(3)
    a(f"v_lshlrev_b32 v{t1}, 2, v0")
    a(f"v_add_u32 v{t1}, s47, v{t1}")
    a("s_mov_b64 exec, 15")
    a(f"s_mov_b32 s{sP}, 0")
    a.label("O3_POLL2")
    a(f"buffer_load_dword v{t2}, v{t1}, s[{SFL}:{SFL+3}], 0 offen sc1")
    a("s_waitcnt vmcnt(0)")
    a(f"v_cmp_eq_u32 vcc, s96, v{t2}")
    a("s_nop 1")
    a("s_cmp_eq_u32 vcc_lo, 15")
    a("s_cbranch_scc1 O3_POLL2_OK")
    a(f"s_sleep {opt.get('psleep', 2)}")
    a(f"s_add_u32 s{sP}, s{sP}, 1")
    a(f"s_cmp_lt_u32 s{sP}, 400000")
    a("s_cbranch_scc1 O3_POLL2")
    a.label("O3_POLL2_OK")
    a("s_mov_b64 exec, -1")
    P.stamp(4)
    if PROF: a(f"s_mov_b32 s{P.base+2}, s{sP}")
    for r in range(3):
        a(f"s_add_u32 s{sA}, s5, {r+1}")
        a(f"s_and_b32 s{sA}, s{sA}, 3")
        a(f"s_lshl_b32 s{sD}, s5, 2")
        a(f"s_add_u32 s{sA}, s{sA}, s{sD}")
        a(f"s_mul_i32 s{sA}, s{sA}, 12288")
        a(f"s_add_u32 s{sA}, s{sA}, s{sB}")
        for tile in range(6):
            a(f"buffer_load_dwordx4 {vr(RX+24*r+4*tile,4)}, v{t0 if tile < 4 else t3}, s[{SPX}:{SPX+3}], s{sA} offen offset:{(tile & 3)*1024} sc1")
    a(f"s_lshr_b32 s{sA}, s7, 1")
    a(f"s_mul_i32 s{sA}, s{sA}, 96")
    a(f"s_lshr_b32 s{sD}, s{sW}, 2")
    a(f"s_mul_i32 s{sD}, s{sD}, 48")
    a(f"s_add_u32 s{sA}, s{sA}, s{sD}")
    a(f"s_lshl_b32 s{sA}, s{sA}, 12")
    a(f"s_lshl_b32 s{sD}, s6, 11")
    a(f"s_add_u32 s{sA}, s{sA}, s{sD}")
    a(f"s_lshl_b32 s{sD}, s46, 8")
    a(f"s_add_u32 s{sA}, s{sA}, s{sD}")
    a(f"s_lshl_b32 s{sD}, s5, 6")
    a(f"s_add_u32 s{sA}, s{sA}, s{sD}")
    a(f"s_mov_b32 s{SO}, s48")
    a(f"s_mov_b32 s{SO+1}, s49")
    a(f"s_mov_b32 s{SO+2}, {8*48*2048*2}")
    a(f"s_mov_b32 s{SO+3}, 0x20000")
    a(f"v_and_b32 v{t1}, 15, v0")
    a(f"v_lshrrev_b32 v{t2}, 4, v0")
    a(f"v_lshlrev_b32 v{t1}, 12, v{t1}")
    a(f"v_lshl_add_u32 v{t1}, v{t2}, 3, v{t1}")
    for r in range(3):
        a(f"s_waitcnt vmcnt({12-6*r})")
        for k in range(24):
            a(f"v_add_f32 v{ACC+k}, v{ACC+k}, v{RX+24*r+k}")
    P.stamp(5)
    for tt in range(2):
        for rt in range(3):
            acc = ACC + (tt*3+rt)*4
            a(f"v_cvt_pk_bf16_f32 v{acc}, v{acc}, v{acc+1}")
            a(f"v_cvt_pk_bf16_f32 v{acc+1}, v{acc+2}, v{acc+3}")
            a(f"s_add_u32 s{sD}, s{sA}, {rt*16*4096}")
            a(f"buffer_store_dwordx2 {vr(acc,2)}, v{t1}, s[{SO}:{SO+3}], s{sD} offen offset:{tt*32}")
    P.stamp(11)
    P.stamp(8, real=True)
    P.dump(52, sW, 64 << 20, 12)
    a("s_endpgm")

    a.label("O3_LOADER")
    a("s_cmp_eq_u32 s6, 0")
    a(f"s_cselect_b64 s[{SWO}:{SWO+1}], s[36:37], s[50:51]")
    a(f"s_lshl_b32 s{sA}, s5, 21")
    a(f"s_lshl_b32 s{sB}, s46, 8")
    a(f"s_add_u32 s{sA}, s{sA}, s{sB}")
    a(f"s_add_u32 s{SWO}, s{SWO}, s{sA}")
    a(f"s_addc_u32 s{SWO+1}, s{SWO+1}, 0")
    a(f"s_sub_u32 s{SWO+2}, 2097152, s{sB}")
    a(f"s_mov_b32 s{SWO+3}, 0x20000")
    a(f"s_lshr_b32 s{sA}, s7, 1")
    a(f"s_mul_i32 s{sA}, s{sA}, 96")
    a(f"s_mul_i32 s{sB}, s6, 384")
    a(f"s_add_u32 s{sA}, s{sA}, s{sB}")
    a(f"s_lshl_b32 s{sA}, s{sA}, 13")
    a(f"s_lshl_b32 s{sB}, s5, 11")
    a(f"s_add_u32 s{sA}, s{sA}, s{sB}")
    a(f"s_add_u32 s{SX}, s52, s{sA}")
    a(f"s_addc_u32 s{SX+1}, s53, 0")
    a(f"s_sub_u32 s{SX+2}, {96*8192}, s{sB}")
    a(f"s_mov_b32 s{SX+3}, 0x20000")
    a(f"s_sub_u32 s{sLam}, s{sW}, 8")
    a(f"v_lshrrev_b32 v{t0}, 4, v0")
    a(f"v_and_b32 v{t1}, 15, v0")
    a(f"s_and_b32 s{sA}, s{sLam}, 1")
    a(f"s_lshl_b32 s{sB}, s{sA}, 2")
    a(f"v_or_b32 v{t2}, s{sB}, v{t0}")
    a(f"v_lshlrev_b32 v{t2}, 1, v{t2}")
    a(f"v_xor_b32 v{t2}, v{t1}, v{t2}")
    a(f"v_lshlrev_b32 v{t2}, 4, v{t2}")
    a(f"v_lshl_add_u32 v{vWo}, v{t0}, 11, v{t2}")
    a(f"s_lshl_b32 s{sA}, s{sA}, 1")
    a(f"s_lshr_b32 s{sB}, s{sLam}, 1")
    a(f"s_lshl_b32 s{sB}, s{sB}, 2")
    a(f"s_add_u32 s{sA}, s{sA}, s{sB}")
    a(f"s_lshl_b32 s{sB}, s{sA}, 13")
    a(f"v_add_u32 v{vWo}, s{sB}, v{vWo}")
    a(f"s_lshl_b32 s{sSl}, s{sA}, 10")
    a(f"s_add_u32 s{sD}, s{sSl}, {NS*STG}")
    a(f"v_lshrrev_b32 v{t1}, 3, v0")
    a(f"s_lshl_b32 s{sA}, s{sLam}, 3")
    a(f"v_add_u32 v{t1}, s{sA}, v{t1}")
    a(f"s_and_b32 s{sA}, s{sLam}, 1")
    a(f"s_lshl_b32 s{sA}, s{sA}, 2")
    a(f"v_add_u32 v{t0}, s{sA}, v{t0}")
    a(f"v_and_b32 v{t2}, 7, v0")
    a(f"v_xor_b32 v{t2}, v{t2}, v{t0}")
    a(f"v_lshlrev_b32 v{t2}, 4, v{t2}")
    a(f"v_lshl_add_u32 v{vXo}, v{t1}, 13, v{t2}")
    a(f"s_lshl_b32 s{sSlX}, s{sLam}, 10")
    a(f"s_add_u32 s40, s{sSlX}, {NS*STG}")
    a(f"s_lshl_b32 s{sWg}, s3, 19")
    a(f"s_lshl_b32 s{sXg}, s3, 9")
    def issueW():
        for j in range(4):
            dm = (j & 1) + 8*(j >> 1)
            a(f"s_add_u32 m0, s{sSl}, {dm*1024}")
            a(f"s_add_u32 s{sA}, s{sWg}, {dm*8192}")
            if not opt.get("o3ab", 0) & 1: a(f"buffer_load_dwordx4 v{vWo}, s[{SWO}:{SWO+3}], s{sA} offen lds")
        a(f"s_add_u32 s{sSl}, s{sSl}, {STG}")
        a(f"s_cmp_ge_u32 s{sSl}, s{sD}")
        a(f"s_cselect_b32 s{sB}, {NS*STG}, 0")
        a(f"s_sub_u32 s{sSl}, s{sSl}, s{sB}")
        a(f"s_add_u32 s{sWg}, s{sWg}, 131072")
        a(f"s_and_b32 s{sWg}, s{sWg}, 0x1fffff")
    def issueX():
        for j in range(3):
            a(f"s_add_u32 m0, s{sSlX}, {16384 + j*4096}")
            a(f"s_add_u32 s{sA}, s{sXg}, {j*262144}")
            if not opt.get("o3ab", 0) & 2: a(f"buffer_load_dwordx4 v{vXo}, s[{SX}:{SX+3}], s{sA} offen{'' if opt.get('o3ab', 0) & 4 else ' sc1'} lds")
        a(f"s_add_u32 s{sSlX}, s{sSlX}, {STG}")
        a(f"s_cmp_ge_u32 s{sSlX}, s40")
        a(f"s_cselect_b32 s{sB}, {NS*STG}, 0")
        a(f"s_sub_u32 s{sSlX}, s{sSlX}, s{sB}")
        a(f"s_add_u32 s{sXg}, s{sXg}, 128")
        a(f"s_and_b32 s{sXg}, s{sXg}, 0x7ff")
    def loop(n, body, uid):
        a(f"s_mov_b32 s{sP}, 0")
        a.label(f"O3_LP{uid}")
        body()
        a(f"s_add_u32 s{sP}, s{sP}, 1")
        a(f"s_cmp_lt_u32 s{sP}, {n}")
        a(f"s_cbranch_scc1 O3_LP{uid}")
    loop(2, issueW, 0)
    P.stamp(6)
    a("s_barrier")
    P.stamp(7)
    loop(3, issueW, 1)
    a(f"s_cmp_lg_u32 s{sW}, 8")
    a("s_cbranch_scc1 O3_POLL_DONE")
    a(f"v_lshlrev_b32 v{vPa}, 2, v0")
    a(f"v_add_u32 v{vPa}, s45, v{vPa}")
    a("s_mov_b64 exec, 0xff")
    a(f"s_mov_b32 s{sP}, 0")
    a.label("O3_POLL1")
    a(f"buffer_load_dword v{vPoll}, v{vPa}, s[{SFL}:{SFL+3}], 0 offen sc1")
    a("s_waitcnt vmcnt(0)")
    a(f"v_cmp_eq_u32 vcc, s96, v{vPoll}")
    a("s_nop 1")
    a("s_cmp_eq_u32 vcc_lo, 0xff")
    a("s_cbranch_scc1 O3_POLL_OK")
    a(f"s_sleep {opt.get('psleep', 2)}")
    a(f"s_add_u32 s{sP}, s{sP}, 1")
    a(f"s_cmp_lt_u32 s{sP}, 400000")
    a("s_cbranch_scc1 O3_POLL1")
    a.label("O3_POLL_OK")
    a("s_mov_b64 exec, -1")
    a.label("O3_POLL_DONE")
    P.stamp(9)
    a("s_barrier")
    P.stamp(10)
    loop(5, issueX, 2)
    a("s_waitcnt vmcnt(12)")
    a("s_barrier")
    for cnt in (9, 13, 17):
        a(f"s_waitcnt vmcnt({cnt})")
        a("s_barrier")
        issueW(); issueX()
    a(f"s_mov_b32 s{sP}, 3")
    a.label("O3_L_LOOP")
    a("s_waitcnt vmcnt(21)")
    a("s_barrier")
    issueW(); issueX()
    a(f"s_add_u32 s{sP}, s{sP}, 1")
    a(f"s_cmp_lt_u32 s{sP}, 11")
    a("s_cbranch_scc1 O3_L_LOOP")
    for s_ in range(11, 15):
        a(f"s_waitcnt vmcnt({7*(15-(s_+1))})")
        a("s_barrier")
    P.dump(52, sW, 64 << 20, 12)

def outproj(a, opt, P, fused):
    sW = 4
    NTW2 = " nt" if opt.get("ntw2", 0) else ""
    XFL = " sc1" if (fused and opt.get("xsc1", 1)) else ""
    SX, SWO, SO, SFL = 8, 12, 16, 28
    sA, sB, sD, sLam, sP = 20, 21, 22, 23, 24
    sSl, sWg, sXg = 25, 26, 27
    NS = 5
    STG = 28672
    t0, t1, t2, t3, t4 = 1, 2, 3, 4, 5
    WA = 6
    XA = 10
    vWo, vXo, vPoll = 20, 21, 22
    ACC = 12
    FR = 60
    NV = 116
    END = "K1_END" if fused else "K2_END"
    if fused:
        a(f"s_cmp_lg_u32 s{sW}, 0")
        a("s_cbranch_scc1 OP_NOFLAG")
        a(f"s_lshl_b32 s{sA}, s46, 2")
        a(f"v_mov_b32 v{t0}, s96")
        a(f"v_mov_b32 v{t1}, s{sA}")
        a("s_mov_b64 exec, 1")
        a(f"buffer_store_dword v{t0}, v{t1}, s[{SFL}:{SFL+3}], 0 offen sc1")
        a("s_mov_b64 exec, -1")
        a.label("OP_NOFLAG")
        a(f"s_cmp_ge_u32 s{sW}, 8")
        a(f"s_cbranch_scc1 {END}")
    def srd_w():
        a("s_cmp_eq_u32 s6, 0")
        a(f"s_cselect_b64 s[{SWO}:{SWO+1}], s[36:37], s[50:51]")
        a(f"s_lshl_b32 s{sA}, s5, 9")
        a(f"s_lshl_b32 s{sB}, s3, 7")
        a(f"s_add_u32 s{sA}, s{sA}, s{sB}")
        a(f"s_add_u32 s{SWO}, s{SWO}, s{sA}")
        a(f"s_addc_u32 s{SWO+1}, s{SWO+1}, 0")
        a(f"s_sub_u32 s{SWO+2}, 8388608, s{sA}")
        a(f"s_mov_b32 s{SWO+3}, 0x20000")
    def srd_x():
        a(f"s_lshl_b32 s{sB}, s6, 3")
        a(f"s_add_u32 s{sB}, s{sB}, s7")
        a(f"s_mul_i32 s{sD}, s{sB}, {48*8192}")
        a(f"s_add_u32 s{SX}, s52, s{sD}")
        a(f"s_addc_u32 s{SX+1}, s53, 0")
        a(f"s_mov_b32 s{SX+2}, {48*8192}")
        a(f"s_mov_b32 s{SX+3}, 0x20000")
    def srd_o():
        a(f"s_lshl_b32 s{sA}, s5, 9")
        a(f"s_lshl_b32 s{sB}, s3, 7")
        a(f"s_add_u32 s{sA}, s{sA}, s{sB}")
        a(f"s_mul_i32 s{sD}, s7, {48*4096}")
        a(f"s_lshl_b32 s{sB}, s6, 11")
        a(f"s_add_u32 s{sB}, s{sB}, s{sA}")
        a(f"s_add_u32 s{sD}, s{sD}, s{sB}")
        a(f"s_add_u32 s{SO}, s48, s{sD}")
        a(f"s_addc_u32 s{SO+1}, s49, 0")
        a(f"s_sub_u32 s{SO+2}, {48*4096}, s{sB}")
        a(f"s_mov_b32 s{SO+3}, 0x20000")
    if not fused:
        srd_w(); srd_x()
        a(f"s_cmp_ge_u32 s{sW}, 4")
        a("s_cbranch_scc1 OP_LOADER")
    srd_o()
    a(f"v_bfe_u32 v{t0}, v0, 2, 2")
    a(f"v_lshrrev_b32 v{t1}, 4, v0")
    a(f"v_lshl_add_u32 v{t2}, v{t1}, 3, v{t0}")
    a(f"s_lshl_b32 s{sA}, s{sW}, 5")
    a(f"v_add_u32 v{t2}, s{sA}, v{t2}")
    a(f"v_lshlrev_b32 v{t2}, 7, v{t2}")
    a(f"v_bfe_u32 v{t3}, v0, 3, 1")
    a(f"v_bfe_u32 v{t4}, v0, 4, 1")
    a(f"v_lshl_or_b32 v{t3}, v{t4}, 1, v{t3}")
    a(f"v_lshl_add_u32 v{t2}, v{t3}, 5, v{t2}")
    a(f"v_and_b32 v{t3}, 3, v0")
    a(f"v_lshl_add_u32 v{WA}, v{t3}, 3, v{t2}")
    for t in range(1, 4):
        a(f"v_xor_b32 v{WA+t}, {t << 5}, v{WA}")
    a(f"v_and_b32 v{t0}, 15, v0")
    a(f"s_lshl_b32 s{sA}, s{sW}, 2")
    a(f"v_add_u32 v{t2}, s{sA}, v{t1}")
    a(f"v_xor_b32 v{t2}, v{t2}, v{t0}")
    a(f"v_lshlrev_b32 v{t2}, 4, v{t2}")
    a(f"v_lshl_add_u32 v{t2}, v{t0}, 8, v{t2}")
    a(f"v_add_u32 v{XA}, 16384, v{t2}")
    for r in range(0, 48, 2):
        a(f"v_mov_b64 {vr(ACC+r,2)}, 0")
    def reads(buf):
        fb = FR + buf*28
        for t in range(4):
            for e in range(2):
                a(f"ds_read_b64_tr_b16 {vr(fb+4*t+2*e,2)}, v{WA+t} offset:{e*512}")
        for rt in range(3):
            a(f"ds_read_b128 {vr(fb+16+4*rt,4)}, v{XA} offset:{rt*4096}")
    def adv():
        a(f"s_add_u32 s{sA}, s{sSl}, {STG}")
        a(f"s_cmp_ge_u32 s{sA}, {NS*STG}")
        a(f"s_cselect_b32 s{sB}, {NS*STG}, 0")
        a(f"s_sub_u32 s{sA}, s{sA}, s{sB}")
        a(f"s_sub_u32 s{sD}, s{sA}, s{sSl}")
        a(f"s_mov_b32 s{sSl}, s{sA}")
        for t in range(4):
            a(f"v_add_u32 v{WA+t}, s{sD}, v{WA+t}")
        a(f"v_add_u32 v{XA}, s{sD}, v{XA}")
    def mfmas(buf):
        fb = FR + buf*28
        for rt in range(3):
            for t in range(4):
                acc = ACC + (t*3+rt)*4
                a(f"{MF16} {vr(acc,4)}, {vr(fb+4*t,4)}, {vr(fb+16+4*rt,4)}, {vr(acc,4)}")
    a(f"s_mov_b32 s{sSl}, 0")
    a("s_barrier")
    P.stamp(9 if fused else 2)
    reads(0); adv()
    a("s_waitcnt lgkmcnt(0)")
    a(f"s_mov_b32 s{sP}, 0")
    if fused:
        a("s_barrier")
        reads(1); adv()
        mfmas(0)
        a("s_waitcnt lgkmcnt(0)")
        a("s_barrier")
        for half in (1, 0):
            a("s_barrier")
            reads(1-half); adv()
            mfmas(half)
            a("s_waitcnt lgkmcnt(0)")
        a("s_barrier")
        a(f"s_mov_b32 s{sP}, 1")
        a("s_branch OP_C_MID")
    a.label("OP_C_LOOP")
    for half in range(2):
        if half == 1: a.label("OP_C_MID")
        a("s_barrier")
        reads(1-half); adv()
        mfmas(half)
        a("s_waitcnt lgkmcnt(0)")
        if half == 0:
            a(f"s_cmp_eq_u32 s{sP}, 15")
            a("s_cbranch_scc1 OP_C_DONE")
    a(f"s_add_u32 s{sP}, s{sP}, 1")
    a("s_branch OP_C_LOOP")
    a.label("OP_C_DONE")
    mfmas(1)
    P.stamp(10 if fused else 3)
    a("s_barrier")
    a("s_nop 7")
    a(f"v_lshlrev_b32 v{t0}, 4, v0")
    a(f"s_mul_i32 s{sA}, s{sW}, 12288")
    a(f"v_add_u32 v{t1}, s{sA}, v{t0}")
    for tile in range(12):
        a(f"ds_write_b128 v{t1}, {vr(ACC+4*tile,4)} offset:{tile*1024}")
    a("s_waitcnt lgkmcnt(0)")
    a("s_barrier")
    a(f"s_mul_i32 s{sA}, s{sW}, 3072")
    a(f"v_add_u32 v{t1}, s{sA}, v{t0}")
    for src in range(4):
        for rt in range(3):
            a(f"ds_read_b128 {vr(ACC+(src*3+rt)*4,4)}, v{t1} offset:{src*12288+rt*1024}")
    a("s_waitcnt lgkmcnt(0)")
    for rt in range(3):
        for r in range(4):
            d = ACC + rt*4 + r
            a(f"v_add_f32 v{d}, v{d}, v{d+12}")
            a(f"v_add_f32 v{d+24}, v{d+24}, v{d+36}")
        for r in range(4):
            d = ACC + rt*4 + r
            a(f"v_add_f32 v{d}, v{d}, v{d+24}")
        d = ACC + rt*4
        a(f"v_cvt_pk_bf16_f32 v{d}, v{d}, v{d+1}")
        a(f"v_cvt_pk_bf16_f32 v{d+1}, v{d+2}, v{d+3}")
    a(f"v_and_b32 v{t0}, 15, v0")
    a(f"v_lshrrev_b32 v{t1}, 4, v0")
    a(f"v_lshlrev_b32 v{t0}, 12, v{t0}")
    a(f"v_lshl_add_u32 v{t0}, v{t1}, 3, v{t0}")
    a(f"s_lshl_b32 s{sA}, s{sW}, 5")
    a(f"v_add_u32 v{t0}, s{sA}, v{t0}")
    for rt in range(3):
        a(f"s_mov_b32 s{sA}, {rt*16*4096}")
        a(f"buffer_store_dwordx2 {vr(ACC+rt*4,2)}, v{t0}, s[{SO}:{SO+3}], s{sA} offen")
    if fused:
        P.stamp(11)
        P.stamp(8, real=True)
        P.dump(52, sW, 64 << 20, 12)
    else:
        P.stamp(4)
        if PROF: a("s_waitcnt vmcnt(0)")
        P.stamp(5)
        P.stamp(6, real=True)
        P.dump(52, sW, 65 << 20, 12)
    a("s_endpgm")

    a.label("OP_LOADER0" if fused else "OP_LOADER")
    if fused:
        srd_w(); srd_x()
    a(f"s_sub_u32 s{sLam}, s{sW}, 4")
    a(f"v_lshrrev_b32 v{t0}, 3, v0")
    a(f"v_and_b32 v{t1}, 7, v0")
    a(f"v_bfe_u32 v{t2}, v0, 4, 1")
    a(f"s_and_b32 s{sA}, s{sLam}, 1")
    a(f"s_lshl_b32 s{sA}, s{sA}, 1")
    a(f"v_or_b32 v{t2}, s{sA}, v{t2}")
    a(f"v_lshlrev_b32 v{t2}, 1, v{t2}")
    a(f"v_xor_b32 v{t1}, v{t1}, v{t2}")
    a(f"v_lshlrev_b32 v{t1}, 4, v{t1}")
    a(f"s_lshl_b32 s{sA}, s{sLam}, 3")
    a(f"v_add_u32 v{t0}, s{sA}, v{t0}")
    a(f"v_lshl_add_u32 v{vWo}, v{t0}, 11, v{t1}")
    a(f"v_lshrrev_b32 v{t0}, 4, v0")
    a(f"v_and_b32 v{t1}, 15, v0")
    a(f"s_lshl_b32 s{sA}, s{sLam}, 2")
    a(f"v_or_b32 v{t2}, s{sA}, v{t0}")
    a(f"v_xor_b32 v{t1}, v{t1}, v{t2}")
    a(f"v_lshlrev_b32 v{t1}, 4, v{t1}")
    a(f"v_lshl_add_u32 v{vXo}, v{t2}, 13, v{t1}")
    def issueW(slot_s, goff_s):
        for j in range(4):
            a(f"s_add_u32 m0, s{slot_s}, {j*4096}")
            a(f"s_add_u32 s{sA}, s{goff_s}, {j*32*2048}")
            a(f"buffer_load_dwordx4 v{vWo}, s[{SWO}:{SWO+3}], s{sA} offen{NTW2} lds")
    def issueX(slot_s, goff_s):
        for j in range(3):
            a(f"s_add_u32 m0, s{slot_s}, {16384 + j*4096}")
            a(f"s_add_u32 s{sA}, s{goff_s}, {j*16*8192}")
            a(f"buffer_load_dwordx4 v{vXo}, s[{SX}:{SX+3}], s{sA} offen{XFL} lds")
    def adv_slot(r):
        a(f"s_add_u32 s{r}, s{r}, {STG}")
        a(f"s_cmp_ge_u32 s{r}, s{sD}")
        a(f"s_cselect_b32 s{sB}, {NS*STG}, 0")
        a(f"s_sub_u32 s{r}, s{r}, s{sB}")
    sTW, sTX, sTb, sTp = 33, 38, 34, 40
    def sigma(t):
        a(f"s_lshr_b32 s{sA}, s{t}, 1")
        a(f"s_lshl_b32 s{sA}, s{sA}, 2")
        a(f"s_lshr_b64 s[{sTp}:{sTp+1}], s[{sTb}:{sTb+1}], s{sA}")
        a(f"s_and_b32 s{sTp}, s{sTp}, 15")
        a(f"s_lshl_b32 s{sTp}, s{sTp}, 1")
        a(f"s_and_b32 s{sA}, s{t}, 1")
        a(f"s_or_b32 s{sTp}, s{sTp}, s{sA}")
    def advW():
        adv_slot(sSl)
        if fused:
            a(f"s_add_u32 s{sTW}, s{sTW}, 1")
            sigma(sTW)
            a(f"s_lshl_b32 s{sWg}, s{sTp}, 18")
        else:
            a(f"s_add_u32 s{sWg}, s{sWg}, {128*2048}")
    def advX():
        adv_slot(sSlX)
        if fused:
            a(f"s_add_u32 s{sTX}, s{sTX}, 1")
            sigma(sTX)
            a(f"s_lshl_b32 s{sXg}, s{sTp}, 8")
        else:
            a(f"s_add_u32 s{sXg}, s{sXg}, 256")
    def issue():
        issueW(sSl, sWg); advW(); issueX(sSlX, sXg); advX()
    sSlX = 32
    a(f"s_lshl_b32 s{sSl}, s{sLam}, 10")
    a(f"s_mov_b32 s{sSlX}, s{sSl}")
    a(f"s_add_u32 s{sD}, s{sSl}, {NS*STG}")
    if fused:
        a(f"s_mul_i32 s{sA}, s3, 0x11111111")
        a(f"s_mul_i32 s{sB}, s5, 0x11111111")
        for half, hi in ((0, 0x11110000), (1, 0x33332222)):
            a(f"s_add_u32 s{sTp}, s{sA}, 0x32103210")
            a(f"s_and_b32 s{sTp}, s{sTp}, 0x33333333")
            a(f"s_add_u32 s{sTp+1}, s{sB}, {hi:#x}")
            a(f"s_and_b32 s{sTp+1}, s{sTp+1}, 0x33333333")
            a(f"s_lshl_b32 s{sTp+1}, s{sTp+1}, 2")
            a(f"s_or_b32 s{sTb+half}, s{sTp}, s{sTp+1}")
        a(f"s_mov_b32 s{sTW}, 0")
        a(f"s_mov_b32 s{sTX}, 0")
        a(f"s_lshl_b32 s{sWg}, s46, 19")
        a(f"s_lshl_b32 s{sXg}, s46, 9")
        a(f"s_lshl_b32 s{sA}, s5, 2")
        a(f"s_lshl_b32 s39, 15, s{sA}")
        a(f"s_mov_b32 s{sP}, 0")
        a.label("OP_LW")
        issueW(sSl, sWg); advW()
        a(f"s_add_u32 s{sP}, s{sP}, 1")
        a(f"s_cmp_lt_u32 s{sP}, 2")
        a("s_cbranch_scc1 OP_LW")
        P.stamp(6)
        a("s_barrier")
        P.stamp(7)
        a(f"v_lshlrev_b32 v{t3}, 2, v0")
        if opt.get("xdelay", 0): a(f"s_sleep {opt['xdelay']}")
        issueX(sSlX, sXg); advX()
        issueX(sSlX, sXg); advX()
        a("s_waitcnt vmcnt(3)")
        a("s_barrier")
        def look(uid):
            a(f"s_cmp_lg_u32 s{sW}, 4")
            a(f"s_cbranch_scc1 OP_NOLOOK{uid}")
            a("s_mov_b64 exec, 0xffff")
            a(f"buffer_load_dword v{vPoll}, v{t3}, s[{SFL}:{SFL+3}], 0 offen sc1")
            a("s_mov_b64 exec, -1")
            a.label(f"OP_NOLOOK{uid}")
        look(1)
        issueW(sSl, sWg); advW()
        issueW(sSl, sWg); advW()
        a("s_waitcnt vmcnt(8)")
        a("s_barrier")
        issueW(sSl, sWg); advW()
        issueW(sSl, sWg); advW()
        def poll(mask, uid):
            a(f"s_cmp_lg_u32 s{sW}, 4")
            a(f"s_cbranch_scc1 OP_POLL_DONE{uid}")
            a("s_mov_b64 exec, 0xffff")
            a(f"s_mov_b32 s{sP}, 0")
            a.label(f"OP_POLL_LOOP{uid}")
            a(f"v_cmp_eq_u32 vcc, s96, v{vPoll}")
            a("s_nop 1")
            a(f"s_and_b32 s{sA}, vcc_lo, {mask}")
            a(f"s_cmp_eq_u32 s{sA}, {mask}")
            a(f"s_cbranch_scc1 OP_POLL_OK{uid}")
            a(f"s_sleep {opt.get('psleep', 2)}")
            a(f"buffer_load_dword v{vPoll}, v{t3}, s[{SFL}:{SFL+3}], 0 offen sc1")
            a("s_waitcnt vmcnt(0)")
            a(f"s_add_u32 s{sP}, s{sP}, 1")
            a(f"s_cmp_lt_u32 s{sP}, 400000")
            a(f"s_cbranch_scc1 OP_POLL_LOOP{uid}")
            a.label(f"OP_POLL_OK{uid}")
            if uid == 1:
                a(f"buffer_load_dword v{vPoll}, v{t3}, s[{SFL}:{SFL+3}], 0 offen sc1")
            a("s_mov_b64 exec, -1")
            a.label(f"OP_POLL_DONE{uid}")
        poll("s39", 1)
        P.stamp(9)
        a("s_barrier")
        P.stamp(10)
        for _ in range(4):
            issueX(sSlX, sXg); advX()
        for k, cnt in enumerate((9, 13, 17)):
            a(f"s_waitcnt vmcnt({cnt})")
            a("s_barrier")
            if k == 2 or True:
                pass
            if k < 2:
                issue()
                if k == 1:
                    poll("0xffff", 2)
                    a("s_barrier")
            else:
                issue()
        a(f"s_mov_b32 s{sP}, 4")
    else:
        a(f"s_mov_b32 s{sWg}, 0")
        a(f"s_mov_b32 s{sXg}, 0")
        for st in range(5):
            issue()
        a("s_waitcnt vmcnt(28)")
        a("s_barrier")
        a(f"s_mov_b32 s{sP}, 0")
    a.label("OP_L_LOOP")
    a("s_waitcnt vmcnt(21)")
    a("s_barrier")
    issue()
    a(f"s_add_u32 s{sP}, s{sP}, 1")
    a(f"s_cmp_lt_u32 s{sP}, 27")
    a("s_cbranch_scc1 OP_L_LOOP")
    for s_ in range(27, 31):
        a(f"s_waitcnt vmcnt({7*(31-(s_+1))})")
        a("s_barrier")
    a("s_barrier")
    a("s_barrier")
    if fused:
        P.dump(52, sW, 64 << 20, 12)
    return NV

HEADER = open("cdna_kernels/" + NAME + ".s.ref").read().split("; Override launch")[0]

def kd(name, nv, ns):
    acc = (nv + 3)//4*4
    return f"""
.amdhsa_kernel {name}
  .amdhsa_next_free_vgpr {nv}
  .amdhsa_next_free_sgpr {ns}
  .amdhsa_accum_offset {acc}
  .amdhsa_group_segment_fixed_size 0
  .amdhsa_kernarg_size 104
  .amdhsa_user_sgpr_count 2
  .amdhsa_user_sgpr_kernarg_segment_ptr 1
  .amdhsa_system_sgpr_workgroup_id_x 1
.end_amdhsa_kernel
"""

def main(out, opt):
    fused = opt.get("fused", 1)
    a1 = Asm(); nv1 = kernel1(a1, opt)
    s = HEADER
    if fused:
        body = a1.text().replace("k1_kernel", NAME + "_kernel")
        s += "; @launch grid=(256,1,1) block=(768,1,1) lds=163840\n"
        s += '.amdgcn_target "amdgcn-amd-amdhsa--gfx950"\n.text\n'
        nm = NAME + "_kernel"
        s += f".globl {nm}\n.p2align 8\n.type {nm},@function\n" + body
        s += '.section .rodata,"a"\n'
        s += ".p2align 6" + kd(nm, nv1, 102)
    else:
        a2 = Asm(); nv2 = kernel2(a2, opt)
        s += "; @launch kernel=k1_kernel grid=(256,1,1) block=(768,1,1) lds=163840\n"
        s += "; @launch kernel=k2_kernel grid=(256,1,1) block=(512,1,1) lds=143360\n"
        s += '.amdgcn_target "amdgcn-amd-amdhsa--gfx950"\n.text\n'
        for nm, body in (("k1_kernel", a1), ("k2_kernel", a2)):
            s += f".globl {nm}\n.p2align 8\n.type {nm},@function\n" + body.text()
        s += '.section .rodata,"a"\n'
        s += ".p2align 6" + kd("k1_kernel", nv1, 102) + ".p2align 6" + kd("k2_kernel", nv2, 96)
    open(out, "w").write(s)

if __name__ == "__main__":
    if "--prof" in sys.argv:
        PROF = True
        sys.argv.remove("--prof")
    if "--dbgprof" in sys.argv:
        PROF = True
        DBGPROF = True
        sys.argv.remove("--dbgprof")
    if "--fine" in sys.argv:
        PROF = True
        FINE = True
        sys.argv.remove("--fine")
    opt = {}
    for x in list(sys.argv):
        if x.startswith("--o:"):
            k, v = x[4:].split("=")
            opt[k] = int(v)
            sys.argv.remove(x)
    main(sys.argv[1] if len(sys.argv) > 1 else "cdna_kernels/" + NAME + ".s", opt)
```

```python
import sys, struct, math

NAME = "concat_heads__gqa_block_cached__gqa_block_cached__near_ridge"

def f2u(x):
    return struct.unpack("<I", struct.pack("<f", x))[0]

class Asm:
    def __init__(self):
        self.L = []
    def __call__(self, s):
        import re
        m = re.search(r"offset:(\d+)", s)
        if m:
            lim = 4095 if s.lstrip().startswith(("buffer_", "global_")) else 65535
            assert int(m.group(1)) <= lim, s
        for line in s.split("\n"):
            self.L.append("    " + line.strip() if not line.strip().endswith(":") else line.strip())
    def label(self, s):
        self.L.append(s + ":")
    def c(self, s):
        self.L.append("    ; " + s)
    def text(self):
        return "\n".join(self.L) + "\n"

def vr(base, n=1):
    return f"v{base}" if n == 1 else f"v[{base}:{base+n-1}]"
def sr(base, n=1):
    return f"s{base}" if n == 1 else f"s[{base}:{base+n-1}]"

MF32 = "v_mfma_f32_32x32x16_bf16"
MF16 = "v_mfma_f32_16x16x32_bf16"

DEBUG_Q = False
PROF = False
FINE = False
DBGPROF = False
RT = False
TRDIAG = False
CDIAG = False
class Prof:
    uid = 0
    def __init__(self, a, base, tmp, srd):
        self.a, self.base, self.tmp, self.srd = a, base, tmp, srd
    def init(self, n):
        if not PROF: return
        for i in range(n):
            self.a(f"s_mov_b32 s{self.base+i}, 0")
    def fine(self, slot, cond_sgpr, val, uid):
        if not FINE: return
        a = self.a
        a(f"s_cmp_lg_u32 s{cond_sgpr}, {val}")
        a(f"s_cbranch_scc1 FINE_{uid}")
        a(f"s_memtime s[{self.tmp}:{self.tmp+1}]")
        a("s_waitcnt lgkmcnt(0)")
        a(f"s_mov_b32 s{self.base+slot}, s{self.tmp}")
        a.label(f"FINE_{uid}")
    def stamp(self, slot, real=False, force=False):
        if not PROF: return
        if FINE and slot in (2, 3, 4, 5, 6, 7) : return
        if TRDIAG and slot in (3, 6, 7, 9) and not force: return
        if CDIAG and slot in (2, 3, 4, 6, 7, 9, 10, 11) and force != 2: return
        a = self.a
        a(f"{'s_memrealtime' if (real or RT) else 's_memtime'} s[{self.tmp}:{self.tmp+1}]")
        a("s_waitcnt lgkmcnt(0)")
        a(f"s_mov_b32 s{self.base+slot}, s{self.tmp}")
    def dump(self, ws_lo, swave, region, nmax):
        if not PROF: return
        a = self.a
        b = self.srd
        if DBGPROF:
            Prof.uid += 1
            a(f"s_or_b32 s{self.tmp}, s2, s{swave}")
            a(f"s_cmp_lg_u32 s{self.tmp}, 0")
            a(f"s_cbranch_scc1 DBGP_SKIP{Prof.uid}")
            a(f"s_load_dwordx2 s[{b}:{b+1}], s[0:1], 88")
            a("s_waitcnt lgkmcnt(0)")
            a(f"s_mov_b32 s{b+2}, 256")
            a(f"s_mov_b32 s{b+3}, 0x20000")
            a("s_mov_b64 exec, 1")
            a("v_mov_b32 v1, 0")
            for i in range(nmax):
                if i in (0, 1): continue
                ref = 0 if i == 8 else 1
                a(f"s_sub_u32 s{self.tmp}, s{self.base+i}, s{self.base+ref}")
                a(f"v_mov_b32 v2, s{self.tmp}")
                a(f"buffer_store_dword v2, v1, s[{b}:{b+3}], 0 offen offset:{4*i}")
                a("s_nop 0")
            a.label(f"DBGP_SKIP{Prof.uid}")
            return
        a(f"s_add_u32 s{b}, s{ws_lo}, {region}")
        a(f"s_addc_u32 s{b+1}, s{ws_lo+1}, 0")
        a(f"s_mov_b32 s{b+2}, {256*16*64}")
        a(f"s_mov_b32 s{b+3}, 0x20000")
        a(f"s_lshl_b32 s{self.tmp}, s2, 4")
        a(f"s_add_u32 s{self.tmp}, s{self.tmp}, s{swave}")
        a(f"s_lshl_b32 s{self.tmp}, s{self.tmp}, 6")
        a("s_mov_b64 exec, 1")
        a(f"v_mov_b32 v1, s{self.tmp}")
        for i in range(nmax):
            a(f"v_mov_b32 v2, s{self.base+i}")
            a(f"buffer_store_dword v2, v1, s[{b}:{b+3}], 0 offen offset:{4*i}")
            a("s_nop 0")

def flaglayout(opt):
    f1l = opt.get("f1", 1) and opt.get("ex", 3) == 3
    return f1l, (32768 if f1l else 16384)

def kernel1(a, opt):
    F1L, SEC = flaglayout(opt)
    T2_START = opt.get("t2_start", 8)
    TOUCH = opt.get("touch", 0)
    PRIO = opt.get("prio", 1)
    PQ, PS, PP = opt.get("pq", 2), opt.get("ps", 1), opt.get("pp", 0)
    DMAQ = opt.get("dmaq", 1)
    NTD = " nt" if opt.get("ntd", 0) else ""
    NTQ = " nt" if opt.get("ntq", opt.get("ntd", 0)) else ""
    NTX = " nt" if opt.get("ntx", opt.get("ntd", 0)) else ""
    NTT = " nt" if opt.get("ntt", 1) else ""
    ROT = opt.get("rot", 4)
    TPS = opt.get("tps", 2)
    NS2 = opt.get("p2steps", 8)
    AB = opt.get("ablate", 0)
    CSCALE = 128 ** -0.5 * math.log2(math.e)
    WOT = opt.get("wot", 1)
    OPM = opt.get("op", 3) if opt.get("fused", 1) else 1
    NTW = " nt" if opt.get("ntw", 0) else ""
    SWOP = 36
    sW = 4
    sKvh, sBr, sBt, sPair = 5, 6, 7, 3
    SX, SWQ, SK, SV, SO = 8, 12, 16, 20, 24
    STCH = 40
    sThr, sFloor = 54, 55
    sG = [56, 57, 58, 59]
    sL = [60, 61, 62, 63]
    sStep = 64
    sVn, sKn = 65, 66
    sGstep = 67
    sKc, sVc = 68, 69
    sQt, sKq = 70, 71
    sA, sB, sD = 72, 73, 74
    sLam = 75
    sWs, sWg, sXs, sXg = 76, 77, 78, 79
    sP = 80
    sE = 81
    sChk = 100
    SFL, sTok = 28, 96
    FLAGOFF = 8 << 20
    sGrp, sIdx, sRdy = 45, 46, 47
    sSafe = 44
    sDk, sDv, sTl = 76, 77, 78
    vMx = 0
    vL = 1
    KA0, KA1, VA = 2, 3, 4
    vKoff, vVoff = 5, 6
    vTb = 7
    NM = 8
    O = 24
    Q = 88
    S = 120
    F = 136
    NV = 168
    t0, t1, t2, t3, t4 = 8, 9, 10, 11, 12
    Wf = 88
    Xf = 104
    TR = opt.get("trans", 2)
    if TR == 2:
        ACC = 64
        WA, XA, QW = 128, 130, 134
    else:
        ACC = 128
        WA = 152
        XA = 154
        QW = 158
    vCs = 161
    sCs = 98
    vWo, vXo = 160, 153

    XBASE = 131072
    a.label("k1_kernel")
    a("s_cmp_ge_u32 s2, 256")
    a("s_cbranch_scc1 K1_END")
    P = Prof(a, 84, 82, 28)
    P.init(12)
    P.stamp(0, real=True)
    P.stamp(1)
    if opt.get("padto", 0): a("s_memrealtime s[100:101]")
    a("s_load_dwordx16 s[32:47], s[0:1], 0")
    a("s_load_dwordx4 s[48:51], s[0:1], 64")
    a("s_load_dwordx2 s[52:53], s[0:1], 96")
    a("v_lshrrev_b32 v1, 6, v0")
    a("v_and_b32 v0, 63, v0")
    a(f"v_readfirstlane_b32 s{sW}, v1")
    a(f"s_and_b32 s{sKvh}, s2, 3")
    a(f"s_bfe_u32 s{sBr}, s2, 0x10002")
    a(f"s_lshr_b32 s{sBt}, s2, 5")
    a(f"s_bfe_u32 s{sPair}, s2, 0x20003")
    a(f"s_and_b32 s{sKq}, s{sW}, 3")
    a(f"s_lshr_b32 s{sQt}, s{sW}, 2")
    a(f"s_lshl_b32 s{sD}, s{sKvh}, 11")
    a(f"s_lshl_b32 s{sB}, s{sPair}, 9")
    a(f"s_add_u32 s{sD}, s{sD}, s{sB}")
    a(f"s_mul_i32 s{sA}, s{sBt}, 98304")

    def srd1():
        a("s_waitcnt lgkmcnt(0)")
        a(f"s_cmp_eq_u32 s{sBr}, 0")
        a(f"s_cselect_b64 s[{SX}:{SX+1}], s[32:33], s[42:43]")
        a(f"s_cselect_b64 s[{SWQ}:{SWQ+1}], s[38:39], s[48:49]")
        a(f"s_add_u32 s{SX}, s{SX}, s{sA}")
        a(f"s_addc_u32 s{SX+1}, s{SX+1}, 0")
        a(f"s_mov_b32 s{SX+2}, 98304")
        a(f"s_mov_b32 s{SX+3}, 0x20000")
        a(f"s_add_u32 s{SWQ}, s{SWQ}, s{sD}")
        a(f"s_addc_u32 s{SWQ+1}, s{SWQ+1}, 0")
        a(f"s_sub_u32 s{SWQ+2}, 8388608, s{sD}")
        a(f"s_mov_b32 s{SWQ+3}, 0x20000")
    def patterns():
        a(f"v_bfe_u32 v{t0}, v0, 2, 2")
        a(f"v_lshlrev_b32 v{t0}, 8, v{t0}")
        a(f"v_lshrrev_b32 v{t1}, 4, v0")
        a(f"v_lshl_add_u32 v{t0}, v{t1}, 6, v{t0}")
        a(f"v_and_b32 v{t1}, 3, v0")
        a(f"v_lshl_add_u32 v{vVoff}, v{t1}, 4, v{t0}")
        a(f"s_lshl_b32 s{sB}, s{sKq}, 4")
        a(f"v_xor_b32 v{vKoff}, s{sB}, v{vVoff}")

    def srd2():
        a(f"s_cmp_eq_u32 s{sBr}, 0")
        a(f"s_cselect_b64 s[{SK}:{SK+1}], s[34:35], s[44:45]")
        a(f"s_cselect_b64 s[{SV}:{SV+1}], s[36:37], s[46:47]")
        a(f"s_mov_b64 s[36:37], s[40:41]")
        a(f"s_lshl_b32 s{sB}, s{sBr}, 3")
        a(f"s_add_u32 s{sB}, s{sB}, s{sBt}")
        a(f"s_mul_i32 s{sB}, s{sB}, {48*8192}")
        a(f"s_add_u32 s{sB}, s{sB}, s{sD}")
        a(f"s_add_u32 s{SO}, s52, s{sB}")
        a(f"s_addc_u32 s{SO+1}, s53, 0")
        a(f"s_sub_u32 s{SO+2}, {48*8192}, s{sD}")
        a(f"s_mov_b32 s{SO+3}, 0x20000")
        a(f"s_lshl_b32 s{sB}, s{sBt}, 2")
        a(f"s_add_u32 s{sB}, s{sB}, s{sKvh}")
        a(f"s_lshl_b32 s{sB}, s{sB}, 18")
        a(f"s_add_u32 s{SK}, s{SK}, s{sB}")
        a(f"s_addc_u32 s{SK+1}, s{SK+1}, 0")
        a(f"s_mov_b32 s{SK+2}, 262144")
        a(f"s_mov_b32 s{SK+3}, 0x20000")
        a(f"s_add_u32 s{SV}, s{SV}, s{sB}")
        a(f"s_addc_u32 s{SV+1}, s{SV+1}, 0")
        a(f"s_mov_b32 s{SV+2}, 262144")
        a(f"s_mov_b32 s{SV+3}, 0x20000")
        a(f"s_mov_b32 s{STCH+2}, 262144")
        a(f"s_mov_b32 s{STCH+3}, 0x20000")
        if OPM == 1:
            a(f"s_lshl_b32 s{sB}, s{sBr}, 3")
            a(f"s_add_u32 s{sB}, s{sB}, s{sBt}")
            a(f"s_lshl_b32 s{sB}, s{sB}, 8")
            a(f"s_add_u32 s{sB}, s{sB}, {FLAGOFF}")
            a(f"s_add_u32 s{SFL}, s52, s{sB}")
            a(f"s_addc_u32 s{SFL+1}, s53, 0")
            a(f"s_mov_b32 s{SFL+2}, 64")
        else:
            a(f"s_add_u32 s{SFL}, s52, {FLAGOFF}")
            a(f"s_addc_u32 s{SFL+1}, s53, 0")
            a(f"s_mov_b32 s{SFL+2}, {(1 << 20) if opt.get('stepprof', 0) else (SEC + 65536 if opt.get('ex', 3) >= 2 else 32768)}")
            a(f"s_lshl_b32 s{sGrp}, s{sBr}, 2")
            a(f"s_add_u32 s{sGrp}, s{sGrp}, s{sKvh}")
            a(f"s_lshl_b32 s{sGrp}, s{sGrp}, 2")
            a(f"s_lshr_b32 s{sB}, s{sBt}, 1")
            a(f"s_add_u32 s{sGrp}, s{sGrp}, s{sB}")
            a(f"s_lshl_b32 s{sGrp}, s{sGrp}, {10 if F1L else 8}")
            a(f"s_lshl_b32 s{sRdy}, s{sBr}, 2")
            a(f"s_add_u32 s{sRdy}, s{sRdy}, s{sB}")
            a(f"s_lshl_b32 s{sRdy}, s{sRdy}, 3")
            a(f"s_and_b32 s{sB}, s{sBt}, 1")
            a(f"s_lshl_b32 s{sB}, s{sB}, 2")
            a(f"s_add_u32 s{sB}, s{sB}, s{sPair}")
            a(f"s_add_u32 s{sRdy}, s{sRdy}, s{sB}")
            a(f"s_lshl_b32 s{sRdy}, s{sRdy}, {10 if opt.get('ex', 3) >= 2 else 8}")
            a(f"s_add_u32 s{sRdy}, s{sRdy}, {SEC}")
        a(f"s_mov_b32 s{SFL+3}, 0x20000")
        if OPM == 1:
            a(f"s_load_dwordx2 s[{sTok}:{sTok+1}], s[{SX}:{SX+1}], 0")
        else:
            a(f"s_and_b32 s82, s{sBt}, 1")
            a(f"s_mul_i32 s82, s82, 98304")
            a(f"s_sub_u32 s82, s{SX}, s82")
            a(f"s_subb_u32 s83, s{SX+1}, 0")
            a(f"s_load_dwordx2 s[{sTok}:{sTok+1}], s[82:83], 0")
        if OPM == 1:
            a(f"s_lshl_b32 s{sIdx}, s{sKvh}, 2")
            a(f"s_add_u32 s{sIdx}, s{sIdx}, s{sPair}")
        else:
            a(f"s_mov_b32 s{sIdx}, s{sB}")

        patterns()

    def kread(n):
        a(f"ds_read_b128 {vr(F+4*n,4)}, v{KA0 + (n & 1)} offset:{(n >> 1)*256}")
    def setup2():
        a(f"v_and_b32 v{t0}, 31, v0")
        a(f"v_lshrrev_b32 v{t1}, 5, v0")
        a(f"v_and_b32 v{t2}, 15, v0")
        a(f"v_xor_b32 v{t2}, v{t1}, v{t2}")
        a(f"v_lshlrev_b32 v{t2}, 4, v{t2}")
        a(f"v_lshl_add_u32 v{t2}, v{t0}, 8, v{t2}")
        a(f"s_lshl_b32 s{sA}, s{sQt}, 13")
        a(f"s_add_u32 s{sA}, s{sA}, {XBASE}")
        a(f"v_add_u32 v{vTb}, s{sA}, v{t2}")
        a(f"v_lshrrev_b32 v{t2}, 2, v{t0}")
        a(f"v_and_b32 v{t3}, 3, v{t2}")
        a(f"v_xor_b32 v{t3}, v{t1}, v{t3}")
        a(f"v_lshlrev_b32 v{t3}, 4, v{t3}")
        a(f"v_lshl_add_u32 v{t3}, v{t2}, 10, v{t3}")
        a(f"v_and_b32 v{t2}, 3, v0")
        a(f"v_lshl_add_u32 v{t3}, v{t2}, 6, v{t3}")
        a(f"s_lshl_b32 s{sA}, s{sKq}, 13")
        a(f"v_add_u32 v{KA0}, s{sA}, v{t3}")
        a(f"v_xor_b32 v{KA1}, 32, v{KA0}")
        a(f"v_bfe_u32 v{t2}, v0, 2, 2")
        a(f"v_lshlrev_b32 v{t2}, 6, v{t2}")
        a(f"v_lshl_add_u32 v{t2}, v{t1}, 10, v{t2}")
        a(f"v_bfe_u32 v{t3}, v0, 4, 1")
        a(f"v_lshl_add_u32 v{t2}, v{t3}, 5, v{t2}")
        a(f"v_bfe_u32 v{t3}, v0, 1, 1")
        a(f"v_lshl_add_u32 v{t2}, v{t3}, 4, v{t2}")
        a(f"v_and_b32 v{t3}, 1, v0")
        a(f"v_lshl_add_u32 v{t2}, v{t3}, 3, v{t2}")
        a(f"s_add_u32 s{sA}, s{sA}, 32768")
        a(f"v_add_u32 v{VA}, s{sA}, v{t2}")
        for j in range(4):
            a(f"s_sub_u32 s{sA}, s{sQt}, 1")
            a(f"s_lshl_b32 s{sA}, s{sA}, 1")
            a(f"s_add_u32 s{sA}, s{sA}, {j >> 1}")
            a(f"s_add_u32 s{sB}, s{sKq}, {4*(j & 1)}")
            a(f"s_lshl_b32 s{sB}, s{sB}, 10")
            a(f"s_lshl_b32 s{sD}, s{sA}, 16")
            a(f"s_add_u32 s{sG[j]}, s{sD}, s{sB}")
            a(f"s_lshl_b32 s{sD}, s{sA}, 13")
            a(f"s_add_u32 s{sL[j]}, s{sD}, s{sB}")
        a(f"s_mov_b32 s{sStep}, 0")
        a(f"s_mov_b32 s{sKn}, {4*32768}")
        a(f"s_mov_b32 s{sVn}, 0")
        a(f"s_mov_b32 s{sGstep}, 16384")
        a(f"s_mov_b32 s{sKc}, 65536")
        a(f"s_mov_b32 s{sVc}, 32768")
        a(f"s_mov_b32 s{sThr}, 0xff800000")
        a(f"s_mov_b32 s{sFloor}, 0xff800000")
        a(f"s_mov_b32 s{sSafe}, {opt.get('safe', 0)}")
        for r in range(0, 16, 2):
            a(f"v_mov_b64 {vr(NM+r,2)}, 0")

    def issueW(slot_expr_sgpr, goff_sgpr, vreg):
        for j in range(8):
            m1, m3, m4 = j & 1, (j >> 1) & 1, (j >> 2) & 1
            dm = 2*m1 + 8*m3 + 16*m4
            a(f"s_add_u32 m0, s{slot_expr_sgpr}, {dm*1024}")
            a(f"s_add_u32 s{sA}, s{goff_sgpr}, {dm*16384}")
            a(f"buffer_load_dwordx4 v{vreg}, s[{SWQ}:{SWQ+3}], s{sA} offen{NTQ} lds")
    def issueX(slot_sgpr, goff_sgpr):
        for j in range(3):
            a(f"s_add_u32 m0, s{slot_sgpr}, {j*4096}")
            a(f"s_add_u32 s{sA}, s{goff_sgpr}, {j*16*2048}")
            a(f"buffer_load_dwordx4 v{vXo}, s[{SX}:{SX+3}], s{sA} offen{NTX} lds")
    a(f"v_lshrrev_b32 v{t0}, 5, v0")
    a(f"v_and_b32 v{t1}, 31, v0")
    a(f"s_and_b32 s{sE}, s{sKq}, 1")
    a(f"s_lshl_b32 s{sE}, s{sE}, 1")
    a(f"s_lshr_b32 s{sB}, s{sKq}, 1")
    a(f"s_lshl_b32 s{sB}, s{sB}, 2")
    a(f"s_or_b32 s{sE}, s{sE}, s{sB}")
    a(f"v_or_b32 v{t2}, s{sE}, v{t0}")
    a(f"v_lshlrev_b32 v{t2}, 1, v{t2}")
    a(f"v_xor_b32 v{t2}, v{t1}, v{t2}")
    a(f"v_lshlrev_b32 v{t2}, 4, v{t2}")
    a(f"v_lshl_add_u32 v{vWo}, v{t0}, 13, v{t2}")
    a(f"s_and_b32 s{sE}, s{sKq}, 1")
    a(f"s_or_b32 s{sE}, s{sE}, s{sB}")
    a(f"s_lshl_b32 s{sB}, s{sE}, 14")
    a(f"v_add_u32 v{vWo}, s{sB}, v{vWo}")
    a(f"s_lshl_b32 s{sWs}, s{sE}, 10")
    if ROT == 1:
        a(f"s_lshl_b32 s{sXg}, s{sPair}, 1")
        a(f"s_add_u32 s{sXg}, s{sXg}, s{sBt}")
        a(f"s_and_b32 s{sXg}, s{sXg}, 7")
        a(f"s_lshl_b32 s{sWg}, s{sXg}, 20")
        a(f"s_lshl_b32 s{sXg}, s{sXg}, 8")
    elif ROT == 4:
        a(f"s_add_u32 s{sXg}, s{sPair}, s{sBt}")
        a(f"s_and_b32 s{sXg}, s{sXg}, 3")
        a(f"s_lshl_b32 s{sXg}, s{sXg}, 1")
        a(f"s_lshl_b32 s{sWg}, s{sXg}, 20")
        a(f"s_lshl_b32 s{sXg}, s{sXg}, 8")
    elif ROT == 2:
        a(f"s_add_u32 s{sXg}, s{sPair}, s{sBt}")
        a(f"s_and_b32 s{sXg}, s{sXg}, 1")
        a(f"s_lshl_b32 s{sXg}, s{sXg}, 2")
        a(f"s_lshl_b32 s{sWg}, s{sXg}, 20")
        a(f"s_lshl_b32 s{sXg}, s{sXg}, 8")
    else:
        a(f"s_mov_b32 s{sXg}, 0")
        a(f"s_mov_b32 s{sWg}, 0")
    a(f"s_cmp_ge_u32 s{sW}, 8")
    a("s_cbranch_scc1 K1_LOADER")
    a(f"s_add_u32 s{sB}, s{sQt}, 1")
    a(f"s_lshl_b32 s{sE}, s{sB}, 15")
    a(f"s_add_u32 s{sWs}, s{sWs}, s{sE}")
    a(f"s_lshl_b32 s{sE}, s{sB}, 19")
    a(f"s_add_u32 s{sWg}, s{sWg}, s{sE}")
    a(f"s_and_b32 s{sWg}, s{sWg}, 0x7fffff")
    srd1()
    if opt.get("t1", 0):
        a(f"v_lshrrev_b32 v{t0}, 4, v0")
        a(f"v_lshlrev_b32 v{t0}, 13, v{t0}")
        a(f"v_and_b32 v{t1}, 15, v0")
        a(f"v_lshl_add_u32 v{t0}, v{t1}, 7, v{t0}")
        a(f"s_lshr_b32 s{sB}, s2, 3")
        a(f"s_lshl_b32 s{sB}, s{sB}, 15")
        a(f"s_lshl_b32 s{sE}, s{sW}, 20")
        a(f"s_add_u32 s{sB}, s{sB}, s{sE}")
        a(f"s_lshl_b32 s{sE}, s{sPair}, 9")
        a(f"s_sub_u32 s82, s{SWQ}, s{sE}")
        a(f"s_subb_u32 s83, s{SWQ+1}, 0")
        a(f"v_add_u32 v{t0}, s{sB}, v{t0}")
        a(f"s_cmp_lt_u32 s{sW}, {opt.get('t1first', 1)}")
        a("s_cbranch_scc1 K1_NOT1")
        a(f"global_load_dword v{F+31}, v{t0}, s[82:83]")
        a.label("K1_NOT1")
        a(f"s_cmp_ge_u32 s{sW}, 3")
        a("s_cbranch_scc1 K1_NOT2")
        a(f"v_lshrrev_b32 v{t0}, 4, v0")
        a(f"s_mul_i32 s{sB}, s{sPair}, 12")
        a(f"s_lshl_b32 s{sE}, s{sW}, 2")
        a(f"s_add_u32 s{sB}, s{sB}, s{sE}")
        a(f"v_add_u32 v{t0}, s{sB}, v{t0}")
        a(f"v_lshlrev_b32 v{t0}, 11, v{t0}")
        a(f"v_lshl_add_u32 v{t0}, v{t1}, 7, v{t0}")
        a(f"buffer_load_dword v{F+30}, v{t0}, s[{SX}:{SX+3}], 0 offen")
        a.label("K1_NOT2")
    if not opt.get("latew", 1):
        issueW(sWs, sWg, vWo)

    a.c("phase 1 compute")
    a(f"v_bfe_u32 v{t0}, v0, 2, 2")
    a(f"v_lshrrev_b32 v{t1}, 4, v0")
    a(f"v_and_b32 v{t2}, 1, v{t1}")
    a(f"v_lshl_or_b32 v{t2}, v{t2}, 2, v{t0}")
    a(f"s_lshl_b32 s{sE}, s{sW}, 1")
    a(f"v_xor_b32 v{t2}, s{sE}, v{t2}")
    a(f"v_lshl_add_u32 v{t3}, v{t1}, 3, v{t0}")
    a(f"v_lshlrev_b32 v{t3}, 9, v{t3}")
    a(f"v_lshl_add_u32 v{t3}, v{t2}, 5, v{t3}")
    a(f"v_and_b32 v{t4}, 3, v0")
    a(f"v_lshl_add_u32 v{WA}, v{t4}, 3, v{t3}")
    a(f"v_xor_b32 v{WA+1}, 32, v{WA}")
    a(f"v_and_b32 v{t0}, 15, v0")
    a(f"v_xor_b32 v{t2}, v{t1}, v{t0}")
    a(f"v_lshlrev_b32 v{t2}, 4, v{t2}")
    a(f"v_lshl_add_u32 v{t2}, v{t0}, 8, v{t2}")
    a(f"v_add_u32 v{XA}, {XBASE:#x}, v{t2}")
    a(f"v_xor_b32 v{XA+1}, 64, v{XA}")
    a(f"v_xor_b32 v{XA+2}, 0x80, v{XA}")
    a(f"v_xor_b32 v{XA+3}, 0xc0, v{XA}")
    for r in range(24):
        a(f"v_mov_b32 v{ACC+r}, 0")
    srd2()
    if opt.get("fused", 1):
        a(f"s_cmp_lg_u32 s{sW}, 1")
        a("s_cbranch_scc1 K1_NOZ")
        a(f"s_lshl_b32 s{sE}, s{sIdx}, 2")
        if OPM == 3:
            a(f"s_add_u32 s{sE}, s{sE}, s{sGrp}")
        a(f"v_mov_b32 v{t0}, 0")
        if F1L:
            a(f"v_lshl_add_u32 v{t1}, v0, 7, s{sE}")
            a(f"s_lshl_b32 s{sB}, s{sKvh}, 2")
            a(f"s_add_u32 s{sB}, s{sB}, s{sRdy}")
            a(f"s_sub_u32 s{sB}, s{sB}, {8*128}")
            a(f"v_lshl_add_u32 v{t2}, v0, 7, s{sB}")
            a(f"v_cmp_lt_u32 vcc, 7, v0")
            a(f"v_cndmask_b32 v{t1}, v{t1}, v{t2}, vcc")
            a(f"s_mov_b64 exec, 0xffff")
        elif OPM == 3 and opt.get("ex", 3) >= 2:
            a(f"s_lshl_b32 s{sB}, s{sKvh}, 2")
            a(f"s_add_u32 s{sB}, s{sB}, s{sRdy}")
            a(f"s_sub_u32 s{sB}, s{sB}, 128")
            a(f"v_lshl_add_u32 v{t1}, v0, 7, s{sB}")
            a(f"s_add_u32 s{sB}, s{sRdy}, 64")
            a(f"s_sub_u32 s{sB}, s{sB}, {9*128}")
            a(f"v_lshl_add_u32 v{t2}, v0, 7, s{sB}")
            a(f"v_cmp_lt_u32 vcc, 8, v0")
            a(f"v_cndmask_b32 v{t1}, v{t1}, v{t2}, vcc")
            a(f"v_writelane_b32 v{t1}, s{sE}, 0")
            a(f"s_mov_b64 exec, {'0x1ff' if opt.get('ex', 3) == 3 else '0x1ffff'}")
        else:
            a(f"v_mov_b32 v{t1}, s{sE}")
            if OPM == 3:
                a(f"s_lshl_b32 s{sE}, s{sKvh}, 2")
                a(f"s_add_u32 s{sE}, s{sE}, s{sRdy}")
                a(f"v_writelane_b32 v{t1}, s{sE}, 1")
            a(f"s_mov_b64 exec, {3 if OPM == 3 else 1}")
        a(f"buffer_store_dword v{t0}, v{t1}, s[{SFL}:{SFL+3}], 0 offen sc1")
        a("s_mov_b64 exec, -1")
        a.label("K1_NOZ")
    if TR == 2:
        a(f"s_mov_b32 s{sCs}, {f2u(CSCALE):#x}")
        a(f"s_mov_b32 s{sCs+1}, {f2u(CSCALE):#x}")
    else:
        a(f"v_mov_b32 v{vCs}, {f2u(CSCALE):#x}")
    a(f"v_and_b32 v{t0}, 15, v0")
    a(f"v_lshrrev_b32 v{t1}, 4, v0")
    a(f"s_lshl_b32 s{sE}, s{sKq}, 2")
    a(f"v_lshrrev_b32 v{t2}, 1, v{t1}")
    a(f"v_add_u32 v{t2}, s{sE}, v{t2}")
    a(f"v_xor_b32 v{t2}, v{t2}, v{t0}")
    a(f"v_lshlrev_b32 v{t2}, 4, v{t2}")
    a(f"v_lshl_add_u32 v{t2}, v{t0}, 8, v{t2}")
    a(f"v_and_b32 v{t3}, 1, v{t1}")
    a(f"v_lshl_add_u32 v{t2}, v{t3}, 3, v{t2}")
    a(f"s_mul_i32 s{sE}, s{sQt}, {48*256}")
    a(f"s_add_u32 s{sE}, s{sE}, {XBASE}")
    a(f"v_add_u32 v{QW}, s{sE}, v{t2}")
    a(f"v_xor_b32 v{QW+1}, 32, v{QW}")
    setup2()
    if opt.get("dbgtouch", 0):
        a("s_load_dwordx2 s[82:83], s[0:1], 88")
        a("s_waitcnt lgkmcnt(0)")
        a("v_mov_b32 v162, 0")
        a("global_load_dword v163, v162, s[82:83] sc1")
    if opt.get("latew", 1):
        issueW(sWs, sWg, vWo)
    a(f"s_mov_b32 s{sP}, 0")
    FB = [88, 24]
    def p1_read_list(sp):
        fb = FB[sp]
        L = []
        for ks in range(2):
            for tt in range(2):
                for e in range(2):
                    off = sp * 32768 + ks * 16384 + e * 2048
                    L.append(f"ds_read_b64_tr_b16 {vr(fb + (tt*2+ks)*4 + e*2, 2)}, v{WA+tt} offset:{off}")
            for rt in range(3):
                L.append(f"ds_read_b128 {vr(fb + 16 + (rt*2+ks)*4, 4)}, v{XA + sp*2 + ks} offset:{rt*4096}")
        return L
    def p1_mfma_list(sp):
        fb = FB[sp]
        L = []
        for ks in range(2):
            for rt in range(3):
                for tt in range(2):
                    acc = ACC + (tt*3+rt)*4
                    L.append(f"{MF16} {vr(acc,4)}, {vr(fb+(tt*2+ks)*4,4)}, {vr(fb+16+(rt*2+ks)*4,4)}, {vr(acc,4)}")
        return L
    def p1_reads(sp):
        for x in p1_read_list(sp): a(x)
    def p1_mfma(sp):
        for x in p1_mfma_list(sp): a(x)
    def p1_both(rsp, msp):
        R, M = p1_read_list(rsp), p1_mfma_list(msp)
        if opt.get("fl", 3) & 2:
            per = opt.get("flp", 2)
            for n in range(12):
                a(M[n])
                for x in R[per*n:per*n+per]: a(x)
            return
        for n in range(12):
            a(M[n])
            a(R[n])
            if n in (5, 11): a(R[12 + (n == 11)])
    a("s_barrier")
    P.stamp(2)
    p1_reads(0)
    a("s_waitcnt vmcnt(0) lgkmcnt(0)")
    a("s_branch K1_P1_MID")
    a.label("K1_P1_LOOP")
    a("s_barrier")
    p1_both(0, 1)
    a("s_waitcnt lgkmcnt(0)")
    a.label("K1_P1_MID")
    a("s_barrier")
    p1_both(1, 0)
    a(f"v_xor_b32 v{WA}, 0x10000, v{WA}")
    a(f"v_xor_b32 v{WA+1}, 0x10000, v{WA+1}")
    for v in range(4):
        a(f"v_xor_b32 v{XA+v}, 0x4000, v{XA+v}")
    a(f"s_add_u32 s{sP}, s{sP}, 1")
    a("s_waitcnt lgkmcnt(0)")
    a(f"s_cmp_lt_u32 s{sP}, 8")
    a("s_cbranch_scc1 K1_P1_LOOP")
    a("s_barrier")
    P.stamp(3, force=True)
    if TR == 2:
        for ks in range(8):
            kread(ks)
    p1_mfma(1)
    a("s_nop 7")
    for tt in range(2):
        for rt in range(3):
            acc = ACC + (tt*3+rt)*4
            if TR == 2:
                for r in range(0, 4, 2):
                    a(f"v_pk_mul_f32 {vr(acc+r,2)}, {vr(acc+r,2)}, s[{sCs}:{sCs+1}]")
            else:
              for r in range(4):
                a(f"v_mul_f32 v{acc+r}, v{vCs}, v{acc+r}")
            a(f"v_cvt_pk_bf16_f32 v{acc}, v{acc}, v{acc+1}")
            a(f"v_cvt_pk_bf16_f32 v{acc+1}, v{acc+2}, v{acc+3}")
            a(f"ds_write_b64 v{QW+tt}, {vr(acc,2)} offset:{rt*4096}")
    def zeroO():
        for r in range(0, 64, 2):
            a(f"v_mov_b64 {vr(O+r,2)}, 0")
        a(f"v_mov_b32 v{vL}, 0")
    if TR == 1:
        for ks in range(8):
            kread(ks)
        zeroO()
    if TRDIAG: P.stamp(6, force=True)
    a("s_waitcnt lgkmcnt(0)")
    if TRDIAG: P.stamp(7, force=True)
    a("s_branch K1_JOIN")
    if TOUCH:
        for sp in range(2):
            a.label(f"K1_T1_{sp}")
            a(f"s_cmp_lt_u32 s{sP}, {T2_START//2}")
            a(f"s_cbranch_scc1 K1_T1R_{sp}")
            a(f"s_sub_u32 s{sA}, s{sP}, {T2_START//2}")
            a(f"s_lshl_b32 s{sA}, s{sA}, 13")
            a(f"s_lshl_b32 s{sB}, s{sPair}, 16")
            a(f"s_add_u32 s{sA}, s{sA}, s{sB}")
            srd = SK if sp == 0 else SV
            a(f"buffer_load_dword v{vVoff}, v{vTch}, s[{srd}:{srd+3}], s{sA} offen{NTT}")
            a(f"s_branch K1_T1R_{sp}")

    a.label("K1_LOADER")
    a("s_setprio 3")
    a(f"s_sub_u32 s{sLam}, s{sW}, 8")
    a(f"v_lshrrev_b32 v{t0}, 4, v0")
    a(f"v_and_b32 v{t1}, 15, v0")
    a(f"s_lshl_b32 s{sE}, s{sLam}, 2")
    a(f"v_or_b32 v{t2}, s{sE}, v{t0}")
    a(f"v_xor_b32 v{t3}, v{t1}, v{t2}")
    a(f"v_lshlrev_b32 v{t3}, 4, v{t3}")
    a(f"v_lshl_add_u32 v{vXo}, v{t2}, 11, v{t3}")
    def issueKV_loader(srd, voff, slot, step, uid=None):
        a(f"s_lshl_b32 s{sB}, s{sLam}, 10")
        for e in range(8):
            lo = slot*32768 + (e >> 1)*8192 + (e & 1)*4096
            go = (e >> 1)*65536 + step*8192 + (e & 1)*4096
            a(f"s_add_u32 m0, s{sB}, {lo}")
            a(f"s_add_u32 s{sA}, s{sB}, {go}")
            a(f"buffer_load_dwordx4 v{voff}, s[{srd}:{srd+3}], s{sA} offen{NTD} lds")
    a(f"s_lshl_b32 s{sXs}, s{sLam}, 10")
    a(f"s_add_u32 s{sXs}, s{sXs}, {XBASE}")
    srd1()
    P.stamp(2)
    def nextW():
        a(f"s_add_u32 s{sWs}, s{sWs}, 32768")
        a(f"s_and_b32 s{sWs}, s{sWs}, 0x1ffff")
        a(f"s_add_u32 s{sWg}, s{sWg}, 524288")
        a(f"s_and_b32 s{sWg}, s{sWg}, 0x7fffff")
    def nextX():
        a(f"s_xor_b32 s{sXs}, s{sXs}, 0x4000")
        a(f"s_add_u32 s{sXg}, s{sXg}, 256")
        a(f"s_and_b32 s{sXg}, s{sXg}, 0x7ff")
    issueX(sXs, sXg)
    issueW(sWs, sWg, vWo)
    P.stamp(3)
    a(f"s_add_u32 s{sWs}, s{sWs}, {3*32768}")
    a(f"s_add_u32 s{sWg}, s{sWg}, {3*524288}")
    a(f"s_and_b32 s{sWg}, s{sWg}, 0x7fffff")
    srd2()
    setup2()
    a(f"s_mov_b32 s{sP}, 0")
    a("s_waitcnt vmcnt(0)")
    P.stamp(11)
    a("s_setprio 0")
    a("s_barrier")
    a("s_branch K1_LD_MID")
    a.label("K1_LD_LOOP")
    a("s_waitcnt vmcnt(16)")
    a("s_barrier")
    a.label("K1_LD_MID")
    nextX(); issueX(sXs, sXg)
    issueW(sWs, sWg, vWo); nextW()
    a("s_waitcnt vmcnt(19)")
    a("s_barrier")
    issueW(sWs, sWg, vWo); nextW()
    a(f"s_add_u32 s{sP}, s{sP}, 1")
    a(f"s_cmp_lt_u32 s{sP}, 6")
    a("s_cbranch_scc1 K1_LD_LOOP")
    a("s_waitcnt vmcnt(16)")
    a("s_barrier")
    nextX(); issueX(sXs, sXg)
    issueW(sWs, sWg, vWo)
    a("s_waitcnt vmcnt(19)")
    a("s_barrier")
    issueKV_loader(SK, vKoff, 0, 0)
    a("s_waitcnt vmcnt(16)")
    a("s_barrier")
    issueKV_loader(SV, vVoff, 1, 0)
    a("s_waitcnt vmcnt(16)")
    a("s_barrier")
    issueKV_loader(SK, vKoff, 2, 1)
    if TR: a("s_waitcnt vmcnt(16)")
    a("s_barrier")
    issueKV_loader(SV, vVoff, 3, 1)
    if TR:
        for ks in range(8):
            kread(ks)
        if TR == 1: zeroO()
    else:
        a("s_waitcnt vmcnt(8)")

    a.label("K1_JOIN")
    a("s_waitcnt lgkmcnt(0)")
    a(f"s_lshl_b32 s{sA}, s{sTok+1}, 7")
    a(f"s_xor_b32 s{sTok}, s{sTok}, s{sA}")
    a(f"s_or_b32 s{sTok}, s{sTok}, 1")
    if TOUCH:
        a(f"s_cmp_ge_u32 s{sW}, 4")
        a("s_cbranch_scc1 K1_NOTCH")
        a(f"v_lshlrev_b32 v{vKoff}, 7, v0")
        a.label("K1_NOTCH")
    a("s_barrier")
    if TRDIAG: P.stamp(9, force=True)
    for ks in range(8):
        a(f"v_xor_b32 v{vMx}, {ks << 5:#x}, v{vTb}")
        a(f"ds_read_b128 {vr(Q+4*ks,4)}, v{vMx}")
    if not TR:
        for ks in range(8):
            kread(ks)
    a.label("K1_JOIN2")
    if TR != 1: zeroO()
    a(f"s_mov_b32 s{sDk}, 65536")
    a(f"s_cmp_eq_u32 s{sQt}, {0 if opt.get('fix5', 1) else (1 if OPM == 1 else 2)}")
    a(f"s_cselect_b32 s{sTl}, {opt.get('wotstep', 6)}, 99")
    a("s_waitcnt lgkmcnt(0)")
    P.stamp(4)
    a(f"s_cmp_lt_u32 s{sW}, 4")
    a("s_cbranch_scc1 K1_A_BAR")
    if TR: a("s_waitcnt vmcnt(8)")
    a("s_branch K1_B_BAR")

    def rot(sreg):
        a(f"s_add_u32 s{sreg}, s{sreg}, 65536")
        a(f"s_cmp_ge_u32 s{sreg}, 163840")
        a(f"s_cselect_b32 s{sA}, 163840, 0")
        a(f"s_sub_u32 s{sreg}, s{sreg}, s{sA}")

    LIGHT = opt.get("light", 0)
    def ls(k):
        if LIGHT: a(f"s_memtime s[{84+2*k}:{85+2*k}]")
    def step_body(v):
        isB = (v == "B")
        dodma = isB and not (AB & 1)
        def dma(kind, j):
            if not dodma: return
            if kind == 'V':
                a(f"s_add_u32 m0, s{sVn}, s{sL[j]}")
                a(f"s_add_u32 s{sA}, s{sGstep}, s{sG[j]}")
                a(f"buffer_load_dwordx4 v{vVoff}, s[{SV}:{SV+3}], s{sA} offen{NTD} lds")
            else:
                a(f"s_add_u32 m0, s{sKn}, s{sL[j]}")
                a(f"s_add_u32 s{sA}, s{sGstep}, s{sG[j]}")
                a(f"buffer_load_dwordx4 v{vKoff}, s[{SK}:{SK+3}], s{sA} offen{NTD} lds")
        def vreads(kk):
            if AB & 2:
                for _ in range(8): a("s_nop 0")
                return
            for dt in range(4):
                for e in range(2):
                    a(f"ds_read_b64_tr_b16 {vr(F+(kk*4+dt)*4+2*e,2)}, v{VA} offset:{kk*4096+e*2048+dt*256}")
        a.label(f"K1_{v}_TOP")
        a(f"s_waitcnt {'vmcnt(4) ' if isB else ''}lgkmcnt(0)")
        a.label(f"K1_{v}_BAR")
        if PRIO: a(f"s_setprio {PQ}")
        if v == "B" or True: ls(0)
        a("s_barrier")
        ls(1)
        if opt.get("stepprof", 0) and not isB:
            a("s_memtime s[82:83]")
            a(f"s_lshl_b32 s{sA}, s2, 4")
            a(f"s_add_u32 s{sA}, s{sA}, s{sW}")
            a(f"s_lshl_b32 s{sA}, s{sA}, 6")
            a(f"s_lshl_b32 s{sB}, s{sStep}, 2")
            a(f"s_add_u32 s{sA}, s{sA}, s{sB}")
            a(f"s_add_u32 s{sA}, s{sA}, 262144")
            a(f"v_mov_b32 v{vTb}, s{sA}")
            a("s_waitcnt lgkmcnt(0)")
            a(f"v_mov_b32 v{vMx}, s82")
            a("s_mov_b64 exec, 1")
            a(f"buffer_store_dword v{vMx}, v{vTb}, s[{SFL}:{SFL+3}], 0 offen")
            a("s_mov_b64 exec, -1")
        def vread1(n):
            if AB & 2: return
            kk, dt = n >> 2, n & 3
            for e in range(2):
                a(f"ds_read_b64_tr_b16 {vr(F+n*4+2*e,2)}, v{VA} offset:{kk*4096+e*2048+dt*256}")
        for ks in range(8):
            cin = vr(NM,16) if ks == 0 else vr(S,16)
            a(f"{MF32} {vr(S,16)}, {vr(F+4*ks,4)}, {vr(Q+4*ks,4)}, {cin}")
            if ks < 7: vread1(ks)
            if ks == 0:
                a(f"v_add_u32 v{KA0}, s{sDk}, v{KA0}")
                a(f"v_add_u32 v{KA1}, s{sDk}, v{KA1}")
                a(f"s_mov_b32 s{sDk}, s{sKc}")
            if ks == 2:
                rot(sKc)
            if ks == 4:
                a(f"s_sub_u32 s{sDk}, s{sKc}, s{sDk}")
                a(f"s_mov_b32 s{sDv}, s{sVc}")
                a(f"s_add_u32 s{sVc}, s{sVc}, 65536")
                a(f"s_cmp_ge_u32 s{sVc}, 163840")
            if ks == 4:
                a(f"s_cselect_b32 s{sA}, 163840, 0")
                a(f"s_sub_u32 s{sVc}, s{sVc}, s{sA}")
            if ks in (1, 3, 5, 6):
                dma('K', {1: 0, 3: 1, 5: 2, 6: 3}[ks])
        ls(2)
        if PRIO and PS != PQ: a(f"s_setprio {PS}")
        vread1(7)
        a(f"s_sub_u32 s{sDv}, s{sVc}, s{sDv}")
        a(f"v_add_u32 v{VA}, s{sDv}, v{VA}")
        if not isB and WOT:
            a(f"s_cmp_eq_u32 s{sStep}, s{sTl}")
            a("s_cbranch_scc1 K1_A_TOUCH")
            a.label("K1_A_TOUCHR")
            a("s_nop 4")
        else:
            a("s_nop 6")
        a(f"s_cmp_lt_u32 s{sStep}, s{sSafe}")
        a(f"s_cbranch_scc1 K1_{v}_MAX")
        a.label(f"K1_{v}_CONT")
        ls(3)
        for k in range(8):
            if not AB & 8:
                a(f"v_exp_f32 v{S+2*k}, v{S+2*k}")
                a(f"v_exp_f32 v{S+2*k+1}, v{S+2*k+1}")
            if k >= 1 and not AB & 8:
                kk = k - 1
                a(f"v_add_f32 v{vL}, v{vL}, v{S+2*kk}")
                a(f"v_add_f32 v{vL}, v{vL}, v{S+2*kk+1}")
                a(f"v_cvt_pk_bf16_f32 v{S+kk}, v{S+2*kk}, v{S+2*kk+1}")
        a(f"v_add_f32 v{vL}, v{vL}, v{S+14}")
        a(f"v_add_f32 v{vL}, v{vL}, v{S+15}")
        a(f"v_cvt_pk_bf16_f32 v{S+7}, v{S+14}, v{S+15}")
        ls(4)
        if PRIO and PP != PS: a(f"s_setprio {PP}")
        if not LIGHT: a("s_waitcnt lgkmcnt(0)")
        else: a("s_waitcnt lgkmcnt(1)")
        for kk in range(2):
            for dt in range(4):
                n = kk*4 + dt
                a(f"{MF32} {vr(O+16*dt,16)}, {vr(F+(kk*4+dt)*4,4)}, {vr(S+4*kk,4)}, {vr(O+16*dt,16)}")
                if not AB & 4: kread(n)
                if n in (0, 1, 2, 3):
                    dma('V', n)
                if n == 4:
                    a(f"s_add_u32 s{sStep}, s{sStep}, 1")
                if n == 2 and isB:
                    pass
                if n == 4 and isB:
                    rot(sVn)
                if n == 5 and isB:
                    rot(sKn)
                if n == 6 and isB:
                    a(f"s_add_u32 s{sGstep}, s{sGstep}, 8192")
                    if NS2 != 8: a(f"s_and_b32 s{sGstep}, s{sGstep}, 0xffff")
        ls(5)
        if LIGHT:
            a(f"s_cmp_lg_u32 s{sStep}, 41")
            a(f"s_cbranch_scc1 K1_{v}_NOCOPY")
            a("s_waitcnt lgkmcnt(0)")
            for k in range(6):
                a(f"s_mov_b32 s{96+k}, s{84+2*k}")
            a.label(f"K1_{v}_NOCOPY")
        if isB:
            a(f"s_cmp_lt_u32 s{sStep}, {NS2-2}")
            a("s_cbranch_scc1 K1_B_TOP")
            a(f"s_waitcnt vmcnt({4 if opt.get('fix5', 1) else 0})")
            a("s_branch K1_A_TOP")
        elif opt.get('fix5', 1):
            a(f"s_cmp_ge_u32 s{sStep}, {NS2}")
            a("s_cbranch_scc1 K1_P2_END")
            a(f"s_cmp_lt_u32 s{sW}, 4")
            a("s_cbranch_scc1 K1_A_TOP")
            a("s_waitcnt vmcnt(0)")
            a("s_branch K1_A_TOP")
        else:
            a(f"s_cmp_lt_u32 s{sStep}, {NS2}")
            a("s_cbranch_scc1 K1_A_TOP")
            a("s_branch K1_P2_END")
        a.label(f"K1_{v}_MAX")
        a(f"v_max3_f32 v{vMx}, v{S+0}, v{S+1}, v{S+2}")
        a(f"v_max3_f32 v{vTb}, v{S+3}, v{S+4}, v{S+5}")
        a(f"v_max3_f32 v{vMx}, v{vMx}, v{S+6}, v{S+7}")
        a(f"v_max3_f32 v{vTb}, v{vTb}, v{S+8}, v{S+9}")
        a(f"v_max3_f32 v{vMx}, v{vMx}, v{S+10}, v{S+11}")
        a(f"v_max3_f32 v{vTb}, v{vTb}, v{S+12}, v{S+13}")
        a(f"v_max3_f32 v{vMx}, v{vMx}, v{S+14}, v{S+15}")
        a(f"v_max_f32 v{vMx}, v{vMx}, v{vTb}")
        a(f"v_cmp_lt_f32 vcc, s{sThr}, v{vMx}")
        a(f"s_cbranch_vccz K1_{v}_CONT")
        a.label(f"K1_{v}_RARE")
        a(f"v_mov_b32 v{vTb}, v{vMx}")
        a("s_nop 1")
        a(f"v_permlane32_swap_b32 v{vMx}, v{vTb}")
        a(f"v_max_f32 v{vMx}, v{vMx}, v{vTb}")
        a(f"v_max_f32 v{vMx}, s{sFloor}, v{vMx}")
        a(f"v_max_f32 v{vTb}, 0, v{vMx}")
        a(f"v_sub_f32 v{vTb}, 0, v{vTb}")
        a(f"v_exp_f32 v{vTb}, v{vTb}")
        a(f"s_mov_b32 s{sThr}, {f2u(8.0):#x}")
        a(f"s_mov_b32 s{sFloor}, 0")
        for r in range(16):
            a(f"v_sub_f32 v{S+r}, v{S+r}, v{vMx}")
        a(f"v_sub_f32 v{NM}, v{NM}, v{vMx}")
        for r in range(1, 16):
            a(f"v_mov_b32 v{NM+r}, v{NM}")
        a(f"s_cmp_eq_u32 s{sStep}, 0")
        a(f"s_cbranch_scc1 K1_{v}_CONT")
        a(f"v_mul_f32 v{vL}, v{vL}, v{vTb}")
        for r in range(64):
            a(f"v_mul_f32 v{O+r}, v{O+r}, v{vTb}")
        a(f"s_branch K1_{v}_CONT")

    step_body("B")
    step_body("A")
    if WOT:
        a.label("K1_A_TOUCH")
        a(f"s_cmp_eq_u32 s{sBr}, 0")
        a(f"s_cselect_b64 s[{STCH}:{STCH+1}], s[{SWOP}:{SWOP+1}], s[50:51]")
        a(f"s_mov_b32 s{STCH+2}, 8388608")
        a(f"v_mbcnt_lo_u32_b32 v{vKoff}, -1, 0")
        a(f"v_mbcnt_hi_u32_b32 v{vKoff}, -1, v{vKoff}")
        if OPM == 1:
            a(f"v_and_b32 v{vVoff}, 3, v{vKoff}")
            a(f"v_lshrrev_b32 v{vKoff}, 2, v{vKoff}")
            a(f"v_lshlrev_b32 v{vKoff}, 11, v{vKoff}")
            a(f"v_lshl_add_u32 v{vKoff}, v{vVoff}, 7, v{vKoff}")
            a(f"s_lshr_b32 s{sA}, s2, 3")
            a(f"s_lshl_b32 s{sA}, s{sA}, 2")
            a(f"s_add_u32 s{sA}, s{sA}, s{sKq}")
            a(f"s_lshl_b32 s{sA}, s{sA}, 16")
            a(f"s_lshl_b32 s{sB}, s{sKvh}, 9")
            a(f"s_add_u32 s{sA}, s{sA}, s{sB}")
            a(f"buffer_load_dword v{vVoff}, v{vKoff}, s[{STCH}:{STCH+3}], s{sA} offen{NTW}")
            a(f"s_add_u32 s{sA}, s{sA}, 32768")
            a(f"buffer_load_dword v{vVoff}, v{vKoff}, s[{STCH}:{STCH+3}], s{sA} offen{NTW}")
        else:
            a(f"v_lshlrev_b32 v{vKoff}, 7, v{vKoff}")
            a(f"s_lshr_b32 s{sA}, s2, 3")
            a(f"s_lshl_b32 s{sA}, s{sA}, 2")
            a(f"s_add_u32 s{sA}, s{sA}, s{sKq}")
            a(f"s_lshl_b32 s{sA}, s{sA}, 14")
            a(f"s_lshl_b32 s{sB}, s{sKvh}, 21")
            a(f"s_add_u32 s{sA}, s{sA}, s{sB}")
            a(f"buffer_load_dword v{vVoff}, v{vKoff}, s[{STCH}:{STCH+3}], s{sA} offen{NTW}")
            a(f"s_add_u32 s{sA}, s{sA}, 8192")
            a(f"buffer_load_dword v{vVoff}, v{vKoff}, s[{STCH}:{STCH+3}], s{sA} offen{NTW}")
        a("s_branch K1_A_TOUCHR")

    a.label("K1_REDO")
    a("s_waitcnt vmcnt(0) lgkmcnt(0)")
    a(f"v_mbcnt_lo_u32_b32 v0, -1, 0")
    a(f"v_mbcnt_hi_u32_b32 v0, -1, v0")
    a("s_barrier")
    patterns()
    _t = (8, 9, 10, 11, 12)
    setup2()
    a(f"s_mov_b32 s{sSafe}, 8")
    a(f"s_cmp_lt_u32 s{sW}, 8")
    a("s_cbranch_scc1 K1_REDO2")
    issueKV_loader(SK, vKoff, 0, 0, "r0")
    issueKV_loader(SV, vVoff, 1, 0, "r1")
    issueKV_loader(SK, vKoff, 2, 1, "r2")
    issueKV_loader(SV, vVoff, 3, 1, "r3")
    a("s_waitcnt vmcnt(8)")
    a.label("K1_REDO2")
    a("s_barrier")
    for ks in range(8):
        kread(ks)
    if TR == 1: zeroO()
    a("s_branch K1_JOIN2")

    a.label("K1_P2_END")
    P.stamp(5)
    FUSED = opt.get("fused", 1)
    SC1 = " sc1" if FUSED else ""
    t0, t1, t2, t3, t4 = NM+2, NM+3, NM+4, NM+5, NM+6
    vLane = NM+7
    FASTC = opt.get("safe", 0) == 0
    STAT, EX, STG = 32768, 36864, (135168 if FASTC else 114688)
    BADF = STAT + 3072
    if FUSED:
        a("s_load_dwordx2 s[48:49], s[0:1], 80")
    a(f"v_mbcnt_lo_u32_b32 v{vLane}, -1, 0")
    a(f"v_mbcnt_hi_u32_b32 v{vLane}, -1, v{vLane}")
    def staging_addr():
        a(f"v_and_b32 v{t2}, 15, v{vLane}")
        a(f"s_lshl_b32 s{sA}, s{sKq}, 2")
        a(f"v_xor_b32 v{t2}, s{sA}, v{t2}")
        a(f"v_lshlrev_b32 v{t2}, 4, v{t2}")
        a(f"v_and_b32 v{t0}, 31, v{vLane}")
        a(f"v_lshl_add_u32 v{t2}, v{t0}, 8, v{t2}")
        a(f"v_lshrrev_b32 v{t0}, 5, v{vLane}")
        a(f"v_lshl_add_u32 v{t2}, v{t0}, 3, v{t2}")
        a(f"s_lshl_b32 s{sA}, s{sQt}, 13")
        a(f"s_add_u32 s{sA}, s{sA}, {STG}")
        a(f"v_add_u32 v{t2}, s{sA}, v{t2}")
    def staging_write(R):
        PK = F
        for g in range(4):
            a(f"v_cvt_pk_bf16_f32 v{PK+2*g}, v{R+4*g}, v{R+4*g+1}")
            a(f"v_cvt_pk_bf16_f32 v{PK+2*g+1}, v{R+4*g+2}, v{R+4*g+3}")
            a(f"v_xor_b32 v{t0}, {g << 4}, v{t2}")
            a(f"ds_write_b64 v{t0}, {vr(PK+2*g,2)}")
    if FASTC:
        a(f"s_cmp_lg_u32 s{sSafe}, 0")
        a("s_cbranch_scc1 K1_COMB_GEN")
        a(f"v_mov_b32 v{t1}, v{vL}")
        a(f"v_lshlrev_b32 v{t2}, 4, v{vLane}")
        a(f"s_mul_i32 s{sB}, s{sQt}, {16*2048}")
        a(f"v_permlane32_swap_b32 v{vL}, v{t1}")
        a(f"s_lshl_b32 s{sA}, s{sKq}, 11")
        a(f"s_add_u32 s{sA}, s{sA}, s{sB}")
        a(f"s_add_u32 s{sA}, s{sA}, {EX}")
        a(f"v_add_f32 v{vL}, v{vL}, v{t1}")
        a(f"v_add_u32 v{t1}, s{sA}, v{t2}")
        a(f"v_cmp_ngt_f32 s[82:83], {f2u(2.0**20):#x}, v{vL}" if False else f"v_cmp_ngt_f32 vcc, {f2u(2.0**20):#x}, v{vL}")
        a(f"v_and_b32 v{t0}, 31, v{vLane}")
        a("s_nop 0")
        a(f"s_mov_b64 s[82:83], vcc")
        a(f"v_cmp_nlt_f32 vcc, {f2u(2.0**-20):#x}, v{vL}")
        a("s_nop 1")
        a(f"s_or_b64 vcc, vcc, s[82:83]")
        a(f"s_cmp_lg_u64 vcc, 0")
        a(f"s_cselect_b32 s{sD}, 1, 0")
        a(f"v_lshlrev_b32 v{t0}, 4, v{t0}")
        a(f"s_lshl_b32 s{sA}, s{sQt}, 9")
        a(f"s_add_u32 s{sA}, s{sA}, {STAT}")
        a(f"v_add_u32 v{t0}, s{sA}, v{t0}")
        a(f"s_lshl_b32 s{sA}, s{sKq}, 2")
        a(f"v_add_u32 v{t3}, s{sA}, v{t0}")
        a(f"ds_write_b32 v{t3}, v{vL}")
        a(f"s_lshl_b32 s{sA}, s{sW}, 2")
        a(f"s_add_u32 s{sA}, s{sA}, {BADF}")
        a(f"v_mov_b32 v{t3}, s{sA}")
        a(f"v_mov_b32 v{t4}, s{sD}")
        a(f"ds_write_b32 v{t3}, v{t4}")
        a("s_waitcnt lgkmcnt(0)")
        for dt in range(4):
            pk = F + 8*dt
            for j in range(8):
                a(f"v_cvt_pk_bf16_f32 v{pk+j}, v{O+16*dt+2*j}, v{O+16*dt+2*j+1}")
            for g2 in range(2):
                a(f"ds_write_b128 v{t1}, {vr(pk+4*g2,4)} offset:{dt*8192 + g2*1024}")
        A1, A2 = S, S+4
        i_, h_ = NM+8, NM+9
        a(f"v_and_b32 v{i_}, 31, v{vLane}")
        a(f"v_lshrrev_b32 v{h_}, 5, v{vLane}")
        a(f"v_bfe_u32 v{t3}, v{i_}, 2, 1")
        a(f"v_cmp_eq_u32 vcc, v{t3}, v{h_}")
        a(f"v_and_b32 v{t3}, 1, v{i_}")
        a(f"v_lshlrev_b32 v{t3}, 4, v{t3}")
        a(f"v_lshlrev_b32 v{t3}, v{t3}, {0x3f80:#x}" if False else f"v_mov_b32 v{t4}, {0x3f80:#x}")
        a(f"v_lshlrev_b32 v{t4}, v{t3}, v{t4}")
        a(f"v_cndmask_b32 v{t4}, 0, v{t4}, vcc")
        a(f"v_bfe_u32 v{t3}, v{i_}, 1, 1")
        a(f"v_lshrrev_b32 v{h_}, 3, v{i_}")
        a(f"v_lshl_or_b32 v{t3}, v{h_}, 1, v{t3}")
        for r in range(8):
            a(f"v_cmp_eq_u32 vcc, {r}, v{t3}")
            a(f"v_cndmask_b32 v{A1+r}, 0, v{t4}, vcc")
        a(f"s_lshl_b32 s{sA}, s{sKq}, 13")
        a(f"s_add_u32 s{sA}, s{sA}, s{sB}")
        a(f"s_add_u32 s{sA}, s{sA}, {EX}")
        a(f"v_add_u32 v{t1}, s{sA}, v{t2}")
        a(f"v_mov_b32 v{t3}, {BADF}")
        if CDIAG: P.stamp(2, force=2)
        a("s_waitcnt lgkmcnt(0)")
        if CDIAG: P.stamp(3, force=2)
        a("s_barrier")
        if CDIAG: P.stamp(4, force=2)
        for j in range(3):
            a(f"ds_read_b128 {vr(F+4*j,4)}, v{t3} offset:{16*j}")
        a(f"ds_read_b128 {vr(F+12,4)}, v{t0}")
        TT = O
        for src in range(4):
            for g2 in range(2):
                a(f"ds_read_b128 {vr(TT+8*src+4*g2,4)}, v{t1} offset:{src*2048+g2*1024}")
        staging_addr()
        a("s_waitcnt lgkmcnt(8)")
        for j in range(0, 12, 3):
            a(f"v_or3_b32 v{F+j}, v{F+j}, v{F+j+1}, v{F+j+2}")
        a(f"v_or3_b32 v{F}, v{F}, v{F+3}, v{F+6}")
        a(f"v_or_b32 v{F}, v{F}, v{F+9}")
        a(f"v_cmp_ne_u32 vcc, 0, v{F}")
        a("s_cbranch_vccnz K1_REDO")
        R = S + 8 if False else O + 32
        a(f"v_add_f32 v{F+12}, v{F+12}, v{F+13}")
        a(f"v_add_f32 v{F+14}, v{F+14}, v{F+15}")
        a(f"v_add_f32 v{F+12}, v{F+12}, v{F+14}")
        a(f"v_rcp_f32 v{F+12}, v{F+12}")
        for n in range(8):
            src, g2 = n >> 1, n & 1
            a(f"s_waitcnt lgkmcnt({7-n})")
            a(f"{MF32} {vr(R,16)}, {vr(A1+4*g2,4)}, {vr(TT+8*src+4*g2,4)}, {'0' if n == 0 else vr(R,16)}")
        a("s_nop 15")
        a("s_nop 3")
        if CDIAG: P.stamp(6, force=2)
        for r in range(16):
            a(f"v_mul_f32 v{R+r}, v{R+r}, v{F+12}")
        staging_write(R)
        a("s_branch K1_COMB_DONE")
        a.label("K1_COMB_GEN")
    a(f"v_mov_b32 v{t1}, v{vL}")
    ST = NM + 8
    a(f"v_sub_f32 v{ST}, 0, v{NM}")
    a(f"v_and_b32 v{t0}, 31, v{vLane}")
    a(f"v_permlane32_swap_b32 v{vL}, v{t1}")
    a(f"v_add_f32 v{ST+1}, v{vL}, v{t1}")
    a(f"v_cmp_ngt_f32 vcc, {f2u(2.0**20):#x}, v{ST+1}")
    a(f"s_lshl_b32 s{sA}, s{sW}, 2")
    a(f"s_add_u32 s{sA}, s{sA}, {BADF}")
    a(f"v_mov_b32 v{t3}, s{sA}")
    a(f"s_cmp_lg_u64 vcc, 0")
    a(f"s_cselect_b32 s{sA}, 1, 0")
    a(f"s_cmp_eq_u32 s{sSafe}, 1")
    a(f"s_cselect_b32 s{sA}, s{sA}, 0")
    a(f"v_mov_b32 v{t4}, s{sA}")
    a(f"ds_write_b32 v{t3}, v{t4}")
    a(f"v_lshlrev_b32 v{t0}, 3, v{t0}")
    a(f"s_lshl_b32 s{sA}, s{sQt}, 10")
    a(f"s_add_u32 s{sA}, s{sA}, {STAT}")
    a(f"v_add_u32 v{t0}, s{sA}, v{t0}")
    a(f"s_lshl_b32 s{sB}, s{sKq}, 8")
    a(f"v_add_u32 v{t1}, s{sB}, v{t0}")
    R = S
    a(f"v_lshlrev_b32 v{t2}, 4, v{vLane}")
    a(f"s_mul_i32 s{sB}, s{sQt}, {4*3*2048}")
    a(f"s_add_u32 s{sB}, s{sB}, {EX}")
    a(f"ds_write_b64 v{t1}, {vr(ST,2)}")
    a("s_waitcnt lgkmcnt(0)")
    for dt in range(4):
        a(f"s_cmp_eq_u32 s{sKq}, {dt}")
        a(f"s_cbranch_scc1 K1_OWN{dt}")
        a(f"s_sub_u32 s{sA}, s{sKq}, {dt+1}")
        a(f"s_and_b32 s{sA}, s{sA}, 3")
        a(f"s_lshl_b32 s{sA}, s{sA}, 11")
        a(f"s_add_u32 s{sA}, s{sA}, s{sB}")
        a(f"v_add_u32 v{t1}, s{sA}, v{t2}")
        pk = F + 8*dt
        for j in range(8):
            a(f"v_cvt_pk_bf16_f32 v{pk+j}, v{O+16*dt+2*j}, v{O+16*dt+2*j+1}")
        for g2 in range(2):
            a(f"ds_write_b128 v{t1}, {vr(pk+4*g2,4)} offset:{dt*3*2048 + g2*1024}")
        a(f"s_branch K1_NXT{dt}")
        a.label(f"K1_OWN{dt}")
        for r in range(0, 16, 2):
            a(f"v_mov_b64 {vr(R+r,2)}, {vr(O+16*dt+r,2)}")
        a.label(f"K1_NXT{dt}")
    a("s_waitcnt lgkmcnt(0)")
    a("s_barrier")
    a(f"v_mov_b32 v{t1}, {BADF}")
    for j in range(3):
        a(f"ds_read_b128 {vr(F+4*j,4)}, v{t1} offset:{16*j}")
    for rk in range(3):
        a(f"s_add_u32 s{sA}, s{sKq}, {rk+1}")
        a(f"s_and_b32 s{sA}, s{sA}, 3")
        a(f"s_lshl_b32 s{sA}, s{sA}, 8")
        a(f"v_add_u32 v{t1}, s{sA}, v{t0}")
        a(f"ds_read_b64 {vr(ST+2+2*rk,2)}, v{t1}")
    a(f"s_mul_i32 s{sA}, s{sKq}, {3*2048}")
    a(f"s_add_u32 s{sA}, s{sA}, s{sB}")
    a(f"v_add_u32 v{t1}, s{sA}, v{t2}")
    TT = O
    for rk in range(3):
        for g2 in range(2):
            a(f"ds_read_b128 {vr(TT+8*rk+4*g2,4)}, v{t1} offset:{rk*2048+g2*1024}")
    staging_addr()
    a("s_waitcnt lgkmcnt(6)")
    for j in range(0, 12, 3):
        a(f"v_or3_b32 v{F+j}, v{F+j}, v{F+j+1}, v{F+j+2}")
    a(f"v_or3_b32 v{F}, v{F}, v{F+3}, v{F+6}")
    a(f"v_or_b32 v{F}, v{F}, v{F+9}")
    a(f"v_cmp_ne_u32 vcc, 0, v{F}")
    a("s_cbranch_vccnz K1_REDO")
    mf = t3
    a(f"v_max3_f32 v{mf}, v{ST}, v{ST+2}, v{ST+4}")
    a(f"v_max_f32 v{mf}, v{mf}, v{ST+6}")
    for j in range(4):
        a(f"v_sub_f32 v{ST+2*j}, v{ST+2*j}, v{mf}")
    for j in range(4):
        a(f"v_exp_f32 v{ST+2*j}, v{ST+2*j}")
    a("s_nop 0")
    a(f"v_mul_f32 v{t4}, v{ST}, v{ST+1}")
    for j in range(1, 4):
        a(f"v_fma_f32 v{t4}, v{ST+2*j}, v{ST+2*j+1}, v{t4}")
    a(f"v_rcp_f32 v{t4}, v{t4}")
    a("s_nop 0")
    for j in range(4):
        a(f"v_mul_f32 v{ST+2*j}, v{ST+2*j}, v{t4}")
    for r in range(0, 16, 2):
        a(f"v_pk_mul_f32 {vr(R+r,2)}, {vr(R+r,2)}, {vr(ST,2)} op_sel_hi:[1,0]")
    U = O+32
    for rk in range(3):
        a(f"s_waitcnt lgkmcnt({4-2*rk})")
        for j in range(8):
            p = TT + 8*rk + j
            u = U + 2*(j & 3)
            a(f"v_lshlrev_b32 v{u}, 16, v{p}")
            a(f"v_and_b32 v{u+1}, 0xffff0000, v{p}")
            a(f"v_pk_fma_f32 {vr(R+2*j,2)}, {vr(u,2)}, {vr(ST+2+2*rk,2)}, {vr(R+2*j,2)} op_sel_hi:[1,0,1]")
    PK = F
    staging_write(R)
    if FASTC: a.label("K1_COMB_DONE")
    if not FUSED:
        a(f"v_lshrrev_b32 v{t0}, 4, v{vLane}")
        a(f"s_lshl_b32 s{sA}, s{sW}, 3")
        a(f"v_add_u32 v{t0}, s{sA}, v{t0}")
        a(f"v_and_b32 v{t1}, 15, v{vLane}")
        a(f"v_lshlrev_b32 v{t3}, 8, v{t0}")
        a(f"v_lshl_add_u32 v{t3}, v{t1}, 4, v{t3}")
        a(f"v_add_u32 v{t3}, {STG}, v{t3}")
        a(f"v_and_b32 v{t4}, 15, v{t0}")
        a(f"v_xor_b32 v{t1}, v{t1}, v{t4}")
        a(f"s_cmp_ge_u32 s{sW}, 6")
        a(f"s_cselect_b32 s{sA}, {256 - 48*8192}, 0")
        a(f"v_lshlrev_b32 v{t0}, 13, v{t0}")
        a(f"v_add_u32 v{t0}, s{sA}, v{t0}")
        a(f"v_lshl_add_u32 v{t4}, v{t1}, 4, v{t0}")
        a(f"v_xor_b32 v{t1}, 4, v{t1}")
        a(f"v_lshl_add_u32 v{t0}, v{t1}, 4, v{t0}")
        a(f"v_add_u32 v{t0}, {4*8192}, v{t0}")
        a("s_waitcnt lgkmcnt(0)")
        a("s_barrier")
        a(f"ds_read_b128 {vr(PK,4)}, v{t3}")
        a(f"ds_read_b128 {vr(PK+4,4)}, v{t3} offset:1024")
        a("s_waitcnt lgkmcnt(1)")
        a(f"buffer_store_dwordx4 {vr(PK,4)}, v{t4}, s[{SO}:{SO+3}], 0 offen")
        a("s_waitcnt lgkmcnt(0)")
        a(f"buffer_store_dwordx4 {vr(PK+4,4)}, v{t0}, s[{SO}:{SO+3}], 0 offen")
        P.stamp(6)
        if PROF: a("s_waitcnt vmcnt(0)")
        P.stamp(7)
        P.stamp(8, real=True)
        if LIGHT:
            for k in range(6):
                a(f"s_mov_b32 s{84+2+k}, s{96+k}")
        P.dump(52, sW, 64 << 20, 12)
        if opt.get("padto", 0):
            a.label("K1_PAD")
            a("s_memrealtime s[82:83]")
            a("s_waitcnt lgkmcnt(0)")
            a("s_sub_u32 s82, s82, s100")
            a(f"s_cmp_lt_u32 s82, {opt['padto']}")
            a("s_cbranch_scc1 K1_PAD")
        a.label("K1_END")
        a("s_endpgm")
        return NV
    a(f"v_mov_b32 v0, v{vLane}")
    if OPM == 1:
        a(f"s_cmp_ge_u32 s{sW}, 8")
        a(f"s_cselect_b32 s{sA}, 4, 0")
        a(f"s_sub_u32 s{sE}, s{sW}, s{sA}")
        a(f"s_mul_i32 s{sE}, s{sE}, 12")
    else:
        a(f"s_mul_i32 s{sE}, s{sW}, 12")
    a(f"v_lshrrev_b32 v{t0}, 4, v0")
    a(f"v_and_b32 v{t1}, 15, v0")
    a(f"v_lshlrev_b32 v{t3}, 8, v{t0}")
    a(f"v_lshl_add_u32 v{t3}, v{t1}, 4, v{t3}")
    a(f"s_lshl_b32 s{sA}, s{sE}, 8")
    a(f"s_add_u32 s{sA}, s{sA}, {STG}")
    a(f"v_add_u32 v{t3}, s{sA}, v{t3}")
    a(f"v_xor_b32 v{t1}, v{t1}, v{t0}")
    a(f"v_lshlrev_b32 v{t0}, 13, v{t0}")
    a("s_waitcnt lgkmcnt(0)")
    if CDIAG: P.stamp(7, force=2)
    a("s_barrier")
    if CDIAG: P.stamp(9, force=2)
    if OPM == 1:
        a(f"s_cmp_lt_u32 s{sQt}, 1")
        a("s_cbranch_scc1 K1_STORE")
        a(f"s_cmp_lt_u32 s{sQt}, 2")
        a("s_cbranch_scc1 OP_LOADER0")
    else:
        a(f"s_cmp_ge_u32 s{sW}, 8")
        a("s_cbranch_scc1 O3_LOADER")
    a.label("K1_STORE")
    for j in range(3):
        a(f"ds_read_b128 {vr(PK+4*j,4)}, v{t3} offset:{j*1024}")
    a(f"s_cmp_ge_u32 s{sE}, 48")
    a(f"s_cselect_b32 s{sB}, {256 - 48*8192}, 0")
    for j in range(3):
        a(f"s_add_u32 s{sA}, s{sE}, {4*j}")
        a(f"s_and_b32 s{sD}, s{sA}, 12")
        a(f"v_xor_b32 v{t4}, s{sD}, v{t1}")
        a(f"v_lshl_add_u32 v{t4}, v{t4}, 4, v{t0}")
        a(f"s_lshl_b32 s{sA}, s{sA}, 13")
        a(f"s_add_u32 s{sA}, s{sA}, s{sB}")
        a(f"s_waitcnt lgkmcnt({2-j})")
        a(f"buffer_store_dwordx4 {vr(PK+4*j,4)}, v{t4}, s[{SO}:{SO+3}], s{sA} offen{'' if opt.get('loc', 0) & 1 else ' sc1'}")
    P.stamp(6)
    if CDIAG: P.stamp(10, force=2)
    a("s_waitcnt vmcnt(0)")
    a("s_barrier")
    if CDIAG: P.stamp(11, force=2)
    P.stamp(7)
    if OPM == 1:
        outproj(a, opt, P, fused=True)
    else:
        outproj3(a, opt, P)
    a.label("K1_END")
    a("s_endpgm")
    return NV

def kernel2(a, opt):
    a.label("k2_kernel")
    a("s_cmp_ge_u32 s2, 256")
    a("s_cbranch_scc1 K2_END")
    P = Prof(a, 64, 62, 40)
    P.init(12)
    P.stamp(0, real=True)
    P.stamp(1)
    a("s_load_dwordx2 s[36:37], s[0:1], 32")
    a("s_load_dwordx2 s[50:51], s[0:1], 72")
    a("s_load_dwordx2 s[48:49], s[0:1], 80")
    a("s_load_dwordx2 s[52:53], s[0:1], 96")
    a("v_lshrrev_b32 v1, 6, v0")
    a("v_and_b32 v0, 63, v0")
    a("v_readfirstlane_b32 s4, v1")
    a("s_and_b32 s5, s2, 3")
    a("s_bfe_u32 s6, s2, 0x10002")
    a("s_lshr_b32 s7, s2, 5")
    a("s_bfe_u32 s3, s2, 0x20003")
    a("s_waitcnt lgkmcnt(0)")
    nv = outproj(a, opt, P, fused=False)
    a.label("K2_END")
    a("s_endpgm")
    return nv

def outproj3(a, opt, P):
    F1L, SEC = flaglayout(opt)
    sW = 4
    SX, SWO, SO, SFL, SPX = 8, 12, 16, 28, 24
    sA, sB, sD, sLam = 20, 21, 22, 23
    sP, sSl, sSlX, sWg, sXg, sT = 32, 33, 34, 35, 38, 39
    NS, STG = 5, 28672
    PXOFF = 16 << 20
    t0, t1, t2, t3, t4 = 8, 9, 10, 11, 12
    WA, XA = 2, 14
    FBUF = [24, 64]
    ACC = 104
    RX = 24
    vWo, vXo, vPoll, vPa = 20, 21, 22, 23
    a(f"s_cmp_lg_u32 s{sW}, 0")
    a("s_cbranch_scc1 O3_NOFLAG")
    a(f"s_lshl_b32 s{sA}, s46, 2")
    a(f"s_add_u32 s{sA}, s{sA}, s45")
    a(f"v_mov_b32 v{t0}, s96")
    if F1L:
        a(f"v_lshl_add_u32 v{t1}, v0, 7, s{sA}")
        a("s_mov_b64 exec, 0xff")
    else:
        a(f"v_mov_b32 v{t1}, s{sA}")
        a("s_mov_b64 exec, 1")
    a(f"buffer_store_dword v{t0}, v{t1}, s[{SFL}:{SFL+3}], 0 offen{'' if opt.get('loc', 0) & 2 else ' sc1'}")
    a("s_mov_b64 exec, -1")
    a.label("O3_NOFLAG")
    a(f"v_bfe_u32 v{t0}, v0, 2, 2")
    a(f"v_lshrrev_b32 v{t1}, 4, v0")
    a(f"v_and_b32 v{t2}, 1, v{t1}")
    a(f"v_lshl_or_b32 v{t2}, v{t2}, 2, v{t0}")
    a(f"s_and_b32 s{sA}, s{sW}, 3")
    a(f"s_lshl_b32 s{sA}, s{sA}, 1")
    a(f"v_xor_b32 v{t2}, s{sA}, v{t2}")
    a(f"v_lshl_add_u32 v{t3}, v{t1}, 3, v{t0}")
    a(f"v_lshlrev_b32 v{t3}, 8, v{t3}")
    a(f"v_lshl_add_u32 v{t3}, v{t2}, 5, v{t3}")
    a(f"v_and_b32 v{t4}, 3, v0")
    a(f"v_lshl_add_u32 v{WA}, v{t4}, 3, v{t3}")
    a(f"v_xor_b32 v{WA+1}, 32, v{WA}")
    a(f"v_and_b32 v{t0}, 15, v0")
    a(f"v_lshrrev_b32 v{t2}, 1, v{t0}")
    a(f"v_xor_b32 v{t2}, v{t1}, v{t2}")
    a(f"v_lshlrev_b32 v{t2}, 4, v{t2}")
    a(f"v_lshl_add_u32 v{t2}, v{t0}, 7, v{t2}")
    a(f"s_lshr_b32 s{sA}, s{sW}, 2")
    a(f"s_mul_i32 s{sA}, s{sA}, 6144")
    a(f"s_add_u32 s{sA}, s{sA}, 16384")
    a(f"v_add_u32 v{XA}, s{sA}, v{t2}")
    a(f"v_xor_b32 v{XA+1}, 64, v{XA}")
    for r in range(0, 24, 2):
        a(f"v_mov_b64 {vr(ACC+r,2)}, 0")
    def read_list(buf):
        fb = FBUF[buf]
        L = []
        for ks in range(2):
            for tt in range(2):
                for e in range(2):
                    L.append(f"ds_read_b64_tr_b16 {vr(fb + (tt*2+ks)*4 + e*2, 2)}, v{WA+tt} offset:{ks*8192 + e*1024}")
            for rt in range(3):
                L.append(f"ds_read_b128 {vr(fb + 16 + (rt*2+ks)*4, 4)}, v{XA+ks} offset:{rt*2048}")
        return L
    def mfma_list(buf):
        fb = FBUF[buf]
        L = []
        for ks in range(2):
            for rt in range(3):
                for tt in range(2):
                    acc = ACC + (tt*3+rt)*4
                    L.append(f"{MF16} {vr(acc,4)}, {vr(fb+(tt*2+ks)*4,4)}, {vr(fb+16+(rt*2+ks)*4,4)}, {vr(acc,4)}")
        return L
    def reads(buf):
        for x in read_list(buf): a(x)
    def mfmas(buf):
        for x in mfma_list(buf): a(x)
    def both(rbuf, mbuf):
        R, M = read_list(rbuf), mfma_list(mbuf)
        if opt.get("fl", 3) & 1:
            per = opt.get("flo", 2)
            for n in range(12):
                a(M[n])
                for x in R[per*n:per*n+per]: a(x)
                if n == 8: adv()
            return
        for n in range(12):
            a(M[n])
            a(R[n])
            if n in (5, 11): a(R[12 + (n == 11)])
        adv()
    def adv():
        a(f"s_add_u32 s{sA}, s{sSl}, {STG}")
        a(f"s_cmp_ge_u32 s{sA}, {NS*STG}")
        a(f"s_cselect_b32 s{sB}, {NS*STG}, 0")
        a(f"s_sub_u32 s{sA}, s{sA}, s{sB}")
        a(f"s_sub_u32 s{sD}, s{sA}, s{sSl}")
        a(f"s_mov_b32 s{sSl}, s{sA}")
        for v in (WA, WA+1, XA, XA+1):
            a(f"v_add_u32 v{v}, s{sD}, v{v}")
    a(f"s_mov_b32 s{sSl}, 0")
    EX2 = opt.get("ex", 3) >= 2
    EX3 = opt.get("ex", 3) == 3
    PPOLL = opt.get("ppoll", 0)
    vTk, vTa, vPl = 128, 129, 130
    def poll_pipe(uid, addr, execmask, want, first_sleep, D=4, slp=0):
        a(f"s_mov_b64 exec, {execmask}")
        a(f"s_mov_b32 s{sP}, 0")
        for k in range(D):
            a(f"buffer_load_dword v{vPl+k}, v{addr}, s[{SFL}:{SFL+3}], 0 offen sc1")
            if k < D-1: a(f"s_sleep {first_sleep}")
        a.label(f"O3_PP{uid}")
        for k in range(D):
            a(f"s_waitcnt vmcnt({D-1})")
            a(f"v_cmp_eq_u32 vcc, s96, v{vPl+k}")
            a("s_nop 1")
            a(f"s_and_b32 s{sD}, vcc_lo, {want}")
            a(f"s_cmp_eq_u32 s{sD}, {want}")
            a(f"s_cbranch_scc1 O3_PP{uid}_OK")
            if slp: a(f"s_sleep {slp}")
            a(f"buffer_load_dword v{vPl+k}, v{addr}, s[{SFL}:{SFL+3}], 0 offen sc1")
        a(f"s_add_u32 s{sP}, s{sP}, 1")
        a(f"s_cmp_lt_u32 s{sP}, 100000")
        a(f"s_cbranch_scc1 O3_PP{uid}")
        a.label(f"O3_PP{uid}_OK")
        a("s_mov_b64 exec, -1")
    if EX2 and not EX3:
        a(f"s_lshl_b32 s{sA}, s{sW}, 7")
        a(f"s_add_u32 s{sA}, s{sA}, s47")
        a(f"s_add_u32 s{sA}, s{sA}, 64")
        a(f"v_mov_b32 v{vTa}, s{sA}")
        a(f"v_mov_b32 v{vTk}, 1")
    if PPOLL:
        a(f"s_cmp_lg_u32 s{sW}, 1")
        a("s_cbranch_scc1 O3_NOPOLL1")
        a(f"v_lshlrev_b32 v{t0}, 2, v0")
        a(f"v_add_u32 v{t0}, s45, v{t0}")
        if F1L:
            a(f"s_lshl_b32 s{sA}, s46, 7")
            a(f"v_add_u32 v{t0}, s{sA}, v{t0}")
        poll_pipe(1, t0, "0xff", "0xff", opt.get("psl", 8), opt.get("pd1", 1), opt.get("pslp1", 2))
        a.label("O3_NOPOLL1")
    a("s_barrier")
    a("s_barrier")
    P.stamp(9)
    reads(0); adv()
    a("s_waitcnt lgkmcnt(0)")
    a(f"s_mov_b32 s{sP}, 0")
    a.label("O3_C_LOOP")
    for half in range(2):
        a("s_barrier")
        if EX2 and not EX3 and half == opt.get("tkh", 0):
            a(f"s_cmp_eq_u32 s{sP}, {opt.get('tkp', 6)}")
            a("s_cbranch_scc1 O3_TICKET")
            a.label("O3_TICKETR")
        both(1-half, half)
        a("s_waitcnt lgkmcnt(0)")
        if half == 0:
            a(f"s_cmp_eq_u32 s{sP}, 7")
            a("s_cbranch_scc1 O3_C_DONE")
    a(f"s_add_u32 s{sP}, s{sP}, 1")
    a("s_branch O3_C_LOOP")
    a.label("O3_C_DONE")
    mfmas(1)
    P.stamp(10)
    if EX2:
        a(f"s_sub_u32 s{sA}, s47, {SEC}")
        a(f"s_lshr_b32 s{sA}, s{sA}, 10")
        a(f"s_lshl_b32 s{sA}, s{sA}, 3")
        a(f"s_add_u32 s{sA}, s{sA}, s{sW}")
        a(f"s_mul_i32 s{sA}, s{sA}, {4*3072}")
        a(f"s_add_u32 s{sA}, s{sA}, {PXOFF}")
        a(f"s_add_u32 s{SPX}, s52, s{sA}")
        a(f"s_addc_u32 s{SPX+1}, s53, 0")
        a(f"s_mov_b32 s{SPX+2}, {4*3072}")
        a(f"s_mov_b32 s{SPX+3}, 0x20000")
        a(f"v_lshlrev_b32 v{t0}, 4, v0")
        a(f"s_lshl_b32 s{sB}, s{sW}, 7")
        a(f"s_add_u32 s{sB}, s{sB}, s47")
        if EX3:
            a(f"s_and_b32 s{sT}, s{sW}, 3")
            a(f"s_cmp_eq_u32 s{sT}, s5")
        else:
            a("s_waitcnt vmcnt(0)")
            a(f"v_readfirstlane_b32 s{sT}, v{vTk}")
            a("s_nop 3")
            a(f"s_cmp_eq_u32 s{sT}, 3")
        a("s_cbranch_scc1 O3_LAST")
        for k in range(12):
            a(f"v_cvt_pk_bf16_f32 v{RX+k}, v{ACC+2*k}, v{ACC+2*k+1}")
        a(f"s_mul_i32 s{sA}, s5, 3072")
        for j in range(3):
            a(f"buffer_store_dwordx4 {vr(RX+4*j,4)}, v{t0}, s[{SPX}:{SPX+3}], s{sA} offen offset:{j*1024} sc1")
        a(f"s_lshl_b32 s{sA}, s5, 2")
        a(f"s_add_u32 s{sA}, s{sA}, s{sB}")
        a(f"v_mov_b32 v{t1}, s96")
        a(f"v_mov_b32 v{t2}, s{sA}")
        a("s_waitcnt vmcnt(0)")
        P.stamp(3)
        a("s_mov_b64 exec, 1")
        a(f"buffer_store_dword v{t1}, v{t2}, s[{SFL}:{SFL+3}], 0 offen sc1")
        a("s_mov_b64 exec, -1")
        P.stamp(11)
        P.stamp(8, real=True)
        P.dump(52, sW, 64 << 20, 12)
        a("s_endpgm")
        if not EX3:
            a.label("O3_TICKET")
            a("s_mov_b64 exec, 1")
            a(f"buffer_atomic_add v{vTk}, v{vTa}, s[{SFL}:{SFL+3}], 0 offen sc0 sc1")
            a("s_mov_b64 exec, -1")
            a("s_branch O3_TICKETR")
        a.label("O3_LAST")
        a(f"v_lshlrev_b32 v{t1}, 2, v0")
        a(f"v_add_u32 v{t1}, s{sB}, v{t1}")
        a(f"s_lshl_b32 s{sB}, 1, s5")
        a(f"s_xor_b32 s{sB}, s{sB}, 15")
        poll_pipe(2, t1, "15", f"s{sB}", opt.get("psl2", 8), opt.get("pd2", 1), opt.get("pslp2", 2))
        P.stamp(4)
        if PROF: a(f"s_mov_b32 s{P.base+2}, s{sP}")
        for r in range(3):
            a(f"s_add_u32 s{sA}, s5, {r+1}")
            a(f"s_and_b32 s{sA}, s{sA}, 3")
            a(f"s_mul_i32 s{sA}, s{sA}, 3072")
            for j in range(3):
                a(f"buffer_load_dwordx4 {vr(RX+12*r+4*j,4)}, v{t0}, s[{SPX}:{SPX+3}], s{sA} offen offset:{j*1024} sc1")
        a(f"s_lshr_b32 s{sA}, s7, 1")
        a(f"s_mul_i32 s{sA}, s{sA}, 96")
        a(f"s_lshr_b32 s{sD}, s{sW}, 2")
        a(f"s_mul_i32 s{sD}, s{sD}, 48")
        a(f"s_add_u32 s{sA}, s{sA}, s{sD}")
        a(f"s_lshl_b32 s{sA}, s{sA}, 12")
        a(f"s_lshl_b32 s{sD}, s6, 11")
        a(f"s_add_u32 s{sA}, s{sA}, s{sD}")
        a(f"s_lshl_b32 s{sD}, s46, 8")
        a(f"s_add_u32 s{sA}, s{sA}, s{sD}")
        a(f"s_and_b32 s{sD}, s{sW}, 3")
        a(f"s_lshl_b32 s{sD}, s{sD}, 6")
        a(f"s_add_u32 s{sA}, s{sA}, s{sD}")
        a(f"s_mov_b32 s{SO}, s48")
        a(f"s_mov_b32 s{SO+1}, s49")
        a(f"s_mov_b32 s{SO+2}, {8*48*2048*2}")
        a(f"s_mov_b32 s{SO+3}, 0x20000")
        a(f"v_and_b32 v{t1}, 15, v0")
        a(f"v_lshrrev_b32 v{t2}, 4, v0")
        a(f"v_lshlrev_b32 v{t1}, 12, v{t1}")
        a(f"v_lshl_add_u32 v{t1}, v{t2}, 3, v{t1}")
        U = RX + 36
        for r in range(3):
            for j in range(3):
                a(f"s_waitcnt vmcnt({8 - 3*r - j})")
                for k in range(4):
                    p = RX + 12*r + 4*j + k
                    u = U + 2*k
                    a(f"v_lshlrev_b32 v{u}, 16, v{p}")
                    a(f"v_and_b32 v{u+1}, 0xffff0000, v{p}")
                for k in range(4):
                    u = U + 2*k
                    d = ACC + 2*(4*j + k)
                    a(f"v_pk_add_f32 {vr(d,2)}, {vr(d,2)}, {vr(u,2)}")
        P.stamp(5)
        for tt in range(2):
            for rt in range(3):
                acc = ACC + (tt*3+rt)*4
                a(f"v_cvt_pk_bf16_f32 v{acc}, v{acc}, v{acc+1}")
                a(f"v_cvt_pk_bf16_f32 v{acc+1}, v{acc+2}, v{acc+3}")
                a(f"s_add_u32 s{sD}, s{sA}, {rt*16*4096}")
                a(f"buffer_store_dwordx2 {vr(acc,2)}, v{t1}, s[{SO}:{SO+3}], s{sD} offen offset:{tt*32}{['', ' sc1', ' nt', ' sc0 sc1', ' sc1 nt'][opt.get('outsc', 1)]}")
        P.stamp(11)
        P.stamp(8, real=True)
        P.dump(52, sW, 64 << 20, 12)
        a("s_endpgm")
    if not EX2:
        a(f"s_sub_u32 s{sA}, s47, 16384")
        a(f"s_lshr_b32 s{sA}, s{sA}, 8")
        a(f"s_mul_i32 s{sA}, s{sA}, {16*12288}")
        a(f"s_add_u32 s{sA}, s{sA}, {PXOFF}")
        a(f"s_add_u32 s{SPX}, s52, s{sA}")
        a(f"s_addc_u32 s{SPX+1}, s53, 0")
        a(f"s_mov_b32 s{SPX+2}, {16*12288}")
        a(f"s_mov_b32 s{SPX+3}, 0x20000")
        a(f"v_lshlrev_b32 v{t0}, 4, v0")
        a(f"v_add_u32 v{t3}, 4096, v{t0}")
        a(f"s_and_b32 s{sD}, s{sW}, 3")
        a(f"s_lshr_b32 s{sB}, s{sW}, 2")
        a(f"s_mul_i32 s{sB}, s{sB}, 6144")
        a(f"s_cmp_eq_u32 s{sD}, s5")
        a("s_cbranch_scc1 O3_OWNER")
        a(f"s_lshl_b32 s{sA}, s{sD}, 2")
        a(f"s_add_u32 s{sA}, s{sA}, s5")
        a(f"s_mul_i32 s{sA}, s{sA}, 12288")
        a(f"s_add_u32 s{sA}, s{sA}, s{sB}")
        a("s_nop 4")
        for tile in range(6):
            a(f"buffer_store_dwordx4 {vr(ACC+4*tile,4)}, v{t0 if tile < 4 else t3}, s[{SPX}:{SPX+3}], s{sA} offen offset:{(tile & 3)*1024} sc1")
        a("s_waitcnt vmcnt(0)")
        a("s_barrier")
        a(f"s_cmp_lg_u32 s{sW}, 0")
        a("s_cbranch_scc1 O3_FIN")
        a.label("O3_FLAG2")
        a(f"s_lshl_b32 s{sA}, s5, 2")
        a(f"s_add_u32 s{sA}, s{sA}, s47")
        a(f"v_mov_b32 v{t1}, s96")
        a(f"v_mov_b32 v{t2}, s{sA}")
        a("s_mov_b64 exec, 1")
        a(f"buffer_store_dword v{t1}, v{t2}, s[{SFL}:{SFL+3}], 0 offen sc1")
        a("s_mov_b64 exec, -1")
        a(f"s_cmp_eq_u32 s5, 0")
        a("s_cbranch_scc1 O3_OWN2")
        a.label("O3_FIN")
        P.stamp(11)
        P.stamp(8, real=True)
        P.dump(52, sW, 64 << 20, 12)
        a("s_endpgm")
        a.label("O3_OWNER")
        a("s_barrier")
        a(f"s_cmp_eq_u32 s{sW}, 0")
        a("s_cbranch_scc1 O3_FLAG2")
        a.label("O3_OWN2")
        P.stamp(3)
        a(f"v_lshlrev_b32 v{t1}, 2, v0")
        a(f"v_add_u32 v{t1}, s47, v{t1}")
        a("s_mov_b64 exec, 15")
        a(f"s_mov_b32 s{sP}, 0")
        a.label("O3_POLL2")
        a(f"buffer_load_dword v{t2}, v{t1}, s[{SFL}:{SFL+3}], 0 offen sc1")
        a("s_waitcnt vmcnt(0)")
        a(f"v_cmp_eq_u32 vcc, s96, v{t2}")
        a("s_nop 1")
        a("s_cmp_eq_u32 vcc_lo, 15")
        a("s_cbranch_scc1 O3_POLL2_OK")
        a(f"s_sleep {opt.get('psleep', 2)}")
        a(f"s_add_u32 s{sP}, s{sP}, 1")
        a(f"s_cmp_lt_u32 s{sP}, 400000")
        a("s_cbranch_scc1 O3_POLL2")
        a.label("O3_POLL2_OK")
        a("s_mov_b64 exec, -1")
        P.stamp(4)
        if PROF: a(f"s_mov_b32 s{P.base+2}, s{sP}")
        for r in range(3):
            a(f"s_add_u32 s{sA}, s5, {r+1}")
            a(f"s_and_b32 s{sA}, s{sA}, 3")
            a(f"s_lshl_b32 s{sD}, s5, 2")
            a(f"s_add_u32 s{sA}, s{sA}, s{sD}")
            a(f"s_mul_i32 s{sA}, s{sA}, 12288")
            a(f"s_add_u32 s{sA}, s{sA}, s{sB}")
            for tile in range(6):
                a(f"buffer_load_dwordx4 {vr(RX+24*r+4*tile,4)}, v{t0 if tile < 4 else t3}, s[{SPX}:{SPX+3}], s{sA} offen offset:{(tile & 3)*1024} sc1")
        a(f"s_lshr_b32 s{sA}, s7, 1")
        a(f"s_mul_i32 s{sA}, s{sA}, 96")
        a(f"s_lshr_b32 s{sD}, s{sW}, 2")
        a(f"s_mul_i32 s{sD}, s{sD}, 48")
        a(f"s_add_u32 s{sA}, s{sA}, s{sD}")
        a(f"s_lshl_b32 s{sA}, s{sA}, 12")
        a(f"s_lshl_b32 s{sD}, s6, 11")
        a(f"s_add_u32 s{sA}, s{sA}, s{sD}")
        a(f"s_lshl_b32 s{sD}, s46, 8")
        a(f"s_add_u32 s{sA}, s{sA}, s{sD}")
        a(f"s_lshl_b32 s{sD}, s5, 6")
        a(f"s_add_u32 s{sA}, s{sA}, s{sD}")
        a(f"s_mov_b32 s{SO}, s48")
        a(f"s_mov_b32 s{SO+1}, s49")
        a(f"s_mov_b32 s{SO+2}, {8*48*2048*2}")
        a(f"s_mov_b32 s{SO+3}, 0x20000")
        a(f"v_and_b32 v{t1}, 15, v0")
        a(f"v_lshrrev_b32 v{t2}, 4, v0")
        a(f"v_lshlrev_b32 v{t1}, 12, v{t1}")
        a(f"v_lshl_add_u32 v{t1}, v{t2}, 3, v{t1}")
        for r in range(3):
            a(f"s_waitcnt vmcnt({12-6*r})")
            for k in range(24):
                a(f"v_add_f32 v{ACC+k}, v{ACC+k}, v{RX+24*r+k}")
        P.stamp(5)
        for tt in range(2):
            for rt in range(3):
                acc = ACC + (tt*3+rt)*4
                a(f"v_cvt_pk_bf16_f32 v{acc}, v{acc}, v{acc+1}")
                a(f"v_cvt_pk_bf16_f32 v{acc+1}, v{acc+2}, v{acc+3}")
                a(f"s_add_u32 s{sD}, s{sA}, {rt*16*4096}")
                a(f"buffer_store_dwordx2 {vr(acc,2)}, v{t1}, s[{SO}:{SO+3}], s{sD} offen offset:{tt*32}{['', ' sc1', ' nt', ' sc0 sc1', ' sc1 nt'][opt.get('outsc', 1)]}")
        P.stamp(11)
        P.stamp(8, real=True)
        P.dump(52, sW, 64 << 20, 12)
        a("s_endpgm")

    a.label("O3_LOADER")
    a("s_cmp_eq_u32 s6, 0")
    a(f"s_cselect_b64 s[{SWO}:{SWO+1}], s[36:37], s[50:51]")
    a(f"s_lshl_b32 s{sA}, s5, 21")
    a(f"s_lshl_b32 s{sB}, s46, 8")
    a(f"s_add_u32 s{sA}, s{sA}, s{sB}")
    a(f"s_add_u32 s{SWO}, s{SWO}, s{sA}")
    a(f"s_addc_u32 s{SWO+1}, s{SWO+1}, 0")
    a(f"s_sub_u32 s{SWO+2}, 2097152, s{sB}")
    a(f"s_mov_b32 s{SWO+3}, 0x20000")
    a(f"s_lshr_b32 s{sA}, s7, 1")
    a(f"s_mul_i32 s{sA}, s{sA}, 96")
    a(f"s_mul_i32 s{sB}, s6, 384")
    a(f"s_add_u32 s{sA}, s{sA}, s{sB}")
    a(f"s_lshl_b32 s{sA}, s{sA}, 13")
    a(f"s_lshl_b32 s{sB}, s5, 11")
    a(f"s_add_u32 s{sA}, s{sA}, s{sB}")
    a(f"s_add_u32 s{SX}, s52, s{sA}")
    a(f"s_addc_u32 s{SX+1}, s53, 0")
    a(f"s_sub_u32 s{SX+2}, {96*8192}, s{sB}")
    a(f"s_mov_b32 s{SX+3}, 0x20000")
    a(f"s_sub_u32 s{sLam}, s{sW}, 8")
    a(f"v_lshrrev_b32 v{t0}, 4, v0")
    a(f"v_and_b32 v{t1}, 15, v0")
    a(f"s_and_b32 s{sA}, s{sLam}, 1")
    a(f"s_lshl_b32 s{sB}, s{sA}, 2")
    a(f"v_or_b32 v{t2}, s{sB}, v{t0}")
    a(f"v_lshlrev_b32 v{t2}, 1, v{t2}")
    a(f"v_xor_b32 v{t2}, v{t1}, v{t2}")
    a(f"v_lshlrev_b32 v{t2}, 4, v{t2}")
    a(f"v_lshl_add_u32 v{vWo}, v{t0}, 11, v{t2}")
    a(f"s_lshl_b32 s{sA}, s{sA}, 1")
    a(f"s_lshr_b32 s{sB}, s{sLam}, 1")
    a(f"s_lshl_b32 s{sB}, s{sB}, 2")
    a(f"s_add_u32 s{sA}, s{sA}, s{sB}")
    a(f"s_lshl_b32 s{sB}, s{sA}, 13")
    a(f"v_add_u32 v{vWo}, s{sB}, v{vWo}")
    a(f"s_lshl_b32 s{sSl}, s{sA}, 10")
    a(f"s_add_u32 s{sD}, s{sSl}, {NS*STG}")
    a(f"v_lshrrev_b32 v{t1}, 3, v0")
    a(f"s_lshl_b32 s{sA}, s{sLam}, 3")
    a(f"v_add_u32 v{t1}, s{sA}, v{t1}")
    a(f"s_and_b32 s{sA}, s{sLam}, 1")
    a(f"s_lshl_b32 s{sA}, s{sA}, 2")
    a(f"v_add_u32 v{t0}, s{sA}, v{t0}")
    a(f"v_and_b32 v{t2}, 7, v0")
    a(f"v_xor_b32 v{t2}, v{t2}, v{t0}")
    a(f"v_lshlrev_b32 v{t2}, 4, v{t2}")
    a(f"v_lshl_add_u32 v{vXo}, v{t1}, 13, v{t2}")
    a(f"s_lshl_b32 s{sSlX}, s{sLam}, 10")
    a(f"s_add_u32 s40, s{sSlX}, {NS*STG}")
    a(f"s_lshl_b32 s{sWg}, s3, 19")
    a(f"s_lshl_b32 s{sXg}, s3, 9")
    def issueW():
        for j in range(4):
            dm = (j & 1) + 8*(j >> 1)
            a(f"s_add_u32 m0, s{sSl}, {dm*1024}")
            a(f"s_add_u32 s{sA}, s{sWg}, {dm*8192}")
            if not opt.get("o3ab", 0) & 1: a(f"buffer_load_dwordx4 v{vWo}, s[{SWO}:{SWO+3}], s{sA} offen lds")
        a(f"s_add_u32 s{sSl}, s{sSl}, {STG}")
        a(f"s_cmp_ge_u32 s{sSl}, s{sD}")
        a(f"s_cselect_b32 s{sB}, {NS*STG}, 0")
        a(f"s_sub_u32 s{sSl}, s{sSl}, s{sB}")
        a(f"s_add_u32 s{sWg}, s{sWg}, 131072")
        a(f"s_and_b32 s{sWg}, s{sWg}, 0x1fffff")
    def issueX():
        for j in range(3):
            a(f"s_add_u32 m0, s{sSlX}, {16384 + j*4096}")
            a(f"s_add_u32 s{sA}, s{sXg}, {j*262144}")
            if not opt.get("o3ab", 0) & 2: a(f"buffer_load_dwordx4 v{vXo}, s[{SX}:{SX+3}], s{sA} offen{'' if (opt.get('o3ab', 0) & 4 or opt.get('loc', 0) & 8) else ' sc1'} lds")
        a(f"s_add_u32 s{sSlX}, s{sSlX}, {STG}")
        a(f"s_cmp_ge_u32 s{sSlX}, s40")
        a(f"s_cselect_b32 s{sB}, {NS*STG}, 0")
        a(f"s_sub_u32 s{sSlX}, s{sSlX}, s{sB}")
        a(f"s_add_u32 s{sXg}, s{sXg}, 128")
        a(f"s_and_b32 s{sXg}, s{sXg}, 0x7ff")
    def loop(n, body, uid):
        a(f"s_mov_b32 s{sP}, 0")
        a.label(f"O3_LP{uid}")
        body()
        a(f"s_add_u32 s{sP}, s{sP}, 1")
        a(f"s_cmp_lt_u32 s{sP}, {n}")
        a(f"s_cbranch_scc1 O3_LP{uid}")
    WE = opt.get("wearly", 2)
    loop(WE, issueW, 0)
    P.stamp(6)
    a("s_barrier")
    P.stamp(7)
    if opt.get("o3diag", 0):
        a("s_waitcnt vmcnt(0)")
        P.stamp(2)
    loop(5 - WE, issueW, 1)
    if opt.get("o3diag", 0):
        a("s_waitcnt vmcnt(0)")
        P.stamp(3)
    a(f"s_cmp_lg_u32 s{sW}, {99 if PPOLL else 8}")
    a("s_cbranch_scc1 O3_POLL_DONE")
    a(f"v_lshlrev_b32 v{vPa}, 2, v0")
    a(f"v_add_u32 v{vPa}, s45, v{vPa}")
    if F1L:
        a(f"s_lshl_b32 s{sA}, s46, 7")
        a(f"v_add_u32 v{vPa}, s{sA}, v{vPa}")
    a("s_mov_b64 exec, 0xff")
    a(f"s_mov_b32 s{sP}, 0")
    a.label("O3_POLL1")
    if opt.get('loc', 0) & 4:
        a(f"v_mov_b32 v{vPoll}, 0")
        a(f"buffer_atomic_or v{vPoll}, v{vPa}, s[{SFL}:{SFL+3}], 0 offen sc0")
    else:
        a(f"buffer_load_dword v{vPoll}, v{vPa}, s[{SFL}:{SFL+3}], 0 offen sc1")
    a("s_waitcnt vmcnt(0)")
    a(f"v_cmp_eq_u32 vcc, s96, v{vPoll}")
    a("s_nop 1")
    a("s_cmp_eq_u32 vcc_lo, 0xff")
    a("s_cbranch_scc1 O3_POLL_OK")
    a(f"s_sleep {opt.get('psleep', 2)}")
    a(f"s_add_u32 s{sP}, s{sP}, 1")
    a(f"s_cmp_lt_u32 s{sP}, 400000")
    a("s_cbranch_scc1 O3_POLL1")
    a.label("O3_POLL_OK")
    a("s_mov_b64 exec, -1")
    a.label("O3_POLL_DONE")
    P.stamp(9)
    a("s_barrier")
    P.stamp(10)
    loop(5, issueX, 2)
    a("s_waitcnt vmcnt(12)")
    if opt.get("o3diag", 0): P.stamp(4)
    a("s_barrier")
    for cnt in (9, 13, 17):
        a(f"s_waitcnt vmcnt({cnt})")
        a("s_barrier")
        issueW(); issueX()
    a(f"s_mov_b32 s{sP}, 3")
    a.label("O3_L_LOOP")
    a("s_waitcnt vmcnt(21)")
    a("s_barrier")
    issueW(); issueX()
    a(f"s_add_u32 s{sP}, s{sP}, 1")
    a(f"s_cmp_lt_u32 s{sP}, 11")
    a("s_cbranch_scc1 O3_L_LOOP")
    for s_ in range(11, 15):
        a(f"s_waitcnt vmcnt({7*(15-(s_+1))})")
        a("s_barrier")
    P.dump(52, sW, 64 << 20, 12)

def outproj(a, opt, P, fused):
    sW = 4
    NTW2 = " nt" if opt.get("ntw2", 0) else ""
    XFL = " sc1" if (fused and opt.get("xsc1", 1)) else ""
    SX, SWO, SO, SFL = 8, 12, 16, 28
    sA, sB, sD, sLam, sP = 20, 21, 22, 23, 24
    sSl, sWg, sXg = 25, 26, 27
    NS = 5
    STG = 28672
    t0, t1, t2, t3, t4 = 1, 2, 3, 4, 5
    WA = 6
    XA = 10
    vWo, vXo, vPoll = 20, 21, 22
    ACC = 12
    FR = 60
    NV = 116
    END = "K1_END" if fused else "K2_END"
    if fused:
        a(f"s_cmp_lg_u32 s{sW}, 0")
        a("s_cbranch_scc1 OP_NOFLAG")
        a(f"s_lshl_b32 s{sA}, s46, 2")
        a(f"v_mov_b32 v{t0}, s96")
        a(f"v_mov_b32 v{t1}, s{sA}")
        a("s_mov_b64 exec, 1")
        a(f"buffer_store_dword v{t0}, v{t1}, s[{SFL}:{SFL+3}], 0 offen sc1")
        a("s_mov_b64 exec, -1")
        a.label("OP_NOFLAG")
        a(f"s_cmp_ge_u32 s{sW}, 8")
        a(f"s_cbranch_scc1 {END}")
    def srd_w():
        a("s_cmp_eq_u32 s6, 0")
        a(f"s_cselect_b64 s[{SWO}:{SWO+1}], s[36:37], s[50:51]")
        a(f"s_lshl_b32 s{sA}, s5, 9")
        a(f"s_lshl_b32 s{sB}, s3, 7")
        a(f"s_add_u32 s{sA}, s{sA}, s{sB}")
        a(f"s_add_u32 s{SWO}, s{SWO}, s{sA}")
        a(f"s_addc_u32 s{SWO+1}, s{SWO+1}, 0")
        a(f"s_sub_u32 s{SWO+2}, 8388608, s{sA}")
        a(f"s_mov_b32 s{SWO+3}, 0x20000")
    def srd_x():
        a(f"s_lshl_b32 s{sB}, s6, 3")
        a(f"s_add_u32 s{sB}, s{sB}, s7")
        a(f"s_mul_i32 s{sD}, s{sB}, {48*8192}")
        a(f"s_add_u32 s{SX}, s52, s{sD}")
        a(f"s_addc_u32 s{SX+1}, s53, 0")
        a(f"s_mov_b32 s{SX+2}, {48*8192}")
        a(f"s_mov_b32 s{SX+3}, 0x20000")
    def srd_o():
        a(f"s_lshl_b32 s{sA}, s5, 9")
        a(f"s_lshl_b32 s{sB}, s3, 7")
        a(f"s_add_u32 s{sA}, s{sA}, s{sB}")
        a(f"s_mul_i32 s{sD}, s7, {48*4096}")
        a(f"s_lshl_b32 s{sB}, s6, 11")
        a(f"s_add_u32 s{sB}, s{sB}, s{sA}")
        a(f"s_add_u32 s{sD}, s{sD}, s{sB}")
        a(f"s_add_u32 s{SO}, s48, s{sD}")
        a(f"s_addc_u32 s{SO+1}, s49, 0")
        a(f"s_sub_u32 s{SO+2}, {48*4096}, s{sB}")
        a(f"s_mov_b32 s{SO+3}, 0x20000")
    if not fused:
        srd_w(); srd_x()
        a(f"s_cmp_ge_u32 s{sW}, 4")
        a("s_cbranch_scc1 OP_LOADER")
    srd_o()
    a(f"v_bfe_u32 v{t0}, v0, 2, 2")
    a(f"v_lshrrev_b32 v{t1}, 4, v0")
    a(f"v_lshl_add_u32 v{t2}, v{t1}, 3, v{t0}")
    a(f"s_lshl_b32 s{sA}, s{sW}, 5")
    a(f"v_add_u32 v{t2}, s{sA}, v{t2}")
    a(f"v_lshlrev_b32 v{t2}, 7, v{t2}")
    a(f"v_bfe_u32 v{t3}, v0, 3, 1")
    a(f"v_bfe_u32 v{t4}, v0, 4, 1")
    a(f"v_lshl_or_b32 v{t3}, v{t4}, 1, v{t3}")
    a(f"v_lshl_add_u32 v{t2}, v{t3}, 5, v{t2}")
    a(f"v_and_b32 v{t3}, 3, v0")
    a(f"v_lshl_add_u32 v{WA}, v{t3}, 3, v{t2}")
    for t in range(1, 4):
        a(f"v_xor_b32 v{WA+t}, {t << 5}, v{WA}")
    a(f"v_and_b32 v{t0}, 15, v0")
    a(f"s_lshl_b32 s{sA}, s{sW}, 2")
    a(f"v_add_u32 v{t2}, s{sA}, v{t1}")
    a(f"v_xor_b32 v{t2}, v{t2}, v{t0}")
    a(f"v_lshlrev_b32 v{t2}, 4, v{t2}")
    a(f"v_lshl_add_u32 v{t2}, v{t0}, 8, v{t2}")
    a(f"v_add_u32 v{XA}, 16384, v{t2}")
    for r in range(0, 48, 2):
        a(f"v_mov_b64 {vr(ACC+r,2)}, 0")
    def reads(buf):
        fb = FR + buf*28
        for t in range(4):
            for e in range(2):
                a(f"ds_read_b64_tr_b16 {vr(fb+4*t+2*e,2)}, v{WA+t} offset:{e*512}")
        for rt in range(3):
            a(f"ds_read_b128 {vr(fb+16+4*rt,4)}, v{XA} offset:{rt*4096}")
    def adv():
        a(f"s_add_u32 s{sA}, s{sSl}, {STG}")
        a(f"s_cmp_ge_u32 s{sA}, {NS*STG}")
        a(f"s_cselect_b32 s{sB}, {NS*STG}, 0")
        a(f"s_sub_u32 s{sA}, s{sA}, s{sB}")
        a(f"s_sub_u32 s{sD}, s{sA}, s{sSl}")
        a(f"s_mov_b32 s{sSl}, s{sA}")
        for t in range(4):
            a(f"v_add_u32 v{WA+t}, s{sD}, v{WA+t}")
        a(f"v_add_u32 v{XA}, s{sD}, v{XA}")
    def mfmas(buf):
        fb = FR + buf*28
        for rt in range(3):
            for t in range(4):
                acc = ACC + (t*3+rt)*4
                a(f"{MF16} {vr(acc,4)}, {vr(fb+4*t,4)}, {vr(fb+16+4*rt,4)}, {vr(acc,4)}")
    a(f"s_mov_b32 s{sSl}, 0")
    a("s_barrier")
    P.stamp(9 if fused else 2)
    reads(0); adv()
    a("s_waitcnt lgkmcnt(0)")
    a(f"s_mov_b32 s{sP}, 0")
    if fused:
        a("s_barrier")
        reads(1); adv()
        mfmas(0)
        a("s_waitcnt lgkmcnt(0)")
        a("s_barrier")
        for half in (1, 0):
            a("s_barrier")
            reads(1-half); adv()
            mfmas(half)
            a("s_waitcnt lgkmcnt(0)")
        a("s_barrier")
        a(f"s_mov_b32 s{sP}, 1")
        a("s_branch OP_C_MID")
    a.label("OP_C_LOOP")
    for half in range(2):
        if half == 1: a.label("OP_C_MID")
        a("s_barrier")
        reads(1-half); adv()
        mfmas(half)
        a("s_waitcnt lgkmcnt(0)")
        if half == 0:
            a(f"s_cmp_eq_u32 s{sP}, 15")
            a("s_cbranch_scc1 OP_C_DONE")
    a(f"s_add_u32 s{sP}, s{sP}, 1")
    a("s_branch OP_C_LOOP")
    a.label("OP_C_DONE")
    mfmas(1)
    P.stamp(10 if fused else 3)
    a("s_barrier")
    a("s_nop 7")
    a(f"v_lshlrev_b32 v{t0}, 4, v0")
    a(f"s_mul_i32 s{sA}, s{sW}, 12288")
    a(f"v_add_u32 v{t1}, s{sA}, v{t0}")
    for tile in range(12):
        a(f"ds_write_b128 v{t1}, {vr(ACC+4*tile,4)} offset:{tile*1024}")
    a("s_waitcnt lgkmcnt(0)")
    a("s_barrier")
    a(f"s_mul_i32 s{sA}, s{sW}, 3072")
    a(f"v_add_u32 v{t1}, s{sA}, v{t0}")
    for src in range(4):
        for rt in range(3):
            a(f"ds_read_b128 {vr(ACC+(src*3+rt)*4,4)}, v{t1} offset:{src*12288+rt*1024}")
    a("s_waitcnt lgkmcnt(0)")
    for rt in range(3):
        for r in range(4):
            d = ACC + rt*4 + r
            a(f"v_add_f32 v{d}, v{d}, v{d+12}")
            a(f"v_add_f32 v{d+24}, v{d+24}, v{d+36}")
        for r in range(4):
            d = ACC + rt*4 + r
            a(f"v_add_f32 v{d}, v{d}, v{d+24}")
        d = ACC + rt*4
        a(f"v_cvt_pk_bf16_f32 v{d}, v{d}, v{d+1}")
        a(f"v_cvt_pk_bf16_f32 v{d+1}, v{d+2}, v{d+3}")
    a(f"v_and_b32 v{t0}, 15, v0")
    a(f"v_lshrrev_b32 v{t1}, 4, v0")
    a(f"v_lshlrev_b32 v{t0}, 12, v{t0}")
    a(f"v_lshl_add_u32 v{t0}, v{t1}, 3, v{t0}")
    a(f"s_lshl_b32 s{sA}, s{sW}, 5")
    a(f"v_add_u32 v{t0}, s{sA}, v{t0}")
    for rt in range(3):
        a(f"s_mov_b32 s{sA}, {rt*16*4096}")
        a(f"buffer_store_dwordx2 {vr(ACC+rt*4,2)}, v{t0}, s[{SO}:{SO+3}], s{sA} offen")
    if fused:
        P.stamp(11)
        P.stamp(8, real=True)
        P.dump(52, sW, 64 << 20, 12)
    else:
        P.stamp(4)
        if PROF: a("s_waitcnt vmcnt(0)")
        P.stamp(5)
        P.stamp(6, real=True)
        P.dump(52, sW, 65 << 20, 12)
    a("s_endpgm")

    a.label("OP_LOADER0" if fused else "OP_LOADER")
    if fused:
        srd_w(); srd_x()
    a(f"s_sub_u32 s{sLam}, s{sW}, 4")
    a(f"v_lshrrev_b32 v{t0}, 3, v0")
    a(f"v_and_b32 v{t1}, 7, v0")
    a(f"v_bfe_u32 v{t2}, v0, 4, 1")
    a(f"s_and_b32 s{sA}, s{sLam}, 1")
    a(f"s_lshl_b32 s{sA}, s{sA}, 1")
    a(f"v_or_b32 v{t2}, s{sA}, v{t2}")
    a(f"v_lshlrev_b32 v{t2}, 1, v{t2}")
    a(f"v_xor_b32 v{t1}, v{t1}, v{t2}")
    a(f"v_lshlrev_b32 v{t1}, 4, v{t1}")
    a(f"s_lshl_b32 s{sA}, s{sLam}, 3")
    a(f"v_add_u32 v{t0}, s{sA}, v{t0}")
    a(f"v_lshl_add_u32 v{vWo}, v{t0}, 11, v{t1}")
    a(f"v_lshrrev_b32 v{t0}, 4, v0")
    a(f"v_and_b32 v{t1}, 15, v0")
    a(f"s_lshl_b32 s{sA}, s{sLam}, 2")
    a(f"v_or_b32 v{t2}, s{sA}, v{t0}")
    a(f"v_xor_b32 v{t1}, v{t1}, v{t2}")
    a(f"v_lshlrev_b32 v{t1}, 4, v{t1}")
    a(f"v_lshl_add_u32 v{vXo}, v{t2}, 13, v{t1}")
    def issueW(slot_s, goff_s):
        for j in range(4):
            a(f"s_add_u32 m0, s{slot_s}, {j*4096}")
            a(f"s_add_u32 s{sA}, s{goff_s}, {j*32*2048}")
            a(f"buffer_load_dwordx4 v{vWo}, s[{SWO}:{SWO+3}], s{sA} offen{NTW2} lds")
    def issueX(slot_s, goff_s):
        for j in range(3):
            a(f"s_add_u32 m0, s{slot_s}, {16384 + j*4096}")
            a(f"s_add_u32 s{sA}, s{goff_s}, {j*16*8192}")
            a(f"buffer_load_dwordx4 v{vXo}, s[{SX}:{SX+3}], s{sA} offen{XFL} lds")
    def adv_slot(r):
        a(f"s_add_u32 s{r}, s{r}, {STG}")
        a(f"s_cmp_ge_u32 s{r}, s{sD}")
        a(f"s_cselect_b32 s{sB}, {NS*STG}, 0")
        a(f"s_sub_u32 s{r}, s{r}, s{sB}")
    sTW, sTX, sTb, sTp = 33, 38, 34, 40
    def sigma(t):
        a(f"s_lshr_b32 s{sA}, s{t}, 1")
        a(f"s_lshl_b32 s{sA}, s{sA}, 2")
        a(f"s_lshr_b64 s[{sTp}:{sTp+1}], s[{sTb}:{sTb+1}], s{sA}")
        a(f"s_and_b32 s{sTp}, s{sTp}, 15")
        a(f"s_lshl_b32 s{sTp}, s{sTp}, 1")
        a(f"s_and_b32 s{sA}, s{t}, 1")
        a(f"s_or_b32 s{sTp}, s{sTp}, s{sA}")
    def advW():
        adv_slot(sSl)
        if fused:
            a(f"s_add_u32 s{sTW}, s{sTW}, 1")
            sigma(sTW)
            a(f"s_lshl_b32 s{sWg}, s{sTp}, 18")
        else:
            a(f"s_add_u32 s{sWg}, s{sWg}, {128*2048}")
    def advX():
        adv_slot(sSlX)
        if fused:
            a(f"s_add_u32 s{sTX}, s{sTX}, 1")
            sigma(sTX)
            a(f"s_lshl_b32 s{sXg}, s{sTp}, 8")
        else:
            a(f"s_add_u32 s{sXg}, s{sXg}, 256")
    def issue():
        issueW(sSl, sWg); advW(); issueX(sSlX, sXg); advX()
    sSlX = 32
    a(f"s_lshl_b32 s{sSl}, s{sLam}, 10")
    a(f"s_mov_b32 s{sSlX}, s{sSl}")
    a(f"s_add_u32 s{sD}, s{sSl}, {NS*STG}")
    if fused:
        a(f"s_mul_i32 s{sA}, s3, 0x11111111")
        a(f"s_mul_i32 s{sB}, s5, 0x11111111")
        for half, hi in ((0, 0x11110000), (1, 0x33332222)):
            a(f"s_add_u32 s{sTp}, s{sA}, 0x32103210")
            a(f"s_and_b32 s{sTp}, s{sTp}, 0x33333333")
            a(f"s_add_u32 s{sTp+1}, s{sB}, {hi:#x}")
            a(f"s_and_b32 s{sTp+1}, s{sTp+1}, 0x33333333")
            a(f"s_lshl_b32 s{sTp+1}, s{sTp+1}, 2")
            a(f"s_or_b32 s{sTb+half}, s{sTp}, s{sTp+1}")
        a(f"s_mov_b32 s{sTW}, 0")
        a(f"s_mov_b32 s{sTX}, 0")
        a(f"s_lshl_b32 s{sWg}, s46, 19")
        a(f"s_lshl_b32 s{sXg}, s46, 9")
        a(f"s_lshl_b32 s{sA}, s5, 2")
        a(f"s_lshl_b32 s39, 15, s{sA}")
        a(f"s_mov_b32 s{sP}, 0")
        a.label("OP_LW")
        issueW(sSl, sWg); advW()
        a(f"s_add_u32 s{sP}, s{sP}, 1")
        a(f"s_cmp_lt_u32 s{sP}, 2")
        a("s_cbranch_scc1 OP_LW")
        P.stamp(6)
        a("s_barrier")
        P.stamp(7)
        a(f"v_lshlrev_b32 v{t3}, 2, v0")
        if opt.get("xdelay", 0): a(f"s_sleep {opt['xdelay']}")
        issueX(sSlX, sXg); advX()
        issueX(sSlX, sXg); advX()
        a("s_waitcnt vmcnt(3)")
        a("s_barrier")
        def look(uid):
            a(f"s_cmp_lg_u32 s{sW}, 4")
            a(f"s_cbranch_scc1 OP_NOLOOK{uid}")
            a("s_mov_b64 exec, 0xffff")
            a(f"buffer_load_dword v{vPoll}, v{t3}, s[{SFL}:{SFL+3}], 0 offen sc1")
            a("s_mov_b64 exec, -1")
            a.label(f"OP_NOLOOK{uid}")
        look(1)
        issueW(sSl, sWg); advW()
        issueW(sSl, sWg); advW()
        a("s_waitcnt vmcnt(8)")
        a("s_barrier")
        issueW(sSl, sWg); advW()
        issueW(sSl, sWg); advW()
        def poll(mask, uid):
            a(f"s_cmp_lg_u32 s{sW}, 4")
            a(f"s_cbranch_scc1 OP_POLL_DONE{uid}")
            a("s_mov_b64 exec, 0xffff")
            a(f"s_mov_b32 s{sP}, 0")
            a.label(f"OP_POLL_LOOP{uid}")
            a(f"v_cmp_eq_u32 vcc, s96, v{vPoll}")
            a("s_nop 1")
            a(f"s_and_b32 s{sA}, vcc_lo, {mask}")
            a(f"s_cmp_eq_u32 s{sA}, {mask}")
            a(f"s_cbranch_scc1 OP_POLL_OK{uid}")
            a(f"s_sleep {opt.get('psleep', 2)}")
            a(f"buffer_load_dword v{vPoll}, v{t3}, s[{SFL}:{SFL+3}], 0 offen sc1")
            a("s_waitcnt vmcnt(0)")
            a(f"s_add_u32 s{sP}, s{sP}, 1")
            a(f"s_cmp_lt_u32 s{sP}, 400000")
            a(f"s_cbranch_scc1 OP_POLL_LOOP{uid}")
            a.label(f"OP_POLL_OK{uid}")
            if uid == 1:
                a(f"buffer_load_dword v{vPoll}, v{t3}, s[{SFL}:{SFL+3}], 0 offen sc1")
            a("s_mov_b64 exec, -1")
            a.label(f"OP_POLL_DONE{uid}")
        poll("s39", 1)
        P.stamp(9)
        a("s_barrier")
        P.stamp(10)
        for _ in range(4):
            issueX(sSlX, sXg); advX()
        for k, cnt in enumerate((9, 13, 17)):
            a(f"s_waitcnt vmcnt({cnt})")
            a("s_barrier")
            if k == 2 or True:
                pass
            if k < 2:
                issue()
                if k == 1:
                    poll("0xffff", 2)
                    a("s_barrier")
            else:
                issue()
        a(f"s_mov_b32 s{sP}, 4")
    else:
        a(f"s_mov_b32 s{sWg}, 0")
        a(f"s_mov_b32 s{sXg}, 0")
        for st in range(5):
            issue()
        a("s_waitcnt vmcnt(28)")
        a("s_barrier")
        a(f"s_mov_b32 s{sP}, 0")
    a.label("OP_L_LOOP")
    a("s_waitcnt vmcnt(21)")
    a("s_barrier")
    issue()
    a(f"s_add_u32 s{sP}, s{sP}, 1")
    a(f"s_cmp_lt_u32 s{sP}, 27")
    a("s_cbranch_scc1 OP_L_LOOP")
    for s_ in range(27, 31):
        a(f"s_waitcnt vmcnt({7*(31-(s_+1))})")
        a("s_barrier")
    a("s_barrier")
    a("s_barrier")
    if fused:
        P.dump(52, sW, 64 << 20, 12)
    return NV

HEADER = open("cdna_kernels/" + NAME + ".s.ref").read().split("; Override launch")[0]

def kd(name, nv, ns):
    acc = (nv + 3)//4*4
    return f"""
.amdhsa_kernel {name}
  .amdhsa_next_free_vgpr {nv}
  .amdhsa_next_free_sgpr {ns}
  .amdhsa_accum_offset {acc}
  .amdhsa_group_segment_fixed_size 0
  .amdhsa_kernarg_size 104
  .amdhsa_user_sgpr_count 2
  .amdhsa_user_sgpr_kernarg_segment_ptr 1
  .amdhsa_system_sgpr_workgroup_id_x 1
.end_amdhsa_kernel
"""

def main(out, opt):
    fused = opt.get("fused", 1)
    a1 = Asm(); nv1 = kernel1(a1, opt)
    s = HEADER
    if fused:
        body = a1.text().replace("k1_kernel", NAME + "_kernel")
        s += "; @launch grid=(256,1,1) block=(768,1,1) lds=163840\n"
        s += '.amdgcn_target "amdgcn-amd-amdhsa--gfx950"\n.text\n'
        nm = NAME + "_kernel"
        s += f".globl {nm}\n.p2align 8\n.type {nm},@function\n" + body
        s += '.section .rodata,"a"\n'
        s += ".p2align 6" + kd(nm, nv1, 102)
    else:
        a2 = Asm(); nv2 = kernel2(a2, opt)
        s += "; @launch kernel=k1_kernel grid=(256,1,1) block=(768,1,1) lds=163840\n"
        s += "; @launch kernel=k2_kernel grid=(256,1,1) block=(512,1,1) lds=143360\n"
        s += '.amdgcn_target "amdgcn-amd-amdhsa--gfx950"\n.text\n'
        for nm, body in (("k1_kernel", a1), ("k2_kernel", a2)):
            s += f".globl {nm}\n.p2align 8\n.type {nm},@function\n" + body.text()
        s += '.section .rodata,"a"\n'
        s += ".p2align 6" + kd("k1_kernel", nv1, 102) + ".p2align 6" + kd("k2_kernel", nv2, 96)
    open(out, "w").write(s)

if __name__ == "__main__":
    if "--prof" in sys.argv:
        PROF = True
        sys.argv.remove("--prof")
    if "--rt" in sys.argv:
        PROF = True
        RT = True
        sys.argv.remove("--rt")
    if "--dbgprof" in sys.argv:
        PROF = True
        DBGPROF = True
        sys.argv.remove("--dbgprof")
    if "--fine" in sys.argv:
        PROF = True
        FINE = True
        sys.argv.remove("--fine")
    if "--cdiag" in sys.argv:
        PROF = True
        CDIAG = True
        sys.argv.remove("--cdiag")
    if "--trdiag" in sys.argv:
        PROF = True
        TRDIAG = True
        sys.argv.remove("--trdiag")
    opt = {}
    for x in list(sys.argv):
        if x.startswith("--o:"):
            k, v = x[4:].split("=")
            opt[k] = int(v)
            sys.argv.remove(x)
    main(sys.argv[1] if len(sys.argv) > 1 else "cdna_kernels/" + NAME + ".s", opt)
```

```python
import sys, struct, math

NAME = "concat_heads__gqa_block_cached__gqa_block_cached__near_ridge"

def f2u(x):
    return struct.unpack("<I", struct.pack("<f", x))[0]

class Asm:
    def __init__(self):
        self.L = []
    def __call__(self, s):
        import re
        m = re.search(r"offset:(\d+)", s)
        if m:
            lim = 4095 if s.lstrip().startswith(("buffer_", "global_")) else 65535
            assert int(m.group(1)) <= lim, s
        for line in s.split("\n"):
            self.L.append("    " + line.strip() if not line.strip().endswith(":") else line.strip())
    def label(self, s):
        self.L.append(s + ":")
    def c(self, s):
        self.L.append("    ; " + s)
    def text(self):
        return "\n".join(self.L) + "\n"

def vr(base, n=1):
    return f"v{base}" if n == 1 else f"v[{base}:{base+n-1}]"
def sr(base, n=1):
    return f"s{base}" if n == 1 else f"s[{base}:{base+n-1}]"

MF32 = "v_mfma_f32_32x32x16_bf16"
MF16 = "v_mfma_f32_16x16x32_bf16"

DEBUG_Q = False
PROF = False
FINE = False
DBGPROF = False
RT = False
TRDIAG = False
CDIAG = False
class Prof:
    uid = 0
    def __init__(self, a, base, tmp, srd):
        self.a, self.base, self.tmp, self.srd = a, base, tmp, srd
    def init(self, n):
        if not PROF: return
        for i in range(n):
            self.a(f"s_mov_b32 s{self.base+i}, 0")
    def fine(self, slot, cond_sgpr, val, uid):
        if not FINE: return
        a = self.a
        a(f"s_cmp_lg_u32 s{cond_sgpr}, {val}")
        a(f"s_cbranch_scc1 FINE_{uid}")
        a(f"s_memtime s[{self.tmp}:{self.tmp+1}]")
        a("s_waitcnt lgkmcnt(0)")
        a(f"s_mov_b32 s{self.base+slot}, s{self.tmp}")
        a.label(f"FINE_{uid}")
    def stamp(self, slot, real=False, force=False):
        if not PROF: return
        if FINE and slot in (2, 3, 4, 5, 6, 7) : return
        if TRDIAG and slot in (3, 6, 7, 9) and not force: return
        if CDIAG and slot in (2, 3, 4, 6, 7, 9, 10, 11) and force != 2: return
        a = self.a
        a(f"{'s_memrealtime' if (real or RT) else 's_memtime'} s[{self.tmp}:{self.tmp+1}]")
        a("s_waitcnt lgkmcnt(0)")
        a(f"s_mov_b32 s{self.base+slot}, s{self.tmp}")
    def dump(self, ws_lo, swave, region, nmax):
        if not PROF: return
        a = self.a
        b = self.srd
        if DBGPROF:
            Prof.uid += 1
            a(f"s_or_b32 s{self.tmp}, s2, s{swave}")
            a(f"s_cmp_lg_u32 s{self.tmp}, 0")
            a(f"s_cbranch_scc1 DBGP_SKIP{Prof.uid}")
            a(f"s_load_dwordx2 s[{b}:{b+1}], s[0:1], 88")
            a("s_waitcnt lgkmcnt(0)")
            a(f"s_mov_b32 s{b+2}, 256")
            a(f"s_mov_b32 s{b+3}, 0x20000")
            a("s_mov_b64 exec, 1")
            a("v_mov_b32 v1, 0")
            for i in range(nmax):
                if i in (0, 1): continue
                ref = 0 if i == 8 else 1
                a(f"s_sub_u32 s{self.tmp}, s{self.base+i}, s{self.base+ref}")
                a(f"v_mov_b32 v2, s{self.tmp}")
                a(f"buffer_store_dword v2, v1, s[{b}:{b+3}], 0 offen offset:{4*i}")
                a("s_nop 0")
            a.label(f"DBGP_SKIP{Prof.uid}")
            return
        a(f"s_add_u32 s{b}, s{ws_lo}, {region}")
        a(f"s_addc_u32 s{b+1}, s{ws_lo+1}, 0")
        a(f"s_mov_b32 s{b+2}, {256*16*64}")
        a(f"s_mov_b32 s{b+3}, 0x20000")
        a(f"s_lshl_b32 s{self.tmp}, s2, 4")
        a(f"s_add_u32 s{self.tmp}, s{self.tmp}, s{swave}")
        a(f"s_lshl_b32 s{self.tmp}, s{self.tmp}, 6")
        a("s_mov_b64 exec, 1")
        a(f"v_mov_b32 v1, s{self.tmp}")
        for i in range(nmax):
            a(f"v_mov_b32 v2, s{self.base+i}")
            a(f"buffer_store_dword v2, v1, s[{b}:{b+3}], 0 offen offset:{4*i}")
            a("s_nop 0")

def kernel1(a, opt):
    T2_START = opt.get("t2_start", 8)
    TOUCH = opt.get("touch", 0)
    PRIO = opt.get("prio", 1)
    PQ, PS, PP = opt.get("pq", 2), opt.get("ps", 1), opt.get("pp", 0)
    DMAQ = opt.get("dmaq", 1)
    NTD = " nt" if opt.get("ntd", 0) else ""
    NTQ = " nt" if opt.get("ntq", opt.get("ntd", 0)) else ""
    NTX = " nt" if opt.get("ntx", opt.get("ntd", 0)) else ""
    NTT = " nt" if opt.get("ntt", 1) else ""
    ROT = opt.get("rot", 4)
    TPS = opt.get("tps", 2)
    NS2 = opt.get("p2steps", 8)
    AB = opt.get("ablate", 0)
    CSCALE = 128 ** -0.5 * math.log2(math.e)
    WOT = opt.get("wot", 1)
    OPM = opt.get("op", 3) if opt.get("fused", 1) else 1
    NTW = " nt" if opt.get("ntw", 0) else ""
    SWOP = 36
    sW = 4
    sKvh, sBr, sBt, sPair = 5, 6, 7, 3
    SX, SWQ, SK, SV, SO = 8, 12, 16, 20, 24
    STCH = 40
    sThr, sFloor = 54, 55
    sG = [56, 57, 58, 59]
    sL = [60, 61, 62, 63]
    sStep = 64
    sVn, sKn = 65, 66
    sGstep = 67
    sKc, sVc = 68, 69
    sQt, sKq = 70, 71
    sA, sB, sD = 72, 73, 74
    sLam = 75
    sWs, sWg, sXs, sXg = 76, 77, 78, 79
    sP = 80
    sE = 81
    sChk = 100
    SFL, sTok = 28, 96
    FLAGOFF = 8 << 20
    sGrp, sIdx, sRdy = 45, 46, 47
    sSafe = 44
    sDk, sDv, sTl = 76, 77, 78
    vMx = 0
    vL = 1
    KA0, KA1, VA = 2, 3, 4
    vKoff, vVoff = 5, 6
    vTb = 7
    NM = 8
    O = 24
    Q = 88
    S = 120
    F = 136
    NV = 168
    t0, t1, t2, t3, t4 = 8, 9, 10, 11, 12
    Wf = 88
    Xf = 104
    TR = opt.get("trans", 2)
    if TR == 2:
        ACC = 64
        WA, XA, QW = 128, 130, 134
    else:
        ACC = 128
        WA = 152
        XA = 154
        QW = 158
    vCs = 161
    sCs = 98
    vWo, vXo = 160, 153

    XBASE = 131072
    a.label("k1_kernel")
    a("s_cmp_ge_u32 s2, 256")
    a("s_cbranch_scc1 K1_END")
    P = Prof(a, 84, 82, 28)
    P.init(12)
    P.stamp(0, real=True)
    P.stamp(1)
    if opt.get("padto", 0): a("s_memrealtime s[100:101]")
    a("s_load_dwordx16 s[32:47], s[0:1], 0")
    a("s_load_dwordx4 s[48:51], s[0:1], 64")
    a("s_load_dwordx2 s[52:53], s[0:1], 96")
    a("v_lshrrev_b32 v1, 6, v0")
    a("v_and_b32 v0, 63, v0")
    a(f"v_readfirstlane_b32 s{sW}, v1")
    a(f"s_and_b32 s{sKvh}, s2, 3")
    a(f"s_bfe_u32 s{sBr}, s2, 0x10002")
    a(f"s_lshr_b32 s{sBt}, s2, 5")
    a(f"s_bfe_u32 s{sPair}, s2, 0x20003")
    a(f"s_and_b32 s{sKq}, s{sW}, 3")
    a(f"s_lshr_b32 s{sQt}, s{sW}, 2")
    a(f"s_lshl_b32 s{sD}, s{sKvh}, 11")
    a(f"s_lshl_b32 s{sB}, s{sPair}, 9")
    a(f"s_add_u32 s{sD}, s{sD}, s{sB}")
    a(f"s_mul_i32 s{sA}, s{sBt}, 98304")

    def srd1():
        a("s_waitcnt lgkmcnt(0)")
        a(f"s_cmp_eq_u32 s{sBr}, 0")
        a(f"s_cselect_b64 s[{SX}:{SX+1}], s[32:33], s[42:43]")
        a(f"s_cselect_b64 s[{SWQ}:{SWQ+1}], s[38:39], s[48:49]")
        a(f"s_add_u32 s{SX}, s{SX}, s{sA}")
        a(f"s_addc_u32 s{SX+1}, s{SX+1}, 0")
        a(f"s_mov_b32 s{SX+2}, 98304")
        a(f"s_mov_b32 s{SX+3}, 0x20000")
        a(f"s_add_u32 s{SWQ}, s{SWQ}, s{sD}")
        a(f"s_addc_u32 s{SWQ+1}, s{SWQ+1}, 0")
        a(f"s_sub_u32 s{SWQ+2}, 8388608, s{sD}")
        a(f"s_mov_b32 s{SWQ+3}, 0x20000")
    def patterns():
        a(f"v_bfe_u32 v{t0}, v0, 2, 2")
        a(f"v_lshlrev_b32 v{t0}, 8, v{t0}")
        a(f"v_lshrrev_b32 v{t1}, 4, v0")
        a(f"v_lshl_add_u32 v{t0}, v{t1}, 6, v{t0}")
        a(f"v_and_b32 v{t1}, 3, v0")
        a(f"v_lshl_add_u32 v{vVoff}, v{t1}, 4, v{t0}")
        a(f"s_lshl_b32 s{sB}, s{sKq}, 4")
        a(f"v_xor_b32 v{vKoff}, s{sB}, v{vVoff}")

    def srd2():
        a(f"s_cmp_eq_u32 s{sBr}, 0")
        a(f"s_cselect_b64 s[{SK}:{SK+1}], s[34:35], s[44:45]")
        a(f"s_cselect_b64 s[{SV}:{SV+1}], s[36:37], s[46:47]")
        a(f"s_mov_b64 s[36:37], s[40:41]")
        a(f"s_lshl_b32 s{sB}, s{sBr}, 3")
        a(f"s_add_u32 s{sB}, s{sB}, s{sBt}")
        a(f"s_mul_i32 s{sB}, s{sB}, {48*8192}")
        a(f"s_add_u32 s{sB}, s{sB}, s{sD}")
        a(f"s_add_u32 s{SO}, s52, s{sB}")
        a(f"s_addc_u32 s{SO+1}, s53, 0")
        a(f"s_sub_u32 s{SO+2}, {48*8192}, s{sD}")
        a(f"s_mov_b32 s{SO+3}, 0x20000")
        a(f"s_lshl_b32 s{sB}, s{sBt}, 2")
        a(f"s_add_u32 s{sB}, s{sB}, s{sKvh}")
        a(f"s_lshl_b32 s{sB}, s{sB}, 18")
        a(f"s_add_u32 s{SK}, s{SK}, s{sB}")
        a(f"s_addc_u32 s{SK+1}, s{SK+1}, 0")
        a(f"s_mov_b32 s{SK+2}, 262144")
        a(f"s_mov_b32 s{SK+3}, 0x20000")
        a(f"s_add_u32 s{SV}, s{SV}, s{sB}")
        a(f"s_addc_u32 s{SV+1}, s{SV+1}, 0")
        a(f"s_mov_b32 s{SV+2}, 262144")
        a(f"s_mov_b32 s{SV+3}, 0x20000")
        a(f"s_mov_b32 s{STCH+2}, 262144")
        a(f"s_mov_b32 s{STCH+3}, 0x20000")
        if OPM == 1:
            a(f"s_lshl_b32 s{sB}, s{sBr}, 3")
            a(f"s_add_u32 s{sB}, s{sB}, s{sBt}")
            a(f"s_lshl_b32 s{sB}, s{sB}, 8")
            a(f"s_add_u32 s{sB}, s{sB}, {FLAGOFF}")
            a(f"s_add_u32 s{SFL}, s52, s{sB}")
            a(f"s_addc_u32 s{SFL+1}, s53, 0")
            a(f"s_mov_b32 s{SFL+2}, 64")
        else:
            a(f"s_add_u32 s{SFL}, s52, {FLAGOFF}")
            a(f"s_addc_u32 s{SFL+1}, s53, 0")
            a(f"s_mov_b32 s{SFL+2}, {(1 << 20) if opt.get('stepprof', 0) else (16384 + 65536 if opt.get('ex', 3) >= 2 else 32768)}")
            a(f"s_lshl_b32 s{sGrp}, s{sBr}, 2")
            a(f"s_add_u32 s{sGrp}, s{sGrp}, s{sKvh}")
            a(f"s_lshl_b32 s{sGrp}, s{sGrp}, 2")
            a(f"s_lshr_b32 s{sB}, s{sBt}, 1")
            a(f"s_add_u32 s{sGrp}, s{sGrp}, s{sB}")
            a(f"s_lshl_b32 s{sGrp}, s{sGrp}, 8")
            a(f"s_lshl_b32 s{sRdy}, s{sBr}, 2")
            a(f"s_add_u32 s{sRdy}, s{sRdy}, s{sB}")
            a(f"s_lshl_b32 s{sRdy}, s{sRdy}, 3")
            a(f"s_and_b32 s{sB}, s{sBt}, 1")
            a(f"s_lshl_b32 s{sB}, s{sB}, 2")
            a(f"s_add_u32 s{sB}, s{sB}, s{sPair}")
            a(f"s_add_u32 s{sRdy}, s{sRdy}, s{sB}")
            a(f"s_lshl_b32 s{sRdy}, s{sRdy}, {10 if opt.get('ex', 3) >= 2 else 8}")
            a(f"s_add_u32 s{sRdy}, s{sRdy}, 16384")
        a(f"s_mov_b32 s{SFL+3}, 0x20000")
        if OPM == 1:
            a(f"s_load_dwordx2 s[{sTok}:{sTok+1}], s[{SX}:{SX+1}], 0")
        else:
            a(f"s_and_b32 s82, s{sBt}, 1")
            a(f"s_mul_i32 s82, s82, 98304")
            a(f"s_sub_u32 s82, s{SX}, s82")
            a(f"s_subb_u32 s83, s{SX+1}, 0")
            a(f"s_load_dwordx2 s[{sTok}:{sTok+1}], s[82:83], 0")
        if OPM == 1:
            a(f"s_lshl_b32 s{sIdx}, s{sKvh}, 2")
            a(f"s_add_u32 s{sIdx}, s{sIdx}, s{sPair}")
        else:
            a(f"s_mov_b32 s{sIdx}, s{sB}")

        patterns()

    def kread(n):
        a(f"ds_read_b128 {vr(F+4*n,4)}, v{KA0 + (n & 1)} offset:{(n >> 1)*256}")
    def setup2():
        a(f"v_and_b32 v{t0}, 31, v0")
        a(f"v_lshrrev_b32 v{t1}, 5, v0")
        a(f"v_and_b32 v{t2}, 15, v0")
        a(f"v_xor_b32 v{t2}, v{t1}, v{t2}")
        a(f"v_lshlrev_b32 v{t2}, 4, v{t2}")
        a(f"v_lshl_add_u32 v{t2}, v{t0}, 8, v{t2}")
        a(f"s_lshl_b32 s{sA}, s{sQt}, 13")
        a(f"s_add_u32 s{sA}, s{sA}, {XBASE}")
        a(f"v_add_u32 v{vTb}, s{sA}, v{t2}")
        a(f"v_lshrrev_b32 v{t2}, 2, v{t0}")
        a(f"v_and_b32 v{t3}, 3, v{t2}")
        a(f"v_xor_b32 v{t3}, v{t1}, v{t3}")
        a(f"v_lshlrev_b32 v{t3}, 4, v{t3}")
        a(f"v_lshl_add_u32 v{t3}, v{t2}, 10, v{t3}")
        a(f"v_and_b32 v{t2}, 3, v0")
        a(f"v_lshl_add_u32 v{t3}, v{t2}, 6, v{t3}")
        a(f"s_lshl_b32 s{sA}, s{sKq}, 13")
        a(f"v_add_u32 v{KA0}, s{sA}, v{t3}")
        a(f"v_xor_b32 v{KA1}, 32, v{KA0}")
        a(f"v_bfe_u32 v{t2}, v0, 2, 2")
        a(f"v_lshlrev_b32 v{t2}, 6, v{t2}")
        a(f"v_lshl_add_u32 v{t2}, v{t1}, 10, v{t2}")
        a(f"v_bfe_u32 v{t3}, v0, 4, 1")
        a(f"v_lshl_add_u32 v{t2}, v{t3}, 5, v{t2}")
        a(f"v_bfe_u32 v{t3}, v0, 1, 1")
        a(f"v_lshl_add_u32 v{t2}, v{t3}, 4, v{t2}")
        a(f"v_and_b32 v{t3}, 1, v0")
        a(f"v_lshl_add_u32 v{t2}, v{t3}, 3, v{t2}")
        a(f"s_add_u32 s{sA}, s{sA}, 32768")
        a(f"v_add_u32 v{VA}, s{sA}, v{t2}")
        for j in range(4):
            a(f"s_sub_u32 s{sA}, s{sQt}, 1")
            a(f"s_lshl_b32 s{sA}, s{sA}, 1")
            a(f"s_add_u32 s{sA}, s{sA}, {j >> 1}")
            a(f"s_add_u32 s{sB}, s{sKq}, {4*(j & 1)}")
            a(f"s_lshl_b32 s{sB}, s{sB}, 10")
            a(f"s_lshl_b32 s{sD}, s{sA}, 16")
            a(f"s_add_u32 s{sG[j]}, s{sD}, s{sB}")
            a(f"s_lshl_b32 s{sD}, s{sA}, 13")
            a(f"s_add_u32 s{sL[j]}, s{sD}, s{sB}")
        a(f"s_mov_b32 s{sStep}, 0")
        a(f"s_mov_b32 s{sKn}, {4*32768}")
        a(f"s_mov_b32 s{sVn}, 0")
        a(f"s_mov_b32 s{sGstep}, 16384")
        a(f"s_mov_b32 s{sKc}, 65536")
        a(f"s_mov_b32 s{sVc}, 32768")
        a(f"s_mov_b32 s{sThr}, 0xff800000")
        a(f"s_mov_b32 s{sFloor}, 0xff800000")
        a(f"s_mov_b32 s{sSafe}, {opt.get('safe', 0)}")
        for r in range(0, 16, 2):
            a(f"v_mov_b64 {vr(NM+r,2)}, 0")

    def issueW(slot_expr_sgpr, goff_sgpr, vreg):
        for j in range(8):
            m1, m3, m4 = j & 1, (j >> 1) & 1, (j >> 2) & 1
            dm = 2*m1 + 8*m3 + 16*m4
            a(f"s_add_u32 m0, s{slot_expr_sgpr}, {dm*1024}")
            a(f"s_add_u32 s{sA}, s{goff_sgpr}, {dm*16384}")
            a(f"buffer_load_dwordx4 v{vreg}, s[{SWQ}:{SWQ+3}], s{sA} offen{NTQ} lds")
    def issueX(slot_sgpr, goff_sgpr):
        for j in range(3):
            a(f"s_add_u32 m0, s{slot_sgpr}, {j*4096}")
            a(f"s_add_u32 s{sA}, s{goff_sgpr}, {j*16*2048}")
            a(f"buffer_load_dwordx4 v{vXo}, s[{SX}:{SX+3}], s{sA} offen{NTX} lds")
    a(f"v_lshrrev_b32 v{t0}, 5, v0")
    a(f"v_and_b32 v{t1}, 31, v0")
    a(f"s_and_b32 s{sE}, s{sKq}, 1")
    a(f"s_lshl_b32 s{sE}, s{sE}, 1")
    a(f"s_lshr_b32 s{sB}, s{sKq}, 1")
    a(f"s_lshl_b32 s{sB}, s{sB}, 2")
    a(f"s_or_b32 s{sE}, s{sE}, s{sB}")
    a(f"v_or_b32 v{t2}, s{sE}, v{t0}")
    a(f"v_lshlrev_b32 v{t2}, 1, v{t2}")
    a(f"v_xor_b32 v{t2}, v{t1}, v{t2}")
    a(f"v_lshlrev_b32 v{t2}, 4, v{t2}")
    a(f"v_lshl_add_u32 v{vWo}, v{t0}, 13, v{t2}")
    a(f"s_and_b32 s{sE}, s{sKq}, 1")
    a(f"s_or_b32 s{sE}, s{sE}, s{sB}")
    a(f"s_lshl_b32 s{sB}, s{sE}, 14")
    a(f"v_add_u32 v{vWo}, s{sB}, v{vWo}")
    a(f"s_lshl_b32 s{sWs}, s{sE}, 10")
    if ROT == 1:
        a(f"s_lshl_b32 s{sXg}, s{sPair}, 1")
        a(f"s_add_u32 s{sXg}, s{sXg}, s{sBt}")
        a(f"s_and_b32 s{sXg}, s{sXg}, 7")
        a(f"s_lshl_b32 s{sWg}, s{sXg}, 20")
        a(f"s_lshl_b32 s{sXg}, s{sXg}, 8")
    elif ROT == 4:
        a(f"s_add_u32 s{sXg}, s{sPair}, s{sBt}")
        a(f"s_and_b32 s{sXg}, s{sXg}, 3")
        a(f"s_lshl_b32 s{sXg}, s{sXg}, 1")
        a(f"s_lshl_b32 s{sWg}, s{sXg}, 20")
        a(f"s_lshl_b32 s{sXg}, s{sXg}, 8")
    elif ROT == 2:
        a(f"s_add_u32 s{sXg}, s{sPair}, s{sBt}")
        a(f"s_and_b32 s{sXg}, s{sXg}, 1")
        a(f"s_lshl_b32 s{sXg}, s{sXg}, 2")
        a(f"s_lshl_b32 s{sWg}, s{sXg}, 20")
        a(f"s_lshl_b32 s{sXg}, s{sXg}, 8")
    else:
        a(f"s_mov_b32 s{sXg}, 0")
        a(f"s_mov_b32 s{sWg}, 0")
    a(f"s_cmp_ge_u32 s{sW}, 8")
    a("s_cbranch_scc1 K1_LOADER")
    a(f"s_add_u32 s{sB}, s{sQt}, 1")
    a(f"s_lshl_b32 s{sE}, s{sB}, 15")
    a(f"s_add_u32 s{sWs}, s{sWs}, s{sE}")
    a(f"s_lshl_b32 s{sE}, s{sB}, 19")
    a(f"s_add_u32 s{sWg}, s{sWg}, s{sE}")
    a(f"s_and_b32 s{sWg}, s{sWg}, 0x7fffff")
    srd1()
    if opt.get("t1", 0):
        a(f"v_lshrrev_b32 v{t0}, 4, v0")
        a(f"v_lshlrev_b32 v{t0}, 13, v{t0}")
        a(f"v_and_b32 v{t1}, 15, v0")
        a(f"v_lshl_add_u32 v{t0}, v{t1}, 7, v{t0}")
        a(f"s_lshr_b32 s{sB}, s2, 3")
        a(f"s_lshl_b32 s{sB}, s{sB}, 15")
        a(f"s_lshl_b32 s{sE}, s{sW}, 20")
        a(f"s_add_u32 s{sB}, s{sB}, s{sE}")
        a(f"s_lshl_b32 s{sE}, s{sPair}, 9")
        a(f"s_sub_u32 s82, s{SWQ}, s{sE}")
        a(f"s_subb_u32 s83, s{SWQ+1}, 0")
        a(f"v_add_u32 v{t0}, s{sB}, v{t0}")
        a(f"s_cmp_lt_u32 s{sW}, {opt.get('t1first', 1)}")
        a("s_cbranch_scc1 K1_NOT1")
        a(f"global_load_dword v{F+31}, v{t0}, s[82:83]")
        a.label("K1_NOT1")
        a(f"s_cmp_ge_u32 s{sW}, 3")
        a("s_cbranch_scc1 K1_NOT2")
        a(f"v_lshrrev_b32 v{t0}, 4, v0")
        a(f"s_mul_i32 s{sB}, s{sPair}, 12")
        a(f"s_lshl_b32 s{sE}, s{sW}, 2")
        a(f"s_add_u32 s{sB}, s{sB}, s{sE}")
        a(f"v_add_u32 v{t0}, s{sB}, v{t0}")
        a(f"v_lshlrev_b32 v{t0}, 11, v{t0}")
        a(f"v_lshl_add_u32 v{t0}, v{t1}, 7, v{t0}")
        a(f"buffer_load_dword v{F+30}, v{t0}, s[{SX}:{SX+3}], 0 offen")
        a.label("K1_NOT2")
    if not opt.get("latew", 1):
        issueW(sWs, sWg, vWo)

    a.c("phase 1 compute")
    a(f"v_bfe_u32 v{t0}, v0, 2, 2")
    a(f"v_lshrrev_b32 v{t1}, 4, v0")
    a(f"v_and_b32 v{t2}, 1, v{t1}")
    a(f"v_lshl_or_b32 v{t2}, v{t2}, 2, v{t0}")
    a(f"s_lshl_b32 s{sE}, s{sW}, 1")
    a(f"v_xor_b32 v{t2}, s{sE}, v{t2}")
    a(f"v_lshl_add_u32 v{t3}, v{t1}, 3, v{t0}")
    a(f"v_lshlrev_b32 v{t3}, 9, v{t3}")
    a(f"v_lshl_add_u32 v{t3}, v{t2}, 5, v{t3}")
    a(f"v_and_b32 v{t4}, 3, v0")
    a(f"v_lshl_add_u32 v{WA}, v{t4}, 3, v{t3}")
    a(f"v_xor_b32 v{WA+1}, 32, v{WA}")
    a(f"v_and_b32 v{t0}, 15, v0")
    a(f"v_xor_b32 v{t2}, v{t1}, v{t0}")
    a(f"v_lshlrev_b32 v{t2}, 4, v{t2}")
    a(f"v_lshl_add_u32 v{t2}, v{t0}, 8, v{t2}")
    a(f"v_add_u32 v{XA}, {XBASE:#x}, v{t2}")
    a(f"v_xor_b32 v{XA+1}, 64, v{XA}")
    a(f"v_xor_b32 v{XA+2}, 0x80, v{XA}")
    a(f"v_xor_b32 v{XA+3}, 0xc0, v{XA}")
    for r in range(24):
        a(f"v_mov_b32 v{ACC+r}, 0")
    srd2()
    if opt.get("fused", 1):
        a(f"s_cmp_lg_u32 s{sW}, 1")
        a("s_cbranch_scc1 K1_NOZ")
        a(f"s_lshl_b32 s{sE}, s{sIdx}, 2")
        if OPM == 3:
            a(f"s_add_u32 s{sE}, s{sE}, s{sGrp}")
        a(f"v_mov_b32 v{t0}, 0")
        if OPM == 3 and opt.get("ex", 3) >= 2:
            a(f"s_lshl_b32 s{sB}, s{sKvh}, 2")
            a(f"s_add_u32 s{sB}, s{sB}, s{sRdy}")
            a(f"s_sub_u32 s{sB}, s{sB}, 128")
            a(f"v_lshl_add_u32 v{t1}, v0, 7, s{sB}")
            a(f"s_add_u32 s{sB}, s{sRdy}, 64")
            a(f"s_sub_u32 s{sB}, s{sB}, {9*128}")
            a(f"v_lshl_add_u32 v{t2}, v0, 7, s{sB}")
            a(f"v_cmp_lt_u32 vcc, 8, v0")
            a(f"v_cndmask_b32 v{t1}, v{t1}, v{t2}, vcc")
            a(f"v_writelane_b32 v{t1}, s{sE}, 0")
            a(f"s_mov_b64 exec, {'0x1ff' if opt.get('ex', 3) == 3 else '0x1ffff'}")
        else:
            a(f"v_mov_b32 v{t1}, s{sE}")
            if OPM == 3:
                a(f"s_lshl_b32 s{sE}, s{sKvh}, 2")
                a(f"s_add_u32 s{sE}, s{sE}, s{sRdy}")
                a(f"v_writelane_b32 v{t1}, s{sE}, 1")
            a(f"s_mov_b64 exec, {3 if OPM == 3 else 1}")
        a(f"buffer_store_dword v{t0}, v{t1}, s[{SFL}:{SFL+3}], 0 offen sc1")
        a("s_mov_b64 exec, -1")
        a.label("K1_NOZ")
    if TR == 2:
        a(f"s_mov_b32 s{sCs}, {f2u(CSCALE):#x}")
        a(f"s_mov_b32 s{sCs+1}, {f2u(CSCALE):#x}")
    else:
        a(f"v_mov_b32 v{vCs}, {f2u(CSCALE):#x}")
    a(f"v_and_b32 v{t0}, 15, v0")
    a(f"v_lshrrev_b32 v{t1}, 4, v0")
    a(f"s_lshl_b32 s{sE}, s{sKq}, 2")
    a(f"v_lshrrev_b32 v{t2}, 1, v{t1}")
    a(f"v_add_u32 v{t2}, s{sE}, v{t2}")
    a(f"v_xor_b32 v{t2}, v{t2}, v{t0}")
    a(f"v_lshlrev_b32 v{t2}, 4, v{t2}")
    a(f"v_lshl_add_u32 v{t2}, v{t0}, 8, v{t2}")
    a(f"v_and_b32 v{t3}, 1, v{t1}")
    a(f"v_lshl_add_u32 v{t2}, v{t3}, 3, v{t2}")
    a(f"s_mul_i32 s{sE}, s{sQt}, {48*256}")
    a(f"s_add_u32 s{sE}, s{sE}, {XBASE}")
    a(f"v_add_u32 v{QW}, s{sE}, v{t2}")
    a(f"v_xor_b32 v{QW+1}, 32, v{QW}")
    setup2()
    if opt.get("dbgtouch", 0):
        a("s_load_dwordx2 s[82:83], s[0:1], 88")
        a("s_waitcnt lgkmcnt(0)")
        a("v_mov_b32 v162, 0")
        a("global_load_dword v163, v162, s[82:83] sc1")
    if opt.get("latew", 1):
        issueW(sWs, sWg, vWo)
    a(f"s_mov_b32 s{sP}, 0")
    FB = [88, 24]
    def p1_read_list(sp):
        fb = FB[sp]
        L = []
        for ks in range(2):
            for tt in range(2):
                for e in range(2):
                    off = sp * 32768 + ks * 16384 + e * 2048
                    L.append(f"ds_read_b64_tr_b16 {vr(fb + (tt*2+ks)*4 + e*2, 2)}, v{WA+tt} offset:{off}")
            for rt in range(3):
                L.append(f"ds_read_b128 {vr(fb + 16 + (rt*2+ks)*4, 4)}, v{XA + sp*2 + ks} offset:{rt*4096}")
        return L
    def p1_mfma_list(sp):
        fb = FB[sp]
        L = []
        for ks in range(2):
            for rt in range(3):
                for tt in range(2):
                    acc = ACC + (tt*3+rt)*4
                    L.append(f"{MF16} {vr(acc,4)}, {vr(fb+(tt*2+ks)*4,4)}, {vr(fb+16+(rt*2+ks)*4,4)}, {vr(acc,4)}")
        return L
    def p1_reads(sp):
        for x in p1_read_list(sp): a(x)
    def p1_mfma(sp):
        for x in p1_mfma_list(sp): a(x)
    def p1_both(rsp, msp):
        R, M = p1_read_list(rsp), p1_mfma_list(msp)
        if opt.get("fl", 3) & 2:
            per = opt.get("flp", 2)
            for n in range(12):
                a(M[n])
                for x in R[per*n:per*n+per]: a(x)
            return
        for n in range(12):
            a(M[n])
            a(R[n])
            if n in (5, 11): a(R[12 + (n == 11)])
    a("s_barrier")
    P.stamp(2)
    p1_reads(0)
    a("s_waitcnt vmcnt(0) lgkmcnt(0)")
    a("s_branch K1_P1_MID")
    a.label("K1_P1_LOOP")
    a("s_barrier")
    p1_both(0, 1)
    a("s_waitcnt lgkmcnt(0)")
    a.label("K1_P1_MID")
    a("s_barrier")
    p1_both(1, 0)
    a(f"v_xor_b32 v{WA}, 0x10000, v{WA}")
    a(f"v_xor_b32 v{WA+1}, 0x10000, v{WA+1}")
    for v in range(4):
        a(f"v_xor_b32 v{XA+v}, 0x4000, v{XA+v}")
    a(f"s_add_u32 s{sP}, s{sP}, 1")
    a("s_waitcnt lgkmcnt(0)")
    a(f"s_cmp_lt_u32 s{sP}, 8")
    a("s_cbranch_scc1 K1_P1_LOOP")
    a("s_barrier")
    P.stamp(3, force=True)
    if TR == 2:
        for ks in range(8):
            kread(ks)
    p1_mfma(1)
    a("s_nop 7")
    for tt in range(2):
        for rt in range(3):
            acc = ACC + (tt*3+rt)*4
            if TR == 2:
                for r in range(0, 4, 2):
                    a(f"v_pk_mul_f32 {vr(acc+r,2)}, {vr(acc+r,2)}, s[{sCs}:{sCs+1}]")
            else:
              for r in range(4):
                a(f"v_mul_f32 v{acc+r}, v{vCs}, v{acc+r}")
            a(f"v_cvt_pk_bf16_f32 v{acc}, v{acc}, v{acc+1}")
            a(f"v_cvt_pk_bf16_f32 v{acc+1}, v{acc+2}, v{acc+3}")
            a(f"ds_write_b64 v{QW+tt}, {vr(acc,2)} offset:{rt*4096}")
    def zeroO():
        for r in range(0, 64, 2):
            a(f"v_mov_b64 {vr(O+r,2)}, 0")
        a(f"v_mov_b32 v{vL}, 0")
    if TR == 1:
        for ks in range(8):
            kread(ks)
        zeroO()
    if TRDIAG: P.stamp(6, force=True)
    a("s_waitcnt lgkmcnt(0)")
    if TRDIAG: P.stamp(7, force=True)
    a("s_branch K1_JOIN")
    if TOUCH:
        for sp in range(2):
            a.label(f"K1_T1_{sp}")
            a(f"s_cmp_lt_u32 s{sP}, {T2_START//2}")
            a(f"s_cbranch_scc1 K1_T1R_{sp}")
            a(f"s_sub_u32 s{sA}, s{sP}, {T2_START//2}")
            a(f"s_lshl_b32 s{sA}, s{sA}, 13")
            a(f"s_lshl_b32 s{sB}, s{sPair}, 16")
            a(f"s_add_u32 s{sA}, s{sA}, s{sB}")
            srd = SK if sp == 0 else SV
            a(f"buffer_load_dword v{vVoff}, v{vTch}, s[{srd}:{srd+3}], s{sA} offen{NTT}")
            a(f"s_branch K1_T1R_{sp}")

    a.label("K1_LOADER")
    a("s_setprio 3")
    a(f"s_sub_u32 s{sLam}, s{sW}, 8")
    a(f"v_lshrrev_b32 v{t0}, 4, v0")
    a(f"v_and_b32 v{t1}, 15, v0")
    a(f"s_lshl_b32 s{sE}, s{sLam}, 2")
    a(f"v_or_b32 v{t2}, s{sE}, v{t0}")
    a(f"v_xor_b32 v{t3}, v{t1}, v{t2}")
    a(f"v_lshlrev_b32 v{t3}, 4, v{t3}")
    a(f"v_lshl_add_u32 v{vXo}, v{t2}, 11, v{t3}")
    def issueKV_loader(srd, voff, slot, step, uid=None):
        a(f"s_lshl_b32 s{sB}, s{sLam}, 10")
        for e in range(8):
            lo = slot*32768 + (e >> 1)*8192 + (e & 1)*4096
            go = (e >> 1)*65536 + step*8192 + (e & 1)*4096
            a(f"s_add_u32 m0, s{sB}, {lo}")
            a(f"s_add_u32 s{sA}, s{sB}, {go}")
            a(f"buffer_load_dwordx4 v{voff}, s[{srd}:{srd+3}], s{sA} offen{NTD} lds")
    a(f"s_lshl_b32 s{sXs}, s{sLam}, 10")
    a(f"s_add_u32 s{sXs}, s{sXs}, {XBASE}")
    srd1()
    P.stamp(2)
    def nextW():
        a(f"s_add_u32 s{sWs}, s{sWs}, 32768")
        a(f"s_and_b32 s{sWs}, s{sWs}, 0x1ffff")
        a(f"s_add_u32 s{sWg}, s{sWg}, 524288")
        a(f"s_and_b32 s{sWg}, s{sWg}, 0x7fffff")
    def nextX():
        a(f"s_xor_b32 s{sXs}, s{sXs}, 0x4000")
        a(f"s_add_u32 s{sXg}, s{sXg}, 256")
        a(f"s_and_b32 s{sXg}, s{sXg}, 0x7ff")
    issueX(sXs, sXg)
    issueW(sWs, sWg, vWo)
    P.stamp(3)
    a(f"s_add_u32 s{sWs}, s{sWs}, {3*32768}")
    a(f"s_add_u32 s{sWg}, s{sWg}, {3*524288}")
    a(f"s_and_b32 s{sWg}, s{sWg}, 0x7fffff")
    srd2()
    setup2()
    a(f"s_mov_b32 s{sP}, 0")
    a("s_waitcnt vmcnt(0)")
    P.stamp(11)
    a("s_setprio 0")
    a("s_barrier")
    a("s_branch K1_LD_MID")
    a.label("K1_LD_LOOP")
    a("s_waitcnt vmcnt(16)")
    a("s_barrier")
    a.label("K1_LD_MID")
    nextX(); issueX(sXs, sXg)
    issueW(sWs, sWg, vWo); nextW()
    a("s_waitcnt vmcnt(19)")
    a("s_barrier")
    issueW(sWs, sWg, vWo); nextW()
    a(f"s_add_u32 s{sP}, s{sP}, 1")
    a(f"s_cmp_lt_u32 s{sP}, 6")
    a("s_cbranch_scc1 K1_LD_LOOP")
    a("s_waitcnt vmcnt(16)")
    a("s_barrier")
    nextX(); issueX(sXs, sXg)
    issueW(sWs, sWg, vWo)
    a("s_waitcnt vmcnt(19)")
    a("s_barrier")
    issueKV_loader(SK, vKoff, 0, 0)
    a("s_waitcnt vmcnt(16)")
    a("s_barrier")
    issueKV_loader(SV, vVoff, 1, 0)
    a("s_waitcnt vmcnt(16)")
    a("s_barrier")
    issueKV_loader(SK, vKoff, 2, 1)
    if TR: a("s_waitcnt vmcnt(16)")
    a("s_barrier")
    issueKV_loader(SV, vVoff, 3, 1)
    if TR:
        for ks in range(8):
            kread(ks)
        if TR == 1: zeroO()
    else:
        a("s_waitcnt vmcnt(8)")

    a.label("K1_JOIN")
    a("s_waitcnt lgkmcnt(0)")
    a(f"s_lshl_b32 s{sA}, s{sTok+1}, 7")
    a(f"s_xor_b32 s{sTok}, s{sTok}, s{sA}")
    a(f"s_or_b32 s{sTok}, s{sTok}, 1")
    if TOUCH:
        a(f"s_cmp_ge_u32 s{sW}, 4")
        a("s_cbranch_scc1 K1_NOTCH")
        a(f"v_lshlrev_b32 v{vKoff}, 7, v0")
        a.label("K1_NOTCH")
    a("s_barrier")
    if TRDIAG: P.stamp(9, force=True)
    for ks in range(8):
        a(f"v_xor_b32 v{vMx}, {ks << 5:#x}, v{vTb}")
        a(f"ds_read_b128 {vr(Q+4*ks,4)}, v{vMx}")
    if not TR:
        for ks in range(8):
            kread(ks)
    a.label("K1_JOIN2")
    if TR != 1: zeroO()
    a(f"s_mov_b32 s{sDk}, 65536")
    a(f"s_cmp_eq_u32 s{sQt}, {0 if opt.get('fix5', 1) else (1 if OPM == 1 else 2)}")
    a(f"s_cselect_b32 s{sTl}, {opt.get('wotstep', 6)}, 99")
    a("s_waitcnt lgkmcnt(0)")
    P.stamp(4)
    a(f"s_cmp_lt_u32 s{sW}, 4")
    a("s_cbranch_scc1 K1_A_BAR")
    if TR: a("s_waitcnt vmcnt(8)")
    a("s_branch K1_B_BAR")

    def rot(sreg):
        a(f"s_add_u32 s{sreg}, s{sreg}, 65536")
        a(f"s_cmp_ge_u32 s{sreg}, 163840")
        a(f"s_cselect_b32 s{sA}, 163840, 0")
        a(f"s_sub_u32 s{sreg}, s{sreg}, s{sA}")

    LIGHT = opt.get("light", 0)
    def ls(k):
        if LIGHT: a(f"s_memtime s[{84+2*k}:{85+2*k}]")
    def step_body(v):
        isB = (v == "B")
        dodma = isB and not (AB & 1)
        def dma(kind, j):
            if not dodma: return
            if kind == 'V':
                a(f"s_add_u32 m0, s{sVn}, s{sL[j]}")
                a(f"s_add_u32 s{sA}, s{sGstep}, s{sG[j]}")
                a(f"buffer_load_dwordx4 v{vVoff}, s[{SV}:{SV+3}], s{sA} offen{NTD} lds")
            else:
                a(f"s_add_u32 m0, s{sKn}, s{sL[j]}")
                a(f"s_add_u32 s{sA}, s{sGstep}, s{sG[j]}")
                a(f"buffer_load_dwordx4 v{vKoff}, s[{SK}:{SK+3}], s{sA} offen{NTD} lds")
        def vreads(kk):
            if AB & 2:
                for _ in range(8): a("s_nop 0")
                return
            for dt in range(4):
                for e in range(2):
                    a(f"ds_read_b64_tr_b16 {vr(F+(kk*4+dt)*4+2*e,2)}, v{VA} offset:{kk*4096+e*2048+dt*256}")
        a.label(f"K1_{v}_TOP")
        a(f"s_waitcnt {'vmcnt(4) ' if isB else ''}lgkmcnt(0)")
        a.label(f"K1_{v}_BAR")
        if PRIO: a(f"s_setprio {PQ}")
        if v == "B" or True: ls(0)
        a("s_barrier")
        ls(1)
        if opt.get("stepprof", 0) and not isB:
            a("s_memtime s[82:83]")
            a(f"s_lshl_b32 s{sA}, s2, 4")
            a(f"s_add_u32 s{sA}, s{sA}, s{sW}")
            a(f"s_lshl_b32 s{sA}, s{sA}, 6")
            a(f"s_lshl_b32 s{sB}, s{sStep}, 2")
            a(f"s_add_u32 s{sA}, s{sA}, s{sB}")
            a(f"s_add_u32 s{sA}, s{sA}, 65536")
            a(f"v_mov_b32 v{vTb}, s{sA}")
            a("s_waitcnt lgkmcnt(0)")
            a(f"v_mov_b32 v{vMx}, s82")
            a("s_mov_b64 exec, 1")
            a(f"buffer_store_dword v{vMx}, v{vTb}, s[{SFL}:{SFL+3}], 0 offen")
            a("s_mov_b64 exec, -1")
        def vread1(n):
            if AB & 2: return
            kk, dt = n >> 2, n & 3
            for e in range(2):
                a(f"ds_read_b64_tr_b16 {vr(F+n*4+2*e,2)}, v{VA} offset:{kk*4096+e*2048+dt*256}")
        for ks in range(8):
            cin = vr(NM,16) if ks == 0 else vr(S,16)
            a(f"{MF32} {vr(S,16)}, {vr(F+4*ks,4)}, {vr(Q+4*ks,4)}, {cin}")
            if ks < 7: vread1(ks)
            if ks == 0:
                a(f"v_add_u32 v{KA0}, s{sDk}, v{KA0}")
                a(f"v_add_u32 v{KA1}, s{sDk}, v{KA1}")
                a(f"s_mov_b32 s{sDk}, s{sKc}")
            if ks == 2:
                rot(sKc)
            if ks == 4:
                a(f"s_sub_u32 s{sDk}, s{sKc}, s{sDk}")
                a(f"s_mov_b32 s{sDv}, s{sVc}")
                a(f"s_add_u32 s{sVc}, s{sVc}, 65536")
                a(f"s_cmp_ge_u32 s{sVc}, 163840")
            if ks == 4:
                a(f"s_cselect_b32 s{sA}, 163840, 0")
                a(f"s_sub_u32 s{sVc}, s{sVc}, s{sA}")
            if ks in (1, 3, 5, 6):
                dma('K', {1: 0, 3: 1, 5: 2, 6: 3}[ks])
        ls(2)
        if PRIO and PS != PQ: a(f"s_setprio {PS}")
        vread1(7)
        a(f"s_sub_u32 s{sDv}, s{sVc}, s{sDv}")
        a(f"v_add_u32 v{VA}, s{sDv}, v{VA}")
        if not isB and WOT:
            a(f"s_cmp_eq_u32 s{sStep}, s{sTl}")
            a("s_cbranch_scc1 K1_A_TOUCH")
            a.label("K1_A_TOUCHR")
            a("s_nop 4")
        else:
            a("s_nop 6")
        a(f"s_cmp_lt_u32 s{sStep}, s{sSafe}")
        a(f"s_cbranch_scc1 K1_{v}_MAX")
        a.label(f"K1_{v}_CONT")
        ls(3)
        for k in range(8):
            if not AB & 8:
                a(f"v_exp_f32 v{S+2*k}, v{S+2*k}")
                a(f"v_exp_f32 v{S+2*k+1}, v{S+2*k+1}")
            if k >= 1 and not AB & 8:
                kk = k - 1
                a(f"v_add_f32 v{vL}, v{vL}, v{S+2*kk}")
                a(f"v_add_f32 v{vL}, v{vL}, v{S+2*kk+1}")
                a(f"v_cvt_pk_bf16_f32 v{S+kk}, v{S+2*kk}, v{S+2*kk+1}")
        a(f"v_add_f32 v{vL}, v{vL}, v{S+14}")
        a(f"v_add_f32 v{vL}, v{vL}, v{S+15}")
        a(f"v_cvt_pk_bf16_f32 v{S+7}, v{S+14}, v{S+15}")
        ls(4)
        if PRIO and PP != PS: a(f"s_setprio {PP}")
        if not LIGHT: a("s_waitcnt lgkmcnt(0)")
        else: a("s_waitcnt lgkmcnt(1)")
        for kk in range(2):
            for dt in range(4):
                n = kk*4 + dt
                a(f"{MF32} {vr(O+16*dt,16)}, {vr(F+(kk*4+dt)*4,4)}, {vr(S+4*kk,4)}, {vr(O+16*dt,16)}")
                if not AB & 4: kread(n)
                if n in (0, 1, 2, 3):
                    dma('V', n)
                if n == 4:
                    a(f"s_add_u32 s{sStep}, s{sStep}, 1")
                if n == 2 and isB:
                    pass
                if n == 4 and isB:
                    rot(sVn)
                if n == 5 and isB:
                    rot(sKn)
                if n == 6 and isB:
                    a(f"s_add_u32 s{sGstep}, s{sGstep}, 8192")
                    if NS2 != 8: a(f"s_and_b32 s{sGstep}, s{sGstep}, 0xffff")
        ls(5)
        if LIGHT:
            a(f"s_cmp_lg_u32 s{sStep}, 41")
            a(f"s_cbranch_scc1 K1_{v}_NOCOPY")
            a("s_waitcnt lgkmcnt(0)")
            for k in range(6):
                a(f"s_mov_b32 s{96+k}, s{84+2*k}")
            a.label(f"K1_{v}_NOCOPY")
        if isB:
            a(f"s_cmp_lt_u32 s{sStep}, {NS2-2}")
            a("s_cbranch_scc1 K1_B_TOP")
            a(f"s_waitcnt vmcnt({4 if opt.get('fix5', 1) else 0})")
            a("s_branch K1_A_TOP")
        elif opt.get('fix5', 1):
            a(f"s_cmp_ge_u32 s{sStep}, {NS2}")
            a("s_cbranch_scc1 K1_P2_END")
            a(f"s_cmp_lt_u32 s{sW}, 4")
            a("s_cbranch_scc1 K1_A_TOP")
            a("s_waitcnt vmcnt(0)")
            a("s_branch K1_A_TOP")
        else:
            a(f"s_cmp_lt_u32 s{sStep}, {NS2}")
            a("s_cbranch_scc1 K1_A_TOP")
            a("s_branch K1_P2_END")
        a.label(f"K1_{v}_MAX")
        a(f"v_max3_f32 v{vMx}, v{S+0}, v{S+1}, v{S+2}")
        a(f"v_max3_f32 v{vTb}, v{S+3}, v{S+4}, v{S+5}")
        a(f"v_max3_f32 v{vMx}, v{vMx}, v{S+6}, v{S+7}")
        a(f"v_max3_f32 v{vTb}, v{vTb}, v{S+8}, v{S+9}")
        a(f"v_max3_f32 v{vMx}, v{vMx}, v{S+10}, v{S+11}")
        a(f"v_max3_f32 v{vTb}, v{vTb}, v{S+12}, v{S+13}")
        a(f"v_max3_f32 v{vMx}, v{vMx}, v{S+14}, v{S+15}")
        a(f"v_max_f32 v{vMx}, v{vMx}, v{vTb}")
        a(f"v_cmp_lt_f32 vcc, s{sThr}, v{vMx}")
        a(f"s_cbranch_vccz K1_{v}_CONT")
        a.label(f"K1_{v}_RARE")
        a(f"v_mov_b32 v{vTb}, v{vMx}")
        a("s_nop 1")
        a(f"v_permlane32_swap_b32 v{vMx}, v{vTb}")
        a(f"v_max_f32 v{vMx}, v{vMx}, v{vTb}")
        a(f"v_max_f32 v{vMx}, s{sFloor}, v{vMx}")
        a(f"v_max_f32 v{vTb}, 0, v{vMx}")
        a(f"v_sub_f32 v{vTb}, 0, v{vTb}")
        a(f"v_exp_f32 v{vTb}, v{vTb}")
        a(f"s_mov_b32 s{sThr}, {f2u(8.0):#x}")
        a(f"s_mov_b32 s{sFloor}, 0")
        for r in range(16):
            a(f"v_sub_f32 v{S+r}, v{S+r}, v{vMx}")
        a(f"v_sub_f32 v{NM}, v{NM}, v{vMx}")
        for r in range(1, 16):
            a(f"v_mov_b32 v{NM+r}, v{NM}")
        a(f"s_cmp_eq_u32 s{sStep}, 0")
        a(f"s_cbranch_scc1 K1_{v}_CONT")
        a(f"v_mul_f32 v{vL}, v{vL}, v{vTb}")
        for r in range(64):
            a(f"v_mul_f32 v{O+r}, v{O+r}, v{vTb}")
        a(f"s_branch K1_{v}_CONT")

    step_body("B")
    step_body("A")
    if WOT:
        a.label("K1_A_TOUCH")
        a(f"s_cmp_eq_u32 s{sBr}, 0")
        a(f"s_cselect_b64 s[{STCH}:{STCH+1}], s[{SWOP}:{SWOP+1}], s[50:51]")
        a(f"s_mov_b32 s{STCH+2}, 8388608")
        a(f"v_mbcnt_lo_u32_b32 v{vKoff}, -1, 0")
        a(f"v_mbcnt_hi_u32_b32 v{vKoff}, -1, v{vKoff}")
        if OPM == 1:
            a(f"v_and_b32 v{vVoff}, 3, v{vKoff}")
            a(f"v_lshrrev_b32 v{vKoff}, 2, v{vKoff}")
            a(f"v_lshlrev_b32 v{vKoff}, 11, v{vKoff}")
            a(f"v_lshl_add_u32 v{vKoff}, v{vVoff}, 7, v{vKoff}")
            a(f"s_lshr_b32 s{sA}, s2, 3")
            a(f"s_lshl_b32 s{sA}, s{sA}, 2")
            a(f"s_add_u32 s{sA}, s{sA}, s{sKq}")
            a(f"s_lshl_b32 s{sA}, s{sA}, 16")
            a(f"s_lshl_b32 s{sB}, s{sKvh}, 9")
            a(f"s_add_u32 s{sA}, s{sA}, s{sB}")
            a(f"buffer_load_dword v{vVoff}, v{vKoff}, s[{STCH}:{STCH+3}], s{sA} offen{NTW}")
            a(f"s_add_u32 s{sA}, s{sA}, 32768")
            a(f"buffer_load_dword v{vVoff}, v{vKoff}, s[{STCH}:{STCH+3}], s{sA} offen{NTW}")
        else:
            a(f"v_lshlrev_b32 v{vKoff}, 7, v{vKoff}")
            a(f"s_lshr_b32 s{sA}, s2, 3")
            a(f"s_lshl_b32 s{sA}, s{sA}, 2")
            a(f"s_add_u32 s{sA}, s{sA}, s{sKq}")
            a(f"s_lshl_b32 s{sA}, s{sA}, 14")
            a(f"s_lshl_b32 s{sB}, s{sKvh}, 21")
            a(f"s_add_u32 s{sA}, s{sA}, s{sB}")
            a(f"buffer_load_dword v{vVoff}, v{vKoff}, s[{STCH}:{STCH+3}], s{sA} offen{NTW}")
            a(f"s_add_u32 s{sA}, s{sA}, 8192")
            a(f"buffer_load_dword v{vVoff}, v{vKoff}, s[{STCH}:{STCH+3}], s{sA} offen{NTW}")
        a("s_branch K1_A_TOUCHR")

    a.label("K1_REDO")
    a("s_waitcnt vmcnt(0) lgkmcnt(0)")
    a(f"v_mbcnt_lo_u32_b32 v0, -1, 0")
    a(f"v_mbcnt_hi_u32_b32 v0, -1, v0")
    a("s_barrier")
    patterns()
    _t = (8, 9, 10, 11, 12)
    setup2()
    a(f"s_mov_b32 s{sSafe}, 8")
    a(f"s_cmp_lt_u32 s{sW}, 8")
    a("s_cbranch_scc1 K1_REDO2")
    issueKV_loader(SK, vKoff, 0, 0, "r0")
    issueKV_loader(SV, vVoff, 1, 0, "r1")
    issueKV_loader(SK, vKoff, 2, 1, "r2")
    issueKV_loader(SV, vVoff, 3, 1, "r3")
    a("s_waitcnt vmcnt(8)")
    a.label("K1_REDO2")
    a("s_barrier")
    for ks in range(8):
        kread(ks)
    if TR == 1: zeroO()
    a("s_branch K1_JOIN2")

    a.label("K1_P2_END")
    P.stamp(5)
    FUSED = opt.get("fused", 1)
    SC1 = " sc1" if FUSED else ""
    t0, t1, t2, t3, t4 = NM+2, NM+3, NM+4, NM+5, NM+6
    vLane = NM+7
    FASTC = opt.get("safe", 0) == 0
    STAT, EX, STG = 32768, 36864, (135168 if FASTC else 114688)
    BADF = STAT + 3072
    if FUSED:
        a("s_load_dwordx2 s[48:49], s[0:1], 80")
    a(f"v_mbcnt_lo_u32_b32 v{vLane}, -1, 0")
    a(f"v_mbcnt_hi_u32_b32 v{vLane}, -1, v{vLane}")
    def staging_addr():
        a(f"v_and_b32 v{t2}, 15, v{vLane}")
        a(f"s_lshl_b32 s{sA}, s{sKq}, 2")
        a(f"v_xor_b32 v{t2}, s{sA}, v{t2}")
        a(f"v_lshlrev_b32 v{t2}, 4, v{t2}")
        a(f"v_and_b32 v{t0}, 31, v{vLane}")
        a(f"v_lshl_add_u32 v{t2}, v{t0}, 8, v{t2}")
        a(f"v_lshrrev_b32 v{t0}, 5, v{vLane}")
        a(f"v_lshl_add_u32 v{t2}, v{t0}, 3, v{t2}")
        a(f"s_lshl_b32 s{sA}, s{sQt}, 13")
        a(f"s_add_u32 s{sA}, s{sA}, {STG}")
        a(f"v_add_u32 v{t2}, s{sA}, v{t2}")
    def staging_write(R):
        PK = F
        for g in range(4):
            a(f"v_cvt_pk_bf16_f32 v{PK+2*g}, v{R+4*g}, v{R+4*g+1}")
            a(f"v_cvt_pk_bf16_f32 v{PK+2*g+1}, v{R+4*g+2}, v{R+4*g+3}")
            a(f"v_xor_b32 v{t0}, {g << 4}, v{t2}")
            a(f"ds_write_b64 v{t0}, {vr(PK+2*g,2)}")
    if FASTC:
        a(f"s_cmp_lg_u32 s{sSafe}, 0")
        a("s_cbranch_scc1 K1_COMB_GEN")
        a(f"v_mov_b32 v{t1}, v{vL}")
        a(f"v_lshlrev_b32 v{t2}, 4, v{vLane}")
        a(f"s_mul_i32 s{sB}, s{sQt}, {16*2048}")
        a(f"v_permlane32_swap_b32 v{vL}, v{t1}")
        a(f"s_lshl_b32 s{sA}, s{sKq}, 11")
        a(f"s_add_u32 s{sA}, s{sA}, s{sB}")
        a(f"s_add_u32 s{sA}, s{sA}, {EX}")
        a(f"v_add_f32 v{vL}, v{vL}, v{t1}")
        a(f"v_add_u32 v{t1}, s{sA}, v{t2}")
        a(f"v_cmp_ngt_f32 s[82:83], {f2u(2.0**20):#x}, v{vL}" if False else f"v_cmp_ngt_f32 vcc, {f2u(2.0**20):#x}, v{vL}")
        a(f"v_and_b32 v{t0}, 31, v{vLane}")
        a("s_nop 0")
        a(f"s_mov_b64 s[82:83], vcc")
        a(f"v_cmp_nlt_f32 vcc, {f2u(2.0**-20):#x}, v{vL}")
        a("s_nop 1")
        a(f"s_or_b64 vcc, vcc, s[82:83]")
        a(f"s_cmp_lg_u64 vcc, 0")
        a(f"s_cselect_b32 s{sD}, 1, 0")
        a(f"v_lshlrev_b32 v{t0}, 4, v{t0}")
        a(f"s_lshl_b32 s{sA}, s{sQt}, 9")
        a(f"s_add_u32 s{sA}, s{sA}, {STAT}")
        a(f"v_add_u32 v{t0}, s{sA}, v{t0}")
        a(f"s_lshl_b32 s{sA}, s{sKq}, 2")
        a(f"v_add_u32 v{t3}, s{sA}, v{t0}")
        a(f"ds_write_b32 v{t3}, v{vL}")
        a(f"s_lshl_b32 s{sA}, s{sW}, 2")
        a(f"s_add_u32 s{sA}, s{sA}, {BADF}")
        a(f"v_mov_b32 v{t3}, s{sA}")
        a(f"v_mov_b32 v{t4}, s{sD}")
        a(f"ds_write_b32 v{t3}, v{t4}")
        a("s_waitcnt lgkmcnt(0)")
        for dt in range(4):
            pk = F + 8*dt
            for j in range(8):
                a(f"v_cvt_pk_bf16_f32 v{pk+j}, v{O+16*dt+2*j}, v{O+16*dt+2*j+1}")
            for g2 in range(2):
                a(f"ds_write_b128 v{t1}, {vr(pk+4*g2,4)} offset:{dt*8192 + g2*1024}")
        A1, A2 = S, S+4
        i_, h_ = NM+8, NM+9
        a(f"v_and_b32 v{i_}, 31, v{vLane}")
        a(f"v_lshrrev_b32 v{h_}, 5, v{vLane}")
        a(f"v_bfe_u32 v{t3}, v{i_}, 2, 1")
        a(f"v_cmp_eq_u32 vcc, v{t3}, v{h_}")
        a(f"v_and_b32 v{t3}, 1, v{i_}")
        a(f"v_lshlrev_b32 v{t3}, 4, v{t3}")
        a(f"v_lshlrev_b32 v{t3}, v{t3}, {0x3f80:#x}" if False else f"v_mov_b32 v{t4}, {0x3f80:#x}")
        a(f"v_lshlrev_b32 v{t4}, v{t3}, v{t4}")
        a(f"v_cndmask_b32 v{t4}, 0, v{t4}, vcc")
        a(f"v_bfe_u32 v{t3}, v{i_}, 1, 1")
        a(f"v_lshrrev_b32 v{h_}, 3, v{i_}")
        a(f"v_lshl_or_b32 v{t3}, v{h_}, 1, v{t3}")
        for r in range(8):
            a(f"v_cmp_eq_u32 vcc, {r}, v{t3}")
            a(f"v_cndmask_b32 v{A1+r}, 0, v{t4}, vcc")
        a(f"s_lshl_b32 s{sA}, s{sKq}, 13")
        a(f"s_add_u32 s{sA}, s{sA}, s{sB}")
        a(f"s_add_u32 s{sA}, s{sA}, {EX}")
        a(f"v_add_u32 v{t1}, s{sA}, v{t2}")
        a(f"v_mov_b32 v{t3}, {BADF}")
        if CDIAG: P.stamp(2, force=2)
        a("s_waitcnt lgkmcnt(0)")
        if CDIAG: P.stamp(3, force=2)
        a("s_barrier")
        if CDIAG: P.stamp(4, force=2)
        for j in range(3):
            a(f"ds_read_b128 {vr(F+4*j,4)}, v{t3} offset:{16*j}")
        a(f"ds_read_b128 {vr(F+12,4)}, v{t0}")
        TT = O
        for src in range(4):
            for g2 in range(2):
                a(f"ds_read_b128 {vr(TT+8*src+4*g2,4)}, v{t1} offset:{src*2048+g2*1024}")
        staging_addr()
        a("s_waitcnt lgkmcnt(8)")
        for j in range(0, 12, 3):
            a(f"v_or3_b32 v{F+j}, v{F+j}, v{F+j+1}, v{F+j+2}")
        a(f"v_or3_b32 v{F}, v{F}, v{F+3}, v{F+6}")
        a(f"v_or_b32 v{F}, v{F}, v{F+9}")
        a(f"v_cmp_ne_u32 vcc, 0, v{F}")
        a("s_cbranch_vccnz K1_REDO")
        R = S + 8 if False else O + 32
        a(f"v_add_f32 v{F+12}, v{F+12}, v{F+13}")
        a(f"v_add_f32 v{F+14}, v{F+14}, v{F+15}")
        a(f"v_add_f32 v{F+12}, v{F+12}, v{F+14}")
        a(f"v_rcp_f32 v{F+12}, v{F+12}")
        for n in range(8):
            src, g2 = n >> 1, n & 1
            a(f"s_waitcnt lgkmcnt({7-n})")
            a(f"{MF32} {vr(R,16)}, {vr(A1+4*g2,4)}, {vr(TT+8*src+4*g2,4)}, {'0' if n == 0 else vr(R,16)}")
        a("s_nop 15")
        a("s_nop 3")
        if CDIAG: P.stamp(6, force=2)
        for r in range(16):
            a(f"v_mul_f32 v{R+r}, v{R+r}, v{F+12}")
        staging_write(R)
        a("s_branch K1_COMB_DONE")
        a.label("K1_COMB_GEN")
    a(f"v_mov_b32 v{t1}, v{vL}")
    ST = NM + 8
    a(f"v_sub_f32 v{ST}, 0, v{NM}")
    a(f"v_and_b32 v{t0}, 31, v{vLane}")
    a(f"v_permlane32_swap_b32 v{vL}, v{t1}")
    a(f"v_add_f32 v{ST+1}, v{vL}, v{t1}")
    a(f"v_cmp_ngt_f32 vcc, {f2u(2.0**20):#x}, v{ST+1}")
    a(f"s_lshl_b32 s{sA}, s{sW}, 2")
    a(f"s_add_u32 s{sA}, s{sA}, {BADF}")
    a(f"v_mov_b32 v{t3}, s{sA}")
    a(f"s_cmp_lg_u64 vcc, 0")
    a(f"s_cselect_b32 s{sA}, 1, 0")
    a(f"s_cmp_eq_u32 s{sSafe}, 1")
    a(f"s_cselect_b32 s{sA}, s{sA}, 0")
    a(f"v_mov_b32 v{t4}, s{sA}")
    a(f"ds_write_b32 v{t3}, v{t4}")
    a(f"v_lshlrev_b32 v{t0}, 3, v{t0}")
    a(f"s_lshl_b32 s{sA}, s{sQt}, 10")
    a(f"s_add_u32 s{sA}, s{sA}, {STAT}")
    a(f"v_add_u32 v{t0}, s{sA}, v{t0}")
    a(f"s_lshl_b32 s{sB}, s{sKq}, 8")
    a(f"v_add_u32 v{t1}, s{sB}, v{t0}")
    R = S
    a(f"v_lshlrev_b32 v{t2}, 4, v{vLane}")
    a(f"s_mul_i32 s{sB}, s{sQt}, {4*3*2048}")
    a(f"s_add_u32 s{sB}, s{sB}, {EX}")
    a(f"ds_write_b64 v{t1}, {vr(ST,2)}")
    a("s_waitcnt lgkmcnt(0)")
    for dt in range(4):
        a(f"s_cmp_eq_u32 s{sKq}, {dt}")
        a(f"s_cbranch_scc1 K1_OWN{dt}")
        a(f"s_sub_u32 s{sA}, s{sKq}, {dt+1}")
        a(f"s_and_b32 s{sA}, s{sA}, 3")
        a(f"s_lshl_b32 s{sA}, s{sA}, 11")
        a(f"s_add_u32 s{sA}, s{sA}, s{sB}")
        a(f"v_add_u32 v{t1}, s{sA}, v{t2}")
        pk = F + 8*dt
        for j in range(8):
            a(f"v_cvt_pk_bf16_f32 v{pk+j}, v{O+16*dt+2*j}, v{O+16*dt+2*j+1}")
        for g2 in range(2):
            a(f"ds_write_b128 v{t1}, {vr(pk+4*g2,4)} offset:{dt*3*2048 + g2*1024}")
        a(f"s_branch K1_NXT{dt}")
        a.label(f"K1_OWN{dt}")
        for r in range(0, 16, 2):
            a(f"v_mov_b64 {vr(R+r,2)}, {vr(O+16*dt+r,2)}")
        a.label(f"K1_NXT{dt}")
    a("s_waitcnt lgkmcnt(0)")
    a("s_barrier")
    a(f"v_mov_b32 v{t1}, {BADF}")
    for j in range(3):
        a(f"ds_read_b128 {vr(F+4*j,4)}, v{t1} offset:{16*j}")
    for rk in range(3):
        a(f"s_add_u32 s{sA}, s{sKq}, {rk+1}")
        a(f"s_and_b32 s{sA}, s{sA}, 3")
        a(f"s_lshl_b32 s{sA}, s{sA}, 8")
        a(f"v_add_u32 v{t1}, s{sA}, v{t0}")
        a(f"ds_read_b64 {vr(ST+2+2*rk,2)}, v{t1}")
    a(f"s_mul_i32 s{sA}, s{sKq}, {3*2048}")
    a(f"s_add_u32 s{sA}, s{sA}, s{sB}")
    a(f"v_add_u32 v{t1}, s{sA}, v{t2}")
    TT = O
    for rk in range(3):
        for g2 in range(2):
            a(f"ds_read_b128 {vr(TT+8*rk+4*g2,4)}, v{t1} offset:{rk*2048+g2*1024}")
    staging_addr()
    a("s_waitcnt lgkmcnt(6)")
    for j in range(0, 12, 3):
        a(f"v_or3_b32 v{F+j}, v{F+j}, v{F+j+1}, v{F+j+2}")
    a(f"v_or3_b32 v{F}, v{F}, v{F+3}, v{F+6}")
    a(f"v_or_b32 v{F}, v{F}, v{F+9}")
    a(f"v_cmp_ne_u32 vcc, 0, v{F}")
    a("s_cbranch_vccnz K1_REDO")
    mf = t3
    a(f"v_max3_f32 v{mf}, v{ST}, v{ST+2}, v{ST+4}")
    a(f"v_max_f32 v{mf}, v{mf}, v{ST+6}")
    for j in range(4):
        a(f"v_sub_f32 v{ST+2*j}, v{ST+2*j}, v{mf}")
    for j in range(4):
        a(f"v_exp_f32 v{ST+2*j}, v{ST+2*j}")
    a("s_nop 0")
    a(f"v_mul_f32 v{t4}, v{ST}, v{ST+1}")
    for j in range(1, 4):
        a(f"v_fma_f32 v{t4}, v{ST+2*j}, v{ST+2*j+1}, v{t4}")
    a(f"v_rcp_f32 v{t4}, v{t4}")
    a("s_nop 0")
    for j in range(4):
        a(f"v_mul_f32 v{ST+2*j}, v{ST+2*j}, v{t4}")
    for r in range(0, 16, 2):
        a(f"v_pk_mul_f32 {vr(R+r,2)}, {vr(R+r,2)}, {vr(ST,2)} op_sel_hi:[1,0]")
    U = O+32
    for rk in range(3):
        a(f"s_waitcnt lgkmcnt({4-2*rk})")
        for j in range(8):
            p = TT + 8*rk + j
            u = U + 2*(j & 3)
            a(f"v_lshlrev_b32 v{u}, 16, v{p}")
            a(f"v_and_b32 v{u+1}, 0xffff0000, v{p}")
            a(f"v_pk_fma_f32 {vr(R+2*j,2)}, {vr(u,2)}, {vr(ST+2+2*rk,2)}, {vr(R+2*j,2)} op_sel_hi:[1,0,1]")
    PK = F
    staging_write(R)
    if FASTC: a.label("K1_COMB_DONE")
    if not FUSED:
        a(f"v_lshrrev_b32 v{t0}, 4, v{vLane}")
        a(f"s_lshl_b32 s{sA}, s{sW}, 3")
        a(f"v_add_u32 v{t0}, s{sA}, v{t0}")
        a(f"v_and_b32 v{t1}, 15, v{vLane}")
        a(f"v_lshlrev_b32 v{t3}, 8, v{t0}")
        a(f"v_lshl_add_u32 v{t3}, v{t1}, 4, v{t3}")
        a(f"v_add_u32 v{t3}, {STG}, v{t3}")
        a(f"v_and_b32 v{t4}, 15, v{t0}")
        a(f"v_xor_b32 v{t1}, v{t1}, v{t4}")
        a(f"s_cmp_ge_u32 s{sW}, 6")
        a(f"s_cselect_b32 s{sA}, {256 - 48*8192}, 0")
        a(f"v_lshlrev_b32 v{t0}, 13, v{t0}")
        a(f"v_add_u32 v{t0}, s{sA}, v{t0}")
        a(f"v_lshl_add_u32 v{t4}, v{t1}, 4, v{t0}")
        a(f"v_xor_b32 v{t1}, 4, v{t1}")
        a(f"v_lshl_add_u32 v{t0}, v{t1}, 4, v{t0}")
        a(f"v_add_u32 v{t0}, {4*8192}, v{t0}")
        a("s_waitcnt lgkmcnt(0)")
        a("s_barrier")
        a(f"ds_read_b128 {vr(PK,4)}, v{t3}")
        a(f"ds_read_b128 {vr(PK+4,4)}, v{t3} offset:1024")
        a("s_waitcnt lgkmcnt(1)")
        a(f"buffer_store_dwordx4 {vr(PK,4)}, v{t4}, s[{SO}:{SO+3}], 0 offen")
        a("s_waitcnt lgkmcnt(0)")
        a(f"buffer_store_dwordx4 {vr(PK+4,4)}, v{t0}, s[{SO}:{SO+3}], 0 offen")
        P.stamp(6)
        if PROF: a("s_waitcnt vmcnt(0)")
        P.stamp(7)
        P.stamp(8, real=True)
        if LIGHT:
            for k in range(6):
                a(f"s_mov_b32 s{84+2+k}, s{96+k}")
        P.dump(52, sW, 64 << 20, 12)
        if opt.get("padto", 0):
            a.label("K1_PAD")
            a("s_memrealtime s[82:83]")
            a("s_waitcnt lgkmcnt(0)")
            a("s_sub_u32 s82, s82, s100")
            a(f"s_cmp_lt_u32 s82, {opt['padto']}")
            a("s_cbranch_scc1 K1_PAD")
        a.label("K1_END")
        a("s_endpgm")
        return NV
    a(f"v_mov_b32 v0, v{vLane}")
    if OPM == 1:
        a(f"s_cmp_ge_u32 s{sW}, 8")
        a(f"s_cselect_b32 s{sA}, 4, 0")
        a(f"s_sub_u32 s{sE}, s{sW}, s{sA}")
        a(f"s_mul_i32 s{sE}, s{sE}, 12")
    else:
        a(f"s_mul_i32 s{sE}, s{sW}, 12")
    a(f"v_lshrrev_b32 v{t0}, 4, v0")
    a(f"v_and_b32 v{t1}, 15, v0")
    a(f"v_lshlrev_b32 v{t3}, 8, v{t0}")
    a(f"v_lshl_add_u32 v{t3}, v{t1}, 4, v{t3}")
    a(f"s_lshl_b32 s{sA}, s{sE}, 8")
    a(f"s_add_u32 s{sA}, s{sA}, {STG}")
    a(f"v_add_u32 v{t3}, s{sA}, v{t3}")
    a(f"v_xor_b32 v{t1}, v{t1}, v{t0}")
    a(f"v_lshlrev_b32 v{t0}, 13, v{t0}")
    a("s_waitcnt lgkmcnt(0)")
    if CDIAG: P.stamp(7, force=2)
    a("s_barrier")
    if CDIAG: P.stamp(9, force=2)
    if OPM == 1:
        a(f"s_cmp_lt_u32 s{sQt}, 1")
        a("s_cbranch_scc1 K1_STORE")
        a(f"s_cmp_lt_u32 s{sQt}, 2")
        a("s_cbranch_scc1 OP_LOADER0")
    else:
        a(f"s_cmp_ge_u32 s{sW}, 8")
        a("s_cbranch_scc1 O3_LOADER")
    a.label("K1_STORE")
    for j in range(3):
        a(f"ds_read_b128 {vr(PK+4*j,4)}, v{t3} offset:{j*1024}")
    a(f"s_cmp_ge_u32 s{sE}, 48")
    a(f"s_cselect_b32 s{sB}, {256 - 48*8192}, 0")
    for j in range(3):
        a(f"s_add_u32 s{sA}, s{sE}, {4*j}")
        a(f"s_and_b32 s{sD}, s{sA}, 12")
        a(f"v_xor_b32 v{t4}, s{sD}, v{t1}")
        a(f"v_lshl_add_u32 v{t4}, v{t4}, 4, v{t0}")
        a(f"s_lshl_b32 s{sA}, s{sA}, 13")
        a(f"s_add_u32 s{sA}, s{sA}, s{sB}")
        a(f"s_waitcnt lgkmcnt({2-j})")
        a(f"buffer_store_dwordx4 {vr(PK+4*j,4)}, v{t4}, s[{SO}:{SO+3}], s{sA} offen{'' if opt.get('loc', 0) & 1 else ' sc1'}")
    P.stamp(6)
    if CDIAG: P.stamp(10, force=2)
    a("s_waitcnt vmcnt(0)")
    a("s_barrier")
    if CDIAG: P.stamp(11, force=2)
    P.stamp(7)
    if OPM == 1:
        outproj(a, opt, P, fused=True)
    else:
        outproj3(a, opt, P)
    a.label("K1_END")
    a("s_endpgm")
    return NV

def kernel2(a, opt):
    a.label("k2_kernel")
    a("s_cmp_ge_u32 s2, 256")
    a("s_cbranch_scc1 K2_END")
    P = Prof(a, 64, 62, 40)
    P.init(12)
    P.stamp(0, real=True)
    P.stamp(1)
    a("s_load_dwordx2 s[36:37], s[0:1], 32")
    a("s_load_dwordx2 s[50:51], s[0:1], 72")
    a("s_load_dwordx2 s[48:49], s[0:1], 80")
    a("s_load_dwordx2 s[52:53], s[0:1], 96")
    a("v_lshrrev_b32 v1, 6, v0")
    a("v_and_b32 v0, 63, v0")
    a("v_readfirstlane_b32 s4, v1")
    a("s_and_b32 s5, s2, 3")
    a("s_bfe_u32 s6, s2, 0x10002")
    a("s_lshr_b32 s7, s2, 5")
    a("s_bfe_u32 s3, s2, 0x20003")
    a("s_waitcnt lgkmcnt(0)")
    nv = outproj(a, opt, P, fused=False)
    a.label("K2_END")
    a("s_endpgm")
    return nv

def outproj3(a, opt, P):
    sW = 4
    SX, SWO, SO, SFL, SPX = 8, 12, 16, 28, 24
    sA, sB, sD, sLam = 20, 21, 22, 23
    sP, sSl, sSlX, sWg, sXg, sT = 32, 33, 34, 35, 38, 39
    NS, STG = 5, 28672
    PXOFF = 16 << 20
    t0, t1, t2, t3, t4 = 8, 9, 10, 11, 12
    WA, XA = 2, 14
    FBUF = [24, 64]
    ACC = 104
    RX = 24
    vWo, vXo, vPoll, vPa = 20, 21, 22, 23
    a(f"s_cmp_lg_u32 s{sW}, 0")
    a("s_cbranch_scc1 O3_NOFLAG")
    a(f"s_lshl_b32 s{sA}, s46, 2")
    a(f"s_add_u32 s{sA}, s{sA}, s45")
    a(f"v_mov_b32 v{t0}, s96")
    a(f"v_mov_b32 v{t1}, s{sA}")
    a("s_mov_b64 exec, 1")
    a(f"buffer_store_dword v{t0}, v{t1}, s[{SFL}:{SFL+3}], 0 offen{'' if opt.get('loc', 0) & 2 else ' sc1'}")
    a("s_mov_b64 exec, -1")
    a.label("O3_NOFLAG")
    a(f"v_bfe_u32 v{t0}, v0, 2, 2")
    a(f"v_lshrrev_b32 v{t1}, 4, v0")
    a(f"v_and_b32 v{t2}, 1, v{t1}")
    a(f"v_lshl_or_b32 v{t2}, v{t2}, 2, v{t0}")
    a(f"s_and_b32 s{sA}, s{sW}, 3")
    a(f"s_lshl_b32 s{sA}, s{sA}, 1")
    a(f"v_xor_b32 v{t2}, s{sA}, v{t2}")
    a(f"v_lshl_add_u32 v{t3}, v{t1}, 3, v{t0}")
    a(f"v_lshlrev_b32 v{t3}, 8, v{t3}")
    a(f"v_lshl_add_u32 v{t3}, v{t2}, 5, v{t3}")
    a(f"v_and_b32 v{t4}, 3, v0")
    a(f"v_lshl_add_u32 v{WA}, v{t4}, 3, v{t3}")
    a(f"v_xor_b32 v{WA+1}, 32, v{WA}")
    a(f"v_and_b32 v{t0}, 15, v0")
    a(f"v_lshrrev_b32 v{t2}, 1, v{t0}")
    a(f"v_xor_b32 v{t2}, v{t1}, v{t2}")
    a(f"v_lshlrev_b32 v{t2}, 4, v{t2}")
    a(f"v_lshl_add_u32 v{t2}, v{t0}, 7, v{t2}")
    a(f"s_lshr_b32 s{sA}, s{sW}, 2")
    a(f"s_mul_i32 s{sA}, s{sA}, 6144")
    a(f"s_add_u32 s{sA}, s{sA}, 16384")
    a(f"v_add_u32 v{XA}, s{sA}, v{t2}")
    a(f"v_xor_b32 v{XA+1}, 64, v{XA}")
    for r in range(0, 24, 2):
        a(f"v_mov_b64 {vr(ACC+r,2)}, 0")
    def read_list(buf):
        fb = FBUF[buf]
        L = []
        for ks in range(2):
            for tt in range(2):
                for e in range(2):
                    L.append(f"ds_read_b64_tr_b16 {vr(fb + (tt*2+ks)*4 + e*2, 2)}, v{WA+tt} offset:{ks*8192 + e*1024}")
            for rt in range(3):
                L.append(f"ds_read_b128 {vr(fb + 16 + (rt*2+ks)*4, 4)}, v{XA+ks} offset:{rt*2048}")
        return L
    def mfma_list(buf):
        fb = FBUF[buf]
        L = []
        for ks in range(2):
            for rt in range(3):
                for tt in range(2):
                    acc = ACC + (tt*3+rt)*4
                    L.append(f"{MF16} {vr(acc,4)}, {vr(fb+(tt*2+ks)*4,4)}, {vr(fb+16+(rt*2+ks)*4,4)}, {vr(acc,4)}")
        return L
    def reads(buf):
        for x in read_list(buf): a(x)
    def mfmas(buf):
        for x in mfma_list(buf): a(x)
    def both(rbuf, mbuf):
        R, M = read_list(rbuf), mfma_list(mbuf)
        if opt.get("fl", 3) & 1:
            per = opt.get("flo", 2)
            for n in range(12):
                a(M[n])
                for x in R[per*n:per*n+per]: a(x)
                if n == 8: adv()
            return
        for n in range(12):
            a(M[n])
            a(R[n])
            if n in (5, 11): a(R[12 + (n == 11)])
        adv()
    def adv():
        a(f"s_add_u32 s{sA}, s{sSl}, {STG}")
        a(f"s_cmp_ge_u32 s{sA}, {NS*STG}")
        a(f"s_cselect_b32 s{sB}, {NS*STG}, 0")
        a(f"s_sub_u32 s{sA}, s{sA}, s{sB}")
        a(f"s_sub_u32 s{sD}, s{sA}, s{sSl}")
        a(f"s_mov_b32 s{sSl}, s{sA}")
        for v in (WA, WA+1, XA, XA+1):
            a(f"v_add_u32 v{v}, s{sD}, v{v}")
    a(f"s_mov_b32 s{sSl}, 0")
    EX2 = opt.get("ex", 3) >= 2
    EX3 = opt.get("ex", 3) == 3
    PPOLL = opt.get("ppoll", 0)
    vTk, vTa, vPl = 128, 129, 130
    def poll_pipe(uid, addr, execmask, want, first_sleep, D=4, slp=0):
        a(f"s_mov_b64 exec, {execmask}")
        a(f"s_mov_b32 s{sP}, 0")
        for k in range(D):
            a(f"buffer_load_dword v{vPl+k}, v{addr}, s[{SFL}:{SFL+3}], 0 offen sc1")
            if k < D-1: a(f"s_sleep {first_sleep}")
        a.label(f"O3_PP{uid}")
        for k in range(D):
            a(f"s_waitcnt vmcnt({D-1})")
            a(f"v_cmp_eq_u32 vcc, s96, v{vPl+k}")
            a("s_nop 1")
            a(f"s_and_b32 s{sD}, vcc_lo, {want}")
            a(f"s_cmp_eq_u32 s{sD}, {want}")
            a(f"s_cbranch_scc1 O3_PP{uid}_OK")
            if slp: a(f"s_sleep {slp}")
            a(f"buffer_load_dword v{vPl+k}, v{addr}, s[{SFL}:{SFL+3}], 0 offen sc1")
        a(f"s_add_u32 s{sP}, s{sP}, 1")
        a(f"s_cmp_lt_u32 s{sP}, 100000")
        a(f"s_cbranch_scc1 O3_PP{uid}")
        a.label(f"O3_PP{uid}_OK")
        a("s_mov_b64 exec, -1")
    if EX2 and not EX3:
        a(f"s_lshl_b32 s{sA}, s{sW}, 7")
        a(f"s_add_u32 s{sA}, s{sA}, s47")
        a(f"s_add_u32 s{sA}, s{sA}, 64")
        a(f"v_mov_b32 v{vTa}, s{sA}")
        a(f"v_mov_b32 v{vTk}, 1")
    if PPOLL:
        a(f"s_cmp_lg_u32 s{sW}, 1")
        a("s_cbranch_scc1 O3_NOPOLL1")
        a(f"v_lshlrev_b32 v{t0}, 2, v0")
        a(f"v_add_u32 v{t0}, s45, v{t0}")
        poll_pipe(1, t0, "0xff", "0xff", opt.get("psl", 8), opt.get("pd1", 1), opt.get("pslp1", 2))
        a.label("O3_NOPOLL1")
    a("s_barrier")
    a("s_barrier")
    P.stamp(9)
    reads(0); adv()
    a("s_waitcnt lgkmcnt(0)")
    a(f"s_mov_b32 s{sP}, 0")
    a.label("O3_C_LOOP")
    for half in range(2):
        a("s_barrier")
        if EX2 and not EX3 and half == opt.get("tkh", 0):
            a(f"s_cmp_eq_u32 s{sP}, {opt.get('tkp', 6)}")
            a("s_cbranch_scc1 O3_TICKET")
            a.label("O3_TICKETR")
        both(1-half, half)
        a("s_waitcnt lgkmcnt(0)")
        if half == 0:
            a(f"s_cmp_eq_u32 s{sP}, 7")
            a("s_cbranch_scc1 O3_C_DONE")
    a(f"s_add_u32 s{sP}, s{sP}, 1")
    a("s_branch O3_C_LOOP")
    a.label("O3_C_DONE")
    mfmas(1)
    P.stamp(10)
    if EX2:
        a(f"s_sub_u32 s{sA}, s47, 16384")
        a(f"s_lshr_b32 s{sA}, s{sA}, 10")
        a(f"s_lshl_b32 s{sA}, s{sA}, 3")
        a(f"s_add_u32 s{sA}, s{sA}, s{sW}")
        a(f"s_mul_i32 s{sA}, s{sA}, {4*3072}")
        a(f"s_add_u32 s{sA}, s{sA}, {PXOFF}")
        a(f"s_add_u32 s{SPX}, s52, s{sA}")
        a(f"s_addc_u32 s{SPX+1}, s53, 0")
        a(f"s_mov_b32 s{SPX+2}, {4*3072}")
        a(f"s_mov_b32 s{SPX+3}, 0x20000")
        a(f"v_lshlrev_b32 v{t0}, 4, v0")
        a(f"s_lshl_b32 s{sB}, s{sW}, 7")
        a(f"s_add_u32 s{sB}, s{sB}, s47")
        if EX3:
            a(f"s_and_b32 s{sT}, s{sW}, 3")
            a(f"s_cmp_eq_u32 s{sT}, s5")
        else:
            a("s_waitcnt vmcnt(0)")
            a(f"v_readfirstlane_b32 s{sT}, v{vTk}")
            a("s_nop 3")
            a(f"s_cmp_eq_u32 s{sT}, 3")
        a("s_cbranch_scc1 O3_LAST")
        for k in range(12):
            a(f"v_cvt_pk_bf16_f32 v{RX+k}, v{ACC+2*k}, v{ACC+2*k+1}")
        a(f"s_mul_i32 s{sA}, s5, 3072")
        for j in range(3):
            a(f"buffer_store_dwordx4 {vr(RX+4*j,4)}, v{t0}, s[{SPX}:{SPX+3}], s{sA} offen offset:{j*1024} sc1")
        a(f"s_lshl_b32 s{sA}, s5, 2")
        a(f"s_add_u32 s{sA}, s{sA}, s{sB}")
        a(f"v_mov_b32 v{t1}, s96")
        a(f"v_mov_b32 v{t2}, s{sA}")
        a("s_waitcnt vmcnt(0)")
        P.stamp(3)
        a("s_mov_b64 exec, 1")
        a(f"buffer_store_dword v{t1}, v{t2}, s[{SFL}:{SFL+3}], 0 offen sc1")
        a("s_mov_b64 exec, -1")
        P.stamp(11)
        P.stamp(8, real=True)
        P.dump(52, sW, 64 << 20, 12)
        a("s_endpgm")
        if not EX3:
            a.label("O3_TICKET")
            a("s_mov_b64 exec, 1")
            a(f"buffer_atomic_add v{vTk}, v{vTa}, s[{SFL}:{SFL+3}], 0 offen sc0 sc1")
            a("s_mov_b64 exec, -1")
            a("s_branch O3_TICKETR")
        a.label("O3_LAST")
        a(f"v_lshlrev_b32 v{t1}, 2, v0")
        a(f"v_add_u32 v{t1}, s{sB}, v{t1}")
        a(f"s_lshl_b32 s{sB}, 1, s5")
        a(f"s_xor_b32 s{sB}, s{sB}, 15")
        poll_pipe(2, t1, "15", f"s{sB}", opt.get("psl2", 8), opt.get("pd2", 1), opt.get("pslp2", 2))
        P.stamp(4)
        if PROF: a(f"s_mov_b32 s{P.base+2}, s{sP}")
        for r in range(3):
            a(f"s_add_u32 s{sA}, s5, {r+1}")
            a(f"s_and_b32 s{sA}, s{sA}, 3")
            a(f"s_mul_i32 s{sA}, s{sA}, 3072")
            for j in range(3):
                a(f"buffer_load_dwordx4 {vr(RX+12*r+4*j,4)}, v{t0}, s[{SPX}:{SPX+3}], s{sA} offen offset:{j*1024} sc1")
        a(f"s_lshr_b32 s{sA}, s7, 1")
        a(f"s_mul_i32 s{sA}, s{sA}, 96")
        a(f"s_lshr_b32 s{sD}, s{sW}, 2")
        a(f"s_mul_i32 s{sD}, s{sD}, 48")
        a(f"s_add_u32 s{sA}, s{sA}, s{sD}")
        a(f"s_lshl_b32 s{sA}, s{sA}, 12")
        a(f"s_lshl_b32 s{sD}, s6, 11")
        a(f"s_add_u32 s{sA}, s{sA}, s{sD}")
        a(f"s_lshl_b32 s{sD}, s46, 8")
        a(f"s_add_u32 s{sA}, s{sA}, s{sD}")
        a(f"s_and_b32 s{sD}, s{sW}, 3")
        a(f"s_lshl_b32 s{sD}, s{sD}, 6")
        a(f"s_add_u32 s{sA}, s{sA}, s{sD}")
        a(f"s_mov_b32 s{SO}, s48")
        a(f"s_mov_b32 s{SO+1}, s49")
        a(f"s_mov_b32 s{SO+2}, {8*48*2048*2}")
        a(f"s_mov_b32 s{SO+3}, 0x20000")
        a(f"v_and_b32 v{t1}, 15, v0")
        a(f"v_lshrrev_b32 v{t2}, 4, v0")
        a(f"v_lshlrev_b32 v{t1}, 12, v{t1}")
        a(f"v_lshl_add_u32 v{t1}, v{t2}, 3, v{t1}")
        U = RX + 36
        for r in range(3):
            for j in range(3):
                a(f"s_waitcnt vmcnt({8 - 3*r - j})")
                for k in range(4):
                    p = RX + 12*r + 4*j + k
                    u = U + 2*k
                    a(f"v_lshlrev_b32 v{u}, 16, v{p}")
                    a(f"v_and_b32 v{u+1}, 0xffff0000, v{p}")
                for k in range(4):
                    u = U + 2*k
                    d = ACC + 2*(4*j + k)
                    a(f"v_pk_add_f32 {vr(d,2)}, {vr(d,2)}, {vr(u,2)}")
        P.stamp(5)
        for tt in range(2):
            for rt in range(3):
                acc = ACC + (tt*3+rt)*4
                a(f"v_cvt_pk_bf16_f32 v{acc}, v{acc}, v{acc+1}")
                a(f"v_cvt_pk_bf16_f32 v{acc+1}, v{acc+2}, v{acc+3}")
                a(f"s_add_u32 s{sD}, s{sA}, {rt*16*4096}")
                a(f"buffer_store_dwordx2 {vr(acc,2)}, v{t1}, s[{SO}:{SO+3}], s{sD} offen offset:{tt*32}{['', ' sc1', ' nt', ' sc0 sc1', ' sc1 nt'][opt.get('outsc', 1)]}")
        P.stamp(11)
        P.stamp(8, real=True)
        P.dump(52, sW, 64 << 20, 12)
        a("s_endpgm")
    if not EX2:
        a(f"s_sub_u32 s{sA}, s47, 16384")
        a(f"s_lshr_b32 s{sA}, s{sA}, 8")
        a(f"s_mul_i32 s{sA}, s{sA}, {16*12288}")
        a(f"s_add_u32 s{sA}, s{sA}, {PXOFF}")
        a(f"s_add_u32 s{SPX}, s52, s{sA}")
        a(f"s_addc_u32 s{SPX+1}, s53, 0")
        a(f"s_mov_b32 s{SPX+2}, {16*12288}")
        a(f"s_mov_b32 s{SPX+3}, 0x20000")
        a(f"v_lshlrev_b32 v{t0}, 4, v0")
        a(f"v_add_u32 v{t3}, 4096, v{t0}")
        a(f"s_and_b32 s{sD}, s{sW}, 3")
        a(f"s_lshr_b32 s{sB}, s{sW}, 2")
        a(f"s_mul_i32 s{sB}, s{sB}, 6144")
        a(f"s_cmp_eq_u32 s{sD}, s5")
        a("s_cbranch_scc1 O3_OWNER")
        a(f"s_lshl_b32 s{sA}, s{sD}, 2")
        a(f"s_add_u32 s{sA}, s{sA}, s5")
        a(f"s_mul_i32 s{sA}, s{sA}, 12288")
        a(f"s_add_u32 s{sA}, s{sA}, s{sB}")
        a("s_nop 4")
        for tile in range(6):
            a(f"buffer_store_dwordx4 {vr(ACC+4*tile,4)}, v{t0 if tile < 4 else t3}, s[{SPX}:{SPX+3}], s{sA} offen offset:{(tile & 3)*1024} sc1")
        a("s_waitcnt vmcnt(0)")
        a("s_barrier")
        a(f"s_cmp_lg_u32 s{sW}, 0")
        a("s_cbranch_scc1 O3_FIN")
        a.label("O3_FLAG2")
        a(f"s_lshl_b32 s{sA}, s5, 2")
        a(f"s_add_u32 s{sA}, s{sA}, s47")
        a(f"v_mov_b32 v{t1}, s96")
        a(f"v_mov_b32 v{t2}, s{sA}")
        a("s_mov_b64 exec, 1")
        a(f"buffer_store_dword v{t1}, v{t2}, s[{SFL}:{SFL+3}], 0 offen sc1")
        a("s_mov_b64 exec, -1")
        a(f"s_cmp_eq_u32 s5, 0")
        a("s_cbranch_scc1 O3_OWN2")
        a.label("O3_FIN")
        P.stamp(11)
        P.stamp(8, real=True)
        P.dump(52, sW, 64 << 20, 12)
        a("s_endpgm")
        a.label("O3_OWNER")
        a("s_barrier")
        a(f"s_cmp_eq_u32 s{sW}, 0")
        a("s_cbranch_scc1 O3_FLAG2")
        a.label("O3_OWN2")
        P.stamp(3)
        a(f"v_lshlrev_b32 v{t1}, 2, v0")
        a(f"v_add_u32 v{t1}, s47, v{t1}")
        a("s_mov_b64 exec, 15")
        a(f"s_mov_b32 s{sP}, 0")
        a.label("O3_POLL2")
        a(f"buffer_load_dword v{t2}, v{t1}, s[{SFL}:{SFL+3}], 0 offen sc1")
        a("s_waitcnt vmcnt(0)")
        a(f"v_cmp_eq_u32 vcc, s96, v{t2}")
        a("s_nop 1")
        a("s_cmp_eq_u32 vcc_lo, 15")
        a("s_cbranch_scc1 O3_POLL2_OK")
        a(f"s_sleep {opt.get('psleep', 2)}")
        a(f"s_add_u32 s{sP}, s{sP}, 1")
        a(f"s_cmp_lt_u32 s{sP}, 400000")
        a("s_cbranch_scc1 O3_POLL2")
        a.label("O3_POLL2_OK")
        a("s_mov_b64 exec, -1")
        P.stamp(4)
        if PROF: a(f"s_mov_b32 s{P.base+2}, s{sP}")
        for r in range(3):
            a(f"s_add_u32 s{sA}, s5, {r+1}")
            a(f"s_and_b32 s{sA}, s{sA}, 3")
            a(f"s_lshl_b32 s{sD}, s5, 2")
            a(f"s_add_u32 s{sA}, s{sA}, s{sD}")
            a(f"s_mul_i32 s{sA}, s{sA}, 12288")
            a(f"s_add_u32 s{sA}, s{sA}, s{sB}")
            for tile in range(6):
                a(f"buffer_load_dwordx4 {vr(RX+24*r+4*tile,4)}, v{t0 if tile < 4 else t3}, s[{SPX}:{SPX+3}], s{sA} offen offset:{(tile & 3)*1024} sc1")
        a(f"s_lshr_b32 s{sA}, s7, 1")
        a(f"s_mul_i32 s{sA}, s{sA}, 96")
        a(f"s_lshr_b32 s{sD}, s{sW}, 2")
        a(f"s_mul_i32 s{sD}, s{sD}, 48")
        a(f"s_add_u32 s{sA}, s{sA}, s{sD}")
        a(f"s_lshl_b32 s{sA}, s{sA}, 12")
        a(f"s_lshl_b32 s{sD}, s6, 11")
        a(f"s_add_u32 s{sA}, s{sA}, s{sD}")
        a(f"s_lshl_b32 s{sD}, s46, 8")
        a(f"s_add_u32 s{sA}, s{sA}, s{sD}")
        a(f"s_lshl_b32 s{sD}, s5, 6")
        a(f"s_add_u32 s{sA}, s{sA}, s{sD}")
        a(f"s_mov_b32 s{SO}, s48")
        a(f"s_mov_b32 s{SO+1}, s49")
        a(f"s_mov_b32 s{SO+2}, {8*48*2048*2}")
        a(f"s_mov_b32 s{SO+3}, 0x20000")
        a(f"v_and_b32 v{t1}, 15, v0")
        a(f"v_lshrrev_b32 v{t2}, 4, v0")
        a(f"v_lshlrev_b32 v{t1}, 12, v{t1}")
        a(f"v_lshl_add_u32 v{t1}, v{t2}, 3, v{t1}")
        for r in range(3):
            a(f"s_waitcnt vmcnt({12-6*r})")
            for k in range(24):
                a(f"v_add_f32 v{ACC+k}, v{ACC+k}, v{RX+24*r+k}")
        P.stamp(5)
        for tt in range(2):
            for rt in range(3):
                acc = ACC + (tt*3+rt)*4
                a(f"v_cvt_pk_bf16_f32 v{acc}, v{acc}, v{acc+1}")
                a(f"v_cvt_pk_bf16_f32 v{acc+1}, v{acc+2}, v{acc+3}")
                a(f"s_add_u32 s{sD}, s{sA}, {rt*16*4096}")
                a(f"buffer_store_dwordx2 {vr(acc,2)}, v{t1}, s[{SO}:{SO+3}], s{sD} offen offset:{tt*32}{['', ' sc1', ' nt', ' sc0 sc1', ' sc1 nt'][opt.get('outsc', 1)]}")
        P.stamp(11)
        P.stamp(8, real=True)
        P.dump(52, sW, 64 << 20, 12)
        a("s_endpgm")

    a.label("O3_LOADER")
    a("s_cmp_eq_u32 s6, 0")
    a(f"s_cselect_b64 s[{SWO}:{SWO+1}], s[36:37], s[50:51]")
    a(f"s_lshl_b32 s{sA}, s5, 21")
    a(f"s_lshl_b32 s{sB}, s46, 8")
    a(f"s_add_u32 s{sA}, s{sA}, s{sB}")
    a(f"s_add_u32 s{SWO}, s{SWO}, s{sA}")
    a(f"s_addc_u32 s{SWO+1}, s{SWO+1}, 0")
    a(f"s_sub_u32 s{SWO+2}, 2097152, s{sB}")
    a(f"s_mov_b32 s{SWO+3}, 0x20000")
    a(f"s_lshr_b32 s{sA}, s7, 1")
    a(f"s_mul_i32 s{sA}, s{sA}, 96")
    a(f"s_mul_i32 s{sB}, s6, 384")
    a(f"s_add_u32 s{sA}, s{sA}, s{sB}")
    a(f"s_lshl_b32 s{sA}, s{sA}, 13")
    a(f"s_lshl_b32 s{sB}, s5, 11")
    a(f"s_add_u32 s{sA}, s{sA}, s{sB}")
    a(f"s_add_u32 s{SX}, s52, s{sA}")
    a(f"s_addc_u32 s{SX+1}, s53, 0")
    a(f"s_sub_u32 s{SX+2}, {96*8192}, s{sB}")
    a(f"s_mov_b32 s{SX+3}, 0x20000")
    a(f"s_sub_u32 s{sLam}, s{sW}, 8")
    a(f"v_lshrrev_b32 v{t0}, 4, v0")
    a(f"v_and_b32 v{t1}, 15, v0")
    a(f"s_and_b32 s{sA}, s{sLam}, 1")
    a(f"s_lshl_b32 s{sB}, s{sA}, 2")
    a(f"v_or_b32 v{t2}, s{sB}, v{t0}")
    a(f"v_lshlrev_b32 v{t2}, 1, v{t2}")
    a(f"v_xor_b32 v{t2}, v{t1}, v{t2}")
    a(f"v_lshlrev_b32 v{t2}, 4, v{t2}")
    a(f"v_lshl_add_u32 v{vWo}, v{t0}, 11, v{t2}")
    a(f"s_lshl_b32 s{sA}, s{sA}, 1")
    a(f"s_lshr_b32 s{sB}, s{sLam}, 1")
    a(f"s_lshl_b32 s{sB}, s{sB}, 2")
    a(f"s_add_u32 s{sA}, s{sA}, s{sB}")
    a(f"s_lshl_b32 s{sB}, s{sA}, 13")
    a(f"v_add_u32 v{vWo}, s{sB}, v{vWo}")
    a(f"s_lshl_b32 s{sSl}, s{sA}, 10")
    a(f"s_add_u32 s{sD}, s{sSl}, {NS*STG}")
    a(f"v_lshrrev_b32 v{t1}, 3, v0")
    a(f"s_lshl_b32 s{sA}, s{sLam}, 3")
    a(f"v_add_u32 v{t1}, s{sA}, v{t1}")
    a(f"s_and_b32 s{sA}, s{sLam}, 1")
    a(f"s_lshl_b32 s{sA}, s{sA}, 2")
    a(f"v_add_u32 v{t0}, s{sA}, v{t0}")
    a(f"v_and_b32 v{t2}, 7, v0")
    a(f"v_xor_b32 v{t2}, v{t2}, v{t0}")
    a(f"v_lshlrev_b32 v{t2}, 4, v{t2}")
    a(f"v_lshl_add_u32 v{vXo}, v{t1}, 13, v{t2}")
    a(f"s_lshl_b32 s{sSlX}, s{sLam}, 10")
    a(f"s_add_u32 s40, s{sSlX}, {NS*STG}")
    a(f"s_lshl_b32 s{sWg}, s3, 19")
    a(f"s_lshl_b32 s{sXg}, s3, 9")
    def issueW():
        for j in range(4):
            dm = (j & 1) + 8*(j >> 1)
            a(f"s_add_u32 m0, s{sSl}, {dm*1024}")
            a(f"s_add_u32 s{sA}, s{sWg}, {dm*8192}")
            if not opt.get("o3ab", 0) & 1: a(f"buffer_load_dwordx4 v{vWo}, s[{SWO}:{SWO+3}], s{sA} offen lds")
        a(f"s_add_u32 s{sSl}, s{sSl}, {STG}")
        a(f"s_cmp_ge_u32 s{sSl}, s{sD}")
        a(f"s_cselect_b32 s{sB}, {NS*STG}, 0")
        a(f"s_sub_u32 s{sSl}, s{sSl}, s{sB}")
        a(f"s_add_u32 s{sWg}, s{sWg}, 131072")
        a(f"s_and_b32 s{sWg}, s{sWg}, 0x1fffff")
    def issueX():
        for j in range(3):
            a(f"s_add_u32 m0, s{sSlX}, {16384 + j*4096}")
            a(f"s_add_u32 s{sA}, s{sXg}, {j*262144}")
            if not opt.get("o3ab", 0) & 2: a(f"buffer_load_dwordx4 v{vXo}, s[{SX}:{SX+3}], s{sA} offen{'' if (opt.get('o3ab', 0) & 4 or opt.get('loc', 0) & 8) else ' sc1'} lds")
        a(f"s_add_u32 s{sSlX}, s{sSlX}, {STG}")
        a(f"s_cmp_ge_u32 s{sSlX}, s40")
        a(f"s_cselect_b32 s{sB}, {NS*STG}, 0")
        a(f"s_sub_u32 s{sSlX}, s{sSlX}, s{sB}")
        a(f"s_add_u32 s{sXg}, s{sXg}, 128")
        a(f"s_and_b32 s{sXg}, s{sXg}, 0x7ff")
    def loop(n, body, uid):
        a(f"s_mov_b32 s{sP}, 0")
        a.label(f"O3_LP{uid}")
        body()
        a(f"s_add_u32 s{sP}, s{sP}, 1")
        a(f"s_cmp_lt_u32 s{sP}, {n}")
        a(f"s_cbranch_scc1 O3_LP{uid}")
    WE = opt.get("wearly", 2)
    loop(WE, issueW, 0)
    P.stamp(6)
    a("s_barrier")
    P.stamp(7)
    if opt.get("o3diag", 0):
        a("s_waitcnt vmcnt(0)")
        P.stamp(2)
    loop(5 - WE, issueW, 1)
    if opt.get("o3diag", 0):
        a("s_waitcnt vmcnt(0)")
        P.stamp(3)
    a(f"s_cmp_lg_u32 s{sW}, {99 if PPOLL else 8}")
    a("s_cbranch_scc1 O3_POLL_DONE")
    a(f"v_lshlrev_b32 v{vPa}, 2, v0")
    a(f"v_add_u32 v{vPa}, s45, v{vPa}")
    a("s_mov_b64 exec, 0xff")
    a(f"s_mov_b32 s{sP}, 0")
    a.label("O3_POLL1")
    if opt.get('loc', 0) & 4:
        a(f"v_mov_b32 v{vPoll}, 0")
        a(f"buffer_atomic_or v{vPoll}, v{vPa}, s[{SFL}:{SFL+3}], 0 offen sc0")
    else:
        a(f"buffer_load_dword v{vPoll}, v{vPa}, s[{SFL}:{SFL+3}], 0 offen sc1")
    a("s_waitcnt vmcnt(0)")
    a(f"v_cmp_eq_u32 vcc, s96, v{vPoll}")
    a("s_nop 1")
    a("s_cmp_eq_u32 vcc_lo, 0xff")
    a("s_cbranch_scc1 O3_POLL_OK")
    a(f"s_sleep {opt.get('psleep', 2)}")
    a(f"s_add_u32 s{sP}, s{sP}, 1")
    a(f"s_cmp_lt_u32 s{sP}, 400000")
    a("s_cbranch_scc1 O3_POLL1")
    a.label("O3_POLL_OK")
    a("s_mov_b64 exec, -1")
    a.label("O3_POLL_DONE")
    P.stamp(9)
    a("s_barrier")
    P.stamp(10)
    loop(5, issueX, 2)
    a("s_waitcnt vmcnt(12)")
    if opt.get("o3diag", 0): P.stamp(4)
    a("s_barrier")
    for cnt in (9, 13, 17):
        a(f"s_waitcnt vmcnt({cnt})")
        a("s_barrier")
        issueW(); issueX()
    a(f"s_mov_b32 s{sP}, 3")
    a.label("O3_L_LOOP")
    a("s_waitcnt vmcnt(21)")
    a("s_barrier")
    issueW(); issueX()
    a(f"s_add_u32 s{sP}, s{sP}, 1")
    a(f"s_cmp_lt_u32 s{sP}, 11")
    a("s_cbranch_scc1 O3_L_LOOP")
    for s_ in range(11, 15):
        a(f"s_waitcnt vmcnt({7*(15-(s_+1))})")
        a("s_barrier")
    P.dump(52, sW, 64 << 20, 12)

def outproj(a, opt, P, fused):
    sW = 4
    NTW2 = " nt" if opt.get("ntw2", 0) else ""
    XFL = " sc1" if (fused and opt.get("xsc1", 1)) else ""
    SX, SWO, SO, SFL = 8, 12, 16, 28
    sA, sB, sD, sLam, sP = 20, 21, 22, 23, 24
    sSl, sWg, sXg = 25, 26, 27
    NS = 5
    STG = 28672
    t0, t1, t2, t3, t4 = 1, 2, 3, 4, 5
    WA = 6
    XA = 10
    vWo, vXo, vPoll = 20, 21, 22
    ACC = 12
    FR = 60
    NV = 116
    END = "K1_END" if fused else "K2_END"
    if fused:
        a(f"s_cmp_lg_u32 s{sW}, 0")
        a("s_cbranch_scc1 OP_NOFLAG")
        a(f"s_lshl_b32 s{sA}, s46, 2")
        a(f"v_mov_b32 v{t0}, s96")
        a(f"v_mov_b32 v{t1}, s{sA}")
        a("s_mov_b64 exec, 1")
        a(f"buffer_store_dword v{t0}, v{t1}, s[{SFL}:{SFL+3}], 0 offen sc1")
        a("s_mov_b64 exec, -1")
        a.label("OP_NOFLAG")
        a(f"s_cmp_ge_u32 s{sW}, 8")
        a(f"s_cbranch_scc1 {END}")
    def srd_w():
        a("s_cmp_eq_u32 s6, 0")
        a(f"s_cselect_b64 s[{SWO}:{SWO+1}], s[36:37], s[50:51]")
        a(f"s_lshl_b32 s{sA}, s5, 9")
        a(f"s_lshl_b32 s{sB}, s3, 7")
        a(f"s_add_u32 s{sA}, s{sA}, s{sB}")
        a(f"s_add_u32 s{SWO}, s{SWO}, s{sA}")
        a(f"s_addc_u32 s{SWO+1}, s{SWO+1}, 0")
        a(f"s_sub_u32 s{SWO+2}, 8388608, s{sA}")
        a(f"s_mov_b32 s{SWO+3}, 0x20000")
    def srd_x():
        a(f"s_lshl_b32 s{sB}, s6, 3")
        a(f"s_add_u32 s{sB}, s{sB}, s7")
        a(f"s_mul_i32 s{sD}, s{sB}, {48*8192}")
        a(f"s_add_u32 s{SX}, s52, s{sD}")
        a(f"s_addc_u32 s{SX+1}, s53, 0")
        a(f"s_mov_b32 s{SX+2}, {48*8192}")
        a(f"s_mov_b32 s{SX+3}, 0x20000")
    def srd_o():
        a(f"s_lshl_b32 s{sA}, s5, 9")
        a(f"s_lshl_b32 s{sB}, s3, 7")
        a(f"s_add_u32 s{sA}, s{sA}, s{sB}")
        a(f"s_mul_i32 s{sD}, s7, {48*4096}")
        a(f"s_lshl_b32 s{sB}, s6, 11")
        a(f"s_add_u32 s{sB}, s{sB}, s{sA}")
        a(f"s_add_u32 s{sD}, s{sD}, s{sB}")
        a(f"s_add_u32 s{SO}, s48, s{sD}")
        a(f"s_addc_u32 s{SO+1}, s49, 0")
        a(f"s_sub_u32 s{SO+2}, {48*4096}, s{sB}")
        a(f"s_mov_b32 s{SO+3}, 0x20000")
    if not fused:
        srd_w(); srd_x()
        a(f"s_cmp_ge_u32 s{sW}, 4")
        a("s_cbranch_scc1 OP_LOADER")
    srd_o()
    a(f"v_bfe_u32 v{t0}, v0, 2, 2")
    a(f"v_lshrrev_b32 v{t1}, 4, v0")
    a(f"v_lshl_add_u32 v{t2}, v{t1}, 3, v{t0}")
    a(f"s_lshl_b32 s{sA}, s{sW}, 5")
    a(f"v_add_u32 v{t2}, s{sA}, v{t2}")
    a(f"v_lshlrev_b32 v{t2}, 7, v{t2}")
    a(f"v_bfe_u32 v{t3}, v0, 3, 1")
    a(f"v_bfe_u32 v{t4}, v0, 4, 1")
    a(f"v_lshl_or_b32 v{t3}, v{t4}, 1, v{t3}")
    a(f"v_lshl_add_u32 v{t2}, v{t3}, 5, v{t2}")
    a(f"v_and_b32 v{t3}, 3, v0")
    a(f"v_lshl_add_u32 v{WA}, v{t3}, 3, v{t2}")
    for t in range(1, 4):
        a(f"v_xor_b32 v{WA+t}, {t << 5}, v{WA}")
    a(f"v_and_b32 v{t0}, 15, v0")
    a(f"s_lshl_b32 s{sA}, s{sW}, 2")
    a(f"v_add_u32 v{t2}, s{sA}, v{t1}")
    a(f"v_xor_b32 v{t2}, v{t2}, v{t0}")
    a(f"v_lshlrev_b32 v{t2}, 4, v{t2}")
    a(f"v_lshl_add_u32 v{t2}, v{t0}, 8, v{t2}")
    a(f"v_add_u32 v{XA}, 16384, v{t2}")
    for r in range(0, 48, 2):
        a(f"v_mov_b64 {vr(ACC+r,2)}, 0")
    def reads(buf):
        fb = FR + buf*28
        for t in range(4):
            for e in range(2):
                a(f"ds_read_b64_tr_b16 {vr(fb+4*t+2*e,2)}, v{WA+t} offset:{e*512}")
        for rt in range(3):
            a(f"ds_read_b128 {vr(fb+16+4*rt,4)}, v{XA} offset:{rt*4096}")
    def adv():
        a(f"s_add_u32 s{sA}, s{sSl}, {STG}")
        a(f"s_cmp_ge_u32 s{sA}, {NS*STG}")
        a(f"s_cselect_b32 s{sB}, {NS*STG}, 0")
        a(f"s_sub_u32 s{sA}, s{sA}, s{sB}")
        a(f"s_sub_u32 s{sD}, s{sA}, s{sSl}")
        a(f"s_mov_b32 s{sSl}, s{sA}")
        for t in range(4):
            a(f"v_add_u32 v{WA+t}, s{sD}, v{WA+t}")
        a(f"v_add_u32 v{XA}, s{sD}, v{XA}")
    def mfmas(buf):
        fb = FR + buf*28
        for rt in range(3):
            for t in range(4):
                acc = ACC + (t*3+rt)*4
                a(f"{MF16} {vr(acc,4)}, {vr(fb+4*t,4)}, {vr(fb+16+4*rt,4)}, {vr(acc,4)}")
    a(f"s_mov_b32 s{sSl}, 0")
    a("s_barrier")
    P.stamp(9 if fused else 2)
    reads(0); adv()
    a("s_waitcnt lgkmcnt(0)")
    a(f"s_mov_b32 s{sP}, 0")
    if fused:
        a("s_barrier")
        reads(1); adv()
        mfmas(0)
        a("s_waitcnt lgkmcnt(0)")
        a("s_barrier")
        for half in (1, 0):
            a("s_barrier")
            reads(1-half); adv()
            mfmas(half)
            a("s_waitcnt lgkmcnt(0)")
        a("s_barrier")
        a(f"s_mov_b32 s{sP}, 1")
        a("s_branch OP_C_MID")
    a.label("OP_C_LOOP")
    for half in range(2):
        if half == 1: a.label("OP_C_MID")
        a("s_barrier")
        reads(1-half); adv()
        mfmas(half)
        a("s_waitcnt lgkmcnt(0)")
        if half == 0:
            a(f"s_cmp_eq_u32 s{sP}, 15")
            a("s_cbranch_scc1 OP_C_DONE")
    a(f"s_add_u32 s{sP}, s{sP}, 1")
    a("s_branch OP_C_LOOP")
    a.label("OP_C_DONE")
    mfmas(1)
    P.stamp(10 if fused else 3)
    a("s_barrier")
    a("s_nop 7")
    a(f"v_lshlrev_b32 v{t0}, 4, v0")
    a(f"s_mul_i32 s{sA}, s{sW}, 12288")
    a(f"v_add_u32 v{t1}, s{sA}, v{t0}")
    for tile in range(12):
        a(f"ds_write_b128 v{t1}, {vr(ACC+4*tile,4)} offset:{tile*1024}")
    a("s_waitcnt lgkmcnt(0)")
    a("s_barrier")
    a(f"s_mul_i32 s{sA}, s{sW}, 3072")
    a(f"v_add_u32 v{t1}, s{sA}, v{t0}")
    for src in range(4):
        for rt in range(3):
            a(f"ds_read_b128 {vr(ACC+(src*3+rt)*4,4)}, v{t1} offset:{src*12288+rt*1024}")
    a("s_waitcnt lgkmcnt(0)")
    for rt in range(3):
        for r in range(4):
            d = ACC + rt*4 + r
            a(f"v_add_f32 v{d}, v{d}, v{d+12}")
            a(f"v_add_f32 v{d+24}, v{d+24}, v{d+36}")
        for r in range(4):
            d = ACC + rt*4 + r
            a(f"v_add_f32 v{d}, v{d}, v{d+24}")
        d = ACC + rt*4
        a(f"v_cvt_pk_bf16_f32 v{d}, v{d}, v{d+1}")
        a(f"v_cvt_pk_bf16_f32 v{d+1}, v{d+2}, v{d+3}")
    a(f"v_and_b32 v{t0}, 15, v0")
    a(f"v_lshrrev_b32 v{t1}, 4, v0")
    a(f"v_lshlrev_b32 v{t0}, 12, v{t0}")
    a(f"v_lshl_add_u32 v{t0}, v{t1}, 3, v{t0}")
    a(f"s_lshl_b32 s{sA}, s{sW}, 5")
    a(f"v_add_u32 v{t0}, s{sA}, v{t0}")
    for rt in range(3):
        a(f"s_mov_b32 s{sA}, {rt*16*4096}")
        a(f"buffer_store_dwordx2 {vr(ACC+rt*4,2)}, v{t0}, s[{SO}:{SO+3}], s{sA} offen")
    if fused:
        P.stamp(11)
        P.stamp(8, real=True)
        P.dump(52, sW, 64 << 20, 12)
    else:
        P.stamp(4)
        if PROF: a("s_waitcnt vmcnt(0)")
        P.stamp(5)
        P.stamp(6, real=True)
        P.dump(52, sW, 65 << 20, 12)
    a("s_endpgm")

    a.label("OP_LOADER0" if fused else "OP_LOADER")
    if fused:
        srd_w(); srd_x()
    a(f"s_sub_u32 s{sLam}, s{sW}, 4")
    a(f"v_lshrrev_b32 v{t0}, 3, v0")
    a(f"v_and_b32 v{t1}, 7, v0")
    a(f"v_bfe_u32 v{t2}, v0, 4, 1")
    a(f"s_and_b32 s{sA}, s{sLam}, 1")
    a(f"s_lshl_b32 s{sA}, s{sA}, 1")
    a(f"v_or_b32 v{t2}, s{sA}, v{t2}")
    a(f"v_lshlrev_b32 v{t2}, 1, v{t2}")
    a(f"v_xor_b32 v{t1}, v{t1}, v{t2}")
    a(f"v_lshlrev_b32 v{t1}, 4, v{t1}")
    a(f"s_lshl_b32 s{sA}, s{sLam}, 3")
    a(f"v_add_u32 v{t0}, s{sA}, v{t0}")
    a(f"v_lshl_add_u32 v{vWo}, v{t0}, 11, v{t1}")
    a(f"v_lshrrev_b32 v{t0}, 4, v0")
    a(f"v_and_b32 v{t1}, 15, v0")
    a(f"s_lshl_b32 s{sA}, s{sLam}, 2")
    a(f"v_or_b32 v{t2}, s{sA}, v{t0}")
    a(f"v_xor_b32 v{t1}, v{t1}, v{t2}")
    a(f"v_lshlrev_b32 v{t1}, 4, v{t1}")
    a(f"v_lshl_add_u32 v{vXo}, v{t2}, 13, v{t1}")
    def issueW(slot_s, goff_s):
        for j in range(4):
            a(f"s_add_u32 m0, s{slot_s}, {j*4096}")
            a(f"s_add_u32 s{sA}, s{goff_s}, {j*32*2048}")
            a(f"buffer_load_dwordx4 v{vWo}, s[{SWO}:{SWO+3}], s{sA} offen{NTW2} lds")
    def issueX(slot_s, goff_s):
        for j in range(3):
            a(f"s_add_u32 m0, s{slot_s}, {16384 + j*4096}")
            a(f"s_add_u32 s{sA}, s{goff_s}, {j*16*8192}")
            a(f"buffer_load_dwordx4 v{vXo}, s[{SX}:{SX+3}], s{sA} offen{XFL} lds")
    def adv_slot(r):
        a(f"s_add_u32 s{r}, s{r}, {STG}")
        a(f"s_cmp_ge_u32 s{r}, s{sD}")
        a(f"s_cselect_b32 s{sB}, {NS*STG}, 0")
        a(f"s_sub_u32 s{r}, s{r}, s{sB}")
    sTW, sTX, sTb, sTp = 33, 38, 34, 40
    def sigma(t):
        a(f"s_lshr_b32 s{sA}, s{t}, 1")
        a(f"s_lshl_b32 s{sA}, s{sA}, 2")
        a(f"s_lshr_b64 s[{sTp}:{sTp+1}], s[{sTb}:{sTb+1}], s{sA}")
        a(f"s_and_b32 s{sTp}, s{sTp}, 15")
        a(f"s_lshl_b32 s{sTp}, s{sTp}, 1")
        a(f"s_and_b32 s{sA}, s{t}, 1")
        a(f"s_or_b32 s{sTp}, s{sTp}, s{sA}")
    def advW():
        adv_slot(sSl)
        if fused:
            a(f"s_add_u32 s{sTW}, s{sTW}, 1")
            sigma(sTW)
            a(f"s_lshl_b32 s{sWg}, s{sTp}, 18")
        else:
            a(f"s_add_u32 s{sWg}, s{sWg}, {128*2048}")
    def advX():
        adv_slot(sSlX)
        if fused:
            a(f"s_add_u32 s{sTX}, s{sTX}, 1")
            sigma(sTX)
            a(f"s_lshl_b32 s{sXg}, s{sTp}, 8")
        else:
            a(f"s_add_u32 s{sXg}, s{sXg}, 256")
    def issue():
        issueW(sSl, sWg); advW(); issueX(sSlX, sXg); advX()
    sSlX = 32
    a(f"s_lshl_b32 s{sSl}, s{sLam}, 10")
    a(f"s_mov_b32 s{sSlX}, s{sSl}")
    a(f"s_add_u32 s{sD}, s{sSl}, {NS*STG}")
    if fused:
        a(f"s_mul_i32 s{sA}, s3, 0x11111111")
        a(f"s_mul_i32 s{sB}, s5, 0x11111111")
        for half, hi in ((0, 0x11110000), (1, 0x33332222)):
            a(f"s_add_u32 s{sTp}, s{sA}, 0x32103210")
            a(f"s_and_b32 s{sTp}, s{sTp}, 0x33333333")
            a(f"s_add_u32 s{sTp+1}, s{sB}, {hi:#x}")
            a(f"s_and_b32 s{sTp+1}, s{sTp+1}, 0x33333333")
            a(f"s_lshl_b32 s{sTp+1}, s{sTp+1}, 2")
            a(f"s_or_b32 s{sTb+half}, s{sTp}, s{sTp+1}")
        a(f"s_mov_b32 s{sTW}, 0")
        a(f"s_mov_b32 s{sTX}, 0")
        a(f"s_lshl_b32 s{sWg}, s46, 19")
        a(f"s_lshl_b32 s{sXg}, s46, 9")
        a(f"s_lshl_b32 s{sA}, s5, 2")
        a(f"s_lshl_b32 s39, 15, s{sA}")
        a(f"s_mov_b32 s{sP}, 0")
        a.label("OP_LW")
        issueW(sSl, sWg); advW()
        a(f"s_add_u32 s{sP}, s{sP}, 1")
        a(f"s_cmp_lt_u32 s{sP}, 2")
        a("s_cbranch_scc1 OP_LW")
        P.stamp(6)
        a("s_barrier")
        P.stamp(7)
        a(f"v_lshlrev_b32 v{t3}, 2, v0")
        if opt.get("xdelay", 0): a(f"s_sleep {opt['xdelay']}")
        issueX(sSlX, sXg); advX()
        issueX(sSlX, sXg); advX()
        a("s_waitcnt vmcnt(3)")
        a("s_barrier")
        def look(uid):
            a(f"s_cmp_lg_u32 s{sW}, 4")
            a(f"s_cbranch_scc1 OP_NOLOOK{uid}")
            a("s_mov_b64 exec, 0xffff")
            a(f"buffer_load_dword v{vPoll}, v{t3}, s[{SFL}:{SFL+3}], 0 offen sc1")
            a("s_mov_b64 exec, -1")
            a.label(f"OP_NOLOOK{uid}")
        look(1)
        issueW(sSl, sWg); advW()
        issueW(sSl, sWg); advW()
        a("s_waitcnt vmcnt(8)")
        a("s_barrier")
        issueW(sSl, sWg); advW()
        issueW(sSl, sWg); advW()
        def poll(mask, uid):
            a(f"s_cmp_lg_u32 s{sW}, 4")
            a(f"s_cbranch_scc1 OP_POLL_DONE{uid}")
            a("s_mov_b64 exec, 0xffff")
            a(f"s_mov_b32 s{sP}, 0")
            a.label(f"OP_POLL_LOOP{uid}")
            a(f"v_cmp_eq_u32 vcc, s96, v{vPoll}")
            a("s_nop 1")
            a(f"s_and_b32 s{sA}, vcc_lo, {mask}")
            a(f"s_cmp_eq_u32 s{sA}, {mask}")
            a(f"s_cbranch_scc1 OP_POLL_OK{uid}")
            a(f"s_sleep {opt.get('psleep', 2)}")
            a(f"buffer_load_dword v{vPoll}, v{t3}, s[{SFL}:{SFL+3}], 0 offen sc1")
            a("s_waitcnt vmcnt(0)")
            a(f"s_add_u32 s{sP}, s{sP}, 1")
            a(f"s_cmp_lt_u32 s{sP}, 400000")
            a(f"s_cbranch_scc1 OP_POLL_LOOP{uid}")
            a.label(f"OP_POLL_OK{uid}")
            if uid == 1:
                a(f"buffer_load_dword v{vPoll}, v{t3}, s[{SFL}:{SFL+3}], 0 offen sc1")
            a("s_mov_b64 exec, -1")
            a.label(f"OP_POLL_DONE{uid}")
        poll("s39", 1)
        P.stamp(9)
        a("s_barrier")
        P.stamp(10)
        for _ in range(4):
            issueX(sSlX, sXg); advX()
        for k, cnt in enumerate((9, 13, 17)):
            a(f"s_waitcnt vmcnt({cnt})")
            a("s_barrier")
            if k == 2 or True:
                pass
            if k < 2:
                issue()
                if k == 1:
                    poll("0xffff", 2)
                    a("s_barrier")
            else:
                issue()
        a(f"s_mov_b32 s{sP}, 4")
    else:
        a(f"s_mov_b32 s{sWg}, 0")
        a(f"s_mov_b32 s{sXg}, 0")
        for st in range(5):
            issue()
        a("s_waitcnt vmcnt(28)")
        a("s_barrier")
        a(f"s_mov_b32 s{sP}, 0")
    a.label("OP_L_LOOP")
    a("s_waitcnt vmcnt(21)")
    a("s_barrier")
    issue()
    a(f"s_add_u32 s{sP}, s{sP}, 1")
    a(f"s_cmp_lt_u32 s{sP}, 27")
    a("s_cbranch_scc1 OP_L_LOOP")
    for s_ in range(27, 31):
        a(f"s_waitcnt vmcnt({7*(31-(s_+1))})")
        a("s_barrier")
    a("s_barrier")
    a("s_barrier")
    if fused:
        P.dump(52, sW, 64 << 20, 12)
    return NV

HEADER = open("cdna_kernels/" + NAME + ".s.ref").read().split("; Override launch")[0]

def kd(name, nv, ns):
    acc = (nv + 3)//4*4
    return f"""
.amdhsa_kernel {name}
  .amdhsa_next_free_vgpr {nv}
  .amdhsa_next_free_sgpr {ns}
  .amdhsa_accum_offset {acc}
  .amdhsa_group_segment_fixed_size 0
  .amdhsa_kernarg_size 104
  .amdhsa_user_sgpr_count 2
  .amdhsa_user_sgpr_kernarg_segment_ptr 1
  .amdhsa_system_sgpr_workgroup_id_x 1
.end_amdhsa_kernel
"""

def main(out, opt):
    fused = opt.get("fused", 1)
    a1 = Asm(); nv1 = kernel1(a1, opt)
    s = HEADER
    if fused:
        body = a1.text().replace("k1_kernel", NAME + "_kernel")
        s += "; @launch grid=(256,1,1) block=(768,1,1) lds=163840\n"
        s += '.amdgcn_target "amdgcn-amd-amdhsa--gfx950"\n.text\n'
        nm = NAME + "_kernel"
        s += f".globl {nm}\n.p2align 8\n.type {nm},@function\n" + body
        s += '.section .rodata,"a"\n'
        s += ".p2align 6" + kd(nm, nv1, 102)
    else:
        a2 = Asm(); nv2 = kernel2(a2, opt)
        s += "; @launch kernel=k1_kernel grid=(256,1,1) block=(768,1,1) lds=163840\n"
        s += "; @launch kernel=k2_kernel grid=(256,1,1) block=(512,1,1) lds=143360\n"
        s += '.amdgcn_target "amdgcn-amd-amdhsa--gfx950"\n.text\n'
        for nm, body in (("k1_kernel", a1), ("k2_kernel", a2)):
            s += f".globl {nm}\n.p2align 8\n.type {nm},@function\n" + body.text()
        s += '.section .rodata,"a"\n'
        s += ".p2align 6" + kd("k1_kernel", nv1, 102) + ".p2align 6" + kd("k2_kernel", nv2, 96)
    open(out, "w").write(s)

if __name__ == "__main__":
    if "--prof" in sys.argv:
        PROF = True
        sys.argv.remove("--prof")
    if "--rt" in sys.argv:
        PROF = True
        RT = True
        sys.argv.remove("--rt")
    if "--dbgprof" in sys.argv:
        PROF = True
        DBGPROF = True
        sys.argv.remove("--dbgprof")
    if "--fine" in sys.argv:
        PROF = True
        FINE = True
        sys.argv.remove("--fine")
    if "--cdiag" in sys.argv:
        PROF = True
        CDIAG = True
        sys.argv.remove("--cdiag")
    if "--trdiag" in sys.argv:
        PROF = True
        TRDIAG = True
        sys.argv.remove("--trdiag")
    opt = {}
    for x in list(sys.argv):
        if x.startswith("--o:"):
            k, v = x[4:].split("=")
            opt[k] = int(v)
            sys.argv.remove(x)
    main(sys.argv[1] if len(sys.argv) > 1 else "cdna_kernels/" + NAME + ".s", opt)
```

```python
import sys, struct, math

NAME = "concat_heads__gqa_block_cached__gqa_block_cached__near_ridge"

def f2u(x):
    return struct.unpack("<I", struct.pack("<f", x))[0]

class Asm:
    def __init__(self):
        self.L = []
    def __call__(self, s):
        import re
        m = re.search(r"offset:(\d+)", s)
        if m:
            lim = 4095 if s.lstrip().startswith(("buffer_", "global_")) else 65535
            assert int(m.group(1)) <= lim, s
        for line in s.split("\n"):
            self.L.append("    " + line.strip() if not line.strip().endswith(":") else line.strip())
    def label(self, s):
        self.L.append(s + ":")
    def c(self, s):
        self.L.append("    ; " + s)
    def text(self):
        return "\n".join(self.L) + "\n"

def vr(base, n=1):
    return f"v{base}" if n == 1 else f"v[{base}:{base+n-1}]"
def sr(base, n=1):
    return f"s{base}" if n == 1 else f"s[{base}:{base+n-1}]"

MF32 = "v_mfma_f32_32x32x16_bf16"
MF16 = "v_mfma_f32_16x16x32_bf16"

DEBUG_Q = False
PROF = False
FINE = False
DBGPROF = False
RT = False
TRDIAG = False
CDIAG = False
class Prof:
    uid = 0
    def __init__(self, a, base, tmp, srd):
        self.a, self.base, self.tmp, self.srd = a, base, tmp, srd
    def init(self, n):
        if not PROF: return
        for i in range(n):
            self.a(f"s_mov_b32 s{self.base+i}, 0")
    def fine(self, slot, cond_sgpr, val, uid):
        if not FINE: return
        a = self.a
        a(f"s_cmp_lg_u32 s{cond_sgpr}, {val}")
        a(f"s_cbranch_scc1 FINE_{uid}")
        a(f"s_memtime s[{self.tmp}:{self.tmp+1}]")
        a("s_waitcnt lgkmcnt(0)")
        a(f"s_mov_b32 s{self.base+slot}, s{self.tmp}")
        a.label(f"FINE_{uid}")
    def stamp(self, slot, real=False, force=False):
        if not PROF: return
        if FINE and slot in (2, 3, 4, 5, 6, 7) : return
        if TRDIAG and slot in (3, 6, 7, 9) and not force: return
        if CDIAG and slot in (2, 3, 4, 6, 7, 9, 10, 11) and force != 2: return
        a = self.a
        a(f"{'s_memrealtime' if (real or RT) else 's_memtime'} s[{self.tmp}:{self.tmp+1}]")
        a("s_waitcnt lgkmcnt(0)")
        a(f"s_mov_b32 s{self.base+slot}, s{self.tmp}")
    def dump(self, ws_lo, swave, region, nmax):
        if not PROF: return
        a = self.a
        b = self.srd
        if DBGPROF:
            Prof.uid += 1
            a(f"s_or_b32 s{self.tmp}, s2, s{swave}")
            a(f"s_cmp_lg_u32 s{self.tmp}, 0")
            a(f"s_cbranch_scc1 DBGP_SKIP{Prof.uid}")
            a(f"s_load_dwordx2 s[{b}:{b+1}], s[0:1], 88")
            a("s_waitcnt lgkmcnt(0)")
            a(f"s_mov_b32 s{b+2}, 256")
            a(f"s_mov_b32 s{b+3}, 0x20000")
            a("s_mov_b64 exec, 1")
            a("v_mov_b32 v1, 0")
            for i in range(nmax):
                if i in (0, 1): continue
                ref = 0 if i == 8 else 1
                a(f"s_sub_u32 s{self.tmp}, s{self.base+i}, s{self.base+ref}")
                a(f"v_mov_b32 v2, s{self.tmp}")
                a(f"buffer_store_dword v2, v1, s[{b}:{b+3}], 0 offen offset:{4*i}")
                a("s_nop 0")
            a.label(f"DBGP_SKIP{Prof.uid}")
            return
        a(f"s_add_u32 s{b}, s{ws_lo}, {region}")
        a(f"s_addc_u32 s{b+1}, s{ws_lo+1}, 0")
        a(f"s_mov_b32 s{b+2}, {256*16*64}")
        a(f"s_mov_b32 s{b+3}, 0x20000")
        a(f"s_lshl_b32 s{self.tmp}, s2, 4")
        a(f"s_add_u32 s{self.tmp}, s{self.tmp}, s{swave}")
        a(f"s_lshl_b32 s{self.tmp}, s{self.tmp}, 6")
        a("s_mov_b64 exec, 1")
        a(f"v_mov_b32 v1, s{self.tmp}")
        for i in range(nmax):
            a(f"v_mov_b32 v2, s{self.base+i}")
            a(f"buffer_store_dword v2, v1, s[{b}:{b+3}], 0 offen offset:{4*i}")
            a("s_nop 0")

def flaglayout(opt):
    f1l = opt.get("f1", 0) and opt.get("ex", 3) == 3
    return f1l, (32768 if f1l else 16384)

def direct_o(opt):
    return opt.get("do", 1) and opt.get("fused", 1) and opt.get("op", 3) == 3

def kernel1(a, opt):
    F1L, SEC = flaglayout(opt)
    DO = direct_o(opt)
    T2_START = opt.get("t2_start", 8)
    TOUCH = opt.get("touch", 0)
    PRIO = opt.get("prio", 1)
    PQ, PS, PP = opt.get("pq", 2), opt.get("ps", 1), opt.get("pp", 0)
    DMAQ = opt.get("dmaq", 1)
    NTD = " nt" if opt.get("ntd", 0) else ""
    NTQ = " nt" if opt.get("ntq", opt.get("ntd", 0)) else ""
    NTX = " nt" if opt.get("ntx", opt.get("ntd", 0)) else ""
    NTT = " nt" if opt.get("ntt", 1) else ""
    ROT = opt.get("rot", 4)
    TPS = opt.get("tps", 2)
    NS2 = opt.get("p2steps", 8)
    AB = opt.get("ablate", 0)
    CSCALE = 128 ** -0.5 * math.log2(math.e)
    WOT = opt.get("wot", 1)
    OPM = opt.get("op", 3) if opt.get("fused", 1) else 1
    NTW = " nt" if opt.get("ntw", 0) else ""
    SWOP = 36
    sW = 4
    sKvh, sBr, sBt, sPair = 5, 6, 7, 3
    SX, SWQ, SK, SV, SO = 8, 12, 16, 20, 24
    STCH = 40
    sThr, sFloor = 54, 55
    sG = [56, 57, 58, 59]
    sL = [60, 61, 62, 63]
    sStep = 64
    sVn, sKn = 65, 66
    sGstep = 67
    sKc, sVc = 68, 69
    sQt, sKq = 70, 71
    sA, sB, sD = 72, 73, 74
    sLam = 75
    sWs, sWg, sXs, sXg = 76, 77, 78, 79
    sP = 80
    sE = 81
    sChk = 100
    SFL, sTok = 28, 96
    FLAGOFF = 8 << 20
    sGrp, sIdx, sRdy = 45, 46, 47
    sSafe = 44
    sDk, sDv, sTl = 76, 77, 78
    vMx = 0
    vL = 1
    KA0, KA1, VA = 2, 3, 4
    vKoff, vVoff = 5, 6
    vTb = 7
    NM = 8
    O = 24
    Q = 88
    S = 120
    F = 136
    NV = 168
    t0, t1, t2, t3, t4 = 8, 9, 10, 11, 12
    Wf = 88
    Xf = 104
    TR = opt.get("trans", 2)
    if TR == 2:
        ACC = 64
        WA, XA, QW = 128, 130, 134
    else:
        ACC = 128
        WA = 152
        XA = 154
        QW = 158
    vCs = 161
    sCs = 98
    vWo, vXo = 160, 153

    XBASE = 131072
    a.label("k1_kernel")
    a("s_cmp_ge_u32 s2, 256")
    a("s_cbranch_scc1 K1_END")
    P = Prof(a, 84, 82, 28)
    P.init(12)
    P.stamp(0, real=True)
    P.stamp(1)
    EX4 = opt.get("ex", 3) == 4 and opt.get("fused", 1) and opt.get("op", 3) == 3
    if opt.get("padto", 0) or EX4: a("s_memrealtime s[100:101]")
    a("s_load_dwordx16 s[32:47], s[0:1], 0")
    a("s_load_dwordx4 s[48:51], s[0:1], 64")
    a("s_load_dwordx2 s[52:53], s[0:1], 96")
    a("v_lshrrev_b32 v1, 6, v0")
    a("v_and_b32 v0, 63, v0")
    a(f"v_readfirstlane_b32 s{sW}, v1")
    a(f"s_and_b32 s{sKvh}, s2, 3")
    a(f"s_bfe_u32 s{sBr}, s2, 0x10002")
    a(f"s_lshr_b32 s{sBt}, s2, 5")
    a(f"s_bfe_u32 s{sPair}, s2, 0x20003")
    a(f"s_and_b32 s{sKq}, s{sW}, 3")
    a(f"s_lshr_b32 s{sQt}, s{sW}, 2")
    a(f"s_lshl_b32 s{sD}, s{sKvh}, 11")
    a(f"s_lshl_b32 s{sB}, s{sPair}, 9")
    a(f"s_add_u32 s{sD}, s{sD}, s{sB}")
    a(f"s_mul_i32 s{sA}, s{sBt}, 98304")

    def srd1():
        a("s_waitcnt lgkmcnt(0)")
        a(f"s_cmp_eq_u32 s{sBr}, 0")
        a(f"s_cselect_b64 s[{SX}:{SX+1}], s[32:33], s[42:43]")
        a(f"s_cselect_b64 s[{SWQ}:{SWQ+1}], s[38:39], s[48:49]")
        a(f"s_add_u32 s{SX}, s{SX}, s{sA}")
        a(f"s_addc_u32 s{SX+1}, s{SX+1}, 0")
        a(f"s_mov_b32 s{SX+2}, 98304")
        a(f"s_mov_b32 s{SX+3}, 0x20000")
        a(f"s_add_u32 s{SWQ}, s{SWQ}, s{sD}")
        a(f"s_addc_u32 s{SWQ+1}, s{SWQ+1}, 0")
        a(f"s_sub_u32 s{SWQ+2}, 8388608, s{sD}")
        a(f"s_mov_b32 s{SWQ+3}, 0x20000")
    def patterns():
        a(f"v_bfe_u32 v{t0}, v0, 2, 2")
        a(f"v_lshlrev_b32 v{t0}, 8, v{t0}")
        a(f"v_lshrrev_b32 v{t1}, 4, v0")
        a(f"v_lshl_add_u32 v{t0}, v{t1}, 6, v{t0}")
        a(f"v_and_b32 v{t1}, 3, v0")
        a(f"v_lshl_add_u32 v{vVoff}, v{t1}, 4, v{t0}")
        a(f"s_lshl_b32 s{sB}, s{sKq}, 4")
        a(f"v_xor_b32 v{vKoff}, s{sB}, v{vVoff}")

    def srd2():
        a(f"s_cmp_eq_u32 s{sBr}, 0")
        a(f"s_cselect_b64 s[{SK}:{SK+1}], s[34:35], s[44:45]")
        a(f"s_cselect_b64 s[{SV}:{SV+1}], s[36:37], s[46:47]")
        a(f"s_mov_b64 s[36:37], s[40:41]")
        if DO:
            a(f"s_lshl_b32 s{sB}, s{sBr}, 2")
            a(f"s_add_u32 s{sB}, s{sB}, s{sKvh}")
            a(f"s_lshl_b32 s{sB}, s{sB}, 3")
            a(f"s_add_u32 s{sB}, s{sB}, s{sBt}")
            a(f"s_lshl_b32 s{sB}, s{sB}, 2")
            a(f"s_add_u32 s{sB}, s{sB}, s{sPair}")
            a(f"s_mul_i32 s{sB}, s{sB}, 24576")
            a(f"s_add_u32 s{SO}, s52, s{sB}")
            a(f"s_addc_u32 s{SO+1}, s53, 0")
            a(f"s_mov_b32 s{SO+2}, 24576")
        else:
            a(f"s_lshl_b32 s{sB}, s{sBr}, 3")
            a(f"s_add_u32 s{sB}, s{sB}, s{sBt}")
            a(f"s_mul_i32 s{sB}, s{sB}, {48*8192}")
            a(f"s_add_u32 s{sB}, s{sB}, s{sD}")
            a(f"s_add_u32 s{SO}, s52, s{sB}")
            a(f"s_addc_u32 s{SO+1}, s53, 0")
            a(f"s_sub_u32 s{SO+2}, {48*8192}, s{sD}")
        a(f"s_mov_b32 s{SO+3}, 0x20000")
        a(f"s_lshl_b32 s{sB}, s{sBt}, 2")
        a(f"s_add_u32 s{sB}, s{sB}, s{sKvh}")
        a(f"s_lshl_b32 s{sB}, s{sB}, 18")
        a(f"s_add_u32 s{SK}, s{SK}, s{sB}")
        a(f"s_addc_u32 s{SK+1}, s{SK+1}, 0")
        a(f"s_mov_b32 s{SK+2}, 262144")
        a(f"s_mov_b32 s{SK+3}, 0x20000")
        a(f"s_add_u32 s{SV}, s{SV}, s{sB}")
        a(f"s_addc_u32 s{SV+1}, s{SV+1}, 0")
        a(f"s_mov_b32 s{SV+2}, 262144")
        a(f"s_mov_b32 s{SV+3}, 0x20000")
        a(f"s_mov_b32 s{STCH+2}, 262144")
        a(f"s_mov_b32 s{STCH+3}, 0x20000")
        if OPM == 1:
            a(f"s_lshl_b32 s{sB}, s{sBr}, 3")
            a(f"s_add_u32 s{sB}, s{sB}, s{sBt}")
            a(f"s_lshl_b32 s{sB}, s{sB}, 8")
            a(f"s_add_u32 s{sB}, s{sB}, {FLAGOFF}")
            a(f"s_add_u32 s{SFL}, s52, s{sB}")
            a(f"s_addc_u32 s{SFL+1}, s53, 0")
            a(f"s_mov_b32 s{SFL+2}, 64")
        else:
            a(f"s_add_u32 s{SFL}, s52, {FLAGOFF}")
            a(f"s_addc_u32 s{SFL+1}, s53, 0")
            a(f"s_mov_b32 s{SFL+2}, {(1 << 20) if (opt.get('stepprof', 0) or opt.get('p1prof', 0)) else (SEC + 65536 if opt.get('ex', 3) >= 2 else 32768)}")
            a(f"s_lshl_b32 s{sGrp}, s{sBr}, 2")
            a(f"s_add_u32 s{sGrp}, s{sGrp}, s{sKvh}")
            a(f"s_lshl_b32 s{sGrp}, s{sGrp}, 2")
            a(f"s_lshr_b32 s{sB}, s{sBt}, 1")
            a(f"s_add_u32 s{sGrp}, s{sGrp}, s{sB}")
            a(f"s_lshl_b32 s{sGrp}, s{sGrp}, {10 if F1L else 8}")
            a(f"s_lshl_b32 s{sRdy}, s{sBr}, 2")
            a(f"s_add_u32 s{sRdy}, s{sRdy}, s{sB}")
            a(f"s_lshl_b32 s{sRdy}, s{sRdy}, 3")
            a(f"s_and_b32 s{sB}, s{sBt}, 1")
            a(f"s_lshl_b32 s{sB}, s{sB}, 2")
            a(f"s_add_u32 s{sB}, s{sB}, s{sPair}")
            a(f"s_add_u32 s{sRdy}, s{sRdy}, s{sB}")
            a(f"s_lshl_b32 s{sRdy}, s{sRdy}, {10 if opt.get('ex', 3) >= 2 else 8}")
            a(f"s_add_u32 s{sRdy}, s{sRdy}, {SEC}")
        a(f"s_mov_b32 s{SFL+3}, 0x20000")
        if OPM == 1:
            a(f"s_load_dwordx2 s[{sTok}:{sTok+1}], s[{SX}:{SX+1}], 0")
        else:
            a(f"s_and_b32 s82, s{sBt}, 1")
            a(f"s_mul_i32 s82, s82, 98304")
            a(f"s_sub_u32 s82, s{SX}, s82")
            a(f"s_subb_u32 s83, s{SX+1}, 0")
            a(f"s_load_dwordx2 s[{sTok}:{sTok+1}], s[82:83], 0")
        if OPM == 1:
            a(f"s_lshl_b32 s{sIdx}, s{sKvh}, 2")
            a(f"s_add_u32 s{sIdx}, s{sIdx}, s{sPair}")
        else:
            a(f"s_mov_b32 s{sIdx}, s{sB}")

        patterns()

    def kread(n):
        a(f"ds_read_b128 {vr(F+4*n,4)}, v{KA0 + (n & 1)} offset:{(n >> 1)*256}")
    def setup2():
        a(f"v_and_b32 v{t0}, 31, v0")
        a(f"v_lshrrev_b32 v{t1}, 5, v0")
        a(f"v_and_b32 v{t2}, 15, v0")
        a(f"v_xor_b32 v{t2}, v{t1}, v{t2}")
        a(f"v_lshlrev_b32 v{t2}, 4, v{t2}")
        a(f"v_lshl_add_u32 v{t2}, v{t0}, 8, v{t2}")
        a(f"s_lshl_b32 s{sA}, s{sQt}, 13")
        a(f"s_add_u32 s{sA}, s{sA}, {XBASE}")
        a(f"v_add_u32 v{vTb}, s{sA}, v{t2}")
        a(f"v_lshrrev_b32 v{t2}, 2, v{t0}")
        a(f"v_and_b32 v{t3}, 3, v{t2}")
        a(f"v_xor_b32 v{t3}, v{t1}, v{t3}")
        a(f"v_lshlrev_b32 v{t3}, 4, v{t3}")
        a(f"v_lshl_add_u32 v{t3}, v{t2}, 10, v{t3}")
        a(f"v_and_b32 v{t2}, 3, v0")
        a(f"v_lshl_add_u32 v{t3}, v{t2}, 6, v{t3}")
        a(f"s_lshl_b32 s{sA}, s{sKq}, 13")
        a(f"v_add_u32 v{KA0}, s{sA}, v{t3}")
        a(f"v_xor_b32 v{KA1}, 32, v{KA0}")
        a(f"v_bfe_u32 v{t2}, v0, 2, 2")
        a(f"v_lshlrev_b32 v{t2}, 6, v{t2}")
        a(f"v_lshl_add_u32 v{t2}, v{t1}, 10, v{t2}")
        a(f"v_bfe_u32 v{t3}, v0, 4, 1")
        a(f"v_lshl_add_u32 v{t2}, v{t3}, 5, v{t2}")
        a(f"v_bfe_u32 v{t3}, v0, 1, 1")
        a(f"v_lshl_add_u32 v{t2}, v{t3}, 4, v{t2}")
        a(f"v_and_b32 v{t3}, 1, v0")
        a(f"v_lshl_add_u32 v{t2}, v{t3}, 3, v{t2}")
        a(f"s_add_u32 s{sA}, s{sA}, 32768")
        a(f"v_add_u32 v{VA}, s{sA}, v{t2}")
        for j in range(4):
            a(f"s_sub_u32 s{sA}, s{sQt}, 1")
            a(f"s_lshl_b32 s{sA}, s{sA}, 1")
            a(f"s_add_u32 s{sA}, s{sA}, {j >> 1}")
            a(f"s_add_u32 s{sB}, s{sKq}, {4*(j & 1)}")
            a(f"s_lshl_b32 s{sB}, s{sB}, 10")
            a(f"s_lshl_b32 s{sD}, s{sA}, 16")
            a(f"s_add_u32 s{sG[j]}, s{sD}, s{sB}")
            a(f"s_lshl_b32 s{sD}, s{sA}, 13")
            a(f"s_add_u32 s{sL[j]}, s{sD}, s{sB}")
        a(f"s_mov_b32 s{sStep}, 0")
        a(f"s_mov_b32 s{sKn}, {4*32768}")
        a(f"s_mov_b32 s{sVn}, 0")
        a(f"s_mov_b32 s{sGstep}, 16384")
        a(f"s_mov_b32 s{sKc}, 65536")
        a(f"s_mov_b32 s{sVc}, 32768")
        a(f"s_mov_b32 s{sThr}, 0xff800000")
        a(f"s_mov_b32 s{sFloor}, 0xff800000")
        a(f"s_mov_b32 s{sSafe}, {opt.get('safe', 0)}")
        for r in range(0, 16, 2):
            a(f"v_mov_b64 {vr(NM+r,2)}, 0")

    def issueW(slot_expr_sgpr, goff_sgpr, vreg):
        for j in range(8):
            m1, m3, m4 = j & 1, (j >> 1) & 1, (j >> 2) & 1
            dm = 2*m1 + 8*m3 + 16*m4
            a(f"s_add_u32 m0, s{slot_expr_sgpr}, {dm*1024}")
            a(f"s_add_u32 s{sA}, s{goff_sgpr}, {dm*16384}")
            a(f"buffer_load_dwordx4 v{vreg}, s[{SWQ}:{SWQ+3}], s{sA} offen{NTQ} lds")
    def issueX(slot_sgpr, goff_sgpr):
        for j in range(3):
            a(f"s_add_u32 m0, s{slot_sgpr}, {j*4096}")
            a(f"s_add_u32 s{sA}, s{goff_sgpr}, {j*16*2048}")
            a(f"buffer_load_dwordx4 v{vXo}, s[{SX}:{SX+3}], s{sA} offen{NTX} lds")
    a(f"v_lshrrev_b32 v{t0}, 5, v0")
    a(f"v_and_b32 v{t1}, 31, v0")
    a(f"s_and_b32 s{sE}, s{sKq}, 1")
    a(f"s_lshl_b32 s{sE}, s{sE}, 1")
    a(f"s_lshr_b32 s{sB}, s{sKq}, 1")
    a(f"s_lshl_b32 s{sB}, s{sB}, 2")
    a(f"s_or_b32 s{sE}, s{sE}, s{sB}")
    a(f"v_or_b32 v{t2}, s{sE}, v{t0}")
    a(f"v_lshlrev_b32 v{t2}, 1, v{t2}")
    a(f"v_xor_b32 v{t2}, v{t1}, v{t2}")
    a(f"v_lshlrev_b32 v{t2}, 4, v{t2}")
    a(f"v_lshl_add_u32 v{vWo}, v{t0}, 13, v{t2}")
    a(f"s_and_b32 s{sE}, s{sKq}, 1")
    a(f"s_or_b32 s{sE}, s{sE}, s{sB}")
    a(f"s_lshl_b32 s{sB}, s{sE}, 14")
    a(f"v_add_u32 v{vWo}, s{sB}, v{vWo}")
    a(f"s_lshl_b32 s{sWs}, s{sE}, 10")
    if ROT == 1:
        a(f"s_lshl_b32 s{sXg}, s{sPair}, 1")
        a(f"s_add_u32 s{sXg}, s{sXg}, s{sBt}")
        a(f"s_and_b32 s{sXg}, s{sXg}, 7")
        a(f"s_lshl_b32 s{sWg}, s{sXg}, 20")
        a(f"s_lshl_b32 s{sXg}, s{sXg}, 8")
    elif ROT == 4:
        a(f"s_add_u32 s{sXg}, s{sPair}, s{sBt}")
        a(f"s_and_b32 s{sXg}, s{sXg}, 3")
        a(f"s_lshl_b32 s{sXg}, s{sXg}, 1")
        a(f"s_lshl_b32 s{sWg}, s{sXg}, 20")
        a(f"s_lshl_b32 s{sXg}, s{sXg}, 8")
    elif ROT == 2:
        a(f"s_add_u32 s{sXg}, s{sPair}, s{sBt}")
        a(f"s_and_b32 s{sXg}, s{sXg}, 1")
        a(f"s_lshl_b32 s{sXg}, s{sXg}, 2")
        a(f"s_lshl_b32 s{sWg}, s{sXg}, 20")
        a(f"s_lshl_b32 s{sXg}, s{sXg}, 8")
    else:
        a(f"s_mov_b32 s{sXg}, 0")
        a(f"s_mov_b32 s{sWg}, 0")
    a(f"s_cmp_ge_u32 s{sW}, 8")
    a("s_cbranch_scc1 K1_LOADER")
    a(f"s_add_u32 s{sB}, s{sQt}, 1")
    a(f"s_lshl_b32 s{sE}, s{sB}, 15")
    a(f"s_add_u32 s{sWs}, s{sWs}, s{sE}")
    a(f"s_lshl_b32 s{sE}, s{sB}, 19")
    a(f"s_add_u32 s{sWg}, s{sWg}, s{sE}")
    a(f"s_and_b32 s{sWg}, s{sWg}, 0x7fffff")
    srd1()
    SPF = opt.get("spf", 0)
    spf_list = []
    if SPF:
        a(f"s_lshr_b32 s{sE}, s{sBt}, 2")
        a(f"s_mul_i32 s{sE}, s{sE}, 96")
        a(f"s_mul_i32 s{sB}, s{sW}, 12")
        a(f"s_add_u32 s{sE}, s{sE}, s{sB}")
        a(f"s_add_u32 s{sE}, s{sE}, 64")
        a(f"s_lshl_b32 s{sE}, s{sE}, 13")
        a(f"s_add_u32 s{sB}, s{sPair}, s{sBt}")
        a(f"s_and_b32 s{sB}, s{sB}, 3")
        a(f"s_lshl_b32 s{sB}, s{sB}, 21")
        a(f"s_add_u32 s{sE}, s{sE}, s{sB}")
        a(f"s_add_u32 s82, s{SWQ}, s{sE}")
        a(f"s_addc_u32 s83, s{SWQ+1}, 0")
        for r in range(12):
            for l in range(4):
                spf_list.append(f"s_load_dword s101, s[82:83], {r*8192 + l*128}")
    def spf(n):
        for _ in range(n):
            if spf_list: a(spf_list.pop(0))
    spf(14)
    if opt.get("t1", 0):
        a(f"v_lshrrev_b32 v{t0}, 4, v0")
        a(f"v_lshlrev_b32 v{t0}, 13, v{t0}")
        a(f"v_and_b32 v{t1}, 15, v0")
        a(f"v_lshl_add_u32 v{t0}, v{t1}, 7, v{t0}")
        a(f"s_lshr_b32 s{sB}, s2, 3")
        a(f"s_lshl_b32 s{sB}, s{sB}, 15")
        a(f"s_lshl_b32 s{sE}, s{sW}, 20")
        a(f"s_add_u32 s{sB}, s{sB}, s{sE}")
        a(f"s_lshl_b32 s{sE}, s{sPair}, 9")
        a(f"s_sub_u32 s82, s{SWQ}, s{sE}")
        a(f"s_subb_u32 s83, s{SWQ+1}, 0")
        a(f"v_add_u32 v{t0}, s{sB}, v{t0}")
        a(f"s_cmp_lt_u32 s{sW}, {opt.get('t1first', 1)}")
        a("s_cbranch_scc1 K1_NOT1")
        a(f"global_load_dword v{F+31}, v{t0}, s[82:83]")
        a.label("K1_NOT1")
        a(f"s_cmp_ge_u32 s{sW}, 3")
        a("s_cbranch_scc1 K1_NOT2")
        a(f"v_lshrrev_b32 v{t0}, 4, v0")
        a(f"s_mul_i32 s{sB}, s{sPair}, 12")
        a(f"s_lshl_b32 s{sE}, s{sW}, 2")
        a(f"s_add_u32 s{sB}, s{sB}, s{sE}")
        a(f"v_add_u32 v{t0}, s{sB}, v{t0}")
        a(f"v_lshlrev_b32 v{t0}, 11, v{t0}")
        a(f"v_lshl_add_u32 v{t0}, v{t1}, 7, v{t0}")
        a(f"buffer_load_dword v{F+30}, v{t0}, s[{SX}:{SX+3}], 0 offen")
        a.label("K1_NOT2")
    FILL = opt.get("fill", 0)
    def first_issue():
        if not FILL:
            issueW(sWs, sWg, vWo)
            return
        if FILL == 2:
            a(f"s_cmp_lg_u32 s{sQt}, 0")
            a("s_cbranch_scc1 K1_FI2")
            issueW(sWs, sWg, vWo)
            a.label("K1_FI2")
            return
        a(f"s_cmp_lg_u32 s{sQt}, 0")
        a("s_cbranch_scc1 K1_FI1")
        a(f"v_lshrrev_b32 v164, 4, v0")
        a(f"v_and_b32 v165, 15, v0")
        a(f"s_lshl_b32 s{sE}, s{sKq}, 2")
        a(f"v_or_b32 v164, s{sE}, v164")
        a(f"v_xor_b32 v165, v165, v164")
        a(f"v_lshlrev_b32 v165, 4, v165")
        a(f"v_lshl_add_u32 v{vXo}, v164, 11, v165")
        a(f"s_lshl_b32 s{sXs}, s{sKq}, 10")
        a(f"s_add_u32 s{sXs}, s{sXs}, {XBASE + 0x4000}")
        a(f"s_add_u32 s{sXg}, s{sXg}, 256")
        a(f"s_and_b32 s{sXg}, s{sXg}, 0x7ff")
        issueX(sXs, sXg)
        issueW(sWs, sWg, vWo)
        a("s_branch K1_FI2")
        a.label("K1_FI1")
        issueW(sWs, sWg, vWo)
        a(f"s_add_u32 s{sWs}, s{sWs}, 32768")
        a(f"s_add_u32 s{sWg}, s{sWg}, 524288")
        a(f"s_and_b32 s{sWg}, s{sWg}, 0x7fffff")
        issueW(sWs, sWg, vWo)
        a.label("K1_FI2")
    if not opt.get("latew", 1):
        first_issue()

    a.c("phase 1 compute")
    a(f"v_bfe_u32 v{t0}, v0, 2, 2")
    a(f"v_lshrrev_b32 v{t1}, 4, v0")
    a(f"v_and_b32 v{t2}, 1, v{t1}")
    a(f"v_lshl_or_b32 v{t2}, v{t2}, 2, v{t0}")
    a(f"s_lshl_b32 s{sE}, s{sW}, 1")
    a(f"v_xor_b32 v{t2}, s{sE}, v{t2}")
    a(f"v_lshl_add_u32 v{t3}, v{t1}, 3, v{t0}")
    a(f"v_lshlrev_b32 v{t3}, 9, v{t3}")
    a(f"v_lshl_add_u32 v{t3}, v{t2}, 5, v{t3}")
    a(f"v_and_b32 v{t4}, 3, v0")
    a(f"v_lshl_add_u32 v{WA}, v{t4}, 3, v{t3}")
    a(f"v_xor_b32 v{WA+1}, 32, v{WA}")
    a(f"v_and_b32 v{t0}, 15, v0")
    a(f"v_xor_b32 v{t2}, v{t1}, v{t0}")
    a(f"v_lshlrev_b32 v{t2}, 4, v{t2}")
    a(f"v_lshl_add_u32 v{t2}, v{t0}, 8, v{t2}")
    a(f"v_add_u32 v{XA}, {XBASE:#x}, v{t2}")
    a(f"v_xor_b32 v{XA+1}, 64, v{XA}")
    a(f"v_xor_b32 v{XA+2}, 0x80, v{XA}")
    a(f"v_xor_b32 v{XA+3}, 0xc0, v{XA}")
    spf(10)
    for r in range(24):
        a(f"v_mov_b32 v{ACC+r}, 0")
    spf(opt.get("spfn", 24))
    srd2()
    if opt.get("fused", 1):
        a(f"s_cmp_lg_u32 s{sW}, 1")
        a("s_cbranch_scc1 K1_NOZ")
        a(f"s_lshl_b32 s{sE}, s{sIdx}, 2")
        if OPM == 3:
            a(f"s_add_u32 s{sE}, s{sE}, s{sGrp}")
        a(f"v_mov_b32 v{t0}, 0")
        if F1L:
            a(f"v_lshl_add_u32 v{t1}, v0, 7, s{sE}")
            a(f"s_lshl_b32 s{sB}, s{sKvh}, 2")
            a(f"s_add_u32 s{sB}, s{sB}, s{sRdy}")
            a(f"s_sub_u32 s{sB}, s{sB}, {8*128}")
            a(f"v_lshl_add_u32 v{t2}, v0, 7, s{sB}")
            a(f"v_cmp_lt_u32 vcc, 7, v0")
            a(f"v_cndmask_b32 v{t1}, v{t1}, v{t2}, vcc")
            a(f"s_mov_b64 exec, 0xffff")
        elif EX4:
            a(f"v_mov_b32 v{t1}, s{sE}")
            a("s_mov_b64 exec, 1")
        elif OPM == 3 and opt.get("ex", 3) >= 2:
            a(f"s_lshl_b32 s{sB}, s{sKvh}, 2")
            a(f"s_add_u32 s{sB}, s{sB}, s{sRdy}")
            a(f"s_sub_u32 s{sB}, s{sB}, 128")
            a(f"v_lshl_add_u32 v{t1}, v0, 7, s{sB}")
            a(f"s_add_u32 s{sB}, s{sRdy}, 64")
            a(f"s_sub_u32 s{sB}, s{sB}, {9*128}")
            a(f"v_lshl_add_u32 v{t2}, v0, 7, s{sB}")
            a(f"v_cmp_lt_u32 vcc, 8, v0")
            a(f"v_cndmask_b32 v{t1}, v{t1}, v{t2}, vcc")
            a(f"v_writelane_b32 v{t1}, s{sE}, 0")
            a(f"s_mov_b64 exec, {'0x1ff' if opt.get('ex', 3) == 3 else '0x1ffff'}")
        else:
            a(f"v_mov_b32 v{t1}, s{sE}")
            if OPM == 3:
                a(f"s_lshl_b32 s{sE}, s{sKvh}, 2")
                a(f"s_add_u32 s{sE}, s{sE}, s{sRdy}")
                a(f"v_writelane_b32 v{t1}, s{sE}, 1")
            a(f"s_mov_b64 exec, {3 if OPM == 3 else 1}")
        a(f"buffer_store_dword v{t0}, v{t1}, s[{SFL}:{SFL+3}], 0 offen sc1")
        a("s_mov_b64 exec, -1")
        a.label("K1_NOZ")
    if TR == 2:
        a(f"s_mov_b32 s{sCs}, {f2u(CSCALE):#x}")
        a(f"s_mov_b32 s{sCs+1}, {f2u(CSCALE):#x}")
    else:
        a(f"v_mov_b32 v{vCs}, {f2u(CSCALE):#x}")
    a(f"v_and_b32 v{t0}, 15, v0")
    a(f"v_lshrrev_b32 v{t1}, 4, v0")
    a(f"s_lshl_b32 s{sE}, s{sKq}, 2")
    a(f"v_lshrrev_b32 v{t2}, 1, v{t1}")
    a(f"v_add_u32 v{t2}, s{sE}, v{t2}")
    a(f"v_xor_b32 v{t2}, v{t2}, v{t0}")
    a(f"v_lshlrev_b32 v{t2}, 4, v{t2}")
    a(f"v_lshl_add_u32 v{t2}, v{t0}, 8, v{t2}")
    a(f"v_and_b32 v{t3}, 1, v{t1}")
    a(f"v_lshl_add_u32 v{t2}, v{t3}, 3, v{t2}")
    a(f"s_mul_i32 s{sE}, s{sQt}, {48*256}")
    a(f"s_add_u32 s{sE}, s{sE}, {XBASE}")
    a(f"v_add_u32 v{QW}, s{sE}, v{t2}")
    a(f"v_xor_b32 v{QW+1}, 32, v{QW}")
    setup2()
    if opt.get("dbgtouch", 0):
        a("s_load_dwordx2 s[82:83], s[0:1], 88")
        a("s_waitcnt lgkmcnt(0)")
        a("v_mov_b32 v162, 0")
        a("global_load_dword v163, v162, s[82:83] sc1")
    if opt.get("latew", 1):
        first_issue()
    a(f"s_mov_b32 s{sP}, 0")
    FB = [88, 24]
    def p1_read_list(sp):
        fb = FB[sp]
        L = []
        for ks in range(2):
            for tt in range(2):
                for e in range(2):
                    off = sp * 32768 + ks * 16384 + e * 2048
                    L.append(f"ds_read_b64_tr_b16 {vr(fb + (tt*2+ks)*4 + e*2, 2)}, v{WA+tt} offset:{off}")
            for rt in range(3):
                L.append(f"ds_read_b128 {vr(fb + 16 + (rt*2+ks)*4, 4)}, v{XA + sp*2 + ks} offset:{rt*4096}")
        return L
    def p1_mfma_list(sp):
        fb = FB[sp]
        L = []
        for ks in range(2):
            for rt in range(3):
                for tt in range(2):
                    acc = ACC + (tt*3+rt)*4
                    L.append(f"{MF16} {vr(acc,4)}, {vr(fb+(tt*2+ks)*4,4)}, {vr(fb+16+(rt*2+ks)*4,4)}, {vr(acc,4)}")
        return L
    def p1_reads(sp):
        for x in p1_read_list(sp): a(x)
    def p1_mfma(sp):
        for x in p1_mfma_list(sp): a(x)
    def p1_both(rsp, msp):
        R, M = p1_read_list(rsp), p1_mfma_list(msp)
        if opt.get("fl", 3) & 2:
            per = opt.get("flp", 2)
            for n in range(12):
                a(M[n])
                for x in R[per*n:per*n+per]: a(x)
            return
        for n in range(12):
            a(M[n])
            a(R[n])
            if n in (5, 11): a(R[12 + (n == 11)])
    a("s_barrier")
    P.stamp(2)
    p1_reads(0)
    if FILL == 2:
        a(f"s_cmp_eq_u32 s{sQt}, 0")
        a("s_cbranch_scc1 K1_FW0")
        issueW(sWs, sWg, vWo)
        a("s_branch K1_FW1")
        a.label("K1_FW0")
        a("s_waitcnt vmcnt(0)")
        a.label("K1_FW1")
        a("s_waitcnt lgkmcnt(0)")
    elif FILL:
        a(f"s_cmp_lg_u32 s{sQt}, 0")
        a("s_cbranch_scc1 K1_FW1")
        a("s_waitcnt vmcnt(0)")
        a.label("K1_FW1")
        a("s_waitcnt lgkmcnt(0)")
    else:
        a("s_waitcnt vmcnt(0) lgkmcnt(0)")
    if EX4:
        a(f"s_lshl_b32 s{sE}, s{sW}, 7")
        a(f"s_add_u32 s{sE}, s{sE}, s{sRdy}")
        a(f"s_lshl_b32 s{sB}, s{sKvh}, 2")
        a(f"s_add_u32 s{sE}, s{sE}, s{sB}")
        a(f"v_mov_b32 v162, s100")
        a(f"v_mov_b32 v163, s{sE}")
        a("s_mov_b64 exec, 1")
        a(f"buffer_store_dword v162, v163, s[{SFL}:{SFL+3}], 0 offen sc1")
        a("s_mov_b64 exec, -1")
    a("s_branch K1_P1_MID")
    def p1stamp(odd):
        if not opt.get("p1prof", 0): return
        a("s_memtime s[82:83]")
        a(f"s_lshl_b32 s{sE}, s2, 4")
        a(f"s_add_u32 s{sE}, s{sE}, s{sW}")
        a(f"s_lshl_b32 s{sE}, s{sE}, 6")
        a(f"s_lshl_b32 s{sB}, s{sP}, 3")
        a(f"s_add_u32 s{sE}, s{sE}, s{sB}")
        a(f"s_add_u32 s{sE}, s{sE}, {262144 + 4*odd}")
        a(f"v_mov_b32 v163, s{sE}")
        a("s_waitcnt lgkmcnt(0)")
        a(f"v_mov_b32 v162, s82")
        a("s_mov_b64 exec, 1")
        a(f"buffer_store_dword v162, v163, s[{SFL}:{SFL+3}], 0 offen")
        a("s_mov_b64 exec, -1")
    a.label("K1_P1_LOOP")
    if FILL: a(f"s_waitcnt vmcnt({8 if FILL == 1 else 0})")
    a("s_barrier")
    p1stamp(0)
    p1_both(0, 1)
    a(f"s_waitcnt {'vmcnt(0) ' if FILL == 1 else ''}lgkmcnt(0)")
    a.label("K1_P1_MID")
    a("s_barrier")
    p1stamp(1)
    p1_both(1, 0)
    a(f"v_xor_b32 v{WA}, 0x10000, v{WA}")
    a(f"v_xor_b32 v{WA+1}, 0x10000, v{WA+1}")
    for v in range(4):
        a(f"v_xor_b32 v{XA+v}, 0x4000, v{XA+v}")
    a(f"s_add_u32 s{sP}, s{sP}, 1")
    a("s_waitcnt lgkmcnt(0)")
    a(f"s_cmp_lt_u32 s{sP}, 8")
    a("s_cbranch_scc1 K1_P1_LOOP")
    a("s_barrier")
    P.stamp(3, force=True)
    if TR == 2:
        for ks in range(8):
            kread(ks)
    p1_mfma(1)
    a("s_nop 7")
    for tt in range(2):
        for rt in range(3):
            acc = ACC + (tt*3+rt)*4
            if TR == 2:
                for r in range(0, 4, 2):
                    a(f"v_pk_mul_f32 {vr(acc+r,2)}, {vr(acc+r,2)}, s[{sCs}:{sCs+1}]")
            else:
              for r in range(4):
                a(f"v_mul_f32 v{acc+r}, v{vCs}, v{acc+r}")
            a(f"v_cvt_pk_bf16_f32 v{acc}, v{acc}, v{acc+1}")
            a(f"v_cvt_pk_bf16_f32 v{acc+1}, v{acc+2}, v{acc+3}")
            a(f"ds_write_b64 v{QW+tt}, {vr(acc,2)} offset:{rt*4096}")
    def zeroO():
        for r in range(0, 64, 2):
            a(f"v_mov_b64 {vr(O+r,2)}, 0")
        a(f"v_mov_b32 v{vL}, 0")
    if TR == 1:
        for ks in range(8):
            kread(ks)
        zeroO()
    if TRDIAG: P.stamp(6, force=True)
    a("s_waitcnt lgkmcnt(0)")
    if TRDIAG: P.stamp(7, force=True)
    a("s_branch K1_JOIN")
    if TOUCH:
        for sp in range(2):
            a.label(f"K1_T1_{sp}")
            a(f"s_cmp_lt_u32 s{sP}, {T2_START//2}")
            a(f"s_cbranch_scc1 K1_T1R_{sp}")
            a(f"s_sub_u32 s{sA}, s{sP}, {T2_START//2}")
            a(f"s_lshl_b32 s{sA}, s{sA}, 13")
            a(f"s_lshl_b32 s{sB}, s{sPair}, 16")
            a(f"s_add_u32 s{sA}, s{sA}, s{sB}")
            srd = SK if sp == 0 else SV
            a(f"buffer_load_dword v{vVoff}, v{vTch}, s[{srd}:{srd+3}], s{sA} offen{NTT}")
            a(f"s_branch K1_T1R_{sp}")

    a.label("K1_LOADER")
    a("s_setprio 3")
    a(f"s_sub_u32 s{sLam}, s{sW}, 8")
    a(f"v_lshrrev_b32 v{t0}, 4, v0")
    a(f"v_and_b32 v{t1}, 15, v0")
    a(f"s_lshl_b32 s{sE}, s{sLam}, 2")
    a(f"v_or_b32 v{t2}, s{sE}, v{t0}")
    a(f"v_xor_b32 v{t3}, v{t1}, v{t2}")
    a(f"v_lshlrev_b32 v{t3}, 4, v{t3}")
    a(f"v_lshl_add_u32 v{vXo}, v{t2}, 11, v{t3}")
    def issueKV_loader(srd, voff, slot, step, uid=None):
        a(f"s_lshl_b32 s{sB}, s{sLam}, 10")
        for e in range(8):
            lo = slot*32768 + (e >> 1)*8192 + (e & 1)*4096
            go = (e >> 1)*65536 + step*8192 + (e & 1)*4096
            a(f"s_add_u32 m0, s{sB}, {lo}")
            a(f"s_add_u32 s{sA}, s{sB}, {go}")
            a(f"buffer_load_dwordx4 v{voff}, s[{srd}:{srd+3}], s{sA} offen{NTD} lds")
    a(f"s_lshl_b32 s{sXs}, s{sLam}, 10")
    a(f"s_add_u32 s{sXs}, s{sXs}, {XBASE}")
    srd1()
    P.stamp(2)
    def nextW():
        a(f"s_add_u32 s{sWs}, s{sWs}, 32768")
        a(f"s_and_b32 s{sWs}, s{sWs}, 0x1ffff")
        a(f"s_add_u32 s{sWg}, s{sWg}, 524288")
        a(f"s_and_b32 s{sWg}, s{sWg}, 0x7fffff")
    def nextX():
        a(f"s_xor_b32 s{sXs}, s{sXs}, 0x4000")
        a(f"s_add_u32 s{sXg}, s{sXg}, 256")
        a(f"s_and_b32 s{sXg}, s{sXg}, 0x7ff")
    issueX(sXs, sXg)
    issueW(sWs, sWg, vWo)
    P.stamp(3)
    a(f"s_add_u32 s{sWs}, s{sWs}, {3*32768}")
    a(f"s_add_u32 s{sWg}, s{sWg}, {3*524288}")
    a(f"s_and_b32 s{sWg}, s{sWg}, 0x7fffff")
    srd2()
    setup2()
    a(f"s_mov_b32 s{sP}, 0")
    E3 = opt.get("early3", 0)
    if FILL == 1:
        nextX(); nextW()
        a("s_waitcnt vmcnt(0)")
        E3 = 1
    elif E3:
        a(f"s_waitcnt vmcnt({opt.get('e3w', 8)})")
        nextX(); issueX(sXs, sXg)
        issueW(sWs, sWg, vWo); nextW()
        a("s_waitcnt vmcnt(11)")
    else:
        a("s_waitcnt vmcnt(0)")
    P.stamp(11)
    a("s_setprio 0")
    a("s_barrier")
    a(f"s_branch {'K1_LD_MID2' if E3 else 'K1_LD_MID'}")
    a.label("K1_LD_LOOP")
    a("s_waitcnt vmcnt(16)")
    a("s_barrier")
    a.label("K1_LD_MID")
    nextX(); issueX(sXs, sXg)
    issueW(sWs, sWg, vWo); nextW()
    a.label("K1_LD_MID2")
    a("s_waitcnt vmcnt(19)")
    a("s_barrier")
    issueW(sWs, sWg, vWo); nextW()
    a(f"s_add_u32 s{sP}, s{sP}, 1")
    a(f"s_cmp_lt_u32 s{sP}, 6")
    a("s_cbranch_scc1 K1_LD_LOOP")
    a("s_waitcnt vmcnt(16)")
    a("s_barrier")
    nextX(); issueX(sXs, sXg)
    issueW(sWs, sWg, vWo)
    a("s_waitcnt vmcnt(19)")
    a("s_barrier")
    issueKV_loader(SK, vKoff, 0, 0)
    a("s_waitcnt vmcnt(16)")
    a("s_barrier")
    issueKV_loader(SV, vVoff, 1, 0)
    a("s_waitcnt vmcnt(16)")
    a("s_barrier")
    issueKV_loader(SK, vKoff, 2, 1)
    if TR: a("s_waitcnt vmcnt(16)")
    a("s_barrier")
    issueKV_loader(SV, vVoff, 3, 1)
    if TR:
        for ks in range(8):
            kread(ks)
        if TR == 1: zeroO()
    else:
        a("s_waitcnt vmcnt(8)")

    a.label("K1_JOIN")
    a("s_waitcnt lgkmcnt(0)")
    a(f"s_lshl_b32 s{sA}, s{sTok+1}, 7")
    a(f"s_xor_b32 s{sTok}, s{sTok}, s{sA}")
    a(f"s_or_b32 s{sTok}, s{sTok}, 1")
    if TOUCH:
        a(f"s_cmp_ge_u32 s{sW}, 4")
        a("s_cbranch_scc1 K1_NOTCH")
        a(f"v_lshlrev_b32 v{vKoff}, 7, v0")
        a.label("K1_NOTCH")
    a("s_barrier")
    if TRDIAG: P.stamp(9, force=True)
    for ks in range(8):
        a(f"v_xor_b32 v{vMx}, {ks << 5:#x}, v{vTb}")
        a(f"ds_read_b128 {vr(Q+4*ks,4)}, v{vMx}")
    if not TR:
        for ks in range(8):
            kread(ks)
    a.label("K1_JOIN2")
    if TR != 1: zeroO()
    a(f"s_mov_b32 s{sDk}, 65536")
    a(f"s_cmp_eq_u32 s{sQt}, {0 if opt.get('fix5', 1) else (1 if OPM == 1 else 2)}")
    a(f"s_cselect_b32 s{sTl}, {opt.get('wotstep', 6) if opt.get('wotmode', 2) == 1 else 99}, 99")
    a("s_waitcnt lgkmcnt(0)")
    P.stamp(4)
    a(f"s_cmp_lt_u32 s{sW}, 4")
    a("s_cbranch_scc1 K1_A_BAR")
    if TR: a("s_waitcnt vmcnt(8)")
    a("s_branch K1_B_BAR")

    def rot(sreg):
        a(f"s_add_u32 s{sreg}, s{sreg}, 65536")
        a(f"s_cmp_ge_u32 s{sreg}, 163840")
        a(f"s_cselect_b32 s{sA}, 163840, 0")
        a(f"s_sub_u32 s{sreg}, s{sreg}, s{sA}")

    LIGHT = opt.get("light", 0)
    def ls(k):
        if LIGHT: a(f"s_memtime s[{84+2*k}:{85+2*k}]")
    def step_body(v):
        isB = (v == "B")
        dodma = isB and not (AB & 1)
        def dma(kind, j):
            if not dodma: return
            if kind == 'V':
                a(f"s_add_u32 m0, s{sVn}, s{sL[j]}")
                a(f"s_add_u32 s{sA}, s{sGstep}, s{sG[j]}")
                a(f"buffer_load_dwordx4 v{vVoff}, s[{SV}:{SV+3}], s{sA} offen{NTD} lds")
            else:
                a(f"s_add_u32 m0, s{sKn}, s{sL[j]}")
                a(f"s_add_u32 s{sA}, s{sGstep}, s{sG[j]}")
                a(f"buffer_load_dwordx4 v{vKoff}, s[{SK}:{SK+3}], s{sA} offen{NTD} lds")
        def vreads(kk):
            if AB & 2:
                for _ in range(8): a("s_nop 0")
                return
            for dt in range(4):
                for e in range(2):
                    a(f"ds_read_b64_tr_b16 {vr(F+(kk*4+dt)*4+2*e,2)}, v{VA} offset:{kk*4096+e*2048+dt*256}")
        a.label(f"K1_{v}_TOP")
        a(f"s_waitcnt {'vmcnt(4) ' if isB else ''}lgkmcnt(0)")
        a.label(f"K1_{v}_BAR")
        if PRIO: a(f"s_setprio {PQ}")
        if v == "B" or True: ls(0)
        a("s_barrier")
        ls(1)
        if opt.get("stepprof", 0) and not isB:
            a("s_memtime s[82:83]")
            a(f"s_lshl_b32 s{sA}, s2, 4")
            a(f"s_add_u32 s{sA}, s{sA}, s{sW}")
            a(f"s_lshl_b32 s{sA}, s{sA}, 6")
            a(f"s_lshl_b32 s{sB}, s{sStep}, 2")
            a(f"s_add_u32 s{sA}, s{sA}, s{sB}")
            a(f"s_add_u32 s{sA}, s{sA}, 262144")
            a(f"v_mov_b32 v{vTb}, s{sA}")
            a("s_waitcnt lgkmcnt(0)")
            a(f"v_mov_b32 v{vMx}, s82")
            a("s_mov_b64 exec, 1")
            a(f"buffer_store_dword v{vMx}, v{vTb}, s[{SFL}:{SFL+3}], 0 offen")
            a("s_mov_b64 exec, -1")
        def vread1(n):
            if AB & 2: return
            kk, dt = n >> 2, n & 3
            for e in range(2):
                a(f"ds_read_b64_tr_b16 {vr(F+n*4+2*e,2)}, v{VA} offset:{kk*4096+e*2048+dt*256}")
        for ks in range(8):
            cin = vr(NM,16) if ks == 0 else vr(S,16)
            a(f"{MF32} {vr(S,16)}, {vr(F+4*ks,4)}, {vr(Q+4*ks,4)}, {cin}")
            if ks < 7: vread1(ks)
            if ks == 0:
                a(f"v_add_u32 v{KA0}, s{sDk}, v{KA0}")
                a(f"v_add_u32 v{KA1}, s{sDk}, v{KA1}")
                a(f"s_mov_b32 s{sDk}, s{sKc}")
            if ks == 2:
                rot(sKc)
            if ks == 4:
                a(f"s_sub_u32 s{sDk}, s{sKc}, s{sDk}")
                a(f"s_mov_b32 s{sDv}, s{sVc}")
                a(f"s_add_u32 s{sVc}, s{sVc}, 65536")
                a(f"s_cmp_ge_u32 s{sVc}, 163840")
            if ks == 4:
                a(f"s_cselect_b32 s{sA}, 163840, 0")
                a(f"s_sub_u32 s{sVc}, s{sVc}, s{sA}")
            if ks in (1, 3, 5, 6):
                dma('K', {1: 0, 3: 1, 5: 2, 6: 3}[ks])
        ls(2)
        if PRIO and PS != PQ: a(f"s_setprio {PS}")
        vread1(7)
        a(f"s_sub_u32 s{sDv}, s{sVc}, s{sDv}")
        a(f"v_add_u32 v{VA}, s{sDv}, v{VA}")
        if not isB and WOT and opt.get("wotmode", 2) == 1:
            a(f"s_cmp_eq_u32 s{sStep}, s{sTl}")
            a("s_cbranch_scc1 K1_A_TOUCH")
            a.label("K1_A_TOUCHR")
            a("s_nop 4")
        else:
            a("s_nop 6")
        a(f"s_cmp_lt_u32 s{sStep}, s{sSafe}")
        a(f"s_cbranch_scc1 K1_{v}_MAX")
        a.label(f"K1_{v}_CONT")
        ls(3)
        for k in range(8):
            if not AB & 8:
                a(f"v_exp_f32 v{S+2*k}, v{S+2*k}")
                a(f"v_exp_f32 v{S+2*k+1}, v{S+2*k+1}")
            if k >= 1 and not AB & 8:
                kk = k - 1
                a(f"v_add_f32 v{vL}, v{vL}, v{S+2*kk}")
                a(f"v_add_f32 v{vL}, v{vL}, v{S+2*kk+1}")
                a(f"v_cvt_pk_bf16_f32 v{S+kk}, v{S+2*kk}, v{S+2*kk+1}")
        a(f"v_add_f32 v{vL}, v{vL}, v{S+14}")
        a(f"v_add_f32 v{vL}, v{vL}, v{S+15}")
        a(f"v_cvt_pk_bf16_f32 v{S+7}, v{S+14}, v{S+15}")
        ls(4)
        if PRIO and PP != PS: a(f"s_setprio {PP}")
        if not LIGHT: a("s_waitcnt lgkmcnt(0)")
        else: a("s_waitcnt lgkmcnt(1)")
        for kk in range(2):
            for dt in range(4):
                n = kk*4 + dt
                a(f"{MF32} {vr(O+16*dt,16)}, {vr(F+(kk*4+dt)*4,4)}, {vr(S+4*kk,4)}, {vr(O+16*dt,16)}")
                if not AB & 4: kread(n)
                if n in (0, 1, 2, 3):
                    dma('V', n)
                if n == 4:
                    a(f"s_add_u32 s{sStep}, s{sStep}, 1")
                if n == 2 and isB:
                    pass
                if n == 4 and isB:
                    rot(sVn)
                if n == 5 and isB:
                    rot(sKn)
                if n == 6 and isB:
                    a(f"s_add_u32 s{sGstep}, s{sGstep}, 8192")
                    if NS2 != 8: a(f"s_and_b32 s{sGstep}, s{sGstep}, 0xffff")
        ls(5)
        if LIGHT:
            a(f"s_cmp_lg_u32 s{sStep}, 41")
            a(f"s_cbranch_scc1 K1_{v}_NOCOPY")
            a("s_waitcnt lgkmcnt(0)")
            for k in range(6):
                a(f"s_mov_b32 s{96+k}, s{84+2*k}")
            a.label(f"K1_{v}_NOCOPY")
        if isB:
            a(f"s_cmp_lt_u32 s{sStep}, {NS2-2}")
            a("s_cbranch_scc1 K1_B_TOP")
            a(f"s_waitcnt vmcnt({4 if opt.get('fix5', 1) else 0})")
            a("s_branch K1_A_TOP")
        elif opt.get('fix5', 1):
            a(f"s_cmp_ge_u32 s{sStep}, {NS2}")
            a("s_cbranch_scc1 K1_P2_END")
            a(f"s_cmp_lt_u32 s{sW}, 4")
            a("s_cbranch_scc1 K1_A_TOP")
            a("s_waitcnt vmcnt(0)")
            if WOT and opt.get("wotmode", 2) == 2:
                a(f"s_cmp_eq_u32 s{sBr}, 0")
                a(f"s_cselect_b64 s[{STCH}:{STCH+1}], s[{SWOP}:{SWOP+1}], s[50:51]")
                a(f"s_mov_b32 s{STCH+2}, 8388608")
                a(f"v_mbcnt_lo_u32_b32 v{vKoff}, -1, 0")
                a(f"v_mbcnt_hi_u32_b32 v{vKoff}, -1, v{vKoff}")
                a(f"v_lshlrev_b32 v{vKoff}, 7, v{vKoff}")
                a(f"s_lshr_b32 s{sA}, s2, 3")
                a(f"s_lshl_b32 s{sA}, s{sA}, 3")
                a(f"s_add_u32 s{sA}, s{sA}, s{sW}")
                a(f"s_sub_u32 s{sA}, s{sA}, 4")
                a(f"s_lshl_b32 s{sA}, s{sA}, 13")
                a(f"s_lshl_b32 s{sB}, s{sKvh}, 21")
                a(f"s_add_u32 s{sA}, s{sA}, s{sB}")
                a(f"buffer_load_dword v{vVoff}, v{vKoff}, s[{STCH}:{STCH+3}], s{sA} offen")
            a("s_branch K1_A_TOP")
        else:
            a(f"s_cmp_lt_u32 s{sStep}, {NS2}")
            a("s_cbranch_scc1 K1_A_TOP")
            a("s_branch K1_P2_END")
        a.label(f"K1_{v}_MAX")
        a(f"v_max3_f32 v{vMx}, v{S+0}, v{S+1}, v{S+2}")
        a(f"v_max3_f32 v{vTb}, v{S+3}, v{S+4}, v{S+5}")
        a(f"v_max3_f32 v{vMx}, v{vMx}, v{S+6}, v{S+7}")
        a(f"v_max3_f32 v{vTb}, v{vTb}, v{S+8}, v{S+9}")
        a(f"v_max3_f32 v{vMx}, v{vMx}, v{S+10}, v{S+11}")
        a(f"v_max3_f32 v{vTb}, v{vTb}, v{S+12}, v{S+13}")
        a(f"v_max3_f32 v{vMx}, v{vMx}, v{S+14}, v{S+15}")
        a(f"v_max_f32 v{vMx}, v{vMx}, v{vTb}")
        a(f"v_cmp_lt_f32 vcc, s{sThr}, v{vMx}")
        a(f"s_cbranch_vccz K1_{v}_CONT")
        a.label(f"K1_{v}_RARE")
        a(f"v_mov_b32 v{vTb}, v{vMx}")
        a("s_nop 1")
        a(f"v_permlane32_swap_b32 v{vMx}, v{vTb}")
        a(f"v_max_f32 v{vMx}, v{vMx}, v{vTb}")
        a(f"v_max_f32 v{vMx}, s{sFloor}, v{vMx}")
        a(f"v_max_f32 v{vTb}, 0, v{vMx}")
        a(f"v_sub_f32 v{vTb}, 0, v{vTb}")
        a(f"v_exp_f32 v{vTb}, v{vTb}")
        a(f"s_mov_b32 s{sThr}, {f2u(8.0):#x}")
        a(f"s_mov_b32 s{sFloor}, 0")
        for r in range(16):
            a(f"v_sub_f32 v{S+r}, v{S+r}, v{vMx}")
        a(f"v_sub_f32 v{NM}, v{NM}, v{vMx}")
        for r in range(1, 16):
            a(f"v_mov_b32 v{NM+r}, v{NM}")
        a(f"s_cmp_eq_u32 s{sStep}, 0")
        a(f"s_cbranch_scc1 K1_{v}_CONT")
        a(f"v_mul_f32 v{vL}, v{vL}, v{vTb}")
        for r in range(64):
            a(f"v_mul_f32 v{O+r}, v{O+r}, v{vTb}")
        a(f"s_branch K1_{v}_CONT")

    step_body("B")
    step_body("A")
    if WOT and opt.get("wotmode", 2) == 1:
        a.label("K1_A_TOUCH")
        a(f"s_cmp_eq_u32 s{sBr}, 0")
        a(f"s_cselect_b64 s[{STCH}:{STCH+1}], s[{SWOP}:{SWOP+1}], s[50:51]")
        a(f"s_mov_b32 s{STCH+2}, 8388608")
        a(f"v_mbcnt_lo_u32_b32 v{vKoff}, -1, 0")
        a(f"v_mbcnt_hi_u32_b32 v{vKoff}, -1, v{vKoff}")
        if OPM == 1:
            a(f"v_and_b32 v{vVoff}, 3, v{vKoff}")
            a(f"v_lshrrev_b32 v{vKoff}, 2, v{vKoff}")
            a(f"v_lshlrev_b32 v{vKoff}, 11, v{vKoff}")
            a(f"v_lshl_add_u32 v{vKoff}, v{vVoff}, 7, v{vKoff}")
            a(f"s_lshr_b32 s{sA}, s2, 3")
            a(f"s_lshl_b32 s{sA}, s{sA}, 2")
            a(f"s_add_u32 s{sA}, s{sA}, s{sKq}")
            a(f"s_lshl_b32 s{sA}, s{sA}, 16")
            a(f"s_lshl_b32 s{sB}, s{sKvh}, 9")
            a(f"s_add_u32 s{sA}, s{sA}, s{sB}")
            a(f"buffer_load_dword v{vVoff}, v{vKoff}, s[{STCH}:{STCH+3}], s{sA} offen{NTW}")
            a(f"s_add_u32 s{sA}, s{sA}, 32768")
            a(f"buffer_load_dword v{vVoff}, v{vKoff}, s[{STCH}:{STCH+3}], s{sA} offen{NTW}")
        else:
            a(f"v_lshlrev_b32 v{vKoff}, 7, v{vKoff}")
            a(f"s_lshr_b32 s{sA}, s2, 3")
            a(f"s_lshl_b32 s{sA}, s{sA}, 2")
            a(f"s_add_u32 s{sA}, s{sA}, s{sKq}")
            a(f"s_lshl_b32 s{sA}, s{sA}, 14")
            a(f"s_lshl_b32 s{sB}, s{sKvh}, 21")
            a(f"s_add_u32 s{sA}, s{sA}, s{sB}")
            a(f"buffer_load_dword v{vVoff}, v{vKoff}, s[{STCH}:{STCH+3}], s{sA} offen{NTW}")
            a(f"s_add_u32 s{sA}, s{sA}, 8192")
            a(f"buffer_load_dword v{vVoff}, v{vKoff}, s[{STCH}:{STCH+3}], s{sA} offen{NTW}")
        a("s_branch K1_A_TOUCHR")

    a.label("K1_REDO")
    a("s_waitcnt vmcnt(0) lgkmcnt(0)")
    a(f"v_mbcnt_lo_u32_b32 v0, -1, 0")
    a(f"v_mbcnt_hi_u32_b32 v0, -1, v0")
    a("s_barrier")
    patterns()
    _t = (8, 9, 10, 11, 12)
    setup2()
    a(f"s_mov_b32 s{sSafe}, 8")
    a(f"s_cmp_lt_u32 s{sW}, 8")
    a("s_cbranch_scc1 K1_REDO2")
    issueKV_loader(SK, vKoff, 0, 0, "r0")
    issueKV_loader(SV, vVoff, 1, 0, "r1")
    issueKV_loader(SK, vKoff, 2, 1, "r2")
    issueKV_loader(SV, vVoff, 3, 1, "r3")
    a("s_waitcnt vmcnt(8)")
    a.label("K1_REDO2")
    a("s_barrier")
    for ks in range(8):
        kread(ks)
    if TR == 1: zeroO()
    a("s_branch K1_JOIN2")

    a.label("K1_P2_END")
    P.stamp(5)
    FUSED = opt.get("fused", 1)
    SC1 = " sc1" if FUSED else ""
    t0, t1, t2, t3, t4 = NM+2, NM+3, NM+4, NM+5, NM+6
    vLane = NM+7
    FASTC = opt.get("safe", 0) == 0
    STAT, EX, STG = 32768, 36864, (135168 if FASTC else 114688)
    if DO: STAT, EX = 61440, 65536
    BADF = STAT + 3072
    if FUSED:
        a("s_load_dwordx2 s[48:49], s[0:1], 80")
    a(f"v_mbcnt_lo_u32_b32 v{vLane}, -1, 0")
    a(f"v_mbcnt_hi_u32_b32 v{vLane}, -1, v{vLane}")
    def staging_addr():
        if DO: return
        a(f"v_and_b32 v{t2}, 15, v{vLane}")
        a(f"s_lshl_b32 s{sA}, s{sKq}, 2")
        a(f"v_xor_b32 v{t2}, s{sA}, v{t2}")
        a(f"v_lshlrev_b32 v{t2}, 4, v{t2}")
        a(f"v_and_b32 v{t0}, 31, v{vLane}")
        a(f"v_lshl_add_u32 v{t2}, v{t0}, 8, v{t2}")
        a(f"v_lshrrev_b32 v{t0}, 5, v{vLane}")
        a(f"v_lshl_add_u32 v{t2}, v{t0}, 3, v{t2}")
        a(f"s_lshl_b32 s{sA}, s{sQt}, 13")
        a(f"s_add_u32 s{sA}, s{sA}, {STG}")
        a(f"v_add_u32 v{t2}, s{sA}, v{t2}")
    def staging_write(R):
        PK = F
        for g in range(4):
            a(f"v_cvt_pk_bf16_f32 v{PK+2*g}, v{R+4*g}, v{R+4*g+1}")
            a(f"v_cvt_pk_bf16_f32 v{PK+2*g+1}, v{R+4*g+2}, v{R+4*g+3}")
            if DO: continue
            a(f"v_xor_b32 v{t0}, {g << 4}, v{t2}")
            a(f"ds_write_b64 v{t0}, {vr(PK+2*g,2)}")
    if FASTC:
        a(f"s_cmp_lg_u32 s{sSafe}, 0")
        a("s_cbranch_scc1 K1_COMB_GEN")
        a(f"v_mov_b32 v{t1}, v{vL}")
        a(f"v_lshlrev_b32 v{t2}, 4, v{vLane}")
        if opt.get("cv", 1):
            a("s_nop 0")
            a(f"v_permlane32_swap_b32 v{vL}, v{t1}")
            a("s_nop 0")
            a(f"v_add_f32 v{vL}, v{vL}, v{t1}")
        else:
            a(f"s_mul_i32 s{sB}, s{sQt}, {16*2048}")
            a(f"v_permlane32_swap_b32 v{vL}, v{t1}")
            a(f"s_lshl_b32 s{sA}, s{sKq}, 11")
            a(f"s_add_u32 s{sA}, s{sA}, s{sB}")
            a(f"s_add_u32 s{sA}, s{sA}, {EX}")
            a(f"v_add_f32 v{vL}, v{vL}, v{t1}")
            a(f"v_add_u32 v{t1}, s{sA}, v{t2}")
        a(f"v_cmp_ngt_f32 s[82:83], {f2u(2.0**20):#x}, v{vL}" if False else f"v_cmp_ngt_f32 vcc, {f2u(2.0**20):#x}, v{vL}")
        a(f"v_and_b32 v{t0}, 31, v{vLane}")
        a("s_nop 0")
        a(f"s_mov_b64 s[82:83], vcc")
        a(f"v_cmp_nlt_f32 vcc, {f2u(2.0**-20):#x}, v{vL}")
        a("s_nop 1")
        a(f"s_or_b64 vcc, vcc, s[82:83]")
        a(f"s_cmp_lg_u64 vcc, 0")
        a(f"s_cselect_b32 s{sD}, 1, 0")
        a(f"v_lshlrev_b32 v{t0}, 4, v{t0}")
        a(f"s_lshl_b32 s{sA}, s{sQt}, 9")
        a(f"s_add_u32 s{sA}, s{sA}, {STAT}")
        a(f"v_add_u32 v{t0}, s{sA}, v{t0}")
        a(f"s_lshl_b32 s{sA}, s{sKq}, 2")
        a(f"v_add_u32 v{t3}, s{sA}, v{t0}")
        a(f"ds_write_b32 v{t3}, v{vL}")
        a(f"s_lshl_b32 s{sA}, s{sW}, 2")
        a(f"s_add_u32 s{sA}, s{sA}, {BADF}")
        a(f"v_mov_b32 v{t3}, s{sA}")
        a(f"v_mov_b32 v{t4}, s{sD}")
        a(f"ds_write_b32 v{t3}, v{t4}")
        a("s_waitcnt lgkmcnt(0)")
        CV = opt.get("cv", 1)
        def selection(A1):
            a(f"v_and_b32 v{t3}, 3, v{vLane}")
            a(f"v_lshlrev_b32 v{t3}, 4, v{t3}")
            a(f"v_mov_b32 v{NM+8}, {0x3f80:#x}")
            a(f"v_mov_b32 v{NM+9}, 0")
            a(f"v_lshlrev_b64 {vr(NM+8,2)}, v{t3}, {vr(NM+8,2)}")
            for r in range(0, 8, 2):
                a(f"v_mov_b64 {vr(A1+r,2)}, 0")
            for k in range(4):
                a(f"s_mov_b32 exec_lo, {0x0f << (8*k):#x}")
                a(f"s_mov_b32 exec_hi, {0xf0 << (8*k):#x}")
                a(f"v_mov_b64 {vr(A1+2*k,2)}, {vr(NM+8,2)}")
            a("s_mov_b64 exec, -1")
        def post_e1_head():
            a(f"v_mov_b32 v{t3}, {BADF}")
            if CDIAG: P.stamp(2, force=2)
            a("s_waitcnt lgkmcnt(0)")
            if CDIAG: P.stamp(3, force=2)
            a("s_barrier")
            if CDIAG: P.stamp(4, force=2)
            for j in range(3):
                a(f"ds_read_b128 {vr(F+4*j,4)}, v{t3} offset:{16*j}")
            a(f"ds_read_b128 {vr(F+12,4)}, v{t0}")
        def check_and_rcp(nt):
            a(f"s_waitcnt lgkmcnt({nt})")
            for j in range(0, 12, 3):
                a(f"v_or3_b32 v{F+j}, v{F+j}, v{F+j+1}, v{F+j+2}")
            a(f"v_or3_b32 v{F}, v{F}, v{F+3}, v{F+6}")
            a(f"v_or_b32 v{F}, v{F}, v{F+9}")
            a(f"v_cmp_ne_u32 vcc, 0, v{F}")
            a("s_cbranch_vccnz K1_REDO")
            a(f"v_add_f32 v{F+12}, v{F+12}, v{F+13}")
            a(f"v_add_f32 v{F+14}, v{F+14}, v{F+15}")
            a(f"v_add_f32 v{F+12}, v{F+12}, v{F+14}")
            a(f"v_rcp_f32 v{F+12}, v{F+12}")
        A1 = S
        if CV:
            selection(A1)
            a(f"s_mul_i32 s{sB}, s{sQt}, {4*3*2048}")
            a(f"s_add_u32 s{sB}, s{sB}, {EX}")
            a(f"v_add_u32 v{t1}, s{sB}, v{t2}")
            for c in range(1, 4):
                a(f"s_cmp_eq_u32 s{sKq}, {c}")
                a(f"s_cbranch_scc1 K1_CV{c}")
            for c in range(4):
                a.label(f"K1_CV{c}")
                n = 0
                for dt in range(4):
                    if dt == c: continue
                    rank = (c - dt - 1) & 3
                    pk = F + 8*n; n += 1
                    for j in range(8):
                        a(f"v_cvt_pk_bf16_f32 v{pk+j}, v{O+16*dt+2*j}, v{O+16*dt+2*j+1}")
                    for g2 in range(2):
                        a(f"ds_write_b128 v{t1}, {vr(pk+4*g2,4)} offset:{dt*6144 + rank*2048 + g2*1024}")
                post_e1_head()
                free = [O + 16*d + 4*x for d in range(4) if d != c for x in range(4)]
                for rk in range(3):
                    for g2 in range(2):
                        a(f"ds_read_b128 {vr(free[2*rk+g2],4)}, v{t1} offset:{c*6144 + rk*2048 + g2*1024}")
                staging_addr()
                check_and_rcp(6)
                R = O + 16*c
                for n in range(6):
                    rk, g2 = n >> 1, n & 1
                    a(f"s_waitcnt lgkmcnt({5-n})")
                    a(f"{MF32} {vr(R,16)}, {vr(A1+4*g2,4)}, {vr(free[2*rk+g2],4)}, {vr(R,16)}")
                a("s_nop 15")
                a("s_nop 3")
                if CDIAG: P.stamp(6, force=2)
                for r in range(0, 16, 2):
                    a(f"v_pk_mul_f32 {vr(R+r,2)}, {vr(R+r,2)}, {vr(F+12,2)} op_sel_hi:[1,0]")
                staging_write(R)
                if c < 3: a("s_branch K1_COMB_DONE")
        else:
            for dt in range(4):
                pk = F + 8*dt
                for j in range(8):
                    a(f"v_cvt_pk_bf16_f32 v{pk+j}, v{O+16*dt+2*j}, v{O+16*dt+2*j+1}")
                for g2 in range(2):
                    a(f"ds_write_b128 v{t1}, {vr(pk+4*g2,4)} offset:{dt*8192 + g2*1024}")
            A1, A2 = S, S+4
            i_, h_ = NM+8, NM+9
            a(f"v_and_b32 v{i_}, 31, v{vLane}")
            a(f"v_lshrrev_b32 v{h_}, 5, v{vLane}")
            a(f"v_bfe_u32 v{t3}, v{i_}, 2, 1")
            a(f"v_cmp_eq_u32 vcc, v{t3}, v{h_}")
            a(f"v_and_b32 v{t3}, 1, v{i_}")
            a(f"v_lshlrev_b32 v{t3}, 4, v{t3}")
            a(f"v_lshlrev_b32 v{t3}, v{t3}, {0x3f80:#x}" if False else f"v_mov_b32 v{t4}, {0x3f80:#x}")
            a(f"v_lshlrev_b32 v{t4}, v{t3}, v{t4}")
            a(f"v_cndmask_b32 v{t4}, 0, v{t4}, vcc")
            a(f"v_bfe_u32 v{t3}, v{i_}, 1, 1")
            a(f"v_lshrrev_b32 v{h_}, 3, v{i_}")
            a(f"v_lshl_or_b32 v{t3}, v{h_}, 1, v{t3}")
            for r in range(8):
                a(f"v_cmp_eq_u32 vcc, {r}, v{t3}")
                a(f"v_cndmask_b32 v{A1+r}, 0, v{t4}, vcc")
            a(f"s_lshl_b32 s{sA}, s{sKq}, 13")
            a(f"s_add_u32 s{sA}, s{sA}, s{sB}")
            a(f"s_add_u32 s{sA}, s{sA}, {EX}")
            a(f"v_add_u32 v{t1}, s{sA}, v{t2}")
            a(f"v_mov_b32 v{t3}, {BADF}")
            if CDIAG: P.stamp(2, force=2)
            a("s_waitcnt lgkmcnt(0)")
            if CDIAG: P.stamp(3, force=2)
            a("s_barrier")
            if CDIAG: P.stamp(4, force=2)
            for j in range(3):
                a(f"ds_read_b128 {vr(F+4*j,4)}, v{t3} offset:{16*j}")
            a(f"ds_read_b128 {vr(F+12,4)}, v{t0}")
            TT = O
            for src in range(4):
                for g2 in range(2):
                    a(f"ds_read_b128 {vr(TT+8*src+4*g2,4)}, v{t1} offset:{src*2048+g2*1024}")
            staging_addr()
            a("s_waitcnt lgkmcnt(8)")
            for j in range(0, 12, 3):
                a(f"v_or3_b32 v{F+j}, v{F+j}, v{F+j+1}, v{F+j+2}")
            a(f"v_or3_b32 v{F}, v{F}, v{F+3}, v{F+6}")
            a(f"v_or_b32 v{F}, v{F}, v{F+9}")
            a(f"v_cmp_ne_u32 vcc, 0, v{F}")
            a("s_cbranch_vccnz K1_REDO")
            R = S + 8 if False else O + 32
            a(f"v_add_f32 v{F+12}, v{F+12}, v{F+13}")
            a(f"v_add_f32 v{F+14}, v{F+14}, v{F+15}")
            a(f"v_add_f32 v{F+12}, v{F+12}, v{F+14}")
            a(f"v_rcp_f32 v{F+12}, v{F+12}")
            for n in range(8):
                src, g2 = n >> 1, n & 1
                a(f"s_waitcnt lgkmcnt({7-n})")
                a(f"{MF32} {vr(R,16)}, {vr(A1+4*g2,4)}, {vr(TT+8*src+4*g2,4)}, {'0' if n == 0 else vr(R,16)}")
            a("s_nop 15")
            a("s_nop 3")
            if CDIAG: P.stamp(6, force=2)
            for r in range(16):
                a(f"v_mul_f32 v{R+r}, v{R+r}, v{F+12}")
            staging_write(R)
        a("s_branch K1_COMB_DONE")
        a.label("K1_COMB_GEN")
    a(f"v_mov_b32 v{t1}, v{vL}")
    ST = NM + 8
    a(f"v_sub_f32 v{ST}, 0, v{NM}")
    a(f"v_and_b32 v{t0}, 31, v{vLane}")
    a(f"v_permlane32_swap_b32 v{vL}, v{t1}")
    a(f"v_add_f32 v{ST+1}, v{vL}, v{t1}")
    a(f"v_cmp_ngt_f32 vcc, {f2u(2.0**20):#x}, v{ST+1}")
    a(f"s_lshl_b32 s{sA}, s{sW}, 2")
    a(f"s_add_u32 s{sA}, s{sA}, {BADF}")
    a(f"v_mov_b32 v{t3}, s{sA}")
    a(f"s_cmp_lg_u64 vcc, 0")
    a(f"s_cselect_b32 s{sA}, 1, 0")
    a(f"s_cmp_eq_u32 s{sSafe}, 1")
    a(f"s_cselect_b32 s{sA}, s{sA}, 0")
    a(f"v_mov_b32 v{t4}, s{sA}")
    a(f"ds_write_b32 v{t3}, v{t4}")
    a(f"v_lshlrev_b32 v{t0}, 3, v{t0}")
    a(f"s_lshl_b32 s{sA}, s{sQt}, 10")
    a(f"s_add_u32 s{sA}, s{sA}, {STAT}")
    a(f"v_add_u32 v{t0}, s{sA}, v{t0}")
    a(f"s_lshl_b32 s{sB}, s{sKq}, 8")
    a(f"v_add_u32 v{t1}, s{sB}, v{t0}")
    R = S
    a(f"v_lshlrev_b32 v{t2}, 4, v{vLane}")
    a(f"s_mul_i32 s{sB}, s{sQt}, {4*3*2048}")
    a(f"s_add_u32 s{sB}, s{sB}, {EX}")
    a(f"ds_write_b64 v{t1}, {vr(ST,2)}")
    a("s_waitcnt lgkmcnt(0)")
    for dt in range(4):
        a(f"s_cmp_eq_u32 s{sKq}, {dt}")
        a(f"s_cbranch_scc1 K1_OWN{dt}")
        a(f"s_sub_u32 s{sA}, s{sKq}, {dt+1}")
        a(f"s_and_b32 s{sA}, s{sA}, 3")
        a(f"s_lshl_b32 s{sA}, s{sA}, 11")
        a(f"s_add_u32 s{sA}, s{sA}, s{sB}")
        a(f"v_add_u32 v{t1}, s{sA}, v{t2}")
        pk = F + 8*dt
        for j in range(8):
            a(f"v_cvt_pk_bf16_f32 v{pk+j}, v{O+16*dt+2*j}, v{O+16*dt+2*j+1}")
        for g2 in range(2):
            a(f"ds_write_b128 v{t1}, {vr(pk+4*g2,4)} offset:{dt*3*2048 + g2*1024}")
        a(f"s_branch K1_NXT{dt}")
        a.label(f"K1_OWN{dt}")
        for r in range(0, 16, 2):
            a(f"v_mov_b64 {vr(R+r,2)}, {vr(O+16*dt+r,2)}")
        a.label(f"K1_NXT{dt}")
    a("s_waitcnt lgkmcnt(0)")
    a("s_barrier")
    a(f"v_mov_b32 v{t1}, {BADF}")
    for j in range(3):
        a(f"ds_read_b128 {vr(F+4*j,4)}, v{t1} offset:{16*j}")
    for rk in range(3):
        a(f"s_add_u32 s{sA}, s{sKq}, {rk+1}")
        a(f"s_and_b32 s{sA}, s{sA}, 3")
        a(f"s_lshl_b32 s{sA}, s{sA}, 8")
        a(f"v_add_u32 v{t1}, s{sA}, v{t0}")
        a(f"ds_read_b64 {vr(ST+2+2*rk,2)}, v{t1}")
    a(f"s_mul_i32 s{sA}, s{sKq}, {3*2048}")
    a(f"s_add_u32 s{sA}, s{sA}, s{sB}")
    a(f"v_add_u32 v{t1}, s{sA}, v{t2}")
    TT = O
    for rk in range(3):
        for g2 in range(2):
            a(f"ds_read_b128 {vr(TT+8*rk+4*g2,4)}, v{t1} offset:{rk*2048+g2*1024}")
    staging_addr()
    a("s_waitcnt lgkmcnt(6)")
    for j in range(0, 12, 3):
        a(f"v_or3_b32 v{F+j}, v{F+j}, v{F+j+1}, v{F+j+2}")
    a(f"v_or3_b32 v{F}, v{F}, v{F+3}, v{F+6}")
    a(f"v_or_b32 v{F}, v{F}, v{F+9}")
    a(f"v_cmp_ne_u32 vcc, 0, v{F}")
    a("s_cbranch_vccnz K1_REDO")
    mf = t3
    a(f"v_max3_f32 v{mf}, v{ST}, v{ST+2}, v{ST+4}")
    a(f"v_max_f32 v{mf}, v{mf}, v{ST+6}")
    for j in range(4):
        a(f"v_sub_f32 v{ST+2*j}, v{ST+2*j}, v{mf}")
    for j in range(4):
        a(f"v_exp_f32 v{ST+2*j}, v{ST+2*j}")
    a("s_nop 0")
    a(f"v_mul_f32 v{t4}, v{ST}, v{ST+1}")
    for j in range(1, 4):
        a(f"v_fma_f32 v{t4}, v{ST+2*j}, v{ST+2*j+1}, v{t4}")
    a(f"v_rcp_f32 v{t4}, v{t4}")
    a("s_nop 0")
    for j in range(4):
        a(f"v_mul_f32 v{ST+2*j}, v{ST+2*j}, v{t4}")
    for r in range(0, 16, 2):
        a(f"v_pk_mul_f32 {vr(R+r,2)}, {vr(R+r,2)}, {vr(ST,2)} op_sel_hi:[1,0]")
    U = O+32
    for rk in range(3):
        a(f"s_waitcnt lgkmcnt({4-2*rk})")
        for j in range(8):
            p = TT + 8*rk + j
            u = U + 2*(j & 3)
            a(f"v_lshlrev_b32 v{u}, 16, v{p}")
            a(f"v_and_b32 v{u+1}, 0xffff0000, v{p}")
            a(f"v_pk_fma_f32 {vr(R+2*j,2)}, {vr(u,2)}, {vr(ST+2+2*rk,2)}, {vr(R+2*j,2)} op_sel_hi:[1,0,1]")
    PK = F
    staging_write(R)
    if FASTC: a.label("K1_COMB_DONE")
    if not FUSED:
        a(f"v_lshrrev_b32 v{t0}, 4, v{vLane}")
        a(f"s_lshl_b32 s{sA}, s{sW}, 3")
        a(f"v_add_u32 v{t0}, s{sA}, v{t0}")
        a(f"v_and_b32 v{t1}, 15, v{vLane}")
        a(f"v_lshlrev_b32 v{t3}, 8, v{t0}")
        a(f"v_lshl_add_u32 v{t3}, v{t1}, 4, v{t3}")
        a(f"v_add_u32 v{t3}, {STG}, v{t3}")
        a(f"v_and_b32 v{t4}, 15, v{t0}")
        a(f"v_xor_b32 v{t1}, v{t1}, v{t4}")
        a(f"s_cmp_ge_u32 s{sW}, 6")
        a(f"s_cselect_b32 s{sA}, {256 - 48*8192}, 0")
        a(f"v_lshlrev_b32 v{t0}, 13, v{t0}")
        a(f"v_add_u32 v{t0}, s{sA}, v{t0}")
        a(f"v_lshl_add_u32 v{t4}, v{t1}, 4, v{t0}")
        a(f"v_xor_b32 v{t1}, 4, v{t1}")
        a(f"v_lshl_add_u32 v{t0}, v{t1}, 4, v{t0}")
        a(f"v_add_u32 v{t0}, {4*8192}, v{t0}")
        a("s_waitcnt lgkmcnt(0)")
        a("s_barrier")
        a(f"ds_read_b128 {vr(PK,4)}, v{t3}")
        a(f"ds_read_b128 {vr(PK+4,4)}, v{t3} offset:1024")
        a("s_waitcnt lgkmcnt(1)")
        a(f"buffer_store_dwordx4 {vr(PK,4)}, v{t4}, s[{SO}:{SO+3}], 0 offen")
        a("s_waitcnt lgkmcnt(0)")
        a(f"buffer_store_dwordx4 {vr(PK+4,4)}, v{t0}, s[{SO}:{SO+3}], 0 offen")
        P.stamp(6)
        if PROF: a("s_waitcnt vmcnt(0)")
        P.stamp(7)
        P.stamp(8, real=True)
        if LIGHT:
            for k in range(6):
                a(f"s_mov_b32 s{84+2+k}, s{96+k}")
        P.dump(52, sW, 64 << 20, 12)
        if opt.get("padto", 0):
            a.label("K1_PAD")
            a("s_memrealtime s[82:83]")
            a("s_waitcnt lgkmcnt(0)")
            a("s_sub_u32 s82, s82, s100")
            a(f"s_cmp_lt_u32 s82, {opt['padto']}")
            a("s_cbranch_scc1 K1_PAD")
        a.label("K1_END")
        a("s_endpgm")
        return NV
    a(f"v_mov_b32 v0, v{vLane}")
    if DO:
        a(f"v_lshlrev_b32 v{t0}, 4, v0")
        a(f"s_lshl_b32 s{sA}, s{sW}, 11")
        for g2 in range(2):
            a(f"buffer_store_dwordx4 {vr(PK+4*g2,4)}, v{t0}, s[{SO}:{SO+3}], s{sA} offen offset:{g2*1024} sc1")
        P.stamp(6)
        a(f"s_cmp_ge_u32 s{sW}, 8")
        a("s_cbranch_scc1 O3_LOADER")
        a("s_waitcnt vmcnt(0)")
        a("s_barrier")
        P.stamp(7)
        outproj3(a, opt, P)
        a.label("K1_END")
        a("s_endpgm")
        return NV
    if OPM == 1:
        a(f"s_cmp_ge_u32 s{sW}, 8")
        a(f"s_cselect_b32 s{sA}, 4, 0")
        a(f"s_sub_u32 s{sE}, s{sW}, s{sA}")
        a(f"s_mul_i32 s{sE}, s{sE}, 12")
    else:
        a(f"s_mul_i32 s{sE}, s{sW}, 12")
    a(f"v_lshrrev_b32 v{t0}, 4, v0")
    a(f"v_and_b32 v{t1}, 15, v0")
    a(f"v_lshlrev_b32 v{t3}, 8, v{t0}")
    a(f"v_lshl_add_u32 v{t3}, v{t1}, 4, v{t3}")
    a(f"s_lshl_b32 s{sA}, s{sE}, 8")
    a(f"s_add_u32 s{sA}, s{sA}, {STG}")
    a(f"v_add_u32 v{t3}, s{sA}, v{t3}")
    a(f"v_xor_b32 v{t1}, v{t1}, v{t0}")
    a(f"v_lshlrev_b32 v{t0}, 13, v{t0}")
    a("s_waitcnt lgkmcnt(0)")
    if CDIAG: P.stamp(7, force=2)
    a("s_barrier")
    if CDIAG: P.stamp(9, force=2)
    if OPM == 1:
        a(f"s_cmp_lt_u32 s{sQt}, 1")
        a("s_cbranch_scc1 K1_STORE")
        a(f"s_cmp_lt_u32 s{sQt}, 2")
        a("s_cbranch_scc1 OP_LOADER0")
    else:
        a(f"s_cmp_ge_u32 s{sW}, 8")
        a("s_cbranch_scc1 O3_LOADER")
    a.label("K1_STORE")
    for j in range(3):
        a(f"ds_read_b128 {vr(PK+4*j,4)}, v{t3} offset:{j*1024}")
    a(f"s_cmp_ge_u32 s{sE}, 48")
    a(f"s_cselect_b32 s{sB}, {256 - 48*8192}, 0")
    for j in range(3):
        a(f"s_add_u32 s{sA}, s{sE}, {4*j}")
        a(f"s_and_b32 s{sD}, s{sA}, 12")
        a(f"v_xor_b32 v{t4}, s{sD}, v{t1}")
        a(f"v_lshl_add_u32 v{t4}, v{t4}, 4, v{t0}")
        a(f"s_lshl_b32 s{sA}, s{sA}, 13")
        a(f"s_add_u32 s{sA}, s{sA}, s{sB}")
        a(f"s_waitcnt lgkmcnt({2-j})")
        a(f"buffer_store_dwordx4 {vr(PK+4*j,4)}, v{t4}, s[{SO}:{SO+3}], s{sA} offen{'' if opt.get('loc', 0) & 1 else ' sc1'}")
    P.stamp(6)
    if CDIAG: P.stamp(10, force=2)
    a("s_waitcnt vmcnt(0)")
    a("s_barrier")
    if CDIAG: P.stamp(11, force=2)
    P.stamp(7)
    if OPM == 1:
        outproj(a, opt, P, fused=True)
    else:
        outproj3(a, opt, P)
    a.label("K1_END")
    a("s_endpgm")
    return NV

def kernel2(a, opt):
    a.label("k2_kernel")
    a("s_cmp_ge_u32 s2, 256")
    a("s_cbranch_scc1 K2_END")
    P = Prof(a, 64, 62, 40)
    P.init(12)
    P.stamp(0, real=True)
    P.stamp(1)
    a("s_load_dwordx2 s[36:37], s[0:1], 32")
    a("s_load_dwordx2 s[50:51], s[0:1], 72")
    a("s_load_dwordx2 s[48:49], s[0:1], 80")
    a("s_load_dwordx2 s[52:53], s[0:1], 96")
    a("v_lshrrev_b32 v1, 6, v0")
    a("v_and_b32 v0, 63, v0")
    a("v_readfirstlane_b32 s4, v1")
    a("s_and_b32 s5, s2, 3")
    a("s_bfe_u32 s6, s2, 0x10002")
    a("s_lshr_b32 s7, s2, 5")
    a("s_bfe_u32 s3, s2, 0x20003")
    a("s_waitcnt lgkmcnt(0)")
    nv = outproj(a, opt, P, fused=False)
    a.label("K2_END")
    a("s_endpgm")
    return nv

def outproj3(a, opt, P):
    F1L, SEC = flaglayout(opt)
    DO = direct_o(opt)
    sW = 4
    SX, SWO, SO, SFL, SPX = 8, 12, 16, 28, 24
    sA, sB, sD, sLam = 20, 21, 22, 23
    sP, sSl, sSlX, sWg, sXg, sT = 32, 33, 34, 35, 38, 39
    NS, STG = 5, 28672
    PXOFF = 16 << 20
    t0, t1, t2, t3, t4 = 8, 9, 10, 11, 12
    WA, XA = 2, 14
    FBUF = [24, 64]
    ACC = 104
    RX = 24
    vWo, vXo, vPoll, vPa = 20, 21, 22, 23
    a(f"s_cmp_lg_u32 s{sW}, 0")
    a("s_cbranch_scc1 O3_NOFLAG")
    a(f"s_lshl_b32 s{sA}, s46, 2")
    a(f"s_add_u32 s{sA}, s{sA}, s45")
    a(f"v_mov_b32 v{t0}, s96")
    if F1L:
        a(f"v_lshl_add_u32 v{t1}, v0, 7, s{sA}")
        a("s_mov_b64 exec, 0xff")
    else:
        a(f"v_mov_b32 v{t1}, s{sA}")
        a("s_mov_b64 exec, 1")
    a(f"buffer_store_dword v{t0}, v{t1}, s[{SFL}:{SFL+3}], 0 offen{'' if opt.get('loc', 0) & 2 else ' sc1'}")
    a("s_mov_b64 exec, -1")
    a.label("O3_NOFLAG")
    a(f"v_bfe_u32 v{t0}, v0, 2, 2")
    a(f"v_lshrrev_b32 v{t1}, 4, v0")
    a(f"v_and_b32 v{t2}, 1, v{t1}")
    a(f"v_lshl_or_b32 v{t2}, v{t2}, 2, v{t0}")
    a(f"s_and_b32 s{sA}, s{sW}, 3")
    a(f"s_lshl_b32 s{sA}, s{sA}, 1")
    a(f"v_xor_b32 v{t2}, s{sA}, v{t2}")
    if DO:
        a(f"v_lshrrev_b32 v{t3}, 1, v{t1}")
        a(f"v_lshlrev_b32 v{t3}, 4, v{t3}")
        a(f"v_and_b32 v{t4}, 1, v{t1}")
        a(f"v_lshl_add_u32 v{t3}, v{t4}, 2, v{t3}")
        a(f"v_add_u32 v{t3}, v{t3}, v{t0}")
    else:
        a(f"v_lshl_add_u32 v{t3}, v{t1}, 3, v{t0}")
    a(f"v_lshlrev_b32 v{t3}, 8, v{t3}")
    a(f"v_lshl_add_u32 v{t3}, v{t2}, 5, v{t3}")
    a(f"v_and_b32 v{t4}, 3, v0")
    a(f"v_lshl_add_u32 v{WA}, v{t4}, 3, v{t3}")
    a(f"v_xor_b32 v{WA+1}, 32, v{WA}")
    a(f"v_and_b32 v{t0}, 15, v0")
    if DO:
        a(f"v_mul_u32_u24 v{t2}, 1536, v{t1}")
        a(f"v_lshl_add_u32 v{t2}, v{t0}, 4, v{t2}")
        a(f"s_lshr_b32 s{sA}, s{sW}, 2")
        a(f"s_mul_i32 s{sA}, s{sA}, 768")
        a(f"s_add_u32 s{sA}, s{sA}, 16384")
        a(f"v_add_u32 v{XA}, s{sA}, v{t2}")
    else:
        a(f"v_lshrrev_b32 v{t2}, 1, v{t0}")
        a(f"v_xor_b32 v{t2}, v{t1}, v{t2}")
        a(f"v_lshlrev_b32 v{t2}, 4, v{t2}")
        a(f"v_lshl_add_u32 v{t2}, v{t0}, 7, v{t2}")
        a(f"s_lshr_b32 s{sA}, s{sW}, 2")
        a(f"s_mul_i32 s{sA}, s{sA}, 6144")
        a(f"s_add_u32 s{sA}, s{sA}, 16384")
        a(f"v_add_u32 v{XA}, s{sA}, v{t2}")
        a(f"v_xor_b32 v{XA+1}, 64, v{XA}")
    for r in range(0, 24, 2):
        a(f"v_mov_b64 {vr(ACC+r,2)}, 0")
    def read_list(buf):
        fb = FBUF[buf]
        L = []
        for ks in range(2):
            for tt in range(2):
                for e in range(2):
                    L.append(f"ds_read_b64_tr_b16 {vr(fb + (tt*2+ks)*4 + e*2, 2)}, v{WA+tt} offset:{ks*8192 + e*(2048 if DO else 1024)}")
            for rt in range(3):
                if DO: L.append(f"ds_read_b128 {vr(fb + 16 + (rt*2+ks)*4, 4)}, v{XA} offset:{ks*6144 + rt*256}")
                else: L.append(f"ds_read_b128 {vr(fb + 16 + (rt*2+ks)*4, 4)}, v{XA+ks} offset:{rt*2048}")
        return L
    def mfma_list(buf):
        fb = FBUF[buf]
        L = []
        for ks in range(2):
            for rt in range(3):
                for tt in range(2):
                    acc = ACC + (tt*3+rt)*4
                    L.append(f"{MF16} {vr(acc,4)}, {vr(fb+(tt*2+ks)*4,4)}, {vr(fb+16+(rt*2+ks)*4,4)}, {vr(acc,4)}")
        return L
    def reads(buf):
        for x in read_list(buf): a(x)
    def mfmas(buf):
        for x in mfma_list(buf): a(x)
    def both(rbuf, mbuf):
        R, M = read_list(rbuf), mfma_list(mbuf)
        if opt.get("pw", 1):
            pat = {1: [2,1,1,2,1,1,2,1,1,2,0,0], 2: [1,1,1,1,1,1,2,2,2,2,0,0], 3: [2]*7+[0]*5}[opt.get("pw", 1)]
            k = 0
            for n in range(12):
                if n == 6: a(f"s_waitcnt lgkmcnt({k})")
                a(M[n])
                for x in R[k:k+pat[n]]: a(x)
                k += pat[n]
                if n == 10: adv()
            return
        if opt.get("fl", 3) & 1:
            per = opt.get("flo", 2)
            for n in range(12):
                a(M[n])
                for x in R[per*n:per*n+per]: a(x)
                if n == 8: adv()
            return
        for n in range(12):
            a(M[n])
            a(R[n])
            if n in (5, 11): a(R[12 + (n == 11)])
        adv()
    def adv():
        a(f"s_add_u32 s{sA}, s{sSl}, {STG}")
        a(f"s_cmp_ge_u32 s{sA}, {NS*STG}")
        a(f"s_cselect_b32 s{sB}, {NS*STG}, 0")
        a(f"s_sub_u32 s{sA}, s{sA}, s{sB}")
        a(f"s_sub_u32 s{sD}, s{sA}, s{sSl}")
        a(f"s_mov_b32 s{sSl}, s{sA}")
        for v in ((WA, WA+1, XA) if DO else (WA, WA+1, XA, XA+1)):
            a(f"v_add_u32 v{v}, s{sD}, v{v}")
    a(f"s_mov_b32 s{sSl}, 0")
    EX2 = opt.get("ex", 3) >= 2
    EX4 = opt.get("ex", 3) == 4
    EX3 = opt.get("ex", 3) == 3 or EX4
    PPOLL = opt.get("ppoll", 0)
    vTk, vTa, vPl = 128, 129, 130
    def poll_pipe(uid, addr, execmask, want, first_sleep, D=4, slp=0):
        a(f"s_mov_b64 exec, {execmask}")
        a(f"s_mov_b32 s{sP}, 0")
        for k in range(D):
            a(f"buffer_load_dword v{vPl+k}, v{addr}, s[{SFL}:{SFL+3}], 0 offen sc1")
            if k < D-1: a(f"s_sleep {first_sleep}")
        a.label(f"O3_PP{uid}")
        for k in range(D):
            a(f"s_waitcnt vmcnt({D-1})")
            a(f"v_cmp_eq_u32 vcc, s96, v{vPl+k}")
            a("s_nop 1")
            a(f"s_and_b32 s{sD}, vcc_lo, {want}")
            a(f"s_cmp_eq_u32 s{sD}, {want}")
            a(f"s_cbranch_scc1 O3_PP{uid}_OK")
            if slp: a(f"s_sleep {slp}")
            a(f"buffer_load_dword v{vPl+k}, v{addr}, s[{SFL}:{SFL+3}], 0 offen sc1")
        a(f"s_add_u32 s{sP}, s{sP}, 1")
        a(f"s_cmp_lt_u32 s{sP}, 100000")
        a(f"s_cbranch_scc1 O3_PP{uid}")
        a.label(f"O3_PP{uid}_OK")
        a("s_mov_b64 exec, -1")
    if EX2 and not EX3:
        a(f"s_lshl_b32 s{sA}, s{sW}, 7")
        a(f"s_add_u32 s{sA}, s{sA}, s47")
        a(f"s_add_u32 s{sA}, s{sA}, 64")
        a(f"v_mov_b32 v{vTa}, s{sA}")
        a(f"v_mov_b32 v{vTk}, 1")
    vNon = 131
    if EX4:
        a(f"s_lshl_b32 s{sA}, s{sW}, 7")
        a(f"s_add_u32 s{sA}, s{sA}, s47")
        a(f"v_lshl_add_u32 v{t0}, v0, 2, s{sA}")
        a("s_mov_b64 exec, 15")
        a(f"buffer_load_dword v{vNon}, v{t0}, s[{SFL}:{SFL+3}], 0 offen sc1")
        a("s_mov_b64 exec, -1")
    if PPOLL:
        a(f"s_cmp_lg_u32 s{sW}, 1")
        a("s_cbranch_scc1 O3_NOPOLL1")
        a(f"v_lshlrev_b32 v{t0}, 2, v0")
        a(f"v_add_u32 v{t0}, s45, v{t0}")
        if F1L:
            a(f"s_lshl_b32 s{sA}, s46, 7")
            a(f"v_add_u32 v{t0}, s{sA}, v{t0}")
        poll_pipe(1, t0, "0xff", "0xff", opt.get("psl", 8), opt.get("pd1", 1), opt.get("pslp1", 2))
        a.label("O3_NOPOLL1")
    a("s_barrier")
    a("s_barrier")
    P.stamp(9)
    reads(0); adv()
    a("s_waitcnt lgkmcnt(0)")
    a(f"s_mov_b32 s{sP}, 0")
    a.label("O3_C_LOOP")
    for half in range(2):
        a("s_barrier")
        if EX2 and not EX3 and half == opt.get("tkh", 0):
            a(f"s_cmp_eq_u32 s{sP}, {opt.get('tkp', 6)}")
            a("s_cbranch_scc1 O3_TICKET")
            a.label("O3_TICKETR")
        both(1-half, half)
        a(f"s_waitcnt lgkmcnt({7 if opt.get('pw', 1) else 0})")
        if half == 0:
            a(f"s_cmp_eq_u32 s{sP}, 7")
            a("s_cbranch_scc1 O3_C_DONE")
    a(f"s_add_u32 s{sP}, s{sP}, 1")
    a("s_branch O3_C_LOOP")
    a.label("O3_C_DONE")
    if opt.get('pw', 1):
        ML = mfma_list(1)
        for x in ML[:6]: a(x)
        a("s_waitcnt lgkmcnt(0)")
        for x in ML[6:]: a(x)
    else:
        mfmas(1)
    P.stamp(10)
    def out_addr():
        a(f"s_lshr_b32 s{sA}, s7, 1")
        a(f"s_mul_i32 s{sA}, s{sA}, 96")
        a(f"s_lshr_b32 s{sD}, s{sW}, 2")
        a(f"s_mul_i32 s{sD}, s{sD}, 48")
        a(f"s_add_u32 s{sA}, s{sA}, s{sD}")
        a(f"s_lshl_b32 s{sA}, s{sA}, 12")
        a(f"s_lshl_b32 s{sD}, s6, 11")
        a(f"s_add_u32 s{sA}, s{sA}, s{sD}")
        a(f"s_lshl_b32 s{sD}, s46, 8")
        a(f"s_add_u32 s{sA}, s{sA}, s{sD}")
        a(f"s_and_b32 s{sD}, s{sW}, 3")
        a(f"s_lshl_b32 s{sD}, s{sD}, 6")
        a(f"s_add_u32 s{sA}, s{sA}, s{sD}")
        a(f"s_mov_b32 s{SO}, s48")
        a(f"s_mov_b32 s{SO+1}, s49")
        a(f"s_mov_b32 s{SO+2}, {8*48*2048*2}")
        a(f"s_mov_b32 s{SO+3}, 0x20000")
        a(f"v_and_b32 v{t1}, 15, v0")
        a(f"v_lshrrev_b32 v{t2}, 4, v0")
        a(f"v_lshlrev_b32 v{t1}, 12, v{t1}")
        a(f"v_lshl_add_u32 v{t1}, v{t2}, 3, v{t1}")
    def out_store():
        for tt in range(2):
            for rt in range(3):
                acc = ACC + (tt*3+rt)*4
                a(f"v_cvt_pk_bf16_f32 v{acc}, v{acc}, v{acc+1}")
                a(f"v_cvt_pk_bf16_f32 v{acc+1}, v{acc+2}, v{acc+3}")
                a(f"s_add_u32 s{sD}, s{sA}, {rt*16*4096}")
                a(f"buffer_store_dwordx2 {vr(acc,2)}, v{t1}, s[{SO}:{SO+3}], s{sD} offen offset:{tt*32}{['', ' sc1', ' nt', ' sc0 sc1', ' sc1 nt'][opt.get('outsc', 1)]}")
    if EX4:
        a(f"s_sub_u32 s{sA}, s47, {SEC}")
        a(f"s_lshr_b32 s{sA}, s{sA}, 10")
        a(f"s_lshl_b32 s{sA}, s{sA}, 3")
        a(f"s_add_u32 s{sA}, s{sA}, s{sW}")
        a(f"s_lshl_b32 s{sA}, s{sA}, 14")
        a(f"s_add_u32 s{sA}, s{sA}, {PXOFF}")
        a(f"s_add_u32 s{SPX}, s52, s{sA}")
        a(f"s_addc_u32 s{SPX+1}, s53, 0")
        a(f"s_mov_b32 s{SPX+2}, 16384")
        a(f"s_mov_b32 s{SPX+3}, 0x20000")
        a(f"v_lshlrev_b32 v{t0}, 4, v0")
        a(f"s_and_b32 s{sT}, s{sW}, 3")
        a(f"s_cmp_eq_u32 s{sT}, s5")
        a("s_cbranch_scc1 O3_LAST")
        for j in range(4):
            for k in range(3):
                p = 3*j + k
                a(f"v_cvt_pk_bf16_f32 v{RX+4*j+k}, v{ACC+2*p}, v{ACC+2*p+1}")
            a(f"v_mov_b32 v{RX+4*j+3}, s100")
        a(f"s_lshl_b32 s{sA}, s5, 12")
        for j in range(4):
            a(f"buffer_store_dwordx4 {vr(RX+4*j,4)}, v{t0}, s[{SPX}:{SPX+3}], s{sA} offen offset:{j*1024} sc1")
        P.stamp(11)
        P.stamp(8, real=True)
        P.dump(52, sW, 64 << 20, 12)
        a("s_endpgm")
        a.label("O3_LAST")
        a(f"v_lshlrev_b32 v{t1}, 12, v0")
        a(f"v_add_u32 v{t1}, {3*1024 + opt.get('lpg', 0)*16 + 12}, v{t1}")
        a(f"s_lshl_b32 s{sB}, 1, s5")
        a(f"s_xor_b32 s{sB}, s{sB}, 15")
        a(f"s_mov_b32 s{sP}, 0")
        a("s_mov_b64 exec, 15")
        a.label("O3_LP")
        a(f"buffer_load_dword v{vPl}, v{t1}, s[{SPX}:{SPX+3}], 0 offen sc1")
        a("s_waitcnt vmcnt(0)")
        a(f"v_cmp_eq_u32 vcc, v{vNon}, v{vPl}")
        a("s_nop 1")
        a(f"s_and_b32 s{sD}, vcc_lo, s{sB}")
        a(f"s_cmp_eq_u32 s{sD}, s{sB}")
        a("s_cbranch_scc1 O3_LP_OK")
        a(f"s_sleep {opt.get('pslp2', 2)}")
        a(f"s_add_u32 s{sP}, s{sP}, 1")
        a(f"s_cmp_lt_u32 s{sP}, 200000")
        a("s_cbranch_scc1 O3_LP")
        a.label("O3_LP_OK")
        a("s_mov_b64 exec, -1")
        P.stamp(4)
        if PROF: a(f"s_mov_b32 s{P.base+2}, s{sP}")
        sN = [34, 35, 38]
        sOf = [40, 41, 42]
        def loads(r):
            for j in range(4):
                a(f"buffer_load_dwordx4 {vr(RX+16*r+4*j,4)}, v{t0}, s[{SPX}:{SPX+3}], s{sOf[r]} offen offset:{j*1024} sc1")
        for r in range(3):
            a(f"s_add_u32 s{sA}, s5, {r+1}")
            a(f"s_and_b32 s{sA}, s{sA}, 3")
            a(f"s_lshl_b32 s{sOf[r]}, s{sA}, 12")
            loads(r)
            a(f"v_readlane_b32 s{sN[r]}, v{vNon}, s{sA}")
        out_addr()
        U = RX + 48
        a(f"s_mov_b32 s{sP}, 0")
        for r in range(3):
            a(f"s_waitcnt vmcnt({8 - 4*r})")
            a.label(f"O3_CHK{r}")
            b = RX + 16*r
            for j in range(4):
                a(f"v_xor_b32 v{U+j}, s{sN[r]}, v{b+4*j+3}")
            a(f"v_or3_b32 v{U}, v{U}, v{U+1}, v{U+2}")
            a(f"v_or_b32 v{U}, v{U}, v{U+3}")
            a(f"v_cmp_ne_u32 vcc, 0, v{U}")
            a(f"s_cbranch_vccnz O3_RETRY{r}")
            a.label(f"O3_GOOD{r}")
            for j in range(4):
                for k in range(3):
                    p = b + 4*j + k
                    u = U + 2*k
                    a(f"v_lshlrev_b32 v{u}, 16, v{p}")
                    a(f"v_and_b32 v{u+1}, 0xffff0000, v{p}")
                for k in range(3):
                    u = U + 2*k
                    d = ACC + 2*(3*j + k)
                    a(f"v_pk_add_f32 {vr(d,2)}, {vr(d,2)}, {vr(u,2)}")
        P.stamp(5)
        out_store()
        P.stamp(11)
        P.stamp(8, real=True)
        P.dump(52, sW, 64 << 20, 12)
        a("s_endpgm")
        for r in range(3):
            a.label(f"O3_RETRY{r}")
            a(f"s_add_u32 s{sP}, s{sP}, 1")
            a(f"s_cmp_ge_u32 s{sP}, 200000")
            a(f"s_cbranch_scc1 O3_GOOD{r}")
            loads(r)
            a("s_waitcnt vmcnt(0)")
            a(f"s_branch O3_CHK{r}")
    if EX2 and not EX4:
        a(f"s_sub_u32 s{sA}, s47, {SEC}")
        a(f"s_lshr_b32 s{sA}, s{sA}, 10")
        a(f"s_lshl_b32 s{sA}, s{sA}, 3")
        a(f"s_add_u32 s{sA}, s{sA}, s{sW}")
        a(f"s_mul_i32 s{sA}, s{sA}, {4*3072}")
        a(f"s_add_u32 s{sA}, s{sA}, {PXOFF}")
        a(f"s_add_u32 s{SPX}, s52, s{sA}")
        a(f"s_addc_u32 s{SPX+1}, s53, 0")
        a(f"s_mov_b32 s{SPX+2}, {4*3072}")
        a(f"s_mov_b32 s{SPX+3}, 0x20000")
        a(f"v_lshlrev_b32 v{t0}, 4, v0")
        a(f"s_lshl_b32 s{sB}, s{sW}, 7")
        a(f"s_add_u32 s{sB}, s{sB}, s47")
        if EX3:
            a(f"s_and_b32 s{sT}, s{sW}, 3")
            a(f"s_cmp_eq_u32 s{sT}, s5")
        else:
            a("s_waitcnt vmcnt(0)")
            a(f"v_readfirstlane_b32 s{sT}, v{vTk}")
            a("s_nop 3")
            a(f"s_cmp_eq_u32 s{sT}, 3")
        a("s_cbranch_scc1 O3_LAST")
        for k in range(12):
            a(f"v_cvt_pk_bf16_f32 v{RX+k}, v{ACC+2*k}, v{ACC+2*k+1}")
        a(f"s_mul_i32 s{sA}, s5, 3072")
        for j in range(3):
            a(f"buffer_store_dwordx4 {vr(RX+4*j,4)}, v{t0}, s[{SPX}:{SPX+3}], s{sA} offen offset:{j*1024} sc1")
        a(f"s_lshl_b32 s{sA}, s5, 2")
        a(f"s_add_u32 s{sA}, s{sA}, s{sB}")
        a(f"v_mov_b32 v{t1}, s96")
        a(f"v_mov_b32 v{t2}, s{sA}")
        a("s_waitcnt vmcnt(0)")
        P.stamp(3)
        a("s_mov_b64 exec, 1")
        a(f"buffer_store_dword v{t1}, v{t2}, s[{SFL}:{SFL+3}], 0 offen sc1")
        a("s_mov_b64 exec, -1")
        P.stamp(11)
        P.stamp(8, real=True)
        P.dump(52, sW, 64 << 20, 12)
        a("s_endpgm")
        if not EX3:
            a.label("O3_TICKET")
            a("s_mov_b64 exec, 1")
            a(f"buffer_atomic_add v{vTk}, v{vTa}, s[{SFL}:{SFL+3}], 0 offen sc0 sc1")
            a("s_mov_b64 exec, -1")
            a("s_branch O3_TICKETR")
        a.label("O3_LAST")
        a(f"v_lshlrev_b32 v{t1}, 2, v0")
        a(f"v_add_u32 v{t1}, s{sB}, v{t1}")
        a(f"s_lshl_b32 s{sB}, 1, s5")
        a(f"s_xor_b32 s{sB}, s{sB}, 15")
        poll_pipe(2, t1, "15", f"s{sB}", opt.get("psl2", 8), opt.get("pd2", 1), opt.get("pslp2", 2))
        P.stamp(4)
        if PROF: a(f"s_mov_b32 s{P.base+2}, s{sP}")
        for r in range(3):
            a(f"s_add_u32 s{sA}, s5, {r+1}")
            a(f"s_and_b32 s{sA}, s{sA}, 3")
            a(f"s_mul_i32 s{sA}, s{sA}, 3072")
            for j in range(3):
                a(f"buffer_load_dwordx4 {vr(RX+12*r+4*j,4)}, v{t0}, s[{SPX}:{SPX+3}], s{sA} offen offset:{j*1024} sc1")
        a(f"s_lshr_b32 s{sA}, s7, 1")
        a(f"s_mul_i32 s{sA}, s{sA}, 96")
        a(f"s_lshr_b32 s{sD}, s{sW}, 2")
        a(f"s_mul_i32 s{sD}, s{sD}, 48")
        a(f"s_add_u32 s{sA}, s{sA}, s{sD}")
        a(f"s_lshl_b32 s{sA}, s{sA}, 12")
        a(f"s_lshl_b32 s{sD}, s6, 11")
        a(f"s_add_u32 s{sA}, s{sA}, s{sD}")
        a(f"s_lshl_b32 s{sD}, s46, 8")
        a(f"s_add_u32 s{sA}, s{sA}, s{sD}")
        a(f"s_and_b32 s{sD}, s{sW}, 3")
        a(f"s_lshl_b32 s{sD}, s{sD}, 6")
        a(f"s_add_u32 s{sA}, s{sA}, s{sD}")
        a(f"s_mov_b32 s{SO}, s48")
        a(f"s_mov_b32 s{SO+1}, s49")
        a(f"s_mov_b32 s{SO+2}, {8*48*2048*2}")
        a(f"s_mov_b32 s{SO+3}, 0x20000")
        a(f"v_and_b32 v{t1}, 15, v0")
        a(f"v_lshrrev_b32 v{t2}, 4, v0")
        a(f"v_lshlrev_b32 v{t1}, 12, v{t1}")
        a(f"v_lshl_add_u32 v{t1}, v{t2}, 3, v{t1}")
        U = RX + 36
        for r in range(3):
            for j in range(3):
                a(f"s_waitcnt vmcnt({8 - 3*r - j})")
                for k in range(4):
                    p = RX + 12*r + 4*j + k
                    u = U + 2*k
                    a(f"v_lshlrev_b32 v{u}, 16, v{p}")
                    a(f"v_and_b32 v{u+1}, 0xffff0000, v{p}")
                for k in range(4):
                    u = U + 2*k
                    d = ACC + 2*(4*j + k)
                    a(f"v_pk_add_f32 {vr(d,2)}, {vr(d,2)}, {vr(u,2)}")
        P.stamp(5)
        for tt in range(2):
            for rt in range(3):
                acc = ACC + (tt*3+rt)*4
                a(f"v_cvt_pk_bf16_f32 v{acc}, v{acc}, v{acc+1}")
                a(f"v_cvt_pk_bf16_f32 v{acc+1}, v{acc+2}, v{acc+3}")
                a(f"s_add_u32 s{sD}, s{sA}, {rt*16*4096}")
                a(f"buffer_store_dwordx2 {vr(acc,2)}, v{t1}, s[{SO}:{SO+3}], s{sD} offen offset:{tt*32}{['', ' sc1', ' nt', ' sc0 sc1', ' sc1 nt'][opt.get('outsc', 1)]}")
        P.stamp(11)
        P.stamp(8, real=True)
        P.dump(52, sW, 64 << 20, 12)
        a("s_endpgm")
    if not EX2:
        a(f"s_sub_u32 s{sA}, s47, 16384")
        a(f"s_lshr_b32 s{sA}, s{sA}, 8")
        a(f"s_mul_i32 s{sA}, s{sA}, {16*12288}")
        a(f"s_add_u32 s{sA}, s{sA}, {PXOFF}")
        a(f"s_add_u32 s{SPX}, s52, s{sA}")
        a(f"s_addc_u32 s{SPX+1}, s53, 0")
        a(f"s_mov_b32 s{SPX+2}, {16*12288}")
        a(f"s_mov_b32 s{SPX+3}, 0x20000")
        a(f"v_lshlrev_b32 v{t0}, 4, v0")
        a(f"v_add_u32 v{t3}, 4096, v{t0}")
        a(f"s_and_b32 s{sD}, s{sW}, 3")
        a(f"s_lshr_b32 s{sB}, s{sW}, 2")
        a(f"s_mul_i32 s{sB}, s{sB}, 6144")
        a(f"s_cmp_eq_u32 s{sD}, s5")
        a("s_cbranch_scc1 O3_OWNER")
        a(f"s_lshl_b32 s{sA}, s{sD}, 2")
        a(f"s_add_u32 s{sA}, s{sA}, s5")
        a(f"s_mul_i32 s{sA}, s{sA}, 12288")
        a(f"s_add_u32 s{sA}, s{sA}, s{sB}")
        a("s_nop 4")
        for tile in range(6):
            a(f"buffer_store_dwordx4 {vr(ACC+4*tile,4)}, v{t0 if tile < 4 else t3}, s[{SPX}:{SPX+3}], s{sA} offen offset:{(tile & 3)*1024} sc1")
        a("s_waitcnt vmcnt(0)")
        a("s_barrier")
        a(f"s_cmp_lg_u32 s{sW}, 0")
        a("s_cbranch_scc1 O3_FIN")
        a.label("O3_FLAG2")
        a(f"s_lshl_b32 s{sA}, s5, 2")
        a(f"s_add_u32 s{sA}, s{sA}, s47")
        a(f"v_mov_b32 v{t1}, s96")
        a(f"v_mov_b32 v{t2}, s{sA}")
        a("s_mov_b64 exec, 1")
        a(f"buffer_store_dword v{t1}, v{t2}, s[{SFL}:{SFL+3}], 0 offen sc1")
        a("s_mov_b64 exec, -1")
        a(f"s_cmp_eq_u32 s5, 0")
        a("s_cbranch_scc1 O3_OWN2")
        a.label("O3_FIN")
        P.stamp(11)
        P.stamp(8, real=True)
        P.dump(52, sW, 64 << 20, 12)
        a("s_endpgm")
        a.label("O3_OWNER")
        a("s_barrier")
        a(f"s_cmp_eq_u32 s{sW}, 0")
        a("s_cbranch_scc1 O3_FLAG2")
        a.label("O3_OWN2")
        P.stamp(3)
        a(f"v_lshlrev_b32 v{t1}, 2, v0")
        a(f"v_add_u32 v{t1}, s47, v{t1}")
        a("s_mov_b64 exec, 15")
        a(f"s_mov_b32 s{sP}, 0")
        a.label("O3_POLL2")
        a(f"buffer_load_dword v{t2}, v{t1}, s[{SFL}:{SFL+3}], 0 offen sc1")
        a("s_waitcnt vmcnt(0)")
        a(f"v_cmp_eq_u32 vcc, s96, v{t2}")
        a("s_nop 1")
        a("s_cmp_eq_u32 vcc_lo, 15")
        a("s_cbranch_scc1 O3_POLL2_OK")
        a(f"s_sleep {opt.get('psleep', 2)}")
        a(f"s_add_u32 s{sP}, s{sP}, 1")
        a(f"s_cmp_lt_u32 s{sP}, 400000")
        a("s_cbranch_scc1 O3_POLL2")
        a.label("O3_POLL2_OK")
        a("s_mov_b64 exec, -1")
        P.stamp(4)
        if PROF: a(f"s_mov_b32 s{P.base+2}, s{sP}")
        for r in range(3):
            a(f"s_add_u32 s{sA}, s5, {r+1}")
            a(f"s_and_b32 s{sA}, s{sA}, 3")
            a(f"s_lshl_b32 s{sD}, s5, 2")
            a(f"s_add_u32 s{sA}, s{sA}, s{sD}")
            a(f"s_mul_i32 s{sA}, s{sA}, 12288")
            a(f"s_add_u32 s{sA}, s{sA}, s{sB}")
            for tile in range(6):
                a(f"buffer_load_dwordx4 {vr(RX+24*r+4*tile,4)}, v{t0 if tile < 4 else t3}, s[{SPX}:{SPX+3}], s{sA} offen offset:{(tile & 3)*1024} sc1")
        a(f"s_lshr_b32 s{sA}, s7, 1")
        a(f"s_mul_i32 s{sA}, s{sA}, 96")
        a(f"s_lshr_b32 s{sD}, s{sW}, 2")
        a(f"s_mul_i32 s{sD}, s{sD}, 48")
        a(f"s_add_u32 s{sA}, s{sA}, s{sD}")
        a(f"s_lshl_b32 s{sA}, s{sA}, 12")
        a(f"s_lshl_b32 s{sD}, s6, 11")
        a(f"s_add_u32 s{sA}, s{sA}, s{sD}")
        a(f"s_lshl_b32 s{sD}, s46, 8")
        a(f"s_add_u32 s{sA}, s{sA}, s{sD}")
        a(f"s_lshl_b32 s{sD}, s5, 6")
        a(f"s_add_u32 s{sA}, s{sA}, s{sD}")
        a(f"s_mov_b32 s{SO}, s48")
        a(f"s_mov_b32 s{SO+1}, s49")
        a(f"s_mov_b32 s{SO+2}, {8*48*2048*2}")
        a(f"s_mov_b32 s{SO+3}, 0x20000")
        a(f"v_and_b32 v{t1}, 15, v0")
        a(f"v_lshrrev_b32 v{t2}, 4, v0")
        a(f"v_lshlrev_b32 v{t1}, 12, v{t1}")
        a(f"v_lshl_add_u32 v{t1}, v{t2}, 3, v{t1}")
        for r in range(3):
            a(f"s_waitcnt vmcnt({12-6*r})")
            for k in range(24):
                a(f"v_add_f32 v{ACC+k}, v{ACC+k}, v{RX+24*r+k}")
        P.stamp(5)
        for tt in range(2):
            for rt in range(3):
                acc = ACC + (tt*3+rt)*4
                a(f"v_cvt_pk_bf16_f32 v{acc}, v{acc}, v{acc+1}")
                a(f"v_cvt_pk_bf16_f32 v{acc+1}, v{acc+2}, v{acc+3}")
                a(f"s_add_u32 s{sD}, s{sA}, {rt*16*4096}")
                a(f"buffer_store_dwordx2 {vr(acc,2)}, v{t1}, s[{SO}:{SO+3}], s{sD} offen offset:{tt*32}{['', ' sc1', ' nt', ' sc0 sc1', ' sc1 nt'][opt.get('outsc', 1)]}")
        P.stamp(11)
        P.stamp(8, real=True)
        P.dump(52, sW, 64 << 20, 12)
        a("s_endpgm")

    a.label("O3_LOADER")
    a("s_cmp_eq_u32 s6, 0")
    a(f"s_cselect_b64 s[{SWO}:{SWO+1}], s[36:37], s[50:51]")
    a(f"s_lshl_b32 s{sA}, s5, 21")
    a(f"s_lshl_b32 s{sB}, s46, 8")
    a(f"s_add_u32 s{sA}, s{sA}, s{sB}")
    a(f"s_add_u32 s{SWO}, s{SWO}, s{sA}")
    a(f"s_addc_u32 s{SWO+1}, s{SWO+1}, 0")
    a(f"s_sub_u32 s{SWO+2}, 2097152, s{sB}")
    a(f"s_mov_b32 s{SWO+3}, 0x20000")
    if DO:
        a(f"s_lshl_b32 s{sA}, s6, 2")
        a(f"s_add_u32 s{sA}, s{sA}, s5")
        a(f"s_lshl_b32 s{sA}, s{sA}, 3")
        a(f"s_and_b32 s{sB}, s7, 6")
        a(f"s_add_u32 s{sA}, s{sA}, s{sB}")
        a(f"s_mul_i32 s{sA}, s{sA}, {4*24576}")
        a(f"s_add_u32 s{SX}, s52, s{sA}")
        a(f"s_addc_u32 s{SX+1}, s53, 0")
        a(f"s_mov_b32 s{SX+2}, {8*24576}")
    else:
        a(f"s_lshr_b32 s{sA}, s7, 1")
        a(f"s_mul_i32 s{sA}, s{sA}, 96")
        a(f"s_mul_i32 s{sB}, s6, 384")
        a(f"s_add_u32 s{sA}, s{sA}, s{sB}")
        a(f"s_lshl_b32 s{sA}, s{sA}, 13")
        a(f"s_lshl_b32 s{sB}, s5, 11")
        a(f"s_add_u32 s{sA}, s{sA}, s{sB}")
        a(f"s_add_u32 s{SX}, s52, s{sA}")
        a(f"s_addc_u32 s{SX+1}, s53, 0")
        a(f"s_sub_u32 s{SX+2}, {96*8192}, s{sB}")
    a(f"s_mov_b32 s{SX+3}, 0x20000")
    a(f"s_sub_u32 s{sLam}, s{sW}, 8")
    a(f"v_lshrrev_b32 v{t0}, 4, v0")
    a(f"v_and_b32 v{t1}, 15, v0")
    a(f"s_and_b32 s{sA}, s{sLam}, 1")
    a(f"s_lshl_b32 s{sB}, s{sA}, 2")
    a(f"v_or_b32 v{t2}, s{sB}, v{t0}")
    a(f"v_lshlrev_b32 v{t2}, 1, v{t2}")
    a(f"v_xor_b32 v{t2}, v{t1}, v{t2}")
    a(f"v_lshlrev_b32 v{t2}, 4, v{t2}")
    a(f"v_lshl_add_u32 v{vWo}, v{t0}, 11, v{t2}")
    if DO:
        a(f"s_mov_b32 s{sA}, s{sLam}")
    else:
        a(f"s_lshl_b32 s{sA}, s{sA}, 1")
        a(f"s_lshr_b32 s{sB}, s{sLam}, 1")
        a(f"s_lshl_b32 s{sB}, s{sB}, 2")
        a(f"s_add_u32 s{sA}, s{sA}, s{sB}")
    a(f"s_lshl_b32 s{sB}, s{sA}, 13")
    a(f"v_add_u32 v{vWo}, s{sB}, v{vWo}")
    a(f"s_lshl_b32 s{sSl}, s{sA}, 10")
    a(f"s_add_u32 s{sD}, s{sSl}, {NS*STG}")
    vX = [[24, 25, 26], [27, 28, 29]]
    vXt = [30, 31, 32]
    def x_setup():
        a(f"s_lshr_b32 s{sA}, s{sLam}, 1")
        a(f"s_lshl_b32 s{sA}, s{sA}, 11")
        a(f"s_and_b32 s{sB}, s{sLam}, 1")
        a(f"s_lshl_b32 s{sB}, s{sB}, 10")
        a(f"s_add_u32 s{sA}, s{sA}, s{sB}")
        for j in range(3):
            row, base = t0, t1
            if j == 0:
                a(f"v_mov_b32 v{row}, v0")
                a(f"v_mov_b32 v{base}, s{sA}")
            elif j == 1:
                a(f"v_cmp_gt_u32 vcc, 32, v0")
                a(f"v_add_u32 v{t2}, 64, v0")
                a(f"v_subrev_u32 v{t3}, 32, v0")
                a(f"v_cndmask_b32 v{row}, v{t3}, v{t2}, vcc")
                a(f"v_mov_b32 v{t2}, 512")
                a(f"v_cndmask_b32 v{base}, v{t2}, 0, vcc")
                a(f"v_add_u32 v{base}, s{sA}, v{base}")
            else:
                a(f"v_add_u32 v{row}, 32, v0")
                a(f"v_mov_b32 v{base}, 512")
                a(f"v_add_u32 v{base}, s{sA}, v{base}")
            a(f"v_cmp_le_u32 vcc, 48, v{row}")
            a(f"v_subrev_u32 v{t2}, 48, v{row}")
            a(f"v_cndmask_b32 v{row}, v{row}, v{t2}, vcc")
            a(f"v_add_u32 v{t2}, {4*24576}, v{base}")
            a(f"v_cndmask_b32 v{base}, v{base}, v{t2}, vcc")
            for hd in range(2):
                a(f"v_add_u32 v{t2}, {48*hd}, v{row}")
                a(f"v_lshrrev_b32 v{t3}, 5, v{t2}")
                a(f"v_and_b32 v{t2}, 31, v{t2}")
                a(f"v_lshl_add_u32 v{t2}, v{t2}, 4, v{base}")
                a(f"v_lshl_add_u32 v{vX[hd][j]}, v{t3}, 13, v{t2}")
        a(f"s_mul_i32 s{sSlX}, s{sLam}, 3072")
        a(f"s_mov_b32 s{sXg}, 0")
    if not DO:
        a(f"v_lshrrev_b32 v{t1}, 3, v0")
        a(f"s_lshl_b32 s{sA}, s{sLam}, 3")
        a(f"v_add_u32 v{t1}, s{sA}, v{t1}")
        a(f"s_and_b32 s{sA}, s{sLam}, 1")
        a(f"s_lshl_b32 s{sA}, s{sA}, 2")
        a(f"v_add_u32 v{t0}, s{sA}, v{t0}")
        a(f"v_and_b32 v{t2}, 7, v0")
        a(f"v_xor_b32 v{t2}, v{t2}, v{t0}")
        a(f"v_lshlrev_b32 v{t2}, 4, v{t2}")
        a(f"v_lshl_add_u32 v{vXo}, v{t1}, 13, v{t2}")
        a(f"s_lshl_b32 s{sSlX}, s{sLam}, 10")
        a(f"s_lshl_b32 s{sXg}, s3, 9")
        a(f"s_add_u32 s40, s{sSlX}, {NS*STG}")
    a(f"s_lshl_b32 s{sWg}, s3, 19")
    def issueW():
        for j in range(4):
            dm = 4*j if DO else (j & 1) + 8*(j >> 1)
            a(f"s_add_u32 m0, s{sSl}, {dm*1024}")
            a(f"s_add_u32 s{sA}, s{sWg}, {dm*8192}")
            if not opt.get("o3ab", 0) & 1: a(f"buffer_load_dwordx4 v{vWo}, s[{SWO}:{SWO+3}], s{sA} offen lds")
        a(f"s_add_u32 s{sSl}, s{sSl}, {STG}")
        a(f"s_cmp_ge_u32 s{sSl}, s{sD}")
        a(f"s_cselect_b32 s{sB}, {NS*STG}, 0")
        a(f"s_sub_u32 s{sSl}, s{sSl}, s{sB}")
        a(f"s_add_u32 s{sWg}, s{sWg}, 131072")
        a(f"s_and_b32 s{sWg}, s{sWg}, 0x1fffff")
    def issueX():
        if DO:
            a(f"s_bitcmp1_b32 s{sXg}, 1")
            a("s_cselect_b64 vcc, -1, 0")
            a(f"s_lshr_b32 s{sA}, s{sXg}, 2")
            a(f"s_add_u32 s{sA}, s{sA}, s3")
            a(f"s_and_b32 s{sA}, s{sA}, 3")
            a(f"s_mul_i32 s{sA}, s{sA}, 24576")
            a(f"s_and_b32 s{sB}, s{sXg}, 1")
            a(f"s_lshl_b32 s{sB}, s{sB}, 12")
            a(f"s_add_u32 s{sA}, s{sA}, s{sB}")
            for j in range(3):
                a(f"v_cndmask_b32 v{vXt[j]}, v{vX[0][j]}, v{vX[1][j]}, vcc")
            for j in range(3):
                a(f"s_add_u32 m0, s{sSlX}, {16384 + j*1024}")
                a("s_nop 0")
                a(f"buffer_load_dwordx4 v{vXt[j]}, s[{SX}:{SX+3}], s{sA} offen sc1 lds")
            a(f"s_add_u32 s{sSlX}, s{sSlX}, {STG}")
            a(f"s_cmp_ge_u32 s{sSlX}, s40")
            a(f"s_cselect_b32 s{sB}, {NS*STG}, 0")
            a(f"s_sub_u32 s{sSlX}, s{sSlX}, s{sB}")
            a(f"s_add_u32 s{sXg}, s{sXg}, 1")
            return
        for j in range(3):
            a(f"s_add_u32 m0, s{sSlX}, {16384 + j*4096}")
            a(f"s_add_u32 s{sA}, s{sXg}, {j*262144}")
            if not opt.get("o3ab", 0) & 2: a(f"buffer_load_dwordx4 v{vXo}, s[{SX}:{SX+3}], s{sA} offen{'' if (opt.get('o3ab', 0) & 4 or opt.get('loc', 0) & 8) else ' sc1'} lds")
        a(f"s_add_u32 s{sSlX}, s{sSlX}, {STG}")
        a(f"s_cmp_ge_u32 s{sSlX}, s40")
        a(f"s_cselect_b32 s{sB}, {NS*STG}, 0")
        a(f"s_sub_u32 s{sSlX}, s{sSlX}, s{sB}")
        a(f"s_add_u32 s{sXg}, s{sXg}, 128")
        a(f"s_and_b32 s{sXg}, s{sXg}, 0x7ff")
    def loop(n, body, uid):
        if n == 0: return
        a(f"s_mov_b32 s{sP}, 0")
        a.label(f"O3_LP{uid}")
        body()
        a(f"s_add_u32 s{sP}, s{sP}, 1")
        a(f"s_cmp_lt_u32 s{sP}, {n}")
        a(f"s_cbranch_scc1 O3_LP{uid}")
    WE = opt.get("wearly", 2)
    loop(WE, issueW, 0)
    if DO:
        assert WE <= 2
        x_setup()
        a(f"s_add_u32 s40, s{sSlX}, {NS*STG}")
        a(f"s_waitcnt vmcnt({4*WE})")
    else:
        P.stamp(6)
    a("s_barrier")
    P.stamp(7)
    if opt.get("o3diag", 0):
        a("s_waitcnt vmcnt(0)")
        P.stamp(2)
    loop(5 - WE, issueW, 1)
    if opt.get("o3diag", 0):
        a("s_waitcnt vmcnt(0)")
        P.stamp(3)
    a(f"s_cmp_lg_u32 s{sW}, {99 if PPOLL else 8}")
    a("s_cbranch_scc1 O3_POLL_DONE")
    a(f"v_lshlrev_b32 v{vPa}, 2, v0")
    a(f"v_add_u32 v{vPa}, s45, v{vPa}")
    if F1L:
        a(f"s_lshl_b32 s{sA}, s46, 7")
        a(f"v_add_u32 v{vPa}, s{sA}, v{vPa}")
    a("s_mov_b64 exec, 0xff")
    a(f"s_mov_b32 s{sP}, 0")
    a.label("O3_POLL1")
    if opt.get('loc', 0) & 4:
        a(f"v_mov_b32 v{vPoll}, 0")
        a(f"buffer_atomic_or v{vPoll}, v{vPa}, s[{SFL}:{SFL+3}], 0 offen sc0")
    else:
        a(f"buffer_load_dword v{vPoll}, v{vPa}, s[{SFL}:{SFL+3}], 0 offen sc1")
    a("s_waitcnt vmcnt(0)")
    a(f"v_cmp_eq_u32 vcc, s96, v{vPoll}")
    a("s_nop 1")
    a("s_cmp_eq_u32 vcc_lo, 0xff")
    a("s_cbranch_scc1 O3_POLL_OK")
    a(f"s_sleep {opt.get('psleep', 2)}")
    a(f"s_add_u32 s{sP}, s{sP}, 1")
    a(f"s_cmp_lt_u32 s{sP}, 400000")
    a("s_cbranch_scc1 O3_POLL1")
    a.label("O3_POLL_OK")
    a("s_mov_b64 exec, -1")
    a.label("O3_POLL_DONE")
    P.stamp(9)
    a("s_barrier")
    P.stamp(10)
    loop(5, issueX, 2)
    a("s_waitcnt vmcnt(12)")
    if opt.get("o3diag", 0): P.stamp(4)
    a("s_barrier")
    if opt.get("la4", 1 if opt.get("pw", 1) else 0):
        a("s_waitcnt vmcnt(9)")
        a("s_barrier")
        for cnt in (6, 10):
            a(f"s_waitcnt vmcnt({cnt})")
            a("s_barrier")
            issueW(); issueX()
        a(f"s_mov_b32 s{sP}, 3")
        a.label("O3_L_LOOP")
        a("s_waitcnt vmcnt(14)")
        a("s_barrier")
        issueW(); issueX()
        a(f"s_add_u32 s{sP}, s{sP}, 1")
        a(f"s_cmp_lt_u32 s{sP}, 12")
        a("s_cbranch_scc1 O3_L_LOOP")
        for cnt in (14, 7, 0):
            a(f"s_waitcnt vmcnt({cnt})")
            a("s_barrier")
    else:
      for cnt in (9, 13, 17):
        a(f"s_waitcnt vmcnt({cnt})")
        a("s_barrier")
        issueW(); issueX()
      a(f"s_mov_b32 s{sP}, 3")
      a.label("O3_L_LOOP")
      a("s_waitcnt vmcnt(21)")
      a("s_barrier")
      issueW(); issueX()
      a(f"s_add_u32 s{sP}, s{sP}, 1")
      a(f"s_cmp_lt_u32 s{sP}, 11")
      a("s_cbranch_scc1 O3_L_LOOP")
      for s_ in range(11, 15):
        a(f"s_waitcnt vmcnt({7*(15-(s_+1))})")
        a("s_barrier")
    P.dump(52, sW, 64 << 20, 12)

def outproj(a, opt, P, fused):
    sW = 4
    NTW2 = " nt" if opt.get("ntw2", 0) else ""
    XFL = " sc1" if (fused and opt.get("xsc1", 1)) else ""
    SX, SWO, SO, SFL = 8, 12, 16, 28
    sA, sB, sD, sLam, sP = 20, 21, 22, 23, 24
    sSl, sWg, sXg = 25, 26, 27
    NS = 5
    STG = 28672
    t0, t1, t2, t3, t4 = 1, 2, 3, 4, 5
    WA = 6
    XA = 10
    vWo, vXo, vPoll = 20, 21, 22
    ACC = 12
    FR = 60
    NV = 116
    END = "K1_END" if fused else "K2_END"
    if fused:
        a(f"s_cmp_lg_u32 s{sW}, 0")
        a("s_cbranch_scc1 OP_NOFLAG")
        a(f"s_lshl_b32 s{sA}, s46, 2")
        a(f"v_mov_b32 v{t0}, s96")
        a(f"v_mov_b32 v{t1}, s{sA}")
        a("s_mov_b64 exec, 1")
        a(f"buffer_store_dword v{t0}, v{t1}, s[{SFL}:{SFL+3}], 0 offen sc1")
        a("s_mov_b64 exec, -1")
        a.label("OP_NOFLAG")
        a(f"s_cmp_ge_u32 s{sW}, 8")
        a(f"s_cbranch_scc1 {END}")
    def srd_w():
        a("s_cmp_eq_u32 s6, 0")
        a(f"s_cselect_b64 s[{SWO}:{SWO+1}], s[36:37], s[50:51]")
        a(f"s_lshl_b32 s{sA}, s5, 9")
        a(f"s_lshl_b32 s{sB}, s3, 7")
        a(f"s_add_u32 s{sA}, s{sA}, s{sB}")
        a(f"s_add_u32 s{SWO}, s{SWO}, s{sA}")
        a(f"s_addc_u32 s{SWO+1}, s{SWO+1}, 0")
        a(f"s_sub_u32 s{SWO+2}, 8388608, s{sA}")
        a(f"s_mov_b32 s{SWO+3}, 0x20000")
    def srd_x():
        a(f"s_lshl_b32 s{sB}, s6, 3")
        a(f"s_add_u32 s{sB}, s{sB}, s7")
        a(f"s_mul_i32 s{sD}, s{sB}, {48*8192}")
        a(f"s_add_u32 s{SX}, s52, s{sD}")
        a(f"s_addc_u32 s{SX+1}, s53, 0")
        a(f"s_mov_b32 s{SX+2}, {48*8192}")
        a(f"s_mov_b32 s{SX+3}, 0x20000")
    def srd_o():
        a(f"s_lshl_b32 s{sA}, s5, 9")
        a(f"s_lshl_b32 s{sB}, s3, 7")
        a(f"s_add_u32 s{sA}, s{sA}, s{sB}")
        a(f"s_mul_i32 s{sD}, s7, {48*4096}")
        a(f"s_lshl_b32 s{sB}, s6, 11")
        a(f"s_add_u32 s{sB}, s{sB}, s{sA}")
        a(f"s_add_u32 s{sD}, s{sD}, s{sB}")
        a(f"s_add_u32 s{SO}, s48, s{sD}")
        a(f"s_addc_u32 s{SO+1}, s49, 0")
        a(f"s_sub_u32 s{SO+2}, {48*4096}, s{sB}")
        a(f"s_mov_b32 s{SO+3}, 0x20000")
    if not fused:
        srd_w(); srd_x()
        a(f"s_cmp_ge_u32 s{sW}, 4")
        a("s_cbranch_scc1 OP_LOADER")
    srd_o()
    a(f"v_bfe_u32 v{t0}, v0, 2, 2")
    a(f"v_lshrrev_b32 v{t1}, 4, v0")
    a(f"v_lshl_add_u32 v{t2}, v{t1}, 3, v{t0}")
    a(f"s_lshl_b32 s{sA}, s{sW}, 5")
    a(f"v_add_u32 v{t2}, s{sA}, v{t2}")
    a(f"v_lshlrev_b32 v{t2}, 7, v{t2}")
    a(f"v_bfe_u32 v{t3}, v0, 3, 1")
    a(f"v_bfe_u32 v{t4}, v0, 4, 1")
    a(f"v_lshl_or_b32 v{t3}, v{t4}, 1, v{t3}")
    a(f"v_lshl_add_u32 v{t2}, v{t3}, 5, v{t2}")
    a(f"v_and_b32 v{t3}, 3, v0")
    a(f"v_lshl_add_u32 v{WA}, v{t3}, 3, v{t2}")
    for t in range(1, 4):
        a(f"v_xor_b32 v{WA+t}, {t << 5}, v{WA}")
    a(f"v_and_b32 v{t0}, 15, v0")
    a(f"s_lshl_b32 s{sA}, s{sW}, 2")
    a(f"v_add_u32 v{t2}, s{sA}, v{t1}")
    a(f"v_xor_b32 v{t2}, v{t2}, v{t0}")
    a(f"v_lshlrev_b32 v{t2}, 4, v{t2}")
    a(f"v_lshl_add_u32 v{t2}, v{t0}, 8, v{t2}")
    a(f"v_add_u32 v{XA}, 16384, v{t2}")
    for r in range(0, 48, 2):
        a(f"v_mov_b64 {vr(ACC+r,2)}, 0")
    def reads(buf):
        fb = FR + buf*28
        for t in range(4):
            for e in range(2):
                a(f"ds_read_b64_tr_b16 {vr(fb+4*t+2*e,2)}, v{WA+t} offset:{e*512}")
        for rt in range(3):
            a(f"ds_read_b128 {vr(fb+16+4*rt,4)}, v{XA} offset:{rt*4096}")
    def adv():
        a(f"s_add_u32 s{sA}, s{sSl}, {STG}")
        a(f"s_cmp_ge_u32 s{sA}, {NS*STG}")
        a(f"s_cselect_b32 s{sB}, {NS*STG}, 0")
        a(f"s_sub_u32 s{sA}, s{sA}, s{sB}")
        a(f"s_sub_u32 s{sD}, s{sA}, s{sSl}")
        a(f"s_mov_b32 s{sSl}, s{sA}")
        for t in range(4):
            a(f"v_add_u32 v{WA+t}, s{sD}, v{WA+t}")
        a(f"v_add_u32 v{XA}, s{sD}, v{XA}")
    def mfmas(buf):
        fb = FR + buf*28
        for rt in range(3):
            for t in range(4):
                acc = ACC + (t*3+rt)*4
                a(f"{MF16} {vr(acc,4)}, {vr(fb+4*t,4)}, {vr(fb+16+4*rt,4)}, {vr(acc,4)}")
    a(f"s_mov_b32 s{sSl}, 0")
    a("s_barrier")
    P.stamp(9 if fused else 2)
    reads(0); adv()
    a("s_waitcnt lgkmcnt(0)")
    a(f"s_mov_b32 s{sP}, 0")
    if fused:
        a("s_barrier")
        reads(1); adv()
        mfmas(0)
        a("s_waitcnt lgkmcnt(0)")
        a("s_barrier")
        for half in (1, 0):
            a("s_barrier")
            reads(1-half); adv()
            mfmas(half)
            a("s_waitcnt lgkmcnt(0)")
        a("s_barrier")
        a(f"s_mov_b32 s{sP}, 1")
        a("s_branch OP_C_MID")
    a.label("OP_C_LOOP")
    for half in range(2):
        if half == 1: a.label("OP_C_MID")
        a("s_barrier")
        reads(1-half); adv()
        mfmas(half)
        a("s_waitcnt lgkmcnt(0)")
        if half == 0:
            a(f"s_cmp_eq_u32 s{sP}, 15")
            a("s_cbranch_scc1 OP_C_DONE")
    a(f"s_add_u32 s{sP}, s{sP}, 1")
    a("s_branch OP_C_LOOP")
    a.label("OP_C_DONE")
    mfmas(1)
    P.stamp(10 if fused else 3)
    a("s_barrier")
    a("s_nop 7")
    a(f"v_lshlrev_b32 v{t0}, 4, v0")
    a(f"s_mul_i32 s{sA}, s{sW}, 12288")
    a(f"v_add_u32 v{t1}, s{sA}, v{t0}")
    for tile in range(12):
        a(f"ds_write_b128 v{t1}, {vr(ACC+4*tile,4)} offset:{tile*1024}")
    a("s_waitcnt lgkmcnt(0)")
    a("s_barrier")
    a(f"s_mul_i32 s{sA}, s{sW}, 3072")
    a(f"v_add_u32 v{t1}, s{sA}, v{t0}")
    for src in range(4):
        for rt in range(3):
            a(f"ds_read_b128 {vr(ACC+(src*3+rt)*4,4)}, v{t1} offset:{src*12288+rt*1024}")
    a("s_waitcnt lgkmcnt(0)")
    for rt in range(3):
        for r in range(4):
            d = ACC + rt*4 + r
            a(f"v_add_f32 v{d}, v{d}, v{d+12}")
            a(f"v_add_f32 v{d+24}, v{d+24}, v{d+36}")
        for r in range(4):
            d = ACC + rt*4 + r
            a(f"v_add_f32 v{d}, v{d}, v{d+24}")
        d = ACC + rt*4
        a(f"v_cvt_pk_bf16_f32 v{d}, v{d}, v{d+1}")
        a(f"v_cvt_pk_bf16_f32 v{d+1}, v{d+2}, v{d+3}")
    a(f"v_and_b32 v{t0}, 15, v0")
    a(f"v_lshrrev_b32 v{t1}, 4, v0")
    a(f"v_lshlrev_b32 v{t0}, 12, v{t0}")
    a(f"v_lshl_add_u32 v{t0}, v{t1}, 3, v{t0}")
    a(f"s_lshl_b32 s{sA}, s{sW}, 5")
    a(f"v_add_u32 v{t0}, s{sA}, v{t0}")
    for rt in range(3):
        a(f"s_mov_b32 s{sA}, {rt*16*4096}")
        a(f"buffer_store_dwordx2 {vr(ACC+rt*4,2)}, v{t0}, s[{SO}:{SO+3}], s{sA} offen")
    if fused:
        P.stamp(11)
        P.stamp(8, real=True)
        P.dump(52, sW, 64 << 20, 12)
    else:
        P.stamp(4)
        if PROF: a("s_waitcnt vmcnt(0)")
        P.stamp(5)
        P.stamp(6, real=True)
        P.dump(52, sW, 65 << 20, 12)
    a("s_endpgm")

    a.label("OP_LOADER0" if fused else "OP_LOADER")
    if fused:
        srd_w(); srd_x()
    a(f"s_sub_u32 s{sLam}, s{sW}, 4")
    a(f"v_lshrrev_b32 v{t0}, 3, v0")
    a(f"v_and_b32 v{t1}, 7, v0")
    a(f"v_bfe_u32 v{t2}, v0, 4, 1")
    a(f"s_and_b32 s{sA}, s{sLam}, 1")
    a(f"s_lshl_b32 s{sA}, s{sA}, 1")
    a(f"v_or_b32 v{t2}, s{sA}, v{t2}")
    a(f"v_lshlrev_b32 v{t2}, 1, v{t2}")
    a(f"v_xor_b32 v{t1}, v{t1}, v{t2}")
    a(f"v_lshlrev_b32 v{t1}, 4, v{t1}")
    a(f"s_lshl_b32 s{sA}, s{sLam}, 3")
    a(f"v_add_u32 v{t0}, s{sA}, v{t0}")
    a(f"v_lshl_add_u32 v{vWo}, v{t0}, 11, v{t1}")
    a(f"v_lshrrev_b32 v{t0}, 4, v0")
    a(f"v_and_b32 v{t1}, 15, v0")
    a(f"s_lshl_b32 s{sA}, s{sLam}, 2")
    a(f"v_or_b32 v{t2}, s{sA}, v{t0}")
    a(f"v_xor_b32 v{t1}, v{t1}, v{t2}")
    a(f"v_lshlrev_b32 v{t1}, 4, v{t1}")
    a(f"v_lshl_add_u32 v{vXo}, v{t2}, 13, v{t1}")
    def issueW(slot_s, goff_s):
        for j in range(4):
            a(f"s_add_u32 m0, s{slot_s}, {j*4096}")
            a(f"s_add_u32 s{sA}, s{goff_s}, {j*32*2048}")
            a(f"buffer_load_dwordx4 v{vWo}, s[{SWO}:{SWO+3}], s{sA} offen{NTW2} lds")
    def issueX(slot_s, goff_s):
        for j in range(3):
            a(f"s_add_u32 m0, s{slot_s}, {16384 + j*4096}")
            a(f"s_add_u32 s{sA}, s{goff_s}, {j*16*8192}")
            a(f"buffer_load_dwordx4 v{vXo}, s[{SX}:{SX+3}], s{sA} offen{XFL} lds")
    def adv_slot(r):
        a(f"s_add_u32 s{r}, s{r}, {STG}")
        a(f"s_cmp_ge_u32 s{r}, s{sD}")
        a(f"s_cselect_b32 s{sB}, {NS*STG}, 0")
        a(f"s_sub_u32 s{r}, s{r}, s{sB}")
    sTW, sTX, sTb, sTp = 33, 38, 34, 40
    def sigma(t):
        a(f"s_lshr_b32 s{sA}, s{t}, 1")
        a(f"s_lshl_b32 s{sA}, s{sA}, 2")
        a(f"s_lshr_b64 s[{sTp}:{sTp+1}], s[{sTb}:{sTb+1}], s{sA}")
        a(f"s_and_b32 s{sTp}, s{sTp}, 15")
        a(f"s_lshl_b32 s{sTp}, s{sTp}, 1")
        a(f"s_and_b32 s{sA}, s{t}, 1")
        a(f"s_or_b32 s{sTp}, s{sTp}, s{sA}")
    def advW():
        adv_slot(sSl)
        if fused:
            a(f"s_add_u32 s{sTW}, s{sTW}, 1")
            sigma(sTW)
            a(f"s_lshl_b32 s{sWg}, s{sTp}, 18")
        else:
            a(f"s_add_u32 s{sWg}, s{sWg}, {128*2048}")
    def advX():
        adv_slot(sSlX)
        if fused:
            a(f"s_add_u32 s{sTX}, s{sTX}, 1")
            sigma(sTX)
            a(f"s_lshl_b32 s{sXg}, s{sTp}, 8")
        else:
            a(f"s_add_u32 s{sXg}, s{sXg}, 256")
    def issue():
        issueW(sSl, sWg); advW(); issueX(sSlX, sXg); advX()
    sSlX = 32
    a(f"s_lshl_b32 s{sSl}, s{sLam}, 10")
    a(f"s_mov_b32 s{sSlX}, s{sSl}")
    a(f"s_add_u32 s{sD}, s{sSl}, {NS*STG}")
    if fused:
        a(f"s_mul_i32 s{sA}, s3, 0x11111111")
        a(f"s_mul_i32 s{sB}, s5, 0x11111111")
        for half, hi in ((0, 0x11110000), (1, 0x33332222)):
            a(f"s_add_u32 s{sTp}, s{sA}, 0x32103210")
            a(f"s_and_b32 s{sTp}, s{sTp}, 0x33333333")
            a(f"s_add_u32 s{sTp+1}, s{sB}, {hi:#x}")
            a(f"s_and_b32 s{sTp+1}, s{sTp+1}, 0x33333333")
            a(f"s_lshl_b32 s{sTp+1}, s{sTp+1}, 2")
            a(f"s_or_b32 s{sTb+half}, s{sTp}, s{sTp+1}")
        a(f"s_mov_b32 s{sTW}, 0")
        a(f"s_mov_b32 s{sTX}, 0")
        a(f"s_lshl_b32 s{sWg}, s46, 19")
        a(f"s_lshl_b32 s{sXg}, s46, 9")
        a(f"s_lshl_b32 s{sA}, s5, 2")
        a(f"s_lshl_b32 s39, 15, s{sA}")
        a(f"s_mov_b32 s{sP}, 0")
        a.label("OP_LW")
        issueW(sSl, sWg); advW()
        a(f"s_add_u32 s{sP}, s{sP}, 1")
        a(f"s_cmp_lt_u32 s{sP}, 2")
        a("s_cbranch_scc1 OP_LW")
        P.stamp(6)
        a("s_barrier")
        P.stamp(7)
        a(f"v_lshlrev_b32 v{t3}, 2, v0")
        if opt.get("xdelay", 0): a(f"s_sleep {opt['xdelay']}")
        issueX(sSlX, sXg); advX()
        issueX(sSlX, sXg); advX()
        a("s_waitcnt vmcnt(3)")
        a("s_barrier")
        def look(uid):
            a(f"s_cmp_lg_u32 s{sW}, 4")
            a(f"s_cbranch_scc1 OP_NOLOOK{uid}")
            a("s_mov_b64 exec, 0xffff")
            a(f"buffer_load_dword v{vPoll}, v{t3}, s[{SFL}:{SFL+3}], 0 offen sc1")
            a("s_mov_b64 exec, -1")
            a.label(f"OP_NOLOOK{uid}")
        look(1)
        issueW(sSl, sWg); advW()
        issueW(sSl, sWg); advW()
        a("s_waitcnt vmcnt(8)")
        a("s_barrier")
        issueW(sSl, sWg); advW()
        issueW(sSl, sWg); advW()
        def poll(mask, uid):
            a(f"s_cmp_lg_u32 s{sW}, 4")
            a(f"s_cbranch_scc1 OP_POLL_DONE{uid}")
            a("s_mov_b64 exec, 0xffff")
            a(f"s_mov_b32 s{sP}, 0")
            a.label(f"OP_POLL_LOOP{uid}")
            a(f"v_cmp_eq_u32 vcc, s96, v{vPoll}")
            a("s_nop 1")
            a(f"s_and_b32 s{sA}, vcc_lo, {mask}")
            a(f"s_cmp_eq_u32 s{sA}, {mask}")
            a(f"s_cbranch_scc1 OP_POLL_OK{uid}")
            a(f"s_sleep {opt.get('psleep', 2)}")
            a(f"buffer_load_dword v{vPoll}, v{t3}, s[{SFL}:{SFL+3}], 0 offen sc1")
            a("s_waitcnt vmcnt(0)")
            a(f"s_add_u32 s{sP}, s{sP}, 1")
            a(f"s_cmp_lt_u32 s{sP}, 400000")
            a(f"s_cbranch_scc1 OP_POLL_LOOP{uid}")
            a.label(f"OP_POLL_OK{uid}")
            if uid == 1:
                a(f"buffer_load_dword v{vPoll}, v{t3}, s[{SFL}:{SFL+3}], 0 offen sc1")
            a("s_mov_b64 exec, -1")
            a.label(f"OP_POLL_DONE{uid}")
        poll("s39", 1)
        P.stamp(9)
        a("s_barrier")
        P.stamp(10)
        for _ in range(4):
            issueX(sSlX, sXg); advX()
        for k, cnt in enumerate((9, 13, 17)):
            a(f"s_waitcnt vmcnt({cnt})")
            a("s_barrier")
            if k == 2 or True:
                pass
            if k < 2:
                issue()
                if k == 1:
                    poll("0xffff", 2)
                    a("s_barrier")
            else:
                issue()
        a(f"s_mov_b32 s{sP}, 4")
    else:
        a(f"s_mov_b32 s{sWg}, 0")
        a(f"s_mov_b32 s{sXg}, 0")
        for st in range(5):
            issue()
        a("s_waitcnt vmcnt(28)")
        a("s_barrier")
        a(f"s_mov_b32 s{sP}, 0")
    a.label("OP_L_LOOP")
    a("s_waitcnt vmcnt(21)")
    a("s_barrier")
    issue()
    a(f"s_add_u32 s{sP}, s{sP}, 1")
    a(f"s_cmp_lt_u32 s{sP}, 27")
    a("s_cbranch_scc1 OP_L_LOOP")
    for s_ in range(27, 31):
        a(f"s_waitcnt vmcnt({7*(31-(s_+1))})")
        a("s_barrier")
    a("s_barrier")
    a("s_barrier")
    if fused:
        P.dump(52, sW, 64 << 20, 12)
    return NV

HEADER = open("cdna_kernels/" + NAME + ".s.ref").read().split("; Override launch")[0]

def kd(name, nv, ns):
    acc = (nv + 3)//4*4
    return f"""
.amdhsa_kernel {name}
  .amdhsa_next_free_vgpr {nv}
  .amdhsa_next_free_sgpr {ns}
  .amdhsa_accum_offset {acc}
  .amdhsa_group_segment_fixed_size 0
  .amdhsa_kernarg_size 104
  .amdhsa_user_sgpr_count 2
  .amdhsa_user_sgpr_kernarg_segment_ptr 1
  .amdhsa_system_sgpr_workgroup_id_x 1
.end_amdhsa_kernel
"""

def main(out, opt):
    fused = opt.get("fused", 1)
    a1 = Asm(); nv1 = kernel1(a1, opt)
    s = HEADER
    if fused:
        body = a1.text().replace("k1_kernel", NAME + "_kernel")
        s += "; @launch grid=(256,1,1) block=(768,1,1) lds=163840\n"
        s += '.amdgcn_target "amdgcn-amd-amdhsa--gfx950"\n.text\n'
        nm = NAME + "_kernel"
        s += f".globl {nm}\n.p2align 8\n.type {nm},@function\n" + body
        s += '.section .rodata,"a"\n'
        s += ".p2align 6" + kd(nm, nv1, 102)
    else:
        a2 = Asm(); nv2 = kernel2(a2, opt)
        s += "; @launch kernel=k1_kernel grid=(256,1,1) block=(768,1,1) lds=163840\n"
        s += "; @launch kernel=k2_kernel grid=(256,1,1) block=(512,1,1) lds=143360\n"
        s += '.amdgcn_target "amdgcn-amd-amdhsa--gfx950"\n.text\n'
        for nm, body in (("k1_kernel", a1), ("k2_kernel", a2)):
            s += f".globl {nm}\n.p2align 8\n.type {nm},@function\n" + body.text()
        s += '.section .rodata,"a"\n'
        s += ".p2align 6" + kd("k1_kernel", nv1, 102) + ".p2align 6" + kd("k2_kernel", nv2, 96)
    open(out, "w").write(s)

if __name__ == "__main__":
    if "--prof" in sys.argv:
        PROF = True
        sys.argv.remove("--prof")
    if "--rt" in sys.argv:
        PROF = True
        RT = True
        sys.argv.remove("--rt")
    if "--dbgprof" in sys.argv:
        PROF = True
        DBGPROF = True
        sys.argv.remove("--dbgprof")
    if "--fine" in sys.argv:
        PROF = True
        FINE = True
        sys.argv.remove("--fine")
    if "--cdiag" in sys.argv:
        PROF = True
        CDIAG = True
        sys.argv.remove("--cdiag")
    if "--trdiag" in sys.argv:
        PROF = True
        TRDIAG = True
        sys.argv.remove("--trdiag")
    opt = {}
    for x in list(sys.argv):
        if x.startswith("--o:"):
            k, v = x[4:].split("=")
            opt[k] = int(v)
            sys.argv.remove(x)
    main(sys.argv[1] if len(sys.argv) > 1 else "cdna_kernels/" + NAME + ".s", opt)
```

```python
import sys, struct, math

NAME = "concat_heads__gqa_block_cached__gqa_block_cached__near_ridge"

def f2u(x):
    return struct.unpack("<I", struct.pack("<f", x))[0]

class Asm:
    def __init__(self):
        self.L = []
    def __call__(self, s):
        import re
        m = re.search(r"offset:(\d+)", s)
        if m:
            lim = 4095 if s.lstrip().startswith(("buffer_", "global_")) else 65535
            assert int(m.group(1)) <= lim, s
        for line in s.split("\n"):
            self.L.append("    " + line.strip() if not line.strip().endswith(":") else line.strip())
    def label(self, s):
        self.L.append(s + ":")
    def c(self, s):
        self.L.append("    ; " + s)
    def text(self):
        return "\n".join(self.L) + "\n"

def vr(base, n=1):
    return f"v{base}" if n == 1 else f"v[{base}:{base+n-1}]"
def sr(base, n=1):
    return f"s{base}" if n == 1 else f"s[{base}:{base+n-1}]"

MF32 = "v_mfma_f32_32x32x16_bf16"
MF16 = "v_mfma_f32_16x16x32_bf16"

DEBUG_Q = False
PROF = False
FINE = False
DBGPROF = False
RT = False
TRDIAG = False
CDIAG = False
class Prof:
    uid = 0
    def __init__(self, a, base, tmp, srd):
        self.a, self.base, self.tmp, self.srd = a, base, tmp, srd
    def init(self, n):
        if not PROF: return
        for i in range(n):
            self.a(f"s_mov_b32 s{self.base+i}, 0")
    def fine(self, slot, cond_sgpr, val, uid):
        if not FINE: return
        a = self.a
        a(f"s_cmp_lg_u32 s{cond_sgpr}, {val}")
        a(f"s_cbranch_scc1 FINE_{uid}")
        a(f"s_memtime s[{self.tmp}:{self.tmp+1}]")
        a("s_waitcnt lgkmcnt(0)")
        a(f"s_mov_b32 s{self.base+slot}, s{self.tmp}")
        a.label(f"FINE_{uid}")
    def stamp(self, slot, real=False, force=False):
        if not PROF: return
        if FINE and slot in (2, 3, 4, 5, 6, 7) : return
        if TRDIAG and slot in (3, 6, 7, 9) and not force: return
        if CDIAG and slot in (2, 3, 4, 6, 7, 9, 10, 11) and force != 2: return
        a = self.a
        a(f"{'s_memrealtime' if (real or RT) else 's_memtime'} s[{self.tmp}:{self.tmp+1}]")
        a("s_waitcnt lgkmcnt(0)")
        a(f"s_mov_b32 s{self.base+slot}, s{self.tmp}")
    def dump(self, ws_lo, swave, region, nmax):
        if not PROF: return
        a = self.a
        b = self.srd
        if DBGPROF:
            Prof.uid += 1
            a(f"s_or_b32 s{self.tmp}, s2, s{swave}")
            a(f"s_cmp_lg_u32 s{self.tmp}, 0")
            a(f"s_cbranch_scc1 DBGP_SKIP{Prof.uid}")
            a(f"s_load_dwordx2 s[{b}:{b+1}], s[0:1], 88")
            a("s_waitcnt lgkmcnt(0)")
            a(f"s_mov_b32 s{b+2}, 256")
            a(f"s_mov_b32 s{b+3}, 0x20000")
            a("s_mov_b64 exec, 1")
            a("v_mov_b32 v1, 0")
            for i in range(nmax):
                if i in (0, 1): continue
                ref = 0 if i == 8 else 1
                a(f"s_sub_u32 s{self.tmp}, s{self.base+i}, s{self.base+ref}")
                a(f"v_mov_b32 v2, s{self.tmp}")
                a(f"buffer_store_dword v2, v1, s[{b}:{b+3}], 0 offen offset:{4*i}")
                a("s_nop 0")
            a.label(f"DBGP_SKIP{Prof.uid}")
            return
        a(f"s_add_u32 s{b}, s{ws_lo}, {region}")
        a(f"s_addc_u32 s{b+1}, s{ws_lo+1}, 0")
        a(f"s_mov_b32 s{b+2}, {256*16*64}")
        a(f"s_mov_b32 s{b+3}, 0x20000")
        a(f"s_lshl_b32 s{self.tmp}, s2, 4")
        a(f"s_add_u32 s{self.tmp}, s{self.tmp}, s{swave}")
        a(f"s_lshl_b32 s{self.tmp}, s{self.tmp}, 6")
        a("s_mov_b64 exec, 1")
        a(f"v_mov_b32 v1, s{self.tmp}")
        for i in range(nmax):
            a(f"v_mov_b32 v2, s{self.base+i}")
            a(f"buffer_store_dword v2, v1, s[{b}:{b+3}], 0 offen offset:{4*i}")
            a("s_nop 0")

def flaglayout(opt):
    f1l = opt.get("f1", 0) and opt.get("ex", 3) == 3
    return f1l, (32768 if f1l else 16384)

def direct_o(opt):
    return opt.get("do", 1) and opt.get("fused", 1) and opt.get("op", 3) == 3

def kernel1(a, opt):
    F1L, SEC = flaglayout(opt)
    DO = direct_o(opt)
    T2_START = opt.get("t2_start", 8)
    TOUCH = opt.get("touch", 0)
    PRIO = opt.get("prio", 1)
    PQ, PS, PP = opt.get("pq", 2), opt.get("ps", 1), opt.get("pp", 0)
    DMAQ = opt.get("dmaq", 1)
    NTD = " nt" if opt.get("ntd", 0) else ""
    NTQ = " nt" if opt.get("ntq", opt.get("ntd", 0)) else ""
    NTX = " nt" if opt.get("ntx", opt.get("ntd", 0)) else ""
    NTT = " nt" if opt.get("ntt", 1) else ""
    ROT = opt.get("rot", 4)
    TPS = opt.get("tps", 2)
    NS2 = opt.get("p2steps", 8)
    AB = opt.get("ablate", 0)
    CSCALE = 128 ** -0.5 * math.log2(math.e)
    WOT = opt.get("wot", 1)
    OPM = opt.get("op", 3) if opt.get("fused", 1) else 1
    NTW = " nt" if opt.get("ntw", 0) else ""
    SWOP = 36
    sW = 4
    sKvh, sBr, sBt, sPair = 5, 6, 7, 3
    SX, SWQ, SK, SV, SO = 8, 12, 16, 20, 24
    STCH = 40
    sThr, sFloor = 54, 55
    sG = [56, 57, 58, 59]
    sL = [60, 61, 62, 63]
    sStep = 64
    sVn, sKn = 65, 66
    sGstep = 67
    sKc, sVc = 68, 69
    sQt, sKq = 70, 71
    sA, sB, sD = 72, 73, 74
    sLam = 75
    sWs, sWg, sXs, sXg = 76, 77, 78, 79
    sP = 80
    sE = 81
    sChk = 100
    SFL, sTok = 28, 96
    FLAGOFF = 8 << 20
    sGrp, sIdx, sRdy = 45, 46, 47
    sSafe = 44
    sDk, sDv, sTl = 76, 77, 78
    vMx = 0
    vL = 1
    KA0, KA1, VA = 2, 3, 4
    vKoff, vVoff = 5, 6
    vTb = 7
    NM = 8
    O = 24
    Q = 88
    S = 120
    F = 136
    NV = 168
    t0, t1, t2, t3, t4 = 8, 9, 10, 11, 12
    Wf = 88
    Xf = 104
    TR = opt.get("trans", 2)
    if TR == 2:
        ACC = 64
        WA, XA, QW = 128, 130, 134
    else:
        ACC = 128
        WA = 152
        XA = 154
        QW = 158
    vCs = 161
    sCs = 98
    vWo, vXo = 160, 153

    XBASE = 131072
    a.label("k1_kernel")
    a("s_cmp_ge_u32 s2, 256")
    a("s_cbranch_scc1 K1_END")
    P = Prof(a, 84, 82, 28)
    P.init(12)
    P.stamp(0, real=True)
    P.stamp(1)
    EX4 = opt.get("ex", 3) == 4 and opt.get("fused", 1) and opt.get("op", 3) == 3
    if opt.get("padto", 0) or EX4: a("s_memrealtime s[100:101]")
    a("s_load_dwordx16 s[32:47], s[0:1], 0")
    a("s_load_dwordx4 s[48:51], s[0:1], 64")
    a("s_load_dwordx2 s[52:53], s[0:1], 96")
    a("v_lshrrev_b32 v1, 6, v0")
    a("v_and_b32 v0, 63, v0")
    a(f"v_readfirstlane_b32 s{sW}, v1")
    a(f"s_and_b32 s{sKvh}, s2, 3")
    a(f"s_bfe_u32 s{sBr}, s2, 0x10002")
    a(f"s_lshr_b32 s{sBt}, s2, 5")
    a(f"s_bfe_u32 s{sPair}, s2, 0x20003")
    a(f"s_and_b32 s{sKq}, s{sW}, 3")
    a(f"s_lshr_b32 s{sQt}, s{sW}, 2")
    a(f"s_lshl_b32 s{sD}, s{sKvh}, 11")
    a(f"s_lshl_b32 s{sB}, s{sPair}, 9")
    a(f"s_add_u32 s{sD}, s{sD}, s{sB}")
    a(f"s_mul_i32 s{sA}, s{sBt}, 98304")

    def srd1():
        a("s_waitcnt lgkmcnt(0)")
        a(f"s_cmp_eq_u32 s{sBr}, 0")
        a(f"s_cselect_b64 s[{SX}:{SX+1}], s[32:33], s[42:43]")
        a(f"s_cselect_b64 s[{SWQ}:{SWQ+1}], s[38:39], s[48:49]")
        a(f"s_add_u32 s{SX}, s{SX}, s{sA}")
        a(f"s_addc_u32 s{SX+1}, s{SX+1}, 0")
        a(f"s_mov_b32 s{SX+2}, 98304")
        a(f"s_mov_b32 s{SX+3}, 0x20000")
        a(f"s_add_u32 s{SWQ}, s{SWQ}, s{sD}")
        a(f"s_addc_u32 s{SWQ+1}, s{SWQ+1}, 0")
        a(f"s_sub_u32 s{SWQ+2}, 8388608, s{sD}")
        a(f"s_mov_b32 s{SWQ+3}, 0x20000")
    def patterns():
        a(f"v_bfe_u32 v{t0}, v0, 2, 2")
        a(f"v_lshlrev_b32 v{t0}, 8, v{t0}")
        a(f"v_lshrrev_b32 v{t1}, 4, v0")
        a(f"v_lshl_add_u32 v{t0}, v{t1}, 6, v{t0}")
        a(f"v_and_b32 v{t1}, 3, v0")
        a(f"v_lshl_add_u32 v{vVoff}, v{t1}, 4, v{t0}")
        a(f"s_lshl_b32 s{sB}, s{sKq}, 4")
        a(f"v_xor_b32 v{vKoff}, s{sB}, v{vVoff}")

    def srd2():
        a(f"s_cmp_eq_u32 s{sBr}, 0")
        a(f"s_cselect_b64 s[{SK}:{SK+1}], s[34:35], s[44:45]")
        a(f"s_cselect_b64 s[{SV}:{SV+1}], s[36:37], s[46:47]")
        a(f"s_mov_b64 s[36:37], s[40:41]")
        if DO:
            a(f"s_lshl_b32 s{sB}, s{sBr}, 2")
            a(f"s_add_u32 s{sB}, s{sB}, s{sKvh}")
            a(f"s_lshl_b32 s{sB}, s{sB}, 3")
            a(f"s_add_u32 s{sB}, s{sB}, s{sBt}")
            a(f"s_lshl_b32 s{sB}, s{sB}, 2")
            a(f"s_add_u32 s{sB}, s{sB}, s{sPair}")
            a(f"s_mul_i32 s{sB}, s{sB}, 24576")
            a(f"s_add_u32 s{SO}, s52, s{sB}")
            a(f"s_addc_u32 s{SO+1}, s53, 0")
            a(f"s_mov_b32 s{SO+2}, 24576")
        else:
            a(f"s_lshl_b32 s{sB}, s{sBr}, 3")
            a(f"s_add_u32 s{sB}, s{sB}, s{sBt}")
            a(f"s_mul_i32 s{sB}, s{sB}, {48*8192}")
            a(f"s_add_u32 s{sB}, s{sB}, s{sD}")
            a(f"s_add_u32 s{SO}, s52, s{sB}")
            a(f"s_addc_u32 s{SO+1}, s53, 0")
            a(f"s_sub_u32 s{SO+2}, {48*8192}, s{sD}")
        a(f"s_mov_b32 s{SO+3}, 0x20000")
        a(f"s_lshl_b32 s{sB}, s{sBt}, 2")
        a(f"s_add_u32 s{sB}, s{sB}, s{sKvh}")
        a(f"s_lshl_b32 s{sB}, s{sB}, 18")
        a(f"s_add_u32 s{SK}, s{SK}, s{sB}")
        a(f"s_addc_u32 s{SK+1}, s{SK+1}, 0")
        a(f"s_mov_b32 s{SK+2}, 262144")
        a(f"s_mov_b32 s{SK+3}, 0x20000")
        a(f"s_add_u32 s{SV}, s{SV}, s{sB}")
        a(f"s_addc_u32 s{SV+1}, s{SV+1}, 0")
        a(f"s_mov_b32 s{SV+2}, 262144")
        a(f"s_mov_b32 s{SV+3}, 0x20000")
        a(f"s_mov_b32 s{STCH+2}, 262144")
        a(f"s_mov_b32 s{STCH+3}, 0x20000")
        if OPM == 1:
            a(f"s_lshl_b32 s{sB}, s{sBr}, 3")
            a(f"s_add_u32 s{sB}, s{sB}, s{sBt}")
            a(f"s_lshl_b32 s{sB}, s{sB}, 8")
            a(f"s_add_u32 s{sB}, s{sB}, {FLAGOFF}")
            a(f"s_add_u32 s{SFL}, s52, s{sB}")
            a(f"s_addc_u32 s{SFL+1}, s53, 0")
            a(f"s_mov_b32 s{SFL+2}, 64")
        else:
            a(f"s_add_u32 s{SFL}, s52, {FLAGOFF}")
            a(f"s_addc_u32 s{SFL+1}, s53, 0")
            a(f"s_mov_b32 s{SFL+2}, {(1 << 20) if (opt.get('stepprof', 0) or opt.get('p1prof', 0)) else (SEC + 65536 if opt.get('ex', 3) >= 2 else 32768)}")
            a(f"s_lshl_b32 s{sGrp}, s{sBr}, 2")
            a(f"s_add_u32 s{sGrp}, s{sGrp}, s{sKvh}")
            a(f"s_lshl_b32 s{sGrp}, s{sGrp}, 2")
            a(f"s_lshr_b32 s{sB}, s{sBt}, 1")
            a(f"s_add_u32 s{sGrp}, s{sGrp}, s{sB}")
            a(f"s_lshl_b32 s{sGrp}, s{sGrp}, {10 if F1L else 8}")
            a(f"s_lshl_b32 s{sRdy}, s{sBr}, 2")
            a(f"s_add_u32 s{sRdy}, s{sRdy}, s{sB}")
            a(f"s_lshl_b32 s{sRdy}, s{sRdy}, 3")
            a(f"s_and_b32 s{sB}, s{sBt}, 1")
            a(f"s_lshl_b32 s{sB}, s{sB}, 2")
            a(f"s_add_u32 s{sB}, s{sB}, s{sPair}")
            a(f"s_add_u32 s{sRdy}, s{sRdy}, s{sB}")
            a(f"s_lshl_b32 s{sRdy}, s{sRdy}, {10 if opt.get('ex', 3) >= 2 else 8}")
            a(f"s_add_u32 s{sRdy}, s{sRdy}, {SEC}")
        a(f"s_mov_b32 s{SFL+3}, 0x20000")
        if OPM == 1:
            a(f"s_load_dwordx2 s[{sTok}:{sTok+1}], s[{SX}:{SX+1}], 0")
        else:
            a(f"s_and_b32 s82, s{sBt}, 1")
            a(f"s_mul_i32 s82, s82, 98304")
            a(f"s_sub_u32 s82, s{SX}, s82")
            a(f"s_subb_u32 s83, s{SX+1}, 0")
            a(f"s_load_dwordx2 s[{sTok}:{sTok+1}], s[82:83], 0")
        if OPM == 1:
            a(f"s_lshl_b32 s{sIdx}, s{sKvh}, 2")
            a(f"s_add_u32 s{sIdx}, s{sIdx}, s{sPair}")
        else:
            a(f"s_mov_b32 s{sIdx}, s{sB}")

        patterns()

    def kread(n):
        a(f"ds_read_b128 {vr(F+4*n,4)}, v{KA0 + (n & 1)} offset:{(n >> 1)*256}")
    def setup2():
        a(f"v_and_b32 v{t0}, 31, v0")
        a(f"v_lshrrev_b32 v{t1}, 5, v0")
        a(f"v_and_b32 v{t2}, 15, v0")
        a(f"v_xor_b32 v{t2}, v{t1}, v{t2}")
        a(f"v_lshlrev_b32 v{t2}, 4, v{t2}")
        a(f"v_lshl_add_u32 v{t2}, v{t0}, 8, v{t2}")
        a(f"s_lshl_b32 s{sA}, s{sQt}, 13")
        a(f"s_add_u32 s{sA}, s{sA}, {XBASE}")
        a(f"v_add_u32 v{vTb}, s{sA}, v{t2}")
        a(f"v_lshrrev_b32 v{t2}, 2, v{t0}")
        a(f"v_and_b32 v{t3}, 3, v{t2}")
        a(f"v_xor_b32 v{t3}, v{t1}, v{t3}")
        a(f"v_lshlrev_b32 v{t3}, 4, v{t3}")
        a(f"v_lshl_add_u32 v{t3}, v{t2}, 10, v{t3}")
        a(f"v_and_b32 v{t2}, 3, v0")
        a(f"v_lshl_add_u32 v{t3}, v{t2}, 6, v{t3}")
        a(f"s_lshl_b32 s{sA}, s{sKq}, 13")
        a(f"v_add_u32 v{KA0}, s{sA}, v{t3}")
        a(f"v_xor_b32 v{KA1}, 32, v{KA0}")
        a(f"v_bfe_u32 v{t2}, v0, 2, 2")
        a(f"v_lshlrev_b32 v{t2}, 6, v{t2}")
        a(f"v_lshl_add_u32 v{t2}, v{t1}, 10, v{t2}")
        a(f"v_bfe_u32 v{t3}, v0, 4, 1")
        a(f"v_lshl_add_u32 v{t2}, v{t3}, 5, v{t2}")
        a(f"v_bfe_u32 v{t3}, v0, 1, 1")
        a(f"v_lshl_add_u32 v{t2}, v{t3}, 4, v{t2}")
        a(f"v_and_b32 v{t3}, 1, v0")
        a(f"v_lshl_add_u32 v{t2}, v{t3}, 3, v{t2}")
        a(f"s_add_u32 s{sA}, s{sA}, 32768")
        a(f"v_add_u32 v{VA}, s{sA}, v{t2}")
        for j in range(4):
            a(f"s_sub_u32 s{sA}, s{sQt}, 1")
            a(f"s_lshl_b32 s{sA}, s{sA}, 1")
            a(f"s_add_u32 s{sA}, s{sA}, {j >> 1}")
            a(f"s_add_u32 s{sB}, s{sKq}, {4*(j & 1)}")
            a(f"s_lshl_b32 s{sB}, s{sB}, 10")
            a(f"s_lshl_b32 s{sD}, s{sA}, 16")
            a(f"s_add_u32 s{sG[j]}, s{sD}, s{sB}")
            a(f"s_lshl_b32 s{sD}, s{sA}, 13")
            a(f"s_add_u32 s{sL[j]}, s{sD}, s{sB}")
        a(f"s_mov_b32 s{sStep}, 0")
        a(f"s_mov_b32 s{sKn}, {4*32768}")
        a(f"s_mov_b32 s{sVn}, 0")
        a(f"s_mov_b32 s{sGstep}, 16384")
        a(f"s_mov_b32 s{sKc}, 65536")
        a(f"s_mov_b32 s{sVc}, 32768")
        a(f"s_mov_b32 s{sThr}, 0xff800000")
        a(f"s_mov_b32 s{sFloor}, 0xff800000")
        a(f"s_mov_b32 s{sSafe}, {opt.get('safe', 0)}")
        for r in range(0, 16, 2):
            a(f"v_mov_b64 {vr(NM+r,2)}, 0")

    def issueW(slot_expr_sgpr, goff_sgpr, vreg):
        for j in range(8):
            m1, m3, m4 = j & 1, (j >> 1) & 1, (j >> 2) & 1
            dm = 2*m1 + 8*m3 + 16*m4
            a(f"s_add_u32 m0, s{slot_expr_sgpr}, {dm*1024}")
            a(f"s_add_u32 s{sA}, s{goff_sgpr}, {dm*16384}")
            a(f"buffer_load_dwordx4 v{vreg}, s[{SWQ}:{SWQ+3}], s{sA} offen{NTQ} lds")
    def issueX(slot_sgpr, goff_sgpr):
        for j in range(3):
            a(f"s_add_u32 m0, s{slot_sgpr}, {j*4096}")
            a(f"s_add_u32 s{sA}, s{goff_sgpr}, {j*16*2048}")
            a(f"buffer_load_dwordx4 v{vXo}, s[{SX}:{SX+3}], s{sA} offen{NTX} lds")
    a(f"v_lshrrev_b32 v{t0}, 5, v0")
    a(f"v_and_b32 v{t1}, 31, v0")
    a(f"s_and_b32 s{sE}, s{sKq}, 1")
    a(f"s_lshl_b32 s{sE}, s{sE}, 1")
    a(f"s_lshr_b32 s{sB}, s{sKq}, 1")
    a(f"s_lshl_b32 s{sB}, s{sB}, 2")
    a(f"s_or_b32 s{sE}, s{sE}, s{sB}")
    a(f"v_or_b32 v{t2}, s{sE}, v{t0}")
    a(f"v_lshlrev_b32 v{t2}, 1, v{t2}")
    a(f"v_xor_b32 v{t2}, v{t1}, v{t2}")
    a(f"v_lshlrev_b32 v{t2}, 4, v{t2}")
    a(f"v_lshl_add_u32 v{vWo}, v{t0}, 13, v{t2}")
    a(f"s_and_b32 s{sE}, s{sKq}, 1")
    a(f"s_or_b32 s{sE}, s{sE}, s{sB}")
    a(f"s_lshl_b32 s{sB}, s{sE}, 14")
    a(f"v_add_u32 v{vWo}, s{sB}, v{vWo}")
    a(f"s_lshl_b32 s{sWs}, s{sE}, 10")
    if ROT == 1:
        a(f"s_lshl_b32 s{sXg}, s{sPair}, 1")
        a(f"s_add_u32 s{sXg}, s{sXg}, s{sBt}")
        a(f"s_and_b32 s{sXg}, s{sXg}, 7")
        a(f"s_lshl_b32 s{sWg}, s{sXg}, 20")
        a(f"s_lshl_b32 s{sXg}, s{sXg}, 8")
    elif ROT == 4:
        a(f"s_add_u32 s{sXg}, s{sPair}, s{sBt}")
        a(f"s_and_b32 s{sXg}, s{sXg}, 3")
        a(f"s_lshl_b32 s{sXg}, s{sXg}, 1")
        a(f"s_lshl_b32 s{sWg}, s{sXg}, 20")
        a(f"s_lshl_b32 s{sXg}, s{sXg}, 8")
    elif ROT == 2:
        a(f"s_add_u32 s{sXg}, s{sPair}, s{sBt}")
        a(f"s_and_b32 s{sXg}, s{sXg}, 1")
        a(f"s_lshl_b32 s{sXg}, s{sXg}, 2")
        a(f"s_lshl_b32 s{sWg}, s{sXg}, 20")
        a(f"s_lshl_b32 s{sXg}, s{sXg}, 8")
    else:
        a(f"s_mov_b32 s{sXg}, 0")
        a(f"s_mov_b32 s{sWg}, 0")
    a(f"s_cmp_ge_u32 s{sW}, 8")
    a("s_cbranch_scc1 K1_LOADER")
    a(f"s_add_u32 s{sB}, s{sQt}, 1")
    a(f"s_lshl_b32 s{sE}, s{sB}, 15")
    a(f"s_add_u32 s{sWs}, s{sWs}, s{sE}")
    a(f"s_lshl_b32 s{sE}, s{sB}, 19")
    a(f"s_add_u32 s{sWg}, s{sWg}, s{sE}")
    a(f"s_and_b32 s{sWg}, s{sWg}, 0x7fffff")
    srd1()
    SPF = opt.get("spf", 0)
    spf_list = []
    if SPF:
        a(f"s_lshr_b32 s{sE}, s{sBt}, 2")
        a(f"s_mul_i32 s{sE}, s{sE}, 96")
        a(f"s_mul_i32 s{sB}, s{sW}, 12")
        a(f"s_add_u32 s{sE}, s{sE}, s{sB}")
        a(f"s_add_u32 s{sE}, s{sE}, 64")
        a(f"s_lshl_b32 s{sE}, s{sE}, 13")
        a(f"s_add_u32 s{sB}, s{sPair}, s{sBt}")
        a(f"s_and_b32 s{sB}, s{sB}, 3")
        a(f"s_lshl_b32 s{sB}, s{sB}, 21")
        a(f"s_add_u32 s{sE}, s{sE}, s{sB}")
        a(f"s_add_u32 s82, s{SWQ}, s{sE}")
        a(f"s_addc_u32 s83, s{SWQ+1}, 0")
        for r in range(12):
            for l in range(4):
                spf_list.append(f"s_load_dword s101, s[82:83], {r*8192 + l*128}")
    def spf(n):
        for _ in range(n):
            if spf_list: a(spf_list.pop(0))
    spf(14)
    if opt.get("t1", 0):
        a(f"v_lshrrev_b32 v{t0}, 4, v0")
        a(f"v_lshlrev_b32 v{t0}, 13, v{t0}")
        a(f"v_and_b32 v{t1}, 15, v0")
        a(f"v_lshl_add_u32 v{t0}, v{t1}, 7, v{t0}")
        a(f"s_lshr_b32 s{sB}, s2, 3")
        a(f"s_lshl_b32 s{sB}, s{sB}, 15")
        a(f"s_lshl_b32 s{sE}, s{sW}, 20")
        a(f"s_add_u32 s{sB}, s{sB}, s{sE}")
        a(f"s_lshl_b32 s{sE}, s{sPair}, 9")
        a(f"s_sub_u32 s82, s{SWQ}, s{sE}")
        a(f"s_subb_u32 s83, s{SWQ+1}, 0")
        a(f"v_add_u32 v{t0}, s{sB}, v{t0}")
        a(f"s_cmp_lt_u32 s{sW}, {opt.get('t1first', 1)}")
        a("s_cbranch_scc1 K1_NOT1")
        a(f"global_load_dword v{F+31}, v{t0}, s[82:83]")
        a.label("K1_NOT1")
        a(f"s_cmp_ge_u32 s{sW}, 3")
        a("s_cbranch_scc1 K1_NOT2")
        a(f"v_lshrrev_b32 v{t0}, 4, v0")
        a(f"s_mul_i32 s{sB}, s{sPair}, 12")
        a(f"s_lshl_b32 s{sE}, s{sW}, 2")
        a(f"s_add_u32 s{sB}, s{sB}, s{sE}")
        a(f"v_add_u32 v{t0}, s{sB}, v{t0}")
        a(f"v_lshlrev_b32 v{t0}, 11, v{t0}")
        a(f"v_lshl_add_u32 v{t0}, v{t1}, 7, v{t0}")
        a(f"buffer_load_dword v{F+30}, v{t0}, s[{SX}:{SX+3}], 0 offen")
        a.label("K1_NOT2")
    FILL = opt.get("fill", 0)
    def first_issue():
        if not FILL:
            issueW(sWs, sWg, vWo)
            return
        if FILL == 2:
            a(f"s_cmp_lg_u32 s{sQt}, 0")
            a("s_cbranch_scc1 K1_FI2")
            issueW(sWs, sWg, vWo)
            a.label("K1_FI2")
            return
        a(f"s_cmp_lg_u32 s{sQt}, 0")
        a("s_cbranch_scc1 K1_FI1")
        a(f"v_lshrrev_b32 v164, 4, v0")
        a(f"v_and_b32 v165, 15, v0")
        a(f"s_lshl_b32 s{sE}, s{sKq}, 2")
        a(f"v_or_b32 v164, s{sE}, v164")
        a(f"v_xor_b32 v165, v165, v164")
        a(f"v_lshlrev_b32 v165, 4, v165")
        a(f"v_lshl_add_u32 v{vXo}, v164, 11, v165")
        a(f"s_lshl_b32 s{sXs}, s{sKq}, 10")
        a(f"s_add_u32 s{sXs}, s{sXs}, {XBASE + 0x4000}")
        a(f"s_add_u32 s{sXg}, s{sXg}, 256")
        a(f"s_and_b32 s{sXg}, s{sXg}, 0x7ff")
        issueX(sXs, sXg)
        issueW(sWs, sWg, vWo)
        a("s_branch K1_FI2")
        a.label("K1_FI1")
        issueW(sWs, sWg, vWo)
        a(f"s_add_u32 s{sWs}, s{sWs}, 32768")
        a(f"s_add_u32 s{sWg}, s{sWg}, 524288")
        a(f"s_and_b32 s{sWg}, s{sWg}, 0x7fffff")
        issueW(sWs, sWg, vWo)
        a.label("K1_FI2")
    if not opt.get("latew", 1):
        first_issue()

    a.c("phase 1 compute")
    a(f"v_bfe_u32 v{t0}, v0, 2, 2")
    a(f"v_lshrrev_b32 v{t1}, 4, v0")
    a(f"v_and_b32 v{t2}, 1, v{t1}")
    a(f"v_lshl_or_b32 v{t2}, v{t2}, 2, v{t0}")
    a(f"s_lshl_b32 s{sE}, s{sW}, 1")
    a(f"v_xor_b32 v{t2}, s{sE}, v{t2}")
    a(f"v_lshl_add_u32 v{t3}, v{t1}, 3, v{t0}")
    a(f"v_lshlrev_b32 v{t3}, 9, v{t3}")
    a(f"v_lshl_add_u32 v{t3}, v{t2}, 5, v{t3}")
    a(f"v_and_b32 v{t4}, 3, v0")
    a(f"v_lshl_add_u32 v{WA}, v{t4}, 3, v{t3}")
    a(f"v_xor_b32 v{WA+1}, 32, v{WA}")
    a(f"v_and_b32 v{t0}, 15, v0")
    a(f"v_xor_b32 v{t2}, v{t1}, v{t0}")
    a(f"v_lshlrev_b32 v{t2}, 4, v{t2}")
    a(f"v_lshl_add_u32 v{t2}, v{t0}, 8, v{t2}")
    a(f"v_add_u32 v{XA}, {XBASE:#x}, v{t2}")
    a(f"v_xor_b32 v{XA+1}, 64, v{XA}")
    a(f"v_xor_b32 v{XA+2}, 0x80, v{XA}")
    a(f"v_xor_b32 v{XA+3}, 0xc0, v{XA}")
    spf(10)
    for r in range(24):
        a(f"v_mov_b32 v{ACC+r}, 0")
    spf(opt.get("spfn", 24))
    srd2()
    if opt.get("fused", 1):
        a(f"s_cmp_lg_u32 s{sW}, 1")
        a("s_cbranch_scc1 K1_NOZ")
        a(f"s_lshl_b32 s{sE}, s{sIdx}, 2")
        if OPM == 3:
            a(f"s_add_u32 s{sE}, s{sE}, s{sGrp}")
        a(f"v_mov_b32 v{t0}, 0")
        if F1L:
            a(f"v_lshl_add_u32 v{t1}, v0, 7, s{sE}")
            a(f"s_lshl_b32 s{sB}, s{sKvh}, 2")
            a(f"s_add_u32 s{sB}, s{sB}, s{sRdy}")
            a(f"s_sub_u32 s{sB}, s{sB}, {8*128}")
            a(f"v_lshl_add_u32 v{t2}, v0, 7, s{sB}")
            a(f"v_cmp_lt_u32 vcc, 7, v0")
            a(f"v_cndmask_b32 v{t1}, v{t1}, v{t2}, vcc")
            a(f"s_mov_b64 exec, 0xffff")
        elif EX4:
            a(f"v_mov_b32 v{t1}, s{sE}")
            a("s_mov_b64 exec, 1")
        elif OPM == 3 and opt.get("ex", 3) >= 2:
            a(f"s_lshl_b32 s{sB}, s{sKvh}, 2")
            a(f"s_add_u32 s{sB}, s{sB}, s{sRdy}")
            a(f"s_sub_u32 s{sB}, s{sB}, 128")
            a(f"v_lshl_add_u32 v{t1}, v0, 7, s{sB}")
            a(f"s_add_u32 s{sB}, s{sRdy}, 64")
            a(f"s_sub_u32 s{sB}, s{sB}, {9*128}")
            a(f"v_lshl_add_u32 v{t2}, v0, 7, s{sB}")
            a(f"v_cmp_lt_u32 vcc, 8, v0")
            a(f"v_cndmask_b32 v{t1}, v{t1}, v{t2}, vcc")
            a(f"v_writelane_b32 v{t1}, s{sE}, 0")
            a(f"s_mov_b64 exec, {'0x1ff' if opt.get('ex', 3) == 3 else '0x1ffff'}")
        else:
            a(f"v_mov_b32 v{t1}, s{sE}")
            if OPM == 3:
                a(f"s_lshl_b32 s{sE}, s{sKvh}, 2")
                a(f"s_add_u32 s{sE}, s{sE}, s{sRdy}")
                a(f"v_writelane_b32 v{t1}, s{sE}, 1")
            a(f"s_mov_b64 exec, {3 if OPM == 3 else 1}")
        a(f"buffer_store_dword v{t0}, v{t1}, s[{SFL}:{SFL+3}], 0 offen sc1")
        a("s_mov_b64 exec, -1")
        a.label("K1_NOZ")
    if TR == 2:
        a(f"s_mov_b32 s{sCs}, {f2u(CSCALE):#x}")
        a(f"s_mov_b32 s{sCs+1}, {f2u(CSCALE):#x}")
    else:
        a(f"v_mov_b32 v{vCs}, {f2u(CSCALE):#x}")
    a(f"v_and_b32 v{t0}, 15, v0")
    a(f"v_lshrrev_b32 v{t1}, 4, v0")
    a(f"s_lshl_b32 s{sE}, s{sKq}, 2")
    a(f"v_lshrrev_b32 v{t2}, 1, v{t1}")
    a(f"v_add_u32 v{t2}, s{sE}, v{t2}")
    a(f"v_xor_b32 v{t2}, v{t2}, v{t0}")
    a(f"v_lshlrev_b32 v{t2}, 4, v{t2}")
    a(f"v_lshl_add_u32 v{t2}, v{t0}, 8, v{t2}")
    a(f"v_and_b32 v{t3}, 1, v{t1}")
    a(f"v_lshl_add_u32 v{t2}, v{t3}, 3, v{t2}")
    a(f"s_mul_i32 s{sE}, s{sQt}, {48*256}")
    a(f"s_add_u32 s{sE}, s{sE}, {XBASE}")
    a(f"v_add_u32 v{QW}, s{sE}, v{t2}")
    a(f"v_xor_b32 v{QW+1}, 32, v{QW}")
    setup2()
    if opt.get("dbgtouch", 0):
        a("s_load_dwordx2 s[82:83], s[0:1], 88")
        a("s_waitcnt lgkmcnt(0)")
        a("v_mov_b32 v162, 0")
        a("global_load_dword v163, v162, s[82:83] sc1")
    if opt.get("latew", 1):
        first_issue()
    a(f"s_mov_b32 s{sP}, 0")
    FB = [88, 24]
    def p1_read_list(sp):
        fb = FB[sp]
        L = []
        for ks in range(2):
            for tt in range(2):
                for e in range(2):
                    off = sp * 32768 + ks * 16384 + e * 2048
                    L.append(f"ds_read_b64_tr_b16 {vr(fb + (tt*2+ks)*4 + e*2, 2)}, v{WA+tt} offset:{off}")
            for rt in range(3):
                L.append(f"ds_read_b128 {vr(fb + 16 + (rt*2+ks)*4, 4)}, v{XA + sp*2 + ks} offset:{rt*4096}")
        return L
    def p1_mfma_list(sp):
        fb = FB[sp]
        L = []
        for ks in range(2):
            for rt in range(3):
                for tt in range(2):
                    acc = ACC + (tt*3+rt)*4
                    L.append(f"{MF16} {vr(acc,4)}, {vr(fb+(tt*2+ks)*4,4)}, {vr(fb+16+(rt*2+ks)*4,4)}, {vr(acc,4)}")
        return L
    def p1_reads(sp):
        for x in p1_read_list(sp): a(x)
    def p1_mfma(sp):
        for x in p1_mfma_list(sp): a(x)
    def p1_both(rsp, msp):
        R, M = p1_read_list(rsp), p1_mfma_list(msp)
        if opt.get("fl", 3) & 2:
            per = opt.get("flp", 2)
            for n in range(12):
                a(M[n])
                for x in R[per*n:per*n+per]: a(x)
            return
        for n in range(12):
            a(M[n])
            a(R[n])
            if n in (5, 11): a(R[12 + (n == 11)])
    a("s_barrier")
    P.stamp(2)
    p1_reads(0)
    if FILL == 2:
        a(f"s_cmp_eq_u32 s{sQt}, 0")
        a("s_cbranch_scc1 K1_FW0")
        issueW(sWs, sWg, vWo)
        a("s_branch K1_FW1")
        a.label("K1_FW0")
        a("s_waitcnt vmcnt(0)")
        a.label("K1_FW1")
        a("s_waitcnt lgkmcnt(0)")
    elif FILL:
        a(f"s_cmp_lg_u32 s{sQt}, 0")
        a("s_cbranch_scc1 K1_FW1")
        a("s_waitcnt vmcnt(0)")
        a.label("K1_FW1")
        a("s_waitcnt lgkmcnt(0)")
    else:
        a("s_waitcnt vmcnt(0) lgkmcnt(0)")
    if EX4:
        a(f"s_lshl_b32 s{sE}, s{sW}, 7")
        a(f"s_add_u32 s{sE}, s{sE}, s{sRdy}")
        a(f"s_lshl_b32 s{sB}, s{sKvh}, 2")
        a(f"s_add_u32 s{sE}, s{sE}, s{sB}")
        a(f"v_mov_b32 v162, s100")
        a(f"v_mov_b32 v163, s{sE}")
        a("s_mov_b64 exec, 1")
        a(f"buffer_store_dword v162, v163, s[{SFL}:{SFL+3}], 0 offen sc1")
        a("s_mov_b64 exec, -1")
    a("s_branch K1_P1_MID")
    def p1stamp(odd):
        if not opt.get("p1prof", 0): return
        a("s_memtime s[82:83]")
        a(f"s_lshl_b32 s{sE}, s2, 4")
        a(f"s_add_u32 s{sE}, s{sE}, s{sW}")
        a(f"s_lshl_b32 s{sE}, s{sE}, 6")
        a(f"s_lshl_b32 s{sB}, s{sP}, 3")
        a(f"s_add_u32 s{sE}, s{sE}, s{sB}")
        a(f"s_add_u32 s{sE}, s{sE}, {262144 + 4*odd}")
        a(f"v_mov_b32 v163, s{sE}")
        a("s_waitcnt lgkmcnt(0)")
        a(f"v_mov_b32 v162, s82")
        a("s_mov_b64 exec, 1")
        a(f"buffer_store_dword v162, v163, s[{SFL}:{SFL+3}], 0 offen")
        a("s_mov_b64 exec, -1")
    a.label("K1_P1_LOOP")
    if FILL: a(f"s_waitcnt vmcnt({8 if FILL == 1 else 0})")
    a("s_barrier")
    p1stamp(0)
    p1_both(0, 1)
    a(f"s_waitcnt {'vmcnt(0) ' if FILL == 1 else ''}lgkmcnt(0)")
    a.label("K1_P1_MID")
    a("s_barrier")
    p1stamp(1)
    p1_both(1, 0)
    a(f"v_xor_b32 v{WA}, 0x10000, v{WA}")
    a(f"v_xor_b32 v{WA+1}, 0x10000, v{WA+1}")
    for v in range(4):
        a(f"v_xor_b32 v{XA+v}, 0x4000, v{XA+v}")
    a(f"s_add_u32 s{sP}, s{sP}, 1")
    a("s_waitcnt lgkmcnt(0)")
    a(f"s_cmp_lt_u32 s{sP}, 8")
    a("s_cbranch_scc1 K1_P1_LOOP")
    a("s_barrier")
    P.stamp(3, force=True)
    if TR == 2:
        for ks in range(8):
            kread(ks)
    p1_mfma(1)
    a("s_nop 7")
    for tt in range(2):
        for rt in range(3):
            acc = ACC + (tt*3+rt)*4
            if TR == 2:
                for r in range(0, 4, 2):
                    a(f"v_pk_mul_f32 {vr(acc+r,2)}, {vr(acc+r,2)}, s[{sCs}:{sCs+1}]")
            else:
              for r in range(4):
                a(f"v_mul_f32 v{acc+r}, v{vCs}, v{acc+r}")
            a(f"v_cvt_pk_bf16_f32 v{acc}, v{acc}, v{acc+1}")
            a(f"v_cvt_pk_bf16_f32 v{acc+1}, v{acc+2}, v{acc+3}")
            a(f"ds_write_b64 v{QW+tt}, {vr(acc,2)} offset:{rt*4096}")
    def zeroO():
        for r in range(0, 64, 2):
            a(f"v_mov_b64 {vr(O+r,2)}, 0")
        a(f"v_mov_b32 v{vL}, 0")
    if TR == 1:
        for ks in range(8):
            kread(ks)
        zeroO()
    if TRDIAG: P.stamp(6, force=True)
    a("s_waitcnt lgkmcnt(0)")
    if TRDIAG: P.stamp(7, force=True)
    a("s_branch K1_JOIN")
    if TOUCH:
        for sp in range(2):
            a.label(f"K1_T1_{sp}")
            a(f"s_cmp_lt_u32 s{sP}, {T2_START//2}")
            a(f"s_cbranch_scc1 K1_T1R_{sp}")
            a(f"s_sub_u32 s{sA}, s{sP}, {T2_START//2}")
            a(f"s_lshl_b32 s{sA}, s{sA}, 13")
            a(f"s_lshl_b32 s{sB}, s{sPair}, 16")
            a(f"s_add_u32 s{sA}, s{sA}, s{sB}")
            srd = SK if sp == 0 else SV
            a(f"buffer_load_dword v{vVoff}, v{vTch}, s[{srd}:{srd+3}], s{sA} offen{NTT}")
            a(f"s_branch K1_T1R_{sp}")

    a.label("K1_LOADER")
    a("s_setprio 3")
    a(f"s_sub_u32 s{sLam}, s{sW}, 8")
    a(f"v_lshrrev_b32 v{t0}, 4, v0")
    a(f"v_and_b32 v{t1}, 15, v0")
    a(f"s_lshl_b32 s{sE}, s{sLam}, 2")
    a(f"v_or_b32 v{t2}, s{sE}, v{t0}")
    a(f"v_xor_b32 v{t3}, v{t1}, v{t2}")
    a(f"v_lshlrev_b32 v{t3}, 4, v{t3}")
    a(f"v_lshl_add_u32 v{vXo}, v{t2}, 11, v{t3}")
    def issueKV_loader(srd, voff, slot, step, uid=None):
        a(f"s_lshl_b32 s{sB}, s{sLam}, 10")
        for e in range(8):
            lo = slot*32768 + (e >> 1)*8192 + (e & 1)*4096
            go = (e >> 1)*65536 + step*8192 + (e & 1)*4096
            a(f"s_add_u32 m0, s{sB}, {lo}")
            a(f"s_add_u32 s{sA}, s{sB}, {go}")
            a(f"buffer_load_dwordx4 v{voff}, s[{srd}:{srd+3}], s{sA} offen{NTD} lds")
    a(f"s_lshl_b32 s{sXs}, s{sLam}, 10")
    a(f"s_add_u32 s{sXs}, s{sXs}, {XBASE}")
    srd1()
    P.stamp(2)
    def nextW():
        a(f"s_add_u32 s{sWs}, s{sWs}, 32768")
        a(f"s_and_b32 s{sWs}, s{sWs}, 0x1ffff")
        a(f"s_add_u32 s{sWg}, s{sWg}, 524288")
        a(f"s_and_b32 s{sWg}, s{sWg}, 0x7fffff")
    def nextX():
        a(f"s_xor_b32 s{sXs}, s{sXs}, 0x4000")
        a(f"s_add_u32 s{sXg}, s{sXg}, 256")
        a(f"s_and_b32 s{sXg}, s{sXg}, 0x7ff")
    issueX(sXs, sXg)
    issueW(sWs, sWg, vWo)
    P.stamp(3)
    a(f"s_add_u32 s{sWs}, s{sWs}, {3*32768}")
    a(f"s_add_u32 s{sWg}, s{sWg}, {3*524288}")
    a(f"s_and_b32 s{sWg}, s{sWg}, 0x7fffff")
    srd2()
    setup2()
    if opt.get("kpf", 0):
        src = SK if opt.get("kpfv", 0) == 0 else SV
        a(f"s_lshl_b32 s{sE}, s{sPair}, 16")
        a(f"s_lshl_b32 s{sB}, s{sLam}, 13")
        a(f"s_add_u32 s{sE}, s{sE}, s{sB}")
        a(f"s_add_u32 s{sE}, s{sE}, {opt.get('kpft', 2)*8192}")
        a(f"s_add_u32 s82, s{src}, s{sE}")
        a(f"s_addc_u32 s83, s{src+1}, 0")
    a(f"s_mov_b32 s{sP}, 0")
    E3 = opt.get("early3", 0)
    if FILL == 1:
        nextX(); nextW()
        a("s_waitcnt vmcnt(0)")
        E3 = 1
    elif E3:
        a(f"s_waitcnt vmcnt({opt.get('e3w', 8)})")
        nextX(); issueX(sXs, sXg)
        issueW(sWs, sWg, vWo); nextW()
        a("s_waitcnt vmcnt(11)")
    else:
        a("s_waitcnt vmcnt(0)")
    P.stamp(11)
    a("s_setprio 0")
    a("s_barrier")
    a(f"s_branch {'K1_LD_MID2' if E3 else 'K1_LD_MID'}")
    KPF = opt.get("kpf", 0)
    def kpf(n):
        if not KPF: return
        for j in range(n):
            a(f"s_load_dword s101, s[82:83], {128*j}")
        a(f"s_add_u32 s82, s82, {128*n}")
        a("s_addc_u32 s83, s83, 0")
    a.label("K1_LD_LOOP")
    a("s_waitcnt vmcnt(16)")
    a("s_barrier")
    a.label("K1_LD_MID")
    nextX(); issueX(sXs, sXg)
    issueW(sWs, sWg, vWo); nextW()
    kpf(KPF)
    a.label("K1_LD_MID2")
    a("s_waitcnt vmcnt(19)")
    a("s_barrier")
    issueW(sWs, sWg, vWo); nextW()
    kpf(KPF)
    a(f"s_add_u32 s{sP}, s{sP}, 1")
    a(f"s_cmp_lt_u32 s{sP}, 6")
    a("s_cbranch_scc1 K1_LD_LOOP")
    a("s_waitcnt vmcnt(16)")
    a("s_barrier")
    nextX(); issueX(sXs, sXg)
    issueW(sWs, sWg, vWo)
    a("s_waitcnt vmcnt(19)")
    a("s_barrier")
    issueKV_loader(SK, vKoff, 0, 0)
    a("s_waitcnt vmcnt(16)")
    a("s_barrier")
    issueKV_loader(SV, vVoff, 1, 0)
    a("s_waitcnt vmcnt(16)")
    a("s_barrier")
    issueKV_loader(SK, vKoff, 2, 1)
    if TR: a("s_waitcnt vmcnt(16)")
    a("s_barrier")
    issueKV_loader(SV, vVoff, 3, 1)
    if TR:
        for ks in range(8):
            kread(ks)
        if TR == 1: zeroO()
    else:
        a("s_waitcnt vmcnt(8)")

    a.label("K1_JOIN")
    a("s_waitcnt lgkmcnt(0)")
    a(f"s_lshl_b32 s{sA}, s{sTok+1}, 7")
    a(f"s_xor_b32 s{sTok}, s{sTok}, s{sA}")
    a(f"s_or_b32 s{sTok}, s{sTok}, 1")
    if TOUCH:
        a(f"s_cmp_ge_u32 s{sW}, 4")
        a("s_cbranch_scc1 K1_NOTCH")
        a(f"v_lshlrev_b32 v{vKoff}, 7, v0")
        a.label("K1_NOTCH")
    a("s_barrier")
    if TRDIAG: P.stamp(9, force=True)
    for ks in range(8):
        a(f"v_xor_b32 v{vMx}, {ks << 5:#x}, v{vTb}")
        a(f"ds_read_b128 {vr(Q+4*ks,4)}, v{vMx}")
    if not TR:
        for ks in range(8):
            kread(ks)
    a.label("K1_JOIN2")
    if TR != 1: zeroO()
    a(f"s_mov_b32 s{sDk}, 65536")
    a(f"s_cmp_eq_u32 s{sQt}, {0 if opt.get('fix5', 1) else (1 if OPM == 1 else 2)}")
    a(f"s_cselect_b32 s{sTl}, {opt.get('wotstep', 6) if opt.get('wotmode', 2) == 1 else 99}, 99")
    a("s_waitcnt lgkmcnt(0)")
    P.stamp(4)
    a(f"s_cmp_lt_u32 s{sW}, 4")
    a("s_cbranch_scc1 K1_A_BAR")
    if TR: a("s_waitcnt vmcnt(8)")
    a("s_branch K1_B_BAR")

    def rot(sreg):
        a(f"s_add_u32 s{sreg}, s{sreg}, 65536")
        a(f"s_cmp_ge_u32 s{sreg}, 163840")
        a(f"s_cselect_b32 s{sA}, 163840, 0")
        a(f"s_sub_u32 s{sreg}, s{sreg}, s{sA}")

    LIGHT = opt.get("light", 0)
    def ls(k):
        if LIGHT: a(f"s_memtime s[{84+2*k}:{85+2*k}]")
    def step_body(v):
        isB = (v == "B")
        dodma = isB and not (AB & 1)
        def dma(kind, j):
            if not dodma: return
            if kind == 'V':
                a(f"s_add_u32 m0, s{sVn}, s{sL[j]}")
                a(f"s_add_u32 s{sA}, s{sGstep}, s{sG[j]}")
                a(f"buffer_load_dwordx4 v{vVoff}, s[{SV}:{SV+3}], s{sA} offen{NTD} lds")
            else:
                a(f"s_add_u32 m0, s{sKn}, s{sL[j]}")
                a(f"s_add_u32 s{sA}, s{sGstep}, s{sG[j]}")
                a(f"buffer_load_dwordx4 v{vKoff}, s[{SK}:{SK+3}], s{sA} offen{NTD} lds")
        def vreads(kk):
            if AB & 2:
                for _ in range(8): a("s_nop 0")
                return
            for dt in range(4):
                for e in range(2):
                    a(f"ds_read_b64_tr_b16 {vr(F+(kk*4+dt)*4+2*e,2)}, v{VA} offset:{kk*4096+e*2048+dt*256}")
        a.label(f"K1_{v}_TOP")
        a(f"s_waitcnt {'vmcnt(4) ' if isB else ''}lgkmcnt(0)")
        a.label(f"K1_{v}_BAR")
        if PRIO: a(f"s_setprio {PQ}")
        if v == "B" or True: ls(0)
        a("s_barrier")
        ls(1)
        if opt.get("stepprof", 0) and not isB:
            a("s_memtime s[82:83]")
            a(f"s_lshl_b32 s{sA}, s2, 4")
            a(f"s_add_u32 s{sA}, s{sA}, s{sW}")
            a(f"s_lshl_b32 s{sA}, s{sA}, 6")
            a(f"s_lshl_b32 s{sB}, s{sStep}, 2")
            a(f"s_add_u32 s{sA}, s{sA}, s{sB}")
            a(f"s_add_u32 s{sA}, s{sA}, 262144")
            a(f"v_mov_b32 v{vTb}, s{sA}")
            a("s_waitcnt lgkmcnt(0)")
            a(f"v_mov_b32 v{vMx}, s82")
            a("s_mov_b64 exec, 1")
            a(f"buffer_store_dword v{vMx}, v{vTb}, s[{SFL}:{SFL+3}], 0 offen")
            a("s_mov_b64 exec, -1")
        def vread1(n):
            if AB & 2: return
            kk, dt = n >> 2, n & 3
            for e in range(2):
                a(f"ds_read_b64_tr_b16 {vr(F+n*4+2*e,2)}, v{VA} offset:{kk*4096+e*2048+dt*256}")
        DT = opt.get("dmatop", 1)
        if DT:
            for j in range(4): dma('K', j)
        if DT == 2:
            for j in range(4): dma('V', j)
        for ks in range(8):
            cin = vr(NM,16) if ks == 0 else vr(S,16)
            a(f"{MF32} {vr(S,16)}, {vr(F+4*ks,4)}, {vr(Q+4*ks,4)}, {cin}")
            if DT == 3 and ks < 4: dma('V', ks)
            if ks < 7: vread1(ks)
            if ks == 0:
                a(f"v_add_u32 v{KA0}, s{sDk}, v{KA0}")
                a(f"v_add_u32 v{KA1}, s{sDk}, v{KA1}")
                a(f"s_mov_b32 s{sDk}, s{sKc}")
            if ks == 2:
                rot(sKc)
            if ks == 4:
                a(f"s_sub_u32 s{sDk}, s{sKc}, s{sDk}")
                a(f"s_mov_b32 s{sDv}, s{sVc}")
                a(f"s_add_u32 s{sVc}, s{sVc}, 65536")
                a(f"s_cmp_ge_u32 s{sVc}, 163840")
            if ks == 4:
                a(f"s_cselect_b32 s{sA}, 163840, 0")
                a(f"s_sub_u32 s{sVc}, s{sVc}, s{sA}")
            if ks in (1, 3, 5, 6) and not DT:
                dma('K', {1: 0, 3: 1, 5: 2, 6: 3}[ks])
        ls(2)
        if PRIO and PS != PQ: a(f"s_setprio {PS}")
        vread1(7)
        a(f"s_sub_u32 s{sDv}, s{sVc}, s{sDv}")
        a(f"v_add_u32 v{VA}, s{sDv}, v{VA}")
        if not isB and WOT and opt.get("wotmode", 2) == 1:
            a(f"s_cmp_eq_u32 s{sStep}, s{sTl}")
            a("s_cbranch_scc1 K1_A_TOUCH")
            a.label("K1_A_TOUCHR")
            a("s_nop 4")
        else:
            a("s_nop 6")
        a(f"s_cmp_lt_u32 s{sStep}, s{sSafe}")
        a(f"s_cbranch_scc1 K1_{v}_MAX")
        a.label(f"K1_{v}_CONT")
        ls(3)
        for k in range(8):
            if not AB & 8:
                a(f"v_exp_f32 v{S+2*k}, v{S+2*k}")
                a(f"v_exp_f32 v{S+2*k+1}, v{S+2*k+1}")
            if k >= 1 and not AB & 8:
                kk = k - 1
                a(f"v_add_f32 v{vL}, v{vL}, v{S+2*kk}")
                a(f"v_add_f32 v{vL}, v{vL}, v{S+2*kk+1}")
                a(f"v_cvt_pk_bf16_f32 v{S+kk}, v{S+2*kk}, v{S+2*kk+1}")
        a(f"v_add_f32 v{vL}, v{vL}, v{S+14}")
        a(f"v_add_f32 v{vL}, v{vL}, v{S+15}")
        a(f"v_cvt_pk_bf16_f32 v{S+7}, v{S+14}, v{S+15}")
        ls(4)
        if PRIO and PP != PS: a(f"s_setprio {PP}")
        if not LIGHT: a("s_waitcnt lgkmcnt(0)")
        else: a("s_waitcnt lgkmcnt(1)")
        for kk in range(2):
            for dt in range(4):
                n = kk*4 + dt
                a(f"{MF32} {vr(O+16*dt,16)}, {vr(F+(kk*4+dt)*4,4)}, {vr(S+4*kk,4)}, {vr(O+16*dt,16)}")
                if not AB & 4: kread(n)
                if n in (0, 1, 2, 3) and DT < 2:
                    dma('V', n)
                if n == 4:
                    a(f"s_add_u32 s{sStep}, s{sStep}, 1")
                if n == 2 and isB:
                    pass
                if n == 4 and isB:
                    rot(sVn)
                if n == 5 and isB:
                    rot(sKn)
                if n == 6 and isB:
                    a(f"s_add_u32 s{sGstep}, s{sGstep}, 8192")
                    if NS2 != 8: a(f"s_and_b32 s{sGstep}, s{sGstep}, 0xffff")
        ls(5)
        if LIGHT:
            a(f"s_cmp_lg_u32 s{sStep}, 41")
            a(f"s_cbranch_scc1 K1_{v}_NOCOPY")
            a("s_waitcnt lgkmcnt(0)")
            for k in range(6):
                a(f"s_mov_b32 s{96+k}, s{84+2*k}")
            a.label(f"K1_{v}_NOCOPY")
        if isB:
            a(f"s_cmp_lt_u32 s{sStep}, {NS2-2}")
            a("s_cbranch_scc1 K1_B_TOP")
            a(f"s_waitcnt vmcnt({4 if opt.get('fix5', 1) else 0})")
            a("s_branch K1_A_TOP")
        elif opt.get('fix5', 1):
            a(f"s_cmp_ge_u32 s{sStep}, {NS2}")
            a("s_cbranch_scc1 K1_P2_END")
            a(f"s_cmp_lt_u32 s{sW}, 4")
            a("s_cbranch_scc1 K1_A_TOP")
            a("s_waitcnt vmcnt(0)")
            if WOT and opt.get("wotmode", 2) == 2:
                a(f"s_cmp_eq_u32 s{sBr}, 0")
                a(f"s_cselect_b64 s[{STCH}:{STCH+1}], s[{SWOP}:{SWOP+1}], s[50:51]")
                a(f"s_mov_b32 s{STCH+2}, 8388608")
                a(f"v_mbcnt_lo_u32_b32 v{vKoff}, -1, 0")
                a(f"v_mbcnt_hi_u32_b32 v{vKoff}, -1, v{vKoff}")
                a(f"v_lshlrev_b32 v{vKoff}, 7, v{vKoff}")
                a(f"s_lshr_b32 s{sA}, s2, 3")
                a(f"s_lshl_b32 s{sA}, s{sA}, 3")
                a(f"s_add_u32 s{sA}, s{sA}, s{sW}")
                a(f"s_sub_u32 s{sA}, s{sA}, 4")
                a(f"s_lshl_b32 s{sA}, s{sA}, 13")
                a(f"s_lshl_b32 s{sB}, s{sKvh}, 21")
                a(f"s_add_u32 s{sA}, s{sA}, s{sB}")
                a(f"buffer_load_dword v{vVoff}, v{vKoff}, s[{STCH}:{STCH+3}], s{sA} offen")
            a("s_branch K1_A_TOP")
        else:
            a(f"s_cmp_lt_u32 s{sStep}, {NS2}")
            a("s_cbranch_scc1 K1_A_TOP")
            a("s_branch K1_P2_END")
        a.label(f"K1_{v}_MAX")
        a(f"v_max3_f32 v{vMx}, v{S+0}, v{S+1}, v{S+2}")
        a(f"v_max3_f32 v{vTb}, v{S+3}, v{S+4}, v{S+5}")
        a(f"v_max3_f32 v{vMx}, v{vMx}, v{S+6}, v{S+7}")
        a(f"v_max3_f32 v{vTb}, v{vTb}, v{S+8}, v{S+9}")
        a(f"v_max3_f32 v{vMx}, v{vMx}, v{S+10}, v{S+11}")
        a(f"v_max3_f32 v{vTb}, v{vTb}, v{S+12}, v{S+13}")
        a(f"v_max3_f32 v{vMx}, v{vMx}, v{S+14}, v{S+15}")
        a(f"v_max_f32 v{vMx}, v{vMx}, v{vTb}")
        a(f"v_cmp_lt_f32 vcc, s{sThr}, v{vMx}")
        a(f"s_cbranch_vccz K1_{v}_CONT")
        a.label(f"K1_{v}_RARE")
        a(f"v_mov_b32 v{vTb}, v{vMx}")
        a("s_nop 1")
        a(f"v_permlane32_swap_b32 v{vMx}, v{vTb}")
        a(f"v_max_f32 v{vMx}, v{vMx}, v{vTb}")
        a(f"v_max_f32 v{vMx}, s{sFloor}, v{vMx}")
        a(f"v_max_f32 v{vTb}, 0, v{vMx}")
        a(f"v_sub_f32 v{vTb}, 0, v{vTb}")
        a(f"v_exp_f32 v{vTb}, v{vTb}")
        a(f"s_mov_b32 s{sThr}, {f2u(8.0):#x}")
        a(f"s_mov_b32 s{sFloor}, 0")
        for r in range(16):
            a(f"v_sub_f32 v{S+r}, v{S+r}, v{vMx}")
        a(f"v_sub_f32 v{NM}, v{NM}, v{vMx}")
        for r in range(1, 16):
            a(f"v_mov_b32 v{NM+r}, v{NM}")
        a(f"s_cmp_eq_u32 s{sStep}, 0")
        a(f"s_cbranch_scc1 K1_{v}_CONT")
        a(f"v_mul_f32 v{vL}, v{vL}, v{vTb}")
        for r in range(64):
            a(f"v_mul_f32 v{O+r}, v{O+r}, v{vTb}")
        a(f"s_branch K1_{v}_CONT")

    step_body("B")
    step_body("A")
    if WOT and opt.get("wotmode", 2) == 1:
        a.label("K1_A_TOUCH")
        a(f"s_cmp_eq_u32 s{sBr}, 0")
        a(f"s_cselect_b64 s[{STCH}:{STCH+1}], s[{SWOP}:{SWOP+1}], s[50:51]")
        a(f"s_mov_b32 s{STCH+2}, 8388608")
        a(f"v_mbcnt_lo_u32_b32 v{vKoff}, -1, 0")
        a(f"v_mbcnt_hi_u32_b32 v{vKoff}, -1, v{vKoff}")
        if OPM == 1:
            a(f"v_and_b32 v{vVoff}, 3, v{vKoff}")
            a(f"v_lshrrev_b32 v{vKoff}, 2, v{vKoff}")
            a(f"v_lshlrev_b32 v{vKoff}, 11, v{vKoff}")
            a(f"v_lshl_add_u32 v{vKoff}, v{vVoff}, 7, v{vKoff}")
            a(f"s_lshr_b32 s{sA}, s2, 3")
            a(f"s_lshl_b32 s{sA}, s{sA}, 2")
            a(f"s_add_u32 s{sA}, s{sA}, s{sKq}")
            a(f"s_lshl_b32 s{sA}, s{sA}, 16")
            a(f"s_lshl_b32 s{sB}, s{sKvh}, 9")
            a(f"s_add_u32 s{sA}, s{sA}, s{sB}")
            a(f"buffer_load_dword v{vVoff}, v{vKoff}, s[{STCH}:{STCH+3}], s{sA} offen{NTW}")
            a(f"s_add_u32 s{sA}, s{sA}, 32768")
            a(f"buffer_load_dword v{vVoff}, v{vKoff}, s[{STCH}:{STCH+3}], s{sA} offen{NTW}")
        else:
            a(f"v_lshlrev_b32 v{vKoff}, 7, v{vKoff}")
            a(f"s_lshr_b32 s{sA}, s2, 3")
            a(f"s_lshl_b32 s{sA}, s{sA}, 2")
            a(f"s_add_u32 s{sA}, s{sA}, s{sKq}")
            a(f"s_lshl_b32 s{sA}, s{sA}, 14")
            a(f"s_lshl_b32 s{sB}, s{sKvh}, 21")
            a(f"s_add_u32 s{sA}, s{sA}, s{sB}")
            a(f"buffer_load_dword v{vVoff}, v{vKoff}, s[{STCH}:{STCH+3}], s{sA} offen{NTW}")
            a(f"s_add_u32 s{sA}, s{sA}, 8192")
            a(f"buffer_load_dword v{vVoff}, v{vKoff}, s[{STCH}:{STCH+3}], s{sA} offen{NTW}")
        a("s_branch K1_A_TOUCHR")

    a.label("K1_REDO")
    a("s_waitcnt vmcnt(0) lgkmcnt(0)")
    a(f"v_mbcnt_lo_u32_b32 v0, -1, 0")
    a(f"v_mbcnt_hi_u32_b32 v0, -1, v0")
    a("s_barrier")
    patterns()
    _t = (8, 9, 10, 11, 12)
    setup2()
    a(f"s_mov_b32 s{sSafe}, 8")
    a(f"s_cmp_lt_u32 s{sW}, 8")
    a("s_cbranch_scc1 K1_REDO2")
    issueKV_loader(SK, vKoff, 0, 0, "r0")
    issueKV_loader(SV, vVoff, 1, 0, "r1")
    issueKV_loader(SK, vKoff, 2, 1, "r2")
    issueKV_loader(SV, vVoff, 3, 1, "r3")
    a("s_waitcnt vmcnt(8)")
    a.label("K1_REDO2")
    a("s_barrier")
    for ks in range(8):
        kread(ks)
    if TR == 1: zeroO()
    a("s_branch K1_JOIN2")

    a.label("K1_P2_END")
    P.stamp(5)
    FUSED = opt.get("fused", 1)
    SC1 = " sc1" if FUSED else ""
    t0, t1, t2, t3, t4 = NM+2, NM+3, NM+4, NM+5, NM+6
    vLane = NM+7
    FASTC = opt.get("safe", 0) == 0
    STAT, EX, STG = 32768, 36864, (135168 if FASTC else 114688)
    if DO: STAT, EX = 61440, 65536
    BADF = STAT + 3072
    if FUSED:
        a("s_load_dwordx2 s[48:49], s[0:1], 80")
    a(f"v_mbcnt_lo_u32_b32 v{vLane}, -1, 0")
    a(f"v_mbcnt_hi_u32_b32 v{vLane}, -1, v{vLane}")
    def staging_addr():
        if DO: return
        a(f"v_and_b32 v{t2}, 15, v{vLane}")
        a(f"s_lshl_b32 s{sA}, s{sKq}, 2")
        a(f"v_xor_b32 v{t2}, s{sA}, v{t2}")
        a(f"v_lshlrev_b32 v{t2}, 4, v{t2}")
        a(f"v_and_b32 v{t0}, 31, v{vLane}")
        a(f"v_lshl_add_u32 v{t2}, v{t0}, 8, v{t2}")
        a(f"v_lshrrev_b32 v{t0}, 5, v{vLane}")
        a(f"v_lshl_add_u32 v{t2}, v{t0}, 3, v{t2}")
        a(f"s_lshl_b32 s{sA}, s{sQt}, 13")
        a(f"s_add_u32 s{sA}, s{sA}, {STG}")
        a(f"v_add_u32 v{t2}, s{sA}, v{t2}")
    def staging_write(R):
        PK = F
        for g in range(4):
            a(f"v_cvt_pk_bf16_f32 v{PK+2*g}, v{R+4*g}, v{R+4*g+1}")
            a(f"v_cvt_pk_bf16_f32 v{PK+2*g+1}, v{R+4*g+2}, v{R+4*g+3}")
            if DO: continue
            a(f"v_xor_b32 v{t0}, {g << 4}, v{t2}")
            a(f"ds_write_b64 v{t0}, {vr(PK+2*g,2)}")
    if FASTC:
        a(f"s_cmp_lg_u32 s{sSafe}, 0")
        a("s_cbranch_scc1 K1_COMB_GEN")
        a(f"v_mov_b32 v{t1}, v{vL}")
        a(f"v_lshlrev_b32 v{t2}, 4, v{vLane}")
        if opt.get("cv", 1):
            a("s_nop 0")
            a(f"v_permlane32_swap_b32 v{vL}, v{t1}")
            a("s_nop 0")
            a(f"v_add_f32 v{vL}, v{vL}, v{t1}")
        else:
            a(f"s_mul_i32 s{sB}, s{sQt}, {16*2048}")
            a(f"v_permlane32_swap_b32 v{vL}, v{t1}")
            a(f"s_lshl_b32 s{sA}, s{sKq}, 11")
            a(f"s_add_u32 s{sA}, s{sA}, s{sB}")
            a(f"s_add_u32 s{sA}, s{sA}, {EX}")
            a(f"v_add_f32 v{vL}, v{vL}, v{t1}")
            a(f"v_add_u32 v{t1}, s{sA}, v{t2}")
        a(f"v_cmp_ngt_f32 s[82:83], {f2u(2.0**20):#x}, v{vL}" if False else f"v_cmp_ngt_f32 vcc, {f2u(2.0**20):#x}, v{vL}")
        a(f"v_and_b32 v{t0}, 31, v{vLane}")
        a("s_nop 0")
        a(f"s_mov_b64 s[82:83], vcc")
        a(f"v_cmp_nlt_f32 vcc, {f2u(2.0**-20):#x}, v{vL}")
        a("s_nop 1")
        a(f"s_or_b64 vcc, vcc, s[82:83]")
        a(f"s_cmp_lg_u64 vcc, 0")
        a(f"s_cselect_b32 s{sD}, 1, 0")
        a(f"v_lshlrev_b32 v{t0}, 4, v{t0}")
        a(f"s_lshl_b32 s{sA}, s{sQt}, 9")
        a(f"s_add_u32 s{sA}, s{sA}, {STAT}")
        a(f"v_add_u32 v{t0}, s{sA}, v{t0}")
        a(f"s_lshl_b32 s{sA}, s{sKq}, 2")
        a(f"v_add_u32 v{t3}, s{sA}, v{t0}")
        a(f"ds_write_b32 v{t3}, v{vL}")
        a(f"s_lshl_b32 s{sA}, s{sW}, 2")
        a(f"s_add_u32 s{sA}, s{sA}, {BADF}")
        a(f"v_mov_b32 v{t3}, s{sA}")
        a(f"v_mov_b32 v{t4}, s{sD}")
        a(f"ds_write_b32 v{t3}, v{t4}")
        a("s_waitcnt lgkmcnt(0)")
        CV = opt.get("cv", 1)
        def selection(A1):
            a(f"v_and_b32 v{t3}, 3, v{vLane}")
            a(f"v_lshlrev_b32 v{t3}, 4, v{t3}")
            a(f"v_mov_b32 v{NM+8}, {0x3f80:#x}")
            a(f"v_mov_b32 v{NM+9}, 0")
            a(f"v_lshlrev_b64 {vr(NM+8,2)}, v{t3}, {vr(NM+8,2)}")
            for r in range(0, 8, 2):
                a(f"v_mov_b64 {vr(A1+r,2)}, 0")
            for k in range(4):
                a(f"s_mov_b32 exec_lo, {0x0f << (8*k):#x}")
                a(f"s_mov_b32 exec_hi, {0xf0 << (8*k):#x}")
                a(f"v_mov_b64 {vr(A1+2*k,2)}, {vr(NM+8,2)}")
            a("s_mov_b64 exec, -1")
        def post_e1_head():
            a(f"v_mov_b32 v{t3}, {BADF}")
            if CDIAG: P.stamp(2, force=2)
            a("s_waitcnt lgkmcnt(0)")
            if CDIAG: P.stamp(3, force=2)
            a("s_barrier")
            if CDIAG: P.stamp(4, force=2)
            for j in range(3):
                a(f"ds_read_b128 {vr(F+4*j,4)}, v{t3} offset:{16*j}")
            a(f"ds_read_b128 {vr(F+12,4)}, v{t0}")
        def check_and_rcp(nt):
            a(f"s_waitcnt lgkmcnt({nt})")
            for j in range(0, 12, 3):
                a(f"v_or3_b32 v{F+j}, v{F+j}, v{F+j+1}, v{F+j+2}")
            a(f"v_or3_b32 v{F}, v{F}, v{F+3}, v{F+6}")
            a(f"v_or_b32 v{F}, v{F}, v{F+9}")
            a(f"v_cmp_ne_u32 vcc, 0, v{F}")
            a("s_cbranch_vccnz K1_REDO")
            a(f"v_add_f32 v{F+12}, v{F+12}, v{F+13}")
            a(f"v_add_f32 v{F+14}, v{F+14}, v{F+15}")
            a(f"v_add_f32 v{F+12}, v{F+12}, v{F+14}")
            a(f"v_rcp_f32 v{F+12}, v{F+12}")
        A1 = S
        if CV:
            selection(A1)
            a(f"s_mul_i32 s{sB}, s{sQt}, {4*3*2048}")
            a(f"s_add_u32 s{sB}, s{sB}, {EX}")
            a(f"v_add_u32 v{t1}, s{sB}, v{t2}")
            for c in range(1, 4):
                a(f"s_cmp_eq_u32 s{sKq}, {c}")
                a(f"s_cbranch_scc1 K1_CV{c}")
            for c in range(4):
                a.label(f"K1_CV{c}")
                n = 0
                for dt in range(4):
                    if dt == c: continue
                    rank = (c - dt - 1) & 3
                    pk = F + 8*n; n += 1
                    for j in range(8):
                        a(f"v_cvt_pk_bf16_f32 v{pk+j}, v{O+16*dt+2*j}, v{O+16*dt+2*j+1}")
                    for g2 in range(2):
                        a(f"ds_write_b128 v{t1}, {vr(pk+4*g2,4)} offset:{dt*6144 + rank*2048 + g2*1024}")
                post_e1_head()
                free = [O + 16*d + 4*x for d in range(4) if d != c for x in range(4)]
                for rk in range(3):
                    for g2 in range(2):
                        a(f"ds_read_b128 {vr(free[2*rk+g2],4)}, v{t1} offset:{c*6144 + rk*2048 + g2*1024}")
                staging_addr()
                check_and_rcp(6)
                R = O + 16*c
                for n in range(6):
                    rk, g2 = n >> 1, n & 1
                    a(f"s_waitcnt lgkmcnt({5-n})")
                    a(f"{MF32} {vr(R,16)}, {vr(A1+4*g2,4)}, {vr(free[2*rk+g2],4)}, {vr(R,16)}")
                a("s_nop 15")
                a("s_nop 3")
                if CDIAG: P.stamp(6, force=2)
                for r in range(0, 16, 2):
                    a(f"v_pk_mul_f32 {vr(R+r,2)}, {vr(R+r,2)}, {vr(F+12,2)} op_sel_hi:[1,0]")
                staging_write(R)
                if c < 3: a("s_branch K1_COMB_DONE")
        else:
            for dt in range(4):
                pk = F + 8*dt
                for j in range(8):
                    a(f"v_cvt_pk_bf16_f32 v{pk+j}, v{O+16*dt+2*j}, v{O+16*dt+2*j+1}")
                for g2 in range(2):
                    a(f"ds_write_b128 v{t1}, {vr(pk+4*g2,4)} offset:{dt*8192 + g2*1024}")
            A1, A2 = S, S+4
            i_, h_ = NM+8, NM+9
            a(f"v_and_b32 v{i_}, 31, v{vLane}")
            a(f"v_lshrrev_b32 v{h_}, 5, v{vLane}")
            a(f"v_bfe_u32 v{t3}, v{i_}, 2, 1")
            a(f"v_cmp_eq_u32 vcc, v{t3}, v{h_}")
            a(f"v_and_b32 v{t3}, 1, v{i_}")
            a(f"v_lshlrev_b32 v{t3}, 4, v{t3}")
            a(f"v_lshlrev_b32 v{t3}, v{t3}, {0x3f80:#x}" if False else f"v_mov_b32 v{t4}, {0x3f80:#x}")
            a(f"v_lshlrev_b32 v{t4}, v{t3}, v{t4}")
            a(f"v_cndmask_b32 v{t4}, 0, v{t4}, vcc")
            a(f"v_bfe_u32 v{t3}, v{i_}, 1, 1")
            a(f"v_lshrrev_b32 v{h_}, 3, v{i_}")
            a(f"v_lshl_or_b32 v{t3}, v{h_}, 1, v{t3}")
            for r in range(8):
                a(f"v_cmp_eq_u32 vcc, {r}, v{t3}")
                a(f"v_cndmask_b32 v{A1+r}, 0, v{t4}, vcc")
            a(f"s_lshl_b32 s{sA}, s{sKq}, 13")
            a(f"s_add_u32 s{sA}, s{sA}, s{sB}")
            a(f"s_add_u32 s{sA}, s{sA}, {EX}")
            a(f"v_add_u32 v{t1}, s{sA}, v{t2}")
            a(f"v_mov_b32 v{t3}, {BADF}")
            if CDIAG: P.stamp(2, force=2)
            a("s_waitcnt lgkmcnt(0)")
            if CDIAG: P.stamp(3, force=2)
            a("s_barrier")
            if CDIAG: P.stamp(4, force=2)
            for j in range(3):
                a(f"ds_read_b128 {vr(F+4*j,4)}, v{t3} offset:{16*j}")
            a(f"ds_read_b128 {vr(F+12,4)}, v{t0}")
            TT = O
            for src in range(4):
                for g2 in range(2):
                    a(f"ds_read_b128 {vr(TT+8*src+4*g2,4)}, v{t1} offset:{src*2048+g2*1024}")
            staging_addr()
            a("s_waitcnt lgkmcnt(8)")
            for j in range(0, 12, 3):
                a(f"v_or3_b32 v{F+j}, v{F+j}, v{F+j+1}, v{F+j+2}")
            a(f"v_or3_b32 v{F}, v{F}, v{F+3}, v{F+6}")
            a(f"v_or_b32 v{F}, v{F}, v{F+9}")
            a(f"v_cmp_ne_u32 vcc, 0, v{F}")
            a("s_cbranch_vccnz K1_REDO")
            R = S + 8 if False else O + 32
            a(f"v_add_f32 v{F+12}, v{F+12}, v{F+13}")
            a(f"v_add_f32 v{F+14}, v{F+14}, v{F+15}")
            a(f"v_add_f32 v{F+12}, v{F+12}, v{F+14}")
            a(f"v_rcp_f32 v{F+12}, v{F+12}")
            for n in range(8):
                src, g2 = n >> 1, n & 1
                a(f"s_waitcnt lgkmcnt({7-n})")
                a(f"{MF32} {vr(R,16)}, {vr(A1+4*g2,4)}, {vr(TT+8*src+4*g2,4)}, {'0' if n == 0 else vr(R,16)}")
            a("s_nop 15")
            a("s_nop 3")
            if CDIAG: P.stamp(6, force=2)
            for r in range(16):
                a(f"v_mul_f32 v{R+r}, v{R+r}, v{F+12}")
            staging_write(R)
        a("s_branch K1_COMB_DONE")
        a.label("K1_COMB_GEN")
    a(f"v_mov_b32 v{t1}, v{vL}")
    ST = NM + 8
    a(f"v_sub_f32 v{ST}, 0, v{NM}")
    a(f"v_and_b32 v{t0}, 31, v{vLane}")
    a(f"v_permlane32_swap_b32 v{vL}, v{t1}")
    a(f"v_add_f32 v{ST+1}, v{vL}, v{t1}")
    a(f"v_cmp_ngt_f32 vcc, {f2u(2.0**20):#x}, v{ST+1}")
    a(f"s_lshl_b32 s{sA}, s{sW}, 2")
    a(f"s_add_u32 s{sA}, s{sA}, {BADF}")
    a(f"v_mov_b32 v{t3}, s{sA}")
    a(f"s_cmp_lg_u64 vcc, 0")
    a(f"s_cselect_b32 s{sA}, 1, 0")
    a(f"s_cmp_eq_u32 s{sSafe}, 1")
    a(f"s_cselect_b32 s{sA}, s{sA}, 0")
    a(f"v_mov_b32 v{t4}, s{sA}")
    a(f"ds_write_b32 v{t3}, v{t4}")
    a(f"v_lshlrev_b32 v{t0}, 3, v{t0}")
    a(f"s_lshl_b32 s{sA}, s{sQt}, 10")
    a(f"s_add_u32 s{sA}, s{sA}, {STAT}")
    a(f"v_add_u32 v{t0}, s{sA}, v{t0}")
    a(f"s_lshl_b32 s{sB}, s{sKq}, 8")
    a(f"v_add_u32 v{t1}, s{sB}, v{t0}")
    R = S
    a(f"v_lshlrev_b32 v{t2}, 4, v{vLane}")
    a(f"s_mul_i32 s{sB}, s{sQt}, {4*3*2048}")
    a(f"s_add_u32 s{sB}, s{sB}, {EX}")
    a(f"ds_write_b64 v{t1}, {vr(ST,2)}")
    a("s_waitcnt lgkmcnt(0)")
    for dt in range(4):
        a(f"s_cmp_eq_u32 s{sKq}, {dt}")
        a(f"s_cbranch_scc1 K1_OWN{dt}")
        a(f"s_sub_u32 s{sA}, s{sKq}, {dt+1}")
        a(f"s_and_b32 s{sA}, s{sA}, 3")
        a(f"s_lshl_b32 s{sA}, s{sA}, 11")
        a(f"s_add_u32 s{sA}, s{sA}, s{sB}")
        a(f"v_add_u32 v{t1}, s{sA}, v{t2}")
        pk = F + 8*dt
        for j in range(8):
            a(f"v_cvt_pk_bf16_f32 v{pk+j}, v{O+16*dt+2*j}, v{O+16*dt+2*j+1}")
        for g2 in range(2):
            a(f"ds_write_b128 v{t1}, {vr(pk+4*g2,4)} offset:{dt*3*2048 + g2*1024}")
        a(f"s_branch K1_NXT{dt}")
        a.label(f"K1_OWN{dt}")
        for r in range(0, 16, 2):
            a(f"v_mov_b64 {vr(R+r,2)}, {vr(O+16*dt+r,2)}")
        a.label(f"K1_NXT{dt}")
    a("s_waitcnt lgkmcnt(0)")
    a("s_barrier")
    a(f"v_mov_b32 v{t1}, {BADF}")
    for j in range(3):
        a(f"ds_read_b128 {vr(F+4*j,4)}, v{t1} offset:{16*j}")
    for rk in range(3):
        a(f"s_add_u32 s{sA}, s{sKq}, {rk+1}")
        a(f"s_and_b32 s{sA}, s{sA}, 3")
        a(f"s_lshl_b32 s{sA}, s{sA}, 8")
        a(f"v_add_u32 v{t1}, s{sA}, v{t0}")
        a(f"ds_read_b64 {vr(ST+2+2*rk,2)}, v{t1}")
    a(f"s_mul_i32 s{sA}, s{sKq}, {3*2048}")
    a(f"s_add_u32 s{sA}, s{sA}, s{sB}")
    a(f"v_add_u32 v{t1}, s{sA}, v{t2}")
    TT = O
    for rk in range(3):
        for g2 in range(2):
            a(f"ds_read_b128 {vr(TT+8*rk+4*g2,4)}, v{t1} offset:{rk*2048+g2*1024}")
    staging_addr()
    a("s_waitcnt lgkmcnt(6)")
    for j in range(0, 12, 3):
        a(f"v_or3_b32 v{F+j}, v{F+j}, v{F+j+1}, v{F+j+2}")
    a(f"v_or3_b32 v{F}, v{F}, v{F+3}, v{F+6}")
    a(f"v_or_b32 v{F}, v{F}, v{F+9}")
    a(f"v_cmp_ne_u32 vcc, 0, v{F}")
    a("s_cbranch_vccnz K1_REDO")
    mf = t3
    a(f"v_max3_f32 v{mf}, v{ST}, v{ST+2}, v{ST+4}")
    a(f"v_max_f32 v{mf}, v{mf}, v{ST+6}")
    for j in range(4):
        a(f"v_sub_f32 v{ST+2*j}, v{ST+2*j}, v{mf}")
    for j in range(4):
        a(f"v_exp_f32 v{ST+2*j}, v{ST+2*j}")
    a("s_nop 0")
    a(f"v_mul_f32 v{t4}, v{ST}, v{ST+1}")
    for j in range(1, 4):
        a(f"v_fma_f32 v{t4}, v{ST+2*j}, v{ST+2*j+1}, v{t4}")
    a(f"v_rcp_f32 v{t4}, v{t4}")
    a("s_nop 0")
    for j in range(4):
        a(f"v_mul_f32 v{ST+2*j}, v{ST+2*j}, v{t4}")
    for r in range(0, 16, 2):
        a(f"v_pk_mul_f32 {vr(R+r,2)}, {vr(R+r,2)}, {vr(ST,2)} op_sel_hi:[1,0]")
    U = O+32
    for rk in range(3):
        a(f"s_waitcnt lgkmcnt({4-2*rk})")
        for j in range(8):
            p = TT + 8*rk + j
            u = U + 2*(j & 3)
            a(f"v_lshlrev_b32 v{u}, 16, v{p}")
            a(f"v_and_b32 v{u+1}, 0xffff0000, v{p}")
            a(f"v_pk_fma_f32 {vr(R+2*j,2)}, {vr(u,2)}, {vr(ST+2+2*rk,2)}, {vr(R+2*j,2)} op_sel_hi:[1,0,1]")
    PK = F
    staging_write(R)
    if FASTC: a.label("K1_COMB_DONE")
    if not FUSED:
        a(f"v_lshrrev_b32 v{t0}, 4, v{vLane}")
        a(f"s_lshl_b32 s{sA}, s{sW}, 3")
        a(f"v_add_u32 v{t0}, s{sA}, v{t0}")
        a(f"v_and_b32 v{t1}, 15, v{vLane}")
        a(f"v_lshlrev_b32 v{t3}, 8, v{t0}")
        a(f"v_lshl_add_u32 v{t3}, v{t1}, 4, v{t3}")
        a(f"v_add_u32 v{t3}, {STG}, v{t3}")
        a(f"v_and_b32 v{t4}, 15, v{t0}")
        a(f"v_xor_b32 v{t1}, v{t1}, v{t4}")
        a(f"s_cmp_ge_u32 s{sW}, 6")
        a(f"s_cselect_b32 s{sA}, {256 - 48*8192}, 0")
        a(f"v_lshlrev_b32 v{t0}, 13, v{t0}")
        a(f"v_add_u32 v{t0}, s{sA}, v{t0}")
        a(f"v_lshl_add_u32 v{t4}, v{t1}, 4, v{t0}")
        a(f"v_xor_b32 v{t1}, 4, v{t1}")
        a(f"v_lshl_add_u32 v{t0}, v{t1}, 4, v{t0}")
        a(f"v_add_u32 v{t0}, {4*8192}, v{t0}")
        a("s_waitcnt lgkmcnt(0)")
        a("s_barrier")
        a(f"ds_read_b128 {vr(PK,4)}, v{t3}")
        a(f"ds_read_b128 {vr(PK+4,4)}, v{t3} offset:1024")
        a("s_waitcnt lgkmcnt(1)")
        a(f"buffer_store_dwordx4 {vr(PK,4)}, v{t4}, s[{SO}:{SO+3}], 0 offen")
        a("s_waitcnt lgkmcnt(0)")
        a(f"buffer_store_dwordx4 {vr(PK+4,4)}, v{t0}, s[{SO}:{SO+3}], 0 offen")
        P.stamp(6)
        if PROF: a("s_waitcnt vmcnt(0)")
        P.stamp(7)
        P.stamp(8, real=True)
        if LIGHT:
            for k in range(6):
                a(f"s_mov_b32 s{84+2+k}, s{96+k}")
        P.dump(52, sW, 64 << 20, 12)
        if opt.get("padto", 0):
            a.label("K1_PAD")
            a("s_memrealtime s[82:83]")
            a("s_waitcnt lgkmcnt(0)")
            a("s_sub_u32 s82, s82, s100")
            a(f"s_cmp_lt_u32 s82, {opt['padto']}")
            a("s_cbranch_scc1 K1_PAD")
        a.label("K1_END")
        a("s_endpgm")
        return NV
    a(f"v_mov_b32 v0, v{vLane}")
    if DO:
        a(f"v_lshlrev_b32 v{t0}, 4, v0")
        a(f"s_lshl_b32 s{sA}, s{sW}, 11")
        for g2 in range(2):
            a(f"buffer_store_dwordx4 {vr(PK+4*g2,4)}, v{t0}, s[{SO}:{SO+3}], s{sA} offen offset:{g2*1024} sc1")
        P.stamp(6)
        a(f"s_cmp_ge_u32 s{sW}, 8")
        a("s_cbranch_scc1 O3_LOADER")
        a("s_waitcnt vmcnt(0)")
        a("s_barrier")
        P.stamp(7)
        outproj3(a, opt, P)
        a.label("K1_END")
        a("s_endpgm")
        return NV
    if OPM == 1:
        a(f"s_cmp_ge_u32 s{sW}, 8")
        a(f"s_cselect_b32 s{sA}, 4, 0")
        a(f"s_sub_u32 s{sE}, s{sW}, s{sA}")
        a(f"s_mul_i32 s{sE}, s{sE}, 12")
    else:
        a(f"s_mul_i32 s{sE}, s{sW}, 12")
    a(f"v_lshrrev_b32 v{t0}, 4, v0")
    a(f"v_and_b32 v{t1}, 15, v0")
    a(f"v_lshlrev_b32 v{t3}, 8, v{t0}")
    a(f"v_lshl_add_u32 v{t3}, v{t1}, 4, v{t3}")
    a(f"s_lshl_b32 s{sA}, s{sE}, 8")
    a(f"s_add_u32 s{sA}, s{sA}, {STG}")
    a(f"v_add_u32 v{t3}, s{sA}, v{t3}")
    a(f"v_xor_b32 v{t1}, v{t1}, v{t0}")
    a(f"v_lshlrev_b32 v{t0}, 13, v{t0}")
    a("s_waitcnt lgkmcnt(0)")
    if CDIAG: P.stamp(7, force=2)
    a("s_barrier")
    if CDIAG: P.stamp(9, force=2)
    if OPM == 1:
        a(f"s_cmp_lt_u32 s{sQt}, 1")
        a("s_cbranch_scc1 K1_STORE")
        a(f"s_cmp_lt_u32 s{sQt}, 2")
        a("s_cbranch_scc1 OP_LOADER0")
    else:
        a(f"s_cmp_ge_u32 s{sW}, 8")
        a("s_cbranch_scc1 O3_LOADER")
    a.label("K1_STORE")
    for j in range(3):
        a(f"ds_read_b128 {vr(PK+4*j,4)}, v{t3} offset:{j*1024}")
    a(f"s_cmp_ge_u32 s{sE}, 48")
    a(f"s_cselect_b32 s{sB}, {256 - 48*8192}, 0")
    for j in range(3):
        a(f"s_add_u32 s{sA}, s{sE}, {4*j}")
        a(f"s_and_b32 s{sD}, s{sA}, 12")
        a(f"v_xor_b32 v{t4}, s{sD}, v{t1}")
        a(f"v_lshl_add_u32 v{t4}, v{t4}, 4, v{t0}")
        a(f"s_lshl_b32 s{sA}, s{sA}, 13")
        a(f"s_add_u32 s{sA}, s{sA}, s{sB}")
        a(f"s_waitcnt lgkmcnt({2-j})")
        a(f"buffer_store_dwordx4 {vr(PK+4*j,4)}, v{t4}, s[{SO}:{SO+3}], s{sA} offen{'' if opt.get('loc', 0) & 1 else ' sc1'}")
    P.stamp(6)
    if CDIAG: P.stamp(10, force=2)
    a("s_waitcnt vmcnt(0)")
    a("s_barrier")
    if CDIAG: P.stamp(11, force=2)
    P.stamp(7)
    if OPM == 1:
        outproj(a, opt, P, fused=True)
    else:
        outproj3(a, opt, P)
    a.label("K1_END")
    a("s_endpgm")
    return NV

def kernel2(a, opt):
    a.label("k2_kernel")
    a("s_cmp_ge_u32 s2, 256")
    a("s_cbranch_scc1 K2_END")
    P = Prof(a, 64, 62, 40)
    P.init(12)
    P.stamp(0, real=True)
    P.stamp(1)
    a("s_load_dwordx2 s[36:37], s[0:1], 32")
    a("s_load_dwordx2 s[50:51], s[0:1], 72")
    a("s_load_dwordx2 s[48:49], s[0:1], 80")
    a("s_load_dwordx2 s[52:53], s[0:1], 96")
    a("v_lshrrev_b32 v1, 6, v0")
    a("v_and_b32 v0, 63, v0")
    a("v_readfirstlane_b32 s4, v1")
    a("s_and_b32 s5, s2, 3")
    a("s_bfe_u32 s6, s2, 0x10002")
    a("s_lshr_b32 s7, s2, 5")
    a("s_bfe_u32 s3, s2, 0x20003")
    a("s_waitcnt lgkmcnt(0)")
    nv = outproj(a, opt, P, fused=False)
    a.label("K2_END")
    a("s_endpgm")
    return nv

def outproj3(a, opt, P):
    F1L, SEC = flaglayout(opt)
    DO = direct_o(opt)
    sW = 4
    SX, SWO, SO, SFL, SPX = 8, 12, 16, 28, 24
    sA, sB, sD, sLam = 20, 21, 22, 23
    sP, sSl, sSlX, sWg, sXg, sT = 32, 33, 34, 35, 38, 39
    NS, STG = 5, 28672
    PXOFF = 16 << 20
    t0, t1, t2, t3, t4 = 8, 9, 10, 11, 12
    WA, XA = 2, 14
    FBUF = [24, 64]
    ACC = 104
    RX = 24
    vWo, vXo, vPoll, vPa = 20, 21, 22, 23
    a(f"s_cmp_lg_u32 s{sW}, 0")
    a("s_cbranch_scc1 O3_NOFLAG")
    a(f"s_lshl_b32 s{sA}, s46, 2")
    a(f"s_add_u32 s{sA}, s{sA}, s45")
    a(f"v_mov_b32 v{t0}, s96")
    if F1L:
        a(f"v_lshl_add_u32 v{t1}, v0, 7, s{sA}")
        a("s_mov_b64 exec, 0xff")
    else:
        a(f"v_mov_b32 v{t1}, s{sA}")
        a("s_mov_b64 exec, 1")
    a(f"buffer_store_dword v{t0}, v{t1}, s[{SFL}:{SFL+3}], 0 offen{'' if opt.get('loc', 0) & 2 else ' sc1'}")
    a("s_mov_b64 exec, -1")
    a.label("O3_NOFLAG")
    a(f"v_bfe_u32 v{t0}, v0, 2, 2")
    a(f"v_lshrrev_b32 v{t1}, 4, v0")
    a(f"v_and_b32 v{t2}, 1, v{t1}")
    a(f"v_lshl_or_b32 v{t2}, v{t2}, 2, v{t0}")
    a(f"s_and_b32 s{sA}, s{sW}, 3")
    a(f"s_lshl_b32 s{sA}, s{sA}, 1")
    a(f"v_xor_b32 v{t2}, s{sA}, v{t2}")
    if DO:
        a(f"v_lshrrev_b32 v{t3}, 1, v{t1}")
        a(f"v_lshlrev_b32 v{t3}, 4, v{t3}")
        a(f"v_and_b32 v{t4}, 1, v{t1}")
        a(f"v_lshl_add_u32 v{t3}, v{t4}, 2, v{t3}")
        a(f"v_add_u32 v{t3}, v{t3}, v{t0}")
    else:
        a(f"v_lshl_add_u32 v{t3}, v{t1}, 3, v{t0}")
    a(f"v_lshlrev_b32 v{t3}, 8, v{t3}")
    a(f"v_lshl_add_u32 v{t3}, v{t2}, 5, v{t3}")
    a(f"v_and_b32 v{t4}, 3, v0")
    a(f"v_lshl_add_u32 v{WA}, v{t4}, 3, v{t3}")
    a(f"v_xor_b32 v{WA+1}, 32, v{WA}")
    a(f"v_and_b32 v{t0}, 15, v0")
    if DO:
        a(f"v_mul_u32_u24 v{t2}, 1536, v{t1}")
        a(f"v_lshl_add_u32 v{t2}, v{t0}, 4, v{t2}")
        a(f"s_lshr_b32 s{sA}, s{sW}, 2")
        a(f"s_mul_i32 s{sA}, s{sA}, 768")
        a(f"s_add_u32 s{sA}, s{sA}, 16384")
        a(f"v_add_u32 v{XA}, s{sA}, v{t2}")
    else:
        a(f"v_lshrrev_b32 v{t2}, 1, v{t0}")
        a(f"v_xor_b32 v{t2}, v{t1}, v{t2}")
        a(f"v_lshlrev_b32 v{t2}, 4, v{t2}")
        a(f"v_lshl_add_u32 v{t2}, v{t0}, 7, v{t2}")
        a(f"s_lshr_b32 s{sA}, s{sW}, 2")
        a(f"s_mul_i32 s{sA}, s{sA}, 6144")
        a(f"s_add_u32 s{sA}, s{sA}, 16384")
        a(f"v_add_u32 v{XA}, s{sA}, v{t2}")
        a(f"v_xor_b32 v{XA+1}, 64, v{XA}")
    for r in range(0, 24, 2):
        a(f"v_mov_b64 {vr(ACC+r,2)}, 0")
    def read_list(buf):
        fb = FBUF[buf]
        L = []
        for ks in range(2):
            for tt in range(2):
                for e in range(2):
                    L.append(f"ds_read_b64_tr_b16 {vr(fb + (tt*2+ks)*4 + e*2, 2)}, v{WA+tt} offset:{ks*8192 + e*(2048 if DO else 1024)}")
            for rt in range(3):
                if DO: L.append(f"ds_read_b128 {vr(fb + 16 + (rt*2+ks)*4, 4)}, v{XA} offset:{ks*6144 + rt*256}")
                else: L.append(f"ds_read_b128 {vr(fb + 16 + (rt*2+ks)*4, 4)}, v{XA+ks} offset:{rt*2048}")
        return L
    def mfma_list(buf):
        fb = FBUF[buf]
        L = []
        for ks in range(2):
            for rt in range(3):
                for tt in range(2):
                    acc = ACC + (tt*3+rt)*4
                    L.append(f"{MF16} {vr(acc,4)}, {vr(fb+(tt*2+ks)*4,4)}, {vr(fb+16+(rt*2+ks)*4,4)}, {vr(acc,4)}")
        return L
    def reads(buf):
        for x in read_list(buf): a(x)
    def mfmas(buf):
        for x in mfma_list(buf): a(x)
    def both(rbuf, mbuf):
        R, M = read_list(rbuf), mfma_list(mbuf)
        if opt.get("pw", 1):
            pat = {1: [2,1,1,2,1,1,2,1,1,2,0,0], 2: [1,1,1,1,1,1,2,2,2,2,0,0], 3: [2]*7+[0]*5}[opt.get("pw", 1)]
            k = 0
            for n in range(12):
                if n == 6: a(f"s_waitcnt lgkmcnt({k})")
                a(M[n])
                for x in R[k:k+pat[n]]: a(x)
                k += pat[n]
                if n == 10: adv()
            return
        if opt.get("fl", 3) & 1:
            per = opt.get("flo", 2)
            for n in range(12):
                a(M[n])
                for x in R[per*n:per*n+per]: a(x)
                if n == 8: adv()
            return
        for n in range(12):
            a(M[n])
            a(R[n])
            if n in (5, 11): a(R[12 + (n == 11)])
        adv()
    def adv():
        a(f"s_add_u32 s{sA}, s{sSl}, {STG}")
        a(f"s_cmp_ge_u32 s{sA}, {NS*STG}")
        a(f"s_cselect_b32 s{sB}, {NS*STG}, 0")
        a(f"s_sub_u32 s{sA}, s{sA}, s{sB}")
        a(f"s_sub_u32 s{sD}, s{sA}, s{sSl}")
        a(f"s_mov_b32 s{sSl}, s{sA}")
        for v in ((WA, WA+1, XA) if DO else (WA, WA+1, XA, XA+1)):
            a(f"v_add_u32 v{v}, s{sD}, v{v}")
    a(f"s_mov_b32 s{sSl}, 0")
    EX2 = opt.get("ex", 3) >= 2
    EX4 = opt.get("ex", 3) == 4
    EX3 = opt.get("ex", 3) == 3 or EX4
    PPOLL = opt.get("ppoll", 0)
    vTk, vTa, vPl = 128, 129, 130
    def poll_pipe(uid, addr, execmask, want, first_sleep, D=4, slp=0):
        a(f"s_mov_b64 exec, {execmask}")
        a(f"s_mov_b32 s{sP}, 0")
        for k in range(D):
            a(f"buffer_load_dword v{vPl+k}, v{addr}, s[{SFL}:{SFL+3}], 0 offen sc1")
            if k < D-1: a(f"s_sleep {first_sleep}")
        a.label(f"O3_PP{uid}")
        for k in range(D):
            a(f"s_waitcnt vmcnt({D-1})")
            a(f"v_cmp_eq_u32 vcc, s96, v{vPl+k}")
            a("s_nop 1")
            a(f"s_and_b32 s{sD}, vcc_lo, {want}")
            a(f"s_cmp_eq_u32 s{sD}, {want}")
            a(f"s_cbranch_scc1 O3_PP{uid}_OK")
            if slp: a(f"s_sleep {slp}")
            a(f"buffer_load_dword v{vPl+k}, v{addr}, s[{SFL}:{SFL+3}], 0 offen sc1")
        a(f"s_add_u32 s{sP}, s{sP}, 1")
        a(f"s_cmp_lt_u32 s{sP}, 100000")
        a(f"s_cbranch_scc1 O3_PP{uid}")
        a.label(f"O3_PP{uid}_OK")
        a("s_mov_b64 exec, -1")
    if EX2 and not EX3:
        a(f"s_lshl_b32 s{sA}, s{sW}, 7")
        a(f"s_add_u32 s{sA}, s{sA}, s47")
        a(f"s_add_u32 s{sA}, s{sA}, 64")
        a(f"v_mov_b32 v{vTa}, s{sA}")
        a(f"v_mov_b32 v{vTk}, 1")
    vNon = 131
    if EX4:
        a(f"s_lshl_b32 s{sA}, s{sW}, 7")
        a(f"s_add_u32 s{sA}, s{sA}, s47")
        a(f"v_lshl_add_u32 v{t0}, v0, 2, s{sA}")
        a("s_mov_b64 exec, 15")
        a(f"buffer_load_dword v{vNon}, v{t0}, s[{SFL}:{SFL+3}], 0 offen sc1")
        a("s_mov_b64 exec, -1")
    if PPOLL:
        a(f"s_cmp_lg_u32 s{sW}, 1")
        a("s_cbranch_scc1 O3_NOPOLL1")
        a(f"v_lshlrev_b32 v{t0}, 2, v0")
        a(f"v_add_u32 v{t0}, s45, v{t0}")
        if F1L:
            a(f"s_lshl_b32 s{sA}, s46, 7")
            a(f"v_add_u32 v{t0}, s{sA}, v{t0}")
        poll_pipe(1, t0, "0xff", "0xff", opt.get("psl", 8), opt.get("pd1", 1), opt.get("pslp1", 2))
        a.label("O3_NOPOLL1")
    a("s_barrier")
    a("s_barrier")
    P.stamp(9)
    reads(0); adv()
    a("s_waitcnt lgkmcnt(0)")
    a(f"s_mov_b32 s{sP}, 0")
    a.label("O3_C_LOOP")
    for half in range(2):
        a("s_barrier")
        if EX2 and not EX3 and half == opt.get("tkh", 0):
            a(f"s_cmp_eq_u32 s{sP}, {opt.get('tkp', 6)}")
            a("s_cbranch_scc1 O3_TICKET")
            a.label("O3_TICKETR")
        both(1-half, half)
        a(f"s_waitcnt lgkmcnt({7 if opt.get('pw', 1) else 0})")
        if half == 0:
            a(f"s_cmp_eq_u32 s{sP}, 7")
            a("s_cbranch_scc1 O3_C_DONE")
    a(f"s_add_u32 s{sP}, s{sP}, 1")
    a("s_branch O3_C_LOOP")
    a.label("O3_C_DONE")
    if opt.get('pw', 1):
        ML = mfma_list(1)
        for x in ML[:6]: a(x)
        a("s_waitcnt lgkmcnt(0)")
        for x in ML[6:]: a(x)
    else:
        mfmas(1)
    P.stamp(10)
    def out_addr():
        a(f"s_lshr_b32 s{sA}, s7, 1")
        a(f"s_mul_i32 s{sA}, s{sA}, 96")
        a(f"s_lshr_b32 s{sD}, s{sW}, 2")
        a(f"s_mul_i32 s{sD}, s{sD}, 48")
        a(f"s_add_u32 s{sA}, s{sA}, s{sD}")
        a(f"s_lshl_b32 s{sA}, s{sA}, 12")
        a(f"s_lshl_b32 s{sD}, s6, 11")
        a(f"s_add_u32 s{sA}, s{sA}, s{sD}")
        a(f"s_lshl_b32 s{sD}, s46, 8")
        a(f"s_add_u32 s{sA}, s{sA}, s{sD}")
        a(f"s_and_b32 s{sD}, s{sW}, 3")
        a(f"s_lshl_b32 s{sD}, s{sD}, 6")
        a(f"s_add_u32 s{sA}, s{sA}, s{sD}")
        a(f"s_mov_b32 s{SO}, s48")
        a(f"s_mov_b32 s{SO+1}, s49")
        a(f"s_mov_b32 s{SO+2}, {8*48*2048*2}")
        a(f"s_mov_b32 s{SO+3}, 0x20000")
        a(f"v_and_b32 v{t1}, 15, v0")
        a(f"v_lshrrev_b32 v{t2}, 4, v0")
        a(f"v_lshlrev_b32 v{t1}, 12, v{t1}")
        a(f"v_lshl_add_u32 v{t1}, v{t2}, 3, v{t1}")
    def out_store():
        for tt in range(2):
            for rt in range(3):
                acc = ACC + (tt*3+rt)*4
                a(f"v_cvt_pk_bf16_f32 v{acc}, v{acc}, v{acc+1}")
                a(f"v_cvt_pk_bf16_f32 v{acc+1}, v{acc+2}, v{acc+3}")
                a(f"s_add_u32 s{sD}, s{sA}, {rt*16*4096}")
                a(f"buffer_store_dwordx2 {vr(acc,2)}, v{t1}, s[{SO}:{SO+3}], s{sD} offen offset:{tt*32}{['', ' sc1', ' nt', ' sc0 sc1', ' sc1 nt'][opt.get('outsc', 2)]}")
    if EX4:
        a(f"s_sub_u32 s{sA}, s47, {SEC}")
        a(f"s_lshr_b32 s{sA}, s{sA}, 10")
        a(f"s_lshl_b32 s{sA}, s{sA}, 3")
        a(f"s_add_u32 s{sA}, s{sA}, s{sW}")
        a(f"s_lshl_b32 s{sA}, s{sA}, 14")
        a(f"s_add_u32 s{sA}, s{sA}, {PXOFF}")
        a(f"s_add_u32 s{SPX}, s52, s{sA}")
        a(f"s_addc_u32 s{SPX+1}, s53, 0")
        a(f"s_mov_b32 s{SPX+2}, 16384")
        a(f"s_mov_b32 s{SPX+3}, 0x20000")
        a(f"v_lshlrev_b32 v{t0}, 4, v0")
        a(f"s_and_b32 s{sT}, s{sW}, 3")
        a(f"s_cmp_eq_u32 s{sT}, s5")
        a("s_cbranch_scc1 O3_LAST")
        for j in range(4):
            for k in range(3):
                p = 3*j + k
                a(f"v_cvt_pk_bf16_f32 v{RX+4*j+k}, v{ACC+2*p}, v{ACC+2*p+1}")
            a(f"v_mov_b32 v{RX+4*j+3}, s100")
        a(f"s_lshl_b32 s{sA}, s5, 12")
        for j in range(4):
            a(f"buffer_store_dwordx4 {vr(RX+4*j,4)}, v{t0}, s[{SPX}:{SPX+3}], s{sA} offen offset:{j*1024} sc1")
        P.stamp(11)
        P.stamp(8, real=True)
        P.dump(52, sW, 64 << 20, 12)
        a("s_endpgm")
        a.label("O3_LAST")
        a(f"v_lshlrev_b32 v{t1}, 12, v0")
        a(f"v_add_u32 v{t1}, {3*1024 + opt.get('lpg', 0)*16 + 12}, v{t1}")
        a(f"s_lshl_b32 s{sB}, 1, s5")
        a(f"s_xor_b32 s{sB}, s{sB}, 15")
        a(f"s_mov_b32 s{sP}, 0")
        a("s_mov_b64 exec, 15")
        a.label("O3_LP")
        a(f"buffer_load_dword v{vPl}, v{t1}, s[{SPX}:{SPX+3}], 0 offen sc1")
        a("s_waitcnt vmcnt(0)")
        a(f"v_cmp_eq_u32 vcc, v{vNon}, v{vPl}")
        a("s_nop 1")
        a(f"s_and_b32 s{sD}, vcc_lo, s{sB}")
        a(f"s_cmp_eq_u32 s{sD}, s{sB}")
        a("s_cbranch_scc1 O3_LP_OK")
        a(f"s_sleep {opt.get('pslp2', 2)}")
        a(f"s_add_u32 s{sP}, s{sP}, 1")
        a(f"s_cmp_lt_u32 s{sP}, 200000")
        a("s_cbranch_scc1 O3_LP")
        a.label("O3_LP_OK")
        a("s_mov_b64 exec, -1")
        P.stamp(4)
        if PROF: a(f"s_mov_b32 s{P.base+2}, s{sP}")
        sN = [34, 35, 38]
        sOf = [40, 41, 42]
        def loads(r):
            for j in range(4):
                a(f"buffer_load_dwordx4 {vr(RX+16*r+4*j,4)}, v{t0}, s[{SPX}:{SPX+3}], s{sOf[r]} offen offset:{j*1024} sc1")
        for r in range(3):
            a(f"s_add_u32 s{sA}, s5, {r+1}")
            a(f"s_and_b32 s{sA}, s{sA}, 3")
            a(f"s_lshl_b32 s{sOf[r]}, s{sA}, 12")
            loads(r)
            a(f"v_readlane_b32 s{sN[r]}, v{vNon}, s{sA}")
        out_addr()
        U = RX + 48
        a(f"s_mov_b32 s{sP}, 0")
        for r in range(3):
            a(f"s_waitcnt vmcnt({8 - 4*r})")
            a.label(f"O3_CHK{r}")
            b = RX + 16*r
            for j in range(4):
                a(f"v_xor_b32 v{U+j}, s{sN[r]}, v{b+4*j+3}")
            a(f"v_or3_b32 v{U}, v{U}, v{U+1}, v{U+2}")
            a(f"v_or_b32 v{U}, v{U}, v{U+3}")
            a(f"v_cmp_ne_u32 vcc, 0, v{U}")
            a(f"s_cbranch_vccnz O3_RETRY{r}")
            a.label(f"O3_GOOD{r}")
            for j in range(4):
                for k in range(3):
                    p = b + 4*j + k
                    u = U + 2*k
                    a(f"v_lshlrev_b32 v{u}, 16, v{p}")
                    a(f"v_and_b32 v{u+1}, 0xffff0000, v{p}")
                for k in range(3):
                    u = U + 2*k
                    d = ACC + 2*(3*j + k)
                    a(f"v_pk_add_f32 {vr(d,2)}, {vr(d,2)}, {vr(u,2)}")
        P.stamp(5)
        out_store()
        P.stamp(11)
        P.stamp(8, real=True)
        P.dump(52, sW, 64 << 20, 12)
        a("s_endpgm")
        for r in range(3):
            a.label(f"O3_RETRY{r}")
            a(f"s_add_u32 s{sP}, s{sP}, 1")
            a(f"s_cmp_ge_u32 s{sP}, 200000")
            a(f"s_cbranch_scc1 O3_GOOD{r}")
            loads(r)
            a("s_waitcnt vmcnt(0)")
            a(f"s_branch O3_CHK{r}")
    if EX2 and not EX4:
        a(f"s_sub_u32 s{sA}, s47, {SEC}")
        a(f"s_lshr_b32 s{sA}, s{sA}, 10")
        a(f"s_lshl_b32 s{sA}, s{sA}, 3")
        a(f"s_add_u32 s{sA}, s{sA}, s{sW}")
        a(f"s_mul_i32 s{sA}, s{sA}, {4*3072}")
        a(f"s_add_u32 s{sA}, s{sA}, {PXOFF}")
        a(f"s_add_u32 s{SPX}, s52, s{sA}")
        a(f"s_addc_u32 s{SPX+1}, s53, 0")
        a(f"s_mov_b32 s{SPX+2}, {4*3072}")
        a(f"s_mov_b32 s{SPX+3}, 0x20000")
        a(f"v_lshlrev_b32 v{t0}, 4, v0")
        a(f"s_lshl_b32 s{sB}, s{sW}, 7")
        a(f"s_add_u32 s{sB}, s{sB}, s47")
        if EX3:
            a(f"s_and_b32 s{sT}, s{sW}, 3")
            a(f"s_cmp_eq_u32 s{sT}, s5")
        else:
            a("s_waitcnt vmcnt(0)")
            a(f"v_readfirstlane_b32 s{sT}, v{vTk}")
            a("s_nop 3")
            a(f"s_cmp_eq_u32 s{sT}, 3")
        a("s_cbranch_scc1 O3_LAST")
        for k in range(12):
            a(f"v_cvt_pk_bf16_f32 v{RX+k}, v{ACC+2*k}, v{ACC+2*k+1}")
        a(f"s_mul_i32 s{sA}, s5, 3072")
        for j in range(3):
            a(f"buffer_store_dwordx4 {vr(RX+4*j,4)}, v{t0}, s[{SPX}:{SPX+3}], s{sA} offen offset:{j*1024} sc1")
        a(f"s_lshl_b32 s{sA}, s5, 2")
        a(f"s_add_u32 s{sA}, s{sA}, s{sB}")
        a(f"v_mov_b32 v{t1}, s96")
        a(f"v_mov_b32 v{t2}, s{sA}")
        a("s_waitcnt vmcnt(0)")
        P.stamp(3)
        a("s_mov_b64 exec, 1")
        a(f"buffer_store_dword v{t1}, v{t2}, s[{SFL}:{SFL+3}], 0 offen sc1")
        a("s_mov_b64 exec, -1")
        P.stamp(11)
        P.stamp(8, real=True)
        P.dump(52, sW, 64 << 20, 12)
        a("s_endpgm")
        if not EX3:
            a.label("O3_TICKET")
            a("s_mov_b64 exec, 1")
            a(f"buffer_atomic_add v{vTk}, v{vTa}, s[{SFL}:{SFL+3}], 0 offen sc0 sc1")
            a("s_mov_b64 exec, -1")
            a("s_branch O3_TICKETR")
        a.label("O3_LAST")
        a(f"v_lshlrev_b32 v{t1}, 2, v0")
        a(f"v_add_u32 v{t1}, s{sB}, v{t1}")
        a(f"s_lshl_b32 s{sB}, 1, s5")
        a(f"s_xor_b32 s{sB}, s{sB}, 15")
        poll_pipe(2, t1, "15", f"s{sB}", opt.get("psl2", 8), opt.get("pd2", 1), opt.get("pslp2", 2))
        P.stamp(4)
        if PROF: a(f"s_mov_b32 s{P.base+2}, s{sP}")
        for r in range(3):
            a(f"s_add_u32 s{sA}, s5, {r+1}")
            a(f"s_and_b32 s{sA}, s{sA}, 3")
            a(f"s_mul_i32 s{sA}, s{sA}, 3072")
            for j in range(3):
                a(f"buffer_load_dwordx4 {vr(RX+12*r+4*j,4)}, v{t0}, s[{SPX}:{SPX+3}], s{sA} offen offset:{j*1024} sc1")
        a(f"s_lshr_b32 s{sA}, s7, 1")
        a(f"s_mul_i32 s{sA}, s{sA}, 96")
        a(f"s_lshr_b32 s{sD}, s{sW}, 2")
        a(f"s_mul_i32 s{sD}, s{sD}, 48")
        a(f"s_add_u32 s{sA}, s{sA}, s{sD}")
        a(f"s_lshl_b32 s{sA}, s{sA}, 12")
        a(f"s_lshl_b32 s{sD}, s6, 11")
        a(f"s_add_u32 s{sA}, s{sA}, s{sD}")
        a(f"s_lshl_b32 s{sD}, s46, 8")
        a(f"s_add_u32 s{sA}, s{sA}, s{sD}")
        a(f"s_and_b32 s{sD}, s{sW}, 3")
        a(f"s_lshl_b32 s{sD}, s{sD}, 6")
        a(f"s_add_u32 s{sA}, s{sA}, s{sD}")
        a(f"s_mov_b32 s{SO}, s48")
        a(f"s_mov_b32 s{SO+1}, s49")
        a(f"s_mov_b32 s{SO+2}, {8*48*2048*2}")
        a(f"s_mov_b32 s{SO+3}, 0x20000")
        a(f"v_and_b32 v{t1}, 15, v0")
        a(f"v_lshrrev_b32 v{t2}, 4, v0")
        a(f"v_lshlrev_b32 v{t1}, 12, v{t1}")
        a(f"v_lshl_add_u32 v{t1}, v{t2}, 3, v{t1}")
        U = RX + 36
        for r in range(3):
            for j in range(3):
                a(f"s_waitcnt vmcnt({8 - 3*r - j})")
                for k in range(4):
                    p = RX + 12*r + 4*j + k
                    u = U + 2*k
                    a(f"v_lshlrev_b32 v{u}, 16, v{p}")
                    a(f"v_and_b32 v{u+1}, 0xffff0000, v{p}")
                for k in range(4):
                    u = U + 2*k
                    d = ACC + 2*(4*j + k)
                    a(f"v_pk_add_f32 {vr(d,2)}, {vr(d,2)}, {vr(u,2)}")
        P.stamp(5)
        for tt in range(2):
            for rt in range(3):
                acc = ACC + (tt*3+rt)*4
                a(f"v_cvt_pk_bf16_f32 v{acc}, v{acc}, v{acc+1}")
                a(f"v_cvt_pk_bf16_f32 v{acc+1}, v{acc+2}, v{acc+3}")
                a(f"s_add_u32 s{sD}, s{sA}, {rt*16*4096}")
                a(f"buffer_store_dwordx2 {vr(acc,2)}, v{t1}, s[{SO}:{SO+3}], s{sD} offen offset:{tt*32}{['', ' sc1', ' nt', ' sc0 sc1', ' sc1 nt'][opt.get('outsc', 2)]}")
        P.stamp(11)
        P.stamp(8, real=True)
        P.dump(52, sW, 64 << 20, 12)
        a("s_endpgm")
    if not EX2:
        a(f"s_sub_u32 s{sA}, s47, 16384")
        a(f"s_lshr_b32 s{sA}, s{sA}, 8")
        a(f"s_mul_i32 s{sA}, s{sA}, {16*12288}")
        a(f"s_add_u32 s{sA}, s{sA}, {PXOFF}")
        a(f"s_add_u32 s{SPX}, s52, s{sA}")
        a(f"s_addc_u32 s{SPX+1}, s53, 0")
        a(f"s_mov_b32 s{SPX+2}, {16*12288}")
        a(f"s_mov_b32 s{SPX+3}, 0x20000")
        a(f"v_lshlrev_b32 v{t0}, 4, v0")
        a(f"v_add_u32 v{t3}, 4096, v{t0}")
        a(f"s_and_b32 s{sD}, s{sW}, 3")
        a(f"s_lshr_b32 s{sB}, s{sW}, 2")
        a(f"s_mul_i32 s{sB}, s{sB}, 6144")
        a(f"s_cmp_eq_u32 s{sD}, s5")
        a("s_cbranch_scc1 O3_OWNER")
        a(f"s_lshl_b32 s{sA}, s{sD}, 2")
        a(f"s_add_u32 s{sA}, s{sA}, s5")
        a(f"s_mul_i32 s{sA}, s{sA}, 12288")
        a(f"s_add_u32 s{sA}, s{sA}, s{sB}")
        a("s_nop 4")
        for tile in range(6):
            a(f"buffer_store_dwordx4 {vr(ACC+4*tile,4)}, v{t0 if tile < 4 else t3}, s[{SPX}:{SPX+3}], s{sA} offen offset:{(tile & 3)*1024} sc1")
        a("s_waitcnt vmcnt(0)")
        a("s_barrier")
        a(f"s_cmp_lg_u32 s{sW}, 0")
        a("s_cbranch_scc1 O3_FIN")
        a.label("O3_FLAG2")
        a(f"s_lshl_b32 s{sA}, s5, 2")
        a(f"s_add_u32 s{sA}, s{sA}, s47")
        a(f"v_mov_b32 v{t1}, s96")
        a(f"v_mov_b32 v{t2}, s{sA}")
        a("s_mov_b64 exec, 1")
        a(f"buffer_store_dword v{t1}, v{t2}, s[{SFL}:{SFL+3}], 0 offen sc1")
        a("s_mov_b64 exec, -1")
        a(f"s_cmp_eq_u32 s5, 0")
        a("s_cbranch_scc1 O3_OWN2")
        a.label("O3_FIN")
        P.stamp(11)
        P.stamp(8, real=True)
        P.dump(52, sW, 64 << 20, 12)
        a("s_endpgm")
        a.label("O3_OWNER")
        a("s_barrier")
        a(f"s_cmp_eq_u32 s{sW}, 0")
        a("s_cbranch_scc1 O3_FLAG2")
        a.label("O3_OWN2")
        P.stamp(3)
        a(f"v_lshlrev_b32 v{t1}, 2, v0")
        a(f"v_add_u32 v{t1}, s47, v{t1}")
        a("s_mov_b64 exec, 15")
        a(f"s_mov_b32 s{sP}, 0")
        a.label("O3_POLL2")
        a(f"buffer_load_dword v{t2}, v{t1}, s[{SFL}:{SFL+3}], 0 offen sc1")
        a("s_waitcnt vmcnt(0)")
        a(f"v_cmp_eq_u32 vcc, s96, v{t2}")
        a("s_nop 1")
        a("s_cmp_eq_u32 vcc_lo, 15")
        a("s_cbranch_scc1 O3_POLL2_OK")
        a(f"s_sleep {opt.get('psleep', 2)}")
        a(f"s_add_u32 s{sP}, s{sP}, 1")
        a(f"s_cmp_lt_u32 s{sP}, 400000")
        a("s_cbranch_scc1 O3_POLL2")
        a.label("O3_POLL2_OK")
        a("s_mov_b64 exec, -1")
        P.stamp(4)
        if PROF: a(f"s_mov_b32 s{P.base+2}, s{sP}")
        for r in range(3):
            a(f"s_add_u32 s{sA}, s5, {r+1}")
            a(f"s_and_b32 s{sA}, s{sA}, 3")
            a(f"s_lshl_b32 s{sD}, s5, 2")
            a(f"s_add_u32 s{sA}, s{sA}, s{sD}")
            a(f"s_mul_i32 s{sA}, s{sA}, 12288")
            a(f"s_add_u32 s{sA}, s{sA}, s{sB}")
            for tile in range(6):
                a(f"buffer_load_dwordx4 {vr(RX+24*r+4*tile,4)}, v{t0 if tile < 4 else t3}, s[{SPX}:{SPX+3}], s{sA} offen offset:{(tile & 3)*1024} sc1")
        a(f"s_lshr_b32 s{sA}, s7, 1")
        a(f"s_mul_i32 s{sA}, s{sA}, 96")
        a(f"s_lshr_b32 s{sD}, s{sW}, 2")
        a(f"s_mul_i32 s{sD}, s{sD}, 48")
        a(f"s_add_u32 s{sA}, s{sA}, s{sD}")
        a(f"s_lshl_b32 s{sA}, s{sA}, 12")
        a(f"s_lshl_b32 s{sD}, s6, 11")
        a(f"s_add_u32 s{sA}, s{sA}, s{sD}")
        a(f"s_lshl_b32 s{sD}, s46, 8")
        a(f"s_add_u32 s{sA}, s{sA}, s{sD}")
        a(f"s_lshl_b32 s{sD}, s5, 6")
        a(f"s_add_u32 s{sA}, s{sA}, s{sD}")
        a(f"s_mov_b32 s{SO}, s48")
        a(f"s_mov_b32 s{SO+1}, s49")
        a(f"s_mov_b32 s{SO+2}, {8*48*2048*2}")
        a(f"s_mov_b32 s{SO+3}, 0x20000")
        a(f"v_and_b32 v{t1}, 15, v0")
        a(f"v_lshrrev_b32 v{t2}, 4, v0")
        a(f"v_lshlrev_b32 v{t1}, 12, v{t1}")
        a(f"v_lshl_add_u32 v{t1}, v{t2}, 3, v{t1}")
        for r in range(3):
            a(f"s_waitcnt vmcnt({12-6*r})")
            for k in range(24):
                a(f"v_add_f32 v{ACC+k}, v{ACC+k}, v{RX+24*r+k}")
        P.stamp(5)
        for tt in range(2):
            for rt in range(3):
                acc = ACC + (tt*3+rt)*4
                a(f"v_cvt_pk_bf16_f32 v{acc}, v{acc}, v{acc+1}")
                a(f"v_cvt_pk_bf16_f32 v{acc+1}, v{acc+2}, v{acc+3}")
                a(f"s_add_u32 s{sD}, s{sA}, {rt*16*4096}")
                a(f"buffer_store_dwordx2 {vr(acc,2)}, v{t1}, s[{SO}:{SO+3}], s{sD} offen offset:{tt*32}{['', ' sc1', ' nt', ' sc0 sc1', ' sc1 nt'][opt.get('outsc', 2)]}")
        P.stamp(11)
        P.stamp(8, real=True)
        P.dump(52, sW, 64 << 20, 12)
        a("s_endpgm")

    a.label("O3_LOADER")
    a("s_cmp_eq_u32 s6, 0")
    a(f"s_cselect_b64 s[{SWO}:{SWO+1}], s[36:37], s[50:51]")
    a(f"s_lshl_b32 s{sA}, s5, 21")
    a(f"s_lshl_b32 s{sB}, s46, 8")
    a(f"s_add_u32 s{sA}, s{sA}, s{sB}")
    a(f"s_add_u32 s{SWO}, s{SWO}, s{sA}")
    a(f"s_addc_u32 s{SWO+1}, s{SWO+1}, 0")
    a(f"s_sub_u32 s{SWO+2}, 2097152, s{sB}")
    a(f"s_mov_b32 s{SWO+3}, 0x20000")
    if DO:
        a(f"s_lshl_b32 s{sA}, s6, 2")
        a(f"s_add_u32 s{sA}, s{sA}, s5")
        a(f"s_lshl_b32 s{sA}, s{sA}, 3")
        a(f"s_and_b32 s{sB}, s7, 6")
        a(f"s_add_u32 s{sA}, s{sA}, s{sB}")
        a(f"s_mul_i32 s{sA}, s{sA}, {4*24576}")
        a(f"s_add_u32 s{SX}, s52, s{sA}")
        a(f"s_addc_u32 s{SX+1}, s53, 0")
        a(f"s_mov_b32 s{SX+2}, {8*24576}")
    else:
        a(f"s_lshr_b32 s{sA}, s7, 1")
        a(f"s_mul_i32 s{sA}, s{sA}, 96")
        a(f"s_mul_i32 s{sB}, s6, 384")
        a(f"s_add_u32 s{sA}, s{sA}, s{sB}")
        a(f"s_lshl_b32 s{sA}, s{sA}, 13")
        a(f"s_lshl_b32 s{sB}, s5, 11")
        a(f"s_add_u32 s{sA}, s{sA}, s{sB}")
        a(f"s_add_u32 s{SX}, s52, s{sA}")
        a(f"s_addc_u32 s{SX+1}, s53, 0")
        a(f"s_sub_u32 s{SX+2}, {96*8192}, s{sB}")
    a(f"s_mov_b32 s{SX+3}, 0x20000")
    a(f"s_sub_u32 s{sLam}, s{sW}, 8")
    a(f"v_lshrrev_b32 v{t0}, 4, v0")
    a(f"v_and_b32 v{t1}, 15, v0")
    a(f"s_and_b32 s{sA}, s{sLam}, 1")
    a(f"s_lshl_b32 s{sB}, s{sA}, 2")
    a(f"v_or_b32 v{t2}, s{sB}, v{t0}")
    a(f"v_lshlrev_b32 v{t2}, 1, v{t2}")
    a(f"v_xor_b32 v{t2}, v{t1}, v{t2}")
    a(f"v_lshlrev_b32 v{t2}, 4, v{t2}")
    a(f"v_lshl_add_u32 v{vWo}, v{t0}, 11, v{t2}")
    if DO:
        a(f"s_mov_b32 s{sA}, s{sLam}")
    else:
        a(f"s_lshl_b32 s{sA}, s{sA}, 1")
        a(f"s_lshr_b32 s{sB}, s{sLam}, 1")
        a(f"s_lshl_b32 s{sB}, s{sB}, 2")
        a(f"s_add_u32 s{sA}, s{sA}, s{sB}")
    a(f"s_lshl_b32 s{sB}, s{sA}, 13")
    a(f"v_add_u32 v{vWo}, s{sB}, v{vWo}")
    a(f"s_lshl_b32 s{sSl}, s{sA}, 10")
    a(f"s_add_u32 s{sD}, s{sSl}, {NS*STG}")
    vX = [[24, 25, 26], [27, 28, 29]]
    vXt = [30, 31, 32]
    def x_setup():
        a(f"s_lshr_b32 s{sA}, s{sLam}, 1")
        a(f"s_lshl_b32 s{sA}, s{sA}, 11")
        a(f"s_and_b32 s{sB}, s{sLam}, 1")
        a(f"s_lshl_b32 s{sB}, s{sB}, 10")
        a(f"s_add_u32 s{sA}, s{sA}, s{sB}")
        for j in range(3):
            row, base = t0, t1
            if j == 0:
                a(f"v_mov_b32 v{row}, v0")
                a(f"v_mov_b32 v{base}, s{sA}")
            elif j == 1:
                a(f"v_cmp_gt_u32 vcc, 32, v0")
                a(f"v_add_u32 v{t2}, 64, v0")
                a(f"v_subrev_u32 v{t3}, 32, v0")
                a(f"v_cndmask_b32 v{row}, v{t3}, v{t2}, vcc")
                a(f"v_mov_b32 v{t2}, 512")
                a(f"v_cndmask_b32 v{base}, v{t2}, 0, vcc")
                a(f"v_add_u32 v{base}, s{sA}, v{base}")
            else:
                a(f"v_add_u32 v{row}, 32, v0")
                a(f"v_mov_b32 v{base}, 512")
                a(f"v_add_u32 v{base}, s{sA}, v{base}")
            a(f"v_cmp_le_u32 vcc, 48, v{row}")
            a(f"v_subrev_u32 v{t2}, 48, v{row}")
            a(f"v_cndmask_b32 v{row}, v{row}, v{t2}, vcc")
            a(f"v_add_u32 v{t2}, {4*24576}, v{base}")
            a(f"v_cndmask_b32 v{base}, v{base}, v{t2}, vcc")
            for hd in range(2):
                a(f"v_add_u32 v{t2}, {48*hd}, v{row}")
                a(f"v_lshrrev_b32 v{t3}, 5, v{t2}")
                a(f"v_and_b32 v{t2}, 31, v{t2}")
                a(f"v_lshl_add_u32 v{t2}, v{t2}, 4, v{base}")
                a(f"v_lshl_add_u32 v{vX[hd][j]}, v{t3}, 13, v{t2}")
        a(f"s_mul_i32 s{sSlX}, s{sLam}, 3072")
        a(f"s_mov_b32 s{sXg}, 0")
    if not DO:
        a(f"v_lshrrev_b32 v{t1}, 3, v0")
        a(f"s_lshl_b32 s{sA}, s{sLam}, 3")
        a(f"v_add_u32 v{t1}, s{sA}, v{t1}")
        a(f"s_and_b32 s{sA}, s{sLam}, 1")
        a(f"s_lshl_b32 s{sA}, s{sA}, 2")
        a(f"v_add_u32 v{t0}, s{sA}, v{t0}")
        a(f"v_and_b32 v{t2}, 7, v0")
        a(f"v_xor_b32 v{t2}, v{t2}, v{t0}")
        a(f"v_lshlrev_b32 v{t2}, 4, v{t2}")
        a(f"v_lshl_add_u32 v{vXo}, v{t1}, 13, v{t2}")
        a(f"s_lshl_b32 s{sSlX}, s{sLam}, 10")
        a(f"s_lshl_b32 s{sXg}, s3, 9")
        a(f"s_add_u32 s40, s{sSlX}, {NS*STG}")
    a(f"s_lshl_b32 s{sWg}, s3, 19")
    def issueW():
        for j in range(4):
            dm = 4*j if DO else (j & 1) + 8*(j >> 1)
            a(f"s_add_u32 m0, s{sSl}, {dm*1024}")
            a(f"s_add_u32 s{sA}, s{sWg}, {dm*8192}")
            if not opt.get("o3ab", 0) & 1: a(f"buffer_load_dwordx4 v{vWo}, s[{SWO}:{SWO+3}], s{sA} offen lds")
        a(f"s_add_u32 s{sSl}, s{sSl}, {STG}")
        a(f"s_cmp_ge_u32 s{sSl}, s{sD}")
        a(f"s_cselect_b32 s{sB}, {NS*STG}, 0")
        a(f"s_sub_u32 s{sSl}, s{sSl}, s{sB}")
        a(f"s_add_u32 s{sWg}, s{sWg}, 131072")
        a(f"s_and_b32 s{sWg}, s{sWg}, 0x1fffff")
    def issueX():
        if DO:
            a(f"s_bitcmp1_b32 s{sXg}, 1")
            a("s_cselect_b64 vcc, -1, 0")
            a(f"s_lshr_b32 s{sA}, s{sXg}, 2")
            a(f"s_add_u32 s{sA}, s{sA}, s3")
            a(f"s_and_b32 s{sA}, s{sA}, 3")
            a(f"s_mul_i32 s{sA}, s{sA}, 24576")
            a(f"s_and_b32 s{sB}, s{sXg}, 1")
            a(f"s_lshl_b32 s{sB}, s{sB}, 12")
            a(f"s_add_u32 s{sA}, s{sA}, s{sB}")
            for j in range(3):
                a(f"v_cndmask_b32 v{vXt[j]}, v{vX[0][j]}, v{vX[1][j]}, vcc")
            for j in range(3):
                a(f"s_add_u32 m0, s{sSlX}, {16384 + j*1024}")
                a("s_nop 0")
                a(f"buffer_load_dwordx4 v{vXt[j]}, s[{SX}:{SX+3}], s{sA} offen sc1 lds")
            a(f"s_add_u32 s{sSlX}, s{sSlX}, {STG}")
            a(f"s_cmp_ge_u32 s{sSlX}, s40")
            a(f"s_cselect_b32 s{sB}, {NS*STG}, 0")
            a(f"s_sub_u32 s{sSlX}, s{sSlX}, s{sB}")
            a(f"s_add_u32 s{sXg}, s{sXg}, 1")
            return
        for j in range(3):
            a(f"s_add_u32 m0, s{sSlX}, {16384 + j*4096}")
            a(f"s_add_u32 s{sA}, s{sXg}, {j*262144}")
            if not opt.get("o3ab", 0) & 2: a(f"buffer_load_dwordx4 v{vXo}, s[{SX}:{SX+3}], s{sA} offen{'' if (opt.get('o3ab', 0) & 4 or opt.get('loc', 0) & 8) else ' sc1'} lds")
        a(f"s_add_u32 s{sSlX}, s{sSlX}, {STG}")
        a(f"s_cmp_ge_u32 s{sSlX}, s40")
        a(f"s_cselect_b32 s{sB}, {NS*STG}, 0")
        a(f"s_sub_u32 s{sSlX}, s{sSlX}, s{sB}")
        a(f"s_add_u32 s{sXg}, s{sXg}, 128")
        a(f"s_and_b32 s{sXg}, s{sXg}, 0x7ff")
    def loop(n, body, uid):
        if n == 0: return
        a(f"s_mov_b32 s{sP}, 0")
        a.label(f"O3_LP{uid}")
        body()
        a(f"s_add_u32 s{sP}, s{sP}, 1")
        a(f"s_cmp_lt_u32 s{sP}, {n}")
        a(f"s_cbranch_scc1 O3_LP{uid}")
    WE = opt.get("wearly", 2)
    loop(WE, issueW, 0)
    if DO:
        assert WE <= 2
        x_setup()
        a(f"s_add_u32 s40, s{sSlX}, {NS*STG}")
        a(f"s_waitcnt vmcnt({4*WE})")
    else:
        P.stamp(6)
    a("s_barrier")
    P.stamp(7)
    if opt.get("o3diag", 0):
        a("s_waitcnt vmcnt(0)")
        P.stamp(2)
    loop(5 - WE, issueW, 1)
    if opt.get("o3diag", 0):
        a("s_waitcnt vmcnt(0)")
        P.stamp(3)
    a(f"s_cmp_lg_u32 s{sW}, {99 if PPOLL else 8}")
    a("s_cbranch_scc1 O3_POLL_DONE")
    a(f"v_lshlrev_b32 v{vPa}, 2, v0")
    a(f"v_add_u32 v{vPa}, s45, v{vPa}")
    if F1L:
        a(f"s_lshl_b32 s{sA}, s46, 7")
        a(f"v_add_u32 v{vPa}, s{sA}, v{vPa}")
    a("s_mov_b64 exec, 0xff")
    a(f"s_mov_b32 s{sP}, 0")
    a.label("O3_POLL1")
    if opt.get('loc', 0) & 4:
        a(f"v_mov_b32 v{vPoll}, 0")
        a(f"buffer_atomic_or v{vPoll}, v{vPa}, s[{SFL}:{SFL+3}], 0 offen sc0")
    else:
        a(f"buffer_load_dword v{vPoll}, v{vPa}, s[{SFL}:{SFL+3}], 0 offen sc1")
    a("s_waitcnt vmcnt(0)")
    a(f"v_cmp_eq_u32 vcc, s96, v{vPoll}")
    a("s_nop 1")
    a("s_cmp_eq_u32 vcc_lo, 0xff")
    a("s_cbranch_scc1 O3_POLL_OK")
    a(f"s_sleep {opt.get('psleep', 2)}")
    a(f"s_add_u32 s{sP}, s{sP}, 1")
    a(f"s_cmp_lt_u32 s{sP}, 400000")
    a("s_cbranch_scc1 O3_POLL1")
    a.label("O3_POLL_OK")
    a("s_mov_b64 exec, -1")
    a.label("O3_POLL_DONE")
    P.stamp(9)
    a("s_barrier")
    P.stamp(10)
    loop(5, issueX, 2)
    a("s_waitcnt vmcnt(12)")
    if opt.get("o3diag", 0): P.stamp(4)
    a("s_barrier")
    if opt.get("la4", 1 if opt.get("pw", 1) else 0):
        a("s_waitcnt vmcnt(9)")
        a("s_barrier")
        for cnt in (6, 10):
            a(f"s_waitcnt vmcnt({cnt})")
            a("s_barrier")
            issueW(); issueX()
        a(f"s_mov_b32 s{sP}, 3")
        a.label("O3_L_LOOP")
        a("s_waitcnt vmcnt(14)")
        a("s_barrier")
        issueW(); issueX()
        a(f"s_add_u32 s{sP}, s{sP}, 1")
        a(f"s_cmp_lt_u32 s{sP}, 12")
        a("s_cbranch_scc1 O3_L_LOOP")
        for cnt in (14, 7, 0):
            a(f"s_waitcnt vmcnt({cnt})")
            a("s_barrier")
    else:
      for cnt in (9, 13, 17):
        a(f"s_waitcnt vmcnt({cnt})")
        a("s_barrier")
        issueW(); issueX()
      a(f"s_mov_b32 s{sP}, 3")
      a.label("O3_L_LOOP")
      a("s_waitcnt vmcnt(21)")
      a("s_barrier")
      issueW(); issueX()
      a(f"s_add_u32 s{sP}, s{sP}, 1")
      a(f"s_cmp_lt_u32 s{sP}, 11")
      a("s_cbranch_scc1 O3_L_LOOP")
      for s_ in range(11, 15):
        a(f"s_waitcnt vmcnt({7*(15-(s_+1))})")
        a("s_barrier")
    P.dump(52, sW, 64 << 20, 12)

def outproj(a, opt, P, fused):
    sW = 4
    NTW2 = " nt" if opt.get("ntw2", 0) else ""
    XFL = " sc1" if (fused and opt.get("xsc1", 1)) else ""
    SX, SWO, SO, SFL = 8, 12, 16, 28
    sA, sB, sD, sLam, sP = 20, 21, 22, 23, 24
    sSl, sWg, sXg = 25, 26, 27
    NS = 5
    STG = 28672
    t0, t1, t2, t3, t4 = 1, 2, 3, 4, 5
    WA = 6
    XA = 10
    vWo, vXo, vPoll = 20, 21, 22
    ACC = 12
    FR = 60
    NV = 116
    END = "K1_END" if fused else "K2_END"
    if fused:
        a(f"s_cmp_lg_u32 s{sW}, 0")
        a("s_cbranch_scc1 OP_NOFLAG")
        a(f"s_lshl_b32 s{sA}, s46, 2")
        a(f"v_mov_b32 v{t0}, s96")
        a(f"v_mov_b32 v{t1}, s{sA}")
        a("s_mov_b64 exec, 1")
        a(f"buffer_store_dword v{t0}, v{t1}, s[{SFL}:{SFL+3}], 0 offen sc1")
        a("s_mov_b64 exec, -1")
        a.label("OP_NOFLAG")
        a(f"s_cmp_ge_u32 s{sW}, 8")
        a(f"s_cbranch_scc1 {END}")
    def srd_w():
        a("s_cmp_eq_u32 s6, 0")
        a(f"s_cselect_b64 s[{SWO}:{SWO+1}], s[36:37], s[50:51]")
        a(f"s_lshl_b32 s{sA}, s5, 9")
        a(f"s_lshl_b32 s{sB}, s3, 7")
        a(f"s_add_u32 s{sA}, s{sA}, s{sB}")
        a(f"s_add_u32 s{SWO}, s{SWO}, s{sA}")
        a(f"s_addc_u32 s{SWO+1}, s{SWO+1}, 0")
        a(f"s_sub_u32 s{SWO+2}, 8388608, s{sA}")
        a(f"s_mov_b32 s{SWO+3}, 0x20000")
    def srd_x():
        a(f"s_lshl_b32 s{sB}, s6, 3")
        a(f"s_add_u32 s{sB}, s{sB}, s7")
        a(f"s_mul_i32 s{sD}, s{sB}, {48*8192}")
        a(f"s_add_u32 s{SX}, s52, s{sD}")
        a(f"s_addc_u32 s{SX+1}, s53, 0")
        a(f"s_mov_b32 s{SX+2}, {48*8192}")
        a(f"s_mov_b32 s{SX+3}, 0x20000")
    def srd_o():
        a(f"s_lshl_b32 s{sA}, s5, 9")
        a(f"s_lshl_b32 s{sB}, s3, 7")
        a(f"s_add_u32 s{sA}, s{sA}, s{sB}")
        a(f"s_mul_i32 s{sD}, s7, {48*4096}")
        a(f"s_lshl_b32 s{sB}, s6, 11")
        a(f"s_add_u32 s{sB}, s{sB}, s{sA}")
        a(f"s_add_u32 s{sD}, s{sD}, s{sB}")
        a(f"s_add_u32 s{SO}, s48, s{sD}")
        a(f"s_addc_u32 s{SO+1}, s49, 0")
        a(f"s_sub_u32 s{SO+2}, {48*4096}, s{sB}")
        a(f"s_mov_b32 s{SO+3}, 0x20000")
    if not fused:
        srd_w(); srd_x()
        a(f"s_cmp_ge_u32 s{sW}, 4")
        a("s_cbranch_scc1 OP_LOADER")
    srd_o()
    a(f"v_bfe_u32 v{t0}, v0, 2, 2")
    a(f"v_lshrrev_b32 v{t1}, 4, v0")
    a(f"v_lshl_add_u32 v{t2}, v{t1}, 3, v{t0}")
    a(f"s_lshl_b32 s{sA}, s{sW}, 5")
    a(f"v_add_u32 v{t2}, s{sA}, v{t2}")
    a(f"v_lshlrev_b32 v{t2}, 7, v{t2}")
    a(f"v_bfe_u32 v{t3}, v0, 3, 1")
    a(f"v_bfe_u32 v{t4}, v0, 4, 1")
    a(f"v_lshl_or_b32 v{t3}, v{t4}, 1, v{t3}")
    a(f"v_lshl_add_u32 v{t2}, v{t3}, 5, v{t2}")
    a(f"v_and_b32 v{t3}, 3, v0")
    a(f"v_lshl_add_u32 v{WA}, v{t3}, 3, v{t2}")
    for t in range(1, 4):
        a(f"v_xor_b32 v{WA+t}, {t << 5}, v{WA}")
    a(f"v_and_b32 v{t0}, 15, v0")
    a(f"s_lshl_b32 s{sA}, s{sW}, 2")
    a(f"v_add_u32 v{t2}, s{sA}, v{t1}")
    a(f"v_xor_b32 v{t2}, v{t2}, v{t0}")
    a(f"v_lshlrev_b32 v{t2}, 4, v{t2}")
    a(f"v_lshl_add_u32 v{t2}, v{t0}, 8, v{t2}")
    a(f"v_add_u32 v{XA}, 16384, v{t2}")
    for r in range(0, 48, 2):
        a(f"v_mov_b64 {vr(ACC+r,2)}, 0")
    def reads(buf):
        fb = FR + buf*28
        for t in range(4):
            for e in range(2):
                a(f"ds_read_b64_tr_b16 {vr(fb+4*t+2*e,2)}, v{WA+t} offset:{e*512}")
        for rt in range(3):
            a(f"ds_read_b128 {vr(fb+16+4*rt,4)}, v{XA} offset:{rt*4096}")
    def adv():
        a(f"s_add_u32 s{sA}, s{sSl}, {STG}")
        a(f"s_cmp_ge_u32 s{sA}, {NS*STG}")
        a(f"s_cselect_b32 s{sB}, {NS*STG}, 0")
        a(f"s_sub_u32 s{sA}, s{sA}, s{sB}")
        a(f"s_sub_u32 s{sD}, s{sA}, s{sSl}")
        a(f"s_mov_b32 s{sSl}, s{sA}")
        for t in range(4):
            a(f"v_add_u32 v{WA+t}, s{sD}, v{WA+t}")
        a(f"v_add_u32 v{XA}, s{sD}, v{XA}")
    def mfmas(buf):
        fb = FR + buf*28
        for rt in range(3):
            for t in range(4):
                acc = ACC + (t*3+rt)*4
                a(f"{MF16} {vr(acc,4)}, {vr(fb+4*t,4)}, {vr(fb+16+4*rt,4)}, {vr(acc,4)}")
    a(f"s_mov_b32 s{sSl}, 0")
    a("s_barrier")
    P.stamp(9 if fused else 2)
    reads(0); adv()
    a("s_waitcnt lgkmcnt(0)")
    a(f"s_mov_b32 s{sP}, 0")
    if fused:
        a("s_barrier")
        reads(1); adv()
        mfmas(0)
        a("s_waitcnt lgkmcnt(0)")
        a("s_barrier")
        for half in (1, 0):
            a("s_barrier")
            reads(1-half); adv()
            mfmas(half)
            a("s_waitcnt lgkmcnt(0)")
        a("s_barrier")
        a(f"s_mov_b32 s{sP}, 1")
        a("s_branch OP_C_MID")
    a.label("OP_C_LOOP")
    for half in range(2):
        if half == 1: a.label("OP_C_MID")
        a("s_barrier")
        reads(1-half); adv()
        mfmas(half)
        a("s_waitcnt lgkmcnt(0)")
        if half == 0:
            a(f"s_cmp_eq_u32 s{sP}, 15")
            a("s_cbranch_scc1 OP_C_DONE")
    a(f"s_add_u32 s{sP}, s{sP}, 1")
    a("s_branch OP_C_LOOP")
    a.label("OP_C_DONE")
    mfmas(1)
    P.stamp(10 if fused else 3)
    a("s_barrier")
    a("s_nop 7")
    a(f"v_lshlrev_b32 v{t0}, 4, v0")
    a(f"s_mul_i32 s{sA}, s{sW}, 12288")
    a(f"v_add_u32 v{t1}, s{sA}, v{t0}")
    for tile in range(12):
        a(f"ds_write_b128 v{t1}, {vr(ACC+4*tile,4)} offset:{tile*1024}")
    a("s_waitcnt lgkmcnt(0)")
    a("s_barrier")
    a(f"s_mul_i32 s{sA}, s{sW}, 3072")
    a(f"v_add_u32 v{t1}, s{sA}, v{t0}")
    for src in range(4):
        for rt in range(3):
            a(f"ds_read_b128 {vr(ACC+(src*3+rt)*4,4)}, v{t1} offset:{src*12288+rt*1024}")
    a("s_waitcnt lgkmcnt(0)")
    for rt in range(3):
        for r in range(4):
            d = ACC + rt*4 + r
            a(f"v_add_f32 v{d}, v{d}, v{d+12}")
            a(f"v_add_f32 v{d+24}, v{d+24}, v{d+36}")
        for r in range(4):
            d = ACC + rt*4 + r
            a(f"v_add_f32 v{d}, v{d}, v{d+24}")
        d = ACC + rt*4
        a(f"v_cvt_pk_bf16_f32 v{d}, v{d}, v{d+1}")
        a(f"v_cvt_pk_bf16_f32 v{d+1}, v{d+2}, v{d+3}")
    a(f"v_and_b32 v{t0}, 15, v0")
    a(f"v_lshrrev_b32 v{t1}, 4, v0")
    a(f"v_lshlrev_b32 v{t0}, 12, v{t0}")
    a(f"v_lshl_add_u32 v{t0}, v{t1}, 3, v{t0}")
    a(f"s_lshl_b32 s{sA}, s{sW}, 5")
    a(f"v_add_u32 v{t0}, s{sA}, v{t0}")
    for rt in range(3):
        a(f"s_mov_b32 s{sA}, {rt*16*4096}")
        a(f"buffer_store_dwordx2 {vr(ACC+rt*4,2)}, v{t0}, s[{SO}:{SO+3}], s{sA} offen")
    if fused:
        P.stamp(11)
        P.stamp(8, real=True)
        P.dump(52, sW, 64 << 20, 12)
    else:
        P.stamp(4)
        if PROF: a("s_waitcnt vmcnt(0)")
        P.stamp(5)
        P.stamp(6, real=True)
        P.dump(52, sW, 65 << 20, 12)
    a("s_endpgm")

    a.label("OP_LOADER0" if fused else "OP_LOADER")
    if fused:
        srd_w(); srd_x()
    a(f"s_sub_u32 s{sLam}, s{sW}, 4")
    a(f"v_lshrrev_b32 v{t0}, 3, v0")
    a(f"v_and_b32 v{t1}, 7, v0")
    a(f"v_bfe_u32 v{t2}, v0, 4, 1")
    a(f"s_and_b32 s{sA}, s{sLam}, 1")
    a(f"s_lshl_b32 s{sA}, s{sA}, 1")
    a(f"v_or_b32 v{t2}, s{sA}, v{t2}")
    a(f"v_lshlrev_b32 v{t2}, 1, v{t2}")
    a(f"v_xor_b32 v{t1}, v{t1}, v{t2}")
    a(f"v_lshlrev_b32 v{t1}, 4, v{t1}")
    a(f"s_lshl_b32 s{sA}, s{sLam}, 3")
    a(f"v_add_u32 v{t0}, s{sA}, v{t0}")
    a(f"v_lshl_add_u32 v{vWo}, v{t0}, 11, v{t1}")
    a(f"v_lshrrev_b32 v{t0}, 4, v0")
    a(f"v_and_b32 v{t1}, 15, v0")
    a(f"s_lshl_b32 s{sA}, s{sLam}, 2")
    a(f"v_or_b32 v{t2}, s{sA}, v{t0}")
    a(f"v_xor_b32 v{t1}, v{t1}, v{t2}")
    a(f"v_lshlrev_b32 v{t1}, 4, v{t1}")
    a(f"v_lshl_add_u32 v{vXo}, v{t2}, 13, v{t1}")
    def issueW(slot_s, goff_s):
        for j in range(4):
            a(f"s_add_u32 m0, s{slot_s}, {j*4096}")
            a(f"s_add_u32 s{sA}, s{goff_s}, {j*32*2048}")
            a(f"buffer_load_dwordx4 v{vWo}, s[{SWO}:{SWO+3}], s{sA} offen{NTW2} lds")
    def issueX(slot_s, goff_s):
        for j in range(3):
            a(f"s_add_u32 m0, s{slot_s}, {16384 + j*4096}")
            a(f"s_add_u32 s{sA}, s{goff_s}, {j*16*8192}")
            a(f"buffer_load_dwordx4 v{vXo}, s[{SX}:{SX+3}], s{sA} offen{XFL} lds")
    def adv_slot(r):
        a(f"s_add_u32 s{r}, s{r}, {STG}")
        a(f"s_cmp_ge_u32 s{r}, s{sD}")
        a(f"s_cselect_b32 s{sB}, {NS*STG}, 0")
        a(f"s_sub_u32 s{r}, s{r}, s{sB}")
    sTW, sTX, sTb, sTp = 33, 38, 34, 40
    def sigma(t):
        a(f"s_lshr_b32 s{sA}, s{t}, 1")
        a(f"s_lshl_b32 s{sA}, s{sA}, 2")
        a(f"s_lshr_b64 s[{sTp}:{sTp+1}], s[{sTb}:{sTb+1}], s{sA}")
        a(f"s_and_b32 s{sTp}, s{sTp}, 15")
        a(f"s_lshl_b32 s{sTp}, s{sTp}, 1")
        a(f"s_and_b32 s{sA}, s{t}, 1")
        a(f"s_or_b32 s{sTp}, s{sTp}, s{sA}")
    def advW():
        adv_slot(sSl)
        if fused:
            a(f"s_add_u32 s{sTW}, s{sTW}, 1")
            sigma(sTW)
            a(f"s_lshl_b32 s{sWg}, s{sTp}, 18")
        else:
            a(f"s_add_u32 s{sWg}, s{sWg}, {128*2048}")
    def advX():
        adv_slot(sSlX)
        if fused:
            a(f"s_add_u32 s{sTX}, s{sTX}, 1")
            sigma(sTX)
            a(f"s_lshl_b32 s{sXg}, s{sTp}, 8")
        else:
            a(f"s_add_u32 s{sXg}, s{sXg}, 256")
    def issue():
        issueW(sSl, sWg); advW(); issueX(sSlX, sXg); advX()
    sSlX = 32
    a(f"s_lshl_b32 s{sSl}, s{sLam}, 10")
    a(f"s_mov_b32 s{sSlX}, s{sSl}")
    a(f"s_add_u32 s{sD}, s{sSl}, {NS*STG}")
    if fused:
        a(f"s_mul_i32 s{sA}, s3, 0x11111111")
        a(f"s_mul_i32 s{sB}, s5, 0x11111111")
        for half, hi in ((0, 0x11110000), (1, 0x33332222)):
            a(f"s_add_u32 s{sTp}, s{sA}, 0x32103210")
            a(f"s_and_b32 s{sTp}, s{sTp}, 0x33333333")
            a(f"s_add_u32 s{sTp+1}, s{sB}, {hi:#x}")
            a(f"s_and_b32 s{sTp+1}, s{sTp+1}, 0x33333333")
            a(f"s_lshl_b32 s{sTp+1}, s{sTp+1}, 2")
            a(f"s_or_b32 s{sTb+half}, s{sTp}, s{sTp+1}")
        a(f"s_mov_b32 s{sTW}, 0")
        a(f"s_mov_b32 s{sTX}, 0")
        a(f"s_lshl_b32 s{sWg}, s46, 19")
        a(f"s_lshl_b32 s{sXg}, s46, 9")
        a(f"s_lshl_b32 s{sA}, s5, 2")
        a(f"s_lshl_b32 s39, 15, s{sA}")
        a(f"s_mov_b32 s{sP}, 0")
        a.label("OP_LW")
        issueW(sSl, sWg); advW()
        a(f"s_add_u32 s{sP}, s{sP}, 1")
        a(f"s_cmp_lt_u32 s{sP}, 2")
        a("s_cbranch_scc1 OP_LW")
        P.stamp(6)
        a("s_barrier")
        P.stamp(7)
        a(f"v_lshlrev_b32 v{t3}, 2, v0")
        if opt.get("xdelay", 0): a(f"s_sleep {opt['xdelay']}")
        issueX(sSlX, sXg); advX()
        issueX(sSlX, sXg); advX()
        a("s_waitcnt vmcnt(3)")
        a("s_barrier")
        def look(uid):
            a(f"s_cmp_lg_u32 s{sW}, 4")
            a(f"s_cbranch_scc1 OP_NOLOOK{uid}")
            a("s_mov_b64 exec, 0xffff")
            a(f"buffer_load_dword v{vPoll}, v{t3}, s[{SFL}:{SFL+3}], 0 offen sc1")
            a("s_mov_b64 exec, -1")
            a.label(f"OP_NOLOOK{uid}")
        look(1)
        issueW(sSl, sWg); advW()
        issueW(sSl, sWg); advW()
        a("s_waitcnt vmcnt(8)")
        a("s_barrier")
        issueW(sSl, sWg); advW()
        issueW(sSl, sWg); advW()
        def poll(mask, uid):
            a(f"s_cmp_lg_u32 s{sW}, 4")
            a(f"s_cbranch_scc1 OP_POLL_DONE{uid}")
            a("s_mov_b64 exec, 0xffff")
            a(f"s_mov_b32 s{sP}, 0")
            a.label(f"OP_POLL_LOOP{uid}")
            a(f"v_cmp_eq_u32 vcc, s96, v{vPoll}")
            a("s_nop 1")
            a(f"s_and_b32 s{sA}, vcc_lo, {mask}")
            a(f"s_cmp_eq_u32 s{sA}, {mask}")
            a(f"s_cbranch_scc1 OP_POLL_OK{uid}")
            a(f"s_sleep {opt.get('psleep', 2)}")
            a(f"buffer_load_dword v{vPoll}, v{t3}, s[{SFL}:{SFL+3}], 0 offen sc1")
            a("s_waitcnt vmcnt(0)")
            a(f"s_add_u32 s{sP}, s{sP}, 1")
            a(f"s_cmp_lt_u32 s{sP}, 400000")
            a(f"s_cbranch_scc1 OP_POLL_LOOP{uid}")
            a.label(f"OP_POLL_OK{uid}")
            if uid == 1:
                a(f"buffer_load_dword v{vPoll}, v{t3}, s[{SFL}:{SFL+3}], 0 offen sc1")
            a("s_mov_b64 exec, -1")
            a.label(f"OP_POLL_DONE{uid}")
        poll("s39", 1)
        P.stamp(9)
        a("s_barrier")
        P.stamp(10)
        for _ in range(4):
            issueX(sSlX, sXg); advX()
        for k, cnt in enumerate((9, 13, 17)):
            a(f"s_waitcnt vmcnt({cnt})")
            a("s_barrier")
            if k == 2 or True:
                pass
            if k < 2:
                issue()
                if k == 1:
                    poll("0xffff", 2)
                    a("s_barrier")
            else:
                issue()
        a(f"s_mov_b32 s{sP}, 4")
    else:
        a(f"s_mov_b32 s{sWg}, 0")
        a(f"s_mov_b32 s{sXg}, 0")
        for st in range(5):
            issue()
        a("s_waitcnt vmcnt(28)")
        a("s_barrier")
        a(f"s_mov_b32 s{sP}, 0")
    a.label("OP_L_LOOP")
    a("s_waitcnt vmcnt(21)")
    a("s_barrier")
    issue()
    a(f"s_add_u32 s{sP}, s{sP}, 1")
    a(f"s_cmp_lt_u32 s{sP}, 27")
    a("s_cbranch_scc1 OP_L_LOOP")
    for s_ in range(27, 31):
        a(f"s_waitcnt vmcnt({7*(31-(s_+1))})")
        a("s_barrier")
    a("s_barrier")
    a("s_barrier")
    if fused:
        P.dump(52, sW, 64 << 20, 12)
    return NV

HEADER = open("cdna_kernels/" + NAME + ".s.ref").read().split("; Override launch")[0]

def kd(name, nv, ns):
    acc = (nv + 3)//4*4
    return f"""
.amdhsa_kernel {name}
  .amdhsa_next_free_vgpr {nv}
  .amdhsa_next_free_sgpr {ns}
  .amdhsa_accum_offset {acc}
  .amdhsa_group_segment_fixed_size 0
  .amdhsa_kernarg_size 104
  .amdhsa_user_sgpr_count 2
  .amdhsa_user_sgpr_kernarg_segment_ptr 1
  .amdhsa_system_sgpr_workgroup_id_x 1
.end_amdhsa_kernel
"""

def main(out, opt):
    fused = opt.get("fused", 1)
    a1 = Asm(); nv1 = kernel1(a1, opt)
    s = HEADER
    if fused:
        body = a1.text().replace("k1_kernel", NAME + "_kernel")
        s += "; @launch grid=(256,1,1) block=(768,1,1) lds=163840\n"
        s += '.amdgcn_target "amdgcn-amd-amdhsa--gfx950"\n.text\n'
        nm = NAME + "_kernel"
        s += f".globl {nm}\n.p2align 8\n.type {nm},@function\n" + body
        s += '.section .rodata,"a"\n'
        s += ".p2align 6" + kd(nm, nv1, 102)
    else:
        a2 = Asm(); nv2 = kernel2(a2, opt)
        s += "; @launch kernel=k1_kernel grid=(256,1,1) block=(768,1,1) lds=163840\n"
        s += "; @launch kernel=k2_kernel grid=(256,1,1) block=(512,1,1) lds=143360\n"
        s += '.amdgcn_target "amdgcn-amd-amdhsa--gfx950"\n.text\n'
        for nm, body in (("k1_kernel", a1), ("k2_kernel", a2)):
            s += f".globl {nm}\n.p2align 8\n.type {nm},@function\n" + body.text()
        s += '.section .rodata,"a"\n'
        s += ".p2align 6" + kd("k1_kernel", nv1, 102) + ".p2align 6" + kd("k2_kernel", nv2, 96)
    open(out, "w").write(s)

if __name__ == "__main__":
    if "--prof" in sys.argv:
        PROF = True
        sys.argv.remove("--prof")
    if "--rt" in sys.argv:
        PROF = True
        RT = True
        sys.argv.remove("--rt")
    if "--dbgprof" in sys.argv:
        PROF = True
        DBGPROF = True
        sys.argv.remove("--dbgprof")
    if "--fine" in sys.argv:
        PROF = True
        FINE = True
        sys.argv.remove("--fine")
    if "--cdiag" in sys.argv:
        PROF = True
        CDIAG = True
        sys.argv.remove("--cdiag")
    if "--trdiag" in sys.argv:
        PROF = True
        TRDIAG = True
        sys.argv.remove("--trdiag")
    opt = {}
    for x in list(sys.argv):
        if x.startswith("--o:"):
            k, v = x[4:].split("=")
            opt[k] = int(v)
            sys.argv.remove(x)
    main(sys.argv[1] if len(sys.argv) > 1 else "cdna_kernels/" + NAME + ".s", opt)
```

```python
import sys, struct, math

NAME = "concat_heads__gqa_block_cached__gqa_block_cached__near_ridge"

def f2u(x):
    return struct.unpack("<I", struct.pack("<f", x))[0]

class Asm:
    def __init__(self):
        self.L = []
    def __call__(self, s):
        import re
        m = re.search(r"offset:(\d+)", s)
        if m:
            lim = 4095 if s.lstrip().startswith(("buffer_", "global_")) else 65535
            assert int(m.group(1)) <= lim, s
        for line in s.split("\n"):
            self.L.append("    " + line.strip() if not line.strip().endswith(":") else line.strip())
    def label(self, s):
        self.L.append(s + ":")
    def c(self, s):
        self.L.append("    ; " + s)
    def text(self):
        return "\n".join(self.L) + "\n"

def vr(base, n=1):
    return f"v{base}" if n == 1 else f"v[{base}:{base+n-1}]"
def sr(base, n=1):
    return f"s{base}" if n == 1 else f"s[{base}:{base+n-1}]"

MF32 = "v_mfma_f32_32x32x16_bf16"
MF16 = "v_mfma_f32_16x16x32_bf16"

DEBUG_Q = False
PROF = False
FINE = False
DBGPROF = False
RT = False
TRDIAG = False
CDIAG = False
class Prof:
    uid = 0
    def __init__(self, a, base, tmp, srd):
        self.a, self.base, self.tmp, self.srd = a, base, tmp, srd
    def init(self, n):
        if not PROF: return
        for i in range(n):
            self.a(f"s_mov_b32 s{self.base+i}, 0")
    def fine(self, slot, cond_sgpr, val, uid):
        if not FINE: return
        a = self.a
        a(f"s_cmp_lg_u32 s{cond_sgpr}, {val}")
        a(f"s_cbranch_scc1 FINE_{uid}")
        a(f"s_memtime s[{self.tmp}:{self.tmp+1}]")
        a("s_waitcnt lgkmcnt(0)")
        a(f"s_mov_b32 s{self.base+slot}, s{self.tmp}")
        a.label(f"FINE_{uid}")
    def stamp(self, slot, real=False, force=False):
        if not PROF: return
        if FINE and slot in (2, 3, 4, 5, 6, 7) : return
        if TRDIAG and slot in (3, 6, 7, 9) and not force: return
        if CDIAG and slot in (2, 3, 4, 6, 7, 9, 10, 11) and force != 2: return
        a = self.a
        a(f"{'s_memrealtime' if (real or RT) else 's_memtime'} s[{self.tmp}:{self.tmp+1}]")
        a("s_waitcnt lgkmcnt(0)")
        a(f"s_mov_b32 s{self.base+slot}, s{self.tmp}")
    def dump(self, ws_lo, swave, region, nmax):
        if not PROF: return
        a = self.a
        b = self.srd
        if DBGPROF:
            Prof.uid += 1
            a(f"s_or_b32 s{self.tmp}, s2, s{swave}")
            a(f"s_cmp_lg_u32 s{self.tmp}, 0")
            a(f"s_cbranch_scc1 DBGP_SKIP{Prof.uid}")
            a(f"s_load_dwordx2 s[{b}:{b+1}], s[0:1], 88")
            a("s_waitcnt lgkmcnt(0)")
            a(f"s_mov_b32 s{b+2}, 256")
            a(f"s_mov_b32 s{b+3}, 0x20000")
            a("s_mov_b64 exec, 1")
            a("v_mov_b32 v1, 0")
            for i in range(nmax):
                if i in (0, 1): continue
                ref = 0 if i == 8 else 1
                a(f"s_sub_u32 s{self.tmp}, s{self.base+i}, s{self.base+ref}")
                a(f"v_mov_b32 v2, s{self.tmp}")
                a(f"buffer_store_dword v2, v1, s[{b}:{b+3}], 0 offen offset:{4*i}")
                a("s_nop 0")
            a.label(f"DBGP_SKIP{Prof.uid}")
            return
        a(f"s_add_u32 s{b}, s{ws_lo}, {region}")
        a(f"s_addc_u32 s{b+1}, s{ws_lo+1}, 0")
        a(f"s_mov_b32 s{b+2}, {256*16*64}")
        a(f"s_mov_b32 s{b+3}, 0x20000")
        a(f"s_lshl_b32 s{self.tmp}, s2, 4")
        a(f"s_add_u32 s{self.tmp}, s{self.tmp}, s{swave}")
        a(f"s_lshl_b32 s{self.tmp}, s{self.tmp}, 6")
        a("s_mov_b64 exec, 1")
        a(f"v_mov_b32 v1, s{self.tmp}")
        for i in range(nmax):
            a(f"v_mov_b32 v2, s{self.base+i}")
            a(f"buffer_store_dword v2, v1, s[{b}:{b+3}], 0 offen offset:{4*i}")
            a("s_nop 0")

def flaglayout(opt):
    f1l = opt.get("f1", 0) and opt.get("ex", 3) == 3
    return f1l, (32768 if f1l else 16384)

def direct_o(opt):
    return opt.get("do", 1) and opt.get("fused", 1) and opt.get("op", 3) == 3

def kernel1(a, opt):
    F1L, SEC = flaglayout(opt)
    DO = direct_o(opt)
    T2_START = opt.get("t2_start", 8)
    TOUCH = opt.get("touch", 0)
    PRIO = opt.get("prio", 1)
    PQ, PS, PP = opt.get("pq", 2), opt.get("ps", 1), opt.get("pp", 0)
    DMAQ = opt.get("dmaq", 1)
    NTD = " nt" if opt.get("ntd", 0) else ""
    NTQ = " nt" if opt.get("ntq", opt.get("ntd", 0)) else ""
    NTX = " nt" if opt.get("ntx", opt.get("ntd", 0)) else ""
    NTT = " nt" if opt.get("ntt", 1) else ""
    ROT = opt.get("rot", 4)
    TPS = opt.get("tps", 2)
    NS2 = opt.get("p2steps", 8)
    AB = opt.get("ablate", 0)
    CSCALE = 128 ** -0.5 * math.log2(math.e)
    WOT = opt.get("wot", 1)
    OPM = opt.get("op", 3) if opt.get("fused", 1) else 1
    NTW = " nt" if opt.get("ntw", 0) else ""
    SWOP = 36
    sW = 4
    sKvh, sBr, sBt, sPair = 5, 6, 7, 3
    SX, SWQ, SK, SV, SO = 8, 12, 16, 20, 24
    STCH = 40
    sThr, sFloor = 54, 55
    sG = [56, 57, 58, 59]
    sL = [60, 61, 62, 63]
    sStep = 64
    sVn, sKn = 65, 66
    sGstep = 67
    sKc, sVc = 68, 69
    sQt, sKq = 70, 71
    sA, sB, sD = 72, 73, 74
    sLam = 75
    sWs, sWg, sXs, sXg = 76, 77, 78, 79
    sP = 80
    sE = 81
    sChk = 100
    SFL, sTok = 28, 96
    FLAGOFF = 8 << 20
    sGrp, sIdx, sRdy = 45, 46, 47
    sSafe = 44
    sDk, sDv, sTl = 76, 77, 78
    vMx = 0
    vL = 1
    KA0, KA1, VA = 2, 3, 4
    vKoff, vVoff = 5, 6
    vTb = 7
    NM = 8
    O = 24
    Q = 88
    S = 120
    F = 136
    NV = 168
    t0, t1, t2, t3, t4 = 8, 9, 10, 11, 12
    Wf = 88
    Xf = 104
    TR = opt.get("trans", 2)
    if TR == 2:
        ACC = 64
        WA, XA, QW = 128, 130, 134
    else:
        ACC = 128
        WA = 152
        XA = 154
        QW = 158
    vCs = 161
    sCs = 98
    vWo, vXo = 160, 153

    XBASE = 131072
    a.label("k1_kernel")
    a("s_cmp_ge_u32 s2, 256")
    a("s_cbranch_scc1 K1_END")
    P = Prof(a, 84, 82, 28)
    P.init(12)
    P.stamp(0, real=True)
    P.stamp(1)
    EX4 = opt.get("ex", 3) == 4 and opt.get("fused", 1) and opt.get("op", 3) == 3
    if opt.get("padto", 0) or EX4: a("s_memrealtime s[100:101]")
    a("s_load_dwordx16 s[32:47], s[0:1], 0")
    a("s_load_dwordx4 s[48:51], s[0:1], 64")
    a("s_load_dwordx2 s[52:53], s[0:1], 96")
    a("v_lshrrev_b32 v1, 6, v0")
    a("v_and_b32 v0, 63, v0")
    a(f"v_readfirstlane_b32 s{sW}, v1")
    a(f"s_and_b32 s{sKvh}, s2, 3")
    a(f"s_bfe_u32 s{sBr}, s2, 0x10002")
    a(f"s_lshr_b32 s{sBt}, s2, 5")
    a(f"s_bfe_u32 s{sPair}, s2, 0x20003")
    a(f"s_and_b32 s{sKq}, s{sW}, 3")
    a(f"s_lshr_b32 s{sQt}, s{sW}, 2")
    a(f"s_lshl_b32 s{sD}, s{sKvh}, 11")
    a(f"s_lshl_b32 s{sB}, s{sPair}, 9")
    a(f"s_add_u32 s{sD}, s{sD}, s{sB}")
    a(f"s_mul_i32 s{sA}, s{sBt}, 98304")

    def srd1():
        a("s_waitcnt lgkmcnt(0)")
        a(f"s_cmp_eq_u32 s{sBr}, 0")
        a(f"s_cselect_b64 s[{SX}:{SX+1}], s[32:33], s[42:43]")
        a(f"s_cselect_b64 s[{SWQ}:{SWQ+1}], s[38:39], s[48:49]")
        a(f"s_add_u32 s{SX}, s{SX}, s{sA}")
        a(f"s_addc_u32 s{SX+1}, s{SX+1}, 0")
        a(f"s_mov_b32 s{SX+2}, 98304")
        a(f"s_mov_b32 s{SX+3}, 0x20000")
        a(f"s_add_u32 s{SWQ}, s{SWQ}, s{sD}")
        a(f"s_addc_u32 s{SWQ+1}, s{SWQ+1}, 0")
        a(f"s_sub_u32 s{SWQ+2}, 8388608, s{sD}")
        a(f"s_mov_b32 s{SWQ+3}, 0x20000")
    def patterns():
        a(f"v_bfe_u32 v{t0}, v0, 2, 2")
        a(f"v_lshlrev_b32 v{t0}, 8, v{t0}")
        a(f"v_lshrrev_b32 v{t1}, 4, v0")
        a(f"v_lshl_add_u32 v{t0}, v{t1}, 6, v{t0}")
        a(f"v_and_b32 v{t1}, 3, v0")
        a(f"v_lshl_add_u32 v{vVoff}, v{t1}, 4, v{t0}")
        a(f"s_lshl_b32 s{sB}, s{sKq}, 4")
        a(f"v_xor_b32 v{vKoff}, s{sB}, v{vVoff}")

    def srd2():
        a(f"s_cmp_eq_u32 s{sBr}, 0")
        a(f"s_cselect_b64 s[{SK}:{SK+1}], s[34:35], s[44:45]")
        a(f"s_cselect_b64 s[{SV}:{SV+1}], s[36:37], s[46:47]")
        a(f"s_mov_b64 s[36:37], s[40:41]")
        if DO:
            a(f"s_lshl_b32 s{sB}, s{sBr}, 2")
            a(f"s_add_u32 s{sB}, s{sB}, s{sKvh}")
            a(f"s_lshl_b32 s{sB}, s{sB}, 3")
            a(f"s_add_u32 s{sB}, s{sB}, s{sBt}")
            a(f"s_lshl_b32 s{sB}, s{sB}, 2")
            a(f"s_add_u32 s{sB}, s{sB}, s{sPair}")
            a(f"s_mul_i32 s{sB}, s{sB}, 24576")
            a(f"s_add_u32 s{SO}, s52, s{sB}")
            a(f"s_addc_u32 s{SO+1}, s53, 0")
            a(f"s_mov_b32 s{SO+2}, 24576")
        else:
            a(f"s_lshl_b32 s{sB}, s{sBr}, 3")
            a(f"s_add_u32 s{sB}, s{sB}, s{sBt}")
            a(f"s_mul_i32 s{sB}, s{sB}, {48*8192}")
            a(f"s_add_u32 s{sB}, s{sB}, s{sD}")
            a(f"s_add_u32 s{SO}, s52, s{sB}")
            a(f"s_addc_u32 s{SO+1}, s53, 0")
            a(f"s_sub_u32 s{SO+2}, {48*8192}, s{sD}")
        a(f"s_mov_b32 s{SO+3}, 0x20000")
        a(f"s_lshl_b32 s{sB}, s{sBt}, 2")
        a(f"s_add_u32 s{sB}, s{sB}, s{sKvh}")
        a(f"s_lshl_b32 s{sB}, s{sB}, 18")
        a(f"s_add_u32 s{SK}, s{SK}, s{sB}")
        a(f"s_addc_u32 s{SK+1}, s{SK+1}, 0")
        a(f"s_mov_b32 s{SK+2}, 262144")
        a(f"s_mov_b32 s{SK+3}, 0x20000")
        a(f"s_add_u32 s{SV}, s{SV}, s{sB}")
        a(f"s_addc_u32 s{SV+1}, s{SV+1}, 0")
        a(f"s_mov_b32 s{SV+2}, 262144")
        a(f"s_mov_b32 s{SV+3}, 0x20000")
        a(f"s_mov_b32 s{STCH+2}, 262144")
        a(f"s_mov_b32 s{STCH+3}, 0x20000")
        if OPM == 1:
            a(f"s_lshl_b32 s{sB}, s{sBr}, 3")
            a(f"s_add_u32 s{sB}, s{sB}, s{sBt}")
            a(f"s_lshl_b32 s{sB}, s{sB}, 8")
            a(f"s_add_u32 s{sB}, s{sB}, {FLAGOFF}")
            a(f"s_add_u32 s{SFL}, s52, s{sB}")
            a(f"s_addc_u32 s{SFL+1}, s53, 0")
            a(f"s_mov_b32 s{SFL+2}, 64")
        else:
            a(f"s_add_u32 s{SFL}, s52, {FLAGOFF}")
            a(f"s_addc_u32 s{SFL+1}, s53, 0")
            a(f"s_mov_b32 s{SFL+2}, {(1 << 20) if (opt.get('stepprof', 0) or opt.get('p1prof', 0)) else (SEC + 65536 if opt.get('ex', 3) >= 2 else 32768)}")
            a(f"s_lshl_b32 s{sGrp}, s{sBr}, 2")
            a(f"s_add_u32 s{sGrp}, s{sGrp}, s{sKvh}")
            a(f"s_lshl_b32 s{sGrp}, s{sGrp}, 2")
            a(f"s_lshr_b32 s{sB}, s{sBt}, 1")
            a(f"s_add_u32 s{sGrp}, s{sGrp}, s{sB}")
            a(f"s_lshl_b32 s{sGrp}, s{sGrp}, {10 if F1L else 8}")
            a(f"s_lshl_b32 s{sRdy}, s{sBr}, 2")
            a(f"s_add_u32 s{sRdy}, s{sRdy}, s{sB}")
            a(f"s_lshl_b32 s{sRdy}, s{sRdy}, 3")
            a(f"s_and_b32 s{sB}, s{sBt}, 1")
            a(f"s_lshl_b32 s{sB}, s{sB}, 2")
            a(f"s_add_u32 s{sB}, s{sB}, s{sPair}")
            a(f"s_add_u32 s{sRdy}, s{sRdy}, s{sB}")
            a(f"s_lshl_b32 s{sRdy}, s{sRdy}, {10 if opt.get('ex', 3) >= 2 else 8}")
            a(f"s_add_u32 s{sRdy}, s{sRdy}, {SEC}")
        a(f"s_mov_b32 s{SFL+3}, 0x20000")
        if OPM == 1:
            a(f"s_load_dwordx2 s[{sTok}:{sTok+1}], s[{SX}:{SX+1}], 0")
        else:
            a(f"s_and_b32 s82, s{sBt}, 1")
            a(f"s_mul_i32 s82, s82, 98304")
            a(f"s_sub_u32 s82, s{SX}, s82")
            a(f"s_subb_u32 s83, s{SX+1}, 0")
            a(f"s_load_dwordx2 s[{sTok}:{sTok+1}], s[82:83], 0")
        if OPM == 1:
            a(f"s_lshl_b32 s{sIdx}, s{sKvh}, 2")
            a(f"s_add_u32 s{sIdx}, s{sIdx}, s{sPair}")
        else:
            a(f"s_mov_b32 s{sIdx}, s{sB}")

        patterns()

    def kread(n):
        a(f"ds_read_b128 {vr(F+4*n,4)}, v{KA0 + (n & 1)} offset:{(n >> 1)*256}")
    def setup2():
        a(f"v_and_b32 v{t0}, 31, v0")
        a(f"v_lshrrev_b32 v{t1}, 5, v0")
        a(f"v_and_b32 v{t2}, 15, v0")
        a(f"v_xor_b32 v{t2}, v{t1}, v{t2}")
        a(f"v_lshlrev_b32 v{t2}, 4, v{t2}")
        a(f"v_lshl_add_u32 v{t2}, v{t0}, 8, v{t2}")
        a(f"s_lshl_b32 s{sA}, s{sQt}, 13")
        a(f"s_add_u32 s{sA}, s{sA}, {XBASE}")
        a(f"v_add_u32 v{vTb}, s{sA}, v{t2}")
        a(f"v_lshrrev_b32 v{t2}, 2, v{t0}")
        a(f"v_and_b32 v{t3}, 3, v{t2}")
        a(f"v_xor_b32 v{t3}, v{t1}, v{t3}")
        a(f"v_lshlrev_b32 v{t3}, 4, v{t3}")
        a(f"v_lshl_add_u32 v{t3}, v{t2}, 10, v{t3}")
        a(f"v_and_b32 v{t2}, 3, v0")
        a(f"v_lshl_add_u32 v{t3}, v{t2}, 6, v{t3}")
        a(f"s_lshl_b32 s{sA}, s{sKq}, 13")
        a(f"v_add_u32 v{KA0}, s{sA}, v{t3}")
        a(f"v_xor_b32 v{KA1}, 32, v{KA0}")
        a(f"v_bfe_u32 v{t2}, v0, 2, 2")
        a(f"v_lshlrev_b32 v{t2}, 6, v{t2}")
        a(f"v_lshl_add_u32 v{t2}, v{t1}, 10, v{t2}")
        a(f"v_bfe_u32 v{t3}, v0, 4, 1")
        a(f"v_lshl_add_u32 v{t2}, v{t3}, 5, v{t2}")
        a(f"v_bfe_u32 v{t3}, v0, 1, 1")
        a(f"v_lshl_add_u32 v{t2}, v{t3}, 4, v{t2}")
        a(f"v_and_b32 v{t3}, 1, v0")
        a(f"v_lshl_add_u32 v{t2}, v{t3}, 3, v{t2}")
        a(f"s_add_u32 s{sA}, s{sA}, 32768")
        a(f"v_add_u32 v{VA}, s{sA}, v{t2}")
        for j in range(4):
            a(f"s_sub_u32 s{sA}, s{sQt}, 1")
            a(f"s_lshl_b32 s{sA}, s{sA}, 1")
            a(f"s_add_u32 s{sA}, s{sA}, {j >> 1}")
            a(f"s_add_u32 s{sB}, s{sKq}, {4*(j & 1)}")
            a(f"s_lshl_b32 s{sB}, s{sB}, 10")
            a(f"s_lshl_b32 s{sD}, s{sA}, 16")
            a(f"s_add_u32 s{sG[j]}, s{sD}, s{sB}")
            a(f"s_lshl_b32 s{sD}, s{sA}, 13")
            a(f"s_add_u32 s{sL[j]}, s{sD}, s{sB}")
        a(f"s_mov_b32 s{sStep}, 0")
        a(f"s_mov_b32 s{sKn}, {4*32768}")
        a(f"s_mov_b32 s{sVn}, 0")
        a(f"s_mov_b32 s{sGstep}, 16384")
        a(f"s_mov_b32 s{sKc}, 65536")
        a(f"s_mov_b32 s{sVc}, 32768")
        a(f"s_mov_b32 s{sThr}, 0xff800000")
        a(f"s_mov_b32 s{sFloor}, 0xff800000")
        a(f"s_mov_b32 s{sSafe}, {opt.get('safe', 0)}")
        for r in range(0, 16, 2):
            a(f"v_mov_b64 {vr(NM+r,2)}, 0")

    def issueW(slot_expr_sgpr, goff_sgpr, vreg):
        for j in range(8):
            m1, m3, m4 = j & 1, (j >> 1) & 1, (j >> 2) & 1
            dm = 2*m1 + 8*m3 + 16*m4
            a(f"s_add_u32 m0, s{slot_expr_sgpr}, {dm*1024}")
            a(f"s_add_u32 s{sA}, s{goff_sgpr}, {dm*16384}")
            a(f"buffer_load_dwordx4 v{vreg}, s[{SWQ}:{SWQ+3}], s{sA} offen{NTQ} lds")
    def issueX(slot_sgpr, goff_sgpr):
        for j in range(3):
            a(f"s_add_u32 m0, s{slot_sgpr}, {j*4096}")
            a(f"s_add_u32 s{sA}, s{goff_sgpr}, {j*16*2048}")
            a(f"buffer_load_dwordx4 v{vXo}, s[{SX}:{SX+3}], s{sA} offen{NTX} lds")
    a(f"v_lshrrev_b32 v{t0}, 5, v0")
    a(f"v_and_b32 v{t1}, 31, v0")
    a(f"s_and_b32 s{sE}, s{sKq}, 1")
    a(f"s_lshl_b32 s{sE}, s{sE}, 1")
    a(f"s_lshr_b32 s{sB}, s{sKq}, 1")
    a(f"s_lshl_b32 s{sB}, s{sB}, 2")
    a(f"s_or_b32 s{sE}, s{sE}, s{sB}")
    a(f"v_or_b32 v{t2}, s{sE}, v{t0}")
    a(f"v_lshlrev_b32 v{t2}, 1, v{t2}")
    a(f"v_xor_b32 v{t2}, v{t1}, v{t2}")
    a(f"v_lshlrev_b32 v{t2}, 4, v{t2}")
    a(f"v_lshl_add_u32 v{vWo}, v{t0}, 13, v{t2}")
    a(f"s_and_b32 s{sE}, s{sKq}, 1")
    a(f"s_or_b32 s{sE}, s{sE}, s{sB}")
    a(f"s_lshl_b32 s{sB}, s{sE}, 14")
    a(f"v_add_u32 v{vWo}, s{sB}, v{vWo}")
    a(f"s_lshl_b32 s{sWs}, s{sE}, 10")
    if ROT == 1:
        a(f"s_lshl_b32 s{sXg}, s{sPair}, 1")
        a(f"s_add_u32 s{sXg}, s{sXg}, s{sBt}")
        a(f"s_and_b32 s{sXg}, s{sXg}, 7")
        a(f"s_lshl_b32 s{sWg}, s{sXg}, 20")
        a(f"s_lshl_b32 s{sXg}, s{sXg}, 8")
    elif ROT == 4:
        a(f"s_add_u32 s{sXg}, s{sPair}, s{sBt}")
        a(f"s_and_b32 s{sXg}, s{sXg}, 3")
        a(f"s_lshl_b32 s{sXg}, s{sXg}, 1")
        a(f"s_lshl_b32 s{sWg}, s{sXg}, 20")
        a(f"s_lshl_b32 s{sXg}, s{sXg}, 8")
    elif ROT == 2:
        a(f"s_add_u32 s{sXg}, s{sPair}, s{sBt}")
        a(f"s_and_b32 s{sXg}, s{sXg}, 1")
        a(f"s_lshl_b32 s{sXg}, s{sXg}, 2")
        a(f"s_lshl_b32 s{sWg}, s{sXg}, 20")
        a(f"s_lshl_b32 s{sXg}, s{sXg}, 8")
    else:
        a(f"s_mov_b32 s{sXg}, 0")
        a(f"s_mov_b32 s{sWg}, 0")
    a(f"s_cmp_ge_u32 s{sW}, 8")
    a("s_cbranch_scc1 K1_LOADER")
    a(f"s_add_u32 s{sB}, s{sQt}, 1")
    a(f"s_lshl_b32 s{sE}, s{sB}, 15")
    a(f"s_add_u32 s{sWs}, s{sWs}, s{sE}")
    a(f"s_lshl_b32 s{sE}, s{sB}, 19")
    a(f"s_add_u32 s{sWg}, s{sWg}, s{sE}")
    a(f"s_and_b32 s{sWg}, s{sWg}, 0x7fffff")
    srd1()
    SPF = opt.get("spf", 0)
    spf_list = []
    if SPF:
        a(f"s_lshr_b32 s{sE}, s{sBt}, 2")
        a(f"s_mul_i32 s{sE}, s{sE}, 96")
        a(f"s_mul_i32 s{sB}, s{sW}, 12")
        a(f"s_add_u32 s{sE}, s{sE}, s{sB}")
        a(f"s_add_u32 s{sE}, s{sE}, 64")
        a(f"s_lshl_b32 s{sE}, s{sE}, 13")
        a(f"s_add_u32 s{sB}, s{sPair}, s{sBt}")
        a(f"s_and_b32 s{sB}, s{sB}, 3")
        a(f"s_lshl_b32 s{sB}, s{sB}, 21")
        a(f"s_add_u32 s{sE}, s{sE}, s{sB}")
        a(f"s_add_u32 s82, s{SWQ}, s{sE}")
        a(f"s_addc_u32 s83, s{SWQ+1}, 0")
        for r in range(12):
            for l in range(4):
                spf_list.append(f"s_load_dword s101, s[82:83], {r*8192 + l*128}")
    def spf(n):
        for _ in range(n):
            if spf_list: a(spf_list.pop(0))
    spf(14)
    if opt.get("t1", 0):
        a(f"v_lshrrev_b32 v{t0}, 4, v0")
        a(f"v_lshlrev_b32 v{t0}, 13, v{t0}")
        a(f"v_and_b32 v{t1}, 15, v0")
        a(f"v_lshl_add_u32 v{t0}, v{t1}, 7, v{t0}")
        a(f"s_lshr_b32 s{sB}, s2, 3")
        a(f"s_lshl_b32 s{sB}, s{sB}, 15")
        a(f"s_lshl_b32 s{sE}, s{sW}, 20")
        a(f"s_add_u32 s{sB}, s{sB}, s{sE}")
        a(f"s_lshl_b32 s{sE}, s{sPair}, 9")
        a(f"s_sub_u32 s82, s{SWQ}, s{sE}")
        a(f"s_subb_u32 s83, s{SWQ+1}, 0")
        a(f"v_add_u32 v{t0}, s{sB}, v{t0}")
        a(f"s_cmp_lt_u32 s{sW}, {opt.get('t1first', 1)}")
        a("s_cbranch_scc1 K1_NOT1")
        a(f"global_load_dword v{F+31}, v{t0}, s[82:83]")
        a.label("K1_NOT1")
        a(f"s_cmp_ge_u32 s{sW}, 3")
        a("s_cbranch_scc1 K1_NOT2")
        a(f"v_lshrrev_b32 v{t0}, 4, v0")
        a(f"s_mul_i32 s{sB}, s{sPair}, 12")
        a(f"s_lshl_b32 s{sE}, s{sW}, 2")
        a(f"s_add_u32 s{sB}, s{sB}, s{sE}")
        a(f"v_add_u32 v{t0}, s{sB}, v{t0}")
        a(f"v_lshlrev_b32 v{t0}, 11, v{t0}")
        a(f"v_lshl_add_u32 v{t0}, v{t1}, 7, v{t0}")
        a(f"buffer_load_dword v{F+30}, v{t0}, s[{SX}:{SX+3}], 0 offen")
        a.label("K1_NOT2")
    FILL = opt.get("fill", 0)
    def first_issue():
        if not FILL:
            issueW(sWs, sWg, vWo)
            return
        if FILL == 2:
            a(f"s_cmp_lg_u32 s{sQt}, 0")
            a("s_cbranch_scc1 K1_FI2")
            issueW(sWs, sWg, vWo)
            a.label("K1_FI2")
            return
        a(f"s_cmp_lg_u32 s{sQt}, 0")
        a("s_cbranch_scc1 K1_FI1")
        a(f"v_lshrrev_b32 v164, 4, v0")
        a(f"v_and_b32 v165, 15, v0")
        a(f"s_lshl_b32 s{sE}, s{sKq}, 2")
        a(f"v_or_b32 v164, s{sE}, v164")
        a(f"v_xor_b32 v165, v165, v164")
        a(f"v_lshlrev_b32 v165, 4, v165")
        a(f"v_lshl_add_u32 v{vXo}, v164, 11, v165")
        a(f"s_lshl_b32 s{sXs}, s{sKq}, 10")
        a(f"s_add_u32 s{sXs}, s{sXs}, {XBASE + 0x4000}")
        a(f"s_add_u32 s{sXg}, s{sXg}, 256")
        a(f"s_and_b32 s{sXg}, s{sXg}, 0x7ff")
        issueX(sXs, sXg)
        issueW(sWs, sWg, vWo)
        a("s_branch K1_FI2")
        a.label("K1_FI1")
        issueW(sWs, sWg, vWo)
        a(f"s_add_u32 s{sWs}, s{sWs}, 32768")
        a(f"s_add_u32 s{sWg}, s{sWg}, 524288")
        a(f"s_and_b32 s{sWg}, s{sWg}, 0x7fffff")
        issueW(sWs, sWg, vWo)
        a.label("K1_FI2")
    if not opt.get("latew", 1):
        first_issue()

    a.c("phase 1 compute")
    a(f"v_bfe_u32 v{t0}, v0, 2, 2")
    a(f"v_lshrrev_b32 v{t1}, 4, v0")
    a(f"v_and_b32 v{t2}, 1, v{t1}")
    a(f"v_lshl_or_b32 v{t2}, v{t2}, 2, v{t0}")
    a(f"s_lshl_b32 s{sE}, s{sW}, 1")
    a(f"v_xor_b32 v{t2}, s{sE}, v{t2}")
    a(f"v_lshl_add_u32 v{t3}, v{t1}, 3, v{t0}")
    a(f"v_lshlrev_b32 v{t3}, 9, v{t3}")
    a(f"v_lshl_add_u32 v{t3}, v{t2}, 5, v{t3}")
    a(f"v_and_b32 v{t4}, 3, v0")
    a(f"v_lshl_add_u32 v{WA}, v{t4}, 3, v{t3}")
    a(f"v_xor_b32 v{WA+1}, 32, v{WA}")
    a(f"v_and_b32 v{t0}, 15, v0")
    a(f"v_xor_b32 v{t2}, v{t1}, v{t0}")
    a(f"v_lshlrev_b32 v{t2}, 4, v{t2}")
    a(f"v_lshl_add_u32 v{t2}, v{t0}, 8, v{t2}")
    a(f"v_add_u32 v{XA}, {XBASE:#x}, v{t2}")
    a(f"v_xor_b32 v{XA+1}, 64, v{XA}")
    a(f"v_xor_b32 v{XA+2}, 0x80, v{XA}")
    a(f"v_xor_b32 v{XA+3}, 0xc0, v{XA}")
    spf(10)
    for r in range(24):
        a(f"v_mov_b32 v{ACC+r}, 0")
    spf(opt.get("spfn", 24))
    srd2()
    if opt.get("fused", 1):
        a(f"s_cmp_lg_u32 s{sW}, 1")
        a("s_cbranch_scc1 K1_NOZ")
        a(f"s_lshl_b32 s{sE}, s{sIdx}, 2")
        if OPM == 3:
            a(f"s_add_u32 s{sE}, s{sE}, s{sGrp}")
        a(f"v_mov_b32 v{t0}, 0")
        if F1L:
            a(f"v_lshl_add_u32 v{t1}, v0, 7, s{sE}")
            a(f"s_lshl_b32 s{sB}, s{sKvh}, 2")
            a(f"s_add_u32 s{sB}, s{sB}, s{sRdy}")
            a(f"s_sub_u32 s{sB}, s{sB}, {8*128}")
            a(f"v_lshl_add_u32 v{t2}, v0, 7, s{sB}")
            a(f"v_cmp_lt_u32 vcc, 7, v0")
            a(f"v_cndmask_b32 v{t1}, v{t1}, v{t2}, vcc")
            a(f"s_mov_b64 exec, 0xffff")
        elif EX4:
            a(f"v_mov_b32 v{t1}, s{sE}")
            a("s_mov_b64 exec, 1")
        elif OPM == 3 and opt.get("ex", 3) >= 2:
            a(f"s_lshl_b32 s{sB}, s{sKvh}, 2")
            a(f"s_add_u32 s{sB}, s{sB}, s{sRdy}")
            a(f"s_sub_u32 s{sB}, s{sB}, 128")
            a(f"v_lshl_add_u32 v{t1}, v0, 7, s{sB}")
            a(f"s_add_u32 s{sB}, s{sRdy}, 64")
            a(f"s_sub_u32 s{sB}, s{sB}, {9*128}")
            a(f"v_lshl_add_u32 v{t2}, v0, 7, s{sB}")
            a(f"v_cmp_lt_u32 vcc, 8, v0")
            a(f"v_cndmask_b32 v{t1}, v{t1}, v{t2}, vcc")
            a(f"v_writelane_b32 v{t1}, s{sE}, 0")
            a(f"s_mov_b64 exec, {'0x1ff' if opt.get('ex', 3) == 3 else '0x1ffff'}")
        else:
            a(f"v_mov_b32 v{t1}, s{sE}")
            if OPM == 3:
                a(f"s_lshl_b32 s{sE}, s{sKvh}, 2")
                a(f"s_add_u32 s{sE}, s{sE}, s{sRdy}")
                a(f"v_writelane_b32 v{t1}, s{sE}, 1")
            a(f"s_mov_b64 exec, {3 if OPM == 3 else 1}")
        a(f"buffer_store_dword v{t0}, v{t1}, s[{SFL}:{SFL+3}], 0 offen sc1")
        a("s_mov_b64 exec, -1")
        a.label("K1_NOZ")
    if TR == 2:
        a(f"s_mov_b32 s{sCs}, {f2u(CSCALE):#x}")
        a(f"s_mov_b32 s{sCs+1}, {f2u(CSCALE):#x}")
    else:
        a(f"v_mov_b32 v{vCs}, {f2u(CSCALE):#x}")
    a(f"v_and_b32 v{t0}, 15, v0")
    a(f"v_lshrrev_b32 v{t1}, 4, v0")
    a(f"s_lshl_b32 s{sE}, s{sKq}, 2")
    a(f"v_lshrrev_b32 v{t2}, 1, v{t1}")
    a(f"v_add_u32 v{t2}, s{sE}, v{t2}")
    a(f"v_xor_b32 v{t2}, v{t2}, v{t0}")
    a(f"v_lshlrev_b32 v{t2}, 4, v{t2}")
    a(f"v_lshl_add_u32 v{t2}, v{t0}, 8, v{t2}")
    a(f"v_and_b32 v{t3}, 1, v{t1}")
    a(f"v_lshl_add_u32 v{t2}, v{t3}, 3, v{t2}")
    a(f"s_mul_i32 s{sE}, s{sQt}, {48*256}")
    a(f"s_add_u32 s{sE}, s{sE}, {XBASE}")
    a(f"v_add_u32 v{QW}, s{sE}, v{t2}")
    a(f"v_xor_b32 v{QW+1}, 32, v{QW}")
    setup2()
    if opt.get("dbgtouch", 0):
        a("s_load_dwordx2 s[82:83], s[0:1], 88")
        a("s_waitcnt lgkmcnt(0)")
        a("v_mov_b32 v162, 0")
        a("global_load_dword v163, v162, s[82:83] sc1")
    if opt.get("latew", 1):
        first_issue()
    a(f"s_mov_b32 s{sP}, 0")
    FB = [88, 24]
    def p1_read_list(sp):
        fb = FB[sp]
        L = []
        for ks in range(2):
            for tt in range(2):
                for e in range(2):
                    off = sp * 32768 + ks * 16384 + e * 2048
                    L.append(f"ds_read_b64_tr_b16 {vr(fb + (tt*2+ks)*4 + e*2, 2)}, v{WA+tt} offset:{off}")
            for rt in range(3):
                L.append(f"ds_read_b128 {vr(fb + 16 + (rt*2+ks)*4, 4)}, v{XA + sp*2 + ks} offset:{rt*4096}")
        return L
    def p1_mfma_list(sp):
        fb = FB[sp]
        L = []
        for ks in range(2):
            for rt in range(3):
                for tt in range(2):
                    acc = ACC + (tt*3+rt)*4
                    L.append(f"{MF16} {vr(acc,4)}, {vr(fb+(tt*2+ks)*4,4)}, {vr(fb+16+(rt*2+ks)*4,4)}, {vr(acc,4)}")
        return L
    def p1_reads(sp):
        for x in p1_read_list(sp): a(x)
    def p1_mfma(sp):
        for x in p1_mfma_list(sp): a(x)
    def p1_both(rsp, msp):
        R, M = p1_read_list(rsp), p1_mfma_list(msp)
        if opt.get("fl", 3) & 2:
            per = opt.get("flp", 2)
            for n in range(12):
                a(M[n])
                for x in R[per*n:per*n+per]: a(x)
            return
        for n in range(12):
            a(M[n])
            a(R[n])
            if n in (5, 11): a(R[12 + (n == 11)])
    a("s_barrier")
    P.stamp(2)
    p1_reads(0)
    if FILL == 2:
        a(f"s_cmp_eq_u32 s{sQt}, 0")
        a("s_cbranch_scc1 K1_FW0")
        issueW(sWs, sWg, vWo)
        a("s_branch K1_FW1")
        a.label("K1_FW0")
        a("s_waitcnt vmcnt(0)")
        a.label("K1_FW1")
        a("s_waitcnt lgkmcnt(0)")
    elif FILL:
        a(f"s_cmp_lg_u32 s{sQt}, 0")
        a("s_cbranch_scc1 K1_FW1")
        a("s_waitcnt vmcnt(0)")
        a.label("K1_FW1")
        a("s_waitcnt lgkmcnt(0)")
    else:
        a("s_waitcnt vmcnt(0) lgkmcnt(0)")
    if EX4:
        a(f"s_lshl_b32 s{sE}, s{sW}, 7")
        a(f"s_add_u32 s{sE}, s{sE}, s{sRdy}")
        a(f"s_lshl_b32 s{sB}, s{sKvh}, 2")
        a(f"s_add_u32 s{sE}, s{sE}, s{sB}")
        a(f"v_mov_b32 v162, s100")
        a(f"v_mov_b32 v163, s{sE}")
        a("s_mov_b64 exec, 1")
        a(f"buffer_store_dword v162, v163, s[{SFL}:{SFL+3}], 0 offen sc1")
        a("s_mov_b64 exec, -1")
    a("s_branch K1_P1_MID")
    def p1stamp(odd):
        if not opt.get("p1prof", 0): return
        a("s_memtime s[82:83]")
        a(f"s_lshl_b32 s{sE}, s2, 4")
        a(f"s_add_u32 s{sE}, s{sE}, s{sW}")
        a(f"s_lshl_b32 s{sE}, s{sE}, 6")
        a(f"s_lshl_b32 s{sB}, s{sP}, 3")
        a(f"s_add_u32 s{sE}, s{sE}, s{sB}")
        a(f"s_add_u32 s{sE}, s{sE}, {262144 + 4*odd}")
        a(f"v_mov_b32 v163, s{sE}")
        a("s_waitcnt lgkmcnt(0)")
        a(f"v_mov_b32 v162, s82")
        a("s_mov_b64 exec, 1")
        a(f"buffer_store_dword v162, v163, s[{SFL}:{SFL+3}], 0 offen")
        a("s_mov_b64 exec, -1")
    a.label("K1_P1_LOOP")
    if FILL: a(f"s_waitcnt vmcnt({8 if FILL == 1 else 0})")
    a("s_barrier")
    p1stamp(0)
    p1_both(0, 1)
    a(f"s_waitcnt {'vmcnt(0) ' if FILL == 1 else ''}lgkmcnt(0)")
    a.label("K1_P1_MID")
    a("s_barrier")
    p1stamp(1)
    p1_both(1, 0)
    a(f"v_xor_b32 v{WA}, 0x10000, v{WA}")
    a(f"v_xor_b32 v{WA+1}, 0x10000, v{WA+1}")
    for v in range(4):
        a(f"v_xor_b32 v{XA+v}, 0x4000, v{XA+v}")
    a(f"s_add_u32 s{sP}, s{sP}, 1")
    a("s_waitcnt lgkmcnt(0)")
    a(f"s_cmp_lt_u32 s{sP}, 8")
    a("s_cbranch_scc1 K1_P1_LOOP")
    a("s_barrier")
    P.stamp(3, force=True)
    if TR == 2:
        for ks in range(8):
            kread(ks)
    p1_mfma(1)
    a("s_nop 7")
    for tt in range(2):
        for rt in range(3):
            acc = ACC + (tt*3+rt)*4
            if TR == 2:
                for r in range(0, 4, 2):
                    a(f"v_pk_mul_f32 {vr(acc+r,2)}, {vr(acc+r,2)}, s[{sCs}:{sCs+1}]")
            else:
              for r in range(4):
                a(f"v_mul_f32 v{acc+r}, v{vCs}, v{acc+r}")
            a(f"v_cvt_pk_bf16_f32 v{acc}, v{acc}, v{acc+1}")
            a(f"v_cvt_pk_bf16_f32 v{acc+1}, v{acc+2}, v{acc+3}")
            a(f"ds_write_b64 v{QW+tt}, {vr(acc,2)} offset:{rt*4096}")
    def zeroO():
        for r in range(0, 64, 2):
            a(f"v_mov_b64 {vr(O+r,2)}, 0")
        a(f"v_mov_b32 v{vL}, 0")
    if TR == 1:
        for ks in range(8):
            kread(ks)
        zeroO()
    if TRDIAG: P.stamp(6, force=True)
    a("s_waitcnt lgkmcnt(0)")
    if TRDIAG: P.stamp(7, force=True)
    a("s_branch K1_JOIN")
    if TOUCH:
        for sp in range(2):
            a.label(f"K1_T1_{sp}")
            a(f"s_cmp_lt_u32 s{sP}, {T2_START//2}")
            a(f"s_cbranch_scc1 K1_T1R_{sp}")
            a(f"s_sub_u32 s{sA}, s{sP}, {T2_START//2}")
            a(f"s_lshl_b32 s{sA}, s{sA}, 13")
            a(f"s_lshl_b32 s{sB}, s{sPair}, 16")
            a(f"s_add_u32 s{sA}, s{sA}, s{sB}")
            srd = SK if sp == 0 else SV
            a(f"buffer_load_dword v{vVoff}, v{vTch}, s[{srd}:{srd+3}], s{sA} offen{NTT}")
            a(f"s_branch K1_T1R_{sp}")

    a.label("K1_LOADER")
    a("s_setprio 3")
    a(f"s_sub_u32 s{sLam}, s{sW}, 8")
    a(f"v_lshrrev_b32 v{t0}, 4, v0")
    a(f"v_and_b32 v{t1}, 15, v0")
    a(f"s_lshl_b32 s{sE}, s{sLam}, 2")
    a(f"v_or_b32 v{t2}, s{sE}, v{t0}")
    a(f"v_xor_b32 v{t3}, v{t1}, v{t2}")
    a(f"v_lshlrev_b32 v{t3}, 4, v{t3}")
    a(f"v_lshl_add_u32 v{vXo}, v{t2}, 11, v{t3}")
    def issueKV_loader(srd, voff, slot, step, uid=None):
        a(f"s_lshl_b32 s{sB}, s{sLam}, 10")
        for e in range(8):
            lo = slot*32768 + (e >> 1)*8192 + (e & 1)*4096
            go = (e >> 1)*65536 + step*8192 + (e & 1)*4096
            a(f"s_add_u32 m0, s{sB}, {lo}")
            a(f"s_add_u32 s{sA}, s{sB}, {go}")
            a(f"buffer_load_dwordx4 v{voff}, s[{srd}:{srd+3}], s{sA} offen{NTD} lds")
    a(f"s_lshl_b32 s{sXs}, s{sLam}, 10")
    a(f"s_add_u32 s{sXs}, s{sXs}, {XBASE}")
    srd1()
    P.stamp(2)
    def nextW():
        a(f"s_add_u32 s{sWs}, s{sWs}, 32768")
        a(f"s_and_b32 s{sWs}, s{sWs}, 0x1ffff")
        a(f"s_add_u32 s{sWg}, s{sWg}, 524288")
        a(f"s_and_b32 s{sWg}, s{sWg}, 0x7fffff")
    def nextX():
        a(f"s_xor_b32 s{sXs}, s{sXs}, 0x4000")
        a(f"s_add_u32 s{sXg}, s{sXg}, 256")
        a(f"s_and_b32 s{sXg}, s{sXg}, 0x7ff")
    issueX(sXs, sXg)
    issueW(sWs, sWg, vWo)
    P.stamp(3)
    a(f"s_add_u32 s{sWs}, s{sWs}, {3*32768}")
    a(f"s_add_u32 s{sWg}, s{sWg}, {3*524288}")
    a(f"s_and_b32 s{sWg}, s{sWg}, 0x7fffff")
    srd2()
    setup2()
    if opt.get("kpf", 0):
        src = SK if opt.get("kpfv", 0) == 0 else SV
        a(f"s_lshl_b32 s{sE}, s{sPair}, 16")
        a(f"s_lshl_b32 s{sB}, s{sLam}, 13")
        a(f"s_add_u32 s{sE}, s{sE}, s{sB}")
        a(f"s_add_u32 s{sE}, s{sE}, {opt.get('kpft', 2)*8192}")
        a(f"s_add_u32 s82, s{src}, s{sE}")
        a(f"s_addc_u32 s83, s{src+1}, 0")
    a(f"s_mov_b32 s{sP}, 0")
    E3 = opt.get("early3", 0)
    if FILL == 1:
        nextX(); nextW()
        a("s_waitcnt vmcnt(0)")
        E3 = 1
    elif E3:
        a(f"s_waitcnt vmcnt({opt.get('e3w', 8)})")
        nextX(); issueX(sXs, sXg)
        issueW(sWs, sWg, vWo); nextW()
        a("s_waitcnt vmcnt(11)")
    else:
        a("s_waitcnt vmcnt(0)")
    P.stamp(11)
    a("s_setprio 0")
    a("s_barrier")
    a(f"s_branch {'K1_LD_MID2' if E3 else 'K1_LD_MID'}")
    KPF = opt.get("kpf", 0)
    def kpf(n):
        if not KPF: return
        for j in range(n):
            a(f"s_load_dword s101, s[82:83], {128*j}")
        a(f"s_add_u32 s82, s82, {128*n}")
        a("s_addc_u32 s83, s83, 0")
    a.label("K1_LD_LOOP")
    a("s_waitcnt vmcnt(16)")
    a("s_barrier")
    a.label("K1_LD_MID")
    nextX(); issueX(sXs, sXg)
    issueW(sWs, sWg, vWo); nextW()
    kpf(KPF)
    a.label("K1_LD_MID2")
    a("s_waitcnt vmcnt(19)")
    a("s_barrier")
    issueW(sWs, sWg, vWo); nextW()
    kpf(KPF)
    a(f"s_add_u32 s{sP}, s{sP}, 1")
    a(f"s_cmp_lt_u32 s{sP}, 6")
    a("s_cbranch_scc1 K1_LD_LOOP")
    a("s_waitcnt vmcnt(16)")
    a("s_barrier")
    nextX(); issueX(sXs, sXg)
    issueW(sWs, sWg, vWo)
    a("s_waitcnt vmcnt(19)")
    a("s_barrier")
    issueKV_loader(SK, vKoff, 0, 0)
    a("s_waitcnt vmcnt(16)")
    a("s_barrier")
    issueKV_loader(SV, vVoff, 1, 0)
    a("s_waitcnt vmcnt(16)")
    a("s_barrier")
    issueKV_loader(SK, vKoff, 2, 1)
    if TR: a("s_waitcnt vmcnt(16)")
    a("s_barrier")
    issueKV_loader(SV, vVoff, 3, 1)
    if TR:
        for ks in range(8):
            kread(ks)
        if TR == 1: zeroO()
    else:
        a("s_waitcnt vmcnt(8)")

    a.label("K1_JOIN")
    a("s_waitcnt lgkmcnt(0)")
    a(f"s_lshl_b32 s{sA}, s{sTok+1}, 7")
    a(f"s_xor_b32 s{sTok}, s{sTok}, s{sA}")
    a(f"s_or_b32 s{sTok}, s{sTok}, 1")
    if TOUCH:
        a(f"s_cmp_ge_u32 s{sW}, 4")
        a("s_cbranch_scc1 K1_NOTCH")
        a(f"v_lshlrev_b32 v{vKoff}, 7, v0")
        a.label("K1_NOTCH")
    a("s_barrier")
    if TRDIAG: P.stamp(9, force=True)
    for ks in range(8):
        a(f"v_xor_b32 v{vMx}, {ks << 5:#x}, v{vTb}")
        a(f"ds_read_b128 {vr(Q+4*ks,4)}, v{vMx}")
    if not TR:
        for ks in range(8):
            kread(ks)
    a.label("K1_JOIN2")
    if TR != 1: zeroO()
    a(f"s_mov_b32 s{sDk}, 65536")
    a(f"s_cmp_eq_u32 s{sQt}, {0 if opt.get('fix5', 1) else (1 if OPM == 1 else 2)}")
    a(f"s_cselect_b32 s{sTl}, {opt.get('wotstep', 6) if opt.get('wotmode', 2) == 1 else 99}, 99")
    a("s_waitcnt lgkmcnt(0)")
    P.stamp(4)
    a(f"s_cmp_lt_u32 s{sW}, 4")
    a("s_cbranch_scc1 K1_A_BAR")
    if TR: a("s_waitcnt vmcnt(8)")
    a("s_branch K1_B_BAR")

    def rot(sreg):
        a(f"s_add_u32 s{sreg}, s{sreg}, 65536")
        a(f"s_cmp_ge_u32 s{sreg}, 163840")
        a(f"s_cselect_b32 s{sA}, 163840, 0")
        a(f"s_sub_u32 s{sreg}, s{sreg}, s{sA}")

    def wo_touch():
        a(f"s_cmp_eq_u32 s{sBr}, 0")
        a(f"s_cselect_b64 s[{STCH}:{STCH+1}], s[{SWOP}:{SWOP+1}], s[50:51]")
        a(f"s_mov_b32 s{STCH+2}, 8388608")
        a(f"v_mbcnt_lo_u32_b32 v{vMx}, -1, 0")
        a(f"v_mbcnt_hi_u32_b32 v{vMx}, -1, v{vMx}")
        a(f"v_lshlrev_b32 v{vMx}, 7, v{vMx}")
        a(f"s_lshr_b32 s{sA}, s2, 3")
        a(f"s_lshl_b32 s{sA}, s{sA}, 3")
        a(f"s_add_u32 s{sA}, s{sA}, s{sW}")
        a(f"s_sub_u32 s{sA}, s{sA}, 4")
        a(f"s_lshl_b32 s{sA}, s{sA}, 13")
        a(f"s_lshl_b32 s{sB}, s{sKvh}, 21")
        a(f"s_add_u32 s{sA}, s{sA}, s{sB}")
        a(f"buffer_load_dword v{vVoff}, v{vMx}, s[{STCH}:{STCH+3}], s{sA} offen")
    LIGHT = opt.get("light", 0)
    def ls(k):
        if LIGHT: a(f"s_memtime s[{84+2*k}:{85+2*k}]")
    def step_body(v):
        isB = (v == "B")
        dodma = isB and not (AB & 1)
        def dma(kind, j):
            if not dodma: return
            if kind == 'V':
                a(f"s_add_u32 m0, s{sVn}, s{sL[j]}")
                a(f"s_add_u32 s{sA}, s{sGstep}, s{sG[j]}")
                a(f"buffer_load_dwordx4 v{vVoff}, s[{SV}:{SV+3}], s{sA} offen{NTD} lds")
            else:
                a(f"s_add_u32 m0, s{sKn}, s{sL[j]}")
                a(f"s_add_u32 s{sA}, s{sGstep}, s{sG[j]}")
                a(f"buffer_load_dwordx4 v{vKoff}, s[{SK}:{SK+3}], s{sA} offen{NTD} lds")
        def vreads(kk):
            if AB & 2:
                for _ in range(8): a("s_nop 0")
                return
            for dt in range(4):
                for e in range(2):
                    a(f"ds_read_b64_tr_b16 {vr(F+(kk*4+dt)*4+2*e,2)}, v{VA} offset:{kk*4096+e*2048+dt*256}")
        a.label(f"K1_{v}_TOP")
        a(f"s_waitcnt {'vmcnt(4) ' if isB else ''}lgkmcnt(0)")
        a.label(f"K1_{v}_BAR")
        if PRIO: a(f"s_setprio {PQ}")
        if v == "B" or True: ls(0)
        a("s_barrier")
        ls(1)
        if opt.get("stepprof", 0) and not isB:
            a("s_memtime s[82:83]")
            a(f"s_lshl_b32 s{sA}, s2, 4")
            a(f"s_add_u32 s{sA}, s{sA}, s{sW}")
            a(f"s_lshl_b32 s{sA}, s{sA}, 6")
            a(f"s_lshl_b32 s{sB}, s{sStep}, 2")
            a(f"s_add_u32 s{sA}, s{sA}, s{sB}")
            a(f"s_add_u32 s{sA}, s{sA}, 262144")
            a(f"v_mov_b32 v{vTb}, s{sA}")
            a("s_waitcnt lgkmcnt(0)")
            a(f"v_mov_b32 v{vMx}, s82")
            a("s_mov_b64 exec, 1")
            a(f"buffer_store_dword v{vMx}, v{vTb}, s[{SFL}:{SFL+3}], 0 offen")
            a("s_mov_b64 exec, -1")
        def vread1(n):
            if AB & 2: return
            kk, dt = n >> 2, n & 3
            for e in range(2):
                a(f"ds_read_b64_tr_b16 {vr(F+n*4+2*e,2)}, v{VA} offset:{kk*4096+e*2048+dt*256}")
        DT = opt.get("dmatop", 1)
        if DT:
            for j in range(4): dma('K', j)
        if DT == 2:
            for j in range(4): dma('V', j)
        for ks in range(8):
            cin = vr(NM,16) if ks == 0 else vr(S,16)
            a(f"{MF32} {vr(S,16)}, {vr(F+4*ks,4)}, {vr(Q+4*ks,4)}, {cin}")
            if DT == 3 and ks < 4: dma('V', ks)
            if ks < 7: vread1(ks)
            if ks == 0:
                a(f"v_add_u32 v{KA0}, s{sDk}, v{KA0}")
                a(f"v_add_u32 v{KA1}, s{sDk}, v{KA1}")
                a(f"s_mov_b32 s{sDk}, s{sKc}")
            if ks == 2:
                rot(sKc)
            if ks == 4:
                a(f"s_sub_u32 s{sDk}, s{sKc}, s{sDk}")
                a(f"s_mov_b32 s{sDv}, s{sVc}")
                a(f"s_add_u32 s{sVc}, s{sVc}, 65536")
                a(f"s_cmp_ge_u32 s{sVc}, 163840")
            if ks == 4:
                a(f"s_cselect_b32 s{sA}, 163840, 0")
                a(f"s_sub_u32 s{sVc}, s{sVc}, s{sA}")
            if ks in (1, 3, 5, 6) and not DT:
                dma('K', {1: 0, 3: 1, 5: 2, 6: 3}[ks])
        ls(2)
        if PRIO and PS != PQ: a(f"s_setprio {PS}")
        vread1(7)
        a(f"s_sub_u32 s{sDv}, s{sVc}, s{sDv}")
        a(f"v_add_u32 v{VA}, s{sDv}, v{VA}")
        if not isB and WOT and opt.get("wotmode", 2) == 1:
            a(f"s_cmp_eq_u32 s{sStep}, s{sTl}")
            a("s_cbranch_scc1 K1_A_TOUCH")
            a.label("K1_A_TOUCHR")
            a("s_nop 4")
        else:
            a("s_nop 6")
        a(f"s_cmp_lt_u32 s{sStep}, s{sSafe}")
        a(f"s_cbranch_scc1 K1_{v}_MAX")
        a.label(f"K1_{v}_CONT")
        ls(3)
        for k in range(8):
            if not AB & 8:
                a(f"v_exp_f32 v{S+2*k}, v{S+2*k}")
                a(f"v_exp_f32 v{S+2*k+1}, v{S+2*k+1}")
            if k >= 1 and not AB & 8:
                kk = k - 1
                a(f"v_add_f32 v{vL}, v{vL}, v{S+2*kk}")
                a(f"v_add_f32 v{vL}, v{vL}, v{S+2*kk+1}")
                a(f"v_cvt_pk_bf16_f32 v{S+kk}, v{S+2*kk}, v{S+2*kk+1}")
        a(f"v_add_f32 v{vL}, v{vL}, v{S+14}")
        a(f"v_add_f32 v{vL}, v{vL}, v{S+15}")
        a(f"v_cvt_pk_bf16_f32 v{S+7}, v{S+14}, v{S+15}")
        ls(4)
        if PRIO and PP != PS: a(f"s_setprio {PP}")
        if not LIGHT: a("s_waitcnt lgkmcnt(0)")
        else: a("s_waitcnt lgkmcnt(1)")
        for kk in range(2):
            for dt in range(4):
                n = kk*4 + dt
                a(f"{MF32} {vr(O+16*dt,16)}, {vr(F+(kk*4+dt)*4,4)}, {vr(S+4*kk,4)}, {vr(O+16*dt,16)}")
                if not AB & 4: kread(n)
                if n in (0, 1, 2, 3) and DT < 2:
                    dma('V', n)
                if n == 4:
                    a(f"s_add_u32 s{sStep}, s{sStep}, 1")
                if n == 2 and isB:
                    pass
                if n == 4 and isB:
                    rot(sVn)
                if n == 5 and isB:
                    rot(sKn)
                if n == 6 and isB:
                    a(f"s_add_u32 s{sGstep}, s{sGstep}, 8192")
                    if NS2 != 8: a(f"s_and_b32 s{sGstep}, s{sGstep}, 0xffff")
        ls(5)
        if LIGHT:
            a(f"s_cmp_lg_u32 s{sStep}, 41")
            a(f"s_cbranch_scc1 K1_{v}_NOCOPY")
            a("s_waitcnt lgkmcnt(0)")
            for k in range(6):
                a(f"s_mov_b32 s{96+k}, s{84+2*k}")
            a.label(f"K1_{v}_NOCOPY")
        if isB:
            a(f"s_cmp_lt_u32 s{sStep}, {NS2-2}")
            a("s_cbranch_scc1 K1_B_TOP")
            a(f"s_waitcnt vmcnt({4 if opt.get('fix5', 1) else 0})")
            if WOT and opt.get("wotmode", 2) == 3:
                a(f"s_cmp_ge_u32 s{sW}, {opt.get('wotsplit', 8)}")
                a("s_cbranch_scc1 K1_A_TOP")
                wo_touch()
            a("s_branch K1_A_TOP")
        elif opt.get('fix5', 1):
            a(f"s_cmp_ge_u32 s{sStep}, {NS2}")
            a("s_cbranch_scc1 K1_P2_END")
            a(f"s_cmp_lt_u32 s{sW}, 4")
            a("s_cbranch_scc1 K1_A_TOP")
            if WOT and opt.get("wotmode", 2) == 3:
                a("s_waitcnt vmcnt(1)")
                a(f"s_cmp_lt_u32 s{sW}, {opt.get('wotsplit', 8)}")
                a("s_cbranch_scc1 K1_A_TOP")
            a("s_waitcnt vmcnt(0)")
            if WOT and opt.get("wotmode", 2) in (2, 3):
                wo_touch()
            a("s_branch K1_A_TOP")
        else:
            a(f"s_cmp_lt_u32 s{sStep}, {NS2}")
            a("s_cbranch_scc1 K1_A_TOP")
            a("s_branch K1_P2_END")
        a.label(f"K1_{v}_MAX")
        a(f"v_max3_f32 v{vMx}, v{S+0}, v{S+1}, v{S+2}")
        a(f"v_max3_f32 v{vTb}, v{S+3}, v{S+4}, v{S+5}")
        a(f"v_max3_f32 v{vMx}, v{vMx}, v{S+6}, v{S+7}")
        a(f"v_max3_f32 v{vTb}, v{vTb}, v{S+8}, v{S+9}")
        a(f"v_max3_f32 v{vMx}, v{vMx}, v{S+10}, v{S+11}")
        a(f"v_max3_f32 v{vTb}, v{vTb}, v{S+12}, v{S+13}")
        a(f"v_max3_f32 v{vMx}, v{vMx}, v{S+14}, v{S+15}")
        a(f"v_max_f32 v{vMx}, v{vMx}, v{vTb}")
        a(f"v_cmp_lt_f32 vcc, s{sThr}, v{vMx}")
        a(f"s_cbranch_vccz K1_{v}_CONT")
        a.label(f"K1_{v}_RARE")
        a(f"v_mov_b32 v{vTb}, v{vMx}")
        a("s_nop 1")
        a(f"v_permlane32_swap_b32 v{vMx}, v{vTb}")
        a(f"v_max_f32 v{vMx}, v{vMx}, v{vTb}")
        a(f"v_max_f32 v{vMx}, s{sFloor}, v{vMx}")
        a(f"v_max_f32 v{vTb}, 0, v{vMx}")
        a(f"v_sub_f32 v{vTb}, 0, v{vTb}")
        a(f"v_exp_f32 v{vTb}, v{vTb}")
        a(f"s_mov_b32 s{sThr}, {f2u(8.0):#x}")
        a(f"s_mov_b32 s{sFloor}, 0")
        for r in range(16):
            a(f"v_sub_f32 v{S+r}, v{S+r}, v{vMx}")
        a(f"v_sub_f32 v{NM}, v{NM}, v{vMx}")
        for r in range(1, 16):
            a(f"v_mov_b32 v{NM+r}, v{NM}")
        a(f"s_cmp_eq_u32 s{sStep}, 0")
        a(f"s_cbranch_scc1 K1_{v}_CONT")
        a(f"v_mul_f32 v{vL}, v{vL}, v{vTb}")
        for r in range(64):
            a(f"v_mul_f32 v{O+r}, v{O+r}, v{vTb}")
        a(f"s_branch K1_{v}_CONT")

    step_body("B")
    step_body("A")
    if WOT and opt.get("wotmode", 2) == 1:
        a.label("K1_A_TOUCH")
        a(f"s_cmp_eq_u32 s{sBr}, 0")
        a(f"s_cselect_b64 s[{STCH}:{STCH+1}], s[{SWOP}:{SWOP+1}], s[50:51]")
        a(f"s_mov_b32 s{STCH+2}, 8388608")
        a(f"v_mbcnt_lo_u32_b32 v{vKoff}, -1, 0")
        a(f"v_mbcnt_hi_u32_b32 v{vKoff}, -1, v{vKoff}")
        if OPM == 1:
            a(f"v_and_b32 v{vVoff}, 3, v{vKoff}")
            a(f"v_lshrrev_b32 v{vKoff}, 2, v{vKoff}")
            a(f"v_lshlrev_b32 v{vKoff}, 11, v{vKoff}")
            a(f"v_lshl_add_u32 v{vKoff}, v{vVoff}, 7, v{vKoff}")
            a(f"s_lshr_b32 s{sA}, s2, 3")
            a(f"s_lshl_b32 s{sA}, s{sA}, 2")
            a(f"s_add_u32 s{sA}, s{sA}, s{sKq}")
            a(f"s_lshl_b32 s{sA}, s{sA}, 16")
            a(f"s_lshl_b32 s{sB}, s{sKvh}, 9")
            a(f"s_add_u32 s{sA}, s{sA}, s{sB}")
            a(f"buffer_load_dword v{vVoff}, v{vKoff}, s[{STCH}:{STCH+3}], s{sA} offen{NTW}")
            a(f"s_add_u32 s{sA}, s{sA}, 32768")
            a(f"buffer_load_dword v{vVoff}, v{vKoff}, s[{STCH}:{STCH+3}], s{sA} offen{NTW}")
        else:
            a(f"v_lshlrev_b32 v{vKoff}, 7, v{vKoff}")
            a(f"s_lshr_b32 s{sA}, s2, 3")
            a(f"s_lshl_b32 s{sA}, s{sA}, 2")
            a(f"s_add_u32 s{sA}, s{sA}, s{sKq}")
            a(f"s_lshl_b32 s{sA}, s{sA}, 14")
            a(f"s_lshl_b32 s{sB}, s{sKvh}, 21")
            a(f"s_add_u32 s{sA}, s{sA}, s{sB}")
            a(f"buffer_load_dword v{vVoff}, v{vKoff}, s[{STCH}:{STCH+3}], s{sA} offen{NTW}")
            a(f"s_add_u32 s{sA}, s{sA}, 8192")
            a(f"buffer_load_dword v{vVoff}, v{vKoff}, s[{STCH}:{STCH+3}], s{sA} offen{NTW}")
        a("s_branch K1_A_TOUCHR")

    a.label("K1_REDO")
    a("s_waitcnt vmcnt(0) lgkmcnt(0)")
    a(f"v_mbcnt_lo_u32_b32 v0, -1, 0")
    a(f"v_mbcnt_hi_u32_b32 v0, -1, v0")
    a("s_barrier")
    patterns()
    _t = (8, 9, 10, 11, 12)
    setup2()
    a(f"s_mov_b32 s{sSafe}, 8")
    a(f"s_cmp_lt_u32 s{sW}, 8")
    a("s_cbranch_scc1 K1_REDO2")
    issueKV_loader(SK, vKoff, 0, 0, "r0")
    issueKV_loader(SV, vVoff, 1, 0, "r1")
    issueKV_loader(SK, vKoff, 2, 1, "r2")
    issueKV_loader(SV, vVoff, 3, 1, "r3")
    a("s_waitcnt vmcnt(8)")
    a.label("K1_REDO2")
    a("s_barrier")
    for ks in range(8):
        kread(ks)
    if TR == 1: zeroO()
    a("s_branch K1_JOIN2")

    a.label("K1_P2_END")
    P.stamp(5)
    FUSED = opt.get("fused", 1)
    SC1 = " sc1" if FUSED else ""
    t0, t1, t2, t3, t4 = NM+2, NM+3, NM+4, NM+5, NM+6
    vLane = NM+7
    FASTC = opt.get("safe", 0) == 0
    STAT, EX, STG = 32768, 36864, (135168 if FASTC else 114688)
    if DO: STAT, EX = 61440, 65536
    BADF = STAT + 3072
    if FUSED:
        a("s_load_dwordx2 s[48:49], s[0:1], 80")
    a(f"v_mbcnt_lo_u32_b32 v{vLane}, -1, 0")
    a(f"v_mbcnt_hi_u32_b32 v{vLane}, -1, v{vLane}")
    def staging_addr():
        if DO: return
        a(f"v_and_b32 v{t2}, 15, v{vLane}")
        a(f"s_lshl_b32 s{sA}, s{sKq}, 2")
        a(f"v_xor_b32 v{t2}, s{sA}, v{t2}")
        a(f"v_lshlrev_b32 v{t2}, 4, v{t2}")
        a(f"v_and_b32 v{t0}, 31, v{vLane}")
        a(f"v_lshl_add_u32 v{t2}, v{t0}, 8, v{t2}")
        a(f"v_lshrrev_b32 v{t0}, 5, v{vLane}")
        a(f"v_lshl_add_u32 v{t2}, v{t0}, 3, v{t2}")
        a(f"s_lshl_b32 s{sA}, s{sQt}, 13")
        a(f"s_add_u32 s{sA}, s{sA}, {STG}")
        a(f"v_add_u32 v{t2}, s{sA}, v{t2}")
    def staging_write(R):
        PK = F
        for g in range(4):
            a(f"v_cvt_pk_bf16_f32 v{PK+2*g}, v{R+4*g}, v{R+4*g+1}")
            a(f"v_cvt_pk_bf16_f32 v{PK+2*g+1}, v{R+4*g+2}, v{R+4*g+3}")
            if DO: continue
            a(f"v_xor_b32 v{t0}, {g << 4}, v{t2}")
            a(f"ds_write_b64 v{t0}, {vr(PK+2*g,2)}")
    if FASTC:
        a(f"s_cmp_lg_u32 s{sSafe}, 0")
        a("s_cbranch_scc1 K1_COMB_GEN")
        a(f"v_mov_b32 v{t1}, v{vL}")
        a(f"v_lshlrev_b32 v{t2}, 4, v{vLane}")
        if opt.get("cv", 1):
            a("s_nop 0")
            a(f"v_permlane32_swap_b32 v{vL}, v{t1}")
            a("s_nop 0")
            a(f"v_add_f32 v{vL}, v{vL}, v{t1}")
        else:
            a(f"s_mul_i32 s{sB}, s{sQt}, {16*2048}")
            a(f"v_permlane32_swap_b32 v{vL}, v{t1}")
            a(f"s_lshl_b32 s{sA}, s{sKq}, 11")
            a(f"s_add_u32 s{sA}, s{sA}, s{sB}")
            a(f"s_add_u32 s{sA}, s{sA}, {EX}")
            a(f"v_add_f32 v{vL}, v{vL}, v{t1}")
            a(f"v_add_u32 v{t1}, s{sA}, v{t2}")
        a(f"v_cmp_ngt_f32 s[82:83], {f2u(2.0**20):#x}, v{vL}" if False else f"v_cmp_ngt_f32 vcc, {f2u(2.0**20):#x}, v{vL}")
        a(f"v_and_b32 v{t0}, 31, v{vLane}")
        a("s_nop 0")
        a(f"s_mov_b64 s[82:83], vcc")
        a(f"v_cmp_nlt_f32 vcc, {f2u(2.0**-20):#x}, v{vL}")
        a("s_nop 1")
        a(f"s_or_b64 vcc, vcc, s[82:83]")
        a(f"s_cmp_lg_u64 vcc, 0")
        a(f"s_cselect_b32 s{sD}, 1, 0")
        a(f"v_lshlrev_b32 v{t0}, 4, v{t0}")
        a(f"s_lshl_b32 s{sA}, s{sQt}, 9")
        a(f"s_add_u32 s{sA}, s{sA}, {STAT}")
        a(f"v_add_u32 v{t0}, s{sA}, v{t0}")
        a(f"s_lshl_b32 s{sA}, s{sKq}, 2")
        a(f"v_add_u32 v{t3}, s{sA}, v{t0}")
        a(f"ds_write_b32 v{t3}, v{vL}")
        a(f"s_lshl_b32 s{sA}, s{sW}, 2")
        a(f"s_add_u32 s{sA}, s{sA}, {BADF}")
        a(f"v_mov_b32 v{t3}, s{sA}")
        a(f"v_mov_b32 v{t4}, s{sD}")
        a(f"ds_write_b32 v{t3}, v{t4}")
        a("s_waitcnt lgkmcnt(0)")
        CV = opt.get("cv", 1)
        def selection(A1):
            a(f"v_and_b32 v{t3}, 3, v{vLane}")
            a(f"v_lshlrev_b32 v{t3}, 4, v{t3}")
            a(f"v_mov_b32 v{NM+8}, {0x3f80:#x}")
            a(f"v_mov_b32 v{NM+9}, 0")
            a(f"v_lshlrev_b64 {vr(NM+8,2)}, v{t3}, {vr(NM+8,2)}")
            for r in range(0, 8, 2):
                a(f"v_mov_b64 {vr(A1+r,2)}, 0")
            for k in range(4):
                a(f"s_mov_b32 exec_lo, {0x0f << (8*k):#x}")
                a(f"s_mov_b32 exec_hi, {0xf0 << (8*k):#x}")
                a(f"v_mov_b64 {vr(A1+2*k,2)}, {vr(NM+8,2)}")
            a("s_mov_b64 exec, -1")
        def post_e1_head():
            a(f"v_mov_b32 v{t3}, {BADF}")
            if CDIAG: P.stamp(2, force=2)
            a("s_waitcnt lgkmcnt(0)")
            if CDIAG: P.stamp(3, force=2)
            a("s_barrier")
            if CDIAG: P.stamp(4, force=2)
            for j in range(3):
                a(f"ds_read_b128 {vr(F+4*j,4)}, v{t3} offset:{16*j}")
            a(f"ds_read_b128 {vr(F+12,4)}, v{t0}")
        def check_and_rcp(nt):
            a(f"s_waitcnt lgkmcnt({nt})")
            for j in range(0, 12, 3):
                a(f"v_or3_b32 v{F+j}, v{F+j}, v{F+j+1}, v{F+j+2}")
            a(f"v_or3_b32 v{F}, v{F}, v{F+3}, v{F+6}")
            a(f"v_or_b32 v{F}, v{F}, v{F+9}")
            a(f"v_cmp_ne_u32 vcc, 0, v{F}")
            a("s_cbranch_vccnz K1_REDO")
            a(f"v_add_f32 v{F+12}, v{F+12}, v{F+13}")
            a(f"v_add_f32 v{F+14}, v{F+14}, v{F+15}")
            a(f"v_add_f32 v{F+12}, v{F+12}, v{F+14}")
            a(f"v_rcp_f32 v{F+12}, v{F+12}")
        A1 = S
        if CV:
            selection(A1)
            a(f"s_mul_i32 s{sB}, s{sQt}, {4*3*2048}")
            a(f"s_add_u32 s{sB}, s{sB}, {EX}")
            a(f"v_add_u32 v{t1}, s{sB}, v{t2}")
            for c in range(1, 4):
                a(f"s_cmp_eq_u32 s{sKq}, {c}")
                a(f"s_cbranch_scc1 K1_CV{c}")
            for c in range(4):
                a.label(f"K1_CV{c}")
                n = 0
                for dt in range(4):
                    if dt == c: continue
                    rank = (c - dt - 1) & 3
                    pk = F + 8*n; n += 1
                    for j in range(8):
                        a(f"v_cvt_pk_bf16_f32 v{pk+j}, v{O+16*dt+2*j}, v{O+16*dt+2*j+1}")
                    for g2 in range(2):
                        a(f"ds_write_b128 v{t1}, {vr(pk+4*g2,4)} offset:{dt*6144 + rank*2048 + g2*1024}")
                post_e1_head()
                free = [O + 16*d + 4*x for d in range(4) if d != c for x in range(4)]
                for rk in range(3):
                    for g2 in range(2):
                        a(f"ds_read_b128 {vr(free[2*rk+g2],4)}, v{t1} offset:{c*6144 + rk*2048 + g2*1024}")
                staging_addr()
                check_and_rcp(6)
                R = O + 16*c
                for n in range(6):
                    rk, g2 = n >> 1, n & 1
                    a(f"s_waitcnt lgkmcnt({5-n})")
                    a(f"{MF32} {vr(R,16)}, {vr(A1+4*g2,4)}, {vr(free[2*rk+g2],4)}, {vr(R,16)}")
                a("s_nop 15")
                a("s_nop 3")
                if CDIAG: P.stamp(6, force=2)
                for r in range(0, 16, 2):
                    a(f"v_pk_mul_f32 {vr(R+r,2)}, {vr(R+r,2)}, {vr(F+12,2)} op_sel_hi:[1,0]")
                staging_write(R)
                if c < 3: a("s_branch K1_COMB_DONE")
        else:
            for dt in range(4):
                pk = F + 8*dt
                for j in range(8):
                    a(f"v_cvt_pk_bf16_f32 v{pk+j}, v{O+16*dt+2*j}, v{O+16*dt+2*j+1}")
                for g2 in range(2):
                    a(f"ds_write_b128 v{t1}, {vr(pk+4*g2,4)} offset:{dt*8192 + g2*1024}")
            A1, A2 = S, S+4
            i_, h_ = NM+8, NM+9
            a(f"v_and_b32 v{i_}, 31, v{vLane}")
            a(f"v_lshrrev_b32 v{h_}, 5, v{vLane}")
            a(f"v_bfe_u32 v{t3}, v{i_}, 2, 1")
            a(f"v_cmp_eq_u32 vcc, v{t3}, v{h_}")
            a(f"v_and_b32 v{t3}, 1, v{i_}")
            a(f"v_lshlrev_b32 v{t3}, 4, v{t3}")
            a(f"v_lshlrev_b32 v{t3}, v{t3}, {0x3f80:#x}" if False else f"v_mov_b32 v{t4}, {0x3f80:#x}")
            a(f"v_lshlrev_b32 v{t4}, v{t3}, v{t4}")
            a(f"v_cndmask_b32 v{t4}, 0, v{t4}, vcc")
            a(f"v_bfe_u32 v{t3}, v{i_}, 1, 1")
            a(f"v_lshrrev_b32 v{h_}, 3, v{i_}")
            a(f"v_lshl_or_b32 v{t3}, v{h_}, 1, v{t3}")
            for r in range(8):
                a(f"v_cmp_eq_u32 vcc, {r}, v{t3}")
                a(f"v_cndmask_b32 v{A1+r}, 0, v{t4}, vcc")
            a(f"s_lshl_b32 s{sA}, s{sKq}, 13")
            a(f"s_add_u32 s{sA}, s{sA}, s{sB}")
            a(f"s_add_u32 s{sA}, s{sA}, {EX}")
            a(f"v_add_u32 v{t1}, s{sA}, v{t2}")
            a(f"v_mov_b32 v{t3}, {BADF}")
            if CDIAG: P.stamp(2, force=2)
            a("s_waitcnt lgkmcnt(0)")
            if CDIAG: P.stamp(3, force=2)
            a("s_barrier")
            if CDIAG: P.stamp(4, force=2)
            for j in range(3):
                a(f"ds_read_b128 {vr(F+4*j,4)}, v{t3} offset:{16*j}")
            a(f"ds_read_b128 {vr(F+12,4)}, v{t0}")
            TT = O
            for src in range(4):
                for g2 in range(2):
                    a(f"ds_read_b128 {vr(TT+8*src+4*g2,4)}, v{t1} offset:{src*2048+g2*1024}")
            staging_addr()
            a("s_waitcnt lgkmcnt(8)")
            for j in range(0, 12, 3):
                a(f"v_or3_b32 v{F+j}, v{F+j}, v{F+j+1}, v{F+j+2}")
            a(f"v_or3_b32 v{F}, v{F}, v{F+3}, v{F+6}")
            a(f"v_or_b32 v{F}, v{F}, v{F+9}")
            a(f"v_cmp_ne_u32 vcc, 0, v{F}")
            a("s_cbranch_vccnz K1_REDO")
            R = S + 8 if False else O + 32
            a(f"v_add_f32 v{F+12}, v{F+12}, v{F+13}")
            a(f"v_add_f32 v{F+14}, v{F+14}, v{F+15}")
            a(f"v_add_f32 v{F+12}, v{F+12}, v{F+14}")
            a(f"v_rcp_f32 v{F+12}, v{F+12}")
            for n in range(8):
                src, g2 = n >> 1, n & 1
                a(f"s_waitcnt lgkmcnt({7-n})")
                a(f"{MF32} {vr(R,16)}, {vr(A1+4*g2,4)}, {vr(TT+8*src+4*g2,4)}, {'0' if n == 0 else vr(R,16)}")
            a("s_nop 15")
            a("s_nop 3")
            if CDIAG: P.stamp(6, force=2)
            for r in range(16):
                a(f"v_mul_f32 v{R+r}, v{R+r}, v{F+12}")
            staging_write(R)
        a("s_branch K1_COMB_DONE")
        a.label("K1_COMB_GEN")
    a(f"v_mov_b32 v{t1}, v{vL}")
    ST = NM + 8
    a(f"v_sub_f32 v{ST}, 0, v{NM}")
    a(f"v_and_b32 v{t0}, 31, v{vLane}")
    a(f"v_permlane32_swap_b32 v{vL}, v{t1}")
    a(f"v_add_f32 v{ST+1}, v{vL}, v{t1}")
    a(f"v_cmp_ngt_f32 vcc, {f2u(2.0**20):#x}, v{ST+1}")
    a(f"s_lshl_b32 s{sA}, s{sW}, 2")
    a(f"s_add_u32 s{sA}, s{sA}, {BADF}")
    a(f"v_mov_b32 v{t3}, s{sA}")
    a(f"s_cmp_lg_u64 vcc, 0")
    a(f"s_cselect_b32 s{sA}, 1, 0")
    a(f"s_cmp_eq_u32 s{sSafe}, 1")
    a(f"s_cselect_b32 s{sA}, s{sA}, 0")
    a(f"v_mov_b32 v{t4}, s{sA}")
    a(f"ds_write_b32 v{t3}, v{t4}")
    a(f"v_lshlrev_b32 v{t0}, 3, v{t0}")
    a(f"s_lshl_b32 s{sA}, s{sQt}, 10")
    a(f"s_add_u32 s{sA}, s{sA}, {STAT}")
    a(f"v_add_u32 v{t0}, s{sA}, v{t0}")
    a(f"s_lshl_b32 s{sB}, s{sKq}, 8")
    a(f"v_add_u32 v{t1}, s{sB}, v{t0}")
    R = S
    a(f"v_lshlrev_b32 v{t2}, 4, v{vLane}")
    a(f"s_mul_i32 s{sB}, s{sQt}, {4*3*2048}")
    a(f"s_add_u32 s{sB}, s{sB}, {EX}")
    a(f"ds_write_b64 v{t1}, {vr(ST,2)}")
    a("s_waitcnt lgkmcnt(0)")
    for dt in range(4):
        a(f"s_cmp_eq_u32 s{sKq}, {dt}")
        a(f"s_cbranch_scc1 K1_OWN{dt}")
        a(f"s_sub_u32 s{sA}, s{sKq}, {dt+1}")
        a(f"s_and_b32 s{sA}, s{sA}, 3")
        a(f"s_lshl_b32 s{sA}, s{sA}, 11")
        a(f"s_add_u32 s{sA}, s{sA}, s{sB}")
        a(f"v_add_u32 v{t1}, s{sA}, v{t2}")
        pk = F + 8*dt
        for j in range(8):
            a(f"v_cvt_pk_bf16_f32 v{pk+j}, v{O+16*dt+2*j}, v{O+16*dt+2*j+1}")
        for g2 in range(2):
            a(f"ds_write_b128 v{t1}, {vr(pk+4*g2,4)} offset:{dt*3*2048 + g2*1024}")
        a(f"s_branch K1_NXT{dt}")
        a.label(f"K1_OWN{dt}")
        for r in range(0, 16, 2):
            a(f"v_mov_b64 {vr(R+r,2)}, {vr(O+16*dt+r,2)}")
        a.label(f"K1_NXT{dt}")
    a("s_waitcnt lgkmcnt(0)")
    a("s_barrier")
    a(f"v_mov_b32 v{t1}, {BADF}")
    for j in range(3):
        a(f"ds_read_b128 {vr(F+4*j,4)}, v{t1} offset:{16*j}")
    for rk in range(3):
        a(f"s_add_u32 s{sA}, s{sKq}, {rk+1}")
        a(f"s_and_b32 s{sA}, s{sA}, 3")
        a(f"s_lshl_b32 s{sA}, s{sA}, 8")
        a(f"v_add_u32 v{t1}, s{sA}, v{t0}")
        a(f"ds_read_b64 {vr(ST+2+2*rk,2)}, v{t1}")
    a(f"s_mul_i32 s{sA}, s{sKq}, {3*2048}")
    a(f"s_add_u32 s{sA}, s{sA}, s{sB}")
    a(f"v_add_u32 v{t1}, s{sA}, v{t2}")
    TT = O
    for rk in range(3):
        for g2 in range(2):
            a(f"ds_read_b128 {vr(TT+8*rk+4*g2,4)}, v{t1} offset:{rk*2048+g2*1024}")
    staging_addr()
    a("s_waitcnt lgkmcnt(6)")
    for j in range(0, 12, 3):
        a(f"v_or3_b32 v{F+j}, v{F+j}, v{F+j+1}, v{F+j+2}")
    a(f"v_or3_b32 v{F}, v{F}, v{F+3}, v{F+6}")
    a(f"v_or_b32 v{F}, v{F}, v{F+9}")
    a(f"v_cmp_ne_u32 vcc, 0, v{F}")
    a("s_cbranch_vccnz K1_REDO")
    mf = t3
    a(f"v_max3_f32 v{mf}, v{ST}, v{ST+2}, v{ST+4}")
    a(f"v_max_f32 v{mf}, v{mf}, v{ST+6}")
    for j in range(4):
        a(f"v_sub_f32 v{ST+2*j}, v{ST+2*j}, v{mf}")
    for j in range(4):
        a(f"v_exp_f32 v{ST+2*j}, v{ST+2*j}")
    a("s_nop 0")
    a(f"v_mul_f32 v{t4}, v{ST}, v{ST+1}")
    for j in range(1, 4):
        a(f"v_fma_f32 v{t4}, v{ST+2*j}, v{ST+2*j+1}, v{t4}")
    a(f"v_rcp_f32 v{t4}, v{t4}")
    a("s_nop 0")
    for j in range(4):
        a(f"v_mul_f32 v{ST+2*j}, v{ST+2*j}, v{t4}")
    for r in range(0, 16, 2):
        a(f"v_pk_mul_f32 {vr(R+r,2)}, {vr(R+r,2)}, {vr(ST,2)} op_sel_hi:[1,0]")
    U = O+32
    for rk in range(3):
        a(f"s_waitcnt lgkmcnt({4-2*rk})")
        for j in range(8):
            p = TT + 8*rk + j
            u = U + 2*(j & 3)
            a(f"v_lshlrev_b32 v{u}, 16, v{p}")
            a(f"v_and_b32 v{u+1}, 0xffff0000, v{p}")
            a(f"v_pk_fma_f32 {vr(R+2*j,2)}, {vr(u,2)}, {vr(ST+2+2*rk,2)}, {vr(R+2*j,2)} op_sel_hi:[1,0,1]")
    PK = F
    staging_write(R)
    if FASTC: a.label("K1_COMB_DONE")
    if not FUSED:
        a(f"v_lshrrev_b32 v{t0}, 4, v{vLane}")
        a(f"s_lshl_b32 s{sA}, s{sW}, 3")
        a(f"v_add_u32 v{t0}, s{sA}, v{t0}")
        a(f"v_and_b32 v{t1}, 15, v{vLane}")
        a(f"v_lshlrev_b32 v{t3}, 8, v{t0}")
        a(f"v_lshl_add_u32 v{t3}, v{t1}, 4, v{t3}")
        a(f"v_add_u32 v{t3}, {STG}, v{t3}")
        a(f"v_and_b32 v{t4}, 15, v{t0}")
        a(f"v_xor_b32 v{t1}, v{t1}, v{t4}")
        a(f"s_cmp_ge_u32 s{sW}, 6")
        a(f"s_cselect_b32 s{sA}, {256 - 48*8192}, 0")
        a(f"v_lshlrev_b32 v{t0}, 13, v{t0}")
        a(f"v_add_u32 v{t0}, s{sA}, v{t0}")
        a(f"v_lshl_add_u32 v{t4}, v{t1}, 4, v{t0}")
        a(f"v_xor_b32 v{t1}, 4, v{t1}")
        a(f"v_lshl_add_u32 v{t0}, v{t1}, 4, v{t0}")
        a(f"v_add_u32 v{t0}, {4*8192}, v{t0}")
        a("s_waitcnt lgkmcnt(0)")
        a("s_barrier")
        a(f"ds_read_b128 {vr(PK,4)}, v{t3}")
        a(f"ds_read_b128 {vr(PK+4,4)}, v{t3} offset:1024")
        a("s_waitcnt lgkmcnt(1)")
        a(f"buffer_store_dwordx4 {vr(PK,4)}, v{t4}, s[{SO}:{SO+3}], 0 offen")
        a("s_waitcnt lgkmcnt(0)")
        a(f"buffer_store_dwordx4 {vr(PK+4,4)}, v{t0}, s[{SO}:{SO+3}], 0 offen")
        P.stamp(6)
        if PROF: a("s_waitcnt vmcnt(0)")
        P.stamp(7)
        P.stamp(8, real=True)
        if LIGHT:
            for k in range(6):
                a(f"s_mov_b32 s{84+2+k}, s{96+k}")
        P.dump(52, sW, 64 << 20, 12)
        if opt.get("padto", 0):
            a.label("K1_PAD")
            a("s_memrealtime s[82:83]")
            a("s_waitcnt lgkmcnt(0)")
            a("s_sub_u32 s82, s82, s100")
            a(f"s_cmp_lt_u32 s82, {opt['padto']}")
            a("s_cbranch_scc1 K1_PAD")
        a.label("K1_END")
        a("s_endpgm")
        return NV
    a(f"v_mov_b32 v0, v{vLane}")
    if DO:
        a(f"v_lshlrev_b32 v{t0}, 4, v0")
        a(f"s_lshl_b32 s{sA}, s{sW}, 11")
        for g2 in range(2):
            a(f"buffer_store_dwordx4 {vr(PK+4*g2,4)}, v{t0}, s[{SO}:{SO+3}], s{sA} offen offset:{g2*1024} sc1")
        P.stamp(6)
        a(f"s_cmp_ge_u32 s{sW}, 8")
        a("s_cbranch_scc1 O3_LOADER")
        a("s_waitcnt vmcnt(0)")
        a("s_barrier")
        P.stamp(7)
        outproj3(a, opt, P)
        a.label("K1_END")
        a("s_endpgm")
        return NV
    if OPM == 1:
        a(f"s_cmp_ge_u32 s{sW}, 8")
        a(f"s_cselect_b32 s{sA}, 4, 0")
        a(f"s_sub_u32 s{sE}, s{sW}, s{sA}")
        a(f"s_mul_i32 s{sE}, s{sE}, 12")
    else:
        a(f"s_mul_i32 s{sE}, s{sW}, 12")
    a(f"v_lshrrev_b32 v{t0}, 4, v0")
    a(f"v_and_b32 v{t1}, 15, v0")
    a(f"v_lshlrev_b32 v{t3}, 8, v{t0}")
    a(f"v_lshl_add_u32 v{t3}, v{t1}, 4, v{t3}")
    a(f"s_lshl_b32 s{sA}, s{sE}, 8")
    a(f"s_add_u32 s{sA}, s{sA}, {STG}")
    a(f"v_add_u32 v{t3}, s{sA}, v{t3}")
    a(f"v_xor_b32 v{t1}, v{t1}, v{t0}")
    a(f"v_lshlrev_b32 v{t0}, 13, v{t0}")
    a("s_waitcnt lgkmcnt(0)")
    if CDIAG: P.stamp(7, force=2)
    a("s_barrier")
    if CDIAG: P.stamp(9, force=2)
    if OPM == 1:
        a(f"s_cmp_lt_u32 s{sQt}, 1")
        a("s_cbranch_scc1 K1_STORE")
        a(f"s_cmp_lt_u32 s{sQt}, 2")
        a("s_cbranch_scc1 OP_LOADER0")
    else:
        a(f"s_cmp_ge_u32 s{sW}, 8")
        a("s_cbranch_scc1 O3_LOADER")
    a.label("K1_STORE")
    for j in range(3):
        a(f"ds_read_b128 {vr(PK+4*j,4)}, v{t3} offset:{j*1024}")
    a(f"s_cmp_ge_u32 s{sE}, 48")
    a(f"s_cselect_b32 s{sB}, {256 - 48*8192}, 0")
    for j in range(3):
        a(f"s_add_u32 s{sA}, s{sE}, {4*j}")
        a(f"s_and_b32 s{sD}, s{sA}, 12")
        a(f"v_xor_b32 v{t4}, s{sD}, v{t1}")
        a(f"v_lshl_add_u32 v{t4}, v{t4}, 4, v{t0}")
        a(f"s_lshl_b32 s{sA}, s{sA}, 13")
        a(f"s_add_u32 s{sA}, s{sA}, s{sB}")
        a(f"s_waitcnt lgkmcnt({2-j})")
        a(f"buffer_store_dwordx4 {vr(PK+4*j,4)}, v{t4}, s[{SO}:{SO+3}], s{sA} offen{'' if opt.get('loc', 0) & 1 else ' sc1'}")
    P.stamp(6)
    if CDIAG: P.stamp(10, force=2)
    a("s_waitcnt vmcnt(0)")
    a("s_barrier")
    if CDIAG: P.stamp(11, force=2)
    P.stamp(7)
    if OPM == 1:
        outproj(a, opt, P, fused=True)
    else:
        outproj3(a, opt, P)
    a.label("K1_END")
    a("s_endpgm")
    return NV

def kernel2(a, opt):
    a.label("k2_kernel")
    a("s_cmp_ge_u32 s2, 256")
    a("s_cbranch_scc1 K2_END")
    P = Prof(a, 64, 62, 40)
    P.init(12)
    P.stamp(0, real=True)
    P.stamp(1)
    a("s_load_dwordx2 s[36:37], s[0:1], 32")
    a("s_load_dwordx2 s[50:51], s[0:1], 72")
    a("s_load_dwordx2 s[48:49], s[0:1], 80")
    a("s_load_dwordx2 s[52:53], s[0:1], 96")
    a("v_lshrrev_b32 v1, 6, v0")
    a("v_and_b32 v0, 63, v0")
    a("v_readfirstlane_b32 s4, v1")
    a("s_and_b32 s5, s2, 3")
    a("s_bfe_u32 s6, s2, 0x10002")
    a("s_lshr_b32 s7, s2, 5")
    a("s_bfe_u32 s3, s2, 0x20003")
    a("s_waitcnt lgkmcnt(0)")
    nv = outproj(a, opt, P, fused=False)
    a.label("K2_END")
    a("s_endpgm")
    return nv

def outproj3(a, opt, P):
    F1L, SEC = flaglayout(opt)
    DO = direct_o(opt)
    sW = 4
    SX, SWO, SO, SFL, SPX = 8, 12, 16, 28, 24
    sA, sB, sD, sLam = 20, 21, 22, 23
    sP, sSl, sSlX, sWg, sXg, sT = 32, 33, 34, 35, 38, 39
    NS, STG = 5, 28672
    PXOFF = 16 << 20
    t0, t1, t2, t3, t4 = 8, 9, 10, 11, 12
    WA, XA = 2, 14
    FBUF = [24, 64]
    ACC = 104
    RX = 24
    vWo, vXo, vPoll, vPa = 20, 21, 22, 23
    a(f"s_cmp_lg_u32 s{sW}, 0")
    a("s_cbranch_scc1 O3_NOFLAG")
    a(f"s_lshl_b32 s{sA}, s46, 2")
    a(f"s_add_u32 s{sA}, s{sA}, s45")
    a(f"v_mov_b32 v{t0}, s96")
    if F1L:
        a(f"v_lshl_add_u32 v{t1}, v0, 7, s{sA}")
        a("s_mov_b64 exec, 0xff")
    else:
        a(f"v_mov_b32 v{t1}, s{sA}")
        a("s_mov_b64 exec, 1")
    a(f"buffer_store_dword v{t0}, v{t1}, s[{SFL}:{SFL+3}], 0 offen{'' if opt.get('loc', 0) & 2 else ' sc1'}")
    a("s_mov_b64 exec, -1")
    a.label("O3_NOFLAG")
    a(f"v_bfe_u32 v{t0}, v0, 2, 2")
    a(f"v_lshrrev_b32 v{t1}, 4, v0")
    a(f"v_and_b32 v{t2}, 1, v{t1}")
    a(f"v_lshl_or_b32 v{t2}, v{t2}, 2, v{t0}")
    a(f"s_and_b32 s{sA}, s{sW}, 3")
    a(f"s_lshl_b32 s{sA}, s{sA}, 1")
    a(f"v_xor_b32 v{t2}, s{sA}, v{t2}")
    if DO:
        a(f"v_lshrrev_b32 v{t3}, 1, v{t1}")
        a(f"v_lshlrev_b32 v{t3}, 4, v{t3}")
        a(f"v_and_b32 v{t4}, 1, v{t1}")
        a(f"v_lshl_add_u32 v{t3}, v{t4}, 2, v{t3}")
        a(f"v_add_u32 v{t3}, v{t3}, v{t0}")
    else:
        a(f"v_lshl_add_u32 v{t3}, v{t1}, 3, v{t0}")
    a(f"v_lshlrev_b32 v{t3}, 8, v{t3}")
    a(f"v_lshl_add_u32 v{t3}, v{t2}, 5, v{t3}")
    a(f"v_and_b32 v{t4}, 3, v0")
    a(f"v_lshl_add_u32 v{WA}, v{t4}, 3, v{t3}")
    a(f"v_xor_b32 v{WA+1}, 32, v{WA}")
    a(f"v_and_b32 v{t0}, 15, v0")
    if DO:
        a(f"v_mul_u32_u24 v{t2}, 1536, v{t1}")
        a(f"v_lshl_add_u32 v{t2}, v{t0}, 4, v{t2}")
        a(f"s_lshr_b32 s{sA}, s{sW}, 2")
        a(f"s_mul_i32 s{sA}, s{sA}, 768")
        a(f"s_add_u32 s{sA}, s{sA}, 16384")
        a(f"v_add_u32 v{XA}, s{sA}, v{t2}")
    else:
        a(f"v_lshrrev_b32 v{t2}, 1, v{t0}")
        a(f"v_xor_b32 v{t2}, v{t1}, v{t2}")
        a(f"v_lshlrev_b32 v{t2}, 4, v{t2}")
        a(f"v_lshl_add_u32 v{t2}, v{t0}, 7, v{t2}")
        a(f"s_lshr_b32 s{sA}, s{sW}, 2")
        a(f"s_mul_i32 s{sA}, s{sA}, 6144")
        a(f"s_add_u32 s{sA}, s{sA}, 16384")
        a(f"v_add_u32 v{XA}, s{sA}, v{t2}")
        a(f"v_xor_b32 v{XA+1}, 64, v{XA}")
    for r in range(0, 24, 2):
        a(f"v_mov_b64 {vr(ACC+r,2)}, 0")
    def read_list(buf):
        fb = FBUF[buf]
        L = []
        for ks in range(2):
            for tt in range(2):
                for e in range(2):
                    L.append(f"ds_read_b64_tr_b16 {vr(fb + (tt*2+ks)*4 + e*2, 2)}, v{WA+tt} offset:{ks*8192 + e*(2048 if DO else 1024)}")
            for rt in range(3):
                if DO: L.append(f"ds_read_b128 {vr(fb + 16 + (rt*2+ks)*4, 4)}, v{XA} offset:{ks*6144 + rt*256}")
                else: L.append(f"ds_read_b128 {vr(fb + 16 + (rt*2+ks)*4, 4)}, v{XA+ks} offset:{rt*2048}")
        return L
    def mfma_list(buf):
        fb = FBUF[buf]
        L = []
        for ks in range(2):
            for rt in range(3):
                for tt in range(2):
                    acc = ACC + (tt*3+rt)*4
                    L.append(f"{MF16} {vr(acc,4)}, {vr(fb+(tt*2+ks)*4,4)}, {vr(fb+16+(rt*2+ks)*4,4)}, {vr(acc,4)}")
        return L
    def reads(buf):
        for x in read_list(buf): a(x)
    def mfmas(buf):
        for x in mfma_list(buf): a(x)
    def both(rbuf, mbuf):
        R, M = read_list(rbuf), mfma_list(mbuf)
        if opt.get("pw", 1):
            pat = {1: [2,1,1,2,1,1,2,1,1,2,0,0], 2: [1,1,1,1,1,1,2,2,2,2,0,0], 3: [2]*7+[0]*5}[opt.get("pw", 1)]
            k = 0
            for n in range(12):
                if n == 6: a(f"s_waitcnt lgkmcnt({k})")
                a(M[n])
                for x in R[k:k+pat[n]]: a(x)
                k += pat[n]
                if n == 10: adv()
            return
        if opt.get("fl", 3) & 1:
            per = opt.get("flo", 2)
            for n in range(12):
                a(M[n])
                for x in R[per*n:per*n+per]: a(x)
                if n == 8: adv()
            return
        for n in range(12):
            a(M[n])
            a(R[n])
            if n in (5, 11): a(R[12 + (n == 11)])
        adv()
    def adv():
        a(f"s_add_u32 s{sA}, s{sSl}, {STG}")
        a(f"s_cmp_ge_u32 s{sA}, {NS*STG}")
        a(f"s_cselect_b32 s{sB}, {NS*STG}, 0")
        a(f"s_sub_u32 s{sA}, s{sA}, s{sB}")
        a(f"s_sub_u32 s{sD}, s{sA}, s{sSl}")
        a(f"s_mov_b32 s{sSl}, s{sA}")
        for v in ((WA, WA+1, XA) if DO else (WA, WA+1, XA, XA+1)):
            a(f"v_add_u32 v{v}, s{sD}, v{v}")
    a(f"s_mov_b32 s{sSl}, 0")
    EX2 = opt.get("ex", 3) >= 2
    EX4 = opt.get("ex", 3) == 4
    EX3 = opt.get("ex", 3) == 3 or EX4
    PPOLL = opt.get("ppoll", 0)
    vTk, vTa, vPl = 128, 129, 130
    def poll_pipe(uid, addr, execmask, want, first_sleep, D=4, slp=0):
        a(f"s_mov_b64 exec, {execmask}")
        a(f"s_mov_b32 s{sP}, 0")
        for k in range(D):
            a(f"buffer_load_dword v{vPl+k}, v{addr}, s[{SFL}:{SFL+3}], 0 offen sc1")
            if k < D-1: a(f"s_sleep {first_sleep}")
        a.label(f"O3_PP{uid}")
        for k in range(D):
            a(f"s_waitcnt vmcnt({D-1})")
            a(f"v_cmp_eq_u32 vcc, s96, v{vPl+k}")
            a("s_nop 1")
            a(f"s_and_b32 s{sD}, vcc_lo, {want}")
            a(f"s_cmp_eq_u32 s{sD}, {want}")
            a(f"s_cbranch_scc1 O3_PP{uid}_OK")
            if slp: a(f"s_sleep {slp}")
            a(f"buffer_load_dword v{vPl+k}, v{addr}, s[{SFL}:{SFL+3}], 0 offen sc1")
        a(f"s_add_u32 s{sP}, s{sP}, 1")
        a(f"s_cmp_lt_u32 s{sP}, 100000")
        a(f"s_cbranch_scc1 O3_PP{uid}")
        a.label(f"O3_PP{uid}_OK")
        a("s_mov_b64 exec, -1")
    if EX2 and not EX3:
        a(f"s_lshl_b32 s{sA}, s{sW}, 7")
        a(f"s_add_u32 s{sA}, s{sA}, s47")
        a(f"s_add_u32 s{sA}, s{sA}, 64")
        a(f"v_mov_b32 v{vTa}, s{sA}")
        a(f"v_mov_b32 v{vTk}, 1")
    vNon = 131
    if EX4:
        a(f"s_lshl_b32 s{sA}, s{sW}, 7")
        a(f"s_add_u32 s{sA}, s{sA}, s47")
        a(f"v_lshl_add_u32 v{t0}, v0, 2, s{sA}")
        a("s_mov_b64 exec, 15")
        a(f"buffer_load_dword v{vNon}, v{t0}, s[{SFL}:{SFL+3}], 0 offen sc1")
        a("s_mov_b64 exec, -1")
    if PPOLL:
        a(f"s_cmp_lg_u32 s{sW}, 1")
        a("s_cbranch_scc1 O3_NOPOLL1")
        a(f"v_lshlrev_b32 v{t0}, 2, v0")
        a(f"v_add_u32 v{t0}, s45, v{t0}")
        if F1L:
            a(f"s_lshl_b32 s{sA}, s46, 7")
            a(f"v_add_u32 v{t0}, s{sA}, v{t0}")
        poll_pipe(1, t0, "0xff", "0xff", opt.get("psl", 8), opt.get("pd1", 1), opt.get("pslp1", 2))
        a.label("O3_NOPOLL1")
    a("s_barrier")
    a("s_barrier")
    P.stamp(9)
    reads(0); adv()
    a("s_waitcnt lgkmcnt(0)")
    a(f"s_mov_b32 s{sP}, 0")
    a.label("O3_C_LOOP")
    for half in range(2):
        a("s_barrier")
        if EX2 and not EX3 and half == opt.get("tkh", 0):
            a(f"s_cmp_eq_u32 s{sP}, {opt.get('tkp', 6)}")
            a("s_cbranch_scc1 O3_TICKET")
            a.label("O3_TICKETR")
        both(1-half, half)
        a(f"s_waitcnt lgkmcnt({7 if opt.get('pw', 1) else 0})")
        if half == 0:
            a(f"s_cmp_eq_u32 s{sP}, 7")
            a("s_cbranch_scc1 O3_C_DONE")
    a(f"s_add_u32 s{sP}, s{sP}, 1")
    a("s_branch O3_C_LOOP")
    a.label("O3_C_DONE")
    if opt.get('pw', 1):
        ML = mfma_list(1)
        for x in ML[:6]: a(x)
        a("s_waitcnt lgkmcnt(0)")
        for x in ML[6:]: a(x)
    else:
        mfmas(1)
    P.stamp(10)
    def out_addr():
        a(f"s_lshr_b32 s{sA}, s7, 1")
        a(f"s_mul_i32 s{sA}, s{sA}, 96")
        a(f"s_lshr_b32 s{sD}, s{sW}, 2")
        a(f"s_mul_i32 s{sD}, s{sD}, 48")
        a(f"s_add_u32 s{sA}, s{sA}, s{sD}")
        a(f"s_lshl_b32 s{sA}, s{sA}, 12")
        a(f"s_lshl_b32 s{sD}, s6, 11")
        a(f"s_add_u32 s{sA}, s{sA}, s{sD}")
        a(f"s_lshl_b32 s{sD}, s46, 8")
        a(f"s_add_u32 s{sA}, s{sA}, s{sD}")
        a(f"s_and_b32 s{sD}, s{sW}, 3")
        a(f"s_lshl_b32 s{sD}, s{sD}, 6")
        a(f"s_add_u32 s{sA}, s{sA}, s{sD}")
        a(f"s_mov_b32 s{SO}, s48")
        a(f"s_mov_b32 s{SO+1}, s49")
        a(f"s_mov_b32 s{SO+2}, {8*48*2048*2}")
        a(f"s_mov_b32 s{SO+3}, 0x20000")
        a(f"v_and_b32 v{t1}, 15, v0")
        a(f"v_lshrrev_b32 v{t2}, 4, v0")
        a(f"v_lshlrev_b32 v{t1}, 12, v{t1}")
        a(f"v_lshl_add_u32 v{t1}, v{t2}, 3, v{t1}")
    def out_store():
        for tt in range(2):
            for rt in range(3):
                acc = ACC + (tt*3+rt)*4
                a(f"v_cvt_pk_bf16_f32 v{acc}, v{acc}, v{acc+1}")
                a(f"v_cvt_pk_bf16_f32 v{acc+1}, v{acc+2}, v{acc+3}")
                a(f"s_add_u32 s{sD}, s{sA}, {rt*16*4096}")
                a(f"buffer_store_dwordx2 {vr(acc,2)}, v{t1}, s[{SO}:{SO+3}], s{sD} offen offset:{tt*32}{['', ' sc1', ' nt', ' sc0 sc1', ' sc1 nt'][opt.get('outsc', 2)]}")
    if EX4:
        a(f"s_sub_u32 s{sA}, s47, {SEC}")
        a(f"s_lshr_b32 s{sA}, s{sA}, 10")
        a(f"s_lshl_b32 s{sA}, s{sA}, 3")
        a(f"s_add_u32 s{sA}, s{sA}, s{sW}")
        a(f"s_lshl_b32 s{sA}, s{sA}, 14")
        a(f"s_add_u32 s{sA}, s{sA}, {PXOFF}")
        a(f"s_add_u32 s{SPX}, s52, s{sA}")
        a(f"s_addc_u32 s{SPX+1}, s53, 0")
        a(f"s_mov_b32 s{SPX+2}, 16384")
        a(f"s_mov_b32 s{SPX+3}, 0x20000")
        a(f"v_lshlrev_b32 v{t0}, 4, v0")
        a(f"s_and_b32 s{sT}, s{sW}, 3")
        a(f"s_cmp_eq_u32 s{sT}, s5")
        a("s_cbranch_scc1 O3_LAST")
        for j in range(4):
            for k in range(3):
                p = 3*j + k
                a(f"v_cvt_pk_bf16_f32 v{RX+4*j+k}, v{ACC+2*p}, v{ACC+2*p+1}")
            a(f"v_mov_b32 v{RX+4*j+3}, s100")
        a(f"s_lshl_b32 s{sA}, s5, 12")
        for j in range(4):
            a(f"buffer_store_dwordx4 {vr(RX+4*j,4)}, v{t0}, s[{SPX}:{SPX+3}], s{sA} offen offset:{j*1024} sc1")
        P.stamp(11)
        P.stamp(8, real=True)
        P.dump(52, sW, 64 << 20, 12)
        a("s_endpgm")
        a.label("O3_LAST")
        a(f"v_lshlrev_b32 v{t1}, 12, v0")
        a(f"v_add_u32 v{t1}, {3*1024 + opt.get('lpg', 0)*16 + 12}, v{t1}")
        a(f"s_lshl_b32 s{sB}, 1, s5")
        a(f"s_xor_b32 s{sB}, s{sB}, 15")
        a(f"s_mov_b32 s{sP}, 0")
        a("s_mov_b64 exec, 15")
        a.label("O3_LP")
        a(f"buffer_load_dword v{vPl}, v{t1}, s[{SPX}:{SPX+3}], 0 offen sc1")
        a("s_waitcnt vmcnt(0)")
        a(f"v_cmp_eq_u32 vcc, v{vNon}, v{vPl}")
        a("s_nop 1")
        a(f"s_and_b32 s{sD}, vcc_lo, s{sB}")
        a(f"s_cmp_eq_u32 s{sD}, s{sB}")
        a("s_cbranch_scc1 O3_LP_OK")
        a(f"s_sleep {opt.get('pslp2', 2)}")
        a(f"s_add_u32 s{sP}, s{sP}, 1")
        a(f"s_cmp_lt_u32 s{sP}, 200000")
        a("s_cbranch_scc1 O3_LP")
        a.label("O3_LP_OK")
        a("s_mov_b64 exec, -1")
        P.stamp(4)
        if PROF: a(f"s_mov_b32 s{P.base+2}, s{sP}")
        sN = [34, 35, 38]
        sOf = [40, 41, 42]
        def loads(r):
            for j in range(4):
                a(f"buffer_load_dwordx4 {vr(RX+16*r+4*j,4)}, v{t0}, s[{SPX}:{SPX+3}], s{sOf[r]} offen offset:{j*1024} sc1")
        for r in range(3):
            a(f"s_add_u32 s{sA}, s5, {r+1}")
            a(f"s_and_b32 s{sA}, s{sA}, 3")
            a(f"s_lshl_b32 s{sOf[r]}, s{sA}, 12")
            loads(r)
            a(f"v_readlane_b32 s{sN[r]}, v{vNon}, s{sA}")
        out_addr()
        U = RX + 48
        a(f"s_mov_b32 s{sP}, 0")
        for r in range(3):
            a(f"s_waitcnt vmcnt({8 - 4*r})")
            a.label(f"O3_CHK{r}")
            b = RX + 16*r
            for j in range(4):
                a(f"v_xor_b32 v{U+j}, s{sN[r]}, v{b+4*j+3}")
            a(f"v_or3_b32 v{U}, v{U}, v{U+1}, v{U+2}")
            a(f"v_or_b32 v{U}, v{U}, v{U+3}")
            a(f"v_cmp_ne_u32 vcc, 0, v{U}")
            a(f"s_cbranch_vccnz O3_RETRY{r}")
            a.label(f"O3_GOOD{r}")
            for j in range(4):
                for k in range(3):
                    p = b + 4*j + k
                    u = U + 2*k
                    a(f"v_lshlrev_b32 v{u}, 16, v{p}")
                    a(f"v_and_b32 v{u+1}, 0xffff0000, v{p}")
                for k in range(3):
                    u = U + 2*k
                    d = ACC + 2*(3*j + k)
                    a(f"v_pk_add_f32 {vr(d,2)}, {vr(d,2)}, {vr(u,2)}")
        P.stamp(5)
        out_store()
        P.stamp(11)
        P.stamp(8, real=True)
        P.dump(52, sW, 64 << 20, 12)
        a("s_endpgm")
        for r in range(3):
            a.label(f"O3_RETRY{r}")
            a(f"s_add_u32 s{sP}, s{sP}, 1")
            a(f"s_cmp_ge_u32 s{sP}, 200000")
            a(f"s_cbranch_scc1 O3_GOOD{r}")
            loads(r)
            a("s_waitcnt vmcnt(0)")
            a(f"s_branch O3_CHK{r}")
    if EX2 and not EX4:
        a(f"s_sub_u32 s{sA}, s47, {SEC}")
        a(f"s_lshr_b32 s{sA}, s{sA}, 10")
        a(f"s_lshl_b32 s{sA}, s{sA}, 3")
        a(f"s_add_u32 s{sA}, s{sA}, s{sW}")
        a(f"s_mul_i32 s{sA}, s{sA}, {4*3072}")
        a(f"s_add_u32 s{sA}, s{sA}, {PXOFF}")
        a(f"s_add_u32 s{SPX}, s52, s{sA}")
        a(f"s_addc_u32 s{SPX+1}, s53, 0")
        a(f"s_mov_b32 s{SPX+2}, {4*3072}")
        a(f"s_mov_b32 s{SPX+3}, 0x20000")
        a(f"v_lshlrev_b32 v{t0}, 4, v0")
        a(f"s_lshl_b32 s{sB}, s{sW}, 7")
        a(f"s_add_u32 s{sB}, s{sB}, s47")
        if EX3:
            a(f"s_and_b32 s{sT}, s{sW}, 3")
            a(f"s_cmp_eq_u32 s{sT}, s5")
        else:
            a("s_waitcnt vmcnt(0)")
            a(f"v_readfirstlane_b32 s{sT}, v{vTk}")
            a("s_nop 3")
            a(f"s_cmp_eq_u32 s{sT}, 3")
        a("s_cbranch_scc1 O3_LAST")
        for k in range(12):
            a(f"v_cvt_pk_bf16_f32 v{RX+k}, v{ACC+2*k}, v{ACC+2*k+1}")
        a(f"s_mul_i32 s{sA}, s5, 3072")
        for j in range(3):
            a(f"buffer_store_dwordx4 {vr(RX+4*j,4)}, v{t0}, s[{SPX}:{SPX+3}], s{sA} offen offset:{j*1024} sc1")
        a(f"s_lshl_b32 s{sA}, s5, 2")
        a(f"s_add_u32 s{sA}, s{sA}, s{sB}")
        a(f"v_mov_b32 v{t1}, s96")
        a(f"v_mov_b32 v{t2}, s{sA}")
        a("s_waitcnt vmcnt(0)")
        P.stamp(3)
        a("s_mov_b64 exec, 1")
        a(f"buffer_store_dword v{t1}, v{t2}, s[{SFL}:{SFL+3}], 0 offen sc1")
        a("s_mov_b64 exec, -1")
        P.stamp(11)
        P.stamp(8, real=True)
        P.dump(52, sW, 64 << 20, 12)
        a("s_endpgm")
        if not EX3:
            a.label("O3_TICKET")
            a("s_mov_b64 exec, 1")
            a(f"buffer_atomic_add v{vTk}, v{vTa}, s[{SFL}:{SFL+3}], 0 offen sc0 sc1")
            a("s_mov_b64 exec, -1")
            a("s_branch O3_TICKETR")
        a.label("O3_LAST")
        a(f"v_lshlrev_b32 v{t1}, 2, v0")
        a(f"v_add_u32 v{t1}, s{sB}, v{t1}")
        a(f"s_lshl_b32 s{sB}, 1, s5")
        a(f"s_xor_b32 s{sB}, s{sB}, 15")
        poll_pipe(2, t1, "15", f"s{sB}", opt.get("psl2", 8), opt.get("pd2", 1), opt.get("pslp2", 2))
        P.stamp(4)
        if PROF: a(f"s_mov_b32 s{P.base+2}, s{sP}")
        for r in range(3):
            a(f"s_add_u32 s{sA}, s5, {r+1}")
            a(f"s_and_b32 s{sA}, s{sA}, 3")
            a(f"s_mul_i32 s{sA}, s{sA}, 3072")
            for j in range(3):
                a(f"buffer_load_dwordx4 {vr(RX+12*r+4*j,4)}, v{t0}, s[{SPX}:{SPX+3}], s{sA} offen offset:{j*1024} sc1")
        a(f"s_lshr_b32 s{sA}, s7, 1")
        a(f"s_mul_i32 s{sA}, s{sA}, 96")
        a(f"s_lshr_b32 s{sD}, s{sW}, 2")
        a(f"s_mul_i32 s{sD}, s{sD}, 48")
        a(f"s_add_u32 s{sA}, s{sA}, s{sD}")
        a(f"s_lshl_b32 s{sA}, s{sA}, 12")
        a(f"s_lshl_b32 s{sD}, s6, 11")
        a(f"s_add_u32 s{sA}, s{sA}, s{sD}")
        a(f"s_lshl_b32 s{sD}, s46, 8")
        a(f"s_add_u32 s{sA}, s{sA}, s{sD}")
        a(f"s_and_b32 s{sD}, s{sW}, 3")
        a(f"s_lshl_b32 s{sD}, s{sD}, 6")
        a(f"s_add_u32 s{sA}, s{sA}, s{sD}")
        a(f"s_mov_b32 s{SO}, s48")
        a(f"s_mov_b32 s{SO+1}, s49")
        a(f"s_mov_b32 s{SO+2}, {8*48*2048*2}")
        a(f"s_mov_b32 s{SO+3}, 0x20000")
        a(f"v_and_b32 v{t1}, 15, v0")
        a(f"v_lshrrev_b32 v{t2}, 4, v0")
        a(f"v_lshlrev_b32 v{t1}, 12, v{t1}")
        a(f"v_lshl_add_u32 v{t1}, v{t2}, 3, v{t1}")
        U = RX + 36
        for r in range(3):
            for j in range(3):
                a(f"s_waitcnt vmcnt({8 - 3*r - j})")
                for k in range(4):
                    p = RX + 12*r + 4*j + k
                    u = U + 2*k
                    a(f"v_lshlrev_b32 v{u}, 16, v{p}")
                    a(f"v_and_b32 v{u+1}, 0xffff0000, v{p}")
                for k in range(4):
                    u = U + 2*k
                    d = ACC + 2*(4*j + k)
                    a(f"v_pk_add_f32 {vr(d,2)}, {vr(d,2)}, {vr(u,2)}")
        P.stamp(5)
        for tt in range(2):
            for rt in range(3):
                acc = ACC + (tt*3+rt)*4
                a(f"v_cvt_pk_bf16_f32 v{acc}, v{acc}, v{acc+1}")
                a(f"v_cvt_pk_bf16_f32 v{acc+1}, v{acc+2}, v{acc+3}")
                a(f"s_add_u32 s{sD}, s{sA}, {rt*16*4096}")
                a(f"buffer_store_dwordx2 {vr(acc,2)}, v{t1}, s[{SO}:{SO+3}], s{sD} offen offset:{tt*32}{['', ' sc1', ' nt', ' sc0 sc1', ' sc1 nt'][opt.get('outsc', 2)]}")
        P.stamp(11)
        P.stamp(8, real=True)
        P.dump(52, sW, 64 << 20, 12)
        a("s_endpgm")
    if not EX2:
        a(f"s_sub_u32 s{sA}, s47, 16384")
        a(f"s_lshr_b32 s{sA}, s{sA}, 8")
        a(f"s_mul_i32 s{sA}, s{sA}, {16*12288}")
        a(f"s_add_u32 s{sA}, s{sA}, {PXOFF}")
        a(f"s_add_u32 s{SPX}, s52, s{sA}")
        a(f"s_addc_u32 s{SPX+1}, s53, 0")
        a(f"s_mov_b32 s{SPX+2}, {16*12288}")
        a(f"s_mov_b32 s{SPX+3}, 0x20000")
        a(f"v_lshlrev_b32 v{t0}, 4, v0")
        a(f"v_add_u32 v{t3}, 4096, v{t0}")
        a(f"s_and_b32 s{sD}, s{sW}, 3")
        a(f"s_lshr_b32 s{sB}, s{sW}, 2")
        a(f"s_mul_i32 s{sB}, s{sB}, 6144")
        a(f"s_cmp_eq_u32 s{sD}, s5")
        a("s_cbranch_scc1 O3_OWNER")
        a(f"s_lshl_b32 s{sA}, s{sD}, 2")
        a(f"s_add_u32 s{sA}, s{sA}, s5")
        a(f"s_mul_i32 s{sA}, s{sA}, 12288")
        a(f"s_add_u32 s{sA}, s{sA}, s{sB}")
        a("s_nop 4")
        for tile in range(6):
            a(f"buffer_store_dwordx4 {vr(ACC+4*tile,4)}, v{t0 if tile < 4 else t3}, s[{SPX}:{SPX+3}], s{sA} offen offset:{(tile & 3)*1024} sc1")
        a("s_waitcnt vmcnt(0)")
        a("s_barrier")
        a(f"s_cmp_lg_u32 s{sW}, 0")
        a("s_cbranch_scc1 O3_FIN")
        a.label("O3_FLAG2")
        a(f"s_lshl_b32 s{sA}, s5, 2")
        a(f"s_add_u32 s{sA}, s{sA}, s47")
        a(f"v_mov_b32 v{t1}, s96")
        a(f"v_mov_b32 v{t2}, s{sA}")
        a("s_mov_b64 exec, 1")
        a(f"buffer_store_dword v{t1}, v{t2}, s[{SFL}:{SFL+3}], 0 offen sc1")
        a("s_mov_b64 exec, -1")
        a(f"s_cmp_eq_u32 s5, 0")
        a("s_cbranch_scc1 O3_OWN2")
        a.label("O3_FIN")
        P.stamp(11)
        P.stamp(8, real=True)
        P.dump(52, sW, 64 << 20, 12)
        a("s_endpgm")
        a.label("O3_OWNER")
        a("s_barrier")
        a(f"s_cmp_eq_u32 s{sW}, 0")
        a("s_cbranch_scc1 O3_FLAG2")
        a.label("O3_OWN2")
        P.stamp(3)
        a(f"v_lshlrev_b32 v{t1}, 2, v0")
        a(f"v_add_u32 v{t1}, s47, v{t1}")
        a("s_mov_b64 exec, 15")
        a(f"s_mov_b32 s{sP}, 0")
        a.label("O3_POLL2")
        a(f"buffer_load_dword v{t2}, v{t1}, s[{SFL}:{SFL+3}], 0 offen sc1")
        a("s_waitcnt vmcnt(0)")
        a(f"v_cmp_eq_u32 vcc, s96, v{t2}")
        a("s_nop 1")
        a("s_cmp_eq_u32 vcc_lo, 15")
        a("s_cbranch_scc1 O3_POLL2_OK")
        a(f"s_sleep {opt.get('psleep', 2)}")
        a(f"s_add_u32 s{sP}, s{sP}, 1")
        a(f"s_cmp_lt_u32 s{sP}, 400000")
        a("s_cbranch_scc1 O3_POLL2")
        a.label("O3_POLL2_OK")
        a("s_mov_b64 exec, -1")
        P.stamp(4)
        if PROF: a(f"s_mov_b32 s{P.base+2}, s{sP}")
        for r in range(3):
            a(f"s_add_u32 s{sA}, s5, {r+1}")
            a(f"s_and_b32 s{sA}, s{sA}, 3")
            a(f"s_lshl_b32 s{sD}, s5, 2")
            a(f"s_add_u32 s{sA}, s{sA}, s{sD}")
            a(f"s_mul_i32 s{sA}, s{sA}, 12288")
            a(f"s_add_u32 s{sA}, s{sA}, s{sB}")
            for tile in range(6):
                a(f"buffer_load_dwordx4 {vr(RX+24*r+4*tile,4)}, v{t0 if tile < 4 else t3}, s[{SPX}:{SPX+3}], s{sA} offen offset:{(tile & 3)*1024} sc1")
        a(f"s_lshr_b32 s{sA}, s7, 1")
        a(f"s_mul_i32 s{sA}, s{sA}, 96")
        a(f"s_lshr_b32 s{sD}, s{sW}, 2")
        a(f"s_mul_i32 s{sD}, s{sD}, 48")
        a(f"s_add_u32 s{sA}, s{sA}, s{sD}")
        a(f"s_lshl_b32 s{sA}, s{sA}, 12")
        a(f"s_lshl_b32 s{sD}, s6, 11")
        a(f"s_add_u32 s{sA}, s{sA}, s{sD}")
        a(f"s_lshl_b32 s{sD}, s46, 8")
        a(f"s_add_u32 s{sA}, s{sA}, s{sD}")
        a(f"s_lshl_b32 s{sD}, s5, 6")
        a(f"s_add_u32 s{sA}, s{sA}, s{sD}")
        a(f"s_mov_b32 s{SO}, s48")
        a(f"s_mov_b32 s{SO+1}, s49")
        a(f"s_mov_b32 s{SO+2}, {8*48*2048*2}")
        a(f"s_mov_b32 s{SO+3}, 0x20000")
        a(f"v_and_b32 v{t1}, 15, v0")
        a(f"v_lshrrev_b32 v{t2}, 4, v0")
        a(f"v_lshlrev_b32 v{t1}, 12, v{t1}")
        a(f"v_lshl_add_u32 v{t1}, v{t2}, 3, v{t1}")
        for r in range(3):
            a(f"s_waitcnt vmcnt({12-6*r})")
            for k in range(24):
                a(f"v_add_f32 v{ACC+k}, v{ACC+k}, v{RX+24*r+k}")
        P.stamp(5)
        for tt in range(2):
            for rt in range(3):
                acc = ACC + (tt*3+rt)*4
                a(f"v_cvt_pk_bf16_f32 v{acc}, v{acc}, v{acc+1}")
                a(f"v_cvt_pk_bf16_f32 v{acc+1}, v{acc+2}, v{acc+3}")
                a(f"s_add_u32 s{sD}, s{sA}, {rt*16*4096}")
                a(f"buffer_store_dwordx2 {vr(acc,2)}, v{t1}, s[{SO}:{SO+3}], s{sD} offen offset:{tt*32}{['', ' sc1', ' nt', ' sc0 sc1', ' sc1 nt'][opt.get('outsc', 2)]}")
        P.stamp(11)
        P.stamp(8, real=True)
        P.dump(52, sW, 64 << 20, 12)
        a("s_endpgm")

    a.label("O3_LOADER")
    a("s_cmp_eq_u32 s6, 0")
    a(f"s_cselect_b64 s[{SWO}:{SWO+1}], s[36:37], s[50:51]")
    a(f"s_lshl_b32 s{sA}, s5, 21")
    a(f"s_lshl_b32 s{sB}, s46, 8")
    a(f"s_add_u32 s{sA}, s{sA}, s{sB}")
    a(f"s_add_u32 s{SWO}, s{SWO}, s{sA}")
    a(f"s_addc_u32 s{SWO+1}, s{SWO+1}, 0")
    a(f"s_sub_u32 s{SWO+2}, 2097152, s{sB}")
    a(f"s_mov_b32 s{SWO+3}, 0x20000")
    if DO:
        a(f"s_lshl_b32 s{sA}, s6, 2")
        a(f"s_add_u32 s{sA}, s{sA}, s5")
        a(f"s_lshl_b32 s{sA}, s{sA}, 3")
        a(f"s_and_b32 s{sB}, s7, 6")
        a(f"s_add_u32 s{sA}, s{sA}, s{sB}")
        a(f"s_mul_i32 s{sA}, s{sA}, {4*24576}")
        a(f"s_add_u32 s{SX}, s52, s{sA}")
        a(f"s_addc_u32 s{SX+1}, s53, 0")
        a(f"s_mov_b32 s{SX+2}, {8*24576}")
    else:
        a(f"s_lshr_b32 s{sA}, s7, 1")
        a(f"s_mul_i32 s{sA}, s{sA}, 96")
        a(f"s_mul_i32 s{sB}, s6, 384")
        a(f"s_add_u32 s{sA}, s{sA}, s{sB}")
        a(f"s_lshl_b32 s{sA}, s{sA}, 13")
        a(f"s_lshl_b32 s{sB}, s5, 11")
        a(f"s_add_u32 s{sA}, s{sA}, s{sB}")
        a(f"s_add_u32 s{SX}, s52, s{sA}")
        a(f"s_addc_u32 s{SX+1}, s53, 0")
        a(f"s_sub_u32 s{SX+2}, {96*8192}, s{sB}")
    a(f"s_mov_b32 s{SX+3}, 0x20000")
    a(f"s_sub_u32 s{sLam}, s{sW}, 8")
    a(f"v_lshrrev_b32 v{t0}, 4, v0")
    a(f"v_and_b32 v{t1}, 15, v0")
    a(f"s_and_b32 s{sA}, s{sLam}, 1")
    a(f"s_lshl_b32 s{sB}, s{sA}, 2")
    a(f"v_or_b32 v{t2}, s{sB}, v{t0}")
    a(f"v_lshlrev_b32 v{t2}, 1, v{t2}")
    a(f"v_xor_b32 v{t2}, v{t1}, v{t2}")
    a(f"v_lshlrev_b32 v{t2}, 4, v{t2}")
    a(f"v_lshl_add_u32 v{vWo}, v{t0}, 11, v{t2}")
    if DO:
        a(f"s_mov_b32 s{sA}, s{sLam}")
    else:
        a(f"s_lshl_b32 s{sA}, s{sA}, 1")
        a(f"s_lshr_b32 s{sB}, s{sLam}, 1")
        a(f"s_lshl_b32 s{sB}, s{sB}, 2")
        a(f"s_add_u32 s{sA}, s{sA}, s{sB}")
    a(f"s_lshl_b32 s{sB}, s{sA}, 13")
    a(f"v_add_u32 v{vWo}, s{sB}, v{vWo}")
    a(f"s_lshl_b32 s{sSl}, s{sA}, 10")
    a(f"s_add_u32 s{sD}, s{sSl}, {NS*STG}")
    vX = [[24, 25, 26], [27, 28, 29]]
    vXt = [30, 31, 32]
    def x_setup():
        a(f"s_lshr_b32 s{sA}, s{sLam}, 1")
        a(f"s_lshl_b32 s{sA}, s{sA}, 11")
        a(f"s_and_b32 s{sB}, s{sLam}, 1")
        a(f"s_lshl_b32 s{sB}, s{sB}, 10")
        a(f"s_add_u32 s{sA}, s{sA}, s{sB}")
        for j in range(3):
            row, base = t0, t1
            if j == 0:
                a(f"v_mov_b32 v{row}, v0")
                a(f"v_mov_b32 v{base}, s{sA}")
            elif j == 1:
                a(f"v_cmp_gt_u32 vcc, 32, v0")
                a(f"v_add_u32 v{t2}, 64, v0")
                a(f"v_subrev_u32 v{t3}, 32, v0")
                a(f"v_cndmask_b32 v{row}, v{t3}, v{t2}, vcc")
                a(f"v_mov_b32 v{t2}, 512")
                a(f"v_cndmask_b32 v{base}, v{t2}, 0, vcc")
                a(f"v_add_u32 v{base}, s{sA}, v{base}")
            else:
                a(f"v_add_u32 v{row}, 32, v0")
                a(f"v_mov_b32 v{base}, 512")
                a(f"v_add_u32 v{base}, s{sA}, v{base}")
            a(f"v_cmp_le_u32 vcc, 48, v{row}")
            a(f"v_subrev_u32 v{t2}, 48, v{row}")
            a(f"v_cndmask_b32 v{row}, v{row}, v{t2}, vcc")
            a(f"v_add_u32 v{t2}, {4*24576}, v{base}")
            a(f"v_cndmask_b32 v{base}, v{base}, v{t2}, vcc")
            for hd in range(2):
                a(f"v_add_u32 v{t2}, {48*hd}, v{row}")
                a(f"v_lshrrev_b32 v{t3}, 5, v{t2}")
                a(f"v_and_b32 v{t2}, 31, v{t2}")
                a(f"v_lshl_add_u32 v{t2}, v{t2}, 4, v{base}")
                a(f"v_lshl_add_u32 v{vX[hd][j]}, v{t3}, 13, v{t2}")
        a(f"s_mul_i32 s{sSlX}, s{sLam}, 3072")
        a(f"s_mov_b32 s{sXg}, 0")
    if not DO:
        a(f"v_lshrrev_b32 v{t1}, 3, v0")
        a(f"s_lshl_b32 s{sA}, s{sLam}, 3")
        a(f"v_add_u32 v{t1}, s{sA}, v{t1}")
        a(f"s_and_b32 s{sA}, s{sLam}, 1")
        a(f"s_lshl_b32 s{sA}, s{sA}, 2")
        a(f"v_add_u32 v{t0}, s{sA}, v{t0}")
        a(f"v_and_b32 v{t2}, 7, v0")
        a(f"v_xor_b32 v{t2}, v{t2}, v{t0}")
        a(f"v_lshlrev_b32 v{t2}, 4, v{t2}")
        a(f"v_lshl_add_u32 v{vXo}, v{t1}, 13, v{t2}")
        a(f"s_lshl_b32 s{sSlX}, s{sLam}, 10")
        a(f"s_lshl_b32 s{sXg}, s3, 9")
        a(f"s_add_u32 s40, s{sSlX}, {NS*STG}")
    a(f"s_lshl_b32 s{sWg}, s3, 19")
    def issueW():
        for j in range(4):
            dm = 4*j if DO else (j & 1) + 8*(j >> 1)
            a(f"s_add_u32 m0, s{sSl}, {dm*1024}")
            a(f"s_add_u32 s{sA}, s{sWg}, {dm*8192}")
            if not opt.get("o3ab", 0) & 1: a(f"buffer_load_dwordx4 v{vWo}, s[{SWO}:{SWO+3}], s{sA} offen lds")
        a(f"s_add_u32 s{sSl}, s{sSl}, {STG}")
        a(f"s_cmp_ge_u32 s{sSl}, s{sD}")
        a(f"s_cselect_b32 s{sB}, {NS*STG}, 0")
        a(f"s_sub_u32 s{sSl}, s{sSl}, s{sB}")
        a(f"s_add_u32 s{sWg}, s{sWg}, 131072")
        a(f"s_and_b32 s{sWg}, s{sWg}, 0x1fffff")
    def issueX():
        if DO:
            a(f"s_bitcmp1_b32 s{sXg}, 1")
            a("s_cselect_b64 vcc, -1, 0")
            a(f"s_lshr_b32 s{sA}, s{sXg}, 2")
            a(f"s_add_u32 s{sA}, s{sA}, s3")
            a(f"s_and_b32 s{sA}, s{sA}, 3")
            a(f"s_mul_i32 s{sA}, s{sA}, 24576")
            a(f"s_and_b32 s{sB}, s{sXg}, 1")
            a(f"s_lshl_b32 s{sB}, s{sB}, 12")
            a(f"s_add_u32 s{sA}, s{sA}, s{sB}")
            for j in range(3):
                a(f"v_cndmask_b32 v{vXt[j]}, v{vX[0][j]}, v{vX[1][j]}, vcc")
            for j in range(3):
                a(f"s_add_u32 m0, s{sSlX}, {16384 + j*1024}")
                a("s_nop 0")
                a(f"buffer_load_dwordx4 v{vXt[j]}, s[{SX}:{SX+3}], s{sA} offen sc1 lds")
            a(f"s_add_u32 s{sSlX}, s{sSlX}, {STG}")
            a(f"s_cmp_ge_u32 s{sSlX}, s40")
            a(f"s_cselect_b32 s{sB}, {NS*STG}, 0")
            a(f"s_sub_u32 s{sSlX}, s{sSlX}, s{sB}")
            a(f"s_add_u32 s{sXg}, s{sXg}, 1")
            return
        for j in range(3):
            a(f"s_add_u32 m0, s{sSlX}, {16384 + j*4096}")
            a(f"s_add_u32 s{sA}, s{sXg}, {j*262144}")
            if not opt.get("o3ab", 0) & 2: a(f"buffer_load_dwordx4 v{vXo}, s[{SX}:{SX+3}], s{sA} offen{'' if (opt.get('o3ab', 0) & 4 or opt.get('loc', 0) & 8) else ' sc1'} lds")
        a(f"s_add_u32 s{sSlX}, s{sSlX}, {STG}")
        a(f"s_cmp_ge_u32 s{sSlX}, s40")
        a(f"s_cselect_b32 s{sB}, {NS*STG}, 0")
        a(f"s_sub_u32 s{sSlX}, s{sSlX}, s{sB}")
        a(f"s_add_u32 s{sXg}, s{sXg}, 128")
        a(f"s_and_b32 s{sXg}, s{sXg}, 0x7ff")
    def loop(n, body, uid):
        if n == 0: return
        a(f"s_mov_b32 s{sP}, 0")
        a.label(f"O3_LP{uid}")
        body()
        a(f"s_add_u32 s{sP}, s{sP}, 1")
        a(f"s_cmp_lt_u32 s{sP}, {n}")
        a(f"s_cbranch_scc1 O3_LP{uid}")
    WE = opt.get("wearly", 2)
    loop(WE, issueW, 0)
    if DO:
        assert WE <= 2
        x_setup()
        a(f"s_add_u32 s40, s{sSlX}, {NS*STG}")
        a(f"s_waitcnt vmcnt({4*WE})")
    else:
        P.stamp(6)
    a("s_barrier")
    P.stamp(7)
    if opt.get("o3diag", 0):
        a("s_waitcnt vmcnt(0)")
        P.stamp(2)
    loop(5 - WE, issueW, 1)
    if opt.get("o3diag", 0):
        a("s_waitcnt vmcnt(0)")
        P.stamp(3)
    a(f"s_cmp_lg_u32 s{sW}, {99 if PPOLL else 8}")
    a("s_cbranch_scc1 O3_POLL_DONE")
    a(f"v_lshlrev_b32 v{vPa}, 2, v0")
    a(f"v_add_u32 v{vPa}, s45, v{vPa}")
    if F1L:
        a(f"s_lshl_b32 s{sA}, s46, 7")
        a(f"v_add_u32 v{vPa}, s{sA}, v{vPa}")
    a("s_mov_b64 exec, 0xff")
    a(f"s_mov_b32 s{sP}, 0")
    a.label("O3_POLL1")
    if opt.get('loc', 0) & 4:
        a(f"v_mov_b32 v{vPoll}, 0")
        a(f"buffer_atomic_or v{vPoll}, v{vPa}, s[{SFL}:{SFL+3}], 0 offen sc0")
    else:
        a(f"buffer_load_dword v{vPoll}, v{vPa}, s[{SFL}:{SFL+3}], 0 offen sc1")
    a("s_waitcnt vmcnt(0)")
    a(f"v_cmp_eq_u32 vcc, s96, v{vPoll}")
    a("s_nop 1")
    a("s_cmp_eq_u32 vcc_lo, 0xff")
    a("s_cbranch_scc1 O3_POLL_OK")
    a(f"s_sleep {opt.get('psleep', 2)}")
    a(f"s_add_u32 s{sP}, s{sP}, 1")
    a(f"s_cmp_lt_u32 s{sP}, 400000")
    a("s_cbranch_scc1 O3_POLL1")
    a.label("O3_POLL_OK")
    a("s_mov_b64 exec, -1")
    a.label("O3_POLL_DONE")
    P.stamp(9)
    a("s_barrier")
    P.stamp(10)
    loop(5, issueX, 2)
    a("s_waitcnt vmcnt(12)")
    if opt.get("o3diag", 0): P.stamp(4)
    a("s_barrier")
    if opt.get("la4", 1 if opt.get("pw", 1) else 0):
        a("s_waitcnt vmcnt(9)")
        a("s_barrier")
        for cnt in (6, 10):
            a(f"s_waitcnt vmcnt({cnt})")
            a("s_barrier")
            issueW(); issueX()
        a(f"s_mov_b32 s{sP}, 3")
        a.label("O3_L_LOOP")
        a("s_waitcnt vmcnt(14)")
        a("s_barrier")
        issueW(); issueX()
        a(f"s_add_u32 s{sP}, s{sP}, 1")
        a(f"s_cmp_lt_u32 s{sP}, 12")
        a("s_cbranch_scc1 O3_L_LOOP")
        for cnt in (14, 7, 0):
            a(f"s_waitcnt vmcnt({cnt})")
            a("s_barrier")
    else:
      for cnt in (9, 13, 17):
        a(f"s_waitcnt vmcnt({cnt})")
        a("s_barrier")
        issueW(); issueX()
      a(f"s_mov_b32 s{sP}, 3")
      a.label("O3_L_LOOP")
      a("s_waitcnt vmcnt(21)")
      a("s_barrier")
      issueW(); issueX()
      a(f"s_add_u32 s{sP}, s{sP}, 1")
      a(f"s_cmp_lt_u32 s{sP}, 11")
      a("s_cbranch_scc1 O3_L_LOOP")
      for s_ in range(11, 15):
        a(f"s_waitcnt vmcnt({7*(15-(s_+1))})")
        a("s_barrier")
    P.dump(52, sW, 64 << 20, 12)

def outproj(a, opt, P, fused):
    sW = 4
    NTW2 = " nt" if opt.get("ntw2", 0) else ""
    XFL = " sc1" if (fused and opt.get("xsc1", 1)) else ""
    SX, SWO, SO, SFL = 8, 12, 16, 28
    sA, sB, sD, sLam, sP = 20, 21, 22, 23, 24
    sSl, sWg, sXg = 25, 26, 27
    NS = 5
    STG = 28672
    t0, t1, t2, t3, t4 = 1, 2, 3, 4, 5
    WA = 6
    XA = 10
    vWo, vXo, vPoll = 20, 21, 22
    ACC = 12
    FR = 60
    NV = 116
    END = "K1_END" if fused else "K2_END"
    if fused:
        a(f"s_cmp_lg_u32 s{sW}, 0")
        a("s_cbranch_scc1 OP_NOFLAG")
        a(f"s_lshl_b32 s{sA}, s46, 2")
        a(f"v_mov_b32 v{t0}, s96")
        a(f"v_mov_b32 v{t1}, s{sA}")
        a("s_mov_b64 exec, 1")
        a(f"buffer_store_dword v{t0}, v{t1}, s[{SFL}:{SFL+3}], 0 offen sc1")
        a("s_mov_b64 exec, -1")
        a.label("OP_NOFLAG")
        a(f"s_cmp_ge_u32 s{sW}, 8")
        a(f"s_cbranch_scc1 {END}")
    def srd_w():
        a("s_cmp_eq_u32 s6, 0")
        a(f"s_cselect_b64 s[{SWO}:{SWO+1}], s[36:37], s[50:51]")
        a(f"s_lshl_b32 s{sA}, s5, 9")
        a(f"s_lshl_b32 s{sB}, s3, 7")
        a(f"s_add_u32 s{sA}, s{sA}, s{sB}")
        a(f"s_add_u32 s{SWO}, s{SWO}, s{sA}")
        a(f"s_addc_u32 s{SWO+1}, s{SWO+1}, 0")
        a(f"s_sub_u32 s{SWO+2}, 8388608, s{sA}")
        a(f"s_mov_b32 s{SWO+3}, 0x20000")
    def srd_x():
        a(f"s_lshl_b32 s{sB}, s6, 3")
        a(f"s_add_u32 s{sB}, s{sB}, s7")
        a(f"s_mul_i32 s{sD}, s{sB}, {48*8192}")
        a(f"s_add_u32 s{SX}, s52, s{sD}")
        a(f"s_addc_u32 s{SX+1}, s53, 0")
        a(f"s_mov_b32 s{SX+2}, {48*8192}")
        a(f"s_mov_b32 s{SX+3}, 0x20000")
    def srd_o():
        a(f"s_lshl_b32 s{sA}, s5, 9")
        a(f"s_lshl_b32 s{sB}, s3, 7")
        a(f"s_add_u32 s{sA}, s{sA}, s{sB}")
        a(f"s_mul_i32 s{sD}, s7, {48*4096}")
        a(f"s_lshl_b32 s{sB}, s6, 11")
        a(f"s_add_u32 s{sB}, s{sB}, s{sA}")
        a(f"s_add_u32 s{sD}, s{sD}, s{sB}")
        a(f"s_add_u32 s{SO}, s48, s{sD}")
        a(f"s_addc_u32 s{SO+1}, s49, 0")
        a(f"s_sub_u32 s{SO+2}, {48*4096}, s{sB}")
        a(f"s_mov_b32 s{SO+3}, 0x20000")
    if not fused:
        srd_w(); srd_x()
        a(f"s_cmp_ge_u32 s{sW}, 4")
        a("s_cbranch_scc1 OP_LOADER")
    srd_o()
    a(f"v_bfe_u32 v{t0}, v0, 2, 2")
    a(f"v_lshrrev_b32 v{t1}, 4, v0")
    a(f"v_lshl_add_u32 v{t2}, v{t1}, 3, v{t0}")
    a(f"s_lshl_b32 s{sA}, s{sW}, 5")
    a(f"v_add_u32 v{t2}, s{sA}, v{t2}")
    a(f"v_lshlrev_b32 v{t2}, 7, v{t2}")
    a(f"v_bfe_u32 v{t3}, v0, 3, 1")
    a(f"v_bfe_u32 v{t4}, v0, 4, 1")
    a(f"v_lshl_or_b32 v{t3}, v{t4}, 1, v{t3}")
    a(f"v_lshl_add_u32 v{t2}, v{t3}, 5, v{t2}")
    a(f"v_and_b32 v{t3}, 3, v0")
    a(f"v_lshl_add_u32 v{WA}, v{t3}, 3, v{t2}")
    for t in range(1, 4):
        a(f"v_xor_b32 v{WA+t}, {t << 5}, v{WA}")
    a(f"v_and_b32 v{t0}, 15, v0")
    a(f"s_lshl_b32 s{sA}, s{sW}, 2")
    a(f"v_add_u32 v{t2}, s{sA}, v{t1}")
    a(f"v_xor_b32 v{t2}, v{t2}, v{t0}")
    a(f"v_lshlrev_b32 v{t2}, 4, v{t2}")
    a(f"v_lshl_add_u32 v{t2}, v{t0}, 8, v{t2}")
    a(f"v_add_u32 v{XA}, 16384, v{t2}")
    for r in range(0, 48, 2):
        a(f"v_mov_b64 {vr(ACC+r,2)}, 0")
    def reads(buf):
        fb = FR + buf*28
        for t in range(4):
            for e in range(2):
                a(f"ds_read_b64_tr_b16 {vr(fb+4*t+2*e,2)}, v{WA+t} offset:{e*512}")
        for rt in range(3):
            a(f"ds_read_b128 {vr(fb+16+4*rt,4)}, v{XA} offset:{rt*4096}")
    def adv():
        a(f"s_add_u32 s{sA}, s{sSl}, {STG}")
        a(f"s_cmp_ge_u32 s{sA}, {NS*STG}")
        a(f"s_cselect_b32 s{sB}, {NS*STG}, 0")
        a(f"s_sub_u32 s{sA}, s{sA}, s{sB}")
        a(f"s_sub_u32 s{sD}, s{sA}, s{sSl}")
        a(f"s_mov_b32 s{sSl}, s{sA}")
        for t in range(4):
            a(f"v_add_u32 v{WA+t}, s{sD}, v{WA+t}")
        a(f"v_add_u32 v{XA}, s{sD}, v{XA}")
    def mfmas(buf):
        fb = FR + buf*28
        for rt in range(3):
            for t in range(4):
                acc = ACC + (t*3+rt)*4
                a(f"{MF16} {vr(acc,4)}, {vr(fb+4*t,4)}, {vr(fb+16+4*rt,4)}, {vr(acc,4)}")
    a(f"s_mov_b32 s{sSl}, 0")
    a("s_barrier")
    P.stamp(9 if fused else 2)
    reads(0); adv()
    a("s_waitcnt lgkmcnt(0)")
    a(f"s_mov_b32 s{sP}, 0")
    if fused:
        a("s_barrier")
        reads(1); adv()
        mfmas(0)
        a("s_waitcnt lgkmcnt(0)")
        a("s_barrier")
        for half in (1, 0):
            a("s_barrier")
            reads(1-half); adv()
            mfmas(half)
            a("s_waitcnt lgkmcnt(0)")
        a("s_barrier")
        a(f"s_mov_b32 s{sP}, 1")
        a("s_branch OP_C_MID")
    a.label("OP_C_LOOP")
    for half in range(2):
        if half == 1: a.label("OP_C_MID")
        a("s_barrier")
        reads(1-half); adv()
        mfmas(half)
        a("s_waitcnt lgkmcnt(0)")
        if half == 0:
            a(f"s_cmp_eq_u32 s{sP}, 15")
            a("s_cbranch_scc1 OP_C_DONE")
    a(f"s_add_u32 s{sP}, s{sP}, 1")
    a("s_branch OP_C_LOOP")
    a.label("OP_C_DONE")
    mfmas(1)
    P.stamp(10 if fused else 3)
    a("s_barrier")
    a("s_nop 7")
    a(f"v_lshlrev_b32 v{t0}, 4, v0")
    a(f"s_mul_i32 s{sA}, s{sW}, 12288")
    a(f"v_add_u32 v{t1}, s{sA}, v{t0}")
    for tile in range(12):
        a(f"ds_write_b128 v{t1}, {vr(ACC+4*tile,4)} offset:{tile*1024}")
    a("s_waitcnt lgkmcnt(0)")
    a("s_barrier")
    a(f"s_mul_i32 s{sA}, s{sW}, 3072")
    a(f"v_add_u32 v{t1}, s{sA}, v{t0}")
    for src in range(4):
        for rt in range(3):
            a(f"ds_read_b128 {vr(ACC+(src*3+rt)*4,4)}, v{t1} offset:{src*12288+rt*1024}")
    a("s_waitcnt lgkmcnt(0)")
    for rt in range(3):
        for r in range(4):
            d = ACC + rt*4 + r
            a(f"v_add_f32 v{d}, v{d}, v{d+12}")
            a(f"v_add_f32 v{d+24}, v{d+24}, v{d+36}")
        for r in range(4):
            d = ACC + rt*4 + r
            a(f"v_add_f32 v{d}, v{d}, v{d+24}")
        d = ACC + rt*4
        a(f"v_cvt_pk_bf16_f32 v{d}, v{d}, v{d+1}")
        a(f"v_cvt_pk_bf16_f32 v{d+1}, v{d+2}, v{d+3}")
    a(f"v_and_b32 v{t0}, 15, v0")
    a(f"v_lshrrev_b32 v{t1}, 4, v0")
    a(f"v_lshlrev_b32 v{t0}, 12, v{t0}")
    a(f"v_lshl_add_u32 v{t0}, v{t1}, 3, v{t0}")
    a(f"s_lshl_b32 s{sA}, s{sW}, 5")
    a(f"v_add_u32 v{t0}, s{sA}, v{t0}")
    for rt in range(3):
        a(f"s_mov_b32 s{sA}, {rt*16*4096}")
        a(f"buffer_store_dwordx2 {vr(ACC+rt*4,2)}, v{t0}, s[{SO}:{SO+3}], s{sA} offen")
    if fused:
        P.stamp(11)
        P.stamp(8, real=True)
        P.dump(52, sW, 64 << 20, 12)
    else:
        P.stamp(4)
        if PROF: a("s_waitcnt vmcnt(0)")
        P.stamp(5)
        P.stamp(6, real=True)
        P.dump(52, sW, 65 << 20, 12)
    a("s_endpgm")

    a.label("OP_LOADER0" if fused else "OP_LOADER")
    if fused:
        srd_w(); srd_x()
    a(f"s_sub_u32 s{sLam}, s{sW}, 4")
    a(f"v_lshrrev_b32 v{t0}, 3, v0")
    a(f"v_and_b32 v{t1}, 7, v0")
    a(f"v_bfe_u32 v{t2}, v0, 4, 1")
    a(f"s_and_b32 s{sA}, s{sLam}, 1")
    a(f"s_lshl_b32 s{sA}, s{sA}, 1")
    a(f"v_or_b32 v{t2}, s{sA}, v{t2}")
    a(f"v_lshlrev_b32 v{t2}, 1, v{t2}")
    a(f"v_xor_b32 v{t1}, v{t1}, v{t2}")
    a(f"v_lshlrev_b32 v{t1}, 4, v{t1}")
    a(f"s_lshl_b32 s{sA}, s{sLam}, 3")
    a(f"v_add_u32 v{t0}, s{sA}, v{t0}")
    a(f"v_lshl_add_u32 v{vWo}, v{t0}, 11, v{t1}")
    a(f"v_lshrrev_b32 v{t0}, 4, v0")
    a(f"v_and_b32 v{t1}, 15, v0")
    a(f"s_lshl_b32 s{sA}, s{sLam}, 2")
    a(f"v_or_b32 v{t2}, s{sA}, v{t0}")
    a(f"v_xor_b32 v{t1}, v{t1}, v{t2}")
    a(f"v_lshlrev_b32 v{t1}, 4, v{t1}")
    a(f"v_lshl_add_u32 v{vXo}, v{t2}, 13, v{t1}")
    def issueW(slot_s, goff_s):
        for j in range(4):
            a(f"s_add_u32 m0, s{slot_s}, {j*4096}")
            a(f"s_add_u32 s{sA}, s{goff_s}, {j*32*2048}")
            a(f"buffer_load_dwordx4 v{vWo}, s[{SWO}:{SWO+3}], s{sA} offen{NTW2} lds")
    def issueX(slot_s, goff_s):
        for j in range(3):
            a(f"s_add_u32 m0, s{slot_s}, {16384 + j*4096}")
            a(f"s_add_u32 s{sA}, s{goff_s}, {j*16*8192}")
            a(f"buffer_load_dwordx4 v{vXo}, s[{SX}:{SX+3}], s{sA} offen{XFL} lds")
    def adv_slot(r):
        a(f"s_add_u32 s{r}, s{r}, {STG}")
        a(f"s_cmp_ge_u32 s{r}, s{sD}")
        a(f"s_cselect_b32 s{sB}, {NS*STG}, 0")
        a(f"s_sub_u32 s{r}, s{r}, s{sB}")
    sTW, sTX, sTb, sTp = 33, 38, 34, 40
    def sigma(t):
        a(f"s_lshr_b32 s{sA}, s{t}, 1")
        a(f"s_lshl_b32 s{sA}, s{sA}, 2")
        a(f"s_lshr_b64 s[{sTp}:{sTp+1}], s[{sTb}:{sTb+1}], s{sA}")
        a(f"s_and_b32 s{sTp}, s{sTp}, 15")
        a(f"s_lshl_b32 s{sTp}, s{sTp}, 1")
        a(f"s_and_b32 s{sA}, s{t}, 1")
        a(f"s_or_b32 s{sTp}, s{sTp}, s{sA}")
    def advW():
        adv_slot(sSl)
        if fused:
            a(f"s_add_u32 s{sTW}, s{sTW}, 1")
            sigma(sTW)
            a(f"s_lshl_b32 s{sWg}, s{sTp}, 18")
        else:
            a(f"s_add_u32 s{sWg}, s{sWg}, {128*2048}")
    def advX():
        adv_slot(sSlX)
        if fused:
            a(f"s_add_u32 s{sTX}, s{sTX}, 1")
            sigma(sTX)
            a(f"s_lshl_b32 s{sXg}, s{sTp}, 8")
        else:
            a(f"s_add_u32 s{sXg}, s{sXg}, 256")
    def issue():
        issueW(sSl, sWg); advW(); issueX(sSlX, sXg); advX()
    sSlX = 32
    a(f"s_lshl_b32 s{sSl}, s{sLam}, 10")
    a(f"s_mov_b32 s{sSlX}, s{sSl}")
    a(f"s_add_u32 s{sD}, s{sSl}, {NS*STG}")
    if fused:
        a(f"s_mul_i32 s{sA}, s3, 0x11111111")
        a(f"s_mul_i32 s{sB}, s5, 0x11111111")
        for half, hi in ((0, 0x11110000), (1, 0x33332222)):
            a(f"s_add_u32 s{sTp}, s{sA}, 0x32103210")
            a(f"s_and_b32 s{sTp}, s{sTp}, 0x33333333")
            a(f"s_add_u32 s{sTp+1}, s{sB}, {hi:#x}")
            a(f"s_and_b32 s{sTp+1}, s{sTp+1}, 0x33333333")
            a(f"s_lshl_b32 s{sTp+1}, s{sTp+1}, 2")
            a(f"s_or_b32 s{sTb+half}, s{sTp}, s{sTp+1}")
        a(f"s_mov_b32 s{sTW}, 0")
        a(f"s_mov_b32 s{sTX}, 0")
        a(f"s_lshl_b32 s{sWg}, s46, 19")
        a(f"s_lshl_b32 s{sXg}, s46, 9")
        a(f"s_lshl_b32 s{sA}, s5, 2")
        a(f"s_lshl_b32 s39, 15, s{sA}")
        a(f"s_mov_b32 s{sP}, 0")
        a.label("OP_LW")
        issueW(sSl, sWg); advW()
        a(f"s_add_u32 s{sP}, s{sP}, 1")
        a(f"s_cmp_lt_u32 s{sP}, 2")
        a("s_cbranch_scc1 OP_LW")
        P.stamp(6)
        a("s_barrier")
        P.stamp(7)
        a(f"v_lshlrev_b32 v{t3}, 2, v0")
        if opt.get("xdelay", 0): a(f"s_sleep {opt['xdelay']}")
        issueX(sSlX, sXg); advX()
        issueX(sSlX, sXg); advX()
        a("s_waitcnt vmcnt(3)")
        a("s_barrier")
        def look(uid):
            a(f"s_cmp_lg_u32 s{sW}, 4")
            a(f"s_cbranch_scc1 OP_NOLOOK{uid}")
            a("s_mov_b64 exec, 0xffff")
            a(f"buffer_load_dword v{vPoll}, v{t3}, s[{SFL}:{SFL+3}], 0 offen sc1")
            a("s_mov_b64 exec, -1")
            a.label(f"OP_NOLOOK{uid}")
        look(1)
        issueW(sSl, sWg); advW()
        issueW(sSl, sWg); advW()
        a("s_waitcnt vmcnt(8)")
        a("s_barrier")
        issueW(sSl, sWg); advW()
        issueW(sSl, sWg); advW()
        def poll(mask, uid):
            a(f"s_cmp_lg_u32 s{sW}, 4")
            a(f"s_cbranch_scc1 OP_POLL_DONE{uid}")
            a("s_mov_b64 exec, 0xffff")
            a(f"s_mov_b32 s{sP}, 0")
            a.label(f"OP_POLL_LOOP{uid}")
            a(f"v_cmp_eq_u32 vcc, s96, v{vPoll}")
            a("s_nop 1")
            a(f"s_and_b32 s{sA}, vcc_lo, {mask}")
            a(f"s_cmp_eq_u32 s{sA}, {mask}")
            a(f"s_cbranch_scc1 OP_POLL_OK{uid}")
            a(f"s_sleep {opt.get('psleep', 2)}")
            a(f"buffer_load_dword v{vPoll}, v{t3}, s[{SFL}:{SFL+3}], 0 offen sc1")
            a("s_waitcnt vmcnt(0)")
            a(f"s_add_u32 s{sP}, s{sP}, 1")
            a(f"s_cmp_lt_u32 s{sP}, 400000")
            a(f"s_cbranch_scc1 OP_POLL_LOOP{uid}")
            a.label(f"OP_POLL_OK{uid}")
            if uid == 1:
                a(f"buffer_load_dword v{vPoll}, v{t3}, s[{SFL}:{SFL+3}], 0 offen sc1")
            a("s_mov_b64 exec, -1")
            a.label(f"OP_POLL_DONE{uid}")
        poll("s39", 1)
        P.stamp(9)
        a("s_barrier")
        P.stamp(10)
        for _ in range(4):
            issueX(sSlX, sXg); advX()
        for k, cnt in enumerate((9, 13, 17)):
            a(f"s_waitcnt vmcnt({cnt})")
            a("s_barrier")
            if k == 2 or True:
                pass
            if k < 2:
                issue()
                if k == 1:
                    poll("0xffff", 2)
                    a("s_barrier")
            else:
                issue()
        a(f"s_mov_b32 s{sP}, 4")
    else:
        a(f"s_mov_b32 s{sWg}, 0")
        a(f"s_mov_b32 s{sXg}, 0")
        for st in range(5):
            issue()
        a("s_waitcnt vmcnt(28)")
        a("s_barrier")
        a(f"s_mov_b32 s{sP}, 0")
    a.label("OP_L_LOOP")
    a("s_waitcnt vmcnt(21)")
    a("s_barrier")
    issue()
    a(f"s_add_u32 s{sP}, s{sP}, 1")
    a(f"s_cmp_lt_u32 s{sP}, 27")
    a("s_cbranch_scc1 OP_L_LOOP")
    for s_ in range(27, 31):
        a(f"s_waitcnt vmcnt({7*(31-(s_+1))})")
        a("s_barrier")
    a("s_barrier")
    a("s_barrier")
    if fused:
        P.dump(52, sW, 64 << 20, 12)
    return NV

HEADER = open("cdna_kernels/" + NAME + ".s.ref").read().split("; Override launch")[0]

def kd(name, nv, ns):
    acc = (nv + 3)//4*4
    return f"""
.amdhsa_kernel {name}
  .amdhsa_next_free_vgpr {nv}
  .amdhsa_next_free_sgpr {ns}
  .amdhsa_accum_offset {acc}
  .amdhsa_group_segment_fixed_size 0
  .amdhsa_kernarg_size 104
  .amdhsa_user_sgpr_count 2
  .amdhsa_user_sgpr_kernarg_segment_ptr 1
  .amdhsa_system_sgpr_workgroup_id_x 1
.end_amdhsa_kernel
"""

def main(out, opt):
    fused = opt.get("fused", 1)
    a1 = Asm(); nv1 = kernel1(a1, opt)
    s = HEADER
    if fused:
        body = a1.text().replace("k1_kernel", NAME + "_kernel")
        s += "; @launch grid=(256,1,1) block=(768,1,1) lds=163840\n"
        s += '.amdgcn_target "amdgcn-amd-amdhsa--gfx950"\n.text\n'
        nm = NAME + "_kernel"
        s += f".globl {nm}\n.p2align 8\n.type {nm},@function\n" + body
        s += '.section .rodata,"a"\n'
        s += ".p2align 6" + kd(nm, nv1, 102)
    else:
        a2 = Asm(); nv2 = kernel2(a2, opt)
        s += "; @launch kernel=k1_kernel grid=(256,1,1) block=(768,1,1) lds=163840\n"
        s += "; @launch kernel=k2_kernel grid=(256,1,1) block=(512,1,1) lds=143360\n"
        s += '.amdgcn_target "amdgcn-amd-amdhsa--gfx950"\n.text\n'
        for nm, body in (("k1_kernel", a1), ("k2_kernel", a2)):
            s += f".globl {nm}\n.p2align 8\n.type {nm},@function\n" + body.text()
        s += '.section .rodata,"a"\n'
        s += ".p2align 6" + kd("k1_kernel", nv1, 102) + ".p2align 6" + kd("k2_kernel", nv2, 96)
    open(out, "w").write(s)

if __name__ == "__main__":
    if "--prof" in sys.argv:
        PROF = True
        sys.argv.remove("--prof")
    if "--rt" in sys.argv:
        PROF = True
        RT = True
        sys.argv.remove("--rt")
    if "--dbgprof" in sys.argv:
        PROF = True
        DBGPROF = True
        sys.argv.remove("--dbgprof")
    if "--fine" in sys.argv:
        PROF = True
        FINE = True
        sys.argv.remove("--fine")
    if "--cdiag" in sys.argv:
        PROF = True
        CDIAG = True
        sys.argv.remove("--cdiag")
    if "--trdiag" in sys.argv:
        PROF = True
        TRDIAG = True
        sys.argv.remove("--trdiag")
    opt = {}
    for x in list(sys.argv):
        if x.startswith("--o:"):
            k, v = x[4:].split("=")
            opt[k] = int(v)
            sys.argv.remove(x)
    main(sys.argv[1] if len(sys.argv) > 1 else "cdna_kernels/" + NAME + ".s", opt)
```
